```python
import torch

def _softmax(x, axis=-1):
    return torch.softmax(x, dim=axis)
def _gelu(x):
    return torch.nn.functional.gelu(x, approximate="tanh")
def _silu(x):
    return torch.nn.functional.silu(x)
def _sigmoid(x):
    return torch.sigmoid(x)
def _layernorm(x, axis=-1, eps=1e-5):
    m = x.mean(dim=axis, keepdim=True)
    v = x.var(dim=axis, keepdim=True, unbiased=False)
    return (x - m) / torch.sqrt(v + eps)
def _scatter_add(tgt, idx, src, axis=0):
    return tgt.clone().index_add_(axis, idx, src)
def _segment_sum(src, seg, n):
    out = torch.zeros((n,) + src.shape[1:], dtype=src.dtype)
    return out.index_add_(0, seg, src)
def _pad(x, pw):
    flat = tuple(v for pair in reversed(pw) for v in pair)
    return torch.nn.functional.pad(x, flat)

kernel_name = 'interleave_layers__ssm_conv_h3__swiglu_ffn__prompt'

def setup_inputs():

    _w = (lambda a: (lambda t: t.to(torch.bfloat16) if t.is_floating_point() else t)(torch.as_tensor(a)))
    def _A_setup():
        B, S, D = 1, 2048, 640
        ks = 4
        return {
            "q": _w((lambda *s: torch.randn(*s, dtype=torch.bfloat16) * 0.05)(B, S, D)),
            "k": _w((lambda *s: torch.randn(*s, dtype=torch.bfloat16) * 0.8)(B, S, D)),
            "v": _w((lambda *s: torch.randn(*s, dtype=torch.bfloat16) * 0.8)(B, S, D)),
            "shift_k": _w((lambda *s: torch.randn(*s, dtype=torch.bfloat16) * 0.8)(D, ks) * 0.5),
            "ssm_k": _w((lambda *s: torch.randn(*s, dtype=torch.bfloat16) * 0.8)(D, S) * (1.0 / S ** 0.5)),
            "ssm_D": _w((lambda *s: torch.randn(*s, dtype=torch.bfloat16) * 0.8)(D)),
        }
    _A_in = _A_setup()

    def _B_setup():
        B, S, D, F = 1, 2048, 640, 1536
        return {
            "x": _w((lambda *s: torch.randn(*s, dtype=torch.bfloat16) * 0.05)(B, S, D)),
            "w_gate": _w((lambda *s: torch.randn(*s, dtype=torch.bfloat16) * 0.1)(D, F)),
            "w_up": _w((lambda *s: torch.randn(*s, dtype=torch.bfloat16) * 0.1)(D, F)),
            "w_down": _w((lambda *s: torch.randn(*s, dtype=torch.bfloat16) * 0.1)(F, D)),
        }
    _B_in = _B_setup()

    return {
        "A_q": _A_in["q"],
        "A_k": _A_in["k"],
        "A_v": _A_in["v"],
        "A_shift_k": _A_in["shift_k"],
        "A_ssm_k": _A_in["ssm_k"],
        "A_ssm_D": _A_in["ssm_D"],
        "B_x": _B_in["x"],
        "B_w_gate": _B_in["w_gate"],
        "B_w_up": _B_in["w_up"],
        "B_w_down": _B_in["w_down"],
    }

def reference(A_q, A_k, A_v, A_shift_k, A_ssm_k, A_ssm_D, B_x, B_w_gate, B_w_up, B_w_down):
    def _A_ref(q, k, v, shift_k, ssm_k, ssm_D):
        B, S, D = q.shape
        ks = shift_k.shape[-1]
        k_pad = _pad(k, ((0, 0), (ks - 1, 0), (0, 0)))
        k_shift = torch.zeros_like(k)
        for t in range(ks):
            k_shift = k_shift + k_pad[:, t:t + S, :] * shift_k[:, ks - 1 - t][None, None, :]
        kv = k_shift * v
        L = 2 * S
        kv_pad = _pad(kv, ((0, 0), (0, S), (0, 0)))
        kf_pad = _pad(ssm_k, ((0, 0), (0, S)))
        kv_f = (lambda x, axes=(-2,-1): torch.fft.rfft2(x.float(), dim=axes))(kv_pad[:, None, :, :], axes=(1, 2))
        kf_f = (lambda x, axes=(-2,-1): torch.fft.rfft2(x.float(), dim=axes))(kf_pad[:, None, :], axes=(1, 2))
        kf_f = (lambda x, *d: x.permute(*d))(kf_f, 1, 2, 0)
        y_f = kv_f * kf_f[None, :, :, :]
        y = (lambda x, s, axes=(-2,-1): torch.fft.irfft2(x, s=s, dim=axes).to(torch.bfloat16))(y_f, (1, L), axes=(1, 2))[:, 0, :S, :]
        y = y + kv * ssm_D[None, None, :]
        return q * y

    def _B_ref(x, w_gate, w_up, w_down):
        g = _silu(x @ w_gate)
        u = x @ w_up
        return (g * u) @ w_down

    x = A_q
    x = x + _A_ref(_layernorm(x, axis=-1), A_k, A_v, A_shift_k, A_ssm_k, A_ssm_D)
    x = x + _B_ref(_layernorm(x, axis=-1), B_w_gate, B_w_up, B_w_down)
    x = x + _A_ref(_layernorm(x, axis=-1), A_k, A_v, A_shift_k, A_ssm_k, A_ssm_D)
    x = x + _B_ref(_layernorm(x, axis=-1), B_w_gate, B_w_up, B_w_down)
    return x
```

```python
import re

TRANS = ("v_exp_f32", "v_log_f32", "v_rcp_f32", "v_rsq_f32", "v_sqrt_f32", "v_sin_f32", "v_cos_f32",
         "v_rcp_iflag_f32")
NO_DST_SALU = ("s_cmp", "s_cbranch", "s_branch", "s_barrier", "s_waitcnt", "s_nop", "s_setprio", "s_sleep",
               "s_endpgm", "s_bitcmp", "s_setreg", "s_sendmsg")

_reg_re = re.compile(r"^(-?)(\|?)(abs\()?([vas])(\d+)\)?\|?$")
_rng_re = re.compile(r"^(-?)(\|?)(abs\()?([vas])\[(\d+):(\d+)\]\)?\|?$")


def regs_of(tok):
    tok = tok.strip()
    m = _reg_re.match(tok)
    if m:
        return [m.group(4) + m.group(5)]
    m = _rng_re.match(tok)
    if m:
        return [m.group(4) + str(i) for i in range(int(m.group(5)), int(m.group(6)) + 1)]
    if tok in ("vcc", "vcc_lo", "vcc_hi"):
        return ["vcc"]
    if tok in ("exec", "exec_lo", "exec_hi"):
        return ["exec"]
    if tok == "m0":
        return ["m0"]
    return []


def split_ops(rest):
    ops = []
    depth = 0
    cur = ""
    for ch in rest:
        if ch in "[(":
            depth += 1
        elif ch in "])":
            depth -= 1
        if ch == "," and depth == 0:
            ops.append(cur.strip())
            cur = ""
        else:
            cur += ch
    last = cur.strip()
    mods = []
    if last:
        parts = []
        depth = 0
        c2 = ""
        for ch in last:
            if ch in "[(":
                depth += 1
            elif ch in "])":
                depth -= 1
            if ch.isspace() and depth == 0:
                if c2:
                    parts.append(c2)
                c2 = ""
            else:
                c2 += ch
        if c2:
            parts.append(c2)
        ops.append(parts[0])
        mods = parts[1:]
    return ops, mods


class Ins:
    __slots__ = ("text", "mn", "ops", "mods", "kind", "rd", "wr", "passes", "A", "B", "C", "D", "dpp", "trans",
                 "lds_dma", "wide_store", "data")


def parse(text):
    t = text.split(";")[0].strip()
    sp = t.split(None, 1)
    mn = sp[0]
    ops, mods = split_ops(sp[1]) if len(sp) > 1 else ([], [])
    I = Ins()
    I.text = text
    I.mn = mn
    I.ops = ops
    I.mods = mods
    I.rd = []
    I.wr = []
    I.passes = 0
    I.A = I.B = I.C = I.D = []
    I.dpp = False
    I.trans = False
    I.lds_dma = False
    I.wide_store = False
    I.data = []
    R = lambda i: regs_of(ops[i]) if i < len(ops) else []
    allr = lambda a: [r for i in range(a, len(ops)) for r in R(i)]
    base = re.sub(r"_(e32|e64|dpp|sdwa)$", "", mn)
    if mn.startswith("v_mfma"):
        I.kind = "mfma"
        I.D = R(0); I.A = R(1); I.B = R(2); I.C = R(3)
        I.passes = 8 if "32x32x16" in mn else 4 if "16x16x32" in mn else None
        assert I.passes, mn
        I.rd = I.A + I.B + I.C
        I.wr = I.D
    elif mn.startswith("v_"):
        I.kind = "valu"
        I.dpp = any(m.startswith(("row_", "quad_perm", "wave_")) for m in mods) or base.startswith("v_permlane")
        I.trans = base in TRANS
        if base.startswith("v_cmp"):
            I.wr = R(0); I.rd = allr(1)
            assert not base.startswith("v_cmpx")
        elif base in ("v_readfirstlane_b32", "v_readlane_b32"):
            I.wr = R(0); I.rd = allr(1)
        elif base.startswith("v_permlane") and "swap" in base:
            I.wr = R(0) + R(1); I.rd = R(0) + R(1)
        elif base.startswith(("v_fmac", "v_dot2c", "v_pk_fmac", "v_writelane")):
            I.wr = R(0); I.rd = allr(0)
        elif base in ("v_add_co_u32", "v_sub_co_u32", "v_subrev_co_u32", "v_addc_co_u32", "v_subb_co_u32",
                      "v_mad_u64_u32"):
            I.wr = R(0) + R(1); I.rd = allr(2)
        elif base == "v_nop":
            pass
        else:
            I.wr = R(0); I.rd = allr(1)
            if I.dpp or any(m.startswith("dst_unused:UNUSED_PRESERVE") for m in mods):
                I.rd = I.rd + R(0)
            if base == "v_cndmask_b32" and len(ops) == 3:
                I.rd.append("vcc")
    elif mn.startswith("buffer_load"):
        I.kind = "vmem"
        if "lds" in mods:
            I.lds_dma = True
            I.rd = allr(0) + ["m0"]
        else:
            I.wr = R(0); I.rd = allr(1)
            if "d16" in mn:
                I.rd += R(0)
    elif mn.startswith("buffer_store"):
        I.kind = "vmem"
        I.rd = allr(0); I.data = R(0)
        I.wide_store = mn.endswith(("x3", "x4"))
    elif mn.startswith("buffer_atomic"):
        I.kind = "vmem"
        I.rd = allr(0)
        if "sc0" in mods:
            I.wr = R(0)
    elif mn.startswith(("buffer_wbl2", "buffer_inv")):
        I.kind = "vmem"
    elif mn.startswith("global_load_lds"):
        I.kind = "vmem"; I.lds_dma = True
        I.rd = allr(0) + ["m0"]
    elif mn.startswith("global_load"):
        I.kind = "vmem"
        I.wr = R(0); I.rd = allr(1)
    elif mn.startswith("global_store"):
        I.kind = "vmem"
        I.rd = allr(0); I.data = R(1)
        I.wide_store = mn.endswith(("x3", "x4"))
    elif mn.startswith("global_atomic"):
        I.kind = "vmem"
        if "sc0" in mods:
            I.wr = R(0); I.rd = allr(1)
        else:
            I.rd = allr(0)
    elif mn.startswith("ds_"):
        I.kind = "ds"
        if mn.startswith(("ds_read", "ds_bpermute", "ds_permute", "ds_swizzle")) or "_rtn" in mn:
            I.wr = R(0); I.rd = allr(1)
            if "d16" in mn:
                I.rd += R(0)
        else:
            I.rd = allr(0)
    elif mn.startswith(("s_load", "s_memtime", "s_memrealtime", "s_buffer_load")):
        I.kind = "smem"
        I.wr = R(0); I.rd = allr(1)
    elif mn.startswith("s_"):
        I.kind = "salu"
        if mn.startswith(NO_DST_SALU):
            I.rd = allr(0)
        elif "saveexec" in mn:
            I.wr = R(0) + ["exec"]; I.rd = allr(1) + ["exec"]
        else:
            I.wr = R(0); I.rd = allr(1)
            if mn.startswith(("s_addk", "s_mulk", "s_cmov")):
                I.rd += R(0)
    else:
        raise ValueError("unknown instruction: " + text)
    return I


class Kern:
    def __init__(self, name, lds=0, grid=None, block=256):
        self.name = name
        self.lds = lds
        self.grid = grid
        self.block = block
        self.lines = []
        self.t = 0
        self.valu_w = {}
        self.valu_sw = {}
        self.mfma_w = {}
        self.mfma_c = {}
        self.st_data = {}
        self.dl_w = {}
        self.m0_w = -100
        self.vm = []
        self.lg = []
        self.maxv = -1
        self.maxa = -1
        self.maxs = -1
        self.nins = 0
        self.uid = 0
        self.auto = True

    def raw(self, s):
        self.lines.append(s)

    def comment(self, s):
        self.lines.append("    ; " + s)

    def _nop(self, n):
        while n > 0:
            k = min(n, 16)
            self.lines.append(f"    s_nop {k-1}")
            self.t += k
            self.nins += 1
            n -= k

    def _waitcnt(self, vm=None, lg=None):
        parts = []
        if vm is not None:
            vm = min(vm, 63)
            if vm < len(self.vm):
                parts.append(f"vmcnt({vm})")
                self.vm = self.vm[len(self.vm) - vm:] if vm else []
        if lg is not None:
            if any(e[2] for e in self.lg):
                lg = 0
            lg = min(lg, 15)
            if lg < len(self.lg):
                parts.append(f"lgkmcnt({lg})")
                self.lg = self.lg[len(self.lg) - lg:] if lg else []
        if parts:
            self.lines.append("    s_waitcnt " + " ".join(parts))
            self.t += 1
            self.nins += 1

    def wait(self, vm=None, lg=None):
        self._waitcnt(vm, lg)

    def wait_tag(self, tag):
        idx = [i for i, e in enumerate(self.vm) if e[1] == tag]
        if idx:
            self._waitcnt(vm=len(self.vm) - 1 - max(idx))

    def wait_lg_tag(self, tag):
        idx = [i for i, e in enumerate(self.lg) if e[1] == tag]
        if idx:
            self._waitcnt(lg=len(self.lg) - 1 - max(idx))

    def flush_hazards(self):
        need = 0
        for r, (t, p, d) in self.mfma_w.items():
            need = max(need, (8 if p == 4 else 12) - (self.t - t - 1))
        for r, (t, tr) in self.valu_w.items():
            need = max(need, 2 - (self.t - t - 1))
        for r, t in self.valu_sw.items():
            need = max(need, 5 - (self.t - t - 1))
        for r, t in self.st_data.items():
            need = max(need, 2 - (self.t - t - 1))
        for r, (t, mn) in self.dl_w.items():
            need = max(need, 3 - (self.t - t - 1))
        need = max(need, 1 - (self.t - self.m0_w - 1))
        if need > 0:
            self._nop(need)

    def label(self, name, flush=True):
        if flush:
            self._waitcnt(0, 0)
            self.flush_hazards()
        self.lines.append(name + ":")

    def branch(self, text, flush=True):
        if flush:
            self._waitcnt(0, 0)
            self.flush_hazards()
        self(text)

    def barrier(self):
        self("s_barrier")

    def newlabel(self, base="L"):
        self.uid += 1
        return f"{self.name}_{base}{self.uid}"

    def __call__(self, text, tag=None):
        I = parse(text)
        touched = I.rd + I.wr
        for r in touched:
            if r[0] == "v" and r != "vcc":
                self.maxv = max(self.maxv, int(r[1:]))
            elif r[0] == "a":
                self.maxa = max(self.maxa, int(r[1:]))
            elif r[0] == "s":
                self.maxs = max(self.maxs, int(r[1:]))
        if I.mn == "s_waitcnt":
            raise ValueError("use .wait()")
        if self.auto:
            ts = set(touched)
            vmn = lgn = None
            for i, e in enumerate(self.vm):
                if e[0] & ts:
                    vmn = len(self.vm) - 1 - i
            for i, e in enumerate(self.lg):
                if e[0] & ts:
                    lgn = len(self.lg) - 1 - i
            if vmn is not None or lgn is not None:
                self._waitcnt(vmn, lgn)
        need = 0

        def req(t, n):
            nonlocal need
            need = max(need, n - (self.t - t - 1))

        XD = {4: 8, 8: 12}
        for r in touched:
            if r in self.dl_w:
                t, mn = self.dl_w[r]
                if mn == I.mn:
                    srcab = regs_of(I.ops[1]) + regs_of(I.ops[2])
                    if r in srcab:
                        req(t, 3)
                else:
                    req(t, 3)
        if I.kind == "mfma":
            for r in I.rd:
                if r in self.valu_w:
                    req(self.valu_w[r][0], 2)
            for r in I.A + I.B:
                if r in self.mfma_w:
                    t, p, d = self.mfma_w[r]
                    req(t, XD[p])
            for r in I.C + I.D:
                if r in self.mfma_w:
                    t, p, d = self.mfma_w[r]
                    if d == tuple(I.C) and p == I.passes and I.C == I.D:
                        pass
                    elif d == tuple(I.C) and p == I.passes and r in I.C:
                        pass
                    else:
                        req(t, {4: 6, 8: 10}[p])
        elif I.kind == "valu":
            for r in touched:
                if r in self.mfma_w:
                    t, p, d = self.mfma_w[r]
                    req(t, XD[p])
            for r in I.wr:
                if r in self.mfma_c:
                    t, p = self.mfma_c[r]
                    req(t, {4: 3, 8: 7}[p])
                if r in self.st_data:
                    req(self.st_data[r], 2)
            for r in I.rd:
                if r in self.valu_w:
                    t, tr = self.valu_w[r]
                    if tr and not I.trans:
                        req(t, 1)
                    if I.dpp:
                        req(t, 2)
                    if I.mn.startswith(("v_readlane", "v_readfirstlane")):
                        req(t, 1)
                if r in self.valu_sw:
                    req(self.valu_sw[r], 4 if I.mn.startswith(("v_readlane", "v_writelane")) else 2)
        elif I.kind in ("vmem", "ds"):
            for r in touched:
                if r in self.mfma_w:
                    t, p, d = self.mfma_w[r]
                    req(t, XD[p])
            for r in I.rd:
                if r in self.valu_sw:
                    req(self.valu_sw[r], 5)
            for r in I.wr:
                if r in self.st_data:
                    req(self.st_data[r], 1)
                if r in self.mfma_c:
                    t, p = self.mfma_c[r]
                    req(t, {4: 3, 8: 7}[p])
            if I.lds_dma:
                req(self.m0_w, 1)
        elif I.kind in ("salu", "smem"):
            for r in I.rd:
                if r in self.valu_sw:
                    req(self.valu_sw[r], 1)
        if need > 0:
            self._nop(need)
        self.lines.append("    " + text)
        self.nins += 1
        now = self.t
        if I.mn == "s_nop":
            self.t += int(I.ops[0], 0) + 1
        else:
            self.t += 1
        for r in I.wr:
            self.valu_w.pop(r, None)
            self.mfma_w.pop(r, None)
            self.valu_sw.pop(r, None)
            self.dl_w.pop(r, None)
        if I.mn.startswith("v_dot"):
            for r in I.wr:
                self.dl_w[r] = (now, I.mn)
        if I.kind == "mfma":
            for r in I.D:
                self.mfma_w[r] = (now, I.passes, tuple(I.D))
            for r in I.C:
                self.mfma_c[r] = (now, I.passes)
        elif I.kind == "valu":
            for r in I.wr:
                if r[0] in "va" and r != "vcc":
                    self.valu_w[r] = (now, I.trans)
                else:
                    self.valu_sw[r] = now
        elif I.kind == "vmem":
            if I.wide_store:
                for r in I.data:
                    self.st_data[r] = now
            self.vm.append((set(I.wr), tag))
        elif I.kind == "ds":
            self.lg.append((set(I.wr), tag, False))
        elif I.kind == "smem":
            self.lg.append((set(I.wr), tag, True))
        elif I.kind == "salu":
            if "m0" in I.wr:
                self.m0_w = now
        if self.nins % 64 == 0:
            for d in (self.valu_sw, self.st_data):
                for r in [r for r, t in d.items() if self.t - t > 24]:
                    del d[r]
            for d in (self.valu_w, self.mfma_w, self.mfma_c, self.dl_w):
                for r in [r for r, e in d.items() if self.t - e[0] > 24]:
                    del d[r]

    def srd(self, d, ptr_lo, nbytes, off=0):
        if off:
            self(f"s_add_u32 s{d}, s{ptr_lo}, {off}")
            self(f"s_addc_u32 s{d+1}, s{ptr_lo+1}, 0")
        else:
            self(f"s_mov_b32 s{d}, s{ptr_lo}")
            self(f"s_mov_b32 s{d+1}, s{ptr_lo+1}")
        self(f"s_mov_b32 s{d+2}, {nbytes}")
        self(f"s_mov_b32 s{d+3}, 0x00020000")

    def text(self):
        hdr = [f".globl {self.name}", ".p2align 8", f".type {self.name},@function", f"{self.name}:"]
        return "\n".join(hdr + self.lines) + "\n"

    def descriptor(self):
        nv = self.maxv + 1
        acc = max(4, (nv + 3) // 4 * 4)
        tot = acc + self.maxa + 1 if self.maxa >= 0 else nv
        assert nv <= 256 and tot <= 512, (nv, tot)
        ns = max(self.maxs + 1, 8)
        assert ns <= 102
        return f""".p2align 6
.amdhsa_kernel {self.name}
  .amdhsa_next_free_vgpr {tot}
  .amdhsa_next_free_sgpr {ns}
  .amdhsa_accum_offset {acc}
  .amdhsa_group_segment_fixed_size 0
  .amdhsa_kernarg_size 104
  .amdhsa_user_sgpr_count 2
  .amdhsa_user_sgpr_kernarg_segment_ptr 1
  .amdhsa_system_sgpr_workgroup_id_x 1
  .amdhsa_float_denorm_mode_32 3
.end_amdhsa_kernel
"""


def build_file(header_comment, kerns, launches):
    out = [header_comment.rstrip("\n")]
    for k in launches:
        out.append(f"; @launch kernel={k.name} grid=({k.grid},1,1) block=({k.block},1,1) lds={k.lds}")
    out.append('.amdgcn_target "amdgcn-amd-amdhsa--gfx950"')
    out.append(".text")
    for k in kerns:
        out.append(k.text())
    out.append('.section .rodata,"a"')
    for k in kerns:
        out.append(k.descriptor())
    return "\n".join(out)
```

```python
import sys
sys.path.insert(0, "dev")
from asmdsl import *

S, D, F = 2048, 640, 1536
A_Q, A_K, A_V, A_SK, A_HK, A_DD, A_BX, A_WG, A_WU, A_WD, A_OUT, A_DBG, A_WS = range(0, 104, 8)
WS_KVT = 0x0000000
WS_QST = 0x0300000
WS_WGU = 0x0400000
WS_WD = 0x0900000
WS_Y = 0x0C00000
WS_X1 = 0x0F00000
WS_H = 0x1200000
WS_X2 = 0x1900000
WS_X3 = 0x1D00000
WS_H2 = 0x2000000
XFB = S * D * 2
HFB = S * F * 2
WGU_J = 41 * 6144
WGUB = 16 * WGU_J
WDB = F * D * 2
EPS = 1e-5
SC = " sc1"


def f2u(x):
    import struct
    return "0x%08x" % struct.unpack("<I", struct.pack("<f", x))[0]


def unpack(k, lo, hi, src):
    k(f"v_lshlrev_b32 {lo}, 16, {src}")
    k(f"v_and_b32 {hi}, 0xffff0000, {src}")


def reduce16(k, v, tmp):
    for mod in ("quad_perm:[1,0,3,2]", "quad_perm:[2,3,0,1]", "row_half_mirror", "row_mirror"):
        k(f"v_add_f32_dpp {v}, {v}, {v} {mod} row_mask:0xf bank_mask:0xf")


def xsum16(k, v, tmp):
    k(f"v_mov_b32 {tmp}, {v}")
    k(f"v_permlane16_swap_b32 {v}, {tmp}")
    k(f"v_add_f32 {v}, {v}, {tmp}")


def xsum32(k, v, tmp):
    k(f"v_mov_b32 {tmp}, {v}")
    k(f"v_permlane32_swap_b32 {v}, {tmp}")
    k(f"v_add_f32 {v}, {v}, {tmp}")


def gen_prep():
    NKV, NQ, NWGU, NWD = 128, 103, 96, 48
    k = Kern("prep_kernel", lds=5 * 4096, grid=NKV + NQ + NWGU + NWD, block=320)
    k(f"s_cmp_ge_u32 s2, {k.grid}")
    k.branch("s_cbranch_scc1 prep_end", flush=False)
    k("s_load_dwordx16 s[16:31], s[0:1], 0")
    k("s_load_dwordx4 s[32:35], s[0:1], 64")
    k("s_load_dwordx2 s[36:37], s[0:1], 96")
    k("v_lshrrev_b32 v1, 6, v0")
    k("v_and_b32 v2, 63, v0")
    k("v_readfirstlane_b32 s3, v1")
    k.wait(lg=0)
    k(f"s_cmp_ge_u32 s2, {NKV}")
    k.branch("s_cbranch_scc1 prep_notkv")
    k.srd(40, 18, S * D * 2)
    k.srd(44, 20, S * D * 2)
    k.srd(48, 22, D * 8)
    k.srd(52, 36, D * 4096, WS_KVT)
    k("s_lshr_b32 s4, s2, 2")
    k("s_and_b32 s5, s2, 3")
    k("s_mul_i32 s5, s5, 160")
    k("s_lshl_b32 s6, s3, 5")
    k("s_add_u32 s5, s5, s6")
    k("s_lshl_b32 s4, s4, 6")
    k("v_lshrrev_b32 v3, 2, v2")
    k("v_and_b32 v4, 3, v2")
    k("v_lshlrev_b32 v5, 3, v4")
    k("v_add_u32 v5, s5, v5")
    k("v_lshlrev_b32 v6, 2, v3")
    k("v_add_u32 v6, s4, v6")
    k("v_mul_u32_u24 v7, 1280, v6")
    k("v_lshl_add_u32 v7, v5, 1, v7")
    KR = 16
    for j in range(7):
        off = (j - 3) * 1280
        if off:
            k(f"v_add_u32 v8, {off & 0xffffffff:#x}, v7")
            k(f"buffer_load_dwordx4 v[{KR+4*j}:{KR+4*j+3}], v8, s[40:43], 0 offen")
        else:
            k(f"buffer_load_dwordx4 v[{KR+4*j}:{KR+4*j+3}], v7, s[40:43], 0 offen")
    VR = 44
    for i in range(4):
        k(f"buffer_load_dwordx4 v[{VR+4*i}:{VR+4*i+3}], v7, s[44:47], 0 offen offset:{i*1280}")
    WR = 60
    k("v_lshlrev_b32 v9, 3, v5")
    for i in range(4):
        k(f"buffer_load_dwordx4 v[{WR+4*i}:{WR+4*i+3}], v9, s[48:51], 0 offen offset:{16*i}")
    k("s_lshl_b32 s7, s3, 12")
    k("v_lshlrev_b32 v10, 10, v4")
    k("v_lshlrev_b32 v11, 3, v3")
    k("v_sub_u32 v10, v10, v11")
    k("v_add_u32 v10, 120, v10")
    k("v_add_u32 v10, s7, v10")
    k("v_lshlrev_b32 v11, 4, v2")
    k("v_add_u32 v11, s7, v11")
    k("v_lshrrev_b32 v12, 3, v2")
    k("v_add_u32 v12, s5, v12")
    k("v_lshlrev_b32 v12, 12, v12")
    k("v_and_b32 v13, 7, v2")
    k("v_lshl_add_u32 v12, v13, 4, v12")
    k("s_lshl_b32 s8, s4, 1")
    k("s_sub_u32 s8, 3968, s8")
    k("v_add_u32 v12, s8, v12")
    WF = 80
    for c in range(8):
        unpack(k, f"v{WF+4*c}", f"v{WF+4*c+1}", f"v{WR+2*c}")
        unpack(k, f"v{WF+4*c+2}", f"v{WF+4*c+3}", f"v{WR+2*c+1}")
    KF = 112
    VF = 128
    OUT = 140
    for cp in range(4):
        for j in range(7):
            unpack(k, f"v{KF+2*j}", f"v{KF+2*j+1}", f"v{KR+4*j+cp}")
        for i in range(4):
            unpack(k, f"v{VF+2*i}", f"v{VF+2*i+1}", f"v{VR+4*i+cp}")
        for h in range(2):
            c = 2 * cp + h
            for i in range(4):
                o = f"v{OUT+i}"
                k(f"v_mul_f32 {o}, v{KF+2*(i+0)+h}, v{WF+4*c+3}")
                k(f"v_fmac_f32 {o}, v{KF+2*(i+1)+h}, v{WF+4*c+2}")
                k(f"v_fmac_f32 {o}, v{KF+2*(i+2)+h}, v{WF+4*c+1}")
                k(f"v_fmac_f32 {o}, v{KF+2*(i+3)+h}, v{WF+4*c+0}")
                k(f"v_mul_f32 {o}, {o}, v{VF+2*i+h}")
            p = 144 + 2 * (c & 1)
            k(f"v_cvt_pk_bf16_f32 v{p}, v{OUT+3}, v{OUT+2}")
            k(f"v_cvt_pk_bf16_f32 v{p+1}, v{OUT+1}, v{OUT+0}")
            k(f"ds_write_b64 v10, v[{p}:{p+1}] offset:{c*128}")
    k.wait(lg=0)
    for n in range(4):
        k(f"ds_read_b128 v[{16+4*n}:{19+4*n}], v11 offset:{n*1024}")
    for n in range(4):
        k(f"s_mov_b32 s9, {n*8*4096}")
        k(f"buffer_store_dwordx4 v[{16+4*n}:{19+4*n}], v12, s[52:55], s9 offen{SC}")
    k("s_endpgm")

    k.label("prep_notkv")
    k(f"s_cmp_ge_u32 s2, {NKV+NQ}")
    k.branch("s_cbranch_scc1 prep_notq")
    k.srd(40, 16, S * D * 2)
    k.srd(44, 36, S * 8, WS_QST)
    k(f"s_sub_u32 s4, s2, {NKV}")
    k("s_mul_i32 s4, s4, 5")
    k("s_add_u32 s4, s4, s3")
    k("s_lshl_b32 s4, s4, 2")
    k("v_lshrrev_b32 v3, 4, v2")
    k("v_add_u32 v3, s4, v3")
    k("v_and_b32 v4, 15, v2")
    k("v_mul_u32_u24 v5, 1280, v3")
    k("v_lshl_add_u32 v5, v4, 4, v5")
    for i in range(5):
        k(f"buffer_load_dwordx4 v[{16+4*i}:{19+4*i}], v5, s[40:43], 0 offen offset:{256*i}")
    XF0 = 40
    for i in range(20):
        unpack(k, f"v{XF0+2*i}", f"v{XF0+2*i+1}", f"v{16+i}")
    k(f"v_add_f32 v6, v{XF0}, v{XF0+1}")
    k(f"v_add_f32 v7, v{XF0+2}, v{XF0+3}")
    for i in range(4, 40, 2):
        k(f"v_add_f32 v6, v6, v{XF0+i}")
        k(f"v_add_f32 v7, v7, v{XF0+i+1}")
    k("v_add_f32 v6, v6, v7")
    reduce16(k, "v6", None)
    k(f"v_mul_f32 v6, {f2u(1.0/D)}, v6")
    k("v_mov_b32 v7, 0")
    k("v_mov_b32 v8, 0")
    for i in range(0, 40, 2):
        k(f"v_sub_f32 v9, v{XF0+i}, v6")
        k(f"v_sub_f32 v10, v{XF0+i+1}, v6")
        k("v_fmac_f32 v7, v9, v9")
        k("v_fmac_f32 v8, v10, v10")
    k("v_add_f32 v7, v7, v8")
    reduce16(k, "v7", None)
    k(f"v_mov_b32 v8, {f2u(EPS)}")
    k(f"v_fmac_f32 v8, {f2u(1.0/D)}, v7")
    k("v_rsq_f32 v13, v8")
    k("v_mul_f32 v12, v6, v13")
    k("v_lshlrev_b32 v3, 3, v3")
    k(f"buffer_store_dwordx2 v[12:13], v3, s[44:47], 0 offen{SC}")
    k("s_endpgm")

    k.label("prep_notq")
    k("s_mov_b32 s10, 0x05040100")
    k("s_mov_b32 s11, 0x07060302")
    k(f"s_cmp_ge_u32 s2, {NKV+NQ+NWGU}")
    k.branch("s_cbranch_scc1 prep_wd")
    k(f"s_sub_u32 s4, s2, {NKV+NQ}")
    k("s_and_b32 s5, s4, 1")
    k("s_lshr_b32 s6, s4, 1")
    k("s_cmp_eq_u32 s5, 0")
    k("s_cselect_b32 s40, s30, s32")
    k("s_cselect_b32 s41, s31, s33")
    k(f"s_mov_b32 s42, {D*F*2}")
    k("s_mov_b32 s43, 0x00020000")
    k.srd(44, 36, WGUB, WS_WGU)
    k("s_mul_i32 s7, s6, 43")
    k("s_lshr_b32 s7, s7, 7")
    k("s_mul_i32 s8, s7, 3")
    k("s_sub_u32 s8, s6, s8")
    k(f"s_mul_i32 s7, s7, {WGU_J}")
    k("s_lshl_b32 s8, s8, 1")
    k("s_add_u32 s8, s8, s5")
    k("s_lshl_b32 s8, s8, 10")
    k("s_add_u32 s7, s7, s8")
    k("v_lshrrev_b32 v3, 2, v0")
    k("v_and_b32 v4, 3, v0")
    k("v_mul_u32_u24 v5, 24576, v3")
    k("v_lshl_add_u32 v5, v4, 4, v5")
    k("s_lshl_b32 s9, s6, 6")
    k("v_add_u32 v5, s9, v5")
    for i in range(8):
        k(f"s_mov_b32 s12, {i*3072}")
        k(f"buffer_load_dwordx4 v[{16+4*i}:{19+4*i}], v5, s[40:43], s12 offen")
    k("v_lshrrev_b32 v6, 1, v3")
    k("v_mul_u32_u24 v6, 6144, v6")
    k("v_and_b32 v7, 1, v3")
    k("v_lshl_add_u32 v6, v7, 9, v6")
    k("v_lshrrev_b32 v7, 1, v4")
    k("v_lshl_add_u32 v6, v7, 8, v6")
    k("v_and_b32 v7, 1, v4")
    k("v_lshl_add_u32 v6, v7, 6, v6")
    k("v_mov_b32 v8, 0x3f803f80")
    CS = 96
    for e in range(8):
        o = 48 + 4 * e
        for p in range(4):
            k(f"v_perm_b32 v{o+p}, v{16+4*(2*p+1)+e//2}, v{16+4*(2*p)+e//2}, s{10+(e&1)}")
        k(f"buffer_store_dwordx4 v[{o}:{o+3}], v6, s[44:47], s7 offen offset:{(8*(e>>2)+(e&3))*16}{SC}")
        k(f"v_mov_b32 v{CS+e}, 0")
        for p in range(4):
            k(f"v_dot2c_f32_bf16 v{CS+e}, v{o+p}, v8")
    for e in range(8):
        v = f"v{CS+e}"
        k(f"v_add_f32_dpp {v}, {v}, {v} row_ror:4 row_mask:0xf bank_mask:0xf")
    for e in range(8):
        v = f"v{CS+e}"
        k(f"v_add_f32_dpp {v}, {v}, {v} row_ror:8 row_mask:0xf bank_mask:0xf")
    for e in range(8):
        xsum16(k, f"v{CS+e}", f"v{CS+8+e}")
    for e in range(8):
        xsum32(k, f"v{CS+e}", f"v{CS+8+e}")
    k("s_lshl_b32 s12, s3, 7")
    k("v_lshlrev_b32 v9, 5, v4")
    k("v_add_u32 v9, s12, v9")
    k(f"ds_write_b128 v9, v[{CS}:{CS+3}]")
    k(f"ds_write_b128 v9, v[{CS+4}:{CS+7}] offset:16")
    k.wait(lg=0)
    k.barrier()
    k("s_cmp_lg_u32 s3, 0")
    k.branch("s_cbranch_scc1 prep_end", flush=False)
    k("v_and_b32 v10, 16, v2")
    k("v_and_b32 v11, 4, v2")
    k("v_lshl_add_u32 v10, v11, 1, v10")
    k("v_and_b32 v11, 8, v2")
    k("v_lshrrev_b32 v11, 1, v11")
    k("v_add_u32 v10, v10, v11")
    k("v_and_b32 v11, 3, v2")
    k("v_add_u32 v10, v10, v11")
    k("v_lshlrev_b32 v10, 2, v10")
    for w in range(5):
        k(f"ds_read_b32 v{16+w}, v10 offset:{w*128}")
    k("v_add_f32 v16, v16, v17")
    k("v_add_f32 v18, v18, v19")
    k("v_add_f32 v16, v16, v20")
    k("v_add_f32 v16, v16, v18")
    k("v_cmp_gt_u32 vcc, 32, v2")
    k("v_cndmask_b32 v16, 0, v16, vcc")
    k("v_cvt_pk_bf16_f32 v21, v16, v16")
    k("v_and_b32 v22, 0xffff0000, v21")
    k("v_sub_f32 v22, v16, v22")
    k("v_cvt_pk_bf16_f32 v24, v16, v22")
    k("v_and_b32 v25, 0xffff, v21")
    k("v_mov_b32 v26, 0")
    k("v_mov_b32 v27, 0")
    k("v_lshlrev_b32 v12, 4, v2")
    k(f"s_add_u32 s7, s7, {40*6144}")
    k(f"buffer_store_dwordx4 v[24:27], v12, s[44:47], s7 offen{SC}")
    k("s_endpgm")

    k.label("prep_wd")
    k.srd(40, 34, WDB)
    k.srd(44, 36, WDB, WS_WD)
    k(f"s_sub_u32 s4, s2, {NKV+NQ+NWGU}")
    k("v_lshrrev_b32 v3, 4, v2")
    k("v_and_b32 v4, 15, v2")
    k("s_lshl_b32 s5, s3, 4")
    k("v_add_u32 v4, s5, v4")
    k("s_lshl_b32 s6, s4, 2")
    k("v_add_u32 v5, s6, v3")
    k("v_mul_u32_u24 v5, 10240, v5")
    k("v_lshl_add_u32 v5, v4, 4, v5")
    for i in range(8):
        k(f"s_mov_b32 s12, {i*1280}")
        k(f"buffer_load_dwordx4 v[{16+4*i}:{19+4*i}], v5, s[40:43], s12 offen")
    k("v_mul_u32_u24 v6, 205, v4")
    k("v_lshrrev_b32 v6, 11, v6")
    k("v_mul_u32_u24 v7, 10, v6")
    k("v_sub_u32 v7, v4, v7")
    k(f"v_mul_u32_u24 v8, {48*5120}, v6")
    k("s_mul_i32 s7, s4, 5120")
    k("v_add_u32 v8, s7, v8")
    k("v_lshl_add_u32 v8, v3, 8, v8")
    k("v_lshrrev_b32 v9, 2, v7")
    k("v_lshlrev_b32 v9, 11, v9")
    k("v_and_b32 v10, 3, v7")
    k("v_lshlrev_b32 v11, 6, v10")
    k("v_lshlrev_b32 v12, 7, v10")
    k("v_cmp_gt_u32 vcc, 8, v7")
    k("v_cndmask_b32 v11, v12, v11, vcc")
    k("v_add3_u32 v8, v8, v9, v11")
    k("v_mov_b32 v12, 64")
    k("v_mov_b32 v13, 1024")
    k("v_cndmask_b32 v12, v12, v13, vcc")
    k("v_add_u32 v9, v8, v12")
    for e in range(8):
        o = 48 + 4 * e
        for p in range(4):
            k(f"v_perm_b32 v{o+p}, v{16+4*(2*p+1)+e//2}, v{16+4*(2*p)+e//2}, s{10+(e&1)}")
        k(f"buffer_store_dwordx4 v[{o}:{o+3}], v{8 if e < 4 else 9}, s[44:47], 0 offen offset:{(e&3)*16}{SC}")
    k.label("prep_end", flush=False)
    k("s_endpgm")
    return k


def gen_conv():
    CP = 4160
    UOFF = 4 * CP
    WREG = 4 * CP + 4608
    k = Kern("conv_kernel", lds=4 * WREG, grid=160, block=256)
    k(f"s_cmp_ge_u32 s2, {k.grid}")
    k.branch("s_cbranch_scc1 conv_end", flush=False)
    k("s_load_dwordx2 s[16:17], s[0:1], 0")
    k("s_load_dwordx4 s[20:23], s[0:1], 32")
    k("s_load_dwordx2 s[24:25], s[0:1], 96")
    k("v_lshrrev_b32 v1, 6, v0")
    k("v_and_b32 v2, 63, v0")
    k("v_readfirstlane_b32 s3, v1")
    k("s_and_b32 s4, s2, 7")
    k("s_mul_i32 s4, s4, 10")
    k("s_lshr_b32 s5, s2, 4")
    k("s_add_u32 s4, s4, s5")
    k("s_bfe_u32 s5, s2, 0x10003")
    k("s_lshl_b32 s6, s4, 3")
    k("s_lshl_b32 s7, s5, 2")
    k("s_add_u32 s6, s6, s7")
    k("s_add_u32 s7, s6, s3")
    k("s_lshl_b32 s8, s7, 12")
    k(f"s_mul_i32 s9, s3, {WREG}")
    k("v_lshlrev_b32 v3, 4, v2")
    k.wait(lg=0)
    k("s_add_u32 s28, s20, s8")
    k("s_addc_u32 s29, s21, 0")
    k("s_mov_b32 s30, 4096")
    k("s_mov_b32 s31, 0x00020000")
    k.srd(32, 24, D * 4096, WS_KVT)
    k.srd(36, 16, S * D * 2)
    k.srd(40, 24, S * 8, WS_QST)
    k.srd(44, 22, D * 2)
    k.srd(48, 24, XFB, WS_Y)
    k.srd(52, 24, XFB, WS_X1)
    HB = 16
    for p in range(4):
        k(f"buffer_load_dwordx4 v[{HB+8*p+4}:{HB+8*p+7}], v3, s[28:31], 0 offen offset:{p*1024}")
        k(f"v_add_u32 v4, {(p*1024-8) & 0xffffffff:#x}, v3")
        k(f"buffer_load_dwordx2 v[{HB+8*p+2}:{HB+8*p+3}], v4, s[28:31], 0 offen")
    k(f"s_add_u32 m0, s9, {UOFF}")
    for p in range(4):
        k(f"buffer_load_dwordx4 v3, s[32:35], s8 offen offset:{p*1024} lds", tag="u")
    k("s_lshl_b32 s10, s7, 1")
    k("v_mov_b32 v5, s10")
    k("buffer_load_ushort v6, v5, s[44:47], 0 offen")
    k("v_mov_b32 v8, 0")
    k("v_mov_b32 v9, 0")
    k("v_lshlrev_b32 v4, 3, v2")
    k("v_add_u32 v4, s9, v4")
    k(f"ds_write_b64 v4, v[8:9] offset:{UOFF+4096}")
    k("v_bfe_u32 v4, v2, 2, 2")
    k(f"v_mul_u32_u24 v4, {CP}, v4")
    k("v_and_b32 v5, 3, v2")
    k("v_lshl_add_u32 v4, v5, 3, v4")
    k("v_add_u32 v4, s9, v4")
    k("ds_write_b64 v4, v[8:9]")
    QB = 192
    k("s_lshl_b32 s10, s3, 9")
    k("v_add_u32 v10, s10, v2")
    k("v_mul_u32_u24 v11, 1280, v10")
    k("s_lshl_b32 s11, s6, 1")
    k("v_add_u32 v11, s11, v11")
    k("v_lshlrev_b32 v12, 3, v10")
    for it in range(8):
        k(f"s_mov_b32 s12, {it*64*1280}")
        k(f"buffer_load_dwordx2 v[{QB+4*it}:{QB+4*it+1}], v11, s[36:39], s12 offen")
        k(f"buffer_load_dwordx2 v[{QB+4*it+2}:{QB+4*it+3}], v12, s[40:43], 0 offen offset:{it*512}")
    k("v_add_u32 v13, s9, v3")
    T = 48
    for p in range(4):
        b = HB + 8 * p
        p2, p3, d0, d1, d2, d3 = (f"v{b+2}", f"v{b+3}", f"v{b+4}", f"v{b+5}", f"v{b+6}", f"v{b+7}")
        off = 32 + p * 1024
        k(f"ds_write_b128 v13, v[{b+4}:{b+7}] offset:{off}")
        seq = [p2, p3, d0, d1, d2, d3]
        for j in range(4):
            k(f"v_alignbyte_b32 v{T+j}, {seq[2+j]}, {seq[1+j]}, 2")
        k(f"ds_write_b128 v13, v[{T}:{T+3}] offset:{off+CP}")
        for j in range(4):
            k(f"v_mov_b32 v{T+4+j}, {seq[1+j]}")
        k(f"ds_write_b128 v13, v[{T+4}:{T+7}] offset:{off+2*CP}")
        for j in range(4):
            k(f"v_alignbyte_b32 v{T+8+j}, {seq[1+j]}, {seq[j]}, 2")
        k(f"ds_write_b128 v13, v[{T+8}:{T+11}] offset:{off+3*CP}")
        T = 48 + 12 * ((p + 1) & 1)
    k("v_and_b32 v4, 15, v2")
    k("v_lshrrev_b32 v5, 4, v2")
    k("v_sub_u32 v7, 3, v4")
    k("v_and_b32 v7, 3, v7")
    k("v_add3_u32 v8, v4, v7, 1")
    k("v_lshl_add_u32 v8, v5, 3, v8")
    k("v_lshlrev_b32 v8, 1, v8")
    k(f"v_mul_u32_u24 v7, {CP}, v7")
    k("v_add3_u32 v14, v7, v8, s9")
    k("v_lshlrev_b32 v7, 5, v4")
    k("v_lshlrev_b32 v8, 4, v5")
    k("v_sub_u32 v8, v8, v7")
    k(f"v_add_u32 v8, {UOFF+480}, v8")
    k("v_add_u32 v15, s9, v8")
    k("v_lshlrev_b32 v6, 16, v6")
    k.wait_tag("u")
    k.wait(lg=0)
    AB = [80, 112]
    ACC = 144

    def readA(I):
        for r in range(8):
            i = 8 * I + r
            b = AB[I & 1] + 4 * r
            k(f"ds_read_b64 v[{b}:{b+1}], v14 offset:{64*i}")
            k(f"ds_read_b64 v[{b+2}:{b+3}], v14 offset:{64*i+8}")

    def breg(m):
        return 4 * (m + 7)

    def readB(m):
        k(f"ds_read_b128 a[{breg(m)}:{breg(m)+3}], v15 offset:{64*(56-m)}")

    for r in range(8):
        b = AB[0] + 4 * r
        k(f"ds_read_b64 v[{b}:{b+1}], v14 offset:{64*r}")
        k(f"ds_read_b64 v[{b+2}:{b+3}], v14 offset:{64*r+8}")
        readB(-r)
    started = set()
    for I in range(8):
        pend = []
        if I < 7:
            for r in range(8):
                i = 8 * (I + 1) + r
                b = AB[(I + 1) & 1] + 4 * r
                pend.append(f"ds_read_b64 v[{b}:{b+1}], v14 offset:{64*i}")
                pend.append(f"ds_read_b64 v[{b+2}:{b+3}], v14 offset:{64*i+8}")
        nm = (8 - I) * 8
        cnt = 0
        for c in range(I, 8):
            C = c - I
            for r in range(8):
                if I == 0 and C < 7:
                    readB(8 * (C + 1) - r)
                a = AB[I & 1] + 4 * r
                m = 8 * C - r
                acc = f"v[{ACC+4*c}:{ACC+4*c+3}]"
                src = acc if c in started else "0"
                started.add(c)
                k(f"v_mfma_f32_16x16x32_bf16 {acc}, v[{a}:{a+3}], a[{breg(m)}:{breg(m)+3}], {src}")
                cnt += 1
                if pend and (I > 0 or C >= 7 or True):
                    if I == 0 and C < 7:
                        n = 1 if (cnt % 3 == 0) else 0
                    else:
                        n = 2
                    for _ in range(n):
                        if pend:
                            k(pend.pop(0))
        for p_ in pend:
            k(p_)
    k("v_lshlrev_b32 v7, 5, v4")
    k("v_lshl_add_u32 v7, v5, 3, v7")
    k(f"v_sub_u32 v8, {UOFF+504}, v7")
    k("v_add_u32 v8, s9, v8")
    k("v_add_u32 v9, s9, v7")
    KV = 16
    for c in range(8):
        k(f"ds_read_b64 v[{KV+2*c}:{KV+2*c+1}], v8 offset:{(7-c)*512}")
    for c in range(8):
        a = ACC + 4 * c
        unpack(k, "v40", "v41", f"v{KV+2*c}")
        unpack(k, "v42", "v43", f"v{KV+2*c+1}")
        k(f"v_fmac_f32 v{a+3}, v40, v6")
        k(f"v_fmac_f32 v{a+2}, v41, v6")
        k(f"v_fmac_f32 v{a+1}, v42, v6")
        k(f"v_fmac_f32 v{a+0}, v43, v6")
        o = 44 + 2 * (c & 1)
        k(f"v_cvt_pk_bf16_f32 v{o}, v{a}, v{a+1}")
        k(f"v_cvt_pk_bf16_f32 v{o+1}, v{a+2}, v{a+3}")
        k(f"ds_write_b64 v9, v[{o}:{o+1}] offset:{c*512}")
    k.wait(lg=0)
    k.barrier()
    k("v_bfe_u32 v7, v2, 2, 2")
    k(f"v_mul_u32_u24 v7, {WREG}, v7")
    k("v_and_b32 v8, 3, v2")
    k("v_lshl_add_u32 v7, v8, 3, v7")
    k("v_lshl_add_u32 v7, v5, 5, v7")
    k("s_lshl_b32 s10, s3, 10")
    k("v_add_u32 v7, s10, v7")
    YB = 48
    for it in range(8):
        k(f"ds_read_b64_tr_b16 v[{YB+2*it}:{YB+2*it+1}], v7 offset:{it*128}")
    k("v_lshlrev_b32 v9, 4, v10")
    k("s_lshl_b32 s10, s4, 15")
    k("s_lshl_b32 s11, s5, 3")
    k("s_add_u32 s10, s10, s11")
    k("v_add_u32 v9, s10, v9")
    for it in range(8):
        y0, y1 = YB + 2 * it, YB + 2 * it + 1
        q0, q1, mr, r = (QB + 4 * it + i for i in range(4))
        k(f"s_mov_b32 s12, {it*1024}")
        k(f"buffer_store_dwordx2 v[{y0}:{y1}], v9, s[48:51], s12 offen{SC}")
        unpack(k, "v16", "v17", f"v{y0}")
        unpack(k, "v18", "v19", f"v{y1}")
        unpack(k, "v20", "v21", f"v{q0}")
        unpack(k, "v22", "v23", f"v{q1}")
        for i in range(4):
            k(f"v_fma_f32 v{24+i}, v{20+i}, v{r}, -v{mr}")
            k(f"v_fmac_f32 v{20+i}, v{24+i}, v{16+i}")
        o = 28 + 2 * (it & 1)
        k(f"v_cvt_pk_bf16_f32 v{o}, v20, v21")
        k(f"v_cvt_pk_bf16_f32 v{o+1}, v22, v23")
        k(f"buffer_store_dwordx2 v[{o}:{o+1}], v9, s[52:55], s12 offen{SC}")
    k.label("conv_end", flush=False)
    k("s_endpgm")
    return k


def gen_gemm1():
    NST = 10
    RING = 6
    STB = 24576
    CSOFF = RING * STB
    k = Kern("gemm1a_kernel", lds=RING * STB + 6144, grid=256, block=256)
    kb = Kern("gemm1b_kernel", lds=k.lds, grid=256, block=256)
    kb(f"s_mov_b32 s14, {WS_X3}")
    kb(f"s_mov_b32 s15, {WS_H2}")
    kb.branch("s_branch gemm1_body", flush=False)
    k(f"s_mov_b32 s14, {WS_X1}")
    k(f"s_mov_b32 s15, {WS_H}")
    k.label("gemm1_body", flush=False)
    k(f"s_cmp_ge_u32 s2, {k.grid}")
    k.branch("s_cbranch_scc1 gemm1_end", flush=False)
    k("s_load_dwordx2 s[24:25], s[0:1], 96")
    k("v_lshrrev_b32 v1, 6, v0")
    k("v_and_b32 v2, 63, v0")
    k("v_readfirstlane_b32 s3, v1")
    k("s_bfe_u32 s4, s2, 0x10002")
    k("s_lshl_b32 s4, s4, 3")
    k("s_bfe_u32 s5, s2, 0x30003")
    k("s_add_u32 s4, s4, s5")
    k("s_and_b32 s5, s2, 3")
    k("s_lshl_b32 s5, s5, 2")
    k("s_lshr_b32 s6, s2, 6")
    k("s_add_u32 s5, s5, s6")
    k("s_lshl_b32 s6, s4, 7")
    k("s_lshl_b32 s7, s3, 5")
    k("s_add_u32 s6, s6, s7")
    k("v_and_b32 v3, 31, v2")
    k("v_add_u32 v3, s6, v3")
    k("v_lshlrev_b32 v3, 4, v3")
    k("v_lshrrev_b32 v4, 5, v2")
    k("v_lshl_add_u32 v3, v4, 15, v3")
    k("v_lshlrev_b32 v5, 4, v2")
    k(f"s_mul_i32 s8, s5, {WGU_J}")
    k("s_mul_i32 s9, s3, 6144")
    k("s_add_u32 s8, s8, s9")
    k.wait(lg=0)
    k("s_add_u32 s28, s24, s14")
    k("s_addc_u32 s29, s25, 0")
    k(f"s_mov_b32 s30, {XFB}")
    k("s_mov_b32 s31, 0x00020000")
    k.srd(32, 24, WGUB, WS_WGU)
    k("s_add_u32 s36, s24, s15")
    k("s_addc_u32 s37, s25, 0")
    k(f"s_mov_b32 s38, {HFB}")
    k("s_mov_b32 s39, 0x00020000")
    XR = 16
    NXR = 24
    ACC = 112
    WB = [0, 24]

    def xreg(kk):
        return XR + 4 * (kk % NXR)

    def load_x(kk):
        k(f"s_mov_b32 s10, {kk*65536}")
        k(f"buffer_load_dwordx4 v[{xreg(kk)}:{xreg(kk)+3}], v3, s[28:31], s10 offen")

    def dma_stage(st):
        k(f"s_add_u32 m0, s9, {(st % RING)*STB}")
        k(f"s_add_u32 s10, s8, {st*STB}")
        for f in range(4):
            k(f"buffer_load_dwordx4 v5, s[32:35], s10 offen offset:{f*1024} lds", tag=f"w{st}")
        k(f"s_add_u32 m0, s9, {(st % RING)*STB + 4096}")
        k(f"s_add_u32 s10, s8, {st*STB + 4096}")
        for f in range(2):
            k(f"buffer_load_dwordx4 v5, s[32:35], s10 offen offset:{f*1024} lds", tag=f"w{st}")

    for st in range(RING):
        dma_stage(st)
        for kk in range(4 * st, 4 * st + 4):
            load_x(kk)
    k("v_mov_b32 v6, 0x3f803f80")
    for i in range(4):
        k(f"v_mov_b32 v{8+i}, 0")

    def readW(kk):
        st, kq = kk // 4, kk % 4
        base = (st % RING) * STB + kq * 6144 if kk < 40 else CSOFF
        b = WB[kk & 1]
        reg = "v5" if base < 60000 else "v7" if base < 120000 else "v12"
        off = base if base < 60000 else base - 60000 if base < 120000 else base - 120000
        return [f"ds_read_b128 a[{b+4*f}:{b+4*f+3}], {reg} offset:{off+f*1024}" for f in range(6)]

    k("v_add_u32 v7, 60000, v5")
    k("v_add_u32 v12, 120000, v5")
    k.wait_tag("w0")
    k.barrier()
    for r in readW(0):
        k(r)
    for kk in range(41):
        st, kq = kk // 4, kk % 4
        nxt = []
        if kk + 1 <= 40:
            if (kk + 1) % 4 == 0:
                ns = (kk + 1) // 4
                k.wait(lg=0)
                if ns < NST:
                    k.wait_tag(f"w{ns}")
                else:
                    k.wait_tag("cs")
                k.barrier()
                if st + RING < NST:
                    dma_stage(st + RING)
                if st == 3:
                    k("s_lshl_b32 s11, s3, 10")
                    k(f"s_add_u32 m0, s11, {CSOFF}")
                    k(f"s_mul_i32 s10, s5, {WGU_J}")
                    k(f"s_add_u32 s10, s10, {40*6144}")
                    k("s_add_u32 s10, s10, s11")
                    k("buffer_load_dwordx4 v5, s[32:35], s10 offen lds", tag="cs")
                    k("buffer_load_dwordx4 v5, s[32:35], s10 offen offset:2048 lds", tag="cs")
            nxt = readW(kk + 1)
        if kk < 40:
            xr = xreg(kk)
            xop = f"v[{xr}:{xr+3}]"
            val = []
            for d in range(4):
                val.append(f"v_dot2c_f32_bf16 v{8+(d&1)}, v{xr+d}, v6")
                val.append(f"v_dot2c_f32_bf16 v{10+(d&1)}, v{xr+d}, v{xr+d}")
        else:
            k("v_add_f32 v8, v8, v9")
            k("v_add_f32 v10, v10, v11")
            xsum32(k, "v8", "v9")
            xsum32(k, "v10", "v11")
            k(f"v_mul_f32 v8, {f2u(1.0/D)}, v8")
            k(f"v_mul_f32 v10, {f2u(1.0/D)}, v10")
            k("v_fma_f32 v10, -v8, v8, v10")
            k("v_max_f32 v10, 0, v10")
            k(f"v_add_f32 v10, {f2u(EPS)}, v10")
            k("v_rsq_f32 v13, v10")
            k("v_sub_f32 v8, 0, v8")
            k("v_cmp_gt_u32 vcc, 32, v2")
            k("v_cndmask_b32 v8, 0, v8, vcc")
            xr = XR
            k(f"v_cvt_pk_bf16_f32 v{xr}, v8, v8")
            k(f"v_and_b32 v9, 0xffff0000, v{xr}")
            k("v_sub_f32 v9, v8, v9")
            k(f"v_cvt_pk_bf16_f32 v{xr+1}, v9, 0")
            k(f"v_mov_b32 v{xr+2}, 0")
            k(f"v_mov_b32 v{xr+3}, 0")
            xop = f"v[{xr}:{xr+3}]"
            val = []
        b = WB[kk & 1]
        for f in range(6):
            acc = f"v[{ACC+16*f}:{ACC+16*f+15}]"
            src = acc if kk else "0"
            k(f"v_mfma_f32_32x32x16_bf16 {acc}, a[{b+4*f}:{b+4*f+3}], {xop}, {src}")
            if nxt:
                k(nxt.pop(0))
            for _ in range(2):
                if val:
                    k(val.pop(0))
        if kk + NXR < 40:
            load_x(kk + NXR)
    k(f"v_mul_f32 v14, {f2u(-1.4426950408889634)}, v13")
    k("v_mul_f32 v15, v13, v13")
    k("s_mul_i32 s10, s5, 12")
    k("s_lshl_b32 s10, s10, 15")
    for t3 in range(3):
        G = ACC + 32 * t3
        U = G + 16
        for cidx in range(2):
            T = 16 + 16 * ((2 * t3 + cidx) & 1)
            for e in range(8):
                g = f"v{G+8*cidx+e}"
                u = f"v{U+8*cidx+e}"
                t = f"v{T+e}"
                k(f"v_mul_f32 {t}, {g}, v14")
                k(f"v_exp_f32 {t}, {t}")
                k(f"v_mul_f32 {g}, {g}, {u}")
                k(f"v_add_f32 {t}, 1.0, {t}")
                k(f"v_rcp_f32 {t}, {t}")
                k(f"v_mul_f32 {g}, {g}, v15")
                k(f"v_mul_f32 {t}, {t}, {g}")
            for p in range(4):
                k(f"v_cvt_pk_bf16_f32 v{T+8+p}, v{T+2*p}, v{T+2*p+1}")
            k(f"s_add_u32 s11, s10, {(4*t3+2*cidx)*32768}")
            k(f"buffer_store_dwordx4 v[{T+8}:{T+11}], v3, s[36:39], s11 offen{SC}")
    k.label("gemm1_end", flush=False)
    k("s_endpgm")
    kb.maxv, kb.maxa, kb.maxs = k.maxv, k.maxa, k.maxs
    return k, kb


def gen_gemm2(last):
    name = "gemm2b" if last else "gemm2a"
    k = Kern(name + "_kernel", lds=12 * 5120, grid=256, block=256)
    k(f"s_cmp_ge_u32 s2, {k.grid}")
    k.branch(f"s_cbranch_scc1 {name}_end", flush=False)
    k("s_load_dwordx2 s[24:25], s[0:1], 96")
    k("s_load_dwordx2 s[26:27], s[0:1], 80")
    k("v_lshrrev_b32 v1, 6, v0")
    k("v_and_b32 v2, 63, v0")
    k("v_readfirstlane_b32 s3, v1")
    k("s_bfe_u32 s4, s2, 0x20001")
    k("s_lshl_b32 s4, s4, 3")
    k("s_bfe_u32 s5, s2, 0x30003")
    k("s_add_u32 s4, s4, s5")
    k("s_and_b32 s5, s2, 1")
    k("s_lshl_b32 s5, s5, 2")
    k("s_lshr_b32 s6, s2, 6")
    k("s_add_u32 s5, s5, s6")
    k("v_and_b32 v3, 15, v2")
    k("v_lshrrev_b32 v4, 4, v2")
    k("s_lshl_b32 s6, s4, 6")
    k("v_add_u32 v5, s6, v3")
    k("v_lshlrev_b32 v5, 4, v5")
    k("v_lshl_add_u32 v5, v4, 15, v5")
    k(f"s_mul_i32 s7, s3, {48*32768}")
    for tl in range(4):
        k(f"s_add_u32 s8, s3, {tl}")
        k("s_and_b32 s8, s8, 3")
        k("s_lshl_b32 s8, s8, 8")
        k("s_add_u32 s8, s8, s7")
        k(f"v_add_u32 v{8+tl}, s8, v5")
    k("s_lshl_b32 s8, s5, 2")
    k("s_add_u32 s8, s8, s3")
    k("s_mul_i32 s8, s8, 61440")
    k("v_lshlrev_b32 v6, 4, v2")
    k("v_add_u32 v12, s8, v6")
    k("v_add_u32 v13, 4096, v12")
    k.wait(lg=0)
    k.srd(28, 24, HFB, WS_H2 if last else WS_H)
    k.srd(32, 24, WDB, WS_WD)
    k.srd(36, 24, XFB, WS_X3 if last else WS_X1)
    if last:
        k.srd(40, 26, XFB)
    else:
        k.srd(40, 24, XFB, WS_X2)
    RING = 6
    ACC = 32

    def fr(kk, idx):
        return 36 * (kk % RING) + 4 * idx

    def loads(kk):
        k(f"s_mov_b32 s10, {kk*131072}")
        k(f"s_mov_b32 s11, {kk*5120}")
        for t in range(5):
            r = fr(kk, 4 + t)
            if t < 4:
                k(f"buffer_load_dwordx4 a[{r}:{r+3}], v12, s[32:35], s11 offen offset:{t*1024}")
            else:
                k(f"buffer_load_dwordx4 a[{r}:{r+3}], v13, s[32:35], s11 offen")
            if t < 4:
                r = fr(kk, t)
                k(f"buffer_load_dwordx4 a[{r}:{r+3}], v{8+t}, s[28:31], s10 offen")

    for kk in range(RING):
        loads(kk)
    k("s_lshl_b32 s8, s3, 4")
    k("s_add_u32 s8, s8, s6")
    k("v_add_u32 v14, s8, v3")
    k(f"s_mul_i32 s9, s5, {10*32768}")
    k("v_lshlrev_b32 v15, 4, v14")
    k("v_add_u32 v15, s9, v15")
    k("v_lshl_add_u32 v16, v4, 15, v15")
    k("v_lshrrev_b32 v17, 1, v4")
    k("v_lshl_add_u32 v17, v17, 15, v15")
    k("v_and_b32 v18, 1, v4")
    k("v_lshl_add_u32 v17, v18, 3, v17")
    k(f"s_mov_b32 s12, {4*32768}")
    k(f"s_mov_b32 s13, {8*32768}")
    k("buffer_load_dwordx4 v[20:23], v16, s[36:39], 0 offen")
    k("buffer_load_dwordx4 v[24:27], v16, s[36:39], s12 offen")
    k("buffer_load_dwordx2 v[28:29], v17, s[36:39], s13 offen")
    for kk in range(12):
        for t in range(5):
            for tl in range(4):
                a = ACC + 16 * t + 4 * tl
                acc = f"v[{a}:{a+3}]"
                src = acc if kk else "0"
                w_ = fr(kk, 4 + t)
                h_ = fr(kk, tl)
                k(f"v_mfma_f32_16x16x32_bf16 {acc}, a[{w_}:{w_+3}], a[{h_}:{h_+3}], {src}")
        if kk + RING < 12:
            loads(kk + RING)
    for tl in range(1, 4):
        k(f"s_add_u32 s8, s3, {tl}")
        k("s_and_b32 s8, s8, 3")
        k("s_mul_i32 s8, s8, 15360")
        k(f"s_add_u32 s8, s8, {(tl-1)*5120}")
        k("v_add_u32 v7, s8, v6")
        for t in range(5):
            a = ACC + 16 * t + 4 * tl
            k(f"ds_write_b128 v7, v[{a}:{a+3}] offset:{t*1024}")
    k("s_mul_i32 s8, s3, 15360")
    k("v_add_u32 v7, s8, v6")
    k.wait(lg=0)
    k.barrier()
    RB = 112
    for sl_ in range(3):
        for t in range(5):
            r = RB + 20 * sl_ + 4 * t
            k(f"ds_read_b128 v[{r}:{r+3}], v7 offset:{sl_*5120+t*1024}")
    for sl_ in range(3):
        for t in range(5):
            r = RB + 20 * sl_ + 4 * t
            a = ACC + 16 * t
            for i in range(4):
                k(f"v_add_f32 v{a+i}, v{a+i}, v{r+i}")
    for P in range(2):
        x = 20 + 4 * P
        for d in range(4):
            a = ACC + 16 * (2 * P + d // 2) + 2 * (d & 1)
            unpack(k, "v30", "v31", f"v{x+d}")
            k(f"v_add_f32 v30, v30, v{a}")
            k(f"v_add_f32 v31, v31, v{a+1}")
            k(f"v_cvt_pk_bf16_f32 v{x+d}, v30, v31")
    for d in range(2):
        a = ACC + 64 + 2 * d
        unpack(k, "v30", "v31", f"v{28+d}")
        k(f"v_add_f32 v30, v30, v{a}")
        k(f"v_add_f32 v31, v31, v{a+1}")
        k(f"v_cvt_pk_bf16_f32 v{28+d}, v30, v31")
    if last:
        k("v_mul_u32_u24 v15, 1280, v14")
        k("s_mul_i32 s9, s5, 160")
        k("v_add_u32 v15, s9, v15")
        k("v_lshl_add_u32 v16, v4, 4, v15")
        k("v_lshl_add_u32 v17, v4, 3, v15")
        k("buffer_store_dwordx4 v[20:23], v16, s[40:43], 0 offen")
        k("buffer_store_dwordx4 v[24:27], v16, s[40:43], 0 offen offset:64")
        k("buffer_store_dwordx2 v[28:29], v17, s[40:43], 0 offen offset:128")
    else:
        k(f"buffer_store_dwordx4 v[20:23], v16, s[40:43], 0 offen{SC}")
        k(f"buffer_store_dwordx4 v[24:27], v16, s[40:43], s12 offen{SC}")
        k(f"buffer_store_dwordx2 v[28:29], v17, s[40:43], s13 offen{SC}")
    k.label(f"{name}_end", flush=False)
    k("s_endpgm")
    return k


def gen_gate():
    k = Kern("gate_kernel", lds=0, grid=128, block=256)
    k(f"s_cmp_ge_u32 s2, {k.grid}")
    k.branch("s_cbranch_scc1 gate_end", flush=False)
    k("s_load_dwordx2 s[24:25], s[0:1], 96")
    k("v_lshrrev_b32 v1, 6, v0")
    k("v_and_b32 v2, 3, v0")
    k("v_lshl_add_u32 v2, v1, 2, v2")
    k("s_lshl_b32 s3, s2, 4")
    k("v_add_u32 v2, s3, v2")
    k("v_bfe_u32 v3, v0, 2, 4")
    k("v_lshlrev_b32 v4, 4, v2")
    k("v_lshl_add_u32 v4, v3, 15, v4")
    k.wait(lg=0)
    k.srd(28, 24, XFB, WS_X2)
    k.srd(32, 24, XFB, WS_Y)
    k.srd(36, 24, XFB, WS_X3)
    for i in range(5):
        k(f"s_mov_b32 s{10+i}, {i*16*32768}")
    for i in range(5):
        k(f"buffer_load_dwordx4 v[{16+4*i}:{19+4*i}], v4, s[28:31], s{10+i} offen")
    for i in range(5):
        k(f"buffer_load_dwordx4 v[{36+4*i}:{39+4*i}], v4, s[32:35], s{10+i} offen")
    X = 56
    for i in range(20):
        unpack(k, f"v{X+2*i}", f"v{X+2*i+1}", f"v{16+i}")

    def red(v, tmp):
        k(f"v_add_f32_dpp {v}, {v}, {v} row_ror:4 row_mask:0xf bank_mask:0xf")
        k(f"v_add_f32_dpp {v}, {v}, {v} row_ror:8 row_mask:0xf bank_mask:0xf")
        xsum16(k, v, tmp)
        xsum32(k, v, tmp)

    k(f"v_add_f32 v6, v{X}, v{X+1}")
    k(f"v_add_f32 v7, v{X+2}, v{X+3}")
    for i in range(4, 40, 2):
        k(f"v_add_f32 v6, v6, v{X+i}")
        k(f"v_add_f32 v7, v7, v{X+i+1}")
    k("v_add_f32 v6, v6, v7")
    red("v6", "v7")
    k(f"v_mul_f32 v6, {f2u(1.0/D)}, v6")
    k("v_mov_b32 v7, 0")
    k("v_mov_b32 v8, 0")
    for i in range(0, 40, 2):
        k(f"v_sub_f32 v9, v{X+i}, v6")
        k(f"v_sub_f32 v10, v{X+i+1}, v6")
        k("v_fmac_f32 v7, v9, v9")
        k("v_fmac_f32 v8, v10, v10")
    k("v_add_f32 v7, v7, v8")
    red("v7", "v8")
    k(f"v_mov_b32 v8, {f2u(EPS)}")
    k(f"v_fmac_f32 v8, {f2u(1.0/D)}, v7")
    k("v_rsq_f32 v13, v8")
    k("v_mul_f32 v12, v6, v13")
    for i in range(20):
        unpack(k, "v9", "v10", f"v{36+i}")
        k(f"v_fma_f32 v14, v{X+2*i}, v13, -v12")
        k(f"v_fma_f32 v15, v{X+2*i+1}, v13, -v12")
        k(f"v_fmac_f32 v{X+2*i}, v14, v9")
        k(f"v_fmac_f32 v{X+2*i+1}, v15, v10")
        k(f"v_cvt_pk_bf16_f32 v{16+i}, v{X+2*i}, v{X+2*i+1}")
        if i % 4 == 3:
            j = i // 4
            k(f"buffer_store_dwordx4 v[{16+4*j}:{19+4*j}], v4, s[36:39], s{10+j} offen{SC}")
    k.label("gate_end", flush=False)
    k("s_endpgm")
    return k


HEADER = open("interleave_layers__ssm_conv_h3__swiglu_ffn__prompt.s.ref").read().split("; Override launch")[0]

if __name__ == "__main__":
    prep = gen_prep()
    conv = gen_conv()
    g1a, g1b = gen_gemm1()
    g2a = gen_gemm2(False)
    g2b = gen_gemm2(True)
    gate = gen_gate()
    kerns = [prep, conv, g1b, g1a, g2a, gate, g2b]
    launches = [prep, conv, g1a, g2a, gate, g1b, g2b]
    out = sys.argv[1] if len(sys.argv) > 1 else "v1.s"
    open(out, "w").write(build_file(HEADER, kerns, launches))
    for kk in kerns:
        print(kk.name, "instrs", kk.nins, "vgpr", kk.maxv + 1, "agpr", kk.maxa + 1, "sgpr", kk.maxs + 1, "lds", kk.lds)
```

```python
import re

TRANS = ("v_exp_f32", "v_log_f32", "v_rcp_f32", "v_rsq_f32", "v_sqrt_f32", "v_sin_f32", "v_cos_f32",
         "v_rcp_iflag_f32")
NO_DST_SALU = ("s_cmp", "s_cbranch", "s_branch", "s_barrier", "s_waitcnt", "s_nop", "s_setprio", "s_sleep",
               "s_endpgm", "s_bitcmp", "s_setreg", "s_sendmsg")

_reg_re = re.compile(r"^(-?)(\|?)(abs\()?([vas])(\d+)\)?\|?$")
_rng_re = re.compile(r"^(-?)(\|?)(abs\()?([vas])\[(\d+):(\d+)\]\)?\|?$")


def regs_of(tok):
    tok = tok.strip()
    m = _reg_re.match(tok)
    if m:
        return [m.group(4) + m.group(5)]
    m = _rng_re.match(tok)
    if m:
        return [m.group(4) + str(i) for i in range(int(m.group(5)), int(m.group(6)) + 1)]
    if tok in ("vcc", "vcc_lo", "vcc_hi"):
        return ["vcc"]
    if tok in ("exec", "exec_lo", "exec_hi"):
        return ["exec"]
    if tok == "m0":
        return ["m0"]
    return []


def split_ops(rest):
    ops = []
    depth = 0
    cur = ""
    for ch in rest:
        if ch in "[(":
            depth += 1
        elif ch in "])":
            depth -= 1
        if ch == "," and depth == 0:
            ops.append(cur.strip())
            cur = ""
        else:
            cur += ch
    last = cur.strip()
    mods = []
    if last:
        parts = []
        depth = 0
        c2 = ""
        for ch in last:
            if ch in "[(":
                depth += 1
            elif ch in "])":
                depth -= 1
            if ch.isspace() and depth == 0:
                if c2:
                    parts.append(c2)
                c2 = ""
            else:
                c2 += ch
        if c2:
            parts.append(c2)
        ops.append(parts[0])
        mods = parts[1:]
    return ops, mods


class Ins:
    __slots__ = ("text", "mn", "ops", "mods", "kind", "rd", "wr", "passes", "A", "B", "C", "D", "dpp", "trans",
                 "lds_dma", "wide_store", "data")


def parse(text):
    t = text.split(";")[0].strip()
    sp = t.split(None, 1)
    mn = sp[0]
    ops, mods = split_ops(sp[1]) if len(sp) > 1 else ([], [])
    I = Ins()
    I.text = text
    I.mn = mn
    I.ops = ops
    I.mods = mods
    I.rd = []
    I.wr = []
    I.passes = 0
    I.A = I.B = I.C = I.D = []
    I.dpp = False
    I.trans = False
    I.lds_dma = False
    I.wide_store = False
    I.data = []
    R = lambda i: regs_of(ops[i]) if i < len(ops) else []
    allr = lambda a: [r for i in range(a, len(ops)) for r in R(i)]
    base = re.sub(r"_(e32|e64|dpp|sdwa)$", "", mn)
    if mn.startswith("v_mfma"):
        I.kind = "mfma"
        I.D = R(0); I.A = R(1); I.B = R(2); I.C = R(3)
        I.passes = 8 if "32x32x16" in mn else 4 if "16x16x32" in mn else None
        assert I.passes, mn
        I.rd = I.A + I.B + I.C
        I.wr = I.D
    elif mn.startswith("v_"):
        I.kind = "valu"
        I.dpp = any(m.startswith(("row_", "quad_perm", "wave_")) for m in mods) or base.startswith("v_permlane")
        I.trans = base in TRANS
        if base.startswith("v_cmp"):
            I.wr = R(0); I.rd = allr(1)
            assert not base.startswith("v_cmpx")
        elif base in ("v_readfirstlane_b32", "v_readlane_b32"):
            I.wr = R(0); I.rd = allr(1)
        elif base.startswith("v_permlane") and "swap" in base:
            I.wr = R(0) + R(1); I.rd = R(0) + R(1)
        elif base.startswith(("v_fmac", "v_dot2c", "v_pk_fmac", "v_writelane")):
            I.wr = R(0); I.rd = allr(0)
        elif base in ("v_add_co_u32", "v_sub_co_u32", "v_subrev_co_u32", "v_addc_co_u32", "v_subb_co_u32",
                      "v_mad_u64_u32"):
            I.wr = R(0) + R(1); I.rd = allr(2)
        elif base == "v_nop":
            pass
        else:
            I.wr = R(0); I.rd = allr(1)
            if I.dpp or any(m.startswith("dst_unused:UNUSED_PRESERVE") for m in mods):
                I.rd = I.rd + R(0)
            if base == "v_cndmask_b32" and len(ops) == 3:
                I.rd.append("vcc")
    elif mn.startswith("buffer_load"):
        I.kind = "vmem"
        if "lds" in mods:
            I.lds_dma = True
            I.rd = allr(0) + ["m0"]
        else:
            I.wr = R(0); I.rd = allr(1)
            if "d16" in mn:
                I.rd += R(0)
    elif mn.startswith("buffer_store"):
        I.kind = "vmem"
        I.rd = allr(0); I.data = R(0)
        I.wide_store = mn.endswith(("x3", "x4"))
    elif mn.startswith("buffer_atomic"):
        I.kind = "vmem"
        I.rd = allr(0)
        if "sc0" in mods:
            I.wr = R(0)
    elif mn.startswith(("buffer_wbl2", "buffer_inv")):
        I.kind = "vmem"
    elif mn.startswith("global_load_lds"):
        I.kind = "vmem"; I.lds_dma = True
        I.rd = allr(0) + ["m0"]
    elif mn.startswith("global_load"):
        I.kind = "vmem"
        I.wr = R(0); I.rd = allr(1)
    elif mn.startswith("global_store"):
        I.kind = "vmem"
        I.rd = allr(0); I.data = R(1)
        I.wide_store = mn.endswith(("x3", "x4"))
    elif mn.startswith("global_atomic"):
        I.kind = "vmem"
        if "sc0" in mods:
            I.wr = R(0); I.rd = allr(1)
        else:
            I.rd = allr(0)
    elif mn.startswith("ds_"):
        I.kind = "ds"
        if mn.startswith(("ds_read", "ds_bpermute", "ds_permute", "ds_swizzle")) or "_rtn" in mn:
            I.wr = R(0); I.rd = allr(1)
            if "d16" in mn:
                I.rd += R(0)
        else:
            I.rd = allr(0)
    elif mn.startswith(("s_load", "s_memtime", "s_memrealtime", "s_buffer_load")):
        I.kind = "smem"
        I.wr = R(0); I.rd = allr(1)
    elif mn.startswith("s_"):
        I.kind = "salu"
        if mn.startswith(NO_DST_SALU):
            I.rd = allr(0)
        elif "saveexec" in mn:
            I.wr = R(0) + ["exec"]; I.rd = allr(1) + ["exec"]
        else:
            I.wr = R(0); I.rd = allr(1)
            if mn.startswith(("s_addk", "s_mulk", "s_cmov")):
                I.rd += R(0)
    else:
        raise ValueError("unknown instruction: " + text)
    return I


PROFINFO = {}


class Kern:
    def __init__(self, name, lds=0, grid=None, block=256):
        self.name = name
        self.lds = lds
        self.grid = grid
        self.block = block
        self.lines = []
        self.t = 0
        self.valu_w = {}
        self.valu_sw = {}
        self.mfma_w = {}
        self.mfma_c = {}
        self.st_data = {}
        self.dl_w = {}
        self.m0_w = -100
        self.vm = []
        self.lg = []
        self.maxv = -1
        self.maxa = -1
        self.maxs = -1
        self.nins = 0
        self.uid = 0
        self.auto = True

    def raw(self, s):
        self.lines.append(s)

    def comment(self, s):
        self.lines.append("    ; " + s)

    def _nop(self, n):
        while n > 0:
            k = min(n, 16)
            self.lines.append(f"    s_nop {k-1}")
            self.t += k
            self.nins += 1
            n -= k

    def _waitcnt(self, vm=None, lg=None):
        parts = []
        if vm is not None:
            vm = min(vm, 63)
            if vm < len(self.vm):
                parts.append(f"vmcnt({vm})")
                self.vm = self.vm[len(self.vm) - vm:] if vm else []
        if lg is not None:
            if any(e[2] for e in self.lg):
                lg = 0
            lg = min(lg, 15)
            if lg < len(self.lg):
                parts.append(f"lgkmcnt({lg})")
                self.lg = self.lg[len(self.lg) - lg:] if lg else []
        if parts:
            self.lines.append("    s_waitcnt " + " ".join(parts))
            self.t += 1
            self.nins += 1

    def wait(self, vm=None, lg=None):
        self._waitcnt(vm, lg)

    def wait_tag(self, tag):
        idx = [i for i, e in enumerate(self.vm) if e[1] == tag]
        if idx:
            self._waitcnt(vm=len(self.vm) - 1 - max(idx))

    def wait_lg_tag(self, tag):
        idx = [i for i, e in enumerate(self.lg) if e[1] == tag]
        if idx:
            self._waitcnt(lg=len(self.lg) - 1 - max(idx))

    def flush_hazards(self):
        need = 0
        for r, (t, p, d) in self.mfma_w.items():
            need = max(need, (8 if p == 4 else 12) - (self.t - t - 1))
        for r, (t, tr) in self.valu_w.items():
            need = max(need, 2 - (self.t - t - 1))
        for r, t in self.valu_sw.items():
            need = max(need, 5 - (self.t - t - 1))
        for r, t in self.st_data.items():
            need = max(need, 2 - (self.t - t - 1))
        for r, (t, mn) in self.dl_w.items():
            need = max(need, 3 - (self.t - t - 1))
        need = max(need, 1 - (self.t - self.m0_w - 1))
        if need > 0:
            self._nop(need)

    def label(self, name, flush=True):
        if flush:
            self._waitcnt(0, 0)
            self.flush_hazards()
        self.lines.append(name + ":")

    def branch(self, text, flush=True):
        if flush:
            self._waitcnt(0, 0)
            self.flush_hazards()
        self(text)

    def barrier(self):
        self("s_barrier")

    def newlabel(self, base="L"):
        self.uid += 1
        return f"{self.name}_{base}{self.uid}"

    def __call__(self, text, tag=None):
        I = parse(text)
        touched = I.rd + I.wr
        for r in touched:
            if r[0] == "v" and r != "vcc":
                self.maxv = max(self.maxv, int(r[1:]))
            elif r[0] == "a":
                self.maxa = max(self.maxa, int(r[1:]))
            elif r[0] == "s":
                self.maxs = max(self.maxs, int(r[1:]))
        if I.mn == "s_waitcnt":
            raise ValueError("use .wait()")
        if self.auto:
            ts = set(touched)
            vmn = lgn = None
            for i, e in enumerate(self.vm):
                if e[0] & ts:
                    vmn = len(self.vm) - 1 - i
            for i, e in enumerate(self.lg):
                if e[0] & ts:
                    lgn = len(self.lg) - 1 - i
            if vmn is not None or lgn is not None:
                self._waitcnt(vmn, lgn)
        need = 0

        def req(t, n):
            nonlocal need
            need = max(need, n - (self.t - t - 1))

        XD = {4: 8, 8: 12}
        for r in touched:
            if r in self.dl_w:
                t, mn = self.dl_w[r]
                if mn == I.mn:
                    srcab = regs_of(I.ops[1]) + regs_of(I.ops[2])
                    if r in srcab:
                        req(t, 3)
                else:
                    req(t, 3)
        if I.kind == "mfma":
            for r in I.rd:
                if r in self.valu_w:
                    req(self.valu_w[r][0], 2)
            for r in I.A + I.B:
                if r in self.mfma_w:
                    t, p, d = self.mfma_w[r]
                    req(t, XD[p])
            for r in I.C + I.D:
                if r in self.mfma_w:
                    t, p, d = self.mfma_w[r]
                    if d == tuple(I.C) and p == I.passes and I.C == I.D:
                        pass
                    elif d == tuple(I.C) and p == I.passes and r in I.C:
                        pass
                    else:
                        req(t, {4: 6, 8: 10}[p])
        elif I.kind == "valu":
            for r in touched:
                if r in self.mfma_w:
                    t, p, d = self.mfma_w[r]
                    req(t, XD[p])
            for r in I.wr:
                if r in self.mfma_c:
                    t, p = self.mfma_c[r]
                    req(t, {4: 3, 8: 7}[p])
                if r in self.st_data:
                    req(self.st_data[r], 2)
            for r in I.rd:
                if r in self.valu_w:
                    t, tr = self.valu_w[r]
                    if tr and not I.trans:
                        req(t, 1)
                    if I.dpp:
                        req(t, 2)
                    if I.mn.startswith(("v_readlane", "v_readfirstlane")):
                        req(t, 1)
                if r in self.valu_sw:
                    req(self.valu_sw[r], 4 if I.mn.startswith(("v_readlane", "v_writelane")) else 2)
        elif I.kind in ("vmem", "ds"):
            for r in touched:
                if r in self.mfma_w:
                    t, p, d = self.mfma_w[r]
                    req(t, XD[p])
            for r in I.rd:
                if r in self.valu_sw:
                    req(self.valu_sw[r], 5)
            for r in I.wr:
                if r in self.st_data:
                    req(self.st_data[r], 1)
                if r in self.mfma_c:
                    t, p = self.mfma_c[r]
                    req(t, {4: 3, 8: 7}[p])
            if I.lds_dma:
                req(self.m0_w, 1)
        elif I.kind in ("salu", "smem"):
            for r in I.rd:
                if r in self.valu_sw:
                    req(self.valu_sw[r], 1)
        if need > 0:
            self._nop(need)
        self.lines.append("    " + text)
        self.nins += 1
        now = self.t
        if I.mn == "s_nop":
            self.t += int(I.ops[0], 0) + 1
        else:
            self.t += 1
        for r in I.wr:
            self.valu_w.pop(r, None)
            self.mfma_w.pop(r, None)
            self.valu_sw.pop(r, None)
            self.dl_w.pop(r, None)
        if I.mn.startswith("v_dot"):
            for r in I.wr:
                self.dl_w[r] = (now, I.mn)
        if I.kind == "mfma":
            for r in I.D:
                self.mfma_w[r] = (now, I.passes, tuple(I.D))
            for r in I.C:
                self.mfma_c[r] = (now, I.passes)
        elif I.kind == "valu":
            for r in I.wr:
                if r[0] in "va" and r != "vcc":
                    self.valu_w[r] = (now, I.trans)
                else:
                    self.valu_sw[r] = now
        elif I.kind == "vmem":
            if I.wide_store:
                for r in I.data:
                    self.st_data[r] = now
            self.vm.append((set(I.wr), tag))
        elif I.kind == "ds":
            self.lg.append((set(I.wr), tag, False))
        elif I.kind == "smem":
            self.lg.append((set(I.wr), tag, True))
        elif I.kind == "salu":
            if "m0" in I.wr:
                self.m0_w = now
        if self.nins % 64 == 0:
            for d in (self.valu_sw, self.st_data):
                for r in [r for r, t in d.items() if self.t - t > 24]:
                    del d[r]
            for d in (self.valu_w, self.mfma_w, self.mfma_c, self.dl_w):
                for r in [r for r, e in d.items() if self.t - e[0] > 24]:
                    del d[r]

    PROF = False
    def stamp(self, name):
        if not Kern.PROF:
            return
        if not hasattr(self, "stamps"):
            self.stamps = []
        i = len(self.stamps)
        assert i < 14
        self.stamps.append(name)
        self(f"s_memtime s[{64+2*i}:{65+2*i}]")

    def prof_begin(self):
        if not Kern.PROF:
            return
        self("s_memrealtime s[92:93]")
        self.stamp("start")

    def prof_end(self, slot, ws_lo, wave_sreg, slot_sreg=None, names=None):
        if not Kern.PROF:
            return
        self.stamp("end")
        self.wait(vm=0)
        self.stamp("drained")
        self("s_memrealtime s[94:95]")
        self.wait(lg=0)
        self.srd(96, ws_lo, 0x400000, 0x8000000)
        self("s_lshl_b32 s100, s2, 4")
        self(f"s_add_u32 s100, s100, s{wave_sreg}")
        self("s_lshl_b32 s100, s100, 6")
        if slot_sreg is None:
            self(f"s_add_u32 s100, s100, {slot*0x40000}")
        else:
            self(f"s_add_u32 s100, s100, s{slot_sreg}")
        self("v_mov_b32 v0, s100")
        vals = ["s92", "s94"] + [f"s{64+2*i}" for i in range(len(self.stamps))]
        for i, v in enumerate(vals):
            self(f"v_mov_b32 v1, {v}")
            self(f"buffer_store_dword v1, v0, s[96:99], 0 offen offset:{4*i}")
        if slot_sreg is None:
            PROFINFO[slot] = (names or self.name, list(self.stamps))
        else:
            for sl, nm in zip(slot, names):
                PROFINFO[sl] = (nm, list(self.stamps))

    def srd(self, d, ptr_lo, nbytes, off=0):
        if off:
            self(f"s_add_u32 s{d}, s{ptr_lo}, {off}")
            self(f"s_addc_u32 s{d+1}, s{ptr_lo+1}, 0")
        else:
            self(f"s_mov_b32 s{d}, s{ptr_lo}")
            self(f"s_mov_b32 s{d+1}, s{ptr_lo+1}")
        self(f"s_mov_b32 s{d+2}, {nbytes}")
        self(f"s_mov_b32 s{d+3}, 0x00020000")

    def text(self):
        hdr = [f".globl {self.name}", ".p2align 8", f".type {self.name},@function", f"{self.name}:"]
        return "\n".join(hdr + self.lines) + "\n"

    def descriptor(self):
        nv = self.maxv + 1
        acc = max(4, (nv + 3) // 4 * 4)
        tot = acc + self.maxa + 1 if self.maxa >= 0 else nv
        assert nv <= 256 and tot <= 512, (nv, tot)
        ns = max(self.maxs + 1, 8)
        assert ns <= 102
        return f""".p2align 6
.amdhsa_kernel {self.name}
  .amdhsa_next_free_vgpr {tot}
  .amdhsa_next_free_sgpr {ns}
  .amdhsa_accum_offset {acc}
  .amdhsa_group_segment_fixed_size 0
  .amdhsa_kernarg_size 104
  .amdhsa_user_sgpr_count 2
  .amdhsa_user_sgpr_kernarg_segment_ptr 1
  .amdhsa_system_sgpr_workgroup_id_x 1
  .amdhsa_float_denorm_mode_32 3
.end_amdhsa_kernel
"""


def build_file(header_comment, kerns, launches):
    out = [header_comment.rstrip("\n")]
    for k in launches:
        out.append(f"; @launch kernel={k.name} grid=({k.grid},1,1) block=({k.block},1,1) lds={k.lds}")
    out.append('.amdgcn_target "amdgcn-amd-amdhsa--gfx950"')
    out.append(".text")
    for k in kerns:
        out.append(k.text())
    out.append('.section .rodata,"a"')
    for k in kerns:
        out.append(k.descriptor())
    return "\n".join(out)
```

```python
import sys
sys.path.insert(0, "dev")
from asmdsl import *

S, D, F = 2048, 640, 1536
A_Q, A_K, A_V, A_SK, A_HK, A_DD, A_BX, A_WG, A_WU, A_WD, A_OUT, A_DBG, A_WS = range(0, 104, 8)
WS_KVT = 0x0000000
WS_QST = 0x0300000
WS_WGU = 0x0400000
WS_WD = 0x0900000
WS_Y = 0x0C00000
WS_X1 = 0x0F00000
WS_H = 0x1200000
WS_X2 = 0x1900000
WS_X3 = 0x1D00000
WS_H2 = 0x2000000
XFB = S * D * 2
HFB = S * F * 2
WGU_J = 41 * 6144
WGUB = 16 * WGU_J
WDB = F * D * 2
EPS = 1e-5
SC = " sc1"


def f2u(x):
    import struct
    return "0x%08x" % struct.unpack("<I", struct.pack("<f", x))[0]


def unpack(k, lo, hi, src):
    k(f"v_lshlrev_b32 {lo}, 16, {src}")
    k(f"v_and_b32 {hi}, 0xffff0000, {src}")


def reduce16(k, v, tmp):
    for mod in ("quad_perm:[1,0,3,2]", "quad_perm:[2,3,0,1]", "row_half_mirror", "row_mirror"):
        k(f"v_add_f32_dpp {v}, {v}, {v} {mod} row_mask:0xf bank_mask:0xf")


def xsum16(k, v, tmp):
    k(f"v_mov_b32 {tmp}, {v}")
    k(f"v_permlane16_swap_b32 {v}, {tmp}")
    k(f"v_add_f32 {v}, {v}, {tmp}")


def xsum32(k, v, tmp):
    k(f"v_mov_b32 {tmp}, {v}")
    k(f"v_permlane32_swap_b32 {v}, {tmp}")
    k(f"v_add_f32 {v}, {v}, {tmp}")


def gen_prep():
    NKV, NQ, NWGU, NWD = 128, 103, 96, 48
    k = Kern("prep_kernel", lds=5 * 4096, grid=NKV + NQ + NWGU + NWD, block=320)
    k.prof_begin()
    k(f"s_cmp_ge_u32 s2, {k.grid}")
    k.branch("s_cbranch_scc1 prep_end", flush=False)
    k("s_load_dwordx16 s[16:31], s[0:1], 0")
    k("s_load_dwordx4 s[32:35], s[0:1], 64")
    k("s_load_dwordx2 s[36:37], s[0:1], 96")
    k("v_lshrrev_b32 v1, 6, v0")
    k("v_and_b32 v2, 63, v0")
    k("v_readfirstlane_b32 s3, v1")
    k.wait(lg=0)
    k(f"s_cmp_ge_u32 s2, {NKV}")
    k.branch("s_cbranch_scc1 prep_notkv")
    k.srd(40, 18, S * D * 2)
    k.srd(44, 20, S * D * 2)
    k.srd(48, 22, D * 8)
    k.srd(52, 36, D * 4096, WS_KVT)
    k("s_lshr_b32 s4, s2, 2")
    k("s_and_b32 s5, s2, 3")
    k("s_mul_i32 s5, s5, 160")
    k("s_lshl_b32 s6, s3, 5")
    k("s_add_u32 s5, s5, s6")
    k("s_lshl_b32 s4, s4, 6")
    k("v_lshrrev_b32 v3, 2, v2")
    k("v_and_b32 v4, 3, v2")
    k("v_lshlrev_b32 v5, 3, v4")
    k("v_add_u32 v5, s5, v5")
    k("v_lshlrev_b32 v6, 2, v3")
    k("v_add_u32 v6, s4, v6")
    k("v_mul_u32_u24 v7, 1280, v6")
    k("v_lshl_add_u32 v7, v5, 1, v7")
    KR = 16
    for j in range(7):
        off = (j - 3) * 1280
        if off:
            k(f"v_add_u32 v8, {off & 0xffffffff:#x}, v7")
            k(f"buffer_load_dwordx4 v[{KR+4*j}:{KR+4*j+3}], v8, s[40:43], 0 offen")
        else:
            k(f"buffer_load_dwordx4 v[{KR+4*j}:{KR+4*j+3}], v7, s[40:43], 0 offen")
    VR = 44
    for i in range(4):
        k(f"buffer_load_dwordx4 v[{VR+4*i}:{VR+4*i+3}], v7, s[44:47], 0 offen offset:{i*1280}")
    WR = 60
    k("v_lshlrev_b32 v9, 3, v5")
    for i in range(4):
        k(f"buffer_load_dwordx4 v[{WR+4*i}:{WR+4*i+3}], v9, s[48:51], 0 offen offset:{16*i}")
    k("s_lshl_b32 s7, s3, 12")
    k("v_lshlrev_b32 v10, 10, v4")
    k("v_lshlrev_b32 v11, 3, v3")
    k("v_sub_u32 v10, v10, v11")
    k("v_add_u32 v10, 120, v10")
    k("v_add_u32 v10, s7, v10")
    k("v_lshlrev_b32 v11, 4, v2")
    k("v_add_u32 v11, s7, v11")
    k("v_lshrrev_b32 v12, 3, v2")
    k("v_add_u32 v12, s5, v12")
    k("v_lshlrev_b32 v12, 12, v12")
    k("v_and_b32 v13, 7, v2")
    k("v_lshl_add_u32 v12, v13, 4, v12")
    k("s_lshl_b32 s8, s4, 1")
    k("s_sub_u32 s8, 3968, s8")
    k("v_add_u32 v12, s8, v12")
    k.stamp("issued")
    k.wait(vm=0)
    k.stamp("loaded")
    WF = 80
    for c in range(8):
        unpack(k, f"v{WF+4*c}", f"v{WF+4*c+1}", f"v{WR+2*c}")
        unpack(k, f"v{WF+4*c+2}", f"v{WF+4*c+3}", f"v{WR+2*c+1}")
    KF = 112
    VF = 128
    OUT = 140
    for cp in range(4):
        for j in range(7):
            unpack(k, f"v{KF+2*j}", f"v{KF+2*j+1}", f"v{KR+4*j+cp}")
        for i in range(4):
            unpack(k, f"v{VF+2*i}", f"v{VF+2*i+1}", f"v{VR+4*i+cp}")
        for h in range(2):
            c = 2 * cp + h
            for i in range(4):
                o = f"v{OUT+i}"
                k(f"v_mul_f32 {o}, v{KF+2*(i+0)+h}, v{WF+4*c+3}")
                k(f"v_fmac_f32 {o}, v{KF+2*(i+1)+h}, v{WF+4*c+2}")
                k(f"v_fmac_f32 {o}, v{KF+2*(i+2)+h}, v{WF+4*c+1}")
                k(f"v_fmac_f32 {o}, v{KF+2*(i+3)+h}, v{WF+4*c+0}")
                k(f"v_mul_f32 {o}, {o}, v{VF+2*i+h}")
            p = 144 + 2 * (c & 1)
            k(f"v_cvt_pk_bf16_f32 v{p}, v{OUT+3}, v{OUT+2}")
            k(f"v_cvt_pk_bf16_f32 v{p+1}, v{OUT+1}, v{OUT+0}")
            k(f"ds_write_b64 v10, v[{p}:{p+1}] offset:{c*128}")
    k.wait(lg=0)
    for n in range(4):
        k(f"ds_read_b128 v[{16+4*n}:{19+4*n}], v11 offset:{n*1024}")
    for n in range(4):
        k(f"s_mov_b32 s9, {n*8*4096}")
        k(f"buffer_store_dwordx4 v[{16+4*n}:{19+4*n}], v12, s[52:55], s9 offen{SC}")
    k.prof_end(0, 36, 3, names="prep_kv")
    k("s_endpgm")
    k.stamps = ["start"]

    k.label("prep_notkv")
    k(f"s_cmp_ge_u32 s2, {NKV+NQ}")
    k.branch("s_cbranch_scc1 prep_notq")
    k.srd(40, 16, S * D * 2)
    k.srd(44, 36, S * 8, WS_QST)
    k(f"s_sub_u32 s4, s2, {NKV}")
    k("s_mul_i32 s4, s4, 5")
    k("s_add_u32 s4, s4, s3")
    k("s_lshl_b32 s4, s4, 2")
    k("v_lshrrev_b32 v3, 4, v2")
    k("v_add_u32 v3, s4, v3")
    k("v_and_b32 v4, 15, v2")
    k("v_mul_u32_u24 v5, 1280, v3")
    k("v_lshl_add_u32 v5, v4, 4, v5")
    for i in range(5):
        k(f"buffer_load_dwordx4 v[{16+4*i}:{19+4*i}], v5, s[40:43], 0 offen offset:{256*i}")
    XF0 = 40
    for i in range(20):
        unpack(k, f"v{XF0+2*i}", f"v{XF0+2*i+1}", f"v{16+i}")
    k(f"v_add_f32 v6, v{XF0}, v{XF0+1}")
    k(f"v_add_f32 v7, v{XF0+2}, v{XF0+3}")
    for i in range(4, 40, 2):
        k(f"v_add_f32 v6, v6, v{XF0+i}")
        k(f"v_add_f32 v7, v7, v{XF0+i+1}")
    k("v_add_f32 v6, v6, v7")
    reduce16(k, "v6", None)
    k(f"v_mul_f32 v6, {f2u(1.0/D)}, v6")
    k("v_mov_b32 v7, 0")
    k("v_mov_b32 v8, 0")
    for i in range(0, 40, 2):
        k(f"v_sub_f32 v9, v{XF0+i}, v6")
        k(f"v_sub_f32 v10, v{XF0+i+1}, v6")
        k("v_fmac_f32 v7, v9, v9")
        k("v_fmac_f32 v8, v10, v10")
    k("v_add_f32 v7, v7, v8")
    reduce16(k, "v7", None)
    k(f"v_mov_b32 v8, {f2u(EPS)}")
    k(f"v_fmac_f32 v8, {f2u(1.0/D)}, v7")
    k("v_rsq_f32 v13, v8")
    k("v_mul_f32 v12, v6, v13")
    k("v_lshlrev_b32 v3, 3, v3")
    k(f"buffer_store_dwordx2 v[12:13], v3, s[44:47], 0 offen{SC}")
    k.prof_end(1, 36, 3, names="prep_q")
    k("s_endpgm")
    k.stamps = ["start"]

    k.label("prep_notq")
    k("s_mov_b32 s10, 0x05040100")
    k("s_mov_b32 s11, 0x07060302")
    k(f"s_cmp_ge_u32 s2, {NKV+NQ+NWGU}")
    k.branch("s_cbranch_scc1 prep_wd")
    k(f"s_sub_u32 s4, s2, {NKV+NQ}")
    k("s_and_b32 s5, s4, 1")
    k("s_lshr_b32 s6, s4, 1")
    k("s_cmp_eq_u32 s5, 0")
    k("s_cselect_b32 s40, s30, s32")
    k("s_cselect_b32 s41, s31, s33")
    k(f"s_mov_b32 s42, {D*F*2}")
    k("s_mov_b32 s43, 0x00020000")
    k.srd(44, 36, WGUB, WS_WGU)
    k("s_mul_i32 s7, s6, 43")
    k("s_lshr_b32 s7, s7, 7")
    k("s_mul_i32 s8, s7, 3")
    k("s_sub_u32 s8, s6, s8")
    k(f"s_mul_i32 s7, s7, {WGU_J}")
    k("s_lshl_b32 s8, s8, 1")
    k("s_add_u32 s8, s8, s5")
    k("s_lshl_b32 s8, s8, 10")
    k("s_add_u32 s7, s7, s8")
    k("v_lshrrev_b32 v3, 2, v0")
    k("v_and_b32 v4, 3, v0")
    k("v_mul_u32_u24 v5, 24576, v3")
    k("v_lshl_add_u32 v5, v4, 4, v5")
    k("s_lshl_b32 s9, s6, 6")
    k("v_add_u32 v5, s9, v5")
    for i in range(8):
        k(f"s_mov_b32 s12, {i*3072}")
        k(f"buffer_load_dwordx4 v[{16+4*i}:{19+4*i}], v5, s[40:43], s12 offen")
    k("v_lshrrev_b32 v6, 1, v3")
    k("v_mul_u32_u24 v6, 6144, v6")
    k("v_and_b32 v7, 1, v3")
    k("v_lshl_add_u32 v6, v7, 9, v6")
    k("v_lshrrev_b32 v7, 1, v4")
    k("v_lshl_add_u32 v6, v7, 8, v6")
    k("v_and_b32 v7, 1, v4")
    k("v_lshl_add_u32 v6, v7, 6, v6")
    k("v_mov_b32 v8, 0x3f803f80")
    CS = 96
    for e in range(8):
        o = 48 + 4 * e
        for p in range(4):
            k(f"v_perm_b32 v{o+p}, v{16+4*(2*p+1)+e//2}, v{16+4*(2*p)+e//2}, s{10+(e&1)}")
        k(f"buffer_store_dwordx4 v[{o}:{o+3}], v6, s[44:47], s7 offen offset:{(8*(e>>2)+(e&3))*16}{SC}")
        k(f"v_mov_b32 v{CS+e}, 0")
        for p in range(4):
            k(f"v_dot2c_f32_bf16 v{CS+e}, v{o+p}, v8")
    for e in range(8):
        v = f"v{CS+e}"
        k(f"v_add_f32_dpp {v}, {v}, {v} row_ror:4 row_mask:0xf bank_mask:0xf")
    for e in range(8):
        v = f"v{CS+e}"
        k(f"v_add_f32_dpp {v}, {v}, {v} row_ror:8 row_mask:0xf bank_mask:0xf")
    for e in range(8):
        xsum16(k, f"v{CS+e}", f"v{CS+8+e}")
    for e in range(8):
        xsum32(k, f"v{CS+e}", f"v{CS+8+e}")
    k("s_lshl_b32 s12, s3, 7")
    k("v_lshlrev_b32 v9, 5, v4")
    k("v_add_u32 v9, s12, v9")
    k(f"ds_write_b128 v9, v[{CS}:{CS+3}]")
    k(f"ds_write_b128 v9, v[{CS+4}:{CS+7}] offset:16")
    k.wait(lg=0)
    k.barrier()
    k("s_cmp_lg_u32 s3, 0")
    k.branch("s_cbranch_scc1 prep_end", flush=False)
    k("v_and_b32 v10, 16, v2")
    k("v_and_b32 v11, 4, v2")
    k("v_lshl_add_u32 v10, v11, 1, v10")
    k("v_and_b32 v11, 8, v2")
    k("v_lshrrev_b32 v11, 1, v11")
    k("v_add_u32 v10, v10, v11")
    k("v_and_b32 v11, 3, v2")
    k("v_add_u32 v10, v10, v11")
    k("v_lshlrev_b32 v10, 2, v10")
    for w in range(5):
        k(f"ds_read_b32 v{16+w}, v10 offset:{w*128}")
    k("v_add_f32 v16, v16, v17")
    k("v_add_f32 v18, v18, v19")
    k("v_add_f32 v16, v16, v20")
    k("v_add_f32 v16, v16, v18")
    k("v_cmp_gt_u32 vcc, 32, v2")
    k("v_cndmask_b32 v16, 0, v16, vcc")
    k("v_cvt_pk_bf16_f32 v21, v16, v16")
    k("v_and_b32 v22, 0xffff0000, v21")
    k("v_sub_f32 v22, v16, v22")
    k("v_cvt_pk_bf16_f32 v24, v16, v22")
    k("v_and_b32 v25, 0xffff, v21")
    k("v_mov_b32 v26, 0")
    k("v_mov_b32 v27, 0")
    k("v_lshlrev_b32 v12, 4, v2")
    k(f"s_add_u32 s7, s7, {40*6144}")
    k(f"buffer_store_dwordx4 v[24:27], v12, s[44:47], s7 offen{SC}")
    k.prof_end(2, 36, 3, names="prep_wgu")
    k("s_endpgm")
    k.stamps = ["start"]

    k.label("prep_wd")
    k.srd(40, 34, WDB)
    k.srd(44, 36, WDB, WS_WD)
    k(f"s_sub_u32 s4, s2, {NKV+NQ+NWGU}")
    k("v_lshrrev_b32 v3, 4, v2")
    k("v_and_b32 v4, 15, v2")
    k("s_lshl_b32 s5, s3, 4")
    k("v_add_u32 v4, s5, v4")
    k("s_lshl_b32 s6, s4, 2")
    k("v_add_u32 v5, s6, v3")
    k("v_mul_u32_u24 v5, 10240, v5")
    k("v_lshl_add_u32 v5, v4, 4, v5")
    for i in range(8):
        k(f"s_mov_b32 s12, {i*1280}")
        k(f"buffer_load_dwordx4 v[{16+4*i}:{19+4*i}], v5, s[40:43], s12 offen")
    k("v_mul_u32_u24 v6, 205, v4")
    k("v_lshrrev_b32 v6, 11, v6")
    k("v_mul_u32_u24 v7, 10, v6")
    k("v_sub_u32 v7, v4, v7")
    k(f"v_mul_u32_u24 v8, {48*5120}, v6")
    k("s_mul_i32 s7, s4, 5120")
    k("v_add_u32 v8, s7, v8")
    k("v_lshl_add_u32 v8, v3, 8, v8")
    k("v_lshrrev_b32 v9, 2, v7")
    k("v_lshlrev_b32 v9, 11, v9")
    k("v_and_b32 v10, 3, v7")
    k("v_lshlrev_b32 v11, 6, v10")
    k("v_lshlrev_b32 v12, 7, v10")
    k("v_cmp_gt_u32 vcc, 8, v7")
    k("v_cndmask_b32 v11, v12, v11, vcc")
    k("v_add3_u32 v8, v8, v9, v11")
    k("v_mov_b32 v12, 64")
    k("v_mov_b32 v13, 1024")
    k("v_cndmask_b32 v12, v12, v13, vcc")
    k("v_add_u32 v9, v8, v12")
    for e in range(8):
        o = 48 + 4 * e
        for p in range(4):
            k(f"v_perm_b32 v{o+p}, v{16+4*(2*p+1)+e//2}, v{16+4*(2*p)+e//2}, s{10+(e&1)}")
        k(f"buffer_store_dwordx4 v[{o}:{o+3}], v{8 if e < 4 else 9}, s[44:47], 0 offen offset:{(e&3)*16}{SC}")
    k.prof_end(3, 36, 3, names="prep_wd")
    k.label("prep_end", flush=False)
    k("s_endpgm")
    return k


def gen_conv():
    CP = 4160
    UOFF = 4 * CP
    WREG = 4 * CP + 4608
    k = Kern("conv_kernel", lds=4 * WREG, grid=160, block=256)
    k.prof_begin()
    k(f"s_cmp_ge_u32 s2, {k.grid}")
    k.branch("s_cbranch_scc1 conv_end", flush=False)
    k("s_load_dwordx2 s[16:17], s[0:1], 0")
    k("s_load_dwordx4 s[20:23], s[0:1], 32")
    k("s_load_dwordx2 s[24:25], s[0:1], 96")
    k("v_lshrrev_b32 v1, 6, v0")
    k("v_and_b32 v2, 63, v0")
    k("v_readfirstlane_b32 s3, v1")
    k("s_and_b32 s4, s2, 7")
    k("s_mul_i32 s4, s4, 10")
    k("s_lshr_b32 s5, s2, 4")
    k("s_add_u32 s4, s4, s5")
    k("s_bfe_u32 s5, s2, 0x10003")
    k("s_lshl_b32 s6, s4, 3")
    k("s_lshl_b32 s7, s5, 2")
    k("s_add_u32 s6, s6, s7")
    k("s_add_u32 s7, s6, s3")
    k("s_lshl_b32 s8, s7, 12")
    k(f"s_mul_i32 s9, s3, {WREG}")
    k("v_lshlrev_b32 v3, 4, v2")
    k.wait(lg=0)
    k("s_add_u32 s28, s20, s8")
    k("s_addc_u32 s29, s21, 0")
    k("s_mov_b32 s30, 4096")
    k("s_mov_b32 s31, 0x00020000")
    k.srd(32, 24, D * 4096, WS_KVT)
    k.srd(36, 16, S * D * 2)
    k.srd(40, 24, S * 8, WS_QST)
    k.srd(44, 22, D * 2)
    k.srd(48, 24, XFB, WS_Y)
    k.srd(52, 24, XFB, WS_X1)
    HB = 16
    for p in range(4):
        k(f"buffer_load_dwordx4 v[{HB+8*p+4}:{HB+8*p+7}], v3, s[28:31], 0 offen offset:{p*1024}")
        k(f"v_add_u32 v4, {(p*1024-8) & 0xffffffff:#x}, v3")
        k(f"buffer_load_dwordx2 v[{HB+8*p+2}:{HB+8*p+3}], v4, s[28:31], 0 offen")
    k(f"s_add_u32 m0, s9, {UOFF}")
    for p in range(4):
        k(f"buffer_load_dwordx4 v3, s[32:35], s8 offen offset:{p*1024} lds", tag="u")
    k("s_lshl_b32 s10, s7, 1")
    k("v_mov_b32 v5, s10")
    k("buffer_load_ushort v6, v5, s[44:47], 0 offen")
    k("v_mov_b32 v8, 0")
    k("v_mov_b32 v9, 0")
    k("v_lshlrev_b32 v4, 3, v2")
    k("v_add_u32 v4, s9, v4")
    k(f"ds_write_b64 v4, v[8:9] offset:{UOFF+4096}")
    k("v_bfe_u32 v4, v2, 2, 2")
    k(f"v_mul_u32_u24 v4, {CP}, v4")
    k("v_and_b32 v5, 3, v2")
    k("v_lshl_add_u32 v4, v5, 3, v4")
    k("v_add_u32 v4, s9, v4")
    k("ds_write_b64 v4, v[8:9]")
    QB = 192
    k("s_lshl_b32 s10, s3, 9")
    k("v_add_u32 v10, s10, v2")
    k("v_mul_u32_u24 v11, 1280, v10")
    k("s_lshl_b32 s11, s6, 1")
    k("v_add_u32 v11, s11, v11")
    k("v_lshlrev_b32 v12, 3, v10")
    for it in range(8):
        k(f"s_mov_b32 s12, {it*64*1280}")
        k(f"buffer_load_dwordx2 v[{QB+4*it}:{QB+4*it+1}], v11, s[36:39], s12 offen")
        k(f"buffer_load_dwordx2 v[{QB+4*it+2}:{QB+4*it+3}], v12, s[40:43], 0 offen offset:{it*512}")
    k.stamp("issued")
    k("v_add_u32 v13, s9, v3")
    T = 48
    for p in range(4):
        b = HB + 8 * p
        p2, p3, d0, d1, d2, d3 = (f"v{b+2}", f"v{b+3}", f"v{b+4}", f"v{b+5}", f"v{b+6}", f"v{b+7}")
        off = 32 + p * 1024
        k(f"ds_write_b128 v13, v[{b+4}:{b+7}] offset:{off}")
        seq = [p2, p3, d0, d1, d2, d3]
        for j in range(4):
            k(f"v_alignbyte_b32 v{T+j}, {seq[2+j]}, {seq[1+j]}, 2")
        k(f"ds_write_b128 v13, v[{T}:{T+3}] offset:{off+CP}")
        for j in range(4):
            k(f"v_mov_b32 v{T+4+j}, {seq[1+j]}")
        k(f"ds_write_b128 v13, v[{T+4}:{T+7}] offset:{off+2*CP}")
        for j in range(4):
            k(f"v_alignbyte_b32 v{T+8+j}, {seq[1+j]}, {seq[j]}, 2")
        k(f"ds_write_b128 v13, v[{T+8}:{T+11}] offset:{off+3*CP}")
        T = 48 + 12 * ((p + 1) & 1)
    k("v_and_b32 v4, 15, v2")
    k("v_lshrrev_b32 v5, 4, v2")
    k("v_sub_u32 v7, 3, v4")
    k("v_and_b32 v7, 3, v7")
    k("v_add3_u32 v8, v4, v7, 1")
    k("v_lshl_add_u32 v8, v5, 3, v8")
    k("v_lshlrev_b32 v8, 1, v8")
    k(f"v_mul_u32_u24 v7, {CP}, v7")
    k("v_add3_u32 v14, v7, v8, s9")
    k("v_lshlrev_b32 v7, 5, v4")
    k("v_lshlrev_b32 v8, 4, v5")
    k("v_sub_u32 v8, v8, v7")
    k(f"v_add_u32 v8, {UOFF+480}, v8")
    k("v_add_u32 v15, s9, v8")
    k("v_lshlrev_b32 v6, 16, v6")
    k.wait_tag("u")
    k.wait(lg=0)
    k.stamp("ready")
    AB = [80, 112]
    ACC = 144

    def readA(I):
        for r in range(8):
            i = 8 * I + r
            b = AB[I & 1] + 4 * r
            k(f"ds_read_b64 v[{b}:{b+1}], v14 offset:{64*i}")
            k(f"ds_read_b64 v[{b+2}:{b+3}], v14 offset:{64*i+8}")

    def breg(m):
        return 4 * (m + 7)

    def readB(m):
        k(f"ds_read_b128 a[{breg(m)}:{breg(m)+3}], v15 offset:{64*(56-m)}")

    for r in range(8):
        b = AB[0] + 4 * r
        k(f"ds_read_b64 v[{b}:{b+1}], v14 offset:{64*r}")
        k(f"ds_read_b64 v[{b+2}:{b+3}], v14 offset:{64*r+8}")
        readB(-r)
    started = set()
    for I in range(8):
        pend = []
        if I < 7:
            for r in range(8):
                i = 8 * (I + 1) + r
                b = AB[(I + 1) & 1] + 4 * r
                pend.append(f"ds_read_b64 v[{b}:{b+1}], v14 offset:{64*i}")
                pend.append(f"ds_read_b64 v[{b+2}:{b+3}], v14 offset:{64*i+8}")
        nm = (8 - I) * 8
        cnt = 0
        for c in range(I, 8):
            C = c - I
            for r in range(8):
                if I == 0 and C < 7:
                    readB(8 * (C + 1) - r)
                a = AB[I & 1] + 4 * r
                m = 8 * C - r
                acc = f"v[{ACC+4*c}:{ACC+4*c+3}]"
                src = acc if c in started else "0"
                started.add(c)
                k(f"v_mfma_f32_16x16x32_bf16 {acc}, v[{a}:{a+3}], a[{breg(m)}:{breg(m)+3}], {src}")
                cnt += 1
                if pend and (I > 0 or C >= 7 or True):
                    if I == 0 and C < 7:
                        n = 1 if (cnt % 3 == 0) else 0
                    else:
                        n = 2
                    for _ in range(n):
                        if pend:
                            k(pend.pop(0))
        for p_ in pend:
            k(p_)
    k.stamp("mfma")
    k("v_lshlrev_b32 v7, 5, v4")
    k("v_lshl_add_u32 v7, v5, 3, v7")
    k(f"v_sub_u32 v8, {UOFF+504}, v7")
    k("v_add_u32 v8, s9, v8")
    k("v_add_u32 v9, s9, v7")
    KV = 16
    for c in range(8):
        k(f"ds_read_b64 v[{KV+2*c}:{KV+2*c+1}], v8 offset:{(7-c)*512}")
    for c in range(8):
        a = ACC + 4 * c
        unpack(k, "v40", "v41", f"v{KV+2*c}")
        unpack(k, "v42", "v43", f"v{KV+2*c+1}")
        k(f"v_fmac_f32 v{a+3}, v40, v6")
        k(f"v_fmac_f32 v{a+2}, v41, v6")
        k(f"v_fmac_f32 v{a+1}, v42, v6")
        k(f"v_fmac_f32 v{a+0}, v43, v6")
        o = 44 + 2 * (c & 1)
        k(f"v_cvt_pk_bf16_f32 v{o}, v{a}, v{a+1}")
        k(f"v_cvt_pk_bf16_f32 v{o+1}, v{a+2}, v{a+3}")
        k(f"ds_write_b64 v9, v[{o}:{o+1}] offset:{c*512}")
    k.wait(lg=0)
    k.barrier()
    k.stamp("bar")
    k("v_bfe_u32 v7, v2, 2, 2")
    k(f"v_mul_u32_u24 v7, {WREG}, v7")
    k("v_and_b32 v8, 3, v2")
    k("v_lshl_add_u32 v7, v8, 3, v7")
    k("v_lshl_add_u32 v7, v5, 5, v7")
    k("s_lshl_b32 s10, s3, 10")
    k("v_add_u32 v7, s10, v7")
    YB = 48
    for it in range(8):
        k(f"ds_read_b64_tr_b16 v[{YB+2*it}:{YB+2*it+1}], v7 offset:{it*128}")
    k("v_lshlrev_b32 v9, 4, v10")
    k("s_lshl_b32 s10, s4, 15")
    k("s_lshl_b32 s11, s5, 3")
    k("s_add_u32 s10, s10, s11")
    k("v_add_u32 v9, s10, v9")
    for it in range(8):
        y0, y1 = YB + 2 * it, YB + 2 * it + 1
        q0, q1, mr, r = (QB + 4 * it + i for i in range(4))
        k(f"s_mov_b32 s12, {it*1024}")
        k(f"buffer_store_dwordx2 v[{y0}:{y1}], v9, s[48:51], s12 offen{SC}")
        unpack(k, "v16", "v17", f"v{y0}")
        unpack(k, "v18", "v19", f"v{y1}")
        unpack(k, "v20", "v21", f"v{q0}")
        unpack(k, "v22", "v23", f"v{q1}")
        for i in range(4):
            k(f"v_fma_f32 v{24+i}, v{20+i}, v{r}, -v{mr}")
            k(f"v_fmac_f32 v{20+i}, v{24+i}, v{16+i}")
        o = 28 + 2 * (it & 1)
        k(f"v_cvt_pk_bf16_f32 v{o}, v20, v21")
        k(f"v_cvt_pk_bf16_f32 v{o+1}, v22, v23")
        k(f"buffer_store_dwordx2 v[{o}:{o+1}], v9, s[52:55], s12 offen{SC}")
    k.prof_end(4, 24, 3)
    k.label("conv_end", flush=False)
    k("s_endpgm")
    return k


def gen_gemm1():
    NST = 10
    RING = 6
    STB = 24576
    CSOFF = RING * STB
    k = Kern("gemm1a_kernel", lds=RING * STB + 6144, grid=256, block=256)
    kb = Kern("gemm1b_kernel", lds=k.lds, grid=256, block=256)
    kb(f"s_mov_b32 s14, {WS_X3}")
    kb(f"s_mov_b32 s15, {WS_H2}")
    kb(f"s_mov_b32 s13, {8*0x40000}")
    kb.branch("s_branch gemm1_body", flush=False)
    k(f"s_mov_b32 s14, {WS_X1}")
    k(f"s_mov_b32 s15, {WS_H}")
    k(f"s_mov_b32 s13, {5*0x40000}")
    k.label("gemm1_body", flush=False)
    k.prof_begin()
    k(f"s_cmp_ge_u32 s2, {k.grid}")
    k.branch("s_cbranch_scc1 gemm1_end", flush=False)
    k("s_load_dwordx2 s[24:25], s[0:1], 96")
    k("v_lshrrev_b32 v1, 6, v0")
    k("v_and_b32 v2, 63, v0")
    k("v_readfirstlane_b32 s3, v1")
    k("s_bfe_u32 s4, s2, 0x10002")
    k("s_lshl_b32 s4, s4, 3")
    k("s_bfe_u32 s5, s2, 0x30003")
    k("s_add_u32 s4, s4, s5")
    k("s_and_b32 s5, s2, 3")
    k("s_lshl_b32 s5, s5, 2")
    k("s_lshr_b32 s6, s2, 6")
    k("s_add_u32 s5, s5, s6")
    k("s_lshl_b32 s6, s4, 7")
    k("s_lshl_b32 s7, s3, 5")
    k("s_add_u32 s6, s6, s7")
    k("v_and_b32 v3, 31, v2")
    k("v_add_u32 v3, s6, v3")
    k("v_lshlrev_b32 v3, 4, v3")
    k("v_lshrrev_b32 v4, 5, v2")
    k("v_lshl_add_u32 v3, v4, 15, v3")
    k("v_lshlrev_b32 v5, 4, v2")
    k(f"s_mul_i32 s8, s5, {WGU_J}")
    k("s_mul_i32 s9, s3, 6144")
    k("s_add_u32 s8, s8, s9")
    k.wait(lg=0)
    k("s_add_u32 s28, s24, s14")
    k("s_addc_u32 s29, s25, 0")
    k(f"s_mov_b32 s30, {XFB}")
    k("s_mov_b32 s31, 0x00020000")
    k.srd(32, 24, WGUB, WS_WGU)
    k("s_add_u32 s36, s24, s15")
    k("s_addc_u32 s37, s25, 0")
    k(f"s_mov_b32 s38, {HFB}")
    k("s_mov_b32 s39, 0x00020000")
    XR = 16
    NXR = 24
    ACC = 112
    WB = [0, 24]

    def xreg(kk):
        return XR + 4 * (kk % NXR)

    def load_x(kk):
        k(f"s_mov_b32 s10, {kk*65536}")
        k(f"buffer_load_dwordx4 v[{xreg(kk)}:{xreg(kk)+3}], v3, s[28:31], s10 offen")

    def dma_stage(st):
        k(f"s_add_u32 m0, s9, {(st % RING)*STB}")
        k(f"s_add_u32 s10, s8, {st*STB}")
        for f in range(4):
            k(f"buffer_load_dwordx4 v5, s[32:35], s10 offen offset:{f*1024} lds", tag=f"w{st}")
        k(f"s_add_u32 m0, s9, {(st % RING)*STB + 4096}")
        k(f"s_add_u32 s10, s8, {st*STB + 4096}")
        for f in range(2):
            k(f"buffer_load_dwordx4 v5, s[32:35], s10 offen offset:{f*1024} lds", tag=f"w{st}")

    for st in range(RING):
        dma_stage(st)
        for kk in range(4 * st, 4 * st + 4):
            load_x(kk)
    k.stamp("issued")
    k("v_mov_b32 v6, 0x3f803f80")
    for i in range(4):
        k(f"v_mov_b32 v{8+i}, 0")

    def readW(kk):
        st, kq = kk // 4, kk % 4
        base = (st % RING) * STB + kq * 6144 if kk < 40 else CSOFF
        b = WB[kk & 1]
        reg = "v5" if base < 60000 else "v7" if base < 120000 else "v12"
        off = base if base < 60000 else base - 60000 if base < 120000 else base - 120000
        return [f"ds_read_b128 a[{b+4*f}:{b+4*f+3}], {reg} offset:{off+f*1024}" for f in range(6)]

    k("v_add_u32 v7, 60000, v5")
    k("v_add_u32 v12, 120000, v5")
    k.wait_tag("w0")
    k.barrier()
    k.stamp("bar0")
    for r in readW(0):
        k(r)
    for kk in range(41):
        st, kq = kk // 4, kk % 4
        if kk in (8, 16, 24, 32, 40):
            k.stamp(f"k{kk}")
        nxt = []
        if kk + 1 <= 40:
            if (kk + 1) % 4 == 0:
                ns = (kk + 1) // 4
                k.wait(lg=0)
                if ns < NST:
                    k.wait_tag(f"w{ns}")
                else:
                    k.wait_tag("cs")
                k.barrier()
                if st + RING < NST:
                    dma_stage(st + RING)
                if st == 3:
                    k("s_lshl_b32 s11, s3, 10")
                    k(f"s_add_u32 m0, s11, {CSOFF}")
                    k(f"s_mul_i32 s10, s5, {WGU_J}")
                    k(f"s_add_u32 s10, s10, {40*6144}")
                    k("s_add_u32 s10, s10, s11")
                    k("buffer_load_dwordx4 v5, s[32:35], s10 offen lds", tag="cs")
                    k("buffer_load_dwordx4 v5, s[32:35], s10 offen offset:2048 lds", tag="cs")
            nxt = readW(kk + 1)
        if kk < 40:
            xr = xreg(kk)
            xop = f"v[{xr}:{xr+3}]"
            val = []
            for d in range(4):
                val.append(f"v_dot2c_f32_bf16 v{8+(d&1)}, v{xr+d}, v6")
                val.append(f"v_dot2c_f32_bf16 v{10+(d&1)}, v{xr+d}, v{xr+d}")
        else:
            k("v_add_f32 v8, v8, v9")
            k("v_add_f32 v10, v10, v11")
            xsum32(k, "v8", "v9")
            xsum32(k, "v10", "v11")
            k(f"v_mul_f32 v8, {f2u(1.0/D)}, v8")
            k(f"v_mul_f32 v10, {f2u(1.0/D)}, v10")
            k("v_fma_f32 v10, -v8, v8, v10")
            k("v_max_f32 v10, 0, v10")
            k(f"v_add_f32 v10, {f2u(EPS)}, v10")
            k("v_rsq_f32 v13, v10")
            k("v_sub_f32 v8, 0, v8")
            k("v_cmp_gt_u32 vcc, 32, v2")
            k("v_cndmask_b32 v8, 0, v8, vcc")
            xr = XR
            k(f"v_cvt_pk_bf16_f32 v{xr}, v8, v8")
            k(f"v_and_b32 v9, 0xffff0000, v{xr}")
            k("v_sub_f32 v9, v8, v9")
            k(f"v_cvt_pk_bf16_f32 v{xr+1}, v9, 0")
            k(f"v_mov_b32 v{xr+2}, 0")
            k(f"v_mov_b32 v{xr+3}, 0")
            xop = f"v[{xr}:{xr+3}]"
            val = []
        b = WB[kk & 1]
        for f in range(6):
            acc = f"v[{ACC+16*f}:{ACC+16*f+15}]"
            src = acc if kk else "0"
            k(f"v_mfma_f32_32x32x16_bf16 {acc}, a[{b+4*f}:{b+4*f+3}], {xop}, {src}")
            if nxt:
                k(nxt.pop(0))
            for _ in range(2):
                if val:
                    k(val.pop(0))
        if kk + NXR < 40:
            load_x(kk + NXR)
    k.stamp("loop")
    k(f"v_mul_f32 v14, {f2u(-1.4426950408889634)}, v13")
    k("v_mul_f32 v15, v13, v13")
    k("s_mul_i32 s10, s5, 12")
    k("s_lshl_b32 s10, s10, 15")
    for t3 in range(3):
        G = ACC + 32 * t3
        U = G + 16
        for cidx in range(2):
            T = 16 + 16 * ((2 * t3 + cidx) & 1)
            for e in range(8):
                g = f"v{G+8*cidx+e}"
                u = f"v{U+8*cidx+e}"
                t = f"v{T+e}"
                k(f"v_mul_f32 {t}, {g}, v14")
                k(f"v_exp_f32 {t}, {t}")
                k(f"v_mul_f32 {g}, {g}, {u}")
                k(f"v_add_f32 {t}, 1.0, {t}")
                k(f"v_rcp_f32 {t}, {t}")
                k(f"v_mul_f32 {g}, {g}, v15")
                k(f"v_mul_f32 {t}, {t}, {g}")
            for p in range(4):
                k(f"v_cvt_pk_bf16_f32 v{T+8+p}, v{T+2*p}, v{T+2*p+1}")
            k(f"s_add_u32 s11, s10, {(4*t3+2*cidx)*32768}")
            k(f"buffer_store_dwordx4 v[{T+8}:{T+11}], v3, s[36:39], s11 offen{SC}")
    k.prof_end((5, 8), 24, 3, slot_sreg=13, names=("gemm1a", "gemm1b"))
    k.label("gemm1_end", flush=False)
    k("s_endpgm")
    kb.maxv, kb.maxa, kb.maxs = k.maxv, k.maxa, k.maxs
    return k, kb


def gen_gemm2(last):
    name = "gemm2b" if last else "gemm2a"
    k = Kern(name + "_kernel", lds=12 * 5120, grid=256, block=256)
    k.prof_begin()
    k(f"s_cmp_ge_u32 s2, {k.grid}")
    k.branch(f"s_cbranch_scc1 {name}_end", flush=False)
    k("s_load_dwordx2 s[24:25], s[0:1], 96")
    k("s_load_dwordx2 s[26:27], s[0:1], 80")
    k("v_lshrrev_b32 v1, 6, v0")
    k("v_and_b32 v2, 63, v0")
    k("v_readfirstlane_b32 s3, v1")
    k("s_bfe_u32 s4, s2, 0x20001")
    k("s_lshl_b32 s4, s4, 3")
    k("s_bfe_u32 s5, s2, 0x30003")
    k("s_add_u32 s4, s4, s5")
    k("s_and_b32 s5, s2, 1")
    k("s_lshl_b32 s5, s5, 2")
    k("s_lshr_b32 s6, s2, 6")
    k("s_add_u32 s5, s5, s6")
    k("v_and_b32 v3, 15, v2")
    k("v_lshrrev_b32 v4, 4, v2")
    k("s_lshl_b32 s6, s4, 6")
    k("v_add_u32 v5, s6, v3")
    k("v_lshlrev_b32 v5, 4, v5")
    k("v_lshl_add_u32 v5, v4, 15, v5")
    k(f"s_mul_i32 s7, s3, {48*32768}")
    for tl in range(4):
        k(f"s_add_u32 s8, s3, {tl}")
        k("s_and_b32 s8, s8, 3")
        k("s_lshl_b32 s8, s8, 8")
        k("s_add_u32 s8, s8, s7")
        k(f"v_add_u32 v{8+tl}, s8, v5")
    k("s_lshl_b32 s8, s5, 2")
    k("s_add_u32 s8, s8, s3")
    k("s_mul_i32 s8, s8, 61440")
    k("v_lshlrev_b32 v6, 4, v2")
    k("v_add_u32 v12, s8, v6")
    k("v_add_u32 v13, 4096, v12")
    k.wait(lg=0)
    k.srd(28, 24, HFB, WS_H2 if last else WS_H)
    k.srd(32, 24, WDB, WS_WD)
    k.srd(36, 24, XFB, WS_X3 if last else WS_X1)
    if last:
        k.srd(40, 26, XFB)
    else:
        k.srd(40, 24, XFB, WS_X2)
    RING = 6
    ACC = 32

    def fr(kk, idx):
        return 36 * (kk % RING) + 4 * idx

    def loads(kk):
        k(f"s_mov_b32 s10, {kk*131072}")
        k(f"s_mov_b32 s11, {kk*5120}")
        for t in range(5):
            r = fr(kk, 4 + t)
            if t < 4:
                k(f"buffer_load_dwordx4 a[{r}:{r+3}], v12, s[32:35], s11 offen offset:{t*1024}")
            else:
                k(f"buffer_load_dwordx4 a[{r}:{r+3}], v13, s[32:35], s11 offen")
            if t < 4:
                r = fr(kk, t)
                k(f"buffer_load_dwordx4 a[{r}:{r+3}], v{8+t}, s[28:31], s10 offen")

    for kk in range(RING):
        loads(kk)
    k("s_lshl_b32 s8, s3, 4")
    k("s_add_u32 s8, s8, s6")
    k("v_add_u32 v14, s8, v3")
    k(f"s_mul_i32 s9, s5, {10*32768}")
    k("v_lshlrev_b32 v15, 4, v14")
    k("v_add_u32 v15, s9, v15")
    k("v_lshl_add_u32 v16, v4, 15, v15")
    k("v_lshrrev_b32 v17, 1, v4")
    k("v_lshl_add_u32 v17, v17, 15, v15")
    k("v_and_b32 v18, 1, v4")
    k("v_lshl_add_u32 v17, v18, 3, v17")
    k(f"s_mov_b32 s12, {4*32768}")
    k(f"s_mov_b32 s13, {8*32768}")
    k("buffer_load_dwordx4 v[20:23], v16, s[36:39], 0 offen")
    k("buffer_load_dwordx4 v[24:27], v16, s[36:39], s12 offen")
    k("buffer_load_dwordx2 v[28:29], v17, s[36:39], s13 offen")
    k.stamp("issued")
    for kk in range(12):
        if kk in (1, 6):
            k.stamp(f"k{kk}")
        for t in range(5):
            for tl in range(4):
                a = ACC + 16 * t + 4 * tl
                acc = f"v[{a}:{a+3}]"
                src = acc if kk else "0"
                w_ = fr(kk, 4 + t)
                h_ = fr(kk, tl)
                k(f"v_mfma_f32_16x16x32_bf16 {acc}, a[{w_}:{w_+3}], a[{h_}:{h_+3}], {src}")
        if kk + RING < 12:
            loads(kk + RING)
    k.stamp("loop")
    for tl in range(1, 4):
        k(f"s_add_u32 s8, s3, {tl}")
        k("s_and_b32 s8, s8, 3")
        k("s_mul_i32 s8, s8, 15360")
        k(f"s_add_u32 s8, s8, {(tl-1)*5120}")
        k("v_add_u32 v7, s8, v6")
        for t in range(5):
            a = ACC + 16 * t + 4 * tl
            k(f"ds_write_b128 v7, v[{a}:{a+3}] offset:{t*1024}")
    k("s_mul_i32 s8, s3, 15360")
    k("v_add_u32 v7, s8, v6")
    k.wait(lg=0)
    k.barrier()
    k.stamp("bar")
    RB = 112
    for sl_ in range(3):
        for t in range(5):
            r = RB + 20 * sl_ + 4 * t
            k(f"ds_read_b128 v[{r}:{r+3}], v7 offset:{sl_*5120+t*1024}")
    for sl_ in range(3):
        for t in range(5):
            r = RB + 20 * sl_ + 4 * t
            a = ACC + 16 * t
            for i in range(4):
                k(f"v_add_f32 v{a+i}, v{a+i}, v{r+i}")
    for P in range(2):
        x = 20 + 4 * P
        for d in range(4):
            a = ACC + 16 * (2 * P + d // 2) + 2 * (d & 1)
            unpack(k, "v30", "v31", f"v{x+d}")
            k(f"v_add_f32 v30, v30, v{a}")
            k(f"v_add_f32 v31, v31, v{a+1}")
            k(f"v_cvt_pk_bf16_f32 v{x+d}, v30, v31")
    for d in range(2):
        a = ACC + 64 + 2 * d
        unpack(k, "v30", "v31", f"v{28+d}")
        k(f"v_add_f32 v30, v30, v{a}")
        k(f"v_add_f32 v31, v31, v{a+1}")
        k(f"v_cvt_pk_bf16_f32 v{28+d}, v30, v31")
    if last:
        k("v_mul_u32_u24 v15, 1280, v14")
        k("s_mul_i32 s9, s5, 160")
        k("v_add_u32 v15, s9, v15")
        k("v_lshl_add_u32 v16, v4, 4, v15")
        k("v_lshl_add_u32 v17, v4, 3, v15")
        k("buffer_store_dwordx4 v[20:23], v16, s[40:43], 0 offen")
        k("buffer_store_dwordx4 v[24:27], v16, s[40:43], 0 offen offset:64")
        k("buffer_store_dwordx2 v[28:29], v17, s[40:43], 0 offen offset:128")
    else:
        k(f"buffer_store_dwordx4 v[20:23], v16, s[40:43], 0 offen{SC}")
        k(f"buffer_store_dwordx4 v[24:27], v16, s[40:43], s12 offen{SC}")
        k(f"buffer_store_dwordx2 v[28:29], v17, s[40:43], s13 offen{SC}")
    k.prof_end(9 if last else 6, 24, 3)
    k.label(f"{name}_end", flush=False)
    k("s_endpgm")
    return k


def gen_gate():
    k = Kern("gate_kernel", lds=0, grid=128, block=256)
    k.prof_begin()
    k(f"s_cmp_ge_u32 s2, {k.grid}")
    k.branch("s_cbranch_scc1 gate_end", flush=False)
    k("s_load_dwordx2 s[24:25], s[0:1], 96")
    k("v_lshrrev_b32 v1, 6, v0")
    k("v_readfirstlane_b32 s4, v1")
    k("v_and_b32 v2, 3, v0")
    k("v_lshl_add_u32 v2, v1, 2, v2")
    k("s_lshl_b32 s3, s2, 4")
    k("v_add_u32 v2, s3, v2")
    k("v_bfe_u32 v3, v0, 2, 4")
    k("v_lshlrev_b32 v4, 4, v2")
    k("v_lshl_add_u32 v4, v3, 15, v4")
    k.wait(lg=0)
    k.srd(28, 24, XFB, WS_X2)
    k.srd(32, 24, XFB, WS_Y)
    k.srd(36, 24, XFB, WS_X3)
    for i in range(5):
        k(f"s_mov_b32 s{10+i}, {i*16*32768}")
    for i in range(5):
        k(f"buffer_load_dwordx4 v[{16+4*i}:{19+4*i}], v4, s[28:31], s{10+i} offen")
    for i in range(5):
        k(f"buffer_load_dwordx4 v[{36+4*i}:{39+4*i}], v4, s[32:35], s{10+i} offen")
    k.stamp("issued")
    k.wait(vm=5)
    k.stamp("loaded")
    X = 56
    for i in range(20):
        unpack(k, f"v{X+2*i}", f"v{X+2*i+1}", f"v{16+i}")

    def red(v, tmp):
        k(f"v_add_f32_dpp {v}, {v}, {v} row_ror:4 row_mask:0xf bank_mask:0xf")
        k(f"v_add_f32_dpp {v}, {v}, {v} row_ror:8 row_mask:0xf bank_mask:0xf")
        xsum16(k, v, tmp)
        xsum32(k, v, tmp)

    k(f"v_add_f32 v6, v{X}, v{X+1}")
    k(f"v_add_f32 v7, v{X+2}, v{X+3}")
    for i in range(4, 40, 2):
        k(f"v_add_f32 v6, v6, v{X+i}")
        k(f"v_add_f32 v7, v7, v{X+i+1}")
    k("v_add_f32 v6, v6, v7")
    red("v6", "v7")
    k(f"v_mul_f32 v6, {f2u(1.0/D)}, v6")
    k("v_mov_b32 v7, 0")
    k("v_mov_b32 v8, 0")
    for i in range(0, 40, 2):
        k(f"v_sub_f32 v9, v{X+i}, v6")
        k(f"v_sub_f32 v10, v{X+i+1}, v6")
        k("v_fmac_f32 v7, v9, v9")
        k("v_fmac_f32 v8, v10, v10")
    k("v_add_f32 v7, v7, v8")
    red("v7", "v8")
    k(f"v_mov_b32 v8, {f2u(EPS)}")
    k(f"v_fmac_f32 v8, {f2u(1.0/D)}, v7")
    k("v_rsq_f32 v13, v8")
    k("v_mul_f32 v12, v6, v13")
    for i in range(20):
        unpack(k, "v9", "v10", f"v{36+i}")
        k(f"v_fma_f32 v14, v{X+2*i}, v13, -v12")
        k(f"v_fma_f32 v15, v{X+2*i+1}, v13, -v12")
        k(f"v_fmac_f32 v{X+2*i}, v14, v9")
        k(f"v_fmac_f32 v{X+2*i+1}, v15, v10")
        k(f"v_cvt_pk_bf16_f32 v{16+i}, v{X+2*i}, v{X+2*i+1}")
        if i % 4 == 3:
            j = i // 4
            k(f"buffer_store_dwordx4 v[{16+4*j}:{19+4*j}], v4, s[36:39], s{10+j} offen{SC}")
    k.prof_end(7, 24, 4)
    k.label("gate_end", flush=False)
    k("s_endpgm")
    return k


HEADER = open("interleave_layers__ssm_conv_h3__swiglu_ffn__prompt.s.ref").read().split("; Override launch")[0]

if __name__ == "__main__":
    import os, json
    if os.environ.get("PROF"):
        Kern.PROF = True
    if "SC" in os.environ:
        SC = os.environ["SC"]
    prep = gen_prep()
    conv = gen_conv()
    g1a, g1b = gen_gemm1()
    g2a = gen_gemm2(False)
    g2b = gen_gemm2(True)
    gate = gen_gate()
    kerns = [prep, conv, g1b, g1a, g2a, gate, g2b]
    launches = [prep, conv, g1a, g2a, gate, g1b, g2b]
    out = sys.argv[1] if len(sys.argv) > 1 else "v1.s"
    open(out, "w").write(build_file(HEADER, kerns, launches))
    json.dump(PROFINFO, open("profinfo.json", "w"))
    for kk in kerns:
        print(kk.name, "instrs", kk.nins, "vgpr", kk.maxv + 1, "agpr", kk.maxa + 1, "sgpr", kk.maxs + 1, "lds", kk.lds)
```

```python
import sys, os, json
sys.path.insert(0, "dev")
from asmdsl import *
import gen1
from gen1 import S, D, F, EPS, f2u, unpack, reduce16, xsum16, xsum32, HEADER, XFB, HFB, WDB
from gen1 import WS_KVT, WS_QST, WS_WD, WS_Y, WS_X1, WS_H, WS_X3, WS_H2

WS_WGU = 0x0400000
WGU_M = 20 * 6144
WGUB = 32 * WGU_M
WS_CS = 0x0800000
WS_SYNC = 0x2800000
SY_ST1 = 0
SY_ST2 = 0x4000
SY_ST3 = 0x44000
SY_HF = 0x84000
SYNCB = 0x104000
XRT = 20480
HRT = 49152
OOB = 0x80000000
LOG2E = 1.4426950408889634
SPIN_MAX = 1 << 14


def gen_prep():
    NKV, NQ, NWGU, NWD = 128, 103, 96, 48
    SC = ""
    k = Kern("prep_kernel", lds=5 * 4096, grid=NKV + NQ + NWGU + NWD, block=320)
    k.prof_begin()
    k(f"s_cmp_ge_u32 s2, {k.grid}")
    k.branch("s_cbranch_scc1 prep_end", flush=False)
    k("s_load_dwordx16 s[16:31], s[0:1], 0")
    k("s_load_dwordx4 s[32:35], s[0:1], 64")
    k("s_load_dwordx2 s[36:37], s[0:1], 96")
    k("v_lshrrev_b32 v1, 6, v0")
    k("v_and_b32 v2, 63, v0")
    k("v_readfirstlane_b32 s3, v1")
    k.wait(lg=0)
    k(f"s_cmp_ge_u32 s2, {NKV}")
    k.branch("s_cbranch_scc1 prep_notkv")
    k.srd(40, 18, S * D * 2)
    k.srd(44, 20, S * D * 2)
    k.srd(48, 22, D * 8)
    k.srd(52, 36, D * 4096, WS_KVT)
    k("s_lshr_b32 s4, s2, 2")
    k("s_and_b32 s5, s2, 3")
    k("s_mul_i32 s5, s5, 160")
    k("s_lshl_b32 s6, s3, 5")
    k("s_add_u32 s5, s5, s6")
    k("s_lshl_b32 s4, s4, 6")
    k("v_lshrrev_b32 v3, 2, v2")
    k("v_and_b32 v4, 3, v2")
    k("v_lshlrev_b32 v5, 3, v4")
    k("v_add_u32 v5, s5, v5")
    k("v_lshlrev_b32 v6, 2, v3")
    k("v_add_u32 v6, s4, v6")
    k("v_mul_u32_u24 v7, 1280, v6")
    k("v_lshl_add_u32 v7, v5, 1, v7")
    KR = 16
    for j in range(7):
        off = (j - 3) * 1280
        if off:
            k(f"v_add_u32 v8, {off & 0xffffffff:#x}, v7")
            k(f"buffer_load_dwordx4 v[{KR+4*j}:{KR+4*j+3}], v8, s[40:43], 0 offen")
        else:
            k(f"buffer_load_dwordx4 v[{KR+4*j}:{KR+4*j+3}], v7, s[40:43], 0 offen")
    VR = 44
    for i in range(4):
        k(f"buffer_load_dwordx4 v[{VR+4*i}:{VR+4*i+3}], v7, s[44:47], 0 offen offset:{i*1280}")
    WR = 60
    k("v_lshlrev_b32 v9, 3, v5")
    for i in range(4):
        k(f"buffer_load_dwordx4 v[{WR+4*i}:{WR+4*i+3}], v9, s[48:51], 0 offen offset:{16*i}")
    k.srd(56, 36, SYNCB, WS_SYNC)
    k("s_mul_i32 s9, s2, 10240")
    k("v_lshlrev_b32 v13, 4, v0")
    for i in range(4):
        k(f"v_mov_b32 v{148+i}, 0")
    k("buffer_store_dwordx4 v[148:151], v13, s[56:59], s9 offen sc1")
    k("s_add_u32 s9, s9, 5120")
    k("buffer_store_dwordx4 v[148:151], v13, s[56:59], s9 offen sc1")
    k("s_lshl_b32 s7, s3, 12")
    k("v_lshlrev_b32 v10, 10, v4")
    k("v_lshlrev_b32 v11, 3, v3")
    k("v_sub_u32 v10, v10, v11")
    k("v_add_u32 v10, 120, v10")
    k("v_add_u32 v10, s7, v10")
    k("v_lshlrev_b32 v11, 4, v2")
    k("v_add_u32 v11, s7, v11")
    k("v_lshrrev_b32 v12, 3, v2")
    k("v_add_u32 v12, s5, v12")
    k("v_lshlrev_b32 v12, 12, v12")
    k("v_and_b32 v13, 7, v2")
    k("v_lshl_add_u32 v12, v13, 4, v12")
    k("s_lshl_b32 s8, s4, 1")
    k("s_sub_u32 s8, 3968, s8")
    k("v_add_u32 v12, s8, v12")
    WF = 80
    for c in range(8):
        unpack(k, f"v{WF+4*c}", f"v{WF+4*c+1}", f"v{WR+2*c}")
        unpack(k, f"v{WF+4*c+2}", f"v{WF+4*c+3}", f"v{WR+2*c+1}")
    KF, VF, OUT = 112, 128, 140
    for cp in range(4):
        for j in range(7):
            unpack(k, f"v{KF+2*j}", f"v{KF+2*j+1}", f"v{KR+4*j+cp}")
        for i in range(4):
            unpack(k, f"v{VF+2*i}", f"v{VF+2*i+1}", f"v{VR+4*i+cp}")
        for h in range(2):
            c = 2 * cp + h
            for i in range(4):
                o = f"v{OUT+i}"
                k(f"v_mul_f32 {o}, v{KF+2*(i+0)+h}, v{WF+4*c+3}")
                k(f"v_fmac_f32 {o}, v{KF+2*(i+1)+h}, v{WF+4*c+2}")
                k(f"v_fmac_f32 {o}, v{KF+2*(i+2)+h}, v{WF+4*c+1}")
                k(f"v_fmac_f32 {o}, v{KF+2*(i+3)+h}, v{WF+4*c+0}")
                k(f"v_mul_f32 {o}, {o}, v{VF+2*i+h}")
            p = 144 + 2 * (c & 1)
            k(f"v_cvt_pk_bf16_f32 v{p}, v{OUT+3}, v{OUT+2}")
            k(f"v_cvt_pk_bf16_f32 v{p+1}, v{OUT+1}, v{OUT+0}")
            k(f"ds_write_b64 v10, v[{p}:{p+1}] offset:{c*128}")
    k.wait(lg=0)
    for n in range(4):
        k(f"ds_read_b128 v[{16+4*n}:{19+4*n}], v11 offset:{n*1024}")
    for n in range(4):
        k(f"s_mov_b32 s9, {n*8*4096}")
        k(f"buffer_store_dwordx4 v[{16+4*n}:{19+4*n}], v12, s[52:55], s9 offen{SC}")
    k.prof_end(0, 36, 3, names="prep_kv")
    k("s_endpgm")
    k.stamps = ["start"]

    k.label("prep_notkv")
    k(f"s_cmp_ge_u32 s2, {NKV+NQ}")
    k.branch("s_cbranch_scc1 prep_notq")
    k.srd(40, 16, S * D * 2)
    k.srd(44, 36, S * 8, WS_QST)
    k(f"s_sub_u32 s4, s2, {NKV}")
    k("s_mul_i32 s4, s4, 5")
    k("s_add_u32 s4, s4, s3")
    k("s_lshl_b32 s4, s4, 2")
    k("v_lshrrev_b32 v3, 4, v2")
    k("v_add_u32 v3, s4, v3")
    k("v_and_b32 v4, 15, v2")
    k("v_mul_u32_u24 v5, 1280, v3")
    k("v_lshl_add_u32 v5, v4, 4, v5")
    for i in range(5):
        k(f"buffer_load_dwordx4 v[{16+4*i}:{19+4*i}], v5, s[40:43], 0 offen offset:{256*i}")
    XF0 = 40
    for i in range(20):
        unpack(k, f"v{XF0+2*i}", f"v{XF0+2*i+1}", f"v{16+i}")
    k(f"v_add_f32 v6, v{XF0}, v{XF0+1}")
    k(f"v_add_f32 v7, v{XF0+2}, v{XF0+3}")
    for i in range(4, 40, 2):
        k(f"v_add_f32 v6, v6, v{XF0+i}")
        k(f"v_add_f32 v7, v7, v{XF0+i+1}")
    k("v_add_f32 v6, v6, v7")
    reduce16(k, "v6", None)
    k(f"v_mul_f32 v6, {f2u(1.0/D)}, v6")
    k("v_mov_b32 v7, 0")
    k("v_mov_b32 v8, 0")
    for i in range(0, 40, 2):
        k(f"v_sub_f32 v9, v{XF0+i}, v6")
        k(f"v_sub_f32 v10, v{XF0+i+1}, v6")
        k("v_fmac_f32 v7, v9, v9")
        k("v_fmac_f32 v8, v10, v10")
    k("v_add_f32 v7, v7, v8")
    reduce16(k, "v7", None)
    k(f"v_mov_b32 v8, {f2u(EPS)}")
    k(f"v_fmac_f32 v8, {f2u(1.0/D)}, v7")
    k("v_rsq_f32 v13, v8")
    k("v_mul_f32 v12, v6, v13")
    k("v_lshlrev_b32 v3, 3, v3")
    k(f"buffer_store_dwordx2 v[12:13], v3, s[44:47], 0 offen{SC}")
    k("s_endpgm")

    k.label("prep_notq")
    k("s_mov_b32 s10, 0x05040100")
    k("s_mov_b32 s11, 0x07060302")
    k(f"s_cmp_ge_u32 s2, {NKV+NQ+NWGU}")
    k.branch("s_cbranch_scc1 prep_wd")
    k(f"s_sub_u32 s4, s2, {NKV+NQ}")
    k("s_and_b32 s5, s4, 1")
    k("s_lshr_b32 s6, s4, 1")
    k("s_cmp_eq_u32 s5, 0")
    k("s_cselect_b32 s40, s30, s32")
    k("s_cselect_b32 s41, s31, s33")
    k(f"s_mov_b32 s42, {D*F*2}")
    k("s_mov_b32 s43, 0x00020000")
    k.srd(44, 36, WGUB, WS_WGU)
    k.srd(48, 36, 32 * 512, WS_CS)
    k("v_lshrrev_b32 v3, 2, v0")
    k("v_and_b32 v4, 3, v0")
    k("v_mul_u32_u24 v5, 24576, v3")
    k("v_lshl_add_u32 v5, v4, 4, v5")
    k("s_lshl_b32 s9, s6, 6")
    k("v_add_u32 v5, s9, v5")
    for i in range(8):
        k(f"s_mov_b32 s12, {i*3072}")
        k(f"buffer_load_dwordx4 v[{16+4*i}:{19+4*i}], v5, s[40:43], s12 offen")
    k("s_lshl_b32 s7, s6, 2")
    k("v_add_u32 v6, s7, v4")
    k("v_mul_u32_u24 v7, 171, v6")
    k("v_lshrrev_b32 v7, 10, v7")
    k("v_mul_u32_u24 v8, 6, v7")
    k("v_sub_u32 v8, v6, v8")
    k("v_lshlrev_b32 v9, 2, v8")
    k("v_lshlrev_b32 v10, 3, v8")
    k("v_add_u32 v10, 96, v10")
    k("v_cmp_gt_u32 vcc, 4, v8")
    k("v_cndmask_b32 v9, v10, v9, vcc")
    k("v_mov_b32 v10, 4")
    k("v_mov_b32 v11, 64")
    k("v_cndmask_b32 v10, v10, v11, vcc")
    k(f"v_mul_u32_u24 v12, {WGU_M}, v7")
    k("v_lshrrev_b32 v13, 2, v3")
    k("v_mul_u32_u24 v13, 6144, v13")
    k("v_add_u32 v12, v12, v13")
    k("v_and_b32 v13, 3, v3")
    k("v_lshl_add_u32 v12, v13, 8, v12")
    k("v_lshl_add_u32 v12, v9, 4, v12")
    k("v_lshl_add_u32 v13, v10, 4, v12")
    k("s_mul_i32 s7, s5, 3072")
    k("v_mov_b32 v14, 0x3f803f80")
    CS = 96
    for e in range(8):
        o = 48 + 4 * e
        for p in range(4):
            k(f"v_perm_b32 v{o+p}, v{16+4*(2*p+1)+e//2}, v{16+4*(2*p)+e//2}, s{10+(e&1)}")
        k(f"buffer_store_dwordx4 v[{o}:{o+3}], v{12 if e < 4 else 13}, s[44:47], s7 offen offset:{(e&3)*16}{SC}")
        k(f"v_mov_b32 v{CS+e}, 0")
        for p in range(4):
            k(f"v_dot2c_f32_bf16 v{CS+e}, v{o+p}, v14")
    for e in range(8):
        v = f"v{CS+e}"
        k(f"v_add_f32_dpp {v}, {v}, {v} row_ror:4 row_mask:0xf bank_mask:0xf")
    for e in range(8):
        v = f"v{CS+e}"
        k(f"v_add_f32_dpp {v}, {v}, {v} row_ror:8 row_mask:0xf bank_mask:0xf")
    for e in range(8):
        xsum16(k, f"v{CS+e}", f"v{CS+8+e}")
    for e in range(8):
        xsum32(k, f"v{CS+e}", f"v{CS+8+e}")
    k("s_lshl_b32 s12, s3, 7")
    k("v_lshlrev_b32 v15, 5, v4")
    k("v_add_u32 v16, s12, v15")
    k(f"ds_write_b128 v16, v[{CS}:{CS+3}]")
    k(f"ds_write_b128 v16, v[{CS+4}:{CS+7}] offset:16")
    k.wait(lg=0)
    k.barrier()
    k("s_cmp_lg_u32 s3, 0")
    k.branch("s_cbranch_scc1 prep_end", flush=False)
    for w in range(5):
        k(f"ds_read_b128 v[{16+8*w}:{19+8*w}], v15 offset:{w*128}")
        k(f"ds_read_b128 v[{20+8*w}:{23+8*w}], v15 offset:{w*128+16}")
    for w in range(1, 5):
        for e in range(8):
            k(f"v_add_f32 v{16+e}, v{16+e}, v{16+8*w+e}")
    k("v_lshrrev_b32 v11, 6, v9")
    k("v_and_b32 v9, 63, v9")
    k("v_lshl_add_u32 v9, v11, 4, v9")
    k("v_min_u32 v10, 16, v10")
    k("v_lshlrev_b32 v7, 7, v7")
    k("v_add_u32 v9, v7, v9")
    k("v_add_u32 v10, v9, v10")
    k("v_lshlrev_b32 v9, 2, v9")
    k("v_lshlrev_b32 v10, 2, v10")
    k("s_mul_i32 s7, s5, 192")
    k(f"buffer_store_dwordx4 v[16:19], v9, s[48:51], s7 offen{SC}")
    k(f"buffer_store_dwordx4 v[20:23], v10, s[48:51], s7 offen{SC}")
    k("s_endpgm")

    k.label("prep_wd")
    k.srd(40, 34, WDB)
    k.srd(44, 36, WDB, WS_WD)
    k(f"s_sub_u32 s4, s2, {NKV+NQ+NWGU}")
    k("v_lshrrev_b32 v3, 4, v2")
    k("v_and_b32 v4, 15, v2")
    k("s_lshl_b32 s5, s3, 4")
    k("v_add_u32 v4, s5, v4")
    k("s_lshl_b32 s6, s4, 2")
    k("v_add_u32 v5, s6, v3")
    k("v_mul_u32_u24 v5, 10240, v5")
    k("v_lshl_add_u32 v5, v4, 4, v5")
    for i in range(8):
        k(f"s_mov_b32 s12, {i*1280}")
        k(f"buffer_load_dwordx4 v[{16+4*i}:{19+4*i}], v5, s[40:43], s12 offen")
    k("v_mul_u32_u24 v6, 205, v4")
    k("v_lshrrev_b32 v6, 11, v6")
    k("v_mul_u32_u24 v7, 10, v6")
    k("v_sub_u32 v7, v4, v7")
    k(f"v_mul_u32_u24 v8, {48*5120}, v6")
    k("s_mul_i32 s7, s4, 5120")
    k("v_add_u32 v8, s7, v8")
    k("v_lshl_add_u32 v8, v3, 8, v8")
    k("v_lshrrev_b32 v9, 2, v7")
    k("v_lshlrev_b32 v9, 11, v9")
    k("v_and_b32 v10, 3, v7")
    k("v_lshlrev_b32 v11, 6, v10")
    k("v_lshlrev_b32 v12, 7, v10")
    k("v_cmp_gt_u32 vcc, 8, v7")
    k("v_cndmask_b32 v11, v12, v11, vcc")
    k("v_add3_u32 v8, v8, v9, v11")
    k("v_mov_b32 v12, 64")
    k("v_mov_b32 v13, 1024")
    k("v_cndmask_b32 v12, v12, v13, vcc")
    k("v_add_u32 v9, v8, v12")
    for e in range(8):
        o = 48 + 4 * e
        for p in range(4):
            k(f"v_perm_b32 v{o+p}, v{16+4*(2*p+1)+e//2}, v{16+4*(2*p)+e//2}, s{10+(e&1)}")
        k(f"buffer_store_dwordx4 v[{o}:{o+3}], v{8 if e < 4 else 9}, s[44:47], 0 offen offset:{(e&3)*16}{SC}")
    k.label("prep_end", flush=False)
    k("s_endpgm")
    return k


def gen_conv():
    SC = ""
    CP = 4160
    UOFF = 4 * CP
    WREG = 4 * CP + 4608
    k = Kern("conv_kernel", lds=4 * WREG, grid=160, block=256)
    k.prof_begin()
    k(f"s_cmp_ge_u32 s2, {k.grid}")
    k.branch("s_cbranch_scc1 conv_end", flush=False)
    k("s_load_dwordx2 s[16:17], s[0:1], 0")
    k("s_load_dwordx4 s[20:23], s[0:1], 32")
    k("s_load_dwordx2 s[24:25], s[0:1], 96")
    k("v_lshrrev_b32 v1, 6, v0")
    k("v_and_b32 v2, 63, v0")
    k("v_readfirstlane_b32 s3, v1")
    k("s_and_b32 s4, s2, 7")
    k("s_mul_i32 s4, s4, 10")
    k("s_lshr_b32 s5, s2, 4")
    k("s_add_u32 s4, s4, s5")
    k("s_bfe_u32 s5, s2, 0x10003")
    k("s_lshl_b32 s6, s4, 3")
    k("s_lshl_b32 s7, s5, 2")
    k("s_add_u32 s6, s6, s7")
    k("s_add_u32 s7, s6, s3")
    k("s_lshl_b32 s8, s7, 12")
    k(f"s_mul_i32 s9, s3, {WREG}")
    k("v_lshlrev_b32 v3, 4, v2")
    k.wait(lg=0)
    k("s_add_u32 s28, s20, s8")
    k("s_addc_u32 s29, s21, 0")
    k("s_mov_b32 s30, 4096")
    k("s_mov_b32 s31, 0x00020000")
    k.srd(32, 24, D * 4096, WS_KVT)
    k.srd(36, 16, S * D * 2)
    k.srd(40, 24, S * 8, WS_QST)
    k.srd(44, 22, D * 2)
    k.srd(48, 24, XFB, WS_Y)
    k.srd(52, 24, XFB, WS_X1)
    HB = 16
    for p in range(4):
        k(f"buffer_load_dwordx4 v[{HB+8*p+4}:{HB+8*p+7}], v3, s[28:31], 0 offen offset:{p*1024}")
        k(f"v_add_u32 v4, {(p*1024-8) & 0xffffffff:#x}, v3")
        k(f"buffer_load_dwordx2 v[{HB+8*p+2}:{HB+8*p+3}], v4, s[28:31], 0 offen")
    k(f"s_add_u32 m0, s9, {UOFF}")
    for p in range(4):
        k(f"buffer_load_dwordx4 v3, s[32:35], s8 offen offset:{p*1024} lds", tag="u")
    k("s_lshl_b32 s10, s7, 1")
    k("v_mov_b32 v5, s10")
    k("buffer_load_ushort v6, v5, s[44:47], 0 offen")
    k("v_mov_b32 v8, 0")
    k("v_mov_b32 v9, 0")
    k("v_lshlrev_b32 v4, 3, v2")
    k("v_add_u32 v4, s9, v4")
    k(f"ds_write_b64 v4, v[8:9] offset:{UOFF+4096}")
    k("v_bfe_u32 v4, v2, 2, 2")
    k(f"v_mul_u32_u24 v4, {CP}, v4")
    k("v_and_b32 v5, 3, v2")
    k("v_lshl_add_u32 v4, v5, 3, v4")
    k("v_add_u32 v4, s9, v4")
    k("ds_write_b64 v4, v[8:9]")
    QB = 192
    k("s_lshl_b32 s10, s3, 9")
    k("v_add_u32 v10, s10, v2")
    k("v_mul_u32_u24 v11, 1280, v10")
    k("s_lshl_b32 s11, s6, 1")
    k("v_add_u32 v11, s11, v11")
    k("v_lshlrev_b32 v12, 3, v10")
    qloads = []
    for it in range(8):
        qloads.append([f"s_mov_b32 s12, {it*64*1280}",
                       f"buffer_load_dwordx2 v[{QB+4*it}:{QB+4*it+1}], v11, s[36:39], s12 offen",
                       f"buffer_load_dwordx2 v[{QB+4*it+2}:{QB+4*it+3}], v12, s[40:43], 0 offen offset:{it*512}"])
    k.stamp("issued")
    k("v_add_u32 v13, s9, v3")
    T = 48
    for p in range(4):
        b = HB + 8 * p
        p2, p3, d0, d1, d2, d3 = (f"v{b+2}", f"v{b+3}", f"v{b+4}", f"v{b+5}", f"v{b+6}", f"v{b+7}")
        off = 32 + p * 1024
        k(f"ds_write_b128 v13, v[{b+4}:{b+7}] offset:{off}")
        seq = [p2, p3, d0, d1, d2, d3]
        for j in range(4):
            k(f"v_alignbyte_b32 v{T+j}, {seq[2+j]}, {seq[1+j]}, 2")
        k(f"ds_write_b128 v13, v[{T}:{T+3}] offset:{off+CP}")
        for j in range(4):
            k(f"v_mov_b32 v{T+4+j}, {seq[1+j]}")
        k(f"ds_write_b128 v13, v[{T+4}:{T+7}] offset:{off+2*CP}")
        for j in range(4):
            k(f"v_alignbyte_b32 v{T+8+j}, {seq[1+j]}, {seq[j]}, 2")
        k(f"ds_write_b128 v13, v[{T+8}:{T+11}] offset:{off+3*CP}")
        T = 48 + 12 * ((p + 1) & 1)
    k("v_and_b32 v4, 15, v2")
    k("v_lshrrev_b32 v5, 4, v2")
    k("v_sub_u32 v7, 3, v4")
    k("v_and_b32 v7, 3, v7")
    k("v_add3_u32 v8, v4, v7, 1")
    k("v_lshl_add_u32 v8, v5, 3, v8")
    k("v_lshlrev_b32 v8, 1, v8")
    k(f"v_mul_u32_u24 v7, {CP}, v7")
    k("v_add3_u32 v14, v7, v8, s9")
    k("v_lshlrev_b32 v7, 5, v4")
    k("v_lshlrev_b32 v8, 4, v5")
    k("v_sub_u32 v8, v8, v7")
    k(f"v_add_u32 v8, {UOFF+480}, v8")
    k("v_add_u32 v15, s9, v8")
    k("v_lshlrev_b32 v6, 16, v6")
    k.wait_tag("u")
    k.wait(lg=0)
    k.stamp("ready")
    AB = [80, 112]
    ACC = 144

    def readA(I):
        for r in range(8):
            i = 8 * I + r
            b = AB[I & 1] + 4 * r
            k(f"ds_read_b64 v[{b}:{b+1}], v14 offset:{64*i}")
            k(f"ds_read_b64 v[{b+2}:{b+3}], v14 offset:{64*i+8}")

    def breg(m):
        return 4 * (m + 7)

    def readB(m):
        k(f"ds_read_b128 a[{breg(m)}:{breg(m)+3}], v15 offset:{64*(56-m)}")

    for r in range(8):
        b = AB[0] + 4 * r
        k(f"ds_read_b64 v[{b}:{b+1}], v14 offset:{64*r}")
        k(f"ds_read_b64 v[{b+2}:{b+3}], v14 offset:{64*r+8}")
        readB(-r)
    started = set()
    nmf = [0]
    for I in range(8):
        pend = []
        if I < 7:
            for r in range(8):
                i = 8 * (I + 1) + r
                b = AB[(I + 1) & 1] + 4 * r
                pend.append(f"ds_read_b64 v[{b}:{b+1}], v14 offset:{64*i}")
                pend.append(f"ds_read_b64 v[{b+2}:{b+3}], v14 offset:{64*i+8}")
        nm = (8 - I) * 8
        cnt = 0
        for c in range(I, 8):
            C = c - I
            for r in range(8):
                if I == 0 and C < 7:
                    readB(8 * (C + 1) - r)
                a = AB[I & 1] + 4 * r
                m = 8 * C - r
                acc = f"v[{ACC+4*c}:{ACC+4*c+3}]"
                src = acc if c in started else "0"
                started.add(c)
                k(f"v_mfma_f32_16x16x32_bf16 {acc}, v[{a}:{a+3}], a[{breg(m)}:{breg(m)+3}], {src}")
                cnt += 1
                nmf[0] += 1
                if nmf[0] % 24 == 0 and qloads:
                    for x in qloads.pop(0):
                        k(x)
                if pend and (I > 0 or C >= 7 or True):
                    if I == 0 and C < 7:
                        n = 1 if (cnt % 3 == 0) else 0
                    else:
                        n = 2
                    for _ in range(n):
                        if pend:
                            k(pend.pop(0))
        for p_ in pend:
            k(p_)
    k.stamp("mfma")
    k("v_lshlrev_b32 v7, 5, v4")
    k("v_lshl_add_u32 v7, v5, 3, v7")
    k(f"v_sub_u32 v8, {UOFF+504}, v7")
    k("v_add_u32 v8, s9, v8")
    k("v_add_u32 v9, s9, v7")
    KV = 16
    for c in range(8):
        k(f"ds_read_b64 v[{KV+2*c}:{KV+2*c+1}], v8 offset:{(7-c)*512}")
    for c in range(8):
        a = ACC + 4 * c
        unpack(k, "v40", "v41", f"v{KV+2*c}")
        unpack(k, "v42", "v43", f"v{KV+2*c+1}")
        k(f"v_fmac_f32 v{a+3}, v40, v6")
        k(f"v_fmac_f32 v{a+2}, v41, v6")
        k(f"v_fmac_f32 v{a+1}, v42, v6")
        k(f"v_fmac_f32 v{a+0}, v43, v6")
        o = 44 + 2 * (c & 1)
        k(f"v_cvt_pk_bf16_f32 v{o}, v{a}, v{a+1}")
        k(f"v_cvt_pk_bf16_f32 v{o+1}, v{a+2}, v{a+3}")
        k(f"ds_write_b64 v9, v[{o}:{o+1}] offset:{c*512}")
    k.wait(lg=0)
    k.barrier()
    k.stamp("bar")
    k("v_bfe_u32 v7, v2, 2, 2")
    k(f"v_mul_u32_u24 v7, {WREG}, v7")
    k("v_and_b32 v8, 3, v2")
    k("v_lshl_add_u32 v7, v8, 3, v7")
    k("v_lshl_add_u32 v7, v5, 5, v7")
    k("s_lshl_b32 s10, s3, 10")
    k("v_add_u32 v7, s10, v7")
    YB = 48
    for it in range(8):
        k(f"ds_read_b64_tr_b16 v[{YB+2*it}:{YB+2*it+1}], v7 offset:{it*128}")
    k("v_lshrrev_b32 v9, 4, v10")
    k(f"v_mul_u32_u24 v9, {XRT}, v9")
    k("v_lshl_add_u32 v9, v4, 4, v9")
    k("s_lshl_b32 s10, s4, 8")
    k("s_lshl_b32 s11, s5, 3")
    k("s_add_u32 s10, s10, s11")
    k("v_add_u32 v9, s10, v9")
    for it in range(8):
        y0, y1 = YB + 2 * it, YB + 2 * it + 1
        q0, q1, mr, r = (QB + 4 * it + i for i in range(4))
        k(f"s_mov_b32 s12, {it*4*XRT}")
        k(f"buffer_store_dwordx2 v[{y0}:{y1}], v9, s[48:51], s12 offen{SC}")
        unpack(k, "v16", "v17", f"v{y0}")
        unpack(k, "v18", "v19", f"v{y1}")
        unpack(k, "v20", "v21", f"v{q0}")
        unpack(k, "v22", "v23", f"v{q1}")
        for i in range(4):
            k(f"v_fma_f32 v{24+i}, v{20+i}, v{r}, -v{mr}")
            k(f"v_fmac_f32 v{20+i}, v{24+i}, v{16+i}")
        o = 28 + 2 * (it & 1)
        k(f"v_cvt_pk_bf16_f32 v{o}, v20, v21")
        k(f"v_cvt_pk_bf16_f32 v{o+1}, v22, v23")
        k(f"buffer_store_dwordx2 v[{o}:{o+1}], v9, s[52:55], s12 offen{SC}")
    k.prof_end(4, 24, 3)
    k.label("conv_end", flush=False)
    k("s_endpgm")
    return k
```

```python
from gen4_head import *

STAMPS = os.environ.get("STAMPS", "").split(",")


def gen_ffn():
    LW = 0
    LR = 122880
    LC = LR + 32768
    k = Kern("ffn_kernel", lds=LC + 512, grid=256, block=256)
    RING, ACC, WB, TMP = 16, 112, 160, 184
    X1R = [216, 222]
    YR = [228, 234]
    STA, STB = [4, 6], [240, 242]
    X2 = [WB, WB + 12]
    G2R = TMP + 8
    DIST = 8
    VL16, VL16B, VH2, VT4, VT4S, VROW, VGW, VGR, VST1, VFLAG, VFPOLL = (
        "v10", "v11", "v8", "v9", "v12", "v13", "v14", "v15", "v244", "v245", "v246")
    SX, SW, SH, SWD, SSY, SO, SY_ = 28, 32, 36, 40, 44, 48, 52

    def stamp(n):
        if n in STAMPS:
            k.stamp(n)

    k.prof_begin()
    k(f"s_cmp_ge_u32 s2, {k.grid}")
    k.branch("s_cbranch_scc1 ffn_end", flush=False)
    k("s_load_dwordx2 s[24:25], s[0:1], 96")
    k("s_load_dwordx2 s[26:27], s[0:1], 80")
    k("v_lshrrev_b32 v1, 6, v0")
    k("v_readfirstlane_b32 s3, v1")
    k("v_and_b32 v1, 63, v0")
    k("v_and_b32 v2, 15, v0")
    k("v_bfe_u32 v3, v0, 4, 2")
    k("s_and_b32 s4, s2, 7")
    k("s_lshr_b32 s5, s2, 3")
    k("s_lshr_b32 s7, s5, 3")
    k("s_and_b32 s8, s5, 7")
    k("s_and_b32 s9, s3, 1")
    k("s_lshr_b32 s14, s3, 1")
    k("s_lshl_b32 s6, s4, 4")
    k("s_lshl_b32 s10, s3, 1")
    k("s_add_u32 s15, s6, s10")
    k("s_lshl_b32 s10, s7, 1")
    k("s_add_u32 s16, s6, s10")
    k("s_add_u32 s16, s16, s9")
    k(f"v_lshlrev_b32 {VL16}, 4, v1")
    k(f"v_add_u32 {VL16B}, 61440, {VL16}")
    k.wait(lg=0)
    XSPAN = WS_X3 - WS_X1
    HSPAN = WS_H2 - WS_H
    k.srd(SX, 24, XSPAN + XFB, WS_X1)
    k.srd(SW, 24, WGUB, WS_WGU)
    k.srd(SSY, 24, SYNCB, WS_SYNC)
    k.srd(60, 24, 32 * 512, WS_CS)
    k(f"s_mul_i32 s17, s15, {XRT}")
    k("s_mul_i32 s18, s3, 3072")
    k(f"s_mul_i32 s19, s5, {WGU_M}")
    k("s_add_u32 s19, s19, s18")

    def srd(n):
        return f"s[{n}:{n+3}]"

    def ring(i):
        return RING + 4 * (i % 24)

    def emit(x):
        if callable(x):
            x()
        elif isinstance(x, tuple):
            k(x[0], tag=x[1])
        else:
            k(x)

    def isvm(x):
        if callable(x):
            return False
        return (x[0] if isinstance(x, tuple) else x).startswith("buffer_")

    def emit_one_vmem(L):
        while L:
            x = L.pop(0)
            emit(x)
            if isvm(x):
                return

    def x_loads(layer, b, kk, slot0):
        so = kk * 1024 + b * 8 * XRT + (XSPAN if layer else 0)
        sc = " sc1" if layer else ""
        L = []
        for tn in range(2):
            L.append(f"s_add_u32 s10, s17, {so + tn*XRT}")
            L.append(f"buffer_load_dwordx4 v[{ring(slot0+tn)}:{ring(slot0+tn)+3}], {VL16}, {srd(SX)}, s10 offen{sc}")
        return L

    def h_loads(layer, b, kk, slot0):
        so = kk * 1024 + b * 8 * HRT + (HSPAN if layer else 0)
        L = []
        for tn in range(2):
            L.append(f"s_add_u32 s10, s{57+tn}, {so}")
            L.append(f"buffer_load_dwordx4 v[{ring(slot0+tn)}:{ring(slot0+tn)+3}], {VL16}, {srd(SH)}, s10 offen sc1")
        return L

    def wgu_dma(p):
        return [f"s_add_u32 m0, s18, {LW + p*12288}", f"s_add_u32 s11, s19, {p*12288}"] + [
            (f"buffer_load_dwordx4 {VL16}, {srd(SW)}, s11 offen offset:{f*1024} lds", f"w{p}") for f in range(3)]

    def wd_load(i):
        kk, lt = divmod(i, 5)
        base = "s20" if lt < 2 else "s21" if lt < 4 else "s22"
        return [f"s_add_u32 s11, {base}, {kk*5120}",
                f"buffer_load_dwordx4 a[{4*i}:{4*i+3}], {VL16}, {srd(SWD)}, s11 offen offset:{(lt&1)*1024 if lt < 4 else 0}"]

    k("s_lshl_b32 s10, s5, 3")
    k("s_lshl_b32 s11, s3, 1")
    k("s_add_u32 s10, s10, s11")
    k("s_lshr_b32 s11, s10, 4")
    k("s_add_u32 s11, s11, s6")
    k(f"s_mul_i32 s11, s11, {XRT}")
    k("s_and_b32 s12, s10, 15")
    k("s_lshl_b32 s12, s12, 4")
    k("s_add_u32 s11, s11, s12")
    k("v_and_b32 v184, 1, v1")
    k("v_lshrrev_b32 v185, 1, v1")
    k("v_lshlrev_b32 v186, 8, v185")
    k("v_lshl_add_u32 v186, v184, 4, v186")
    k("v_cmp_gt_u32 vcc, 16, v185")
    k(f"v_mov_b32 v187, {OOB:#x}")
    k("v_cndmask_b32 v187, v187, v186, vcc")
    k(f"buffer_load_dwordx4 v[188:191], v186, {srd(SX)}, s11 offen")
    k("s_add_u32 s12, s11, 8192")
    k(f"buffer_load_dwordx4 v[192:195], v186, {srd(SX)}, s12 offen")
    k("s_add_u32 s12, s11, 16384")
    k(f"buffer_load_dwordx4 v[196:199], v187, {srd(SX)}, s12 offen")
    k("s_lshl_b32 s13, s4, 8")
    k("s_add_u32 s13, s13, s10")
    k("s_lshl_b32 s13, s13, 3")
    PRE = 4
    for p in range(PRE):
        for x in wgu_dma(p) + x_loads(0, 0, 2 * p, 4 * p) + x_loads(0, 0, 2 * p + 1, 4 * p + 2):
            emit(x)
    k("s_lshl_b32 s10, s5, 9")
    k("v_lshlrev_b32 v187, 3, v1")
    k("buffer_load_dwordx2 v[200:201], v187, s[60:63], s10 offen")
    k.srd(SH, 24, HSPAN + HFB, WS_H)
    k.srd(SWD, 24, WDB, WS_WD)
    k.srd(SO, 26, XFB)
    k.srd(SY_, 24, XFB, WS_Y)
    k("s_lshl_b32 s10, s8, 2")
    k("s_add_u32 s10, s10, s3")
    k("s_mul_i32 s10, s10, 61440")
    k("s_lshl_b32 s11, s14, 11")
    k("s_add_u32 s20, s10, s11")
    k("s_xor_b32 s11, s11, 2048")
    k("s_add_u32 s21, s10, s11")
    k("s_add_u32 s22, s10, 4096")
    k(f"s_mul_i32 s56, s15, {HRT}")
    k("s_mul_i32 s10, s5, 1536")
    k("s_add_u32 s56, s56, s10")
    k("s_mul_i32 s10, s3, 12288")
    k(f"s_mul_i32 s57, s16, {HRT}")
    k("s_add_u32 s57, s57, s10")
    k("s_xor_b32 s11, s16, 1")
    k(f"s_mul_i32 s58, s11, {HRT}")
    k("s_add_u32 s58, s58, s10")
    k(f"s_mul_i32 s59, s16, {XRT}")
    k("s_mul_i32 s10, s8, 2560")
    k("s_add_u32 s59, s59, s10")
    k("s_lshl_b32 s10, s14, 10")
    k("s_add_u32 s55, s59, s10") if False else None
    k("v_and_b32 v204, 1, v3")
    k("v_lshrrev_b32 v205, 1, v3")
    k(f"v_mul_u32_u24 {VH2}, {HRT}, v204")
    k("v_lshlrev_b32 v206, 4, v2")
    k("v_lshl_add_u32 v206, v205, 8, v206")
    k(f"v_add_u32 {VH2}, {VH2}, v206")
    k(f"v_lshl_add_u32 {VT4}, v204, 3, v206")
    k("s_lshl_b32 s10, s14, 31")
    k(f"v_or_b32 {VT4S}, s10, {VT4}")
    k("s_lshl_b32 s10, s16, 4")
    k(f"v_add_u32 {VROW}, s10, v2")
    k(f"v_lshlrev_b32 {VGR}, 3, v2")
    k("v_cmp_eq_u32 vcc, 0, v3")
    k(f"v_mov_b32 v204, {OOB:#x}")
    k(f"v_cndmask_b32 {VGW}, v204, {VGR}, vcc")
    k("s_lshl_b32 s10, s15, 7")
    k(f"v_add_u32 {VST1}, s10, {VGR}")
    k(f"v_lshl_add_u32 {VGR}, v3, 9, {VGR}")
    k("v_cmp_eq_u32 vcc, 0, v1")
    k(f"v_cndmask_b32 {VFLAG}, v204, v1, vcc")
    k("s_lshl_b32 s10, s4, 3")
    k("s_add_u32 s10, s10, s7")
    k("s_lshl_b32 s10, s10, 5")
    k("s_lshl_b32 s11, s3, 3")
    k("s_add_u32 s10, s10, s11")
    k(f"v_and_b32 {VFPOLL}, 7, v1")
    k(f"v_add_u32 {VFPOLL}, s10, {VFPOLL}")
    k(f"v_lshlrev_b32 {VFPOLL}, 7, {VFPOLL}")
    k("v_mov_b32 v202, 0")
    k("v_mov_b32 v203, 0")
    for i in range(12):
        unpack(k, "v204", "v205", f"v{188+i}")
        k("v_add_f32 v202, v202, v204")
        k("v_fmac_f32 v203, v204, v204")
        k("v_add_f32 v202, v202, v205")
        k("v_fmac_f32 v203, v205, v205")
    for v in ("v202", "v203"):
        for mod in ("quad_perm:[2,3,0,1]", "row_ror:4", "row_ror:8"):
            k(f"v_add_f32_dpp {v}, {v}, {v} {mod} row_mask:0xf bank_mask:0xf")
        xsum16(k, v, "v204")
        xsum32(k, v, "v204")
    k("v_or_b32 v203, 0x80000000, v203")
    k("v_cmp_gt_u32 vcc, 2, v1")
    k(f"v_mov_b32 v204, {OOB:#x}")
    k("v_cndmask_b32 v204, v204, v187, vcc")
    k(f"buffer_store_dwordx2 v[202:203], v204, {srd(SSY)}, s13 offen sc1")
    k(f"v_add_u32 v187, {LC}, v187")
    k("ds_write_b64 v187, v[200:201]")

    def poll(loads, tags, tmp):
        def check():
            if len(tags) == 1:
                k(f"v_cmp_ne_u32 vcc, 0, {tags[0]}")
            else:
                k(f"v_min_u32 {tmp}, {tags[0]}, {tags[1]}")
                for t in tags[2:]:
                    k(f"v_min_u32 {tmp}, {tmp}, {t}")
                k(f"v_cmp_ne_u32 vcc, 0, {tmp}")
            k("s_cmp_eq_u64 vcc, -1")
        ok = k.newlabel("ok")
        lp = k.newlabel("spin")
        check()
        k.branch(f"s_cbranch_scc1 {ok}", flush=False)
        vm, lg = list(k.vm), list(k.lg)
        k("s_mov_b32 s23, 0")
        k.label(lp, flush=False)
        k("s_sleep 2")
        for l in loads:
            k(l)
        k.wait(vm=0)
        k("s_add_u32 s23, s23, 1")
        k(f"s_cmp_ge_u32 s23, {SPIN_MAX}")
        k.branch(f"s_cbranch_scc1 {ok}", flush=False)
        check()
        k.branch(f"s_cbranch_scc0 {lp}", flush=False)
        k.flush_hazards()
        k.label(ok, flush=False)
        k.vm, k.lg = vm, lg

    def finish_stats(vsum, vnsq, dst):
        k(f"v_mul_f32 v{dst}, {f2u(-1.0/D)}, {vsum}")
        k(f"v_mul_f32 {vnsq}, {f2u(-1.0/D)}, {vnsq}")
        k(f"v_fma_f32 {vnsq}, -v{dst}, v{dst}, {vnsq}")
        k(f"v_max_f32 {vnsq}, 0, {vnsq}")
        k(f"v_add_f32 {vnsq}, {f2u(EPS)}, {vnsq}")
        k(f"v_rsq_f32 v{dst+1}, {vnsq}")

    def wread(kk, f):
        reg, off = (VL16, kk * 6144) if kk < 10 else (VL16B, (kk - 10) * 6144)
        return f"ds_read_b128 v[{WB+4*f}:{WB+4*f+3}], {reg} offset:{LW+off+f*1024}"

    def g1_main(slot0, sched, first=False):
        if first:
            k.wait_tag("w0")
            k.wait(lg=0)
            k.barrier()
        for f in range(6):
            k(wread(0, f))
        for kk in range(20):
            L = sched.get(kk, [])
            if first and kk % 2 == 1 and kk < 19:
                k.wait_tag(f"w{(kk+1)//2}")
                k.barrier()
            nv = sum(1 for x in L if isvm(x))
            done = 0
            for f in range(6):
                for tn in range(2):
                    a = ACC + 8 * f + 4 * tn
                    acc = f"v[{a}:{a+3}]"
                    xr = ring(slot0 + 2 * kk + tn)
                    k(f"v_mfma_f32_16x16x32_bf16 {acc}, v[{WB+4*f}:{WB+4*f+3}], v[{xr}:{xr+3}], {acc if kk else 0}")
                    idx = 2 * f + tn + 1
                    while done < nv and done * 12 < idx * nv - 6:
                        emit_one_vmem(L)
                        done += 1
                if kk < 19:
                    k(wread(kk + 1, f))
                else:
                    if f == 0:
                        k("v_lshlrev_b32 v255, 4, v3")
                        k(f"v_add_u32 v255, {LC}, v255")
                    k(f"ds_read_b128 v[{WB+4*f}:{WB+4*f+3}], v255 offset:{f*64}")
            for x in L:
                emit(x)

    def g1_epilogue(layer, b, ST):
        k(f"s_add_u32 s12, s56, {b*8*HRT + (HSPAN if layer else 0)}")
        O2 = TMP + 20
        for tn in range(2):
            st = ST[tn]
            c1 = TMP + 28
            k(f"v_mul_f32 v{c1}, {f2u(-LOG2E)}, v{st+1}")
            k(f"v_mul_f32 v{c1+1}, v{st+1}, v{st+1}")
            k(f"v_rcp_f32 v{c1+1}, v{c1+1}")
            T = TMP
            for f in range(6):
                a = ACC + 8 * f + 4 * tn
                for i in (0, 2):
                    k(f"v_pk_fma_f32 v[{a+i}:{a+i+1}], v[{WB+4*f+i}:{WB+4*f+i+1}], v[{st}:{st+1}], v[{a+i}:{a+i+1}] op_sel:[0,0,0] op_sel_hi:[1,0,1]")
            for f in range(3):
                g = ACC + 8 * f + 4 * tn
                for i in (0, 2):
                    k(f"v_pk_mul_f32 v[{T+4*f+i}:{T+4*f+i+1}], v[{g+i}:{g+i+1}], v[{c1}:{c1+1}] op_sel:[0,0] op_sel_hi:[1,0]")
            for e in range(12):
                k(f"v_exp_f32 v{T+e}, v{T+e}")
            for f in range(3):
                g = ACC + 8 * f + 4 * tn
                u = g + 24
                for i in (0, 2):
                    k(f"v_pk_mul_f32 v[{g+i}:{g+i+1}], v[{g+i}:{g+i+1}], v[{u+i}:{u+i+1}]")
            for e in range(0, 12, 2):
                k(f"v_pk_fma_f32 v[{T+e}:{T+e+1}], v[{T+e}:{T+e+1}], v[{c1}:{c1+1}], v[{c1}:{c1+1}] op_sel:[0,1,1] op_sel_hi:[1,1,1]")
            for e in range(12):
                k(f"v_rcp_f32 v{T+e}, v{T+e}")
            for f in range(3):
                g = ACC + 8 * f + 4 * tn
                for i in (0, 2):
                    k(f"v_pk_mul_f32 v[{T+4*f+i}:{T+4*f+i+1}], v[{T+4*f+i}:{T+4*f+i+1}], v[{g+i}:{g+i+1}]")
            O = TMP + 12 + 4 * tn
            for p in range(4):
                k(f"v_cvt_pk_bf16_f32 v{O+p}, v{T+2*p}, v{T+2*p+1}")
            for p in range(2):
                k(f"v_cvt_pk_bf16_f32 v{O2+2*tn+p}, v{T+8+2*p}, v{T+9+2*p}")
            if tn:
                k(f"s_add_u32 s13, s12, {HRT}")
            k(f"buffer_store_dwordx4 v[{O}:{O+3}], {VL16}, {srd(SH)}, s{12+tn} offen sc1", tag="hst")
        k(f"v_permlane16_swap_b32 v{O2}, v{O2+2}")
        k(f"v_permlane16_swap_b32 v{O2+1}, v{O2+3}")
        k(f"buffer_store_dwordx4 v[{O2}:{O2+3}], {VH2}, {srd(SH)}, s12 offen offset:1024 sc1", tag="hst")

    def h_flag(layer, b):
        k("s_lshl_b32 s12, s4, 3")
        k("s_add_u32 s12, s12, s3")
        k("s_lshl_b32 s12, s12, 5")
        k("s_add_u32 s12, s12, s5")
        k("s_lshl_b32 s12, s12, 7")
        k(f"s_add_u32 s12, s12, {SY_HF + layer*0x40000 + b*0x4000}")
        k("v_mov_b32 v254, 1")
        k.wait_tag("hst")
        k(f"buffer_store_dword v254, {VFLAG}, {srd(SSY)}, s12 offen sc1")

    def h_poll_loads(layer, b):
        return [f"s_mov_b32 s13, {SY_HF + layer*0x40000 + b*0x4000}",
                f"buffer_load_dword v{TMP+30}, {VFPOLL}, {srd(SSY)}, s13 offen sc1"]

    def h_poll(layer, b):
        poll(h_poll_loads(layer, b), [f"v{TMP+30}"], None)

    def g2_main(slot0, sched):
        for kk in range(12):
            L = sched.get(kk, [])
            nv = sum(1 for x in L if isvm(x))
            done = 0
            idx = 0
            for tn in range(2):
                for lt in range(5):
                    a = ACC + 8 * lt + 4 * tn
                    acc = f"v[{a}:{a+3}]"
                    hr = ring(slot0 + 2 * kk + tn)
                    wr = 4 * (5 * kk + lt)
                    k(f"v_mfma_f32_16x16x32_bf16 {acc}, a[{wr}:{wr+3}], v[{hr}:{hr+3}], {acc if kk else 0}")
                    idx += 1
                    while done < nv and done * 10 < idx * nv - 5:
                        emit_one_vmem(L)
                        done += 1
            for x in L:
                emit(x)

    def g2_reduce(res, dst):
        k.barrier()
        for x in range(1, 4):
            k(f"s_xor_b32 s12, s3, {x}")
            k("s_mul_i32 s12, s12, 6144")
            k(f"s_add_u32 s12, s12, {LR + (x-1)*2048}")
            k(f"v_add_u32 v255, s12, {VL16}")
            for i in range(2):
                a = ACC + 8 * ((2 if x & 2 else 0) + i) + 4 * (x & 1)
                k(f"ds_write_b128 v255, v[{a}:{a+3}] offset:{i*1024}")
        for ltn in range(2):
            k(f"s_xor_b32 s12, s9, {ltn}")
            k("s_lshl_b32 s12, s12, 2")
            k("s_add_u32 s12, s12, s3")
            k("s_lshl_b32 s12, s12, 10")
            k(f"s_add_u32 s12, s12, {LR + 24576}")
            k(f"v_add_u32 v255, s12, {VL16}")
            a = ACC + 32 + 4 * ltn
            k(f"ds_write_b128 v255, v[{a}:{a+3}]")
        for d in range(4):
            a = ACC + 8 * (d // 2) + 2 * (d & 1)
            unpack(k, f"v{dst+2*d}", f"v{dst+2*d+1}", f"v{res+d}")
            k(f"v_pk_add_f32 v[{dst+2*d}:{dst+2*d+1}], v[{dst+2*d}:{dst+2*d+1}], v[{a}:{a+1}]")
        for d in range(2):
            unpack(k, f"v{dst+8+2*d}", f"v{dst+9+2*d}", f"v{res+4+d}")
        k("s_mul_i32 s12, s3, 6144")
        k(f"s_add_u32 s12, s12, {LR}")
        k(f"v_add_u32 v255, s12, {VL16}")
        k("s_lshl_b32 s12, s9, 12")
        k(f"s_add_u32 s12, s12, {LR + 24576}")
        k(f"v_add_u32 v254, s12, {VL16}")
        k.wait(lg=0)
        k.barrier()
        R = ACC
        R4 = ACC + 24
        for n in range(6):
            k(f"ds_read_b128 v[{R+4*n}:{R+4*n+3}], v255 offset:{n*1024}")
        for n in range(4):
            k(f"ds_read_b128 v[{R4+4*n}:{R4+4*n+3}], v254 offset:{n*1024}")
        for n in range(6):
            d = dst + 4 * (n & 1)
            for i in (0, 2):
                k(f"v_pk_add_f32 v[{d+i}:{d+i+1}], v[{d+i}:{d+i+1}], v[{R+4*n+i}:{R+4*n+i+1}]")
        for n in range(4):
            for i in (0, 2):
                k(f"v_pk_add_f32 v[{dst+8+i}:{dst+9+i}], v[{dst+8+i}:{dst+9+i}], v[{R4+4*n+i}:{R4+4*n+i+1}]")

    def part_stats(src, b, region, pre_wait=None):
        a, q_ = TMP + 16, TMP + 17
        k(f"v_add_f32 v{a}, v{src}, v{src+1}")
        k(f"v_mul_f32 v{q_}, v{src}, v{src}")
        k(f"v_fmac_f32 v{q_}, v{src+1}, v{src+1}")
        for i in range(2, 8):
            k(f"v_add_f32 v{a}, v{a}, v{src+i}")
            k(f"v_fmac_f32 v{q_}, v{src+i}, v{src+i}")
        t, u = TMP + 18, TMP + 19
        k(f"v_add_f32 v{t}, v{src+8}, v{src+9}")
        k(f"v_mul_f32 v{u}, v{src+8}, v{src+8}")
        k(f"v_fmac_f32 v{u}, v{src+9}, v{src+9}")
        for i in range(10, 12):
            k(f"v_add_f32 v{t}, v{t}, v{src+i}")
            k(f"v_fmac_f32 v{u}, v{src+i}, v{src+i}")
        k("s_cmp_eq_u32 s14, 0")
        k("s_cselect_b32 s12, 1.0, 0")
        k(f"v_fmac_f32 v{a}, s12, v{t}")
        k(f"v_fmac_f32 v{q_}, s12, v{u}")
        for v in (a, q_):
            xsum16(k, f"v{v}", f"v{t}")
            xsum32(k, f"v{v}", f"v{t}")
        k(f"v_or_b32 v{q_}, 0x80000000, v{q_}")
        k("s_lshl_b32 s12, s16, 4")
        k("s_lshl_b32 s13, s8, 1")
        k("s_add_u32 s12, s12, s13")
        k("s_add_u32 s12, s12, s14")
        k("s_lshl_b32 s12, s12, 7")
        k(f"s_add_u32 s12, s12, {region + b*8*2048}")
        if pre_wait:
            k.wait_tag(pre_wait)
        k(f"buffer_store_dwordx2 v[{a}:{q_}], {VGW}, {srd(SSY)}, s12 offen sc1")

    def st2_loads(b, dst):
        return ["s_lshl_b32 s13, s16, 11", f"s_add_u32 s13, s13, {SY_ST2 + b*8*2048}"] + [
            f"buffer_load_dwordx2 v[{dst+2*i}:{dst+2*i+1}], {VGR}, {srd(SSY)}, s13 offen offset:{i*128} sc1"
            for i in range(4)]

    def st3_loads(b, dst):
        return ["s_lshl_b32 s13, s15, 11", f"s_add_u32 s13, s13, {SY_ST3 + b*8*2048}"] + [
            f"buffer_load_dwordx2 v[{dst+8*tn+2*i}:{dst+8*tn+2*i+1}], {VGR}, {srd(SSY)}, s13 offen offset:{tn*2048+i*128} sc1"
            for tn in range(2) for i in range(4)]

    def st1_loads(b, dst):
        return [f"buffer_load_dwordx2 v[{dst+2*tn}:{dst+2*tn+1}], {VST1}, {srd(SSY)}, 0 offen offset:{b*1024+tn*128} sc1"
                for tn in range(2)]

    def sum_granules(g, n, tmp):
        for i in range(1, n):
            k(f"v_pk_add_f32 v[{g}:{g+1}], v[{g}:{g+1}], v[{g+2*i}:{g+2*i+1}]")
        for v in (g, g + 1):
            xsum16(k, f"v{v}", tmp)
            xsum32(k, f"v{v}", tmp)

    def finalize(b, x2, G):
        poll(st2_loads(b, G), [f"v{G+1}", f"v{G+3}", f"v{G+5}", f"v{G+7}"], f"v{TMP+20}")
        stamp(f"p2{b}")
        sum_granules(G, 4, f"v{TMP+20}")
        sp = TMP + 22
        finish_stats(f"v{G}", f"v{G+1}", sp)
        k(f"v_mul_f32 v{sp}, v{sp}, v{sp+1}")
        for d in range(6):
            unpack(k, f"v{TMP}", f"v{TMP+1}", f"v{YR[b]+d}")
            k(f"v_pk_fma_f32 v[{TMP+2}:{TMP+3}], v[{x2+2*d}:{x2+2*d+1}], v[{sp}:{sp+1}], v[{sp}:{sp+1}] op_sel:[0,1,0] op_sel_hi:[1,1,0]")
            k(f"v_pk_fma_f32 v[{x2+2*d}:{x2+2*d+1}], v[{TMP+2}:{TMP+3}], v[{TMP}:{TMP+1}], v[{x2+2*d}:{x2+2*d+1}]")
            k(f"v_cvt_pk_bf16_f32 v{X1R[b]+d}, v{x2+2*d}, v{x2+2*d+1}")
        k(f"s_add_u32 s13, s59, {XSPAN + b*8*XRT}")
        k("s_lshl_b32 s12, s14, 10")
        k("s_add_u32 s12, s12, s13")
        k(f"buffer_store_dwordx4 v[{X1R[b]}:{X1R[b]+3}], {VL16}, {srd(SX)}, s12 offen sc1", tag="xst")
        k(f"buffer_store_dwordx2 v[{X1R[b]+4}:{X1R[b]+5}], {VT4S}, {srd(SX)}, s13 offen offset:2048 sc1", tag="xst")
        for d in range(6):
            unpack(k, f"v{x2+2*d}", f"v{x2+2*d+1}", f"v{X1R[b]+d}")

    def stats1(b, STx):
        poll(st1_loads(b, TMP + 24), [f"v{TMP+25}", f"v{TMP+27}"], f"v{TMP+20}")
        for tn in range(2):
            finish_stats(f"v{TMP+24+2*tn}", f"v{TMP+25+2*tn}", STx[tn])

    def stats3(b, STx):
        poll(st3_loads(b, TMP), [f"v{TMP+1+2*i}" for i in range(8)], f"v{TMP+20}")
        for tn in range(2):
            sum_granules(TMP + 8 * tn, 4, f"v{TMP+20}")
            finish_stats(f"v{TMP+8*tn}", f"v{TMP+8*tn+1}", STx[tn])

    def res_loads(b):
        return [f"s_add_u32 s13, s59, {b*8*XRT}", "s_lshl_b32 s12, s14, 10", "s_add_u32 s12, s12, s13",
                f"buffer_load_dwordx4 v[{X1R[b]}:{X1R[b]+3}], {VL16}, {srd(SX)}, s12 offen",
                f"buffer_load_dwordx2 v[{X1R[b]+4}:{X1R[b]+5}], {VT4}, {srd(SX)}, s13 offen offset:2048",
                f"buffer_load_dwordx4 v[{YR[b]}:{YR[b]+3}], {VL16}, {srd(SY_)}, s12 offen",
                f"buffer_load_dwordx2 v[{YR[b]+4}:{YR[b]+5}], {VT4}, {srd(SY_)}, s13 offen offset:2048"]

    def out_store(b, src):
        for d in range(6):
            k(f"v_cvt_pk_bf16_f32 v{TMP+d}, v{src+2*d}, v{src+2*d+1}")
        k(f"v_mul_u32_u24 v{TMP+8}, 1280, {VROW}")
        k("s_mul_i32 s12, s8, 160")
        k(f"s_add_u32 s12, s12, {b*128*1280}")
        k("s_lshl_b32 s13, s14, 6")
        k("s_add_u32 s13, s13, s12")
        k(f"v_lshl_add_u32 v{TMP+9}, v3, 4, v{TMP+8}")
        k(f"v_lshl_add_u32 v{TMP+10}, v3, 3, v{TMP+8}")
        k("s_lshl_b32 s10, s14, 31")
        k(f"v_or_b32 v{TMP+10}, s10, v{TMP+10}")
        k(f"buffer_store_dwordx4 v[{TMP}:{TMP+3}], v{TMP+9}, {srd(SO)}, s13 offen")
        k(f"buffer_store_dwordx2 v[{TMP+4}:{TMP+5}], v{TMP+10}, {srd(SO)}, s12 offen offset:128")

    def g1b_sched(layer, extra):
        sched = {}
        hl = [h_loads(layer, 0, kk, 80 + 2 * kk) for kk in range(12)]
        for kk in range(20):
            L = []
            if kk + DIST < 20:
                L += x_loads(layer, 1, kk + DIST, 40 + 2 * (kk + DIST))
            L += extra.get(kk, [])
            if kk == 3:
                L += [lambda: h_flag(layer, 0)]
            if kk == 11:
                L += h_poll_loads(layer, 0)
            if kk == 14:
                L = [lambda: h_poll(layer, 0)] + L
            if kk >= 14:
                while hl and (12 - len(hl)) + 8 < kk and len([x for x in L if isvm(x)]) < 6:
                    L += hl.pop(0)
            sched[kk] = L
        return sched, hl

    sched = {}
    for kk in range(20):
        L = []
        p = kk // 2 + PRE
        if p < 10:
            if kk % 2 == 0:
                L += wgu_dma(p) + x_loads(0, 0, 2 * p, 4 * p)
            else:
                L += x_loads(0, 0, 2 * p + 1, 4 * p + 2)
        else:
            kb = kk + DIST - 20
            L += x_loads(0, 1, kb, 40 + 2 * kb)
            for i in range(3):
                L += wd_load(3 * (kk - 12) + i)
        if kk == 12:
            L = st1_loads(0, TMP + 24) + L
        sched[kk] = L
    g1_main(0, sched, first=True)
    stamp("g1a")
    stats1(0, STA)
    g1_epilogue(0, 0, STA)
    stamp("e1a")
    extra = {}
    wi = 24
    for kk in range(12):
        extra[kk] = []
        for _ in range(3):
            extra[kk] += wd_load(wi)
            wi += 1
    assert wi == 60
    extra[12] = st1_loads(1, TMP + 24) + res_loads(0)
    extra[13] = res_loads(1)
    sched, rest = g1b_sched(0, extra)
    g1_main(40, sched)
    stamp("g1b")
    for L in rest:
        for x in L:
            emit(x)
    stats1(1, STA)
    g1_epilogue(0, 1, STA)
    stamp("e1b")

    def g2a(layer):
        g2_main(80, {4: [lambda: h_flag(layer, 1)], 11: h_poll_loads(layer, 1)})
        stamp(f"g2a{layer}")
        h_poll(layer, 1)
        stamp(f"ph{layer}")
        for kk in range(12):
            for x in h_loads(layer, 1, kk, 2 * kk):
                emit(x)

    g2a(0)
    g2_reduce(X1R[0], X2[0])
    part_stats(X2[0], 0, SY_ST2)
    stamp("r2a")
    g2_main(0, {9: st2_loads(0, G2R)})
    stamp("g2b")
    finalize(0, X2[0], G2R)
    g2_reduce(X1R[1], X2[1])
    part_stats(X2[1], 1, SY_ST2)
    part_stats(X2[0], 0, SY_ST3, pre_wait="xst")
    stamp("s3a")
    for x in st2_loads(1, G2R):
        emit(x)
    finalize(1, X2[1], G2R)
    for x in st3_loads(0, TMP):
        emit(x)
    part_stats(X2[1], 1, SY_ST3, pre_wait="xst")
    stamp("fin")
    stats3(0, STA)
    stamp("p3a")
    for kk in range(DIST):
        for x in x_loads(1, 0, kk, 2 * kk):
            emit(x)
    sched = {}
    for kk in range(20):
        L = []
        if kk + DIST < 20:
            L += x_loads(1, 0, kk + DIST, 2 * (kk + DIST))
        else:
            kb = kk + DIST - 20
            L += x_loads(1, 1, kb, 40 + 2 * kb)
        if kk == 5:
            L = st3_loads(1, TMP) + L
        if kk == 12:
            L = [lambda: stats3(1, STB)] + L
        sched[kk] = L
    g1_main(0, sched)
    stamp("g1a'")
    g1_epilogue(1, 0, STA)
    stamp("e1a'")
    sched, rest = g1b_sched(1, {})
    g1_main(40, sched)
    stamp("g1b'")
    for L in rest:
        for x in L:
            emit(x)
    g1_epilogue(1, 1, STB)
    stamp("e1b'")
    g2a(1)
    g2_reduce(X1R[0], X2[0])
    out_store(0, X2[0])
    stamp("r2a'")
    g2_main(0, {})
    g2_reduce(X1R[1], X2[1])
    out_store(1, X2[1])
    k.prof_end(5, 24, 3)
    k.label("ffn_end", flush=False)
    k("s_endpgm")
    k.raw("ffn_code_end:")
    return k


if __name__ == "__main__":
    if os.environ.get("PROF"):
        Kern.PROF = True
    prep = gen_prep()
    conv = gen_conv()
    ffn = gen_ffn()
    kerns = [prep, conv, ffn]
    out = sys.argv[1] if len(sys.argv) > 1 else "v4.s"
    open(out, "w").write(build_file(HEADER, kerns, kerns))
    json.dump(PROFINFO, open(out + ".prof.json", "w"))
    for kk in kerns:
        print(kk.name, "instrs", kk.nins, "vgpr", kk.maxv + 1, "agpr", kk.maxa + 1, "sgpr", kk.maxs + 1, "lds", kk.lds)
```

```python
from gen4_head import *
import gen4

FSTAMPS = os.environ.get("FSTAMPS", "").split(",")
PF_WGU = int(os.environ.get("PF_WGU", "0"))
PF_WD = int(os.environ.get("PF_WD", "0"))
WARM = int(os.environ.get("WARM", "0"))


def gen_front(ffn_label=None, ffn_bytes=0):
    CP = 4160
    UOFF = 4 * CP
    WREG = 4 * CP + 4608
    NPREP = 96
    k = Kern("front_kernel", lds=4 * WREG, grid=256, block=512)

    def stamp(n):
        if n in FSTAMPS:
            k.stamp(n)

    def poll_counter(target, vtmp, vzero):
        ok = k.newlabel("ok")
        lp = k.newlabel("spin")
        k("s_mov_b32 s23, 0")
        k.label(lp, flush=False)
        k(f"buffer_load_dword {vtmp}, {vzero}, s[60:63], 0 offen sc1")
        k.wait(vm=0)
        k(f"v_readfirstlane_b32 s22, {vtmp}")
        k(f"s_cmp_ge_u32 s22, {target}")
        k.branch(f"s_cbranch_scc1 {ok}", flush=False)
        k("s_sleep 8")
        k("s_add_u32 s23, s23, 1")
        k(f"s_cmp_lt_u32 s23, {SPIN_MAX}")
        k.branch(f"s_cbranch_scc1 {lp}", flush=False)
        k.label(ok, flush=False)

    k.prof_begin()
    k(f"s_cmp_ge_u32 s2, {k.grid}")
    k.branch("s_cbranch_scc1 front_end", flush=False)
    k("s_load_dwordx16 s[64:79], s[0:1], 0") if False else None
    k("s_load_dwordx8 s[24:31], s[0:1], 0")
    k("s_load_dwordx4 s[32:35], s[0:1], 32")
    k("s_load_dwordx4 s[36:39], s[0:1], 56")
    k("s_load_dwordx2 s[40:41], s[0:1], 72")
    k("s_load_dwordx4 s[16:19], s[0:1], 88")
    k("v_lshrrev_b32 v1, 6, v0")
    k("v_and_b32 v2, 63, v0")
    k("v_readfirstlane_b32 s3, v1")
    k("s_and_b32 s4, s2, 7")
    k("s_lshr_b32 s5, s2, 3")
    k("v_lshlrev_b32 v3, 4, v2")
    k.wait(lg=0)
    k.srd(60, 16, 256)
    k("s_cmp_lt_u32 s5, 12")
    k.branch("s_cbranch_scc1 front_prep")

    k("s_sub_u32 s5, s5, 12")
    if WARM:
        k("s_lshr_b32 s6, s5, 3")
        k("s_cmp_eq_u32 s6, 0")
        k("s_cselect_b32 s44, s26, s28")
        k("s_cselect_b32 s45, s27, s29")
        k("s_cmp_eq_u32 s6, 2")
        k("s_cselect_b32 s44, s24, s44")
        k("s_cselect_b32 s45, s25, s45")
        k(f"s_mov_b32 s46, {S*D*2}")
        k("s_mov_b32 s47, 0x00020000")
        k(f"s_mov_b32 s8, {0x70000000:#x}")
        k(f"s_cmov_b32 s8, {1024*1280}")
        k("s_and_b32 s7, s5, 7")
        k("s_lshl_b32 s7, s7, 8")
        k("v_lshrrev_b32 v4, 1, v0")
        k("v_add_u32 v4, s7, v4")
        k("v_mul_u32_u24 v4, 1280, v4")
        k("v_and_b32 v5, 1, v0")
        k("v_lshl_add_u32 v4, v5, 7, v4")
        k("s_mul_i32 s7, s4, 160")
        k("s_and_b32 s7, s7, 0xffffff80")
        k("buffer_load_dword v6, v4, s[44:47], s7 offen")
        k("s_add_u32 s7, s7, s8")
        k("buffer_load_dword v7, v4, s[44:47], s7 offen")
    k("s_mul_i32 s4, s4, 10")
    k("s_lshr_b32 s6, s5, 1")
    k("s_add_u32 s4, s4, s6")
    k("s_and_b32 s5, s5, 1")
    k("s_lshl_b32 s6, s4, 3")
    k("s_lshl_b32 s7, s5, 2")
    k("s_add_u32 s6, s6, s7")
    k("s_and_b32 s14, s3, 3")
    k("s_lshr_b32 s15, s3, 2")
    k("s_add_u32 s7, s6, s14")
    k.srd(44, 26, S * D * 2)
    k.srd(48, 28, S * D * 2)
    k("s_lshl_b32 s10, s3, 8")
    k("v_lshlrev_b32 v4, 2, v2")
    k("v_add_u32 v4, s10, v4")
    k("v_mul_u32_u24 v5, 1280, v4")
    k("s_lshl_b32 s11, s6, 1")
    k("v_add_u32 v5, s11, v5")
    if WARM:
        k.wait(vm=0)
        stamp("warm")
    KR, VR, HR = 16, 24, 32
    for i in range(4):
        k(f"buffer_load_dwordx2 v[{KR+2*i}:{KR+2*i+1}], v5, s[44:47], 0 offen offset:{i*1280}")
    for i in range(4):
        k(f"buffer_load_dwordx2 v[{VR+2*i}:{VR+2*i+1}], v5, s[48:51], 0 offen offset:{i*1280}")
    k("v_cmp_eq_u32 vcc, 0, v2")
    k(f"v_mov_b32 v7, {OOB:#x}")
    for j in range(1, 4):
        k(f"v_add_u32 v6, {((j-4)*1280) & 0xffffffff:#x}, v5")
        k("v_cndmask_b32 v6, v7, v6, vcc")
        k(f"buffer_load_dwordx2 v[{HR+2*(j-1)}:{HR+2*(j-1)+1}], v6, s[44:47], 0 offen")
    k.srd(52, 30, D * 8)
    k("s_lshl_b32 s10, s6, 3")
    k("v_mov_b32 v6, s10")
    WR = 40
    k(f"buffer_load_dwordx4 v[{WR}:{WR+3}], v6, s[52:55], 0 offen")
    k(f"buffer_load_dwordx4 v[{WR+4}:{WR+7}], v6, s[52:55], 0 offen offset:16")
    k("s_lshl_b32 s8, s7, 12")
    k("s_add_u32 s52, s32, s8")
    k("s_addc_u32 s53, s33, 0")
    k("s_mov_b32 s54, 4096")
    k("s_lshl_b32 s10, s15, 11")
    k("v_add_u32 v8, s10, v3")
    HB = 48
    for p in range(2):
        k(f"buffer_load_dwordx4 v[{HB+8*p+4}:{HB+8*p+7}], v8, s[52:55], 0 offen offset:{p*1024}")
        k(f"v_add_u32 v6, {(p*1024-8) & 0xffffffff:#x}, v8")
        k(f"buffer_load_dwordx2 v[{HB+8*p+2}:{HB+8*p+3}], v6, s[52:55], 0 offen")
    k.srd(56, 34, D * 2)
    k("s_lshl_b32 s10, s7, 1")
    k("v_mov_b32 v6, s10")
    k("buffer_load_ushort v9, v6, s[56:59], 0 offen")
    stamp("issued")
    k(f"s_mul_i32 s9, s14, {WREG}")
    k("v_mov_b32 v10, 0")
    k("v_mov_b32 v11, 0")
    k("v_lshlrev_b32 v6, 3, v2")
    k("v_add_u32 v6, s9, v6")
    k(f"ds_write_b64 v6, v[10:11] offset:{UOFF+4096}")
    k("v_bfe_u32 v6, v2, 2, 2")
    k(f"v_mul_u32_u24 v6, {CP}, v6")
    k("v_and_b32 v7, 3, v2")
    k("v_lshl_add_u32 v6, v7, 3, v6")
    k("v_add_u32 v6, s9, v6")
    k("ds_write_b64 v6, v[10:11]")
    WF = 64
    for c in range(4):
        unpack(k, f"v{WF+4*c}", f"v{WF+4*c+1}", f"v{WR+2*c}")
        unpack(k, f"v{WF+4*c+2}", f"v{WF+4*c+3}", f"v{WR+2*c+1}")
    for j in range(1, 4):
        for d in range(2):
            k(f"v_mov_b32_dpp v{HR+2*(j-1)+d}, v{KR+2*j+d} wave_shr:1 row_mask:0xf bank_mask:0xf")
    k("v_lshlrev_b32 v6, 1, v4")
    k(f"v_sub_u32 v6, {UOFF+4088}, v6")
    KF, VF, OUT = 80, 96, 104
    rows = [HR, HR + 2, HR + 4, KR, KR + 2, KR + 4, KR + 6]
    for cp in range(2):
        for j in range(7):
            unpack(k, f"v{KF+2*j}", f"v{KF+2*j+1}", f"v{rows[j]+cp}")
        for i in range(4):
            unpack(k, f"v{VF+2*i}", f"v{VF+2*i+1}", f"v{VR+2*i+cp}")
        for h in range(2):
            c = 2 * cp + h
            for i in range(4):
                o = f"v{OUT+i}"
                k(f"v_mul_f32 {o}, v{KF+2*(i+0)+h}, v{WF+4*c+3}")
                k(f"v_fmac_f32 {o}, v{KF+2*(i+1)+h}, v{WF+4*c+2}")
                k(f"v_fmac_f32 {o}, v{KF+2*(i+2)+h}, v{WF+4*c+1}")
                k(f"v_fmac_f32 {o}, v{KF+2*(i+3)+h}, v{WF+4*c+0}")
                k(f"v_mul_f32 {o}, {o}, v{VF+2*i+h}")
            p = 108 + 2 * (c & 1)
            k(f"v_cvt_pk_bf16_f32 v{p}, v{OUT+3}, v{OUT+2}")
            k(f"v_cvt_pk_bf16_f32 v{p+1}, v{OUT+1}, v{OUT+0}")
            k(f"ds_write_b64 v6, v[{p}:{p+1}] offset:{c*WREG}")
    stamp("kv")
    k("v_add_u32 v13, s9, v8")
    T = 80
    for p in range(2):
        b = HB + 8 * p
        seq = [f"v{b+2+i}" for i in range(6)]
        off = 32 + p * 1024
        k(f"ds_write_b128 v13, v[{b+4}:{b+7}] offset:{off}")
        for j in range(4):
            k(f"v_alignbyte_b32 v{T+j}, {seq[2+j]}, {seq[1+j]}, 2")
        k(f"ds_write_b128 v13, v[{T}:{T+3}] offset:{off+CP}")
        for j in range(4):
            k(f"v_mov_b32 v{T+4+j}, {seq[1+j]}")
        k(f"ds_write_b128 v13, v[{T+4}:{T+7}] offset:{off+2*CP}")
        for j in range(4):
            k(f"v_alignbyte_b32 v{T+8+j}, {seq[1+j]}, {seq[j]}, 2")
        k(f"ds_write_b128 v13, v[{T+8}:{T+11}] offset:{off+3*CP}")
        T += 12
    k("v_and_b32 v4, 15, v2")
    k("v_lshrrev_b32 v5, 4, v2")
    k("v_sub_u32 v7, 3, v4")
    k("v_and_b32 v7, 3, v7")
    k("v_add3_u32 v8, v4, v7, 1")
    k("v_lshl_add_u32 v8, v5, 3, v8")
    k("v_lshlrev_b32 v8, 1, v8")
    k(f"v_mul_u32_u24 v7, {CP}, v7")
    k("v_add3_u32 v14, v7, v8, s9")
    k("v_lshlrev_b32 v7, 5, v4")
    k("v_lshlrev_b32 v8, 4, v5")
    k("v_sub_u32 v8, v8, v7")
    k(f"v_add_u32 v8, {UOFF+480}, v8")
    k("v_add_u32 v15, s9, v8")
    k("v_lshlrev_b32 v9, 16, v9")
    k.srd(44, 24, S * D * 2)
    k.srd(48, 18, S * 8, WS_QST)
    k.srd(52, 18, XFB, WS_Y)
    k.srd(56, 18, XFB, WS_X1)
    k("s_lshl_b32 s10, s3, 8")
    k("v_add_u32 v10, s10, v2")
    k("v_mul_u32_u24 v11, 1280, v10")
    k("v_add_u32 v11, s11, v11")
    k("v_lshlrev_b32 v12, 3, v10")
    QB = 112
    for it in range(4):
        k(f"s_mov_b32 s12, {it*64*1280}")
        k(f"buffer_load_dwordx2 v[{QB+4*it}:{QB+4*it+1}], v11, s[44:47], s12 offen")
    k.wait(lg=0)
    k.barrier()
    stamp("ready")
    AB = [16, 48]
    ACC = 80
    k("s_cmp_eq_u32 s15, 1")
    k.branch("s_cbranch_scc1 front_part1", flush=False)
    saved = (list(k.vm), list(k.lg))
    for part, Cs in enumerate(([0, 3, 4, 7], [1, 2, 5, 6])):
        if part:
            k.label("front_part1", flush=False)
            k.vm, k.lg = list(saved[0]), list(saved[1])

        def breg(ci, r):
            return 32 * ci + 4 * r

        def rdA(I):
            L = []
            for r in range(8):
                i = 8 * I + r
                b = AB[I & 1] + 4 * r
                L.append(f"ds_read_b64 v[{b}:{b+1}], v14 offset:{64*i}")
                L.append(f"ds_read_b64 v[{b+2}:{b+3}], v14 offset:{64*i+8}")
            return L

        def rdB(ci):
            return [f"ds_read_b128 a[{breg(ci,r)}:{breg(ci,r)+3}], v15 offset:{64*(56-(8*Cs[ci]-r))}" for r in range(8)]

        a0, b0 = rdA(0), rdB(0)
        for r in range(8):
            k(a0[2 * r]); k(a0[2 * r + 1]); k(b0[r])
        started = set()
        nI = 8 - Cs[0]
        for I in range(nI):
            pend = rdA(I + 1) if I + 1 < nI else []
            cis = [ci for ci in range(4) if Cs[ci] + I <= 7]
            nm = len(cis) * 8
            cnt = 0
            for ci in cis:
                c = Cs[ci] + I
                nb = rdB(ci + 1) if (I == 0 and ci < 3) else []
                for r in range(8):
                    if nb:
                        k(nb.pop(0))
                    a = AB[I & 1] + 4 * r
                    acc = f"v[{ACC+4*c}:{ACC+4*c+3}]"
                    src = acc if c in started else "0"
                    started.add(c)
                    k(f"v_mfma_f32_16x16x32_bf16 {acc}, v[{a}:{a+3}], a[{breg(ci,r)}:{breg(ci,r)+3}], {src}")
                    cnt += 1
                    while pend and (16 - len(pend)) * max(nm - 4, 4) < cnt * 16:
                        k(pend.pop(0))
            for p_ in pend:
                k(p_)
        for c in range(8):
            if c not in started:
                for i in range(4):
                    k(f"v_mov_b32 v{ACC+4*c+i}, 0")
        stamp("mfma") if part == 0 else None
        if part == 1 and "mfma" in FSTAMPS and Kern.PROF:
            i = k.stamps.index("mfma")
            k(f"s_memtime s[{64+2*i}:{65+2*i}]")
        k.wait(lg=0)
        k.barrier()
        k("v_add_u32 v6, s9, v3")
        for n in range(4):
            c = 2 * n + (1 - part)
            k(f"ds_write_b128 v6, v[{ACC+4*c}:{ACC+4*c+3}] offset:{CP+part*4096+n*1024}")
        k("v_lshlrev_b32 v7, 5, v4")
        k("v_lshl_add_u32 v7, v5, 3, v7")
        k(f"v_sub_u32 v8, {UOFF+504}, v7")
        k("v_add_u32 v8, s9, v8")
        k("v_add_u32 v13, s9, v7")
        KV = 16
        for n in range(4):
            c = 2 * n + part
            k(f"ds_read_b64 v[{KV+2*n}:{KV+2*n+1}], v8 offset:{(7-c)*512}")
        for n in range(4):
            a = ACC + 4 * (2 * n + part)
            unpack(k, "v24", "v25", f"v{KV+2*n}")
            unpack(k, "v26", "v27", f"v{KV+2*n+1}")
            k(f"v_fmac_f32 v{a+3}, v24, v9")
            k(f"v_fmac_f32 v{a+2}, v25, v9")
            k(f"v_fmac_f32 v{a+1}, v26, v9")
            k(f"v_fmac_f32 v{a+0}, v27, v9")
        k.wait(lg=0)
        k.barrier()
        for n in range(4):
            k(f"ds_read_b128 v[{32+4*n}:{35+4*n}], v6 offset:{CP+(1-part)*4096+n*1024}")
        for n in range(4):
            c = 2 * n + part
            a = ACC + 4 * c
            for i in (0, 2):
                k(f"v_pk_add_f32 v[{a+i}:{a+i+1}], v[{a+i}:{a+i+1}], v[{32+4*n+i}:{33+4*n+i}]")
            o = 28 + 2 * (n & 1)
            k(f"v_cvt_pk_bf16_f32 v{o}, v{a}, v{a+1}")
            k(f"v_cvt_pk_bf16_f32 v{o+1}, v{a+2}, v{a+3}")
            k(f"ds_write_b64 v13, v[{o}:{o+1}] offset:{c*512}")
        k.wait(lg=0)
        k.flush_hazards()
        if part == 0:
            k.branch("s_branch front_join", flush=False)
    k.label("front_join", flush=False)
    k("v_mov_b32 v16, 0")
    poll_counter(NPREP, "v17", "v16")
    for it in range(4):
        k(f"buffer_load_dwordx2 v[{QB+4*it+2}:{QB+4*it+3}], v12, s[48:51], 0 offen offset:{it*512} sc1")
    k.barrier()
    stamp("bar")
    k("v_bfe_u32 v7, v2, 2, 2")
    k(f"v_mul_u32_u24 v7, {WREG}, v7")
    k("v_and_b32 v8, 3, v2")
    k("v_lshl_add_u32 v7, v8, 3, v7")
    k("v_lshl_add_u32 v7, v5, 5, v7")
    k("s_lshl_b32 s10, s3, 9")
    k("v_add_u32 v7, s10, v7")
    YB = 48
    for it in range(4):
        k(f"ds_read_b64_tr_b16 v[{YB+2*it}:{YB+2*it+1}], v7 offset:{it*128}")
    k("v_lshrrev_b32 v9, 4, v10")
    k(f"v_mul_u32_u24 v9, {XRT}, v9")
    k("v_lshl_add_u32 v9, v4, 4, v9")
    k("s_lshl_b32 s10, s4, 8")
    k("s_lshl_b32 s11, s5, 3")
    k("s_add_u32 s10, s10, s11")
    k("v_add_u32 v9, s10, v9")
    for it in range(4):
        y0, y1 = YB + 2 * it, YB + 2 * it + 1
        k(f"s_mov_b32 s{12+it}, {it*4*XRT}")
        k(f"buffer_store_dwordx2 v[{y0}:{y1}], v9, s[52:55], s{12+it} offen")
    for it in range(4):
        y0, y1 = YB + 2 * it, YB + 2 * it + 1
        q0, q1, mr, r = (QB + 4 * it + i for i in range(4))
        unpack(k, "v16", "v17", f"v{y0}")
        unpack(k, "v18", "v19", f"v{y1}")
        unpack(k, "v20", "v21", f"v{q0}")
        unpack(k, "v22", "v23", f"v{q1}")
        for i in range(4):
            k(f"v_fma_f32 v{24+i}, v{20+i}, v{r}, -v{mr}")
            k(f"v_fmac_f32 v{20+i}, v{24+i}, v{16+i}")
        o = 28 + 2 * (it & 1)
        k(f"v_cvt_pk_bf16_f32 v{o}, v20, v21")
        k(f"v_cvt_pk_bf16_f32 v{o+1}, v22, v23")
        k(f"buffer_store_dwordx2 v[{o}:{o+1}], v9, s[56:59], s{12+it} offen")
    k.prof_end(0, 18, 3, names="front_conv")
    k("s_endpgm")

    k.label("front_prep")
    k.stamps = ["start"]
    k("s_mov_b32 s10, 0x05040100")
    k("s_mov_b32 s11, 0x07060302")
    k("s_cmp_lt_u32 s2, 64")
    k("s_cselect_b32 s20, 1, 0")
    k("s_movk_i32 s12, 6554"); k("s_cmovk_i32 s12, 10923")
    k("s_cselect_b32 s13, 6, 10")
    k("v_mul_u32_u24 v4, s12, v0")
    k("v_lshrrev_b32 v4, 16, v4")
    k("v_mul_u32_u24 v5, s13, v4")
    k("v_sub_u32 v5, v0, v5")
    k("s_and_b32 s14, s2, 1")
    k("s_cmp_eq_u32 s14, 0")
    k("s_cselect_b32 s44, s36, s38")
    k("s_cselect_b32 s45, s37, s39")
    k("s_cmp_eq_u32 s20, 1")
    k("s_cselect_b32 s44, s44, s40")
    k("s_cselect_b32 s45, s45, s41")
    k(f"s_mov_b32 s46, {D*F*2}")
    k("s_mov_b32 s47, 0x00020000")
    k("s_movk_i32 s15, 1280"); k("s_cmovk_i32 s15, 3072")
    k("s_lshr_b32 s6, s2, 1")
    k("s_mul_i32 s7, s6, 96")
    k("s_sub_u32 s8, s2, 64")
    k("s_lshr_b32 s9, s8, 2")
    k("s_mul_i32 s9, s9, 160")
    k("s_and_b32 s21, s8, 3")
    k(f"s_mul_i32 s21, s21, {384*1280}")
    k("s_add_u32 s9, s9, s21")
    k("s_cmp_eq_u32 s20, 1")
    k("s_cselect_b32 s7, s7, s9")
    k("s_lshl_b32 s9, s15, 3")
    k("v_mul_u32_u24 v6, s9, v4")
    k("v_lshl_add_u32 v6, v5, 4, v6")
    k("v_cmp_gt_u32 vcc, 480, v0")
    k(f"v_mov_b32 v7, {OOB:#x}")
    k("v_cndmask_b32 v6, v7, v6, vcc")
    for i in range(8):
        k(f"buffer_load_dwordx4 v[{16+4*i}:{19+4*i}], v6, s[44:47], s7 offen")
        if i < 7:
            k("s_add_u32 s7, s7, s15")
    k.srd(48, 24, S * D * 2)
    k("s_lshl_b32 s7, s2, 5")
    k("s_lshl_b32 s9, s3, 2")
    k("s_add_u32 s7, s7, s9")
    k("v_lshrrev_b32 v8, 4, v2")
    k("v_add_u32 v8, s7, v8")
    k("v_and_b32 v9, 15, v2")
    k("v_mul_u32_u24 v10, 1280, v8")
    k("v_lshl_add_u32 v10, v9, 4, v10")
    for i in range(5):
        k(f"buffer_load_dwordx4 v[{80+4*i}:{83+4*i}], v10, s[48:51], 0 offen offset:{256*i}")
    k.srd(52, 18, SYNCB, WS_SYNC)
    k("s_lshl_b32 s7, s2, 14")
    k("v_lshlrev_b32 v11, 4, v0")
    for i in range(4):
        k(f"v_mov_b32 v{12+i}, 0")
    k("buffer_store_dwordx4 v[12:15], v11, s[52:55], s7 offen sc1")
    k("s_add_u32 s7, s7, 8192")
    k("buffer_store_dwordx4 v[12:15], v11, s[52:55], s7 offen sc1")
    if ffn_label:
        k("s_getpc_b64 s[56:57]")
        k.raw("front_pc:")
        k(f"s_add_u32 s56, s56, {ffn_label}-front_pc")
        k("s_addc_u32 s57, s57, 0")
        k(f"s_mov_b32 s58, ffn_code_end-{ffn_label}")
        k("s_mov_b32 s59, 0x00020000")
        k("s_lshl_b32 s7, s5, 13")
        k("buffer_load_dwordx4 v[100:103], v11, s[56:59], s7 offen")
    k("s_cmp_eq_u32 s20, 1")
    k("s_movk_i32 s12, 5120"); k("s_cmovk_i32 s12, 3072")
    k("s_cselect_b32 s13, 4, 8")
    k("v_lshrrev_b32 v48, 2, v4")
    k("v_mul_u32_u24 v48, s12, v48")
    k("v_and_b32 v49, 3, v4")
    k("v_lshl_add_u32 v48, v49, 8, v48")
    k("v_lshrrev_b32 v49, 2, v5")
    k("v_lshl_add_u32 v48, v49, 11, v48")
    k("v_and_b32 v49, 3, v5")
    k("v_lshlrev_b32 v50, 6, v49")
    k("v_lshlrev_b32 v51, 7, v49")
    k("v_cmp_gt_u32 vcc, s13, v5")
    k("v_cndmask_b32 v50, v51, v50, vcc")
    k("v_add_u32 v6, v48, v50")
    k("v_mov_b32 v50, 64")
    k("v_mov_b32 v51, 1024")
    k("v_cndmask_b32 v50, v50, v51, vcc")
    k("v_add_u32 v7, v6, v50")
    for e in range(8):
        o = 48 + 4 * e
        for p in range(4):
            k(f"v_perm_b32 v{o+p}, v{16+4*(2*p+1)+e//2}, v{16+4*(2*p)+e//2}, s{10+(e&1)}")
        k(f"ds_write_b128 v{6 if e < 4 else 7}, v[{o}:{o+3}] offset:{(e&3)*16}")
    XF0 = 16
    for i in range(20):
        unpack(k, f"v{XF0+2*i}", f"v{XF0+2*i+1}", f"v{80+i}") if i < 16 else unpack(k, f"v{104+2*(i-16)}", f"v{105+2*(i-16)}", f"v{80+i}")
    xr = [XF0 + i for i in range(32)] + [104 + i for i in range(8)]
    k(f"v_add_f32 v12, v{xr[0]}, v{xr[1]}")
    k(f"v_add_f32 v13, v{xr[2]}, v{xr[3]}")
    for i in range(4, 40, 2):
        k(f"v_add_f32 v12, v12, v{xr[i]}")
        k(f"v_add_f32 v13, v13, v{xr[i+1]}")
    k("v_add_f32 v12, v12, v13")
    reduce16(k, "v12", None)
    k(f"v_mul_f32 v12, {f2u(1.0/D)}, v12")
    k("v_mov_b32 v13, 0")
    k("v_mov_b32 v14, 0")
    for i in range(0, 40, 2):
        k(f"v_sub_f32 v112, v{xr[i]}, v12")
        k(f"v_sub_f32 v113, v{xr[i+1]}, v12")
        k("v_fmac_f32 v13, v112, v112")
        k("v_fmac_f32 v14, v113, v113")
    k("v_add_f32 v13, v13, v14")
    reduce16(k, "v13", None)
    k(f"v_mov_b32 v14, {f2u(EPS)}")
    k(f"v_fmac_f32 v14, {f2u(1.0/D)}, v13")
    k("v_rsq_f32 v113, v14")
    k("v_mul_f32 v112, v12, v113")
    k.srd(48, 18, S * 8, WS_QST)
    k("v_lshlrev_b32 v8, 3, v8")
    k("v_cmp_eq_u32 vcc, 0, v9")
    k(f"v_mov_b32 v10, {OOB:#x}")
    k("v_cndmask_b32 v8, v10, v8, vcc")
    k("buffer_store_dwordx2 v[112:113], v8, s[48:51], 0 offen sc1")
    k.wait(lg=0)
    k.barrier()
    k("s_cmp_ge_u32 s3, 6")
    k.branch("s_cbranch_scc1 front_prep_sync")
    k("s_cmp_ge_u32 s3, 3")
    k("s_cselect_b32 s12, 1, 0")
    k("s_lshl_b32 s13, s3, 10")
    k("v_add_u32 v6, s13, v3")
    k(f"s_mul_i32 s7, s6, {WGU_M}")
    k("s_mul_i32 s9, s14, 3072")
    k("s_add_u32 s7, s7, s9")
    k("s_mul_i32 s9, s12, 3072")
    k("s_add_u32 s7, s7, s9")
    k("s_add_u32 s7, s7, s13")
    k(f"s_add_u32 s7, s7, {WS_WGU}")
    k("s_mul_i32 s9, s8, 61440")
    k("s_add_u32 s9, s9, s13")
    k(f"s_add_u32 s9, s9, {WS_WD}")
    k("s_cmp_eq_u32 s20, 1")
    k("s_cselect_b32 s7, s7, s9")
    k("s_movk_i32 s9, 6144"); k("s_cmovk_i32 s9, 12288")
    k.srd(44, 18, WS_WD + WDB)
    for j in range(10):
        k(f"ds_read_b128 v[{16+4*j}:{19+4*j}], v6 offset:{j*6144}")
    k("v_mov_b32 v12, 0x3f803f80")
    k("v_mov_b32 v13, 0")
    for j in range(10):
        k(f"buffer_store_dwordx4 v[{16+4*j}:{19+4*j}], v3, s[44:47], s7 offen sc1")
        k("s_add_u32 s7, s7, s9")
        for p in range(4):
            k(f"v_dot2c_f32_bf16 v13, v{16+4*j+p}, v12")
    xsum16(k, "v13", "v14")
    xsum32(k, "v13", "v14")
    k("v_and_b32 v14, 15, v2")
    k("v_lshlrev_b32 v14, 2, v14")
    k("s_lshl_b32 s13, s3, 6")
    k("v_add_u32 v14, s13, v14")
    k("ds_write_b32 v14, v13 offset:65024")
    k.label("front_prep_sync")
    k.barrier()
    k("s_cmp_lg_u32 s3, 0")
    k.branch("s_cbranch_scc1 front_prep_pf")
    k("v_lshlrev_b32 v14, 2, v2")
    k("ds_read_b32 v16, v14 offset:65024")
    k("ds_read_b32 v17, v14 offset:65216")
    k.srd(44, 18, 32 * 512, WS_CS)
    k("v_cmp_gt_u32 vcc, 48, v2")
    k(f"v_mov_b32 v15, {OOB:#x}")
    k("v_cndmask_b32 v14, v15, v14, vcc")
    k("s_lshl_b32 s7, s6, 9")
    k("s_mul_i32 s9, s14, 192")
    k("s_add_u32 s7, s7, s9")
    k("v_add_f32 v16, v16, v17")
    k("buffer_store_dword v16, v14, s[44:47], s7 offen sc1")
    k.wait(vm=0)
    k("v_mov_b32 v16, 1")
    k("v_cmp_eq_u32 vcc, 0, v2")
    k("v_cndmask_b32 v14, v15, v2, vcc")
    k("buffer_atomic_add v16, v14, s[60:63], 0 offen sc1")
    k.label("front_prep_pf")
    stamp("pub")
    if PF_WGU or PF_WD:
        k("v_mov_b32 v16, 0")
        poll_counter(NPREP, "v17", "v16")
        k.srd(44, 18, WS_WD + WDB)
        k("s_lshl_b32 s7, s5, 3")
        k("s_add_u32 s7, s7, s3")
        k("s_mul_i32 s8, s7, 171")
        k("s_lshr_b32 s8, s8, 9")
        k("s_mul_i32 s9, s8, 3")
        k("s_sub_u32 s9, s7, s9")
        k(f"s_mul_i32 s8, s8, {WGU_M}")
        k("s_lshl_b32 s9, s9, 11")
        k("s_add_u32 s8, s8, s9")
        k(f"s_add_u32 s8, s8, {WS_WGU}")
        n = 0
        for kk in range(PF_WGU):
            for i in range(2):
                r = 16 + 4 * (n % 24)
                k(f"buffer_load_dwordx4 v[{r}:{r+3}], v3, s[44:47], s8 offen offset:{i*1024}")
                n += 1
            k("s_add_u32 s8, s8, 6144")
        if PF_WD:
            k("s_mul_i32 s8, s7, 20480")
            k(f"s_add_u32 s8, s8, {WS_WD}")
            for j in range(5):
                for i in range(4):
                    r = 16 + 4 * (n % 24)
                    k(f"buffer_load_dwordx4 v[{r}:{r+3}], v3, s[44:47], s8 offen offset:{i*1024}")
                    n += 1
                k("s_add_u32 s8, s8, 4096")
    k.prof_end(1, 18, 3, names="front_prep")
    k.label("front_end", flush=False)
    k("s_endpgm")
    return k


if __name__ == "__main__":
    if os.environ.get("PROF"):
        Kern.PROF = True
    ffn = gen4.gen_ffn()
    front = gen_front("ffn_kernel", 48 * 1024)
    kerns = [front, ffn]
    out = sys.argv[1] if len(sys.argv) > 1 else "v5.s"
    open(out, "w").write(build_file(HEADER, kerns, kerns))
    json.dump(PROFINFO, open(out + ".prof.json", "w"))
    for kk in kerns:
        print(kk.name, "instrs", kk.nins, "vgpr", kk.maxv + 1, "agpr", kk.maxa + 1, "sgpr", kk.maxs + 1, "lds", kk.lds)
```

```python
import sys, os, json
sys.path.insert(0, "dev")
from asmdsl import *
from gen1 import S, D, F, EPS, f2u, unpack, reduce16, xsum16, xsum32, HEADER, XFB, HFB, WDB

KNAME = "interleave_layers__ssm_conv_h3__swiglu_ffn__prompt_kernel"
WS_KVT = 0x0000000
WS_QST = 0x0300000
WS_WGU = 0x0400000
WGU_M = 20 * 6144
WGUB = 32 * WGU_M
WS_CS = 0x0800000
WS_WD = 0x0900000
WS_Y = 0x0C00000
WS_X1 = 0x0F00000
WS_H = 0x1200000
WS_X3 = 0x1D00000
WS_H2 = 0x2000000
WS_SYNC = 0x2800000
SY_ST1 = 0
SY_ST2 = 0x10000
SY_ST3 = 0x50000
SY_HF = 0x90000
SY_CF = 0x110000
SYNCB = 0x124000
WSB = 0x3000000
XRT = 20480
HRT = 49152
OOB = 0x80000000
LOG2E = 1.4426950408889634
SPIN_MAX = 1 << 14
NPREP = 96
STAMPS = os.environ.get("STAMPS", "").split(",")
NP1 = int(os.environ.get("NP1", "6"))
NE1 = int(os.environ.get("NE1", "30"))
NE2 = int(os.environ.get("NE2", "0"))
MAP = int(os.environ.get("MAP", "2"))
PF = int(os.environ.get("PF", "0"))
EVERY = int(os.environ.get("EVERY", "5"))


def srd(n):
    return f"s[{n}:{n+3}]"


def mkstamp(k):
    def stamp(n):
        if n in STAMPS:
            if hasattr(k, "stamps") and n in k.stamps:
                if Kern.PROF:
                    i = k.stamps.index(n)
                    k(f"s_memtime s[{64+2*i}:{65+2*i}]")
            else:
                k.stamp(n)
    return stamp


def in_srd(k, slot, karg_off, nbytes):
    k(f"s_load_dwordx2 s[{slot}:{slot+1}], s[0:1], {karg_off}")
    k(f"s_mov_b32 s{slot+2}, {nbytes}")
    k(f"s_mov_b32 s{slot+3}, 0x00020000")


def gen_pre():
    k = Kern("pre_kernel", lds=65536, grid=256, block=256)
    stamp = mkstamp(k)
    SA, SB, SC_, SD_, SWS = 28, 32, 36, 40, 48
    VL16 = "v10"
    k.prof_begin()
    k(f"s_cmp_ge_u32 s2, {k.grid}")
    k.branch("s_cbranch_scc1 pre_end", flush=False)
    k("s_load_dwordx2 s[24:25], s[0:1], 96")
    k("v_lshrrev_b32 v1, 6, v0")
    k("v_readfirstlane_b32 s3, v1")
    k("v_and_b32 v1, 63, v0")
    k("v_and_b32 v2, 15, v0")
    k("v_bfe_u32 v3, v0, 4, 2")
    k(f"v_lshlrev_b32 {VL16}, 4, v1")
    k(f"s_cmp_lt_u32 s2, {NPREP}")
    k.branch("s_cbranch_scc1 pre_prep", flush=False)
    saved0 = (list(k.vm), list(k.lg))
    in_srd(k, SA, 8, S * D * 2)
    in_srd(k, SB, 16, S * D * 2)
    in_srd(k, SC_, 24, D * 8)
    in_srd(k, SD_, 32, D * 4096)
    k(f"s_sub_u32 s56, s2, {NPREP}")
    k("s_lshr_b32 s57, s56, 4")
    k("s_and_b32 s58, s56, 15")
    k("v_lshrrev_b32 v4, 3, v1")
    k("v_and_b32 v5, 7, v1")
    k("s_lshl_b32 s10, s58, 7")
    k("s_lshl_b32 s11, s3, 5")
    k("s_add_u32 s10, s10, s11")
    k("v_lshlrev_b32 v6, 2, v4")
    k("v_add_u32 v6, s10, v6")
    k("v_mul_u32_u24 v7, 1280, v6")
    k("v_lshl_add_u32 v7, v5, 4, v7")
    k("s_lshl_b32 s12, s57, 7")
    k("v_add_u32 v7, s12, v7")
    KR, VR, WR = 16, 44, 60
    k("v_lshlrev_b32 v9, 6, v5")
    k("s_lshl_b32 s12, s57, 9")
    for i in range(4):
        k(f"buffer_load_dwordx4 v[{WR+4*i}:{WR+4*i+3}], v9, {srd(SC_)}, s12 offen offset:{16*i}")
    for j in (3, 4, 5, 6):
        k(f"buffer_load_dwordx4 v[{KR+4*j}:{KR+4*j+3}], v7, {srd(SA)}, 0 offen offset:{(j-3)*1280}")
    for i in range(4):
        k(f"buffer_load_dwordx4 v[{VR+4*i}:{VR+4*i+3}], v7, {srd(SB)}, 0 offen offset:{i*1280}")
    for j in (2, 1, 0):
        k(f"v_add_u32 v8, {((j-3)*1280) & 0xffffffff:#x}, v7")
        k(f"buffer_load_dwordx4 v[{KR+4*j}:{KR+4*j+3}], v8, {srd(SA)}, 0 offen")
    k.srd(SWS, 24, WSB)
    k("s_lshl_b32 s10, s3, 6")
    k("s_sub_u32 s10, 248, s10")
    k("v_lshlrev_b32 v8, 3, v4")
    k("v_sub_u32 v8, s10, v8")
    k("v_lshlrev_b32 v9, 4, v5")
    k("v_xor_b32 v8, v8, v9")
    k("v_lshl_add_u32 v8, v5, 11, v8")
    k("s_lshl_b32 s10, s3, 12")
    k("v_lshlrev_b32 v11, 8, v3")
    k("v_add_u32 v11, s10, v11")
    k("s_lshl_b32 s11, s3, 1")
    for jj in range(2):
        k(f"s_add_u32 s12, s11, {jj}")
        k(f"v_xor_b32 v{14+jj}, s12, v2")
        k(f"v_lshl_add_u32 v{14+jj}, v{14+jj}, 4, v11")
    k("v_lshlrev_b32 v9, 12, v3")
    k("v_lshl_add_u32 v9, v2, 4, v9")
    k("s_lshl_b32 s10, s57, 6")
    k("s_lshl_b32 s11, s3, 4")
    k("s_add_u32 s10, s10, s11")
    k("s_lshl_b32 s10, s10, 12")
    k("s_lshl_b32 s11, s58, 8")
    k("s_sub_u32 s11, 3840, s11")
    k("s_add_u32 s10, s10, s11")
    WF = 80
    for c in range(8):
        unpack(k, f"v{WF+4*c}", f"v{WF+4*c+1}", f"v{WR+2*c}")
        unpack(k, f"v{WF+4*c+2}", f"v{WF+4*c+3}", f"v{WR+2*c+1}")
    k.wait(vm=0)
    stamp("Tld")
    k("s_lshl_b32 s12, s56, 14")
    k("v_lshlrev_b32 v12, 7, v0")
    k("v_lshrrev_b32 v13, 7, v0")
    k("v_lshl_or_b32 v12, v13, 24, v12")
    k(f"buffer_load_dword v150, v12, {srd(SD_)}, s12 offen")
    KF, VF, OUT = 112, 128, 136
    for cp in range(4):
        for j in range(7):
            unpack(k, f"v{KF+2*j}", f"v{KF+2*j+1}", f"v{KR+4*j+cp}")
        for i in range(4):
            unpack(k, f"v{VF+2*i}", f"v{VF+2*i+1}", f"v{VR+4*i+cp}")
        for h in range(2):
            c = 2 * cp + h
            O = OUT + 4 * h
            for i in range(4):
                k(f"v_mul_f32 v{O+i}, v{KF+2*(i+0)+h}, v{WF+4*c+3}")
            for t in (2, 1, 0):
                for i in range(4):
                    k(f"v_fmac_f32 v{O+i}, v{KF+2*(i+3-t)+h}, v{WF+4*c+t}")
            for i in range(4):
                k(f"v_mul_f32 v{O+i}, v{O+i}, v{VF+2*i+h}")
            p = 144 + 2 * h
            k(f"v_cvt_pk_bf16_f32 v{p}, v{O+3}, v{O+2}")
            k(f"v_cvt_pk_bf16_f32 v{p+1}, v{O+1}, v{O+0}")
            k(f"ds_write_b64 v8, v[{p}:{p+1}] offset:{c*256}")
    k.wait(lg=0)
    k.barrier()
    stamp("Tkv")
    for j in range(4):
        k(f"ds_read_b128 v[{16+4*j}:{19+4*j}], v{14+(j>>1)} offset:{j*1024}")
    for j in range(4):
        k(f"buffer_store_dwordx4 v[{16+4*j}:{19+4*j}], v9, {srd(SWS)}, s10 offen{PSC}")
        k("s_add_u32 s10, s10, 16384")
    for i in range(4):
        k(f"v_mov_b32 v{32+i}, 0")
    k.srd(SA, 24, SYNCB, WS_SYNC)
    k("s_lshl_b32 s12, s56, 13")
    k("v_lshlrev_b32 v8, 4, v0")
    for i in range(2):
        k(f"buffer_store_dwordx4 v[32:35], v8, {srd(SA)}, s12 offen{PSC}")
        k("s_add_u32 s12, s12, 4096")
    k.prof_end(0, 24, 3, names="pre")
    k("s_endpgm")

    k.label("pre_prep", flush=False)
    k.vm, k.lg = list(saved0[0]), list(saved0[1])
    k("s_and_b32 s10, s2, 1")
    k("s_lshl_b32 s10, s10, 3")
    k("s_add_u32 s10, s10, 56")
    k("s_cmp_lt_u32 s2, 64")
    k("s_cselect_b32 s10, s10, 72")
    k(f"s_load_dwordx2 s[{SA}:{SA+1}], s[0:1], s10")
    k(f"s_mov_b32 s{SA+2}, {D*F*2}")
    k(f"s_mov_b32 s{SA+3}, 0x00020000")
    k(f"v_mov_b32 v14, {OOB:#x}")
    k("s_mov_b32 s58, 0x05040100")
    k("s_mov_b32 s59, 0x07060302")
    k("v_mov_b32 v12, 0x3f803f80")

    def item_idx(magic, n):
        for ps in range(2):
            o, ch = f"v{4+2*ps}", f"v{5+2*ps}"
            k(f"v_add_u32 v8, {256*ps}, v0")
            k(f"v_mul_u32_u24 {o}, {magic}, v8")
            k(f"v_lshrrev_b32 {o}, 16, {o}")
            k(f"v_mul_u32_u24 {ch}, {n}, {o}")
            k(f"v_sub_u32 {ch}, v8, {ch}")

    def item_loads(pitch):
        k(f"v_mul_u32_u24 v8, {8*pitch}, v4")
        k("v_lshl_add_u32 v8, v5, 4, v8")
        k(f"v_mul_u32_u24 v9, {8*pitch}, v6")
        k("v_lshl_add_u32 v9, v7, 4, v9")
        k("v_cmp_gt_u32 vcc, 224, v0")
        k("v_cndmask_b32 v9, v14, v9, vcc")
        for ps in range(2):
            k("s_mov_b32 s11, s10")
            for i in range(8):
                k(f"buffer_load_dwordx4 v[{16+32*ps+4*i}:{19+32*ps+4*i}], v{8+ps}, {srd(SA)}, s11 offen")
                if i < 7:
                    k(f"s_add_u32 s11, s11, {pitch}")
        k.srd(SWS, 24, WSB)
        lab = k.newlabel("pc")
        k("s_getpc_b64 s[44:45]")
        k.raw(lab + ":")
        k(f"s_add_u32 s44, s44, main_kernel-{lab}")
        k("s_addc_u32 s45, s45, 0")
        k("s_mov_b32 s46, main_code_end-main_kernel")
        k("s_mov_b32 s47, 0x00020000")
        k("s_lshr_b32 s11, s2, 3")
        k("s_lshl_b32 s11, s11, 13")
        k("v_lshlrev_b32 v8, 7, v0")
        k("v_lshrrev_b32 v9, 6, v0")
        k("v_lshl_or_b32 v8, v9, 24, v8")
        k("buffer_load_dword v200, v8, s[44:47], s11 offen")

    def stage(magic, sh, n, blk, opart, pairb, npair, second):
        for ps in range(2):
            o, ch = f"v{4+2*ps}", f"v{5+2*ps}"
            k(f"v_mul_u32_u24 v161, {magic}, {ch}")
            k(f"v_lshrrev_b32 v161, {sh}, v161")
            k(f"v_mul_u32_u24 v162, {n}, v161")
            k(f"v_sub_u32 {ch}, {ch}, v162")
            opart(o)
            k(f"v_mul_u32_u24 v161, {blk}, v161")
            k("v_add_u32 v160, v160, v161")
            k(f"v_lshrrev_b32 v161, 2, {ch}")
            k(f"v_mul_u32_u24 v161, {pairb}, v161")
            k("v_add_u32 v160, v160, v161")
            k(f"v_and_b32 v161, 3, {ch}")
            k("v_lshlrev_b32 v162, 6, v161")
            k("v_lshlrev_b32 v163, 7, v161")
            k(f"v_cmp_gt_u32 vcc, {npair}, {ch}")
            k("v_cndmask_b32 v162, v163, v162, vcc")
            k(f"v_add_u32 {o}, v160, v162")
            k("v_mov_b32 v162, 64")
            k(f"v_mov_b32 v163, {second}")
            k("v_cndmask_b32 v162, v162, v163, vcc")
            k(f"v_add_u32 {ch}, {o}, v162")
        k("v_cmp_gt_u32 vcc, 224, v0")
        k("v_mov_b32 v160, 61440")
        k("v_cndmask_b32 v6, v160, v6, vcc")
        k("v_cndmask_b32 v7, v160, v7, vcc")
        for ps in range(2):
            src = 16 + 32 * ps
            for e in range(8):
                o = 160 + 4 * e
                for p in range(4):
                    k(f"v_perm_b32 v{o+p}, v{src+4*(2*p+1)+e//2}, v{src+4*(2*p)+e//2}, s{58+(e&1)}")
                k(f"ds_write_b128 v{4+2*ps+(e>>2)}, v[{o}:{o+3}] offset:{(e&3)*16}")
            if ps == 0:
                stamp("Tld")
        k.wait(lg=0)
        k.barrier()
        stamp("Tkv")

    base_stamps = list(getattr(k, "stamps", []))[:-2]
    k.stamps = list(base_stamps)
    k("s_cmp_ge_u32 s2, 64")
    k.branch("s_cbranch_scc1 pre_wd", flush=False)
    sv = (list(k.vm), list(k.lg))
    item_idx(2731, 24)
    k("s_bfe_u32 s60, s2, 0x30001")
    k("s_lshr_b32 s61, s2, 4")
    k(f"s_mul_i32 s10, s61, {160*3072}")
    k("s_mul_i32 s11, s60, 384")
    k("s_add_u32 s10, s10, s11")
    item_loads(3072)

    def op_wgu(o):
        k(f"v_lshrrev_b32 v160, 2, {o}")
        k("v_mul_u32_u24 v160, 3072, v160")
        k(f"v_and_b32 v162, 3, {o}")
        k("v_lshl_add_u32 v160, v162, 8, v160")
    stage(43, 8, 6, 15360, op_wgu, 2048, 4, 1024)
    k("s_mul_i32 s13, s3, 15360")
    k(f"v_add_u32 v4, s13, {VL16}")
    k("s_lshl_b32 s12, s60, 2")
    k("s_add_u32 s12, s12, s3")
    k(f"s_mul_i32 s10, s12, {WGU_M}")
    k("s_mul_i32 s11, s61, 30720")
    k("s_add_u32 s10, s10, s11")
    k("s_and_b32 s13, s2, 1")
    k("s_mul_i32 s11, s13, 3072")
    k("s_add_u32 s10, s10, s11")
    k(f"s_add_u32 s10, s10, {WS_WGU}")
    for j in range(15):
        k(f"ds_read_b128 v[{16+4*j}:{19+4*j}], v4 offset:{j*1024}")
    for t in range(3):
        k(f"v_mov_b32 v{5+t}, 0")
    for j in range(15):
        k(f"buffer_store_dwordx4 v[{16+4*j}:{19+4*j}], {VL16}, {srd(SWS)}, s10 offen offset:{(j%3)*1024}{PSC}")
        if j % 3 == 2:
            k("s_add_u32 s10, s10, 6144")
        for p in range(4):
            k(f"v_dot2c_f32_bf16 v{5+j%3}, v{16+4*j+p}, v12")
    for t in range(3):
        xsum16(k, f"v{5+t}", "v8")
        xsum32(k, f"v{5+t}", "v8")
    k("v_cmp_eq_u32 vcc, 1, v3")
    k("v_cndmask_b32 v5, v5, v6, vcc")
    k("v_cmp_eq_u32 vcc, 2, v3")
    k("v_cndmask_b32 v5, v5, v7, vcc")
    k("v_lshlrev_b32 v6, 2, v1")
    k("v_cmp_gt_u32 vcc, 48, v1")
    k("v_cndmask_b32 v6, v14, v6, vcc")
    k("s_lshl_b32 s10, s12, 11")
    k("s_lshl_b32 s11, s61, 9")
    k("s_add_u32 s10, s10, s11")
    k("s_mul_i32 s11, s13, 192")
    k("s_add_u32 s10, s10, s11")
    k(f"s_add_u32 s10, s10, {WS_CS}")
    k(f"buffer_store_dword v5, v6, {srd(SWS)}, s10 offen")
    k.prof_end(0, 24, 3, names="pre")
    k("s_endpgm")
    k.label("pre_wd", flush=False)
    k.vm, k.lg = sv
    k.stamps = list(base_stamps)
    item_idx(820, 80)
    k("s_sub_u32 s60, s2, 64")
    k(f"s_mul_i32 s10, s60, {48*1280}")
    item_loads(1280)

    def op_wd(o):
        k(f"v_lshlrev_b32 v160, 8, {o}")
    stage(205, 11, 10, 7680, op_wd, 3072, 8, 1536)
    k("s_mul_i32 s13, s3, 15360")
    k(f"v_add_u32 v4, s13, {VL16}")
    k("v_lshrrev_b32 v6, 1, v3")
    k("v_and_b32 v7, 1, v3")
    k("v_mul_u32_u24 v5, 7680, v6")
    k("v_lshl_add_u32 v5, v7, 8, v5")
    k("v_lshl_add_u32 v5, v2, 4, v5")
    k("v_add_u32 v5, s13, v5")
    k("s_mul_i32 s11, s60, 6")
    k("v_add_u32 v8, s11, v3")
    k("v_add3_u32 v9, v7, s11, 4")
    for v in ("v8", "v9"):
        k(f"v_lshrrev_b32 v13, 2, {v}")
        k("v_mul_u32_u24 v13, 5120, v13")
        k(f"v_and_b32 {v}, 3, {v}")
        k(f"v_lshl_add_u32 {v}, {v}, 8, v13")
        k(f"v_lshl_add_u32 {v}, v2, 4, {v}")
    k(f"v_mul_u32_u24 v13, {48*5120}, v6")
    k("v_add_u32 v9, v9, v13")
    k(f"s_mul_i32 s10, s3, {2*48*5120}")
    k(f"s_add_u32 s10, s10, {WS_WD}")
    plan = []
    for t in range(5):
        plan += [("v4", t * 1536, "v8", t * 1024), ("v4", 7680 + t * 1536, "v8", 48 * 5120 + t * 1024), ("v5", 1024 + t * 1536, "v9", t * 1024)]
    for j, (la, lo, ga, go) in enumerate(plan):
        k(f"ds_read_b128 v[{16+4*j}:{19+4*j}], {la} offset:{lo}")
    for j, (la, lo, ga, go) in enumerate(plan):
        k(f"s_add_u32 s11, s10, {go}")
        k(f"buffer_store_dwordx4 v[{16+4*j}:{19+4*j}], {ga}, {srd(SWS)}, s11 offen{PSC}")
    k.prof_end(0, 24, 3, names="pre")
    k.label("pre_end", flush=False)
    k("s_endpgm")
    return k


PSC = os.environ.get("PSC", "")

def gen_main():
    LW = 0
    LR = 122880
    LC = LR + 32768
    CP = 4160
    UOFF = 4 * CP
    WREG = 4 * CP + 4608
    CB = 163840 - 4 * WREG
    k = Kern("main_kernel", lds=163840, grid=256, block=256)
    RING, ACC, WB, TMP = 16, 112, 160, 184
    X1R = [216, 222]
    YR = [228, 234]
    STA, STB = [4, 6], [240, 242]
    X2 = [WB, WB + 12]
    G2R = TMP + 8
    DIST = 8
    VL16, VL16B, VH2, VT4, VT4S, VROW, VGW, VGR, VQ128, VFLAG, VFPOLL = (
        "v10", "v11", "v8", "v9", "v12", "v13", "v14", "v15", "v0", "v252", "v253")
    VL128 = "v251"
    LQ = 131072
    SX, SW, SH, SWD, SSY, SO, SY_ = 28, 32, 36, 40, 44, 48, 52
    SA, SB, SWS, SDBG = 28, 36, 48, 52
    XSPAN = WS_X3 - WS_X1
    HSPAN = WS_H2 - WS_H

    stamp = mkstamp(k)

    def ring(i):
        return RING + 4 * (i % 24)

    def emit(x):
        if callable(x):
            x()
        elif isinstance(x, tuple):
            k(x[0], tag=x[1])
        else:
            k(x)

    def set_exec(nl):
        m = (1 << nl) - 1
        if nl <= 32:
            k(f"s_mov_b64 exec, {m:#x}") if nl <= 6 else (k(f"s_mov_b32 exec_lo, {m:#x}"), k("s_mov_b32 exec_hi, 0"))
        else:
            k(f"s_mov_b32 exec_hi, {m >> 32:#x}")

    class ML:
        def __init__(self, text, nl):
            self.text, self.nl = text, nl

        def __call__(self):
            set_exec(self.nl)
            k(self.text)
            k("s_mov_b64 exec, -1")

    def isvm(x):
        if isinstance(x, ML):
            return True
        if callable(x):
            return False
        return (x[0] if isinstance(x, tuple) else x).startswith("buffer_")

    def emit_one_vmem(L):
        while L:
            x = L.pop(0)
            emit(x)
            if isvm(x):
                return

    def x_loads(layer, b, kk, slot0):
        so = kk * 1024 + b * 8 * XRT + (XSPAN if layer else 0)
        L = []
        for tn in range(2):
            L.append(f"s_add_u32 s10, s17, {so + tn*XRT}")
            L.append(f"buffer_load_dwordx4 v[{ring(slot0+tn)}:{ring(slot0+tn)+3}], {VL16}, {srd(SX)}, s10 offen sc1")
        return L

    def h_loads(layer, b, kk, slot0):
        so = kk * 1024 + b * 8 * HRT + (HSPAN if layer else 0)
        L = []
        for tn in range(2):
            L.append(f"s_add_u32 s10, s{57+tn}, {so}")
            L.append(f"buffer_load_dwordx4 v[{ring(slot0+tn)}:{ring(slot0+tn)+3}], {VL16}, {srd(SH)}, s10 offen sc1")
        return L

    def x_pf(layer, b):
        if not PF:
            return []
        return [f"s_add_u32 s10, s26, {b*8*XRT + (XSPAN if layer else 0)}",
                ML(f"buffer_load_dword a240, {VL128}, {srd(SX)}, s10 offen sc1", 20)]

    def h_pf(layer, b):
        if not PF:
            return []
        return [f"s_add_u32 s10, s27, {b*8*HRT + (HSPAN if layer else 0)}",
                ML(f"buffer_load_dword a241, {VL128}, {srd(SH)}, s10 offen sc1", 48)]

    def wgu_dma(p):
        return [f"s_add_u32 m0, s18, {LW + p*12288}", f"s_add_u32 s11, s19, {p*12288}"] + [
            (f"buffer_load_dwordx4 {VL16}, {srd(SW)}, s11 offen offset:{f*1024} lds", f"w{p}") for f in range(3)]

    def wd_load(i):
        kk, lt = divmod(i, 5)
        base = "s20" if lt < 2 else "s21" if lt < 4 else "s22"
        return [f"s_add_u32 s11, {base}, {kk*5120}",
                f"buffer_load_dwordx4 a[{4*i}:{4*i+3}], {VL16}, {srd(SWD)}, s11 offen offset:{(lt&1)*1024 if lt < 4 else 0}"]

    def poll(loads, tags, tmp, sleep=2, ge=None, nl=64, eq=None):
        def check():
            if nl < 64:
                k(f"v_mov_b32 {tags[0]}, {tags[0]}")
                set_exec(nl)
            check0()
            if nl < 64:
                k("s_cmp_eq_u64 vcc, exec")
                k("s_mov_b64 exec, -1")
            else:
                k("s_cmp_eq_u64 vcc, -1")

        def check0():
            if eq is not None:
                k(f"v_cmp_eq_u32 vcc, {eq}, {tags[0]}")
            elif ge is not None:
                k(f"v_cmp_le_u32 vcc, {ge}, {tags[0]}")
            elif len(tags) == 1:
                k(f"v_cmp_ne_u32 vcc, 0, {tags[0]}")
            else:
                k(f"v_min_u32 {tmp}, {tags[0]}, {tags[1]}")
                for t in tags[2:]:
                    k(f"v_min_u32 {tmp}, {tmp}, {t}")
                k(f"v_cmp_ne_u32 vcc, 0, {tmp}")
        ok = k.newlabel("ok")
        lp = k.newlabel("spin")
        check()
        k.branch(f"s_cbranch_scc1 {ok}", flush=False)
        vm, lg = list(k.vm), list(k.lg)
        k("s_mov_b32 s23, 0")
        k.label(lp, flush=False)
        k(f"s_sleep {sleep}")
        for l in loads:
            emit(l)
        k.wait(vm=0)
        k("s_add_u32 s23, s23, 1")
        k(f"s_cmp_ge_u32 s23, {SPIN_MAX}")
        k.branch(f"s_cbranch_scc1 {ok}", flush=False)
        check()
        k.branch(f"s_cbranch_scc0 {lp}", flush=False)
        k.flush_hazards()
        k.label(ok, flush=False)
        k.vm, k.lg = vm, lg

    def finish_stats(vsum, vnsq, dst):
        k(f"v_mul_f32 v{dst}, {f2u(-1.0/D)}, {vsum}")
        k(f"v_mul_f32 {vnsq}, {f2u(-1.0/D)}, {vnsq}")
        k(f"v_fma_f32 {vnsq}, -v{dst}, v{dst}, {vnsq}")
        k(f"v_max_f32 {vnsq}, 0, {vnsq}")
        k(f"v_add_f32 {vnsq}, {f2u(EPS)}, {vnsq}")
        k(f"v_rsq_f32 v{dst+1}, {vnsq}")

    def wread(kk, f):
        reg, off = (VL16, kk * 6144) if kk < 10 else (VL16B, (kk - 10) * 6144)
        return f"ds_read_b128 v[{WB+4*f}:{WB+4*f+3}], {reg} offset:{LW+off+f*1024}"

    def g1_main(slot0, sched, first=False):
        for f in range(6):
            k(wread(0, f))
        for kk in range(20):
            L = sched.get(kk, [])
            if first and kk == 11:
                k.wait_tag("w9")
                k.wait(lg=0)
                k.barrier()
            nv = sum(1 for x in L if isvm(x))
            done = 0
            for f in range(6):
                for tn in range(2):
                    a = ACC + 8 * f + 4 * tn
                    acc = f"v[{a}:{a+3}]"
                    xr = ring(slot0 + 2 * kk + tn)
                    k(f"v_mfma_f32_16x16x32_bf16 {acc}, v[{WB+4*f}:{WB+4*f+3}], v[{xr}:{xr+3}], {acc if kk else 0}")
                    idx = 2 * f + tn + 1
                    while done < nv and done * 12 < idx * nv - 6:
                        emit_one_vmem(L)
                        done += 1
                if kk < 19:
                    k(wread(kk + 1, f))
                else:
                    if f == 0:
                        k("v_lshlrev_b32 v255, 4, v3")
                        k(f"v_add_u32 v255, {LC}, v255")
                    k(f"ds_read_b128 v[{WB+4*f}:{WB+4*f+3}], v255 offset:{f*64}")
            for x in L:
                emit(x)

    def g1_epilogue(layer, b, ST):
        k(f"s_add_u32 s12, s56, {b*8*HRT + (HSPAN if layer else 0)}")
        O2 = TMP + 20
        for tn in range(2):
            st = ST[tn]
            c1 = TMP + 28
            k(f"v_mul_f32 v{c1}, {f2u(-LOG2E)}, v{st+1}")
            k(f"v_mul_f32 v{c1+1}, v{st+1}, v{st+1}")
            k(f"v_rcp_f32 v{c1+1}, v{c1+1}")
            T = TMP
            for f in range(6):
                a = ACC + 8 * f + 4 * tn
                for i in (0, 2):
                    k(f"v_pk_fma_f32 v[{a+i}:{a+i+1}], v[{WB+4*f+i}:{WB+4*f+i+1}], v[{st}:{st+1}], v[{a+i}:{a+i+1}] op_sel:[0,0,0] op_sel_hi:[1,0,1]")
            for f in range(3):
                g = ACC + 8 * f + 4 * tn
                for i in (0, 2):
                    k(f"v_pk_mul_f32 v[{T+4*f+i}:{T+4*f+i+1}], v[{g+i}:{g+i+1}], v[{c1}:{c1+1}] op_sel:[0,0] op_sel_hi:[1,0]")
            for e in range(12):
                k(f"v_exp_f32 v{T+e}, v{T+e}")
            for f in range(3):
                g = ACC + 8 * f + 4 * tn
                u = g + 24
                for i in (0, 2):
                    k(f"v_pk_mul_f32 v[{g+i}:{g+i+1}], v[{g+i}:{g+i+1}], v[{u+i}:{u+i+1}]")
            for e in range(0, 12, 2):
                k(f"v_pk_fma_f32 v[{T+e}:{T+e+1}], v[{T+e}:{T+e+1}], v[{c1}:{c1+1}], v[{c1}:{c1+1}] op_sel:[0,1,1] op_sel_hi:[1,1,1]")
            for e in range(12):
                k(f"v_rcp_f32 v{T+e}, v{T+e}")
            for f in range(3):
                g = ACC + 8 * f + 4 * tn
                for i in (0, 2):
                    k(f"v_pk_mul_f32 v[{T+4*f+i}:{T+4*f+i+1}], v[{T+4*f+i}:{T+4*f+i+1}], v[{g+i}:{g+i+1}]")
            O = TMP + 12 + 4 * tn
            for p in range(4):
                k(f"v_cvt_pk_bf16_f32 v{O+p}, v{T+2*p}, v{T+2*p+1}")
            for p in range(2):
                k(f"v_cvt_pk_bf16_f32 v{O2+2*tn+p}, v{T+8+2*p}, v{T+9+2*p}")
            if tn:
                k(f"s_add_u32 s13, s12, {HRT}")
            k(f"buffer_store_dwordx4 v[{O}:{O+3}], {VL16}, {srd(SH)}, s{12+tn} offen sc1", tag="hst")
        k(f"v_permlane16_swap_b32 v{O2}, v{O2+2}")
        k(f"v_permlane16_swap_b32 v{O2+1}, v{O2+3}")
        k(f"buffer_store_dwordx4 v[{O2}:{O2+3}], {VH2}, {srd(SH)}, s12 offen offset:1024 sc1", tag="hst")

    def h_flag(layer, b):
        k("s_lshl_b32 s12, s4, 3")
        k("s_add_u32 s12, s12, s3")
        k("s_lshl_b32 s12, s12, 5")
        k("s_add_u32 s12, s12, s5")
        k("s_lshl_b32 s12, s12, 7")
        k(f"s_add_u32 s12, s12, {SY_HF + layer*0x40000 + b*0x4000}")
        k("v_mov_b32 v254, 1")
        k.wait_tag("hst")
        k(f"buffer_store_dword v254, {VFLAG}, {srd(SSY)}, s12 offen sc1")

    def h_poll_loads(layer, b):
        return [f"s_mov_b32 s13, {SY_HF + layer*0x40000 + b*0x4000}",
                ML(f"buffer_load_dword v{TMP+30}, {VFPOLL}, {srd(SSY)}, s13 offen sc1", 8)]

    def h_poll(layer, b):
        poll(h_poll_loads(layer, b), [f"v{TMP+30}"], None, nl=8)

    def g2_main(slot0, sched):
        for kk in range(12):
            L = sched.get(kk, [])
            nv = sum(1 for x in L if isvm(x))
            done = 0
            idx = 0
            for tn in range(2):
                for lt in range(5):
                    a = ACC + 8 * lt + 4 * tn
                    acc = f"v[{a}:{a+3}]"
                    hr = ring(slot0 + 2 * kk + tn)
                    wr = 4 * (5 * kk + lt)
                    k(f"v_mfma_f32_16x16x32_bf16 {acc}, a[{wr}:{wr+3}], v[{hr}:{hr+3}], {acc if kk else 0}")
                    idx += 1
                    while done < nv and done * 10 < idx * nv - 5:
                        emit_one_vmem(L)
                        done += 1
            for x in L:
                emit(x)

    def g2_reduce(res, dst):
        k.barrier()
        for x in range(1, 4):
            k(f"s_xor_b32 s12, s3, {x}")
            k("s_mul_i32 s12, s12, 6144")
            k(f"s_add_u32 s12, s12, {LR + (x-1)*2048}")
            k(f"v_add_u32 v255, s12, {VL16}")
            for i in range(2):
                a = ACC + 8 * ((2 if x & 2 else 0) + i) + 4 * (x & 1)
                k(f"ds_write_b128 v255, v[{a}:{a+3}] offset:{i*1024}")
        for ltn in range(2):
            k(f"s_xor_b32 s12, s9, {ltn}")
            k("s_lshl_b32 s12, s12, 2")
            k("s_add_u32 s12, s12, s3")
            k("s_lshl_b32 s12, s12, 10")
            k(f"s_add_u32 s12, s12, {LR + 24576}")
            k(f"v_add_u32 v255, s12, {VL16}")
            a = ACC + 32 + 4 * ltn
            k(f"ds_write_b128 v255, v[{a}:{a+3}]")
        for d in range(4):
            a = ACC + 8 * (d // 2) + 2 * (d & 1)
            unpack(k, f"v{dst+2*d}", f"v{dst+2*d+1}", f"v{res+d}")
            k(f"v_pk_add_f32 v[{dst+2*d}:{dst+2*d+1}], v[{dst+2*d}:{dst+2*d+1}], v[{a}:{a+1}]")
        for d in range(2):
            unpack(k, f"v{dst+8+2*d}", f"v{dst+9+2*d}", f"v{res+4+d}")
        k("s_mul_i32 s12, s3, 6144")
        k(f"s_add_u32 s12, s12, {LR}")
        k(f"v_add_u32 v255, s12, {VL16}")
        k("s_lshl_b32 s12, s9, 12")
        k(f"s_add_u32 s12, s12, {LR + 24576}")
        k(f"v_add_u32 v254, s12, {VL16}")
        k.wait(lg=0)
        k.barrier()
        R = ACC
        R4 = ACC + 24
        for n in range(6):
            k(f"ds_read_b128 v[{R+4*n}:{R+4*n+3}], v255 offset:{n*1024}")
        for n in range(4):
            k(f"ds_read_b128 v[{R4+4*n}:{R4+4*n+3}], v254 offset:{n*1024}")
        for n in range(6):
            d = dst + 4 * (n & 1)
            for i in (0, 2):
                k(f"v_pk_add_f32 v[{d+i}:{d+i+1}], v[{d+i}:{d+i+1}], v[{R+4*n+i}:{R+4*n+i+1}]")
        for n in range(4):
            for i in (0, 2):
                k(f"v_pk_add_f32 v[{dst+8+i}:{dst+9+i}], v[{dst+8+i}:{dst+9+i}], v[{R4+4*n+i}:{R4+4*n+i+1}]")

    def part_stats(src, b, region, pre_wait=None):
        a, q_ = TMP + 16, TMP + 17
        k(f"v_add_f32 v{a}, v{src}, v{src+1}")
        k(f"v_mul_f32 v{q_}, v{src}, v{src}")
        k(f"v_fmac_f32 v{q_}, v{src+1}, v{src+1}")
        for i in range(2, 8):
            k(f"v_add_f32 v{a}, v{a}, v{src+i}")
            k(f"v_fmac_f32 v{q_}, v{src+i}, v{src+i}")
        t, u = TMP + 18, TMP + 19
        k(f"v_add_f32 v{t}, v{src+8}, v{src+9}")
        k(f"v_mul_f32 v{u}, v{src+8}, v{src+8}")
        k(f"v_fmac_f32 v{u}, v{src+9}, v{src+9}")
        for i in range(10, 12):
            k(f"v_add_f32 v{t}, v{t}, v{src+i}")
            k(f"v_fmac_f32 v{u}, v{src+i}, v{src+i}")
        k("s_cmp_eq_u32 s14, 0")
        k("s_cselect_b32 s12, 1.0, 0")
        k(f"v_fmac_f32 v{a}, s12, v{t}")
        k(f"v_fmac_f32 v{q_}, s12, v{u}")
        for v in (a, q_):
            xsum16(k, f"v{v}", f"v{t}")
            xsum32(k, f"v{v}", f"v{t}")
        k(f"v_or_b32 v{q_}, 0x80000000, v{q_}")
        k("s_lshl_b32 s12, s16, 4")
        k("s_lshl_b32 s13, s8, 1")
        k("s_add_u32 s12, s12, s13")
        k("s_add_u32 s12, s12, s14")
        k("s_lshl_b32 s12, s12, 7")
        k(f"s_add_u32 s12, s12, {region + b*8*2048}")
        if pre_wait:
            k.wait_tag(pre_wait)
        k(f"buffer_store_dwordx2 v[{a}:{q_}], {VGW}, {srd(SSY)}, s12 offen sc1")

    def st2_loads(b, dst):
        return ["s_lshl_b32 s13, s16, 11", f"s_add_u32 s13, s13, {SY_ST2 + b*8*2048}"] + [
            f"buffer_load_dwordx2 v[{dst+2*i}:{dst+2*i+1}], {VGR}, {srd(SSY)}, s13 offen offset:{i*128} sc1"
            for i in range(4)]

    def st3_loads(b, dst):
        return ["s_lshl_b32 s13, s15, 11", f"s_add_u32 s13, s13, {SY_ST3 + b*8*2048}"] + [
            f"buffer_load_dwordx2 v[{dst+8*tn+2*i}:{dst+8*tn+2*i+1}], {VGR}, {srd(SSY)}, s13 offen offset:{tn*2048+i*128} sc1"
            for tn in range(2) for i in range(4)]

    def st1_loads(b, dst):
        return ["s_lshl_b32 s13, s15, 9", f"s_add_u32 s13, s13, {SY_ST1 + b*8*512}"] + [
            f"buffer_load_dwordx2 v[{dst+2*tn}:{dst+2*tn+1}], {VQ128}, {srd(SSY)}, s13 offen offset:{tn*512} sc1"
            for tn in range(2)]

    def sum_granules(g, n, tmp):
        for i in range(1, n):
            k(f"v_pk_add_f32 v[{g}:{g+1}], v[{g}:{g+1}], v[{g+2*i}:{g+2*i+1}]")
        for v in (g, g + 1):
            xsum16(k, f"v{v}", tmp)
            xsum32(k, f"v{v}", tmp)

    def finalize(b, x2, G):
        poll(st2_loads(b, G), [f"v{G+1}", f"v{G+3}", f"v{G+5}", f"v{G+7}"], f"v{TMP+20}")
        stamp(f"p2{b}")
        sum_granules(G, 4, f"v{TMP+20}")
        sp = TMP + 22
        finish_stats(f"v{G}", f"v{G+1}", sp)
        k(f"v_mul_f32 v{sp}, v{sp}, v{sp+1}")
        for d in range(6):
            unpack(k, f"v{TMP}", f"v{TMP+1}", f"v{YR[b]+d}")
            k(f"v_pk_fma_f32 v[{TMP+2}:{TMP+3}], v[{x2+2*d}:{x2+2*d+1}], v[{sp}:{sp+1}], v[{sp}:{sp+1}] op_sel:[0,1,0] op_sel_hi:[1,1,0]")
            k(f"v_pk_fma_f32 v[{x2+2*d}:{x2+2*d+1}], v[{TMP+2}:{TMP+3}], v[{TMP}:{TMP+1}], v[{x2+2*d}:{x2+2*d+1}]")
            k(f"v_cvt_pk_bf16_f32 v{X1R[b]+d}, v{x2+2*d}, v{x2+2*d+1}")
        k(f"s_add_u32 s13, s59, {XSPAN + b*8*XRT}")
        k("s_lshl_b32 s12, s14, 10")
        k("s_add_u32 s12, s12, s13")
        k(f"buffer_store_dwordx4 v[{X1R[b]}:{X1R[b]+3}], {VL16}, {srd(SX)}, s12 offen sc1", tag="xst")
        k(f"buffer_store_dwordx2 v[{X1R[b]+4}:{X1R[b]+5}], {VT4S}, {srd(SX)}, s13 offen offset:2048 sc1", tag="xst")
        for d in range(6):
            unpack(k, f"v{x2+2*d}", f"v{x2+2*d+1}", f"v{X1R[b]+d}")

    def stats1(b, STx):
        poll(st1_loads(b, TMP + 24), [f"v{TMP+25}", f"v{TMP+27}"], f"v{TMP+20}")
        for tn in range(2):
            sum_granules(TMP + 24 + 2 * tn, 1, f"v{TMP+20}")
            finish_stats(f"v{TMP+24+2*tn}", f"v{TMP+25+2*tn}", STx[tn])

    def stats3(b, STx):
        poll(st3_loads(b, TMP), [f"v{TMP+1+2*i}" for i in range(8)], f"v{TMP+20}")
        for tn in range(2):
            sum_granules(TMP + 8 * tn, 4, f"v{TMP+20}")
            finish_stats(f"v{TMP+8*tn}", f"v{TMP+8*tn+1}", STx[tn])

    def res_loads(b):
        return [f"s_add_u32 s13, s59, {b*8*XRT}", "s_lshl_b32 s12, s14, 10", "s_add_u32 s12, s12, s13",
                f"v_lshl_add_u32 v254, v3, 7, {VQ128}",
                f"buffer_load_dwordx4 v[{X1R[b]}:{X1R[b]+3}], {VL16}, {srd(SX)}, s12 offen sc1",
                f"buffer_load_dwordx2 v[{X1R[b]+4}:{X1R[b]+5}], {VT4}, {srd(SX)}, s13 offen offset:2048 sc1",
                f"buffer_load_dwordx2 v[{YR[b]}:{YR[b]+1}], v254, {srd(SY_)}, s12 offen sc1",
                f"buffer_load_dwordx2 v[{YR[b]+2}:{YR[b]+3}], v254, {srd(SY_)}, s12 offen offset:128 sc1",
                f"buffer_load_dwordx2 v[{YR[b]+4}:{YR[b]+5}], {VQ128}, {srd(SY_)}, s13 offen offset:2048 sc1"]

    def out_store(b, src):
        for d in range(6):
            k(f"v_cvt_pk_bf16_f32 v{TMP+d}, v{src+2*d}, v{src+2*d+1}")
        k(f"v_mul_u32_u24 v{TMP+8}, 1280, {VROW}")
        k("s_mul_i32 s12, s8, 160")
        k(f"s_add_u32 s12, s12, {b*128*1280}")
        k("s_lshl_b32 s13, s14, 6")
        k("s_add_u32 s13, s13, s12")
        k(f"v_lshl_add_u32 v{TMP+9}, v3, 4, v{TMP+8}")
        k(f"v_lshl_add_u32 v{TMP+10}, v3, 3, v{TMP+8}")
        k("s_lshl_b32 s10, s14, 31")
        k(f"v_or_b32 v{TMP+10}, s10, v{TMP+10}")
        k(f"buffer_store_dwordx4 v[{TMP}:{TMP+3}], v{TMP+9}, {srd(SO)}, s13 offen")
        k(f"buffer_store_dwordx2 v[{TMP+4}:{TMP+5}], v{TMP+10}, {srd(SO)}, s12 offen offset:128")

    def g1b_sched(layer, extra):
        sched = {}
        hl = [h_loads(layer, 0, kk, 80 + 2 * kk) for kk in range(12)]
        for kk in range(20):
            L = []
            if kk + DIST < 20:
                L += x_loads(layer, 1, kk + DIST, 40 + 2 * (kk + DIST))
            L += extra.get(kk, [])
            if kk == 3:
                L += [lambda: h_flag(layer, 0)]
            if kk == 7:
                L += h_poll_loads(layer, 0)
            if kk == 12:
                L = [lambda: h_poll(layer, 0)] + h_pf(layer, 0) + L
            if kk >= 14:
                while hl and (12 - len(hl)) + 8 < kk and len([x for x in L if isvm(x)]) < 6:
                    L += hl.pop(0)
            sched[kk] = L
        return sched, hl


    k.prof_begin()
    k(f"s_cmp_ge_u32 s2, {k.grid}")
    k.branch("s_cbranch_scc1 main_end", flush=False)
    k("s_load_dwordx2 s[24:25], s[0:1], 96")
    k("s_load_dwordx2 s[26:27], s[0:1], 80")
    in_srd(k, SA, 32, 4096)
    in_srd(k, SB, 40, D * 2)
    in_srd(k, SDBG, 0, S * D * 2)
    k("v_lshrrev_b32 v1, 6, v0")
    k("v_readfirstlane_b32 s3, v1")
    k("v_and_b32 v1, 63, v0")
    k("v_and_b32 v2, 15, v0")
    k("v_bfe_u32 v3, v0, 4, 2")
    k(f"v_lshlrev_b32 {VL16}, 4, v1")
    if MAP == 1:
        k("s_and_b32 s4, s2, 7")
        k("s_lshr_b32 s5, s2, 3")
        k("s_lshr_b32 s7, s5, 3")
        k("s_and_b32 s8, s5, 7")
    else:
        k("s_and_b32 s4, s2, 6")
        k("s_lshr_b32 s10, s2, 7")
        k("s_add_u32 s4, s4, s10")
        k("s_bfe_u32 s5, s2, 0x40003")
        k("s_and_b32 s10, s2, 1")
        k("s_lshl_b32 s10, s10, 4")
        k("s_add_u32 s5, s5, s10")
        k("s_and_b32 s7, s5, 3")
        k("s_lshr_b32 s8, s5, 2")
    k("s_and_b32 s9, s3, 1")
    k("s_lshr_b32 s14, s3, 1")
    k("s_lshl_b32 s6, s4, 4")
    k("s_lshl_b32 s10, s3, 1")
    k("s_add_u32 s15, s6, s10")
    k("s_lshl_b32 s10, s7, 1")
    k("s_add_u32 s16, s6, s10")
    k("s_add_u32 s16, s16, s9")
    k(f"s_mul_i32 s17, s15, {XRT}")
    k("s_mul_i32 s18, s3, 3072")
    k(f"s_mul_i32 s19, s5, {WGU_M}")
    k("s_add_u32 s19, s19, s18")
    k("s_lshl_b32 s10, s8, 2")
    k("s_add_u32 s10, s10, s3")
    k("s_mul_i32 s10, s10, 61440")
    k("s_lshl_b32 s11, s14, 11")
    k("s_add_u32 s20, s10, s11")
    k("s_xor_b32 s11, s11, 2048")
    k("s_add_u32 s21, s10, s11")
    k("s_add_u32 s22, s10, 4096")
    k(f"s_sub_u32 s56, s2, {NPREP}")
    k("s_lshl_b32 s60, s56, 2")
    k("s_add_u32 s60, s60, s3")
    k(f"s_mul_i32 s61, s3, {WREG}")
    k(f"s_add_u32 s61, s61, {CB}")
    k.srd(SWS, 24, WSB)
    k.srd(SW, 24, WGUB, WS_WGU)
    k.srd(SWD, 24, WDB, WS_WD)
    k.srd(SSY, 24, SYNCB, WS_SYNC)
    QR = 240

    def q_loads():
        k("v_and_b32 v6, 7, v1")
        k("v_mul_u32_u24 v6, 1280, v6")
        k("v_lshrrev_b32 v7, 3, v1")
        k("v_lshl_add_u32 v6, v7, 4, v6")
        k("v_cmp_gt_u32 vcc, 32, v1")
        k(f"v_mov_b32 v7, {OOB:#x}")
        k("v_cndmask_b32 v7, v7, v6, vcc")
        k("s_lshl_b32 s10, s4, 5")
        k("s_add_u32 s10, s10, s5")
        k("s_mul_i32 s10, s10, 10240")
        k("s_mul_i32 s11, s3, 320")
        k("s_add_u32 s10, s10, s11")
        for i in range(3):
            k(f"buffer_load_dwordx4 v[{QR+4*i}:{QR+4*i+3}], v{6 if i < 2 else 7}, {srd(SDBG)}, s10 offen offset:{i*128}")

    k(f"s_cmp_lt_u32 s2, {NPREP}")
    k.branch("s_cbranch_scc1 main_idle", flush=False)
    saved0 = (list(k.vm), list(k.lg))
    k("s_lshl_b32 s12, s60, 12")
    k(f"s_add_u32 s{SA}, s{SA}, s12")
    k(f"s_addc_u32 s{SA+1}, s{SA+1}, 0")
    HB = 160
    for p in range(4):
        k(f"buffer_load_dwordx4 v[{HB+8*p+4}:{HB+8*p+7}], {VL16}, {srd(SA)}, 0 offen offset:{p*1024}")
        k(f"v_add_u32 v9, {(p*1024-8) & 0xffffffff:#x}, {VL16}")
        k(f"buffer_load_dwordx2 v[{HB+8*p+2}:{HB+8*p+3}], v9, {srd(SA)}, 0 offen")
    k(f"s_add_u32 m0, s61, {UOFF}")
    for p in (3, 2, 1, 0):
        k(f"buffer_load_dwordx4 {VL16}, {srd(SWS)}, s12 offen offset:{p*1024} lds", tag="u")
    k("s_lshl_b32 s12, s60, 1")
    k("v_mov_b32 v9, s12")
    k(f"buffer_load_ushort v11, v9, {srd(SB)}, 0 offen")
    q_loads()
    k("v_mov_b32 v32, 0")
    k("v_mov_b32 v33, 0")
    k("v_lshlrev_b32 v8, 3, v1")
    k("v_add_u32 v8, s61, v8")
    k(f"ds_write_b64 v8, v[32:33] offset:{UOFF+4096}")
    k("v_bfe_u32 v8, v1, 2, 2")
    k(f"v_mul_u32_u24 v8, {CP}, v8")
    k("v_and_b32 v9, 3, v1")
    k("v_lshl_add_u32 v8, v9, 3, v8")
    k("v_add_u32 v8, s61, v8")
    k("ds_write_b64 v8, v[32:33]")
    k("v_sub_u32 v7, 3, v2")
    k("v_and_b32 v7, 3, v7")
    k("v_add3_u32 v8, v2, v7, 1")
    k("v_lshl_add_u32 v8, v3, 3, v8")
    k("v_lshlrev_b32 v8, 1, v8")
    k(f"v_mul_u32_u24 v7, {CP}, v7")
    k("v_add3_u32 v4, v7, v8, s61")
    k("v_lshlrev_b32 v7, 5, v2")
    k("v_lshlrev_b32 v8, 4, v3")
    k("v_sub_u32 v8, v8, v7")
    k(f"v_add_u32 v8, {UOFF+480}, v8")
    k("v_add_u32 v5, s61, v8")
    k(f"v_add_u32 v8, s61, {VL16}")
    for p in range(4):
        T = 48 + 12 * (p & 1)
        b = HB + 8 * p
        seq = [f"v{b+2+i}" for i in range(6)]
        off = 32 + p * 1024
        k(f"ds_write_b128 v8, v[{b+4}:{b+7}] offset:{off}")
        for j in range(4):
            k(f"v_alignbyte_b32 v{T+j}, {seq[2+j]}, {seq[1+j]}, 2")
        k(f"ds_write_b128 v8, v[{T}:{T+3}] offset:{off+CP}")
        for j in range(4):
            k(f"v_mov_b32 v{T+4+j}, {seq[1+j]}")
        k(f"ds_write_b128 v8, v[{T+4}:{T+7}] offset:{off+2*CP}")
        for j in range(4):
            k(f"v_alignbyte_b32 v{T+8+j}, {seq[1+j]}, {seq[j]}, 2")
        k(f"ds_write_b128 v8, v[{T+8}:{T+11}] offset:{off+3*CP}")
    AB = [16, 48]
    CACC = 80
    BR = 112

    def rdA(n):
        I = n if n < 8 else n - 8
        L = []
        for r in range(8):
            i = 8 * I + r
            b = AB[n & 1] + 4 * r
            L.append(f"ds_read_b64 v[{b}:{b+1}], v4 offset:{64*i}")
            L.append(f"ds_read_b64 v[{b+2}:{b+3}], v4 offset:{64*i+8}")
        return L

    def bslot(C):
        return C if C < 4 else 7 - C

    def rdB(C):
        return [f"ds_read_b128 v[{BR+32*bslot(C)+4*r}:{BR+32*bslot(C)+4*r+3}], v5 offset:{64*(56-(8*C-r))}" for r in range(8)]

    k.wait(lg=0)
    k.wait_tag("u")
    stamp("ready")
    a0, b0 = rdA(0), rdB(0)
    for r in range(8):
        k(a0[2 * r]); k(a0[2 * r + 1]); k(b0[r])
    started = set()
    early = []
    for p in range(NP1):
        early += wgu_dma(p)
    for i in range(NE1):
        early += wd_load(i)
    tot = 0
    for n in range(12):
        I = n if n < 8 else n - 8
        Cs = [C for C in (range(4) if n < 8 else range(4, 8)) if C + I <= 7]
        pend = rdA(n + 1) if n < 11 else []
        bpend = {5: rdB(4), 6: rdB(5), 7: rdB(6), 8: rdB(7)}.get(n) or []
        nm = 8 * len(Cs)
        cnt = 0
        for C in Cs:
            c = C + I
            nb = rdB(C + 1) if (n == 0 and C < 3) else []
            for r in range(8):
                if nb:
                    k(nb.pop(0))
                a = AB[n & 1] + 4 * r
                b = BR + 32 * bslot(C) + 4 * r
                acc = f"v[{CACC+4*c}:{CACC+4*c+3}]"
                src = acc if c in started else "0"
                started.add(c)
                k(f"v_mfma_f32_16x16x32_bf16 {acc}, v[{a}:{a+3}], v[{b}:{b+3}], {src}")
                cnt += 1
                tot += 1
                while pend and (16 - len(pend)) * max(nm - 4, 4) < cnt * 16:
                    k(pend.pop(0))
                if bpend and cnt % 2 == 0:
                    k(bpend.pop(0))
                if tot % EVERY == 0:
                    emit_one_vmem(early)
        for x in pend + bpend:
            k(x)
    stamp("mfma")
    k("v_lshlrev_b32 v11, 16, v11")
    k("v_lshlrev_b32 v8, 5, v2")
    k("v_lshl_add_u32 v8, v3, 3, v8")
    k(f"v_sub_u32 v9, {UOFF+504}, v8")
    k("v_add_u32 v9, s61, v9")
    k("v_add_u32 v8, s61, v8")
    KV = 16
    for c in range(8):
        k(f"ds_read_b64 v[{KV+2*c}:{KV+2*c+1}], v9 offset:{(7-c)*512}")
    for c in range(8):
        a = CACC + 4 * c
        unpack(k, "v40", "v41", f"v{KV+2*c}")
        unpack(k, "v42", "v43", f"v{KV+2*c+1}")
        k(f"v_fmac_f32 v{a+3}, v40, v11")
        k(f"v_fmac_f32 v{a+2}, v41, v11")
        k(f"v_fmac_f32 v{a+1}, v42, v11")
        k(f"v_fmac_f32 v{a+0}, v43, v11")
        o = 44 + 2 * (c & 1)
        k(f"v_cvt_pk_bf16_f32 v{o}, v{a}, v{a+1}")
        k(f"v_cvt_pk_bf16_f32 v{o+1}, v{a+2}, v{a+3}")
        k(f"ds_write_b64 v8, v[{o}:{o+1}] offset:{c*512}")
    k("v_bfe_u32 v8, v1, 2, 2")
    k(f"v_mul_u32_u24 v8, {WREG}, v8")
    k("v_and_b32 v9, 3, v1")
    k("v_lshl_add_u32 v8, v9, 3, v8")
    k("v_lshl_add_u32 v8, v3, 5, v8")
    k("s_lshl_b32 s10, s3, 10")
    k(f"s_add_u32 s10, s10, {CB}")
    k("v_add_u32 v8, s10, v8")
    k(f"v_mul_u32_u24 v7, {XRT}, v3")
    k("v_lshl_add_u32 v7, v2, 3, v7")
    k(f"s_mul_i32 s12, s3, {32*XRT}")
    k("s_lshl_b32 s13, s56, 7")
    k("s_add_u32 s12, s12, s13")
    k(f"s_add_u32 s12, s12, {WS_Y}")
    k.wait(lg=0)
    k.barrier()
    YB = 64
    for it in range(8):
        k(f"ds_read_b64_tr_b16 v[{YB+2*it}:{YB+2*it+1}], v8 offset:{it*128}")
    for it in range(8):
        k(f"buffer_store_dwordx2 v[{YB+2*it}:{YB+2*it+1}], v7, {srd(SWS)}, s12 offen sc1", tag="cst")
        k(f"s_add_u32 s12, s12, {4*XRT}")
    stamp("cst")
    k("s_mul_i32 s12, s3, 160")
    k("s_add_u32 s12, s12, s56")
    k("s_lshl_b32 s12, s12, 7")
    k(f"s_add_u32 s12, s12, {SY_CF}")
    k("v_mov_b32 v15, 1")
    k("v_mov_b32 v14, 0")
    k.wait_tag("cst")
    ML(f"buffer_store_dword v15, v14, {srd(SSY)}, s12 offen sc1", 1)()
    stamp("cf")
    for x in early:
        emit(x)
    for p in range(NP1, 6):
        for x in wgu_dma(p):
            emit(x)
    for i in range(NE1, NE1 + NE2):
        for x in wd_load(i):
            emit(x)
    k.wait(lg=0)
    k.flush_hazards()
    k.branch("s_branch main_join", flush=False)

    k.label("main_idle", flush=False)
    k.vm, k.lg = list(saved0[0]), list(saved0[1])
    q_loads()
    for p in range(10):
        for x in wgu_dma(p):
            emit(x)
    for i in range(60):
        for x in wd_load(i):
            emit(x)
    k.wait(vm=0, lg=0)
    k.flush_hazards()

    k.label("main_join", flush=False)
    k.vm = [(set(), "unk")] * 63
    k("v_mov_b32 v184, 0x3f803f80")
    k("v_mov_b32 v186, 0")
    k("v_mov_b32 v187, 0")
    for i in range(12):
        k(f"v_dot2c_f32_bf16 v186, v{QR+i}, v184")
        k(f"v_dot2c_f32_bf16 v187, v{QR+i}, v{QR+i}")

    def red8(v):
        k(f"v_add_f32_dpp {v}, {v}, {v} row_ror:8 row_mask:0xf bank_mask:0xf")
        xsum16(k, v, "v185")
        xsum32(k, v, "v185")
    red8("v186")
    red8("v187")
    k("v_and_b32 v188, 7, v1")
    k("v_lshlrev_b32 v189, 3, v188")
    k("s_lshl_b32 s10, s3, 6")
    k(f"s_add_u32 s10, s10, {LQ}")
    k("v_add_u32 v190, s10, v189")
    k("ds_write_b64 v190, v[186:187]")
    k(f"v_add_u32 {VL16B}, 61440, {VL16}")
    k.srd(SX, 24, XSPAN + XFB, WS_X1)
    k.srd(SH, 24, HSPAN + HFB, WS_H)
    k.srd(SY_, 24, XFB, WS_Y)
    k(f"s_mul_i32 s56, s15, {HRT}")
    k("s_mul_i32 s10, s5, 1536")
    k("s_add_u32 s56, s56, s10")
    k("s_mul_i32 s10, s3, 12288")
    k(f"s_mul_i32 s57, s16, {HRT}")
    k("s_add_u32 s57, s57, s10")
    k("s_xor_b32 s11, s16, 1")
    k(f"s_mul_i32 s58, s11, {HRT}")
    k("s_add_u32 s58, s58, s10")
    k(f"s_mul_i32 s59, s16, {XRT}")
    k("s_mul_i32 s10, s8, 2560")
    k("s_add_u32 s59, s59, s10")
    k("v_and_b32 v204, 1, v3")
    k("v_lshrrev_b32 v205, 1, v3")
    k(f"v_mul_u32_u24 {VH2}, {HRT}, v204")
    k("v_lshlrev_b32 v206, 4, v2")
    k("v_lshl_add_u32 v206, v205, 8, v206")
    k(f"v_add_u32 {VH2}, {VH2}, v206")
    k(f"v_lshl_add_u32 {VT4}, v204, 3, v206")
    k("s_lshl_b32 s10, s14, 31")
    k(f"v_or_b32 {VT4S}, s10, {VT4}")
    k("s_lshl_b32 s10, s16, 4")
    k(f"v_add_u32 {VROW}, s10, v2")
    k(f"v_lshlrev_b32 {VGR}, 3, v2")
    k("v_cmp_eq_u32 vcc, 0, v3")
    k(f"v_mov_b32 v204, {OOB:#x}")
    k(f"v_cndmask_b32 {VGW}, v204, {VGR}, vcc")
    k(f"v_lshl_add_u32 {VQ128}, v3, 7, {VGR}")
    k(f"v_lshl_add_u32 {VGR}, v3, 9, {VGR}")
    k("v_cmp_eq_u32 vcc, 0, v1")
    k(f"v_cndmask_b32 {VFLAG}, v204, v1, vcc")
    k("s_lshl_b32 s10, s4, 3")
    k("s_add_u32 s10, s10, s7")
    k("s_lshl_b32 s10, s10, 5")
    k("s_lshl_b32 s11, s3, 3")
    k("s_add_u32 s10, s10, s11")
    k(f"v_and_b32 {VFPOLL}, 7, v1")
    k(f"v_add_u32 {VFPOLL}, s10, {VFPOLL}")
    k(f"v_lshlrev_b32 {VFPOLL}, 7, {VFPOLL}")
    k("s_lshr_b32 s10, s5, 1")
    k("s_add_u32 s62, s10, s6")
    k(f"s_mul_i32 s60, s62, {XRT}")
    k("s_mul_i32 s10, s3, 5120")
    k("s_add_u32 s60, s60, s10")
    k("s_and_b32 s10, s5, 1")
    k("s_lshl_b32 s10, s10, 3")
    k("v_add_u32 v191, s10, v188")
    k("v_lshrrev_b32 v192, 3, v1")
    k("v_lshlrev_b32 v192, 8, v192")
    k("v_lshl_add_u32 v193, v191, 3, v192")
    k("v_lshl_add_u32 v194, v191, 4, v192")
    k("v_cmp_gt_u32 vcc, 32, v1")
    k("v_cndmask_b32 v195, v204, v193, vcc")
    k("v_cndmask_b32 v196, v204, v194, vcc")
    k("s_lshl_b32 s10, s5, 11")
    k(f"s_add_u32 s10, s10, {WS_CS}")
    k("v_lshlrev_b32 v197, 3, v1")
    for i in range(4):
        k(f"buffer_load_dwordx2 v[{208+2*i}:{209+2*i}], v197, {srd(SWS)}, s10 offen offset:{i*512}")
    k.srd(SO, 26, XFB)
    k("s_and_b32 s10, s5, 15")
    k("s_mul_i32 s10, s10, 2560")
    k("s_add_u32 s26, s17, s10")
    k("s_min_u32 s27, s57, s58")
    k("s_bfe_u32 s10, s8, 0x10001")
    k(f"s_mul_i32 s10, s10, {HRT}")
    k("s_add_u32 s27, s27, s10")
    k("s_and_b32 s10, s8, 1")
    k("s_mul_i32 s10, s10, 6144")
    k("s_add_u32 s27, s27, s10")
    k("s_lshr_b32 s10, s4, 1")
    k("s_mul_i32 s10, s10, 160")
    k("s_mul_i32 s11, s3, 40")
    k("s_add_u32 s10, s10, s11")
    k("s_lshl_b32 s12, s10, 7")
    k(f"s_add_u32 s12, s12, {SY_CF}")
    k("v_lshlrev_b32 v205, 7, v1")
    k.wait(lg=0)
    k.barrier()
    k(f"v_add_u32 v190, {LQ}, v189")
    for w in range(4):
        k(f"ds_read_b64 v[{16+2*w}:{17+2*w}], v190 offset:{w*64}")
    c1 = [ML(f"buffer_load_dword v206, v205, {srd(SSY)}, s12 offen sc1", 1)]
    emit(c1[0])
    k("v_pk_add_f32 v[16:17], v[16:17], v[18:19]")
    k("v_pk_add_f32 v[20:21], v[20:21], v[22:23]")
    k("v_pk_add_f32 v[16:17], v[16:17], v[20:21]")
    k("v_sub_f32 v17, 0, v17")
    finish_stats("v16", "v17", 198)
    k("v_mul_f32 v198, v198, v199")
    poll(c1, ["v206"], None, sleep=8, nl=1)
    cl = [ML(f"buffer_load_dword v206, v205, {srd(SSY)}, s12 offen sc1", 40)]
    emit(cl[0])
    poll(cl, ["v206"], None, sleep=3, nl=40)
    k.vm = []
    stamp("join")
    YX = 16
    for i in range(3):
        for hh in range(2):
            k(f"buffer_load_dwordx2 v[{YX+4*i+2*hh}:{YX+4*i+2*hh+1}], v{193 if i < 2 else 195}, {srd(SY_)}, s60 offen offset:{(i&1)*2048+hh*128} sc1")
        if i == 1:
            k("s_add_u32 s61, s60, 0")
            k("s_add_u32 s60, s60, 4096")
    k(f"v_add_u32 v197, {LC}, v197")
    k("v_pk_add_f32 v[208:209], v[208:209], v[210:211]")
    k("v_pk_add_f32 v[212:213], v[212:213], v[214:215]")
    k("v_pk_add_f32 v[208:209], v[208:209], v[212:213]")
    k("ds_write_b64 v197, v[208:209]")
    k("v_mov_b32 v186, 0")
    k("v_mov_b32 v187, 0")
    XO = 32
    for i in range(3):
        for d in range(4):
            unpack(k, "v200", "v201", f"v{QR+4*i+d}")
            unpack(k, "v202", "v203", f"v{YX+4*i+d}")
            k("v_pk_fma_f32 v[206:207], v[200:201], v[198:199], v[198:199] op_sel:[0,1,0] op_sel_hi:[1,1,0]")
            k("v_pk_fma_f32 v[200:201], v[206:207], v[202:203], v[200:201]")
            k(f"v_cvt_pk_bf16_f32 v{XO+4*i+d}, v200, v201")
        k(f"buffer_store_dwordx4 v[{XO+4*i}:{XO+4*i+3}], v{194 if i < 2 else 196}, {srd(SX)}, s{61 if i < 2 else 60} offen offset:{(i&1)*2048} sc1", tag="xst")
    for i in range(12):
        k(f"v_dot2c_f32_bf16 v186, v{XO+i}, v184")
        k(f"v_dot2c_f32_bf16 v187, v{XO+i}, v{XO+i}")
    red8("v186")
    red8("v187")
    k("v_or_b32 v187, 0x80000000, v187")
    k("s_lshl_b32 s12, s62, 2")
    k("s_add_u32 s12, s12, s3")
    k("s_lshl_b32 s12, s12, 7")
    k(f"s_add_u32 s12, s12, {SY_ST1}")
    k("v_lshlrev_b32 v191, 3, v191")
    k.wait_tag("xst")
    ML(f"buffer_store_dwordx2 v[186:187], v191, {srd(SSY)}, s12 offen sc1", 8)()
    stamp("x1")
    k(f"v_lshlrev_b32 {VL128}, 7, v1")
    for x in st1_loads(0, TMP + 24):
        emit(x)
    stats1(0, STA)
    stamp("p1a")
    for x in x_pf(0, 0):
        emit(x)
    for kk in range(DIST):
        for x in x_loads(0, 0, kk, 2 * kk):
            emit(x)
    k.barrier()

    sched = {}
    wi = NE1 + NE2
    for kk in range(20):
        L = []
        if kk < 4:
            L += wgu_dma(6 + kk)
        if kk + DIST < 20:
            L += x_loads(0, 0, kk + DIST, 2 * (kk + DIST))
        else:
            kb = kk + DIST - 20
            L += x_loads(0, 1, kb, 40 + 2 * kb)
        if wi < 60 and kk >= 4:
            L += wd_load(wi)
            wi += 1
        if kk == 1:
            L = st1_loads(1, TMP + 24) + L
        if kk == 7:
            L = [lambda: stats1(1, STB)] + x_pf(0, 1) + L
        sched[kk] = L
    g1_main(0, sched, first=True)
    stamp("g1a")
    g1_epilogue(0, 0, STA)
    stamp("e1a")
    extra = {}
    per = max(1, -(-(60 - wi) // 12))
    for kk in range(12):
        extra[kk] = []
        for _ in range(per):
            if wi < 60:
                extra[kk] += wd_load(wi)
                wi += 1
    assert wi == 60
    extra[12] = res_loads(0)
    sched, rest = g1b_sched(0, extra)
    g1_main(40, sched)
    stamp("g1b")
    for L in rest:
        for x in L:
            emit(x)
    g1_epilogue(0, 1, STB)
    stamp("e1b")

    NH0 = 5

    def g2a(layer):
        g2_main(80, {4: [lambda: h_flag(layer, 1)], 11: h_poll_loads(layer, 1)})
        stamp(f"g2a{layer}")
        h_poll(layer, 1)
        stamp(f"ph{layer}")
        for x in h_pf(layer, 1):
            emit(x)
        for kk in range(NH0):
            for x in h_loads(layer, 1, kk, 2 * kk):
                emit(x)

    def g2b_sched(layer, extra):
        sched = {}
        for kk in range(12):
            L = []
            if kk + NH0 < 12:
                L += h_loads(layer, 1, kk + NH0, 2 * (kk + NH0))
            sched[kk] = L + extra.get(kk, [])
        return sched

    g2a(0)
    g2_reduce(X1R[0], X2[0])
    part_stats(X2[0], 0, SY_ST2)
    stamp("r2a")
    g2_main(0, g2b_sched(0, {7: res_loads(1), 9: st2_loads(0, G2R)}))
    stamp("g2b")
    finalize(0, X2[0], G2R)
    g2_reduce(X1R[1], X2[1])
    part_stats(X2[1], 1, SY_ST2)
    part_stats(X2[0], 0, SY_ST3, pre_wait="xst")
    stamp("s3a")
    for x in st2_loads(1, G2R):
        emit(x)
    finalize(1, X2[1], G2R)
    for x in st3_loads(0, TMP):
        emit(x)
    part_stats(X2[1], 1, SY_ST3, pre_wait="xst")
    stamp("fin")
    stats3(0, STA)
    stamp("p3a")
    for x in x_pf(1, 0):
        emit(x)
    for kk in range(DIST):
        for x in x_loads(1, 0, kk, 2 * kk):
            emit(x)
    sched = {}
    for kk in range(20):
        L = []
        if kk + DIST < 20:
            L += x_loads(1, 0, kk + DIST, 2 * (kk + DIST))
        else:
            kb = kk + DIST - 20
            L += x_loads(1, 1, kb, 40 + 2 * kb)
        if kk == 1:
            L = st3_loads(1, TMP) + L
        if kk == 7:
            L = [lambda: stats3(1, STB)] + x_pf(1, 1) + L
        sched[kk] = L
    g1_main(0, sched)
    stamp("g1a'")
    g1_epilogue(1, 0, STA)
    stamp("e1a'")
    sched, rest = g1b_sched(1, {})
    g1_main(40, sched)
    stamp("g1b'")
    for L in rest:
        for x in L:
            emit(x)
    g1_epilogue(1, 1, STB)
    stamp("e1b'")
    g2a(1)
    g2_reduce(X1R[0], X2[0])
    out_store(0, X2[0])
    stamp("r2a'")
    g2_main(0, g2b_sched(1, {}))
    g2_reduce(X1R[1], X2[1])
    out_store(1, X2[1])
    k.prof_end(1, 24, 3, names="main")
    k.label("main_end", flush=False)
    k("s_endpgm")
    k.raw("main_code_end:")
    return k


if __name__ == "__main__":
    if os.environ.get("PROF"):
        Kern.PROF = True
    pre = gen_pre()
    main = gen_main()
    out = sys.argv[1] if len(sys.argv) > 1 else "v7.s"
    open(out, "w").write(build_file(HEADER, [pre, main], [pre, main]))
    json.dump(PROFINFO, open(out + ".prof.json", "w"))
    for kk in (pre, main):
        print(kk.name, "instrs", kk.nins, "vgpr", kk.maxv + 1, "agpr", kk.maxa + 1, "sgpr", kk.maxs + 1, "lds", kk.lds)
```

```python
import re

TRANS = ("v_exp_f32", "v_log_f32", "v_rcp_f32", "v_rsq_f32", "v_sqrt_f32", "v_sin_f32", "v_cos_f32",
         "v_rcp_iflag_f32")
NO_DST_SALU = ("s_cmp", "s_cbranch", "s_branch", "s_barrier", "s_waitcnt", "s_nop", "s_setprio", "s_sleep",
               "s_endpgm", "s_bitcmp", "s_setreg", "s_sendmsg")

_reg_re = re.compile(r"^(-?)(\|?)(abs\()?([vas])(\d+)\)?\|?$")
_rng_re = re.compile(r"^(-?)(\|?)(abs\()?([vas])\[(\d+):(\d+)\]\)?\|?$")


def regs_of(tok):
    tok = tok.strip()
    m = _reg_re.match(tok)
    if m:
        return [m.group(4) + m.group(5)]
    m = _rng_re.match(tok)
    if m:
        return [m.group(4) + str(i) for i in range(int(m.group(5)), int(m.group(6)) + 1)]
    if tok in ("vcc", "vcc_lo", "vcc_hi"):
        return ["vcc"]
    if tok in ("exec", "exec_lo", "exec_hi"):
        return ["exec"]
    if tok == "m0":
        return ["m0"]
    return []


def split_ops(rest):
    ops = []
    depth = 0
    cur = ""
    for ch in rest:
        if ch in "[(":
            depth += 1
        elif ch in "])":
            depth -= 1
        if ch == "," and depth == 0:
            ops.append(cur.strip())
            cur = ""
        else:
            cur += ch
    last = cur.strip()
    mods = []
    if last:
        parts = []
        depth = 0
        c2 = ""
        for ch in last:
            if ch in "[(":
                depth += 1
            elif ch in "])":
                depth -= 1
            if ch.isspace() and depth == 0:
                if c2:
                    parts.append(c2)
                c2 = ""
            else:
                c2 += ch
        if c2:
            parts.append(c2)
        ops.append(parts[0])
        mods = parts[1:]
    return ops, mods


class Ins:
    __slots__ = ("text", "mn", "ops", "mods", "kind", "rd", "wr", "passes", "A", "B", "C", "D", "dpp", "trans",
                 "lds_dma", "wide_store", "data")


def parse(text):
    t = text.split(";")[0].strip()
    sp = t.split(None, 1)
    mn = sp[0]
    ops, mods = split_ops(sp[1]) if len(sp) > 1 else ([], [])
    I = Ins()
    I.text = text
    I.mn = mn
    I.ops = ops
    I.mods = mods
    I.rd = []
    I.wr = []
    I.passes = 0
    I.A = I.B = I.C = I.D = []
    I.dpp = False
    I.trans = False
    I.lds_dma = False
    I.wide_store = False
    I.data = []
    R = lambda i: regs_of(ops[i]) if i < len(ops) else []
    allr = lambda a: [r for i in range(a, len(ops)) for r in R(i)]
    base = re.sub(r"_(e32|e64|dpp|sdwa)$", "", mn)
    if mn.startswith("v_mfma"):
        I.kind = "mfma"
        I.D = R(0); I.A = R(1); I.B = R(2); I.C = R(3)
        I.passes = 8 if "32x32x16" in mn else 4 if "16x16x32" in mn else None
        assert I.passes, mn
        I.rd = I.A + I.B + I.C
        I.wr = I.D
    elif mn.startswith("v_"):
        I.kind = "valu"
        I.dpp = any(m.startswith(("row_", "quad_perm", "wave_")) for m in mods) or base.startswith("v_permlane")
        I.trans = base in TRANS
        if base.startswith("v_cmp"):
            I.wr = R(0); I.rd = allr(1)
            assert not base.startswith("v_cmpx")
        elif base in ("v_readfirstlane_b32", "v_readlane_b32"):
            I.wr = R(0); I.rd = allr(1)
        elif (base.startswith("v_permlane") and "swap" in base) or base == "v_swap_b32":
            I.wr = R(0) + R(1); I.rd = R(0) + R(1)
        elif base.startswith(("v_fmac", "v_dot2c", "v_pk_fmac", "v_writelane")):
            I.wr = R(0); I.rd = allr(0)
        elif base in ("v_add_co_u32", "v_sub_co_u32", "v_subrev_co_u32", "v_addc_co_u32", "v_subb_co_u32",
                      "v_mad_u64_u32"):
            I.wr = R(0) + R(1); I.rd = allr(2)
        elif base == "v_nop":
            pass
        else:
            I.wr = R(0); I.rd = allr(1)
            if I.dpp or any(m.startswith("dst_unused:UNUSED_PRESERVE") for m in mods):
                I.rd = I.rd + R(0)
            if base == "v_cndmask_b32" and len(ops) == 3:
                I.rd.append("vcc")
    elif mn.startswith("buffer_load"):
        I.kind = "vmem"
        if "lds" in mods:
            I.lds_dma = True
            I.rd = allr(0) + ["m0"]
        else:
            I.wr = R(0); I.rd = allr(1)
            if "d16" in mn:
                I.rd += R(0)
    elif mn.startswith("buffer_store"):
        I.kind = "vmem"
        I.rd = allr(0); I.data = R(0)
        I.wide_store = mn.endswith(("x3", "x4"))
    elif mn.startswith("buffer_atomic"):
        I.kind = "vmem"
        I.rd = allr(0)
        if "sc0" in mods:
            I.wr = R(0)
    elif mn.startswith(("buffer_wbl2", "buffer_inv")):
        I.kind = "vmem"
    elif mn.startswith("global_load_lds"):
        I.kind = "vmem"; I.lds_dma = True
        I.rd = allr(0) + ["m0"]
    elif mn.startswith("global_load"):
        I.kind = "vmem"
        I.wr = R(0); I.rd = allr(1)
    elif mn.startswith("global_store"):
        I.kind = "vmem"
        I.rd = allr(0); I.data = R(1)
        I.wide_store = mn.endswith(("x3", "x4"))
    elif mn.startswith("global_atomic"):
        I.kind = "vmem"
        if "sc0" in mods:
            I.wr = R(0); I.rd = allr(1)
        else:
            I.rd = allr(0)
    elif mn.startswith("ds_"):
        I.kind = "ds"
        if mn.startswith(("ds_read", "ds_bpermute", "ds_permute", "ds_swizzle")) or "_rtn" in mn:
            I.wr = R(0); I.rd = allr(1)
            if "d16" in mn:
                I.rd += R(0)
        else:
            I.rd = allr(0)
    elif mn.startswith(("s_load", "s_memtime", "s_memrealtime", "s_buffer_load")):
        I.kind = "smem"
        I.wr = R(0); I.rd = allr(1)
    elif mn.startswith("s_"):
        I.kind = "salu"
        if mn.startswith(NO_DST_SALU):
            I.rd = allr(0)
        elif "saveexec" in mn:
            I.wr = R(0) + ["exec"]; I.rd = allr(1) + ["exec"]
        else:
            I.wr = R(0); I.rd = allr(1)
            if mn.startswith(("s_addk", "s_mulk", "s_cmov")):
                I.rd += R(0)
    else:
        raise ValueError("unknown instruction: " + text)
    return I


PROFINFO = {}


class Kern:
    def __init__(self, name, lds=0, grid=None, block=256):
        self.name = name
        self.lds = lds
        self.grid = grid
        self.block = block
        self.lines = []
        self.t = 0
        self.valu_w = {}
        self.valu_sw = {}
        self.mfma_w = {}
        self.mfma_c = {}
        self.st_data = {}
        self.dl_w = {}
        self.m0_w = -100
        self.vm = []
        self.lg = []
        self.maxv = -1
        self.maxa = -1
        self.maxs = -1
        self.nins = 0
        self.uid = 0
        self.auto = True

    def raw(self, s):
        self.lines.append(s)

    def comment(self, s):
        self.lines.append("    ; " + s)

    def _nop(self, n):
        while n > 0:
            k = min(n, 16)
            self.lines.append(f"    s_nop {k-1}")
            self.t += k
            self.nins += 1
            n -= k

    def _waitcnt(self, vm=None, lg=None):
        parts = []
        if vm is not None:
            vm = min(vm, 63)
            if vm < len(self.vm):
                parts.append(f"vmcnt({vm})")
                self.vm = self.vm[len(self.vm) - vm:] if vm else []
        if lg is not None:
            if any(e[2] for e in self.lg):
                lg = 0
            lg = min(lg, 15)
            if lg < len(self.lg):
                parts.append(f"lgkmcnt({lg})")
                self.lg = self.lg[len(self.lg) - lg:] if lg else []
        if parts:
            self.lines.append("    s_waitcnt " + " ".join(parts))
            self.t += 1
            self.nins += 1

    def wait(self, vm=None, lg=None):
        self._waitcnt(vm, lg)

    def wait_tag(self, tag):
        idx = [i for i, e in enumerate(self.vm) if e[1] == tag]
        if idx:
            self._waitcnt(vm=len(self.vm) - 1 - max(idx))

    def wait_lg_tag(self, tag):
        idx = [i for i, e in enumerate(self.lg) if e[1] == tag]
        if idx:
            self._waitcnt(lg=len(self.lg) - 1 - max(idx))

    def flush_hazards(self):
        need = 0
        for r, (t, p, d) in self.mfma_w.items():
            need = max(need, (8 if p == 4 else 12) - (self.t - t - 1))
        for r, (t, tr) in self.valu_w.items():
            need = max(need, 2 - (self.t - t - 1))
        for r, t in self.valu_sw.items():
            need = max(need, 5 - (self.t - t - 1))
        for r, t in self.st_data.items():
            need = max(need, 2 - (self.t - t - 1))
        for r, (t, mn) in self.dl_w.items():
            need = max(need, 3 - (self.t - t - 1))
        need = max(need, 1 - (self.t - self.m0_w - 1))
        if need > 0:
            self._nop(need)

    def label(self, name, flush=True):
        if flush:
            self._waitcnt(0, 0)
            self.flush_hazards()
        self.lines.append(name + ":")

    def branch(self, text, flush=True):
        if flush:
            self._waitcnt(0, 0)
            self.flush_hazards()
        self(text)

    def barrier(self):
        self("s_barrier")

    def newlabel(self, base="L"):
        self.uid += 1
        return f"{self.name}_{base}{self.uid}"

    def __call__(self, text, tag=None):
        I = parse(text)
        touched = I.rd + I.wr
        for r in touched:
            if r[0] == "v" and r != "vcc":
                self.maxv = max(self.maxv, int(r[1:]))
            elif r[0] == "a":
                self.maxa = max(self.maxa, int(r[1:]))
            elif r[0] == "s":
                self.maxs = max(self.maxs, int(r[1:]))
        if I.mn == "s_waitcnt":
            raise ValueError("use .wait()")
        if self.auto:
            ts = set(touched)
            vmn = lgn = None
            for i, e in enumerate(self.vm):
                if e[0] & ts:
                    vmn = len(self.vm) - 1 - i
            for i, e in enumerate(self.lg):
                if e[0] & ts:
                    lgn = len(self.lg) - 1 - i
            if vmn is not None or lgn is not None:
                self._waitcnt(vmn, lgn)
        need = 0

        def req(t, n):
            nonlocal need
            need = max(need, n - (self.t - t - 1))

        XD = {4: 8, 8: 12}
        for r in touched:
            if r in self.dl_w:
                t, mn = self.dl_w[r]
                if mn == I.mn:
                    srcab = regs_of(I.ops[1]) + regs_of(I.ops[2])
                    if r in srcab:
                        req(t, 3)
                else:
                    req(t, 3)
        if I.kind == "mfma":
            for r in I.rd:
                if r in self.valu_w:
                    req(self.valu_w[r][0], 2)
            for r in I.A + I.B:
                if r in self.mfma_w:
                    t, p, d = self.mfma_w[r]
                    req(t, XD[p])
            for r in I.C + I.D:
                if r in self.mfma_w:
                    t, p, d = self.mfma_w[r]
                    if d == tuple(I.C) and p == I.passes and I.C == I.D:
                        pass
                    elif d == tuple(I.C) and p == I.passes and r in I.C:
                        pass
                    else:
                        req(t, {4: 6, 8: 10}[p])
        elif I.kind == "valu":
            for r in touched:
                if r in self.mfma_w:
                    t, p, d = self.mfma_w[r]
                    req(t, XD[p])
            for r in I.wr:
                if r in self.mfma_c:
                    t, p = self.mfma_c[r]
                    req(t, {4: 3, 8: 7}[p])
                if r in self.st_data:
                    req(self.st_data[r], 2)
            for r in I.rd:
                if r in self.valu_w:
                    t, tr = self.valu_w[r]
                    if tr and not I.trans:
                        req(t, 1)
                    if I.dpp:
                        req(t, 2)
                    if I.mn.startswith(("v_readlane", "v_readfirstlane")):
                        req(t, 1)
                if r in self.valu_sw:
                    req(self.valu_sw[r], 4 if I.mn.startswith(("v_readlane", "v_writelane")) else 2)
        elif I.kind in ("vmem", "ds"):
            for r in touched:
                if r in self.mfma_w:
                    t, p, d = self.mfma_w[r]
                    req(t, XD[p])
            for r in I.rd:
                if r in self.valu_sw:
                    req(self.valu_sw[r], 5)
            for r in I.wr:
                if r in self.st_data:
                    req(self.st_data[r], 1)
                if r in self.mfma_c:
                    t, p = self.mfma_c[r]
                    req(t, {4: 3, 8: 7}[p])
            if I.lds_dma:
                req(self.m0_w, 1)
        elif I.kind in ("salu", "smem"):
            for r in I.rd:
                if r in self.valu_sw:
                    req(self.valu_sw[r], 1)
        if need > 0:
            self._nop(need)
        self.lines.append("    " + text)
        self.nins += 1
        now = self.t
        if I.mn == "s_nop":
            self.t += int(I.ops[0], 0) + 1
        else:
            self.t += 1
        for r in I.wr:
            self.valu_w.pop(r, None)
            self.mfma_w.pop(r, None)
            self.valu_sw.pop(r, None)
            self.dl_w.pop(r, None)
        if I.mn.startswith("v_dot"):
            for r in I.wr:
                self.dl_w[r] = (now, I.mn)
        if I.kind == "mfma":
            for r in I.D:
                self.mfma_w[r] = (now, I.passes, tuple(I.D))
            for r in I.C:
                self.mfma_c[r] = (now, I.passes)
        elif I.kind == "valu":
            for r in I.wr:
                if r[0] in "va" and r != "vcc":
                    self.valu_w[r] = (now, I.trans)
                else:
                    self.valu_sw[r] = now
        elif I.kind == "vmem":
            if I.wide_store:
                for r in I.data:
                    self.st_data[r] = now
            self.vm.append((set(I.wr), tag))
        elif I.kind == "ds":
            self.lg.append((set(I.wr), tag, False))
        elif I.kind == "smem":
            self.lg.append((set(I.wr), tag, True))
        elif I.kind == "salu":
            if "m0" in I.wr:
                self.m0_w = now
        if self.nins % 64 == 0:
            for d in (self.valu_sw, self.st_data):
                for r in [r for r, t in d.items() if self.t - t > 24]:
                    del d[r]
            for d in (self.valu_w, self.mfma_w, self.mfma_c, self.dl_w):
                for r in [r for r, e in d.items() if self.t - e[0] > 24]:
                    del d[r]

    PROF = False
    import os as _os
    CLK = 's_memrealtime' if _os.environ.get('REAL') else 's_memtime'
    def stamp(self, name):
        if not Kern.PROF:
            return
        if not hasattr(self, "stamps"):
            self.stamps = []
        i = len(self.stamps)
        assert i < 14
        self.stamps.append(name)
        self(f"{Kern.CLK} s[{64+2*i}:{65+2*i}]")

    def prof_begin(self):
        if not Kern.PROF:
            return
        self("s_memrealtime s[92:93]")
        self.stamp("start")

    def prof_end(self, slot, ws_lo, wave_sreg, slot_sreg=None, names=None):
        if not Kern.PROF:
            return
        self.stamp("end")
        self.wait(vm=0)
        self.stamp("drained")
        self("s_memrealtime s[94:95]")
        self.wait(lg=0)
        self.srd(96, ws_lo, 0x400000, 0x8000000)
        self("s_lshl_b32 s100, s2, 4")
        self(f"s_add_u32 s100, s100, s{wave_sreg}")
        self("s_lshl_b32 s100, s100, 6")
        if slot_sreg is None:
            self(f"s_add_u32 s100, s100, {slot*0x40000}")
        else:
            self(f"s_add_u32 s100, s100, s{slot_sreg}")
        self("v_mov_b32 v0, s100")
        vals = ["s92", "s94"] + [f"s{64+2*i}" for i in range(len(self.stamps))]
        for i, v in enumerate(vals):
            self(f"v_mov_b32 v1, {v}")
            self(f"buffer_store_dword v1, v0, s[96:99], 0 offen offset:{4*i}")
        if slot_sreg is None:
            PROFINFO[slot] = (names or self.name, list(self.stamps))
        else:
            for sl, nm in zip(slot, names):
                PROFINFO[sl] = (nm, list(self.stamps))

    def srd(self, d, ptr_lo, nbytes, off=0):
        if off:
            self(f"s_add_u32 s{d}, s{ptr_lo}, {off}")
            self(f"s_addc_u32 s{d+1}, s{ptr_lo+1}, 0")
        else:
            self(f"s_mov_b32 s{d}, s{ptr_lo}")
            self(f"s_mov_b32 s{d+1}, s{ptr_lo+1}")
        self(f"s_mov_b32 s{d+2}, {nbytes}")
        self(f"s_mov_b32 s{d+3}, 0x00020000")

    def text(self):
        hdr = [f".globl {self.name}", ".p2align 8", f".type {self.name},@function", f"{self.name}:"]
        return "\n".join(hdr + self.lines) + "\n"

    def descriptor(self):
        nv = self.maxv + 1
        acc = max(4, (nv + 3) // 4 * 4)
        tot = acc + self.maxa + 1 if self.maxa >= 0 else nv
        assert nv <= 256 and tot <= 512, (nv, tot)
        ns = max(self.maxs + 1, 8)
        assert ns <= 102
        return f""".p2align 6
.amdhsa_kernel {self.name}
  .amdhsa_next_free_vgpr {tot}
  .amdhsa_next_free_sgpr {ns}
  .amdhsa_accum_offset {acc}
  .amdhsa_group_segment_fixed_size 0
  .amdhsa_kernarg_size 104
  .amdhsa_user_sgpr_count 2
  .amdhsa_user_sgpr_kernarg_segment_ptr 1
  .amdhsa_system_sgpr_workgroup_id_x 1
  .amdhsa_float_denorm_mode_32 3
.end_amdhsa_kernel
"""


def build_file(header_comment, kerns, launches):
    out = [header_comment.rstrip("\n")]
    for k in launches:
        out.append(f"; @launch kernel={k.name} grid=({k.grid},1,1) block=({k.block},1,1) lds={k.lds}")
    out.append('.amdgcn_target "amdgcn-amd-amdhsa--gfx950"')
    out.append(".text")
    for k in kerns:
        out.append(k.text())
    out.append('.section .rodata,"a"')
    for k in kerns:
        out.append(k.descriptor())
    return "\n".join(out)
```

```python
import sys, os, json
sys.path.insert(0, "dev")
from asmdsl import *
from gen1 import S, D, F, EPS, f2u, unpack, reduce16, xsum16, xsum32, HEADER, XFB, HFB, WDB

KNAME = "interleave_layers__ssm_conv_h3__swiglu_ffn__prompt_kernel"
WS_KVT = 0x0000000
WS_QST = 0x0300000
WS_WGU = 0x0400000
WGU_M = 20 * 6144
WGUB = 32 * WGU_M
WS_CS = 0x0800000
WS_WD = 0x0900000
WS_Y = 0x0C00000
WS_X1 = 0x0F00000
WS_H = 0x1200000
WS_X3 = 0x1D00000
WS_H2 = 0x2000000
WS_SYNC = 0x2800000
SY_ST1 = 0
SY_ST2 = 0x10000
SY_ST3 = 0x50000
SY_HF = 0x90000
SY_CF = 0x110000
SY_PF = 0x124000
SY_QF = 0x128000
SYNCB = 0x12C000
WS_QX = 0x2C00000
XBLK = 40960
WSB = 0x3000000
XRT = 20480
HRT = 49152
OOB = 0x80000000
LOG2E = 1.4426950408889634
SPIN_MAX = 1 << 14
NPREP = 96
STAMPS = os.environ.get("STAMPS", "").split(",")
NP1 = int(os.environ.get("NP1", "4"))
NE1 = int(os.environ.get("NE1", "30"))
NE2 = int(os.environ.get("NE2", "0"))
MAP = int(os.environ.get("MAP", "2"))
PF = int(os.environ.get("PF", "0"))
FK = int(os.environ.get("FK", "10"))
HFK = int(os.environ.get("HFK", "4"))
S3K = int(os.environ.get("S3K", "15"))
EVERY = int(os.environ.get("EVERY", "5"))


def srd(n):
    return f"s[{n}:{n+3}]"


def mkstamp(k):
    def stamp(n):
        if n in STAMPS:
            if hasattr(k, "stamps") and n in k.stamps:
                if Kern.PROF:
                    i = k.stamps.index(n)
                    k(f"{Kern.CLK} s[{64+2*i}:{65+2*i}]")
            else:
                k.stamp(n)
    return stamp


def in_srd(k, slot, karg_off, nbytes):
    k(f"s_load_dwordx2 s[{slot}:{slot+1}], s[0:1], {karg_off}")
    k(f"s_mov_b32 s{slot+2}, {nbytes}")
    k(f"s_mov_b32 s{slot+3}, 0x00020000")


def gen_pre():
    k = Kern("pre_kernel", lds=8192, grid=384, block=128)
    stamp = mkstamp(k)
    SA, SB, SC_, SD_, SWS = 28, 32, 36, 40, 48
    k.prof_begin()
    k(f"s_cmp_ge_u32 s2, {k.grid}")
    k.branch("s_cbranch_scc1 pre_end", flush=False)
    k("s_load_dwordx2 s[24:25], s[0:1], 96")
    k("s_cmp_ge_u32 s2, 320")
    k.branch("s_cbranch_scc1 pre_q", flush=False)
    saved0 = (list(k.vm), list(k.lg))
    in_srd(k, SA, 8, S * D * 2)
    in_srd(k, SB, 16, S * D * 2)
    in_srd(k, SC_, 24, D * 8)
    in_srd(k, SD_, 32, D * 4096)
    k("v_lshrrev_b32 v1, 6, v0")
    k("v_readfirstlane_b32 s3, v1")
    k("v_and_b32 v1, 63, v0")
    k("s_lshr_b32 s57, s2, 5")
    k("s_and_b32 s58, s2, 31")
    k("v_lshrrev_b32 v4, 3, v1")
    k("v_and_b32 v5, 7, v1")
    k("s_lshl_b32 s10, s58, 6")
    k("s_lshl_b32 s11, s3, 5")
    k("s_add_u32 s10, s10, s11")
    k("v_lshlrev_b32 v6, 2, v4")
    k("v_add_u32 v6, s10, v6")
    k("v_mul_u32_u24 v7, 1280, v6")
    k("v_lshl_add_u32 v7, v5, 4, v7")
    k("s_lshl_b32 s12, s57, 7")
    k("v_add_u32 v7, s12, v7")
    KR, VR, WR = 16, 44, 60
    k("v_lshlrev_b32 v9, 6, v5")
    k("s_lshl_b32 s12, s57, 9")
    for j in (3, 4, 5, 6):
        k(f"buffer_load_dwordx4 v[{KR+4*j}:{KR+4*j+3}], v7, {srd(SA)}, 0 offen offset:{(j-3)*1280}")
    for i in range(4):
        k(f"buffer_load_dwordx4 v[{VR+4*i}:{VR+4*i+3}], v7, {srd(SB)}, 0 offen offset:{i*1280}")
    for i in range(4):
        k(f"buffer_load_dwordx4 v[{WR+4*i}:{WR+4*i+3}], v9, {srd(SC_)}, s12 offen offset:{16*i}")
    for j in (2, 1, 0):
        k(f"v_add_u32 v8, {((j-3)*1280) & 0xffffffff:#x}, v7")
        k(f"buffer_load_dwordx4 v[{KR+4*j}:{KR+4*j+3}], v8, {srd(SA)}, 0 offen")
    k.srd(SWS, 24, WSB)
    k("s_lshl_b32 s10, s3, 6")
    k("s_sub_u32 s10, 120, s10")
    k("v_lshlrev_b32 v8, 3, v4")
    k("v_sub_u32 v8, s10, v8")
    k("v_lshlrev_b32 v9, 4, v5")
    k("v_xor_b32 v8, v8, v9")
    k("v_lshl_add_u32 v8, v5, 10, v8")
    k("s_lshl_b32 s10, s3, 12")
    k("v_lshlrev_b32 v11, 7, v4")
    k("v_add_u32 v11, s10, v11")
    k("s_lshl_b32 s11, s3, 2")
    for j in range(4):
        k(f"s_add_u32 s12, s11, {j}")
        k(f"v_xor_b32 v{12+j}, s12, v5")
        k(f"v_lshl_add_u32 v{12+j}, v{12+j}, 4, v11")
    k("v_lshl_add_u32 v9, v4, 12, v9")
    k("s_lshl_b32 s10, s57, 6")
    k("s_lshl_b32 s11, s3, 5")
    k("s_add_u32 s10, s10, s11")
    k("s_lshl_b32 s10, s10, 12")
    k("s_lshl_b32 s11, s58, 7")
    k("s_sub_u32 s11, 3968, s11")
    k("s_add_u32 s10, s10, s11")
    WF = 80
    for c in range(8):
        unpack(k, f"v{WF+4*c}", f"v{WF+4*c+1}", f"v{WR+2*c}")
        unpack(k, f"v{WF+4*c+2}", f"v{WF+4*c+3}", f"v{WR+2*c+1}")
    k.wait(vm=0)
    stamp("Tld")
    lab = k.newlabel("pc")
    k("s_getpc_b64 s[44:45]")
    k.raw(lab + ":")
    k(f"s_add_u32 s44, s44, main_kernel-{lab}")
    k("s_addc_u32 s45, s45, 0")
    k("s_mov_b32 s46, main_code_end-main_kernel")
    k("s_mov_b32 s47, 0x00020000")
    k("v_lshlrev_b32 v2, 7, v0")
    k(f"s_sub_u32 s12, s2, {NPREP}")
    k("s_lshl_b32 s12, s12, 14")
    k("s_and_b32 s12, s12, 0x7fffffff")
    k(f"buffer_load_dword v150, v2, {srd(SD_)}, s12 offen")
    k("s_lshr_b32 s12, s2, 3")
    k("s_lshl_b32 s12, s12, 14")
    k("buffer_load_dword v151, v2, s[44:47], s12 offen")
    KF, VF, OUT = 112, 128, 136
    for cp in range(4):
        for j in range(7):
            unpack(k, f"v{KF+2*j}", f"v{KF+2*j+1}", f"v{KR+4*j+cp}")
        for i in range(4):
            unpack(k, f"v{VF+2*i}", f"v{VF+2*i+1}", f"v{VR+4*i+cp}")
        for h in range(2):
            c = 2 * cp + h
            O = OUT + 4 * h
            for i in range(4):
                k(f"v_mul_f32 v{O+i}, v{KF+2*(i+0)+h}, v{WF+4*c+3}")
            for t in (2, 1, 0):
                for i in range(4):
                    k(f"v_fmac_f32 v{O+i}, v{KF+2*(i+3-t)+h}, v{WF+4*c+t}")
            for i in range(4):
                k(f"v_mul_f32 v{O+i}, v{O+i}, v{VF+2*i+h}")
            p = 144 + 2 * h
            k(f"v_cvt_pk_bf16_f32 v{p}, v{O+3}, v{O+2}")
            k(f"v_cvt_pk_bf16_f32 v{p+1}, v{O+1}, v{O+0}")
            k(f"ds_write_b64 v8, v[{p}:{p+1}] offset:{c*128}")
    k.wait(lg=0)
    k.barrier()
    stamp("Tkv")
    for j in range(4):
        k(f"ds_read_b128 v[{16+4*j}:{19+4*j}], v{12+j} offset:{j*1024}")
    for j in range(4):
        k(f"buffer_store_dwordx4 v[{16+4*j}:{19+4*j}], v9, {srd(SWS)}, s10 offen{PSC}")
        k("s_add_u32 s10, s10, 32768")
    for i in range(4):
        k(f"v_mov_b32 v{32+i}, 0")
    k.srd(SA, 24, SYNCB, WS_SYNC)
    k("s_lshl_b32 s12, s2, 12")
    k("v_lshlrev_b32 v8, 4, v0")
    for i in range(2):
        k(f"buffer_store_dwordx4 v[32:35], v8, {srd(SA)}, s12 offen offset:{i*2048}{PSC}")
    k.prof_end(0, 24, 3, names="pre")
    k("s_endpgm")
    k.label("pre_q", flush=False)
    k.vm, k.lg = saved0
    in_srd(k, SA, 0, S * D * 2)
    k("v_lshrrev_b32 v1, 6, v0")
    k("v_readfirstlane_b32 s3, v1")
    k("v_and_b32 v1, 63, v0")
    k("v_and_b32 v2, 15, v0")
    k("v_bfe_u32 v3, v0, 4, 2")
    k("s_sub_u32 s10, s2, 320")
    k("s_lshl_b32 s10, s10, 1")
    k("s_add_u32 s10, s10, s3")
    k(f"s_mul_i32 s11, s10, {XRT}")
    k("v_mul_u32_u24 v4, 1280, v2")
    k("v_lshl_add_u32 v4, v3, 4, v4")
    QR = 16
    for i in range(20):
        k(f"buffer_load_dwordx4 v[{QR+4*i}:{QR+4*i+3}], v4, {srd(SA)}, s11 offen offset:{64*i}")
    k.srd(SWS, 24, WSB)
    k("v_lshlrev_b32 v5, 4, v1")
    k(f"s_add_u32 s12, s11, {WS_QX}")
    k("v_mov_b32 v6, 0x3f803f80")
    k("v_mov_b32 v8, 0")
    k("v_mov_b32 v9, 0")
    for i in range(20):
        if i % 4 == 0 and i:
            k("s_add_u32 s12, s12, 4096")
        k(f"buffer_store_dwordx4 v[{QR+4*i}:{QR+4*i+3}], v5, {srd(SWS)}, s12 offen offset:{(i%4)*1024}{PSC}")
        for d in range(4):
            k(f"v_dot2c_f32_bf16 v8, v{QR+4*i+d}, v6")
            k(f"v_dot2c_f32_bf16 v9, v{QR+4*i+d}, v{QR+4*i+d}")
    for v in ("v8", "v9"):
        xsum16(k, v, "v7")
        xsum32(k, v, "v7")
    k(f"v_mul_f32 v8, {f2u(1.0/D)}, v8")
    k(f"v_mul_f32 v9, {f2u(1.0/D)}, v9")
    k("v_fma_f32 v9, -v8, v8, v9")
    k("v_max_f32 v9, 0, v9")
    k(f"v_add_f32 v9, {f2u(EPS)}, v9")
    k("v_rsq_f32 v11, v9")
    k("v_mul_f32 v10, v8, v11")
    k("s_lshl_b32 s12, s10, 7")
    k(f"s_add_u32 s12, s12, {WS_QST}")
    k("v_lshlrev_b32 v7, 3, v2")
    k(f"buffer_store_dwordx2 v[10:11], v7, {srd(SWS)}, s12 offen")
    k.label("pre_end", flush=False)
    k("s_endpgm")
    return k


PSC = os.environ.get("PSC", "")

def gen_main():
    LW = 0
    LR = 122880
    LC = LR + 32768
    CP = 4160
    UOFF = 4 * CP
    WREG = 4 * CP + 4608
    CB = 163840 - 4 * WREG
    k = Kern("main_kernel", lds=163840, grid=256, block=256)
    RING, ACC, WB, TMP = 16, 112, 160, 184
    X1R = [216, 222]
    YR = [228, 234]
    STA, STB = [4, 6], [240, 242]
    X2 = [WB, WB + 12]
    G2R = TMP + 8
    DIST = 8
    VL16, VL16B, VH2, VT4, VT4S, VROW, VGW, VGR, VQ128, VFLAG, VFPOLL = (
        "v10", "v11", "v8", "v9", "v12", "v13", "v14", "v15", "v0", "v252", "v253")
    VL128 = "v251"
    VXP = "v250"
    LQ = 131072
    SX, SW, SH, SWD, SSY, SO, SY_ = 28, 32, 36, 40, 44, 48, 52
    SA, SB, SWS, SDBG = 28, 36, 48, 52
    XSPAN = WS_X3 - WS_X1
    HSPAN = WS_H2 - WS_H

    stamp = mkstamp(k)

    def ring(i):
        return RING + 4 * (i % 24)

    def emit(x):
        if callable(x):
            x()
        elif isinstance(x, tuple):
            k(x[0], tag=x[1])
        else:
            k(x)

    def set_exec(nl):
        m = (1 << nl) - 1
        if nl <= 32:
            k(f"s_mov_b64 exec, {m:#x}") if nl <= 6 else (k(f"s_mov_b32 exec_lo, {m:#x}"), k("s_mov_b32 exec_hi, 0"))
        else:
            k(f"s_mov_b32 exec_hi, {m >> 32:#x}")

    class ML:
        def __init__(self, text, nl):
            self.text, self.nl = text, nl

        def __call__(self):
            set_exec(self.nl)
            k(self.text)
            k("s_mov_b64 exec, -1")

    def isvm(x):
        if isinstance(x, ML):
            return True
        if callable(x):
            return False
        return (x[0] if isinstance(x, tuple) else x).startswith("buffer_")

    def emit_one_vmem(L):
        while L:
            x = L.pop(0)
            emit(x)
            if isvm(x):
                return

    def x_loads(layer, b, kk, slot0):
        if layer == 0:
            return [f"s_add_u32 s10, s17, {kk*2048 + b*4*XBLK}"] + [
                f"buffer_load_dwordx4 v[{ring(slot0+e)}:{ring(slot0+e)+3}], {VXP}, {srd(SX)}, s10 offen offset:{e*256} sc1"
                for e in range(2)]
        so = kk * 1024 + b * 8 * XRT + (XSPAN if layer else 0)
        L = []
        for tn in range(2):
            L.append(f"s_add_u32 s10, s17, {so + tn*XRT}")
            L.append(f"buffer_load_dwordx4 v[{ring(slot0+tn)}:{ring(slot0+tn)+3}], {VL16}, {srd(SX)}, s10 offen sc1")
        return L

    def h_loads(layer, b, kk, slot0):
        so = kk * 1024 + b * 8 * HRT + (HSPAN if layer else 0)
        L = []
        for tn in range(2):
            L.append(f"s_add_u32 s10, s{57+tn}, {so}")
            L.append(f"buffer_load_dwordx4 v[{ring(slot0+tn)}:{ring(slot0+tn)+3}], {VL16}, {srd(SH)}, s10 offen sc1")
        return L

    def x_pf(layer, b):
        if not PF:
            return []
        return [f"s_add_u32 s10, s26, {b*8*XRT + (XSPAN if layer else 0)}",
                ML(f"buffer_load_dword a240, {VL128}, {srd(SX)}, s10 offen sc1", 20)]

    def h_pf(layer, b):
        if not PF:
            return []
        return [f"s_add_u32 s10, s27, {b*8*HRT + (HSPAN if layer else 0)}",
                ML(f"buffer_load_dword a241, {VL128}, {srd(SH)}, s10 offen sc1", 48)]

    def wgu_dma(p):
        return [f"s_add_u32 m0, s18, {LW + p*12288}", f"s_add_u32 s11, s19, {p*12288}"] + [
            (f"buffer_load_dwordx4 {VL16}, {srd(SW)}, s11 offen offset:{f*1024} sc1 lds", f"w{p}") for f in range(3)]

    def wd_load(i):
        kk, lt = divmod(i, 5)
        base = "s20" if lt < 2 else "s21" if lt < 4 else "s22"
        return [f"s_add_u32 s11, {base}, {kk*5120}",
                f"buffer_load_dwordx4 a[{4*i}:{4*i+3}], {VL16}, {srd(SWD)}, s11 offen offset:{(lt&1)*1024 if lt < 4 else 0} sc1"]

    def poll(loads, tags, tmp, sleep=2, ge=None, nl=64, eq=None):
        def check():
            if nl < 64:
                k(f"v_mov_b32 {tags[0]}, {tags[0]}")
                set_exec(nl)
            check0()
            if nl < 64:
                k("s_cmp_eq_u64 vcc, exec")
                k("s_mov_b64 exec, -1")
            else:
                k("s_cmp_eq_u64 vcc, -1")

        def check0():
            if eq is not None:
                k(f"v_cmp_eq_u32 vcc, {eq}, {tags[0]}")
            elif ge is not None:
                k(f"v_cmp_le_u32 vcc, {ge}, {tags[0]}")
            elif len(tags) == 1:
                k(f"v_cmp_ne_u32 vcc, 0, {tags[0]}")
            else:
                k(f"v_min_u32 {tmp}, {tags[0]}, {tags[1]}")
                for t in tags[2:]:
                    k(f"v_min_u32 {tmp}, {tmp}, {t}")
                k(f"v_cmp_ne_u32 vcc, 0, {tmp}")
        ok = k.newlabel("ok")
        lp = k.newlabel("spin")
        check()
        k.branch(f"s_cbranch_scc1 {ok}", flush=False)
        vm, lg = list(k.vm), list(k.lg)
        k("s_mov_b32 s23, 0")
        k.label(lp, flush=False)
        k(f"s_sleep {sleep}")
        for l in loads:
            emit(l)
        k.wait(vm=0)
        k("s_add_u32 s23, s23, 1")
        k(f"s_cmp_ge_u32 s23, {SPIN_MAX}")
        k.branch(f"s_cbranch_scc1 {ok}", flush=False)
        check()
        k.branch(f"s_cbranch_scc0 {lp}", flush=False)
        k.flush_hazards()
        k.label(ok, flush=False)
        k.vm, k.lg = vm, lg

    def finish_stats(vsum, vnsq, dst):
        k(f"v_mul_f32 v{dst}, {f2u(-1.0/D)}, {vsum}")
        k(f"v_mul_f32 {vnsq}, {f2u(-1.0/D)}, {vnsq}")
        k(f"v_fma_f32 {vnsq}, -v{dst}, v{dst}, {vnsq}")
        k(f"v_max_f32 {vnsq}, 0, {vnsq}")
        k(f"v_add_f32 {vnsq}, {f2u(EPS)}, {vnsq}")
        k(f"v_rsq_f32 v{dst+1}, {vnsq}")

    def wread(kk, f):
        reg, off = (VL16, kk * 6144) if kk < 10 else (VL16B, (kk - 10) * 6144)
        return f"ds_read_b128 v[{WB+4*f}:{WB+4*f+3}], {reg} offset:{LW+off+f*1024}"

    def xswap(slot):
        a_, b_ = ring(slot), ring(slot + 1)
        k(f"v_swap_b32 v{a_+2}, v{b_}")
        k(f"v_swap_b32 v{a_+3}, v{b_+1}")

    def g1_main(slot0, sched, first=False, xp=False):
        if first:
            k.wait_tag("w1")
            k.barrier()
        for f in range(6):
            k(wread(0, f))
        if xp:
            xswap(slot0)
        for kk in range(20):
            L = sched.get(kk, [])
            if first and kk % 4 == 3 and kk < 19:
                k.wait_tag(f"w{(kk+1)//2+1}")
                k.barrier()
            nv = sum(1 for x in L if isvm(x))
            done = 0
            for f in range(6):
                for tn in range(2):
                    a = ACC + 8 * f + 4 * tn
                    acc = f"v[{a}:{a+3}]"
                    xr = ring(slot0 + 2 * kk + tn)
                    k(f"v_mfma_f32_16x16x32_bf16 {acc}, v[{WB+4*f}:{WB+4*f+3}], v[{xr}:{xr+3}], {acc if kk else 0}")
                    idx = 2 * f + tn + 1
                    while done < nv and done * 12 < idx * nv - 6:
                        emit_one_vmem(L)
                        done += 1
                if xp and f == 3 and kk < 19:
                    xswap(slot0 + 2 * kk + 2)
                if kk < 19:
                    k(wread(kk + 1, f))
                else:
                    if f == 0:
                        k("v_lshlrev_b32 v255, 4, v3")
                        k(f"v_add_u32 v255, {LC}, v255")
                    k(f"ds_read_b128 v[{WB+4*f}:{WB+4*f+3}], v255 offset:{f*64}")
            for x in L:
                emit(x)

    def g1_epilogue(layer, b, ST):
        k(f"s_add_u32 s12, s56, {b*8*HRT + (HSPAN if layer else 0)}")
        O2 = TMP + 20
        for tn in range(2):
            st = ST[tn]
            c1 = TMP + 28
            k(f"v_mul_f32 v{c1}, {f2u(-LOG2E)}, v{st+1}")
            k(f"v_mul_f32 v{c1+1}, v{st+1}, v{st+1}")
            k(f"v_rcp_f32 v{c1+1}, v{c1+1}")
            T = TMP
            for f in range(6):
                a = ACC + 8 * f + 4 * tn
                for i in (0, 2):
                    k(f"v_pk_fma_f32 v[{a+i}:{a+i+1}], v[{WB+4*f+i}:{WB+4*f+i+1}], v[{st}:{st+1}], v[{a+i}:{a+i+1}] op_sel:[0,0,0] op_sel_hi:[1,0,1]")
            for f in range(3):
                g = ACC + 8 * f + 4 * tn
                for i in (0, 2):
                    k(f"v_pk_mul_f32 v[{T+4*f+i}:{T+4*f+i+1}], v[{g+i}:{g+i+1}], v[{c1}:{c1+1}] op_sel:[0,0] op_sel_hi:[1,0]")
            for e in range(12):
                k(f"v_exp_f32 v{T+e}, v{T+e}")
            for f in range(3):
                g = ACC + 8 * f + 4 * tn
                u = g + 24
                for i in (0, 2):
                    k(f"v_pk_mul_f32 v[{g+i}:{g+i+1}], v[{g+i}:{g+i+1}], v[{u+i}:{u+i+1}]")
            for e in range(0, 12, 2):
                k(f"v_pk_fma_f32 v[{T+e}:{T+e+1}], v[{T+e}:{T+e+1}], v[{c1}:{c1+1}], v[{c1}:{c1+1}] op_sel:[0,1,1] op_sel_hi:[1,1,1]")
            for e in range(12):
                k(f"v_rcp_f32 v{T+e}, v{T+e}")
            for f in range(3):
                g = ACC + 8 * f + 4 * tn
                for i in (0, 2):
                    k(f"v_pk_mul_f32 v[{T+4*f+i}:{T+4*f+i+1}], v[{T+4*f+i}:{T+4*f+i+1}], v[{g+i}:{g+i+1}]")
            O = TMP + 12 + 4 * tn
            for p in range(4):
                k(f"v_cvt_pk_bf16_f32 v{O+p}, v{T+2*p}, v{T+2*p+1}")
            for p in range(2):
                k(f"v_cvt_pk_bf16_f32 v{O2+2*tn+p}, v{T+8+2*p}, v{T+9+2*p}")
            if tn:
                k(f"s_add_u32 s13, s12, {HRT}")
            k(f"buffer_store_dwordx4 v[{O}:{O+3}], {VL16}, {srd(SH)}, s{12+tn} offen sc1", tag="hst")
        k(f"v_permlane16_swap_b32 v{O2}, v{O2+2}")
        k(f"v_permlane16_swap_b32 v{O2+1}, v{O2+3}")
        k(f"buffer_store_dwordx4 v[{O2}:{O2+3}], {VH2}, {srd(SH)}, s12 offen offset:1024 sc1", tag="hst")

    def h_flag(layer, b):
        k("s_lshl_b32 s12, s4, 3")
        k("s_add_u32 s12, s12, s3")
        k("s_lshl_b32 s12, s12, 5")
        k("s_add_u32 s12, s12, s5")
        k("s_lshl_b32 s12, s12, 7")
        k(f"s_add_u32 s12, s12, {SY_HF + layer*0x40000 + b*0x4000}")
        k("v_mov_b32 v254, 1")
        k.wait_tag("hst")
        k(f"buffer_store_dword v254, {VFLAG}, {srd(SSY)}, s12 offen sc1")

    def h_poll_loads(layer, b):
        return [f"s_mov_b32 s13, {SY_HF + layer*0x40000 + b*0x4000}",
                ML(f"buffer_load_dword v{TMP+30}, {VFPOLL}, {srd(SSY)}, s13 offen sc1", 8)]

    def h_poll(layer, b):
        poll(h_poll_loads(layer, b), [f"v{TMP+30}"], None, nl=8)

    def g2_main(slot0, sched):
        for kk in range(12):
            L = sched.get(kk, [])
            nv = sum(1 for x in L if isvm(x))
            done = 0
            idx = 0
            for tn in range(2):
                for lt in range(5):
                    a = ACC + 8 * lt + 4 * tn
                    acc = f"v[{a}:{a+3}]"
                    hr = ring(slot0 + 2 * kk + tn)
                    wr = 4 * (5 * kk + lt)
                    k(f"v_mfma_f32_16x16x32_bf16 {acc}, a[{wr}:{wr+3}], v[{hr}:{hr+3}], {acc if kk else 0}")
                    idx += 1
                    while done < nv and done * 10 < idx * nv - 5:
                        emit_one_vmem(L)
                        done += 1
            for x in L:
                emit(x)

    def g2_reduce(res, dst, mid=None):
        k.barrier()
        for x in range(1, 4):
            k(f"s_xor_b32 s12, s3, {x}")
            k("s_mul_i32 s12, s12, 6144")
            k(f"s_add_u32 s12, s12, {LR + (x-1)*2048}")
            k(f"v_add_u32 v255, s12, {VL16}")
            for i in range(2):
                a = ACC + 8 * ((2 if x & 2 else 0) + i) + 4 * (x & 1)
                k(f"ds_write_b128 v255, v[{a}:{a+3}] offset:{i*1024}")
        for ltn in range(2):
            k(f"s_xor_b32 s12, s9, {ltn}")
            k("s_lshl_b32 s12, s12, 2")
            k("s_add_u32 s12, s12, s3")
            k("s_lshl_b32 s12, s12, 10")
            k(f"s_add_u32 s12, s12, {LR + 24576}")
            k(f"v_add_u32 v255, s12, {VL16}")
            a = ACC + 32 + 4 * ltn
            k(f"ds_write_b128 v255, v[{a}:{a+3}]")
        for d in range(4):
            a = ACC + 8 * (d // 2) + 2 * (d & 1)
            unpack(k, f"v{dst+2*d}", f"v{dst+2*d+1}", f"v{res+d}")
            k(f"v_pk_add_f32 v[{dst+2*d}:{dst+2*d+1}], v[{dst+2*d}:{dst+2*d+1}], v[{a}:{a+1}]")
        for d in range(2):
            unpack(k, f"v{dst+8+2*d}", f"v{dst+9+2*d}", f"v{res+4+d}")
        k("s_mul_i32 s12, s3, 6144")
        k(f"s_add_u32 s12, s12, {LR}")
        k(f"v_add_u32 v255, s12, {VL16}")
        k("s_lshl_b32 s12, s9, 12")
        k(f"s_add_u32 s12, s12, {LR + 24576}")
        k(f"v_add_u32 v254, s12, {VL16}")
        if mid:
            mid()
        k.wait(lg=0)
        k.barrier()
        R = ACC
        R4 = ACC + 24
        for n in range(6):
            k(f"ds_read_b128 v[{R+4*n}:{R+4*n+3}], v255 offset:{n*1024}")
        for n in range(4):
            k(f"ds_read_b128 v[{R4+4*n}:{R4+4*n+3}], v254 offset:{n*1024}")
        for n in range(6):
            d = dst + 4 * (n & 1)
            for i in (0, 2):
                k(f"v_pk_add_f32 v[{d+i}:{d+i+1}], v[{d+i}:{d+i+1}], v[{R+4*n+i}:{R+4*n+i+1}]")
        for n in range(4):
            for i in (0, 2):
                k(f"v_pk_add_f32 v[{dst+8+i}:{dst+9+i}], v[{dst+8+i}:{dst+9+i}], v[{R4+4*n+i}:{R4+4*n+i+1}]")

    def part_stats(src, b, region, pre_wait=None):
        part_calc(src, TMP + 16)
        part_pub(TMP + 16, b, region, pre_wait)

    def part_calc(src, a):
        q_ = a + 1
        k(f"v_add_f32 v{a}, v{src}, v{src+1}")
        k(f"v_mul_f32 v{q_}, v{src}, v{src}")
        k(f"v_fmac_f32 v{q_}, v{src+1}, v{src+1}")
        for i in range(2, 8):
            k(f"v_add_f32 v{a}, v{a}, v{src+i}")
            k(f"v_fmac_f32 v{q_}, v{src+i}, v{src+i}")
        t, u = TMP + 18, TMP + 19
        k(f"v_add_f32 v{t}, v{src+8}, v{src+9}")
        k(f"v_mul_f32 v{u}, v{src+8}, v{src+8}")
        k(f"v_fmac_f32 v{u}, v{src+9}, v{src+9}")
        for i in range(10, 12):
            k(f"v_add_f32 v{t}, v{t}, v{src+i}")
            k(f"v_fmac_f32 v{u}, v{src+i}, v{src+i}")
        k("s_cmp_eq_u32 s14, 0")
        k("s_cselect_b32 s12, 1.0, 0")
        k(f"v_fmac_f32 v{a}, s12, v{t}")
        k(f"v_fmac_f32 v{q_}, s12, v{u}")
        for v in (a, q_):
            xsum16(k, f"v{v}", f"v{t}")
            xsum32(k, f"v{v}", f"v{t}")
        k(f"v_or_b32 v{q_}, 0x80000000, v{q_}")

    def part_pub(a, b, region, pre_wait=None):
        q_ = a + 1
        k("s_lshl_b32 s12, s16, 4")
        k("s_lshl_b32 s13, s8, 1")
        k("s_add_u32 s12, s12, s13")
        k("s_add_u32 s12, s12, s14")
        k("s_lshl_b32 s12, s12, 7")
        k(f"s_add_u32 s12, s12, {region + b*8*2048}")
        if pre_wait:
            k.wait_tag(pre_wait)
        k(f"buffer_store_dwordx2 v[{a}:{q_}], {VGW}, {srd(SSY)}, s12 offen sc1")

    def st2_loads(b, dst):
        return ["s_lshl_b32 s13, s16, 11", f"s_add_u32 s13, s13, {SY_ST2 + b*8*2048}"] + [
            f"buffer_load_dwordx2 v[{dst+2*i}:{dst+2*i+1}], {VGR}, {srd(SSY)}, s13 offen offset:{i*128} sc1"
            for i in range(4)]

    def st3_loads(b, dst):
        return ["s_lshl_b32 s13, s15, 11", f"s_add_u32 s13, s13, {SY_ST3 + b*8*2048}"] + [
            f"buffer_load_dwordx2 v[{dst+8*tn+2*i}:{dst+8*tn+2*i+1}], {VGR}, {srd(SSY)}, s13 offen offset:{tn*2048+i*128} sc1"
            for tn in range(2) for i in range(4)]

    def st1_loads(b, dst):
        return ["s_lshl_b32 s13, s15, 9", f"s_add_u32 s13, s13, {SY_ST1 + b*8*512}"] + [
            f"buffer_load_dwordx2 v[{dst+2*tn}:{dst+2*tn+1}], {VQ128}, {srd(SSY)}, s13 offen offset:{tn*512} sc1"
            for tn in range(2)]

    def sum_granules(g, n, tmp):
        for i in range(1, n):
            k(f"v_pk_add_f32 v[{g}:{g+1}], v[{g}:{g+1}], v[{g+2*i}:{g+2*i+1}]")
        for v in (g, g + 1):
            xsum16(k, f"v{v}", tmp)
            xsum32(k, f"v{v}", tmp)

    def finalize(b, x2, G):
        poll(st2_loads(b, G), [f"v{G+1}", f"v{G+3}", f"v{G+5}", f"v{G+7}"], f"v{TMP+20}")
        stamp(f"p2{b}")
        sum_granules(G, 4, f"v{TMP+20}")
        sp = TMP + 22
        finish_stats(f"v{G}", f"v{G+1}", sp)
        k(f"v_mul_f32 v{sp}, v{sp}, v{sp+1}")
        for d in range(6):
            unpack(k, f"v{TMP}", f"v{TMP+1}", f"v{YR[b]+d}")
            k(f"v_pk_fma_f32 v[{TMP+2}:{TMP+3}], v[{x2+2*d}:{x2+2*d+1}], v[{sp}:{sp+1}], v[{sp}:{sp+1}] op_sel:[0,1,0] op_sel_hi:[1,1,0]")
            k(f"v_pk_fma_f32 v[{x2+2*d}:{x2+2*d+1}], v[{TMP+2}:{TMP+3}], v[{TMP}:{TMP+1}], v[{x2+2*d}:{x2+2*d+1}]")
            k(f"v_cvt_pk_bf16_f32 v{X1R[b]+d}, v{x2+2*d}, v{x2+2*d+1}")
        k(f"s_add_u32 s13, s59, {XSPAN + b*8*XRT}")
        k("s_lshl_b32 s12, s14, 10")
        k("s_add_u32 s12, s12, s13")
        k(f"buffer_store_dwordx4 v[{X1R[b]}:{X1R[b]+3}], {VL16}, {srd(SX)}, s12 offen sc1", tag="xst")
        k(f"buffer_store_dwordx2 v[{X1R[b]+4}:{X1R[b]+5}], {VT4S}, {srd(SX)}, s13 offen offset:2048 sc1", tag="xst")
        for d in range(6):
            unpack(k, f"v{x2+2*d}", f"v{x2+2*d+1}", f"v{X1R[b]+d}")

    def stats1(b, STx):
        poll(st1_loads(b, TMP + 24), [f"v{TMP+25}", f"v{TMP+27}"], f"v{TMP+20}")
        for tn in range(2):
            sum_granules(TMP + 24 + 2 * tn, 1, f"v{TMP+20}")
            finish_stats(f"v{TMP+24+2*tn}", f"v{TMP+25+2*tn}", STx[tn])

    def stats3(b, STx):
        poll(st3_loads(b, TMP), [f"v{TMP+1+2*i}" for i in range(8)], f"v{TMP+20}")
        for tn in range(2):
            sum_granules(TMP + 8 * tn, 4, f"v{TMP+20}")
            finish_stats(f"v{TMP+8*tn}", f"v{TMP+8*tn+1}", STx[tn])

    def res_loads(b):
        L = [f"s_add_u32 s13, s62, {b*4*XBLK}", "s_lshl_b32 s12, s14, 11", "s_add_u32 s12, s12, s13",
             "s_add_u32 s13, s13, 4096"]
        for R, sr in ((X1R[b], SX), (YR[b], SY_)):
            L += [f"buffer_load_dwordx2 v[{R}:{R+1}], {VXP}, {srd(sr)}, s12 offen sc1",
                  f"buffer_load_dwordx2 v[{R+2}:{R+3}], {VXP}, {srd(sr)}, s12 offen offset:256 sc1",
                  f"buffer_load_dwordx2 v[{R+4}:{R+5}], {VL16}, {srd(sr)}, s13 offen sc1"]
        return L

    def out_store(b, src):
        for d in range(6):
            k(f"v_cvt_pk_bf16_f32 v{TMP+d}, v{src+2*d}, v{src+2*d+1}")
        k(f"v_mul_u32_u24 v{TMP+8}, 1280, {VROW}")
        k("s_mul_i32 s12, s8, 160")
        k(f"s_add_u32 s12, s12, {b*128*1280}")
        k("s_lshl_b32 s13, s14, 6")
        k("s_add_u32 s13, s13, s12")
        k(f"v_lshl_add_u32 v{TMP+9}, v3, 4, v{TMP+8}")
        k(f"v_lshl_add_u32 v{TMP+10}, v3, 3, v{TMP+8}")
        k("s_lshl_b32 s10, s14, 31")
        k(f"v_or_b32 v{TMP+10}, s10, v{TMP+10}")
        k(f"buffer_store_dwordx4 v[{TMP}:{TMP+3}], v{TMP+9}, {srd(SO)}, s13 offen")
        k(f"buffer_store_dwordx2 v[{TMP+4}:{TMP+5}], v{TMP+10}, {srd(SO)}, s12 offen offset:128")

    def g1b_sched(layer, extra):
        sched = {}
        hl = [h_loads(layer, 0, kk, 80 + 2 * kk) for kk in range(12)]
        for kk in range(20):
            L = []
            if kk + DIST < 20:
                L += x_loads(layer, 1, kk + DIST, 40 + 2 * (kk + DIST))
            L += extra.get(kk, [])
            if kk == 3:
                L += [lambda: h_flag(layer, 0)]
            if kk == 7:
                L += h_poll_loads(layer, 0)
            if kk == 12:
                L = [lambda: h_poll(layer, 0)] + h_pf(layer, 0) + L
            if kk >= 14:
                while hl and (12 - len(hl)) + 8 < kk and len([x for x in L if isvm(x)]) < 6:
                    L += hl.pop(0)
            sched[kk] = L
        return sched, hl


    k.prof_begin()
    k(f"s_cmp_ge_u32 s2, {k.grid}")
    k.branch("s_cbranch_scc1 main_end", flush=False)
    k("s_load_dwordx2 s[24:25], s[0:1], 96")
    k("s_load_dwordx2 s[26:27], s[0:1], 80")
    k("s_and_b32 s10, s2, 1")
    k("s_lshl_b32 s10, s10, 3")
    k("s_add_u32 s10, s10, 56")
    k("s_cmp_lt_u32 s2, 64")
    k("s_cselect_b32 s10, s10, 72")
    k(f"s_cmp_lt_u32 s2, {NPREP}")
    k("s_cselect_b32 s10, s10, 32")
    k(f"s_load_dwordx2 s[{SA}:{SA+1}], s[0:1], s10")
    k(f"s_load_dwordx2 s[{SB}:{SB+1}], s[0:1], 40")
    k(f"s_mov_b32 s{SA+2}, 4096")
    k(f"s_cmov_b32 s{SA+2}, {D*F*2}")
    k(f"s_mov_b32 s{SB+2}, {D*2}")
    k(f"s_mov_b32 s{SA+3}, 0x00020000")
    k(f"s_mov_b32 s{SB+3}, 0x00020000")
    k("v_lshrrev_b32 v1, 6, v0")
    k("v_readfirstlane_b32 s3, v1")
    k("v_and_b32 v1, 63, v0")
    k("v_and_b32 v2, 15, v0")
    k("v_bfe_u32 v3, v0, 4, 2")
    k(f"v_lshlrev_b32 {VL16}, 4, v1")
    if MAP == 1:
        k("s_and_b32 s4, s2, 7")
        k("s_lshr_b32 s5, s2, 3")
        k("s_lshr_b32 s7, s5, 3")
        k("s_and_b32 s8, s5, 7")
    else:
        k("s_and_b32 s4, s2, 6")
        k("s_lshr_b32 s10, s2, 7")
        k("s_add_u32 s4, s4, s10")
        k("s_bfe_u32 s5, s2, 0x40003")
        k("s_and_b32 s10, s2, 1")
        k("s_lshl_b32 s10, s10, 4")
        k("s_add_u32 s5, s5, s10")
        k("s_and_b32 s7, s5, 3")
        k("s_lshr_b32 s8, s5, 2")
    k("s_and_b32 s9, s3, 1")
    k("s_lshr_b32 s14, s3, 1")
    k("s_lshl_b32 s6, s4, 4")
    k("s_lshl_b32 s10, s3, 1")
    k("s_add_u32 s15, s6, s10")
    k("s_lshl_b32 s10, s7, 1")
    k("s_add_u32 s16, s6, s10")
    k("s_add_u32 s16, s16, s9")
    k(f"s_mul_i32 s17, s15, {XRT}")
    k("s_mul_i32 s18, s3, 3072")
    k(f"s_mul_i32 s19, s5, {WGU_M}")
    k("s_add_u32 s19, s19, s18")
    k("s_lshl_b32 s10, s8, 2")
    k("s_add_u32 s10, s10, s3")
    k("s_mul_i32 s10, s10, 61440")
    k("s_lshl_b32 s11, s14, 11")
    k("s_add_u32 s20, s10, s11")
    k("s_xor_b32 s11, s11, 2048")
    k("s_add_u32 s21, s10, s11")
    k("s_add_u32 s22, s10, 4096")
    k(f"s_sub_u32 s56, s2, {NPREP}")
    k("s_lshl_b32 s60, s56, 2")
    k("s_add_u32 s60, s60, s3")
    k(f"s_mul_i32 s61, s3, {WREG}")
    k(f"s_add_u32 s61, s61, {CB}")
    k.srd(SWS, 24, WSB)
    k.srd(SW, 24, WGUB, WS_WGU)
    k.srd(SWD, 24, WDB, WS_WD)
    k.srd(SSY, 24, SYNCB, WS_SYNC)

    def wpoll_setup(va):
        k(f"v_lshrrev_b32 {va}, 1, v1")
        k(f"v_lshlrev_b32 {va}, 4, {va}")
        k("v_and_b32 v9, 1, v1")
        k("s_lshr_b32 s10, s5, 2")
        k("s_lshl_b32 s10, s10, 1")
        k(f"v_add3_u32 {va}, {va}, v9, s10")
        k("s_lshl_b32 s10, s3, 3")
        k("s_add_u32 s10, s10, 56")
        k("v_add_u32 v9, s10, v1")
        k("v_cmp_gt_u32 vcc, 8, v1")
        k(f"v_cndmask_b32 {va}, v9, {va}, vcc")
        k(f"v_lshlrev_b32 {va}, 7, {va}")
        k(f"v_add_u32 {va}, {SY_PF}, {va}")
        return [ML(f"buffer_load_dword v13, {va}, {srd(SSY)}, 0 offen sc1", 16)]

    k(f"s_cmp_lt_u32 s2, {NPREP}")
    k.branch("s_cbranch_scc1 main_prep", flush=False)
    saved0 = (list(k.vm), list(k.lg))
    k("s_lshl_b32 s12, s60, 12")
    k(f"s_add_u32 s{SA}, s{SA}, s12")
    k(f"s_addc_u32 s{SA+1}, s{SA+1}, 0")
    HB = 160
    for p in range(4):
        k(f"buffer_load_dwordx4 v[{HB+8*p+4}:{HB+8*p+7}], {VL16}, {srd(SA)}, 0 offen offset:{p*1024}")
        k(f"v_add_u32 v9, {(p*1024-8) & 0xffffffff:#x}, {VL16}")
        k(f"buffer_load_dwordx2 v[{HB+8*p+2}:{HB+8*p+3}], v9, {srd(SA)}, 0 offen")
    k(f"s_add_u32 m0, s61, {UOFF}")
    for p in (3, 2, 1, 0):
        k(f"buffer_load_dwordx4 {VL16}, {srd(SWS)}, s12 offen offset:{p*1024} lds", tag="u")
    k("s_lshl_b32 s12, s60, 1")
    k("v_mov_b32 v9, s12")
    k(f"buffer_load_ushort v11, v9, {srd(SB)}, 0 offen")
    k("v_mov_b32 v32, 0")
    k("v_mov_b32 v33, 0")
    k("v_lshlrev_b32 v8, 3, v1")
    k("v_add_u32 v8, s61, v8")
    k(f"ds_write_b64 v8, v[32:33] offset:{UOFF+4096}")
    k("v_bfe_u32 v8, v1, 2, 2")
    k(f"v_mul_u32_u24 v8, {CP}, v8")
    k("v_and_b32 v9, 3, v1")
    k("v_lshl_add_u32 v8, v9, 3, v8")
    k("v_add_u32 v8, s61, v8")
    k("ds_write_b64 v8, v[32:33]")
    k("v_sub_u32 v7, 3, v2")
    k("v_and_b32 v7, 3, v7")
    k("v_add3_u32 v8, v2, v7, 1")
    k("v_lshl_add_u32 v8, v3, 3, v8")
    k("v_lshlrev_b32 v8, 1, v8")
    k(f"v_mul_u32_u24 v7, {CP}, v7")
    k("v_add3_u32 v4, v7, v8, s61")
    k("v_lshlrev_b32 v7, 5, v2")
    k("v_lshlrev_b32 v8, 4, v3")
    k("v_sub_u32 v8, v8, v7")
    k(f"v_add_u32 v8, {UOFF+480}, v8")
    k("v_add_u32 v5, s61, v8")
    k(f"v_add_u32 v8, s61, {VL16}")
    for p in range(4):
        T = 48 + 12 * (p & 1)
        b = HB + 8 * p
        seq = [f"v{b+2+i}" for i in range(6)]
        off = 32 + p * 1024
        k(f"ds_write_b128 v8, v[{b+4}:{b+7}] offset:{off}")
        for j in range(4):
            k(f"v_alignbyte_b32 v{T+j}, {seq[2+j]}, {seq[1+j]}, 2")
        k(f"ds_write_b128 v8, v[{T}:{T+3}] offset:{off+CP}")
        for j in range(4):
            k(f"v_mov_b32 v{T+4+j}, {seq[1+j]}")
        k(f"ds_write_b128 v8, v[{T+4}:{T+7}] offset:{off+2*CP}")
        for j in range(4):
            k(f"v_alignbyte_b32 v{T+8+j}, {seq[1+j]}, {seq[j]}, 2")
        k(f"ds_write_b128 v8, v[{T+8}:{T+11}] offset:{off+3*CP}")
    AB = [16, 48]
    CACC = 80
    BR = 112

    def rdA(n):
        I = n if n < 8 else n - 8
        L = []
        for r in range(8):
            i = 8 * I + r
            b = AB[n & 1] + 4 * r
            L.append(f"ds_read_b64 v[{b}:{b+1}], v4 offset:{64*i}")
            L.append(f"ds_read_b64 v[{b+2}:{b+3}], v4 offset:{64*i+8}")
        return L

    def bslot(C):
        return C if C < 4 else 7 - C

    def rdB(C):
        return [f"ds_read_b128 v[{BR+32*bslot(C)+4*r}:{BR+32*bslot(C)+4*r+3}], v5 offset:{64*(56-(8*C-r))}" for r in range(8)]

    k.wait(lg=0)
    k.wait_tag("u")
    stamp("ready")
    a0, b0 = rdA(0), rdB(0)
    for r in range(8):
        k(a0[2 * r]); k(a0[2 * r + 1]); k(b0[r])
    started = set()
    early = []
    tot = 0
    SBQ = 240
    k("s_lshl_b32 s10, s3, 12")
    k("v_lshlrev_b32 v6, 3, v1")
    k("v_add_u32 v6, s10, v6")
    qsl = [f"s_mov_b32 s13, {WS_QST}"] + [
        f"buffer_load_dwordx2 v[{SBQ+2*it}:{SBQ+2*it+1}], v6, {srd(SWS)}, s13 offen offset:{it*512}" for it in range(8)]
    k(f"v_mul_u32_u24 v7, {XRT}, v3")
    k("v_lshl_add_u32 v7, v2, 4, v7")
    k(f"s_mul_i32 s57, s3, {32*XRT}")
    k("s_lshr_b32 s10, s56, 1")
    k("s_lshl_b32 s10, s10, 8")
    k("s_add_u32 s57, s57, s10")
    k("s_and_b32 s10, s56, 1")
    k("s_lshl_b32 s10, s10, 3")
    k("s_add_u32 s57, s57, s10")
    QB = BR
    qxl = []
    for it in range(8):
        qxl += [f"s_add_u32 s12, s57, {WS_QX + it*4*XRT}",
                f"buffer_load_dwordx2 v[{QB+2*it}:{QB+2*it+1}], v7, {srd(SWS)}, s12 offen"]
    for n in range(12):
        I = n if n < 8 else n - 8
        Cs = [C for C in (range(4) if n < 8 else range(4, 8)) if C + I <= 7]
        pend = rdA(n + 1) if n < 11 else []
        bpend = {5: rdB(4), 6: rdB(5), 7: rdB(6), 8: rdB(7)}.get(n) or []
        nm = 8 * len(Cs)
        cnt = 0
        if n == 7:
            early = list(qsl)
        if n == 9:
            early = early + qxl
        for C in Cs:
            c = C + I
            nb = rdB(C + 1) if (n == 0 and C < 3) else []
            for r in range(8):
                if nb:
                    k(nb.pop(0))
                a = AB[n & 1] + 4 * r
                b = BR + 32 * bslot(C) + 4 * r
                acc = f"v[{CACC+4*c}:{CACC+4*c+3}]"
                src = acc if c in started else "0"
                started.add(c)
                k(f"v_mfma_f32_16x16x32_bf16 {acc}, v[{a}:{a+3}], v[{b}:{b+3}], {src}")
                cnt += 1
                tot += 1
                while pend and (16 - len(pend)) * max(nm - 4, 4) < cnt * 16:
                    k(pend.pop(0))
                if bpend and cnt % 2 == 0:
                    k(bpend.pop(0))
                if tot % 2 == 0:
                    emit_one_vmem(early)
        for x in pend + bpend:
            k(x)
    stamp("mfma")
    for x in early:
        emit(x)
    k("v_lshlrev_b32 v11, 16, v11")
    k("v_lshlrev_b32 v8, 5, v2")
    k("v_lshl_add_u32 v8, v3, 3, v8")
    k(f"v_sub_u32 v9, {UOFF+504}, v8")
    k("v_add_u32 v9, s61, v9")
    k("v_add_u32 v8, s61, v8")
    KV = 16
    for c in range(8):
        k(f"ds_read_b64 v[{KV+2*c}:{KV+2*c+1}], v9 offset:{(7-c)*512}")
    for c in range(8):
        a = CACC + 4 * c
        unpack(k, "v40", "v41", f"v{KV+2*c}")
        unpack(k, "v42", "v43", f"v{KV+2*c+1}")
        k(f"v_fmac_f32 v{a+3}, v40, v11")
        k(f"v_fmac_f32 v{a+2}, v41, v11")
        k(f"v_fmac_f32 v{a+1}, v42, v11")
        k(f"v_fmac_f32 v{a+0}, v43, v11")
        o = 44 + 2 * (c & 1)
        k(f"v_cvt_pk_bf16_f32 v{o}, v{a}, v{a+1}")
        k(f"v_cvt_pk_bf16_f32 v{o+1}, v{a+2}, v{a+3}")
        k(f"ds_write_b64 v8, v[{o}:{o+1}] offset:{c*512}")
    k("v_bfe_u32 v8, v1, 2, 2")
    k(f"v_mul_u32_u24 v8, {WREG}, v8")
    k("v_and_b32 v9, 3, v1")
    k("v_lshl_add_u32 v8, v9, 3, v8")
    k("v_lshl_add_u32 v8, v3, 5, v8")
    k("s_lshl_b32 s10, s3, 10")
    k(f"s_add_u32 s10, s10, {CB}")
    k("v_add_u32 v8, s10, v8")
    k("v_and_b32 v9, 1, v3")
    k("v_lshrrev_b32 v7, 1, v3")
    k("v_lshl_add_u32 v7, v9, 1, v7")
    k(f"v_mul_u32_u24 v7, {XBLK}, v7")
    k("v_lshl_add_u32 v7, v2, 4, v7")
    k(f"s_mul_i32 s57, s3, {16*XBLK}")
    k("s_lshl_b32 s13, s56, 8")
    k("s_add_u32 s57, s57, s13")
    k.wait(lg=0)
    k.barrier()
    YB = 64
    for it in range(8):
        k(f"ds_read_b64_tr_b16 v[{YB+2*it}:{YB+2*it+1}], v8 offset:{it*128}")
    XB_ = 144
    for it in range(8):
        y0, q0, st = YB + 2 * it, QB + 2 * it, SBQ + 2 * it
        for d in range(2):
            unpack(k, "v16", "v17", f"v{y0+d}")
            unpack(k, "v18", "v19", f"v{q0+d}")
            k(f"v_pk_fma_f32 v[20:21], v[18:19], v[{st}:{st+1}], v[{st}:{st+1}] op_sel:[0,1,0] op_sel_hi:[1,1,0] neg_lo:[0,0,1] neg_hi:[0,0,1]")
            k("v_pk_fma_f32 v[18:19], v[20:21], v[16:17], v[18:19]")
            k(f"v_cvt_pk_bf16_f32 v{XB_+2*it+d}, v18, v19")
        if it & 1:
            o = XB_ + 2 * (it - 1)
            k(f"v_permlane16_swap_b32 v{o}, v{o+2}")
            k(f"v_permlane16_swap_b32 v{o+1}, v{o+3}")
            k(f"s_add_u32 s12, s57, {WS_X1 + (it-1)*2*XBLK}")
            k(f"buffer_store_dwordx4 v[{o}:{o+3}], v7, {srd(SWS)}, s12 offen sc1", tag="cst")
    for it in range(0, 8, 2):
        o = YB + 2 * it
        k(f"v_permlane16_swap_b32 v{o}, v{o+2}")
        k(f"v_permlane16_swap_b32 v{o+1}, v{o+3}")
        k(f"s_add_u32 s12, s57, {WS_Y + it*2*XBLK}")
        k(f"buffer_store_dwordx4 v[{o}:{o+3}], v7, {srd(SWS)}, s12 offen sc1", tag="cst")
    stamp("cst")
    pcl = wpoll_setup("v8")
    emit(pcl[0])
    k("s_mul_i32 s12, s3, 160")
    k("s_add_u32 s12, s12, s56")
    k("s_lshl_b32 s12, s12, 7")
    k(f"s_add_u32 s12, s12, {SY_CF}")
    k("v_mov_b32 v15, 1")
    k("v_mov_b32 v14, 0")
    k.wait_tag("cst")
    ML(f"buffer_store_dword v15, v14, {srd(SSY)}, s12 offen sc1", 1)()
    stamp("cf")
    poll(pcl, ["v13"], None, sleep=4, nl=16)
    k.wait(vm=0, lg=0)
    k.flush_hazards()
    k.branch("s_branch main_join", flush=False)

    k.label("main_prep", flush=False)
    k.vm, k.lg = list(saved0[0]), list(saved0[1])
    k(f"v_mov_b32 v14, {OOB:#x}")
    k("s_mov_b32 s58, 0x05040100")
    k("s_mov_b32 s59, 0x07060302")
    k("v_mov_b32 v12, 0x3f803f80")
    k("v_mov_b32 v15, 1")

    def item_idx(magic, n):
        for ps in range(2):
            o, ch = f"v{4+2*ps}", f"v{5+2*ps}"
            k(f"v_add_u32 v8, {256*ps}, v0")
            k(f"v_mul_u32_u24 {o}, {magic}, v8")
            k(f"v_lshrrev_b32 {o}, 16, {o}")
            k(f"v_mul_u32_u24 {ch}, {n}, {o}")
            k(f"v_sub_u32 {ch}, v8, {ch}")

    def item_loads(pitch):
        k(f"v_mul_u32_u24 v8, {8*pitch}, v4")
        k("v_lshl_add_u32 v8, v5, 4, v8")
        k(f"v_mul_u32_u24 v9, {8*pitch}, v6")
        k("v_lshl_add_u32 v9, v7, 4, v9")
        k("v_cmp_gt_u32 vcc, 224, v0")
        k("v_cndmask_b32 v9, v14, v9, vcc")
        for ps in range(2):
            k("s_mov_b32 s11, s10")
            for i in range(8):
                k(f"buffer_load_dwordx4 v[{16+32*ps+4*i}:{19+32*ps+4*i}], v{8+ps}, {srd(SA)}, s11 offen")
                if i < 7:
                    k(f"s_add_u32 s11, s11, {pitch}")

    def stage(magic, sh, n, blk, opart, pairb, npair, second):
        for ps in range(2):
            o, ch = f"v{4+2*ps}", f"v{5+2*ps}"
            k(f"v_mul_u32_u24 v161, {magic}, {ch}")
            k(f"v_lshrrev_b32 v161, {sh}, v161")
            k(f"v_mul_u32_u24 v162, {n}, v161")
            k(f"v_sub_u32 {ch}, {ch}, v162")
            opart(o)
            k(f"v_mul_u32_u24 v161, {blk}, v161")
            k("v_add_u32 v160, v160, v161")
            k(f"v_lshrrev_b32 v161, 2, {ch}")
            k(f"v_mul_u32_u24 v161, {pairb}, v161")
            k("v_add_u32 v160, v160, v161")
            k(f"v_and_b32 v161, 3, {ch}")
            k("v_lshlrev_b32 v162, 6, v161")
            k("v_lshlrev_b32 v163, 7, v161")
            k(f"v_cmp_gt_u32 vcc, {npair}, {ch}")
            k("v_cndmask_b32 v162, v163, v162, vcc")
            k(f"v_add_u32 {o}, v160, v162")
            k("v_mov_b32 v162, 64")
            k(f"v_mov_b32 v163, {second}")
            k("v_cndmask_b32 v162, v162, v163, vcc")
            k(f"v_add_u32 {ch}, {o}, v162")
        k("v_cmp_gt_u32 vcc, 224, v0")
        k("v_mov_b32 v160, 61440")
        k("v_cndmask_b32 v6, v160, v6, vcc")
        k("v_cndmask_b32 v7, v160, v7, vcc")
        for ps in range(2):
            src = 16 + 32 * ps
            for e in range(8):
                o = 160 + 4 * e
                for p in range(4):
                    k(f"v_perm_b32 v{o+p}, v{src+4*(2*p+1)+e//2}, v{src+4*(2*p)+e//2}, s{58+(e&1)}")
                k(f"ds_write_b128 v{4+2*ps+(e>>2)}, v[{o}:{o+3}] offset:{(e&3)*16}")
        k.wait(lg=0)
        k.barrier()
        stamp("mfma")


    k("s_cmp_ge_u32 s2, 64")
    k.branch("s_cbranch_scc1 main_prep_wd", flush=False)
    sv = (list(k.vm), list(k.lg))
    item_idx(2731, 24)
    k("s_bfe_u32 s60, s2, 0x30001")
    k("s_lshr_b32 s61, s2, 4")
    k(f"s_mul_i32 s10, s61, {160*3072}")
    k("s_mul_i32 s11, s60, 384")
    k("s_add_u32 s10, s10, s11")
    item_loads(3072)

    def op_wgu(o):
        k(f"v_lshrrev_b32 v160, 2, {o}")
        k("v_mul_u32_u24 v160, 3072, v160")
        k(f"v_and_b32 v162, 3, {o}")
        k("v_lshl_add_u32 v160, v162, 8, v160")
    stage(43, 8, 6, 15360, op_wgu, 2048, 4, 1024)
    k("s_mul_i32 s13, s3, 15360")
    k(f"v_add_u32 v4, s13, {VL16}")
    k("s_lshl_b32 s12, s60, 2")
    k("s_add_u32 s12, s12, s3")
    k(f"s_mul_i32 s10, s12, {WGU_M}")
    k("s_mul_i32 s11, s61, 30720")
    k("s_add_u32 s10, s10, s11")
    k("s_and_b32 s13, s2, 1")
    k("s_mul_i32 s11, s13, 3072")
    k("s_add_u32 s10, s10, s11")
    k(f"s_add_u32 s10, s10, {WS_WGU}")
    for j in range(15):
        k(f"ds_read_b128 v[{16+4*j}:{19+4*j}], v4 offset:{j*1024}")
    for t in range(3):
        k(f"v_mov_b32 v{5+t}, 0")
    for j in range(15):
        k(f"buffer_store_dwordx4 v[{16+4*j}:{19+4*j}], {VL16}, {srd(SWS)}, s10 offen offset:{(j%3)*1024} sc1")
        if j % 3 == 2:
            k("s_add_u32 s10, s10, 6144")
        for p in range(4):
            k(f"v_dot2c_f32_bf16 v{5+j%3}, v{16+4*j+p}, v12")
    for t in range(3):
        xsum16(k, f"v{5+t}", "v8")
        xsum32(k, f"v{5+t}", "v8")
    k("v_cmp_eq_u32 vcc, 1, v3")
    k("v_cndmask_b32 v5, v5, v6, vcc")
    k("v_cmp_eq_u32 vcc, 2, v3")
    k("v_cndmask_b32 v5, v5, v7, vcc")
    k("v_lshlrev_b32 v6, 2, v1")
    k("v_cmp_gt_u32 vcc, 48, v1")
    k("v_cndmask_b32 v6, v14, v6, vcc")
    k("s_lshl_b32 s10, s12, 11")
    k("s_lshl_b32 s11, s61, 9")
    k("s_add_u32 s10, s10, s11")
    k("s_mul_i32 s11, s13, 192")
    k("s_add_u32 s10, s10, s11")
    k(f"s_add_u32 s10, s10, {WS_CS}")
    k(f"buffer_store_dword v5, v6, {srd(SWS)}, s10 offen sc1")

    k.wait(vm=0)
    k.flush_hazards()
    k.branch("s_branch main_prep_pub", flush=False)
    k.label("main_prep_wd", flush=False)
    k.vm, k.lg = sv
    item_idx(820, 80)
    k("s_sub_u32 s60, s2, 64")
    k(f"s_mul_i32 s10, s60, {48*1280}")
    item_loads(1280)

    def op_wd(o):
        k(f"v_lshlrev_b32 v160, 8, {o}")
    stage(205, 11, 10, 7680, op_wd, 3072, 8, 1536)
    k("s_mul_i32 s13, s3, 15360")
    k(f"v_add_u32 v4, s13, {VL16}")
    k("v_lshrrev_b32 v6, 1, v3")
    k("v_and_b32 v7, 1, v3")
    k("v_mul_u32_u24 v5, 7680, v6")
    k("v_lshl_add_u32 v5, v7, 8, v5")
    k("v_lshl_add_u32 v5, v2, 4, v5")
    k("v_add_u32 v5, s13, v5")
    k("s_mul_i32 s11, s60, 6")
    k("v_add_u32 v8, s11, v3")
    k("v_add3_u32 v9, v7, s11, 4")
    for v in ("v8", "v9"):
        k(f"v_lshrrev_b32 v13, 2, {v}")
        k("v_mul_u32_u24 v13, 5120, v13")
        k(f"v_and_b32 {v}, 3, {v}")
        k(f"v_lshl_add_u32 {v}, {v}, 8, v13")
        k(f"v_lshl_add_u32 {v}, v2, 4, {v}")
    k(f"v_mul_u32_u24 v13, {48*5120}, v6")
    k("v_add_u32 v9, v9, v13")
    k(f"s_mul_i32 s10, s3, {2*48*5120}")
    k(f"s_add_u32 s10, s10, {WS_WD}")
    plan = []
    for t in range(5):
        plan += [("v4", t * 1536, "v8", t * 1024), ("v4", 7680 + t * 1536, "v8", 48 * 5120 + t * 1024), ("v5", 1024 + t * 1536, "v9", t * 1024)]
    for j, (la, lo, ga, go) in enumerate(plan):
        k(f"ds_read_b128 v[{16+4*j}:{19+4*j}], {la} offset:{lo}")
    for j, (la, lo, ga, go) in enumerate(plan):
        k(f"s_add_u32 s11, s10, {go}")
        k(f"buffer_store_dwordx4 v[{16+4*j}:{19+4*j}], {ga}, {srd(SWS)}, s11 offen sc1")

    k.wait(vm=0)
    k.flush_hazards()
    k.label("main_prep_pub", flush=False)
    k.barrier()
    k("s_lshl_b32 s10, s2, 7")
    k(f"s_add_u32 s10, s10, {SY_PF}")
    k("s_cmp_eq_u32 s3, 0")
    k("s_cselect_b32 s10, s10, 0x40000000")
    k("v_mov_b32 v204, 0")
    ML(f"buffer_store_dword v15, v204, {srd(SSY)}, s10 offen sc1", 1)()
    stamp("cf")
    pl = wpoll_setup("v8")
    emit(pl[0])
    poll(pl, ["v13"], None, sleep=4, nl=16)
    k.wait(vm=0, lg=0)
    k.flush_hazards()

    k.label("main_join", flush=False)
    k.barrier()
    stamp("pp")
    for p in range(NP1):
        for x in wgu_dma(p):
            emit(x)
    k(f"v_add_u32 {VL16B}, 61440, {VL16}")
    k.srd(SX, 24, XSPAN + XFB, WS_X1)
    k.srd(SH, 24, HSPAN + HFB, WS_H)
    k.srd(SY_, 24, XFB, WS_Y)
    k(f"s_mul_i32 s56, s15, {HRT}")
    k("s_mul_i32 s10, s5, 1536")
    k("s_add_u32 s56, s56, s10")
    k("s_mul_i32 s10, s3, 12288")
    k(f"s_mul_i32 s57, s16, {HRT}")
    k("s_add_u32 s57, s57, s10")
    k("s_xor_b32 s11, s16, 1")
    k(f"s_mul_i32 s58, s11, {HRT}")
    k("s_add_u32 s58, s58, s10")
    k(f"s_mul_i32 s59, s16, {XRT}")
    k("s_mul_i32 s10, s8, 2560")
    k("s_add_u32 s59, s59, s10")
    k("v_and_b32 v204, 1, v3")
    k("v_lshrrev_b32 v205, 1, v3")
    k(f"v_mul_u32_u24 {VH2}, {HRT}, v204")
    k("v_lshlrev_b32 v206, 4, v2")
    k("v_lshl_add_u32 v206, v205, 8, v206")
    k(f"v_add_u32 {VH2}, {VH2}, v206")
    k(f"v_lshl_add_u32 {VT4}, v204, 3, v206")
    k("s_lshl_b32 s10, s14, 31")
    k(f"v_or_b32 {VT4S}, s10, {VT4}")
    k("s_lshl_b32 s10, s16, 4")
    k(f"v_add_u32 {VROW}, s10, v2")
    k(f"v_lshlrev_b32 {VGR}, 3, v2")
    k("v_cmp_eq_u32 vcc, 0, v3")
    k(f"v_mov_b32 v204, {OOB:#x}")
    k(f"v_cndmask_b32 {VGW}, v204, {VGR}, vcc")
    k(f"v_lshl_add_u32 {VQ128}, v3, 7, {VGR}")
    k(f"v_lshl_add_u32 {VGR}, v3, 9, {VGR}")
    k("v_cmp_eq_u32 vcc, 0, v1")
    k(f"v_cndmask_b32 {VFLAG}, v204, v1, vcc")
    k("s_lshl_b32 s10, s4, 3")
    k("s_add_u32 s10, s10, s7")
    k("s_lshl_b32 s10, s10, 5")
    k("s_lshl_b32 s11, s3, 3")
    k("s_add_u32 s10, s10, s11")
    k(f"v_and_b32 {VFPOLL}, 7, v1")
    k(f"v_add_u32 {VFPOLL}, s10, {VFPOLL}")
    k(f"v_lshlrev_b32 {VFPOLL}, 7, {VFPOLL}")
    k(f"v_lshlrev_b32 {VXP}, 4, v2")
    k(f"v_lshl_add_u32 {VXP}, v3, 9, {VXP}")
    k("s_lshr_b32 s10, s16, 1")
    k(f"s_mul_i32 s62, s10, {XBLK}")
    k("s_mul_i32 s10, s8, 5120")
    k("s_add_u32 s62, s62, s10")
    k("s_lshl_b32 s10, s9, 3")
    k("s_add_u32 s62, s62, s10")
    k("s_lshr_b32 s10, s5, 2")
    k("s_lshl_b32 s11, s4, 3")
    k("s_add_u32 s63, s10, s11")
    k(f"s_mul_i32 s60, s63, {XBLK}")
    k("s_mul_i32 s10, s3, 10240")
    k("s_add_u32 s60, s60, s10")
    k("s_and_b32 s61, s5, 3")
    k("s_lshl_b32 s10, s61, 6")
    k("s_add_u32 s60, s60, s10")
    k("v_and_b32 v188, 3, v1")
    k("v_lshrrev_b32 v189, 2, v1")
    k("v_lshlrev_b32 v189, 8, v189")
    k("v_lshl_add_u32 v189, v188, 4, v189")
    k("v_cmp_gt_u32 vcc, 32, v1")
    k("v_cndmask_b32 v190, v204, v189, vcc")
    k("s_lshl_b32 s10, s5, 11")
    k(f"s_add_u32 s10, s10, {WS_CS}")
    k("v_lshlrev_b32 v197, 3, v1")
    for i in range(4):
        k(f"buffer_load_dwordx2 v[{208+2*i}:{209+2*i}], v197, {srd(SWS)}, s10 offen offset:{i*512} sc1")
    k.srd(SO, 26, XFB)
    k("s_lshr_b32 s10, s4, 1")
    k("s_mul_i32 s10, s10, 160")
    k("s_mul_i32 s11, s3, 40")
    k("s_add_u32 s10, s10, s11")
    k("s_lshl_b32 s12, s10, 7")
    k(f"s_add_u32 s12, s12, {SY_CF}")
    k("v_lshlrev_b32 v205, 7, v1")
    cl = [ML(f"buffer_load_dword v206, v205, {srd(SSY)}, s12 offen sc1", 40)]
    emit(cl[0])
    k(f"v_add_u32 v197, {LC}, v197")
    k("v_pk_add_f32 v[208:209], v[208:209], v[210:211]")
    k("v_pk_add_f32 v[212:213], v[212:213], v[214:215]")
    k("v_pk_add_f32 v[208:209], v[208:209], v[212:213]")
    k("ds_write_b64 v197, v[208:209]")
    poll(cl, ["v206"], None, sleep=3, nl=40)
    k.barrier()
    stamp("join")
    for kk in range(4):
        for x in x_loads(0, 0, kk, 2 * kk):
            emit(x)
    SR = 192
    for i in range(3):
        k(f"s_add_u32 s12, s60, {i*4096}")
        k(f"buffer_load_dwordx4 v[{SR+4*i}:{SR+4*i+3}], v{189 if i < 2 else 190}, {srd(SX)}, s12 offen sc1")
    for kk in range(4, DIST):
        for x in x_loads(0, 0, kk, 2 * kk):
            emit(x)

    def phase_s():
        for r in range(2):
            s_, q_ = TMP + 2 * r, TMP + 2 * r + 1
            first = True
            for i in range(3):
                for d in range(2):
                    unpack(k, "v204", "v205", f"v{SR+4*i+2*r+d}")
                    if first:
                        k(f"v_add_f32 v{s_}, v204, v205")
                        k(f"v_mul_f32 v{q_}, v204, v204")
                        first = False
                    else:
                        k(f"v_add_f32 v{s_}, v{s_}, v204")
                        k(f"v_add_f32 v{s_}, v{s_}, v205")
                        k(f"v_fmac_f32 v{q_}, v204, v204")
                    k(f"v_fmac_f32 v{q_}, v205, v205")
        for v in range(TMP, TMP + 4):
            k(f"v_add_f32_dpp v{v}, v{v}, v{v} row_ror:4 row_mask:0xf bank_mask:0xf")
        for v in range(TMP, TMP + 4):
            k(f"v_add_f32_dpp v{v}, v{v}, v{v} row_ror:8 row_mask:0xf bank_mask:0xf")
        for v in range(TMP, TMP + 4):
            xsum16(k, f"v{v}", "v204")
            xsum32(k, f"v{v}", "v204")
        k(f"v_or_b32 v{TMP+1}, 0x80000000, v{TMP+1}")
        k(f"v_or_b32 v{TMP+3}, 0x80000000, v{TMP+3}")
        k("s_lshl_b32 s12, s63, 3")
        k("s_add_u32 s12, s12, s3")
        k("s_lshl_b32 s12, s12, 7")
        k("s_lshl_b32 s13, s61, 5")
        k("s_add_u32 s12, s12, s13")
        k(f"s_add_u32 s12, s12, {SY_ST1}")
        k("v_lshlrev_b32 v204, 3, v1")
        set_exec(4)
        k(f"buffer_store_dwordx2 v[{TMP}:{TMP+1}], v204, {srd(SSY)}, s12 offen sc1")
        k(f"buffer_store_dwordx2 v[{TMP+2}:{TMP+3}], v204, {srd(SSY)}, s12 offen offset:512 sc1")
        k("s_mov_b64 exec, -1")

    sched = {}
    wi = 0
    pn = NP1
    for kk in range(20):
        L = []
        if pn < 10:
            L += wgu_dma(pn)
            pn += 1
        if kk + DIST < 20:
            L += x_loads(0, 0, kk + DIST, 2 * (kk + DIST))
        else:
            kb = kk + DIST - 20
            L += x_loads(0, 1, kb, 40 + 2 * kb)
        if kk >= 10 - NP1:
            for _ in range(2):
                L += wd_load(wi)
                wi += 1
        if kk == 2:
            L = [phase_s] + L
        if kk == 14:
            L = st1_loads(0, TMP + 24) + L
        sched[kk] = L
    g1_main(0, sched, first=True, xp=True)
    stamp("g1a")
    stats1(0, STA)
    g1_epilogue(0, 0, STA)
    stamp("e1a")
    extra = {}
    per = max(1, -(-(60 - wi) // 12))
    for kk in range(12):
        extra[kk] = []
        for _ in range(per):
            if wi < 60:
                extra[kk] += wd_load(wi)
                wi += 1
    assert wi == 60
    extra[12] = st1_loads(1, TMP + 24) + res_loads(0)
    sched, rest = g1b_sched(0, extra)
    g1_main(40, sched, xp=True)
    stamp("g1b")
    for L in rest:
        for x in L:
            emit(x)
    stats1(1, STB)
    g1_epilogue(0, 1, STB)
    stamp("e1b")

    NH0 = 5

    def g2a(layer):
        g2_main(80, {HFK: [lambda: h_flag(layer, 1)], 11: h_poll_loads(layer, 1)})
        stamp(f"g2a{layer}")

        def mid():
            h_poll(layer, 1)
            stamp(f"ph{layer}")
            for kk in range(NH0):
                for x in h_loads(layer, 1, kk, 2 * kk):
                    emit(x)
        g2_reduce(X1R[0], X2[0], mid)

    def g2b_sched(layer, extra):
        sched = {}
        for kk in range(12):
            L = []
            if kk + NH0 < 12:
                L += h_loads(layer, 1, kk + NH0, 2 * (kk + NH0))
            sched[kk] = L + extra.get(kk, [])
        return sched

    g2a(0)
    part_stats(X2[0], 0, SY_ST2)
    stamp("r2a")

    def fin_a():
        finalize(0, X2[0], G2R)
        part_calc(X2[0], 244)
    g2_main(0, g2b_sched(0, {3: res_loads(1), FK - 3: st2_loads(0, G2R), FK: [fin_a]}))
    stamp("g2b")
    g2_reduce(X1R[1], X2[1], lambda: part_pub(244, 0, SY_ST3, pre_wait="xst"))
    part_stats(X2[1], 1, SY_ST2)
    stamp("s3a")
    for x in st3_loads(0, TMP):
        emit(x)
    stats3(0, STA)
    stamp("p3a")
    for kk in range(DIST):
        for x in x_loads(1, 0, kk, 2 * kk):
            emit(x)
        if kk == 3:
            for x in st2_loads(1, G2R):
                emit(x)
    finalize(1, X2[1], G2R)
    part_calc(X2[1], 246)
    stamp("fin")
    sched = {}
    xb = [x_loads(1, 1, j, 40 + 2 * j) for j in range(DIST)]
    for kk in range(20):
        L = []
        if kk + DIST < 20:
            L += x_loads(1, 0, kk + DIST, 2 * (kk + DIST))
        if kk == 3:
            L = L + [lambda: part_pub(246, 1, SY_ST3, pre_wait="xst")]
        if kk == S3K - 4:
            L = L + st3_loads(1, TMP)
        if kk == S3K:
            L = [lambda: stats3(1, STB)] + L
        if kk >= S3K:
            for _ in range(-(-DIST // (20 - S3K))):
                if xb and (DIST - len(xb)) + 8 < kk:
                    L += xb.pop(0)
        sched[kk] = L
    assert not xb
    g1_main(0, sched)
    stamp("g1a'")
    g1_epilogue(1, 0, STA)
    stamp("e1a'")
    sched, rest = g1b_sched(1, {})
    g1_main(40, sched)
    stamp("g1b'")
    for L in rest:
        for x in L:
            emit(x)
    g1_epilogue(1, 1, STB)
    stamp("e1b'")
    g2a(1)
    out_store(0, X2[0])
    stamp("r2a'")
    g2_main(0, g2b_sched(1, {}))
    g2_reduce(X1R[1], X2[1])
    out_store(1, X2[1])
    k.prof_end(2, 24, 3, names="main")
    k.label("main_end", flush=False)
    k("s_endpgm")
    k.raw("main_code_end:")
    return k


if __name__ == "__main__":
    if os.environ.get("PROF"):
        Kern.PROF = True
    pre = gen_pre()
    main = gen_main()
    out = sys.argv[1] if len(sys.argv) > 1 else "v12.s"
    open(out, "w").write(build_file(HEADER, [pre, main], [pre, main]))
    json.dump(PROFINFO, open(out + ".prof.json", "w"))
    for kk in (pre, main):
        print(kk.name, "instrs", kk.nins, "vgpr", kk.maxv + 1, "agpr", kk.maxa + 1, "sgpr", kk.maxs + 1, "lds", kk.lds)
```

```python
import re

TRANS = ("v_exp_f32", "v_log_f32", "v_rcp_f32", "v_rsq_f32", "v_sqrt_f32", "v_sin_f32", "v_cos_f32",
         "v_rcp_iflag_f32")
NO_DST_SALU = ("s_cmp", "s_cbranch", "s_branch", "s_barrier", "s_waitcnt", "s_nop", "s_setprio", "s_sleep",
               "s_endpgm", "s_bitcmp", "s_setreg", "s_sendmsg")

_reg_re = re.compile(r"^(-?)(\|?)(abs\()?([vas])(\d+)\)?\|?$")
_rng_re = re.compile(r"^(-?)(\|?)(abs\()?([vas])\[(\d+):(\d+)\]\)?\|?$")


def regs_of(tok):
    tok = tok.strip()
    m = _reg_re.match(tok)
    if m:
        return [m.group(4) + m.group(5)]
    m = _rng_re.match(tok)
    if m:
        return [m.group(4) + str(i) for i in range(int(m.group(5)), int(m.group(6)) + 1)]
    if tok in ("vcc", "vcc_lo", "vcc_hi"):
        return ["vcc"]
    if tok in ("exec", "exec_lo", "exec_hi"):
        return ["exec"]
    if tok == "m0":
        return ["m0"]
    return []


def split_ops(rest):
    ops = []
    depth = 0
    cur = ""
    for ch in rest:
        if ch in "[(":
            depth += 1
        elif ch in "])":
            depth -= 1
        if ch == "," and depth == 0:
            ops.append(cur.strip())
            cur = ""
        else:
            cur += ch
    last = cur.strip()
    mods = []
    if last:
        parts = []
        depth = 0
        c2 = ""
        for ch in last:
            if ch in "[(":
                depth += 1
            elif ch in "])":
                depth -= 1
            if ch.isspace() and depth == 0:
                if c2:
                    parts.append(c2)
                c2 = ""
            else:
                c2 += ch
        if c2:
            parts.append(c2)
        ops.append(parts[0])
        mods = parts[1:]
    return ops, mods


class Ins:
    __slots__ = ("text", "mn", "ops", "mods", "kind", "rd", "wr", "passes", "A", "B", "C", "D", "dpp", "trans",
                 "lds_dma", "wide_store", "data")


def parse(text):
    t = text.split(";")[0].strip()
    sp = t.split(None, 1)
    mn = sp[0]
    ops, mods = split_ops(sp[1]) if len(sp) > 1 else ([], [])
    I = Ins()
    I.text = text
    I.mn = mn
    I.ops = ops
    I.mods = mods
    I.rd = []
    I.wr = []
    I.passes = 0
    I.A = I.B = I.C = I.D = []
    I.dpp = False
    I.trans = False
    I.lds_dma = False
    I.wide_store = False
    I.data = []
    R = lambda i: regs_of(ops[i]) if i < len(ops) else []
    allr = lambda a: [r for i in range(a, len(ops)) for r in R(i)]
    base = re.sub(r"_(e32|e64|dpp|sdwa)$", "", mn)
    if mn.startswith("v_mfma"):
        I.kind = "mfma"
        I.D = R(0); I.A = R(1); I.B = R(2); I.C = R(3)
        I.passes = 8 if "32x32x16" in mn else 4 if "16x16x32" in mn else None
        assert I.passes, mn
        I.rd = I.A + I.B + I.C
        I.wr = I.D
    elif mn.startswith("v_"):
        I.kind = "valu"
        I.dpp = any(m.startswith(("row_", "quad_perm", "wave_")) for m in mods) or base.startswith("v_permlane")
        I.trans = base in TRANS
        if base.startswith("v_cmp"):
            I.wr = R(0); I.rd = allr(1)
            assert not base.startswith("v_cmpx")
        elif base in ("v_readfirstlane_b32", "v_readlane_b32"):
            I.wr = R(0); I.rd = allr(1)
        elif (base.startswith("v_permlane") and "swap" in base) or base == "v_swap_b32":
            I.wr = R(0) + R(1); I.rd = R(0) + R(1)
        elif base.startswith(("v_fmac", "v_dot2c", "v_pk_fmac", "v_writelane")):
            I.wr = R(0); I.rd = allr(0)
        elif base in ("v_add_co_u32", "v_sub_co_u32", "v_subrev_co_u32", "v_addc_co_u32", "v_subb_co_u32",
                      "v_mad_u64_u32"):
            I.wr = R(0) + R(1); I.rd = allr(2)
        elif base == "v_nop":
            pass
        else:
            I.wr = R(0); I.rd = allr(1)
            if I.dpp or any(m.startswith("dst_unused:UNUSED_PRESERVE") for m in mods):
                I.rd = I.rd + R(0)
            if base == "v_cndmask_b32" and len(ops) == 3:
                I.rd.append("vcc")
    elif mn.startswith("buffer_load"):
        I.kind = "vmem"
        if "lds" in mods:
            I.lds_dma = True
            I.rd = allr(0) + ["m0"]
        else:
            I.wr = R(0); I.rd = allr(1)
            if "d16" in mn:
                I.rd += R(0)
    elif mn.startswith("buffer_store"):
        I.kind = "vmem"
        I.rd = allr(0); I.data = R(0)
        I.wide_store = mn.endswith(("x3", "x4"))
    elif mn.startswith("buffer_atomic"):
        I.kind = "vmem"
        I.rd = allr(0)
        if "sc0" in mods:
            I.wr = R(0)
    elif mn.startswith(("buffer_wbl2", "buffer_inv")):
        I.kind = "vmem"
    elif mn.startswith("global_load_lds"):
        I.kind = "vmem"; I.lds_dma = True
        I.rd = allr(0) + ["m0"]
    elif mn.startswith("global_load"):
        I.kind = "vmem"
        I.wr = R(0); I.rd = allr(1)
    elif mn.startswith("global_store"):
        I.kind = "vmem"
        I.rd = allr(0); I.data = R(1)
        I.wide_store = mn.endswith(("x3", "x4"))
    elif mn.startswith("global_atomic"):
        I.kind = "vmem"
        if "sc0" in mods:
            I.wr = R(0); I.rd = allr(1)
        else:
            I.rd = allr(0)
    elif mn.startswith("ds_"):
        I.kind = "ds"
        if mn.startswith(("ds_read", "ds_bpermute", "ds_permute", "ds_swizzle")) or "_rtn" in mn:
            I.wr = R(0); I.rd = allr(1)
            if "d16" in mn:
                I.rd += R(0)
        else:
            I.rd = allr(0)
    elif mn.startswith(("s_load", "s_memtime", "s_memrealtime", "s_buffer_load")):
        I.kind = "smem"
        I.wr = R(0); I.rd = allr(1)
    elif mn.startswith("s_"):
        I.kind = "salu"
        if mn.startswith(NO_DST_SALU):
            I.rd = allr(0)
        elif "saveexec" in mn:
            I.wr = R(0) + ["exec"]; I.rd = allr(1) + ["exec"]
        else:
            I.wr = R(0); I.rd = allr(1)
            if mn.startswith(("s_addk", "s_mulk", "s_cmov")):
                I.rd += R(0)
    else:
        raise ValueError("unknown instruction: " + text)
    return I


PROFINFO = {}


class Kern:
    def __init__(self, name, lds=0, grid=None, block=256):
        self.name = name
        self.lds = lds
        self.grid = grid
        self.block = block
        self.lines = []
        self.t = 0
        self.valu_w = {}
        self.valu_sw = {}
        self.mfma_w = {}
        self.mfma_c = {}
        self.st_data = {}
        self.dl_w = {}
        self.m0_w = -100
        self.vm = []
        self.lg = []
        self.maxv = -1
        self.maxa = -1
        self.maxs = -1
        self.nins = 0
        self.uid = 0
        self.auto = True

    def raw(self, s):
        self.lines.append(s)

    def comment(self, s):
        self.lines.append("    ; " + s)

    def _nop(self, n):
        while n > 0:
            k = min(n, 16)
            self.lines.append(f"    s_nop {k-1}")
            self.t += k
            self.nins += 1
            n -= k

    def _waitcnt(self, vm=None, lg=None):
        parts = []
        if vm is not None:
            vm = min(vm, 63)
            if vm < len(self.vm):
                parts.append(f"vmcnt({vm})")
                self.vm = self.vm[len(self.vm) - vm:] if vm else []
        if lg is not None:
            if any(e[2] for e in self.lg):
                lg = 0
            lg = min(lg, 15)
            if lg < len(self.lg):
                parts.append(f"lgkmcnt({lg})")
                self.lg = self.lg[len(self.lg) - lg:] if lg else []
        if parts:
            self.lines.append("    s_waitcnt " + " ".join(parts))
            self.t += 1
            self.nins += 1

    def wait(self, vm=None, lg=None):
        self._waitcnt(vm, lg)

    def need(self, regs):
        ts = set(regs)
        vmn = lgn = None
        for i, e in enumerate(self.vm):
            if e[0] & ts:
                vmn = len(self.vm) - 1 - i
        for i, e in enumerate(self.lg):
            if e[0] & ts:
                lgn = len(self.lg) - 1 - i
        if vmn is not None or lgn is not None:
            self._waitcnt(vmn, lgn)

    def wait_tag(self, tag):
        idx = [i for i, e in enumerate(self.vm) if e[1] == tag]
        if idx:
            self._waitcnt(vm=len(self.vm) - 1 - max(idx))

    def wait_lg_tag(self, tag):
        idx = [i for i, e in enumerate(self.lg) if e[1] == tag]
        if idx:
            self._waitcnt(lg=len(self.lg) - 1 - max(idx))

    def flush_hazards(self):
        need = 0
        for r, (t, p, d) in self.mfma_w.items():
            need = max(need, (8 if p == 4 else 12) - (self.t - t - 1))
        for r, (t, tr) in self.valu_w.items():
            need = max(need, 2 - (self.t - t - 1))
        for r, t in self.valu_sw.items():
            need = max(need, 5 - (self.t - t - 1))
        for r, t in self.st_data.items():
            need = max(need, 2 - (self.t - t - 1))
        for r, (t, mn) in self.dl_w.items():
            need = max(need, 3 - (self.t - t - 1))
        need = max(need, 1 - (self.t - self.m0_w - 1))
        if need > 0:
            self._nop(need)

    def label(self, name, flush=True):
        if flush:
            self._waitcnt(0, 0)
            self.flush_hazards()
        self.lines.append(name + ":")

    def branch(self, text, flush=True):
        if flush:
            self._waitcnt(0, 0)
            self.flush_hazards()
        self(text)

    def barrier(self):
        self("s_barrier")

    def newlabel(self, base="L"):
        self.uid += 1
        return f"{self.name}_{base}{self.uid}"

    def __call__(self, text, tag=None):
        I = parse(text)
        touched = I.rd + I.wr
        for r in touched:
            if r[0] == "v" and r != "vcc":
                self.maxv = max(self.maxv, int(r[1:]))
            elif r[0] == "a":
                self.maxa = max(self.maxa, int(r[1:]))
            elif r[0] == "s":
                self.maxs = max(self.maxs, int(r[1:]))
        if I.mn == "s_waitcnt":
            raise ValueError("use .wait()")
        if self.auto:
            ts = set(touched)
            vmn = lgn = None
            for i, e in enumerate(self.vm):
                if e[0] & ts:
                    vmn = len(self.vm) - 1 - i
            for i, e in enumerate(self.lg):
                if e[0] & ts:
                    lgn = len(self.lg) - 1 - i
            if vmn is not None or lgn is not None:
                self._waitcnt(vmn, lgn)
        need = 0

        def req(t, n):
            nonlocal need
            need = max(need, n - (self.t - t - 1))

        XD = {4: 8, 8: 12}
        for r in touched:
            if r in self.dl_w:
                t, mn = self.dl_w[r]
                if mn == I.mn:
                    srcab = regs_of(I.ops[1]) + regs_of(I.ops[2])
                    if r in srcab:
                        req(t, 3)
                else:
                    req(t, 3)
        if I.kind == "mfma":
            for r in I.rd:
                if r in self.valu_w:
                    req(self.valu_w[r][0], 2)
            for r in I.A + I.B:
                if r in self.mfma_w:
                    t, p, d = self.mfma_w[r]
                    req(t, XD[p])
            for r in I.C + I.D:
                if r in self.mfma_w:
                    t, p, d = self.mfma_w[r]
                    if d == tuple(I.C) and p == I.passes and I.C == I.D:
                        pass
                    elif d == tuple(I.C) and p == I.passes and r in I.C:
                        pass
                    else:
                        req(t, {4: 6, 8: 10}[p])
        elif I.kind == "valu":
            for r in touched:
                if r in self.mfma_w:
                    t, p, d = self.mfma_w[r]
                    req(t, XD[p])
            for r in I.wr:
                if r in self.mfma_c:
                    t, p = self.mfma_c[r]
                    req(t, {4: 3, 8: 7}[p])
                if r in self.st_data:
                    req(self.st_data[r], 2)
            for r in I.rd:
                if r in self.valu_w:
                    t, tr = self.valu_w[r]
                    if tr and not I.trans:
                        req(t, 1)
                    if I.dpp:
                        req(t, 2)
                    if I.mn.startswith(("v_readlane", "v_readfirstlane")):
                        req(t, 1)
                if r in self.valu_sw:
                    req(self.valu_sw[r], 4 if I.mn.startswith(("v_readlane", "v_writelane")) else 2)
        elif I.kind in ("vmem", "ds"):
            for r in touched:
                if r in self.mfma_w:
                    t, p, d = self.mfma_w[r]
                    req(t, XD[p])
            for r in I.rd:
                if r in self.valu_sw:
                    req(self.valu_sw[r], 5)
            for r in I.wr:
                if r in self.st_data:
                    req(self.st_data[r], 1)
                if r in self.mfma_c:
                    t, p = self.mfma_c[r]
                    req(t, {4: 3, 8: 7}[p])
            if I.lds_dma:
                req(self.m0_w, 1)
        elif I.kind in ("salu", "smem"):
            for r in I.rd:
                if r in self.valu_sw:
                    req(self.valu_sw[r], 1)
        if need > 0:
            self._nop(need)
        self.lines.append("    " + text)
        self.nins += 1
        now = self.t
        if I.mn == "s_nop":
            self.t += int(I.ops[0], 0) + 1
        else:
            self.t += 1
        for r in I.wr:
            self.valu_w.pop(r, None)
            self.mfma_w.pop(r, None)
            self.valu_sw.pop(r, None)
            self.dl_w.pop(r, None)
        if I.mn.startswith("v_dot"):
            for r in I.wr:
                self.dl_w[r] = (now, I.mn)
        if I.kind == "mfma":
            for r in I.D:
                self.mfma_w[r] = (now, I.passes, tuple(I.D))
            for r in I.C:
                self.mfma_c[r] = (now, I.passes)
        elif I.kind == "valu":
            for r in I.wr:
                if r[0] in "va" and r != "vcc":
                    self.valu_w[r] = (now, I.trans)
                else:
                    self.valu_sw[r] = now
        elif I.kind == "vmem":
            if I.wide_store:
                for r in I.data:
                    self.st_data[r] = now
            self.vm.append((set(I.wr), tag))
        elif I.kind == "ds":
            self.lg.append((set(I.wr), tag, False))
        elif I.kind == "smem":
            self.lg.append((set(I.wr), tag, True))
        elif I.kind == "salu":
            if "m0" in I.wr:
                self.m0_w = now
        if self.nins % 64 == 0:
            for d in (self.valu_sw, self.st_data):
                for r in [r for r, t in d.items() if self.t - t > 24]:
                    del d[r]
            for d in (self.valu_w, self.mfma_w, self.mfma_c, self.dl_w):
                for r in [r for r, e in d.items() if self.t - e[0] > 24]:
                    del d[r]

    PROF = False
    import os as _os
    CLK = 's_memrealtime' if _os.environ.get('REAL') else 's_memtime'
    def stamp(self, name):
        if not Kern.PROF:
            return
        if not hasattr(self, "stamps"):
            self.stamps = []
        i = len(self.stamps)
        assert i < 14
        self.stamps.append(name)
        self(f"{Kern.CLK} s[{64+2*i}:{65+2*i}]")

    def prof_begin(self):
        if not Kern.PROF:
            return
        self("s_memrealtime s[92:93]")
        self.stamp("start")

    def prof_end(self, slot, ws_lo, wave_sreg, slot_sreg=None, names=None):
        if not Kern.PROF:
            return
        self.stamp("end")
        self.wait(vm=0)
        self.stamp("drained")
        self("s_memrealtime s[94:95]")
        self.wait(lg=0)
        self.srd(96, ws_lo, 0x400000, 0x8000000)
        self("s_lshl_b32 s100, s2, 4")
        self(f"s_add_u32 s100, s100, s{wave_sreg}")
        self("s_lshl_b32 s100, s100, 6")
        if slot_sreg is None:
            self(f"s_add_u32 s100, s100, {slot*0x40000}")
        else:
            self(f"s_add_u32 s100, s100, s{slot_sreg}")
        self("v_mov_b32 v0, s100")
        vals = ["s92", "s94"] + [f"s{64+2*i}" for i in range(len(self.stamps))]
        for i, v in enumerate(vals):
            self(f"v_mov_b32 v1, {v}")
            self(f"buffer_store_dword v1, v0, s[96:99], 0 offen offset:{4*i}")
        if slot_sreg is None:
            PROFINFO[slot] = (names or self.name, list(self.stamps))
        else:
            for sl, nm in zip(slot, names):
                PROFINFO[sl] = (nm, list(self.stamps))

    def srd(self, d, ptr_lo, nbytes, off=0):
        if off:
            self(f"s_add_u32 s{d}, s{ptr_lo}, {off}")
            self(f"s_addc_u32 s{d+1}, s{ptr_lo+1}, 0")
        else:
            self(f"s_mov_b32 s{d}, s{ptr_lo}")
            self(f"s_mov_b32 s{d+1}, s{ptr_lo+1}")
        self(f"s_mov_b32 s{d+2}, {nbytes}")
        self(f"s_mov_b32 s{d+3}, 0x00020000")

    def text(self):
        hdr = [f".globl {self.name}", ".p2align 8", f".type {self.name},@function", f"{self.name}:"]
        return "\n".join(hdr + self.lines) + "\n"

    def descriptor(self):
        nv = self.maxv + 1
        acc = max(4, (nv + 3) // 4 * 4)
        tot = acc + self.maxa + 1 if self.maxa >= 0 else nv
        assert nv <= 256 and tot <= 512, (nv, tot)
        ns = max(self.maxs + 1, 8)
        assert ns <= 102
        return f""".p2align 6
.amdhsa_kernel {self.name}
  .amdhsa_next_free_vgpr {tot}
  .amdhsa_next_free_sgpr {ns}
  .amdhsa_accum_offset {acc}
  .amdhsa_group_segment_fixed_size 0
  .amdhsa_kernarg_size 104
  .amdhsa_user_sgpr_count 2
  .amdhsa_user_sgpr_kernarg_segment_ptr 1
  .amdhsa_system_sgpr_workgroup_id_x 1
  .amdhsa_float_denorm_mode_32 3
.end_amdhsa_kernel
"""


def build_file(header_comment, kerns, launches):
    out = [header_comment.rstrip("\n")]
    for k in launches:
        out.append(f"; @launch kernel={k.name} grid=({k.grid},1,1) block=({k.block},1,1) lds={k.lds}")
    out.append('.amdgcn_target "amdgcn-amd-amdhsa--gfx950"')
    out.append(".text")
    for k in kerns:
        out.append(k.text())
    out.append('.section .rodata,"a"')
    for k in kerns:
        out.append(k.descriptor())
    return "\n".join(out)
```

```python
import sys, os, json
sys.path.insert(0, "dev")
from asmdsl import *
from gen1 import S, D, F, EPS, f2u, unpack, reduce16, xsum16, xsum32, HEADER, XFB, HFB, WDB

KNAME = "interleave_layers__ssm_conv_h3__swiglu_ffn__prompt_kernel"
WS_KVT = 0x0000000
WS_QST = 0x0300000
WS_WGU = 0x0400000
WGU_M = 20 * 6144
WGUB = 32 * WGU_M
WS_CS = 0x0800000
WS_WD = 0x0900000
WS_Y = 0x0C00000
WS_X1 = 0x0F00000
WS_H = 0x1200000
WS_X3 = 0x1D00000
WS_H2 = 0x2000000
WS_SYNC = 0x2800000
SY_ST1 = 0
SY_ST2 = 0x10000
SY_ST3 = 0x50000
SY_HF = 0x90000
SY_CF = 0x110000
SY_PF = 0x124000
SY_QF = 0x128000
SY_GF = 0x12C000
SY_QF = 0x140000
SYNCB = 0x150000
SN = "s6"
WS_QX = 0x2C00000
XBLK = 40960
WSB = 0x3000000
XRT = 20480
HRT = 49152
OOB = 0x80000000
LOG2E = 1.4426950408889634
SPIN_MAX = 1 << 14
NPREP = 96
STAMPS = os.environ.get("STAMPS", "").split(",")
NP1 = int(os.environ.get("NP1", "4"))
NE1 = int(os.environ.get("NE1", "24"))
PPN = int(os.environ.get("PPN", "2"))
LASTW = int(os.environ.get("LASTW", "270"))
NB = int(os.environ.get("NB", "6"))
NE2 = int(os.environ.get("NE2", "0"))
MAP = int(os.environ.get("MAP", "2"))
PF = int(os.environ.get("PF", "0"))
FK = int(os.environ.get("FK", "7"))
HFK = int(os.environ.get("HFK", "4"))
S3K = int(os.environ.get("S3K", "15"))
NWA = int(os.environ.get("NWA", "10"))
NWE1 = int(os.environ.get("NWE1", "12"))
NWB = int(os.environ.get("NWB", "14"))
NWE2 = int(os.environ.get("NWE2", "12"))
HPK = int(os.environ.get("HPK", "9"))
PREW = int(os.environ.get("PREW", "1"))
DIAG = int(os.environ.get("DIAG", "0"))
EVERY = int(os.environ.get("EVERY", "5"))


def srd(n):
    return f"s[{n}:{n+3}]"


def mkstamp(k):
    def stamp(n):
        if n in STAMPS:
            if hasattr(k, "stamps") and n in k.stamps:
                if Kern.PROF:
                    i = k.stamps.index(n)
                    k(f"{Kern.CLK} s[{64+2*i}:{65+2*i}]")
            else:
                k.stamp(n)
    return stamp


def in_srd(k, slot, karg_off, nbytes):
    k(f"s_load_dwordx2 s[{slot}:{slot+1}], s[0:1], {karg_off}")
    k(f"s_mov_b32 s{slot+2}, {nbytes}")
    k(f"s_mov_b32 s{slot+3}, 0x00020000")


def gen_pre():
    k = Kern("pre_kernel", lds=8192, grid=384, block=128)
    stamp = mkstamp(k)
    SA, SB, SC_, SD_, SWS = 28, 32, 36, 40, 48
    k.prof_begin()
    k(f"s_cmp_ge_u32 s2, {k.grid}")
    k.branch("s_cbranch_scc1 pre_end", flush=False)
    k("s_load_dwordx2 s[24:25], s[0:1], 96")
    k("s_cmp_ge_u32 s2, 320")
    k.branch("s_cbranch_scc1 pre_q", flush=False)
    saved0 = (list(k.vm), list(k.lg))
    in_srd(k, SA, 8, S * D * 2)
    in_srd(k, SB, 16, S * D * 2)
    in_srd(k, SC_, 24, D * 8)
    in_srd(k, SD_, 32, D * 4096)
    k("v_lshrrev_b32 v1, 6, v0")
    k("v_readfirstlane_b32 s3, v1")
    k("v_and_b32 v1, 63, v0")
    k("s_lshr_b32 s57, s2, 5")
    k("s_and_b32 s58, s2, 31")
    k("v_lshrrev_b32 v4, 3, v1")
    k("v_and_b32 v5, 7, v1")
    k("s_lshl_b32 s10, s58, 6")
    k("s_lshl_b32 s11, s3, 5")
    k("s_add_u32 s10, s10, s11")
    k("v_lshlrev_b32 v6, 2, v4")
    k("v_add_u32 v6, s10, v6")
    k("v_mul_u32_u24 v7, 1280, v6")
    k("v_lshl_add_u32 v7, v5, 4, v7")
    k("s_lshl_b32 s12, s57, 7")
    k("v_add_u32 v7, s12, v7")
    KR, VR, WR = 16, 44, 60
    k("v_lshlrev_b32 v9, 6, v5")
    k("s_lshl_b32 s12, s57, 9")
    for j in (3, 4, 5, 6):
        k(f"buffer_load_dwordx4 v[{KR+4*j}:{KR+4*j+3}], v7, {srd(SA)}, 0 offen offset:{(j-3)*1280}")
    for i in range(4):
        k(f"buffer_load_dwordx4 v[{VR+4*i}:{VR+4*i+3}], v7, {srd(SB)}, 0 offen offset:{i*1280}")
    for i in range(4):
        k(f"buffer_load_dwordx4 v[{WR+4*i}:{WR+4*i+3}], v9, {srd(SC_)}, s12 offen offset:{16*i}")
    for j in (2, 1, 0):
        k(f"v_add_u32 v8, {((j-3)*1280) & 0xffffffff:#x}, v7")
        k(f"buffer_load_dwordx4 v[{KR+4*j}:{KR+4*j+3}], v8, {srd(SA)}, 0 offen")
    k.srd(SWS, 24, WSB)
    k("s_lshl_b32 s10, s3, 6")
    k("s_sub_u32 s10, 120, s10")
    k("v_lshlrev_b32 v8, 3, v4")
    k("v_sub_u32 v8, s10, v8")
    k("v_lshlrev_b32 v9, 4, v5")
    k("v_xor_b32 v8, v8, v9")
    k("v_lshl_add_u32 v8, v5, 10, v8")
    k("s_lshl_b32 s10, s3, 12")
    k("v_lshlrev_b32 v11, 7, v4")
    k("v_add_u32 v11, s10, v11")
    k("s_lshl_b32 s11, s3, 2")
    for j in range(4):
        k(f"s_add_u32 s12, s11, {j}")
        k(f"v_xor_b32 v{12+j}, s12, v5")
        k(f"v_lshl_add_u32 v{12+j}, v{12+j}, 4, v11")
    k("v_lshl_add_u32 v9, v4, 12, v9")
    k("s_lshl_b32 s10, s57, 6")
    k("s_lshl_b32 s11, s3, 5")
    k("s_add_u32 s10, s10, s11")
    k("s_lshl_b32 s10, s10, 12")
    k("s_lshl_b32 s11, s58, 7")
    k("s_sub_u32 s11, 3968, s11")
    k("s_add_u32 s10, s10, s11")
    WF = 80
    for c in range(8):
        unpack(k, f"v{WF+4*c}", f"v{WF+4*c+1}", f"v{WR+2*c}")
        unpack(k, f"v{WF+4*c+2}", f"v{WF+4*c+3}", f"v{WR+2*c+1}")
    k.wait(vm=0)
    stamp("Tld")
    lab = k.newlabel("pc")
    k("s_getpc_b64 s[44:45]")
    k.raw(lab + ":")
    k(f"s_add_u32 s44, s44, main_kernel-{lab}")
    k("s_addc_u32 s45, s45, 0")
    k("s_mov_b32 s46, main_code_end-main_kernel")
    k("s_mov_b32 s47, 0x00020000")
    k("v_lshlrev_b32 v2, 7, v0")
    k(f"s_sub_u32 s12, s2, {NPREP}")
    k("s_lshl_b32 s12, s12, 14")
    k("s_and_b32 s12, s12, 0x7fffffff")
    k(f"buffer_load_dword v150, v2, {srd(SD_)}, s12 offen")
    k("s_lshr_b32 s12, s2, 3")
    k("s_lshl_b32 s12, s12, 14")
    k("buffer_load_dword v151, v2, s[44:47], s12 offen")
    KF, VF, OUT = 112, 128, 136
    for cp in range(4):
        for j in range(7):
            unpack(k, f"v{KF+2*j}", f"v{KF+2*j+1}", f"v{KR+4*j+cp}")
        for i in range(4):
            unpack(k, f"v{VF+2*i}", f"v{VF+2*i+1}", f"v{VR+4*i+cp}")
        for h in range(2):
            c = 2 * cp + h
            O = OUT + 4 * h
            for i in range(4):
                k(f"v_mul_f32 v{O+i}, v{KF+2*(i+0)+h}, v{WF+4*c+3}")
            for t in (2, 1, 0):
                for i in range(4):
                    k(f"v_fmac_f32 v{O+i}, v{KF+2*(i+3-t)+h}, v{WF+4*c+t}")
            for i in range(4):
                k(f"v_mul_f32 v{O+i}, v{O+i}, v{VF+2*i+h}")
            p = 144 + 2 * h
            k(f"v_cvt_pk_bf16_f32 v{p}, v{O+3}, v{O+2}")
            k(f"v_cvt_pk_bf16_f32 v{p+1}, v{O+1}, v{O+0}")
            k(f"ds_write_b64 v8, v[{p}:{p+1}] offset:{c*128}")
    k.wait(lg=0)
    k.barrier()
    stamp("Tkv")
    for j in range(4):
        k(f"ds_read_b128 v[{16+4*j}:{19+4*j}], v{12+j} offset:{j*1024}")
    for j in range(4):
        k(f"buffer_store_dwordx4 v[{16+4*j}:{19+4*j}], v9, {srd(SWS)}, s10 offen{PSC}")
        k("s_add_u32 s10, s10, 32768")
    for i in range(4):
        k(f"v_mov_b32 v{32+i}, 0")
    k.srd(SA, 24, SYNCB, WS_SYNC)
    k("s_lshl_b32 s12, s2, 12")
    k("v_lshlrev_b32 v8, 4, v0")
    for i in range(2):
        k(f"buffer_store_dwordx4 v[32:35], v8, {srd(SA)}, s12 offen offset:{i*2048}{PSC}")
    k.prof_end(0, 24, 3, names="pre")
    k("s_endpgm")
    k.label("pre_q", flush=False)
    k.vm, k.lg = saved0
    in_srd(k, SA, 0, S * D * 2)
    k("v_lshrrev_b32 v1, 6, v0")
    k("v_readfirstlane_b32 s3, v1")
    k("v_and_b32 v1, 63, v0")
    k("v_and_b32 v2, 15, v0")
    k("v_bfe_u32 v3, v0, 4, 2")
    k("s_sub_u32 s10, s2, 320")
    k("s_lshl_b32 s10, s10, 1")
    k("s_add_u32 s10, s10, s3")
    k(f"s_mul_i32 s11, s10, {XRT}")
    k("v_mul_u32_u24 v4, 1280, v2")
    k("v_lshl_add_u32 v4, v3, 4, v4")
    QR = 16
    for i in range(20):
        k(f"buffer_load_dwordx4 v[{QR+4*i}:{QR+4*i+3}], v4, {srd(SA)}, s11 offen offset:{64*i}")
    k.srd(SWS, 24, WSB)
    k("v_lshlrev_b32 v5, 4, v1")
    k(f"s_add_u32 s12, s11, {WS_QX}")
    k("v_mov_b32 v6, 0x3f803f80")
    k("v_mov_b32 v8, 0")
    k("v_mov_b32 v9, 0")
    for i in range(20):
        if i % 4 == 0 and i:
            k("s_add_u32 s12, s12, 4096")
        k(f"buffer_store_dwordx4 v[{QR+4*i}:{QR+4*i+3}], v5, {srd(SWS)}, s12 offen offset:{(i%4)*1024}{PSC}")
        for d in range(4):
            k(f"v_dot2c_f32_bf16 v8, v{QR+4*i+d}, v6")
            k(f"v_dot2c_f32_bf16 v9, v{QR+4*i+d}, v{QR+4*i+d}")
    for v in ("v8", "v9"):
        xsum16(k, v, "v7")
        xsum32(k, v, "v7")
    k(f"v_mul_f32 v8, {f2u(1.0/D)}, v8")
    k(f"v_mul_f32 v9, {f2u(1.0/D)}, v9")
    k("v_fma_f32 v9, -v8, v8, v9")
    k("v_max_f32 v9, 0, v9")
    k(f"v_add_f32 v9, {f2u(EPS)}, v9")
    k("v_rsq_f32 v11, v9")
    k("v_mul_f32 v10, v8, v11")
    k("s_lshl_b32 s12, s10, 7")
    k(f"s_add_u32 s12, s12, {WS_QST}")
    k("v_lshlrev_b32 v7, 3, v2")
    k(f"buffer_store_dwordx2 v[10:11], v7, {srd(SWS)}, s12 offen")
    k.label("pre_end", flush=False)
    k("s_endpgm")
    return k


PSC = os.environ.get("PSC", "")

def gen_main():
    LW = 0
    LR = 131072
    LC = 122880
    CP = 4160
    UOFF = 4 * CP
    WREG = 4 * CP + 4608
    CB = 163840 - 4 * WREG
    k = Kern(KNAME, lds=163840, grid=256, block=256)
    RING, ACC, WB, TMP = 16, 112, 160, 184
    X1R = [216, 222]
    YR = [228, 234]
    STA, STB = [4, 6], [240, 242]
    X2 = [WB, WB + 12]
    G2R = TMP + 8
    DIST = int(os.environ.get("DIST", "8"))
    VL16, VL16B, VH2, VT4, VT4S, VROW, VGW, VGR, VQ128, VFLAG, VFPOLL = (
        "v10", "v11", "v8", "v9", "v12", "v13", "v14", "v15", "v0", "v252", "v253")
    VL128 = "v251"
    VXP = "v250"
    VRW = "v249"
    LQ = 131072
    SX, SW, SH, SWD, SSY, SO, SY_ = 28, 32, 36, 40, 44, 48, 52
    SA, SB, SWS, SDBG = 28, 36, 48, 52
    XSPAN = WS_X3 - WS_X1
    HSPAN = WS_H2 - WS_H

    stamp = mkstamp(k)

    def ring(i):
        return RING + 4 * (i % 24)

    def emit(x):
        if callable(x):
            x()
        elif isinstance(x, tuple):
            k(x[0], tag=x[1])
        else:
            k(x)

    def set_exec(nl):
        m = (1 << nl) - 1
        if nl <= 32:
            k(f"s_mov_b64 exec, {m:#x}") if nl <= 6 else (k(f"s_mov_b32 exec_lo, {m:#x}"), k("s_mov_b32 exec_hi, 0"))
        else:
            k(f"s_mov_b32 exec_hi, {m >> 32:#x}")

    class ML:
        def __init__(self, text, nl):
            self.text, self.nl = text, nl

        def __call__(self):
            set_exec(self.nl)
            k(self.text)
            k("s_mov_b64 exec, -1")

    def isvm(x):
        if isinstance(x, ML):
            return True
        if callable(x):
            return False
        return (x[0] if isinstance(x, tuple) else x).startswith("buffer_")

    def emit_one_vmem(L):
        while L:
            x = L.pop(0)
            emit(x)
            if isvm(x):
                return

    def x_loads(layer, b, kk, slot0):
        if layer == 0:
            return [f"s_add_u32 s10, s17, {kk*2048 + b*4*XBLK}"] + [
                f"buffer_load_dwordx4 v[{ring(slot0+e)}:{ring(slot0+e)+3}], {VXP}, {srd(SX)}, s10 offen offset:{e*256} sc1"
                for e in range(2)]
        so = kk * 1024 + b * 8 * XRT + (XSPAN if layer else 0)
        L = []
        for tn in range(2):
            L.append(f"s_add_u32 s10, s17, {so + tn*XRT}")
            L.append(f"buffer_load_dwordx4 v[{ring(slot0+tn)}:{ring(slot0+tn)+3}], {VL16}, {srd(SX)}, s10 offen sc1")
        return L

    def h_loads(layer, b, kk, slot0):
        so = kk * 1024 + b * 8 * HRT + (HSPAN if layer else 0)
        L = []
        for tn in range(2):
            L.append(f"s_add_u32 s10, s{57+tn}, {so}")
            L.append(f"buffer_load_dwordx4 v[{ring(slot0+tn)}:{ring(slot0+tn)+3}], {VL16}, {srd(SH)}, s10 offen sc1")
        return L

    def x_pf(layer, b):
        if not PF:
            return []
        return [f"s_add_u32 s10, s26, {b*8*XRT + (XSPAN if layer else 0)}",
                ML(f"buffer_load_dword a240, {VL128}, {srd(SX)}, s10 offen sc1", 20)]

    def h_pf(layer, b):
        if not PF:
            return []
        return [f"s_add_u32 s10, s27, {b*8*HRT + (HSPAN if layer else 0)}",
                ML(f"buffer_load_dword a241, {VL128}, {srd(SH)}, s10 offen sc1", 48)]

    def wgu_dma(p):
        return [f"s_add_u32 m0, s18, {LW + p*12288}", f"s_add_u32 s11, s19, {p*12288}"] + [
            (f"buffer_load_dwordx4 {VL16}, {srd(SW)}, s11 offen offset:{f*1024} sc1 lds", f"w{p}") for f in range(3)]

    def wd_load(i):
        kk, lt = divmod(i, 5)
        base = "s20" if lt < 2 else "s21" if lt < 4 else "s22"
        return [f"s_add_u32 s11, {base}, {kk*5120}",
                f"buffer_load_dwordx4 a[{4*i}:{4*i+3}], {VL16}, {srd(SWD)}, s11 offen offset:{(lt&1)*1024 if lt < 4 else 0} sc1"]

    def poll(loads, tags, tmp, sleep=2, ge=None, nl=64, eq=None):
        def check():
            if nl < 64:
                k(f"v_mov_b32 {tags[0]}, {tags[0]}")
                set_exec(nl)
            check0()
            if nl < 64:
                k("s_cmp_eq_u64 vcc, exec")
                k("s_mov_b64 exec, -1")
            else:
                k("s_cmp_eq_u64 vcc, -1")

        def check0():
            if eq is not None:
                k(f"v_cmp_eq_u32 vcc, {eq}, {tags[0]}")
            elif ge is not None:
                k(f"v_cmp_le_u32 vcc, {ge}, {tags[0]}")
            elif len(tags) == 1:
                k(f"v_cmp_ne_u32 vcc, 0, {tags[0]}")
            else:
                k(f"v_min_u32 {tmp}, {tags[0]}, {tags[1]}")
                for t in tags[2:]:
                    k(f"v_min_u32 {tmp}, {tmp}, {t}")
                k(f"v_cmp_ne_u32 vcc, 0, {tmp}")
        ok = k.newlabel("ok")
        lp = k.newlabel("spin")
        check()
        k.branch(f"s_cbranch_scc1 {ok}", flush=False)
        vm, lg = list(k.vm), list(k.lg)
        k("s_mov_b32 s23, 0")
        k.label(lp, flush=False)
        k(f"s_sleep {sleep}")
        for l in loads:
            emit(l)
        k.wait(vm=0)
        k("s_add_u32 s23, s23, 1")
        k(f"s_cmp_ge_u32 s23, {SPIN_MAX}")
        if DIAG:
            k(f"s_cselect_b32 s101, {k.uid}, s101")
        k.branch(f"s_cbranch_scc1 {ok}", flush=False)
        check()
        k.branch(f"s_cbranch_scc0 {lp}", flush=False)
        k.flush_hazards()
        k.label(ok, flush=False)
        k.vm, k.lg = vm, lg

    def finish_stats(vsum, vnsq, dst):
        k(f"v_mul_f32 v{dst}, {f2u(-1.0/D)}, {vsum}")
        k(f"v_mul_f32 {vnsq}, {f2u(-1.0/D)}, {vnsq}")
        k(f"v_fma_f32 {vnsq}, -v{dst}, v{dst}, {vnsq}")
        k(f"v_max_f32 {vnsq}, 0, {vnsq}")
        k(f"v_add_f32 {vnsq}, {f2u(EPS)}, {vnsq}")
        k(f"v_rsq_f32 v{dst+1}, {vnsq}")

    def wread(kk, f):
        reg, off = (VL16, kk * 6144) if kk < 10 else (VL16B, (kk - 10) * 6144)
        return f"ds_read_b128 v[{WB+4*f}:{WB+4*f+3}], {reg} offset:{LW+off+f*1024}"

    def xswap(slot):
        a_, b_ = ring(slot), ring(slot + 1)
        k(f"v_swap_b32 v{a_+2}, v{b_}")
        k(f"v_swap_b32 v{a_+3}, v{b_+1}")

    def g1_main(slot0, sched, first=False, xp=False):
        for f in range(6):
            k(wread(0, f))
        if xp:
            xswap(slot0)
        for kk in range(20):
            L = sched.get(kk, [])
            if first and kk == 11:
                k.wait_tag("w9")
                k.barrier()
            nv = sum(1 for x in L if isvm(x))
            done = 0
            for f in range(6):
                for tn in range(2):
                    a = ACC + 8 * f + 4 * tn
                    acc = f"v[{a}:{a+3}]"
                    xr = ring(slot0 + 2 * kk + tn)
                    k(f"v_mfma_f32_16x16x32_bf16 {acc}, v[{WB+4*f}:{WB+4*f+3}], v[{xr}:{xr+3}], {acc if kk else 0}")
                    if tn == 0:
                        while done < nv and done * 6 < (f + 1) * nv - 2:
                            emit_one_vmem(L)
                            done += 1
                        if PREW and not (kk == 19 and f == 5):
                            regs = [f"v{WB+4*((f+1)%6)}"]
                            if f == 5 and not xp:
                                regs += [f"v{ring(slot0+2*kk+2)}", f"v{ring(slot0+2*kk+3)}"]
                            k.need(regs)
                    elif PREW:
                        while L and isinstance(L[0], str) and L[0].startswith("s_add_u32 s10") and done < nv and done * 6 < (f + 2) * nv - 2:
                            emit(L.pop(0))
                if xp and f == 3 and kk < 19:
                    xswap(slot0 + 2 * kk + 2)
                if kk < 19:
                    k(wread(kk + 1, f))
                else:
                    if f == 0:
                        k("v_lshlrev_b32 v255, 4, v3")
                        k(f"v_add_u32 v255, {LC}, v255")
                    k(f"ds_read_b128 v[{WB+4*f}:{WB+4*f+3}], v255 offset:{f*64}")
            for x in L:
                emit(x)

    def g1_epilogue(layer, b, ST, fill=None):
        fill = fill if fill is not None else []
        k(f"s_add_u32 s12, s56, {b*8*HRT + (HSPAN if layer else 0)}")
        O2 = TMP + 20
        for tn in range(2):
            st = ST[tn]
            c1 = TMP + 28
            k(f"v_mul_f32 v{c1}, {f2u(-LOG2E)}, v{st+1}")
            k(f"v_mul_f32 v{c1+1}, v{st+1}, v{st+1}")
            k(f"v_rcp_f32 v{c1+1}, v{c1+1}")
            T = TMP
            for f in range(6):
                a = ACC + 8 * f + 4 * tn
                for i in (0, 2):
                    k(f"v_pk_fma_f32 v[{a+i}:{a+i+1}], v[{WB+4*f+i}:{WB+4*f+i+1}], v[{st}:{st+1}], v[{a+i}:{a+i+1}] op_sel:[0,0,0] op_sel_hi:[1,0,1]")
            for f in range(3):
                g = ACC + 8 * f + 4 * tn
                for i in (0, 2):
                    k(f"v_pk_mul_f32 v[{T+4*f+i}:{T+4*f+i+1}], v[{g+i}:{g+i+1}], v[{c1}:{c1+1}] op_sel:[0,0] op_sel_hi:[1,0]")
            for e in range(12):
                k(f"v_exp_f32 v{T+e}, v{T+e}")
                if e % 4 == 0:
                    emit_one_vmem(fill)
            for f in range(3):
                g = ACC + 8 * f + 4 * tn
                u = g + 24
                for i in (0, 2):
                    k(f"v_pk_mul_f32 v[{g+i}:{g+i+1}], v[{g+i}:{g+i+1}], v[{u+i}:{u+i+1}]")
            for e in range(0, 12, 2):
                k(f"v_pk_fma_f32 v[{T+e}:{T+e+1}], v[{T+e}:{T+e+1}], v[{c1}:{c1+1}], v[{c1}:{c1+1}] op_sel:[0,1,1] op_sel_hi:[1,1,1]")
            for e in range(12):
                k(f"v_rcp_f32 v{T+e}, v{T+e}")
                if e % 4 == 0:
                    emit_one_vmem(fill)
            for f in range(3):
                g = ACC + 8 * f + 4 * tn
                for i in (0, 2):
                    k(f"v_pk_mul_f32 v[{T+4*f+i}:{T+4*f+i+1}], v[{T+4*f+i}:{T+4*f+i+1}], v[{g+i}:{g+i+1}]")
            O = TMP + 12 + 4 * tn
            for p in range(4):
                k(f"v_cvt_pk_bf16_f32 v{O+p}, v{T+2*p}, v{T+2*p+1}")
            for p in range(2):
                k(f"v_cvt_pk_bf16_f32 v{O2+2*tn+p}, v{T+8+2*p}, v{T+9+2*p}")
            if tn:
                k(f"s_add_u32 s13, s12, {HRT}")
            k(f"buffer_store_dwordx4 v[{O}:{O+3}], {VL16}, {srd(SH)}, s{12+tn} offen sc1", tag="hst")
        k(f"v_permlane16_swap_b32 v{O2}, v{O2+2}")
        k(f"v_permlane16_swap_b32 v{O2+1}, v{O2+3}")
        k(f"buffer_store_dwordx4 v[{O2}:{O2+3}], {VH2}, {srd(SH)}, s12 offen offset:1024 sc1", tag="hst")
        for x in fill:
            emit(x)

    def h_flag(layer, b):
        k("s_lshl_b32 s12, s4, 3")
        k("s_add_u32 s12, s12, s3")
        k("s_lshl_b32 s12, s12, 5")
        k("s_add_u32 s12, s12, s5")
        k("s_lshl_b32 s12, s12, 7")
        k(f"s_add_u32 s12, s12, {SY_HF + layer*0x40000 + b*0x4000}")
        k(f"v_mov_b32 v254, {SN}")
        k.wait_tag("hst")
        k(f"buffer_store_dword v254, {VFLAG}, {srd(SSY)}, s12 offen sc1")
        stamp(f"hf{layer}{b}")

    def h_poll_loads(layer, b):
        return [f"s_mov_b32 s13, {SY_HF + layer*0x40000 + b*0x4000}",
                ML(f"buffer_load_dword v{TMP+30}, {VFPOLL}, {srd(SSY)}, s13 offen sc1", 8)]

    def h_poll(layer, b):
        poll(h_poll_loads(layer, b), [f"v{TMP+30}"], None, nl=8, eq=SN)

    TAILK = int(os.environ.get("TAILK", "3"))
    RESF = TMP

    def g2_main(slot0, sched, res, dst):
        def areg(lt, tn):
            if tn == 0 and lt in (0, 1, 4):
                return dst + 4 * (lt if lt < 2 else 2)
            return ACC + 8 * lt + 4 * tn

        def mf(kk, lt, tn):
            a = areg(lt, tn)
            acc = f"v[{a}:{a+3}]"
            hr = ring(slot0 + 2 * kk + tn)
            wr = 4 * (5 * kk + lt)
            k(f"v_mfma_f32_16x16x32_bf16 {acc}, a[{wr}:{wr+3}], v[{hr}:{hr+3}], {acc if kk else 0}")

        for kk in range(12 - TAILK):
            L = sched.get(kk, [])
            nv = sum(1 for x in L if isvm(x))
            done = 0
            idx = 0
            if kk == 5:
                k.barrier()
            for tn in range(2):
                for lt in range(5):
                    mf(kk, lt, tn)
                    idx += 1
                    while done < nv and done * 10 < idx * nv - 5:
                        emit_one_vmem(L)
                        done += 1
            for x in L:
                emit(x)
        L = []
        for kk in range(12 - TAILK, 12):
            L += sched.get(kk, [])
        order = [(0, 1, 0), (1, 1, 1), (2, 0, 2), (3, 0, 3), (2, 1, 4), (3, 1, 5), (4, 1, 7), (4, 0, 6), (0, 0, None), (1, 0, None)]
        pend = []
        fillv = []
        for d in range(6):
            fillv += [f"v_lshlrev_b32 v{RESF+2*d}, 16, v{res+d}", f"v_and_b32 v{RESF+2*d+1}, 0xffff0000, v{res+d}"]
        fillv += [f"v_xor_b32 v{TMP+12+x}, {x << 13}, {VRW}" for x in range(1, 4)]
        for i, (lt, tn, slot) in enumerate(order):
            for kk in range(12 - TAILK, 12):
                mf(kk, lt, tn)
                if i >= 5 and fillv:
                    k(fillv.pop(0))
            if L:
                emit_one_vmem(L)
            if slot is not None:
                a = areg(lt, tn)
                pend.append((i, f"ds_write_b128 {VRW}, v[{a}:{a+3}] offset:{slot*1024}"))
            while pend and pend[0][0] <= i - 2:
                k(pend.pop(0)[1])
        for x in L + fillv:
            emit(x)
        for _, x in pend:
            k(x)

    def g2_reduce(dst, mid=None):
        if mid:
            mid()
        k.wait(lg=0)
        k.barrier()
        n = 0
        for x in range(1, 4):
            for sl_ in (2 * (x - 1), 2 * (x - 1) + 1, 6 + (x & 1)):
                k(f"ds_read_b128 v[{ACC+4*n}:{ACC+4*n+3}], v{TMP+12+x} offset:{sl_*1024}")
                n += 1
        for i in range(0, 12, 2):
            k(f"v_pk_add_f32 v[{dst+i}:{dst+i+1}], v[{dst+i}:{dst+i+1}], v[{RESF+i}:{RESF+i+1}]")
        for x in range(3):
            for i in range(0, 12, 2):
                r = ACC + 12 * x + i
                k(f"v_pk_add_f32 v[{dst+i}:{dst+i+1}], v[{dst+i}:{dst+i+1}], v[{r}:{r+1}]")

    def part_stats(src, b, region, pre_wait=None):
        part_calc(src, TMP + 16)
        part_pub(TMP + 16, b, region, pre_wait)

    def part_calc(src, a):
        q_ = a + 1
        t = TMP + 18
        u = TMP + 4
        k(f"v_pk_add_f32 v[{t}:{t+1}], v[{src+8}:{src+9}], v[{src+10}:{src+11}]")
        k(f"v_pk_mul_f32 v[{t+2}:{t+3}], v[{src+8}:{src+9}], v[{src+8}:{src+9}]")
        k(f"v_pk_fma_f32 v[{t+2}:{t+3}], v[{src+10}:{src+11}], v[{src+10}:{src+11}], v[{t+2}:{t+3}]")
        k(f"v_pk_add_f32 v[{u}:{u+1}], v[{src}:{src+1}], v[{src+2}:{src+3}]")
        k(f"v_pk_mul_f32 v[{t}:{t+1}], v[{t}:{t+1}], s[26:27]")
        k(f"v_pk_mul_f32 v[{t+2}:{t+3}], v[{t+2}:{t+3}], s[26:27]")
        k(f"v_pk_add_f32 v[{u+2}:{u+3}], v[{src+4}:{src+5}], v[{src+6}:{src+7}]")
        for i in range(0, 8, 2):
            k(f"v_pk_fma_f32 v[{t+2}:{t+3}], v[{src+i}:{src+i+1}], v[{src+i}:{src+i+1}], v[{t+2}:{t+3}]")
        k(f"v_pk_add_f32 v[{u}:{u+1}], v[{u}:{u+1}], v[{u+2}:{u+3}]")
        k(f"v_pk_add_f32 v[{t}:{t+1}], v[{t}:{t+1}], v[{u}:{u+1}]")
        k(f"v_add_f32 v{q_}, v{t+2}, v{t+3}")
        k(f"v_add_f32 v{a}, v{t}, v{t+1}")
        k(f"v_permlane16_swap_b32 v{a}, v{q_}")
        k(f"v_add_f32 v{a}, v{a}, v{q_}")
        k(f"v_mov_b32 v{q_}, v{a}")
        k(f"v_permlane32_swap_b32 v{a}, v{q_}")
        k(f"v_add_f32 v{a}, v{a}, v{q_}")
        k(f"v_mov_b32 v{q_}, v{a}")
        k(f"v_permlane16_swap_b32 v{a}, v{q_}")
        k(f"v_or_b32 v{q_}, 0x80000000, v{q_}")

    def part_pub(a, b, region, pre_wait=None):
        k(f"s_add_u32 s12, s23, {region + b*8*2048}") if False else None
        k(f"s_add_u32 s12, s60, {region + b*8*2048}")
        if pre_wait:
            k.wait_tag(pre_wait)
        k(f"buffer_store_dwordx2 v[{a}:{a+1}], {VGW}, {srd(SSY)}, s12 offen sc1")
        stamp(f"pub{2 if region == SY_ST2 else 3}{b}")

    def st2_loads(b, dst):
        return ["s_lshl_b32 s13, s16, 11", f"s_add_u32 s13, s13, {SY_ST2 + b*8*2048}"] + [
            f"buffer_load_dwordx2 v[{dst+2*i}:{dst+2*i+1}], {VGR}, {srd(SSY)}, s13 offen offset:{i*128} sc1"
            for i in range(4)]

    def st3_loads(b, dst):
        return ["s_lshl_b32 s13, s15, 11", f"s_add_u32 s13, s13, {SY_ST3 + b*8*2048}"] + [
            f"buffer_load_dwordx2 v[{dst+8*tn+2*i}:{dst+8*tn+2*i+1}], {VGR}, {srd(SSY)}, s13 offen offset:{tn*2048+i*128} sc1"
            for tn in range(2) for i in range(4)]

    def st1_loads(b, dst):
        return ["s_lshl_b32 s13, s15, 9", f"s_add_u32 s13, s13, {SY_ST1 + b*8*512}"] + [
            f"buffer_load_dwordx2 v[{dst+2*tn}:{dst+2*tn+1}], {VQ128}, {srd(SSY)}, s13 offen offset:{tn*512} sc1"
            for tn in range(2)]

    def sum_granules(g, n, tmp):
        for i in range(1, n):
            k(f"v_pk_add_f32 v[{g}:{g+1}], v[{g}:{g+1}], v[{g+2*i}:{g+2*i+1}]")
        for v in (g, g + 1):
            xsum16(k, f"v{v}", tmp)
            xsum32(k, f"v{v}", tmp)

    def finalize(b, x2, G):
        poll(st2_loads(b, G), [f"v{G+1}", f"v{G+3}", f"v{G+5}", f"v{G+7}"], f"v{TMP+20}")
        stamp(f"p2{b}")
        sum_granules(G, 4, f"v{TMP+20}")
        sp = TMP + 22
        finish_stats(f"v{G}", f"v{G+1}", sp)
        k(f"v_mul_f32 v{sp}, v{sp}, v{sp+1}")
        for d in range(6):
            unpack(k, f"v{TMP}", f"v{TMP+1}", f"v{YR[b]+d}")
            k(f"v_pk_fma_f32 v[{TMP+2}:{TMP+3}], v[{x2+2*d}:{x2+2*d+1}], v[{sp}:{sp+1}], v[{sp}:{sp+1}] op_sel:[0,1,0] op_sel_hi:[1,1,0]")
            k(f"v_pk_fma_f32 v[{x2+2*d}:{x2+2*d+1}], v[{TMP+2}:{TMP+3}], v[{TMP}:{TMP+1}], v[{x2+2*d}:{x2+2*d+1}]")
            k(f"v_cvt_pk_bf16_f32 v{X1R[b]+d}, v{x2+2*d}, v{x2+2*d+1}")
        k(f"s_add_u32 s13, s59, {XSPAN + b*8*XRT}")
        k("s_lshl_b32 s12, s14, 10")
        k("s_add_u32 s12, s12, s13")
        k(f"buffer_store_dwordx4 v[{X1R[b]}:{X1R[b]+3}], {VL16}, {srd(SX)}, s12 offen sc1", tag="xst")
        k(f"buffer_store_dwordx2 v[{X1R[b]+4}:{X1R[b]+5}], {VT4S}, {srd(SX)}, s13 offen offset:2048 sc1", tag="xst")
        for d in range(6):
            unpack(k, f"v{x2+2*d}", f"v{x2+2*d+1}", f"v{X1R[b]+d}")

    def stats1(b, STx):
        poll(st1_loads(b, TMP + 24), [f"v{TMP+25}", f"v{TMP+27}"], f"v{TMP+20}")
        for tn in range(2):
            sum_granules(TMP + 24 + 2 * tn, 1, f"v{TMP+20}")
            finish_stats(f"v{TMP+24+2*tn}", f"v{TMP+25+2*tn}", STx[tn])

    def stats3(b, STx):
        poll(st3_loads(b, TMP), [f"v{TMP+1+2*i}" for i in range(8)], f"v{TMP+20}")
        for tn in range(2):
            sum_granules(TMP + 8 * tn, 4, f"v{TMP+20}")
            finish_stats(f"v{TMP+8*tn}", f"v{TMP+8*tn+1}", STx[tn])

    def res_loads(b):
        L = [f"s_add_u32 s13, s62, {b*4*XBLK}", "s_lshl_b32 s12, s14, 11", "s_add_u32 s12, s12, s13",
             "s_add_u32 s13, s13, 4096"]
        for R, sr in ((X1R[b], SX), (YR[b], SY_)):
            L += [f"buffer_load_dwordx2 v[{R}:{R+1}], {VXP}, {srd(sr)}, s12 offen sc1",
                  f"buffer_load_dwordx2 v[{R+2}:{R+3}], {VXP}, {srd(sr)}, s12 offen offset:256 sc1",
                  f"buffer_load_dwordx2 v[{R+4}:{R+5}], {VL16}, {srd(sr)}, s13 offen sc1"]
        return L

    def out_store(b, src):
        for d in range(6):
            k(f"v_cvt_pk_bf16_f32 v{TMP+d}, v{src+2*d}, v{src+2*d+1}")
        k(f"v_mul_u32_u24 v{TMP+8}, 1280, {VROW}")
        k("s_mul_i32 s12, s8, 160")
        k(f"s_add_u32 s12, s12, {b*128*1280}")
        k("s_lshl_b32 s13, s14, 6")
        k("s_add_u32 s13, s13, s12")
        k(f"v_lshl_add_u32 v{TMP+9}, v3, 4, v{TMP+8}")
        k(f"v_lshl_add_u32 v{TMP+10}, v3, 3, v{TMP+8}")
        k("s_lshl_b32 s10, s14, 31")
        k(f"v_or_b32 v{TMP+10}, s10, v{TMP+10}")
        k(f"buffer_store_dwordx4 v[{TMP}:{TMP+3}], v{TMP+9}, {srd(SO)}, s13 offen")
        k(f"buffer_store_dwordx2 v[{TMP+4}:{TMP+5}], v{TMP+10}, {srd(SO)}, s12 offen offset:128")

    def g1b_sched(layer, extra):
        sched = {}
        hl = [h_loads(layer, 0, kk, 80 + 2 * kk) for kk in range(12)]
        for kk in range(20):
            L = []
            if kk + DIST < 20:
                L += x_loads(layer, 1, kk + DIST, 40 + 2 * (kk + DIST))
            L += extra.get(kk, [])
            if kk == 3:
                L += [lambda: h_flag(layer, 0)]
            if kk == 7:
                L += h_poll_loads(layer, 0)
            if kk == 12:
                L = [lambda: h_poll(layer, 0)] + h_pf(layer, 0) + L
            if kk >= 14:
                while hl and (12 - len(hl)) + 8 < kk and len([x for x in L if isvm(x)]) < 6:
                    L += hl.pop(0)
            sched[kk] = L
        return sched, hl


    k.prof_begin()
    k(f"s_cmp_ge_u32 s2, {k.grid}")
    k.branch("s_cbranch_scc1 main_end", flush=False)
    k("s_load_dwordx2 s[24:25], s[0:1], 96")
    k("s_load_dwordx2 s[26:27], s[0:1], 0")
    if DIAG:
        k("s_mov_b32 s101, 0")
    k("s_getpc_b64 s[60:61]")
    k.raw("mega_pc:")
    k(f"s_sub_u32 s60, s60, mega_pc-{KNAME}")
    k("s_subb_u32 s61, s61, 0")
    k(f"s_mov_b32 s62, main_code_end-{KNAME}")
    k("s_mov_b32 s63, 0x00020000")
    k("s_lshr_b32 s10, s2, 3")
    k("s_lshl_b32 s10, s10, 11")
    k("v_lshrrev_b32 v2, 4, v0")
    k("v_lshlrev_b32 v1, 7, v0")
    k("v_lshl_or_b32 v1, v2, 24, v1")
    k("buffer_load_dword v255, v1, s[60:63], s10 offen")
    in_srd(k, SDBG, 88, 256)
    k("v_lshrrev_b32 v1, 6, v0")
    k("v_readfirstlane_b32 s3, v1")
    k("v_and_b32 v1, 63, v0")
    k("v_and_b32 v2, 15, v0")
    k("v_bfe_u32 v3, v0, 4, 2")
    k(f"v_lshlrev_b32 {VL16}, 4, v1")
    def ffn_ids():
        if MAP == 1:
            k("s_and_b32 s4, s2, 7")
            k("s_lshr_b32 s5, s2, 3")
            k("s_lshr_b32 s7, s5, 3")
            k("s_and_b32 s8, s5, 7")
        elif MAP == 4:
            k("s_and_b32 s4, s2, 4")
            k("s_lshr_b32 s10, s2, 6")
            k("s_add_u32 s4, s4, s10")
            k("s_bfe_u32 s5, s2, 0x30003")
            k("s_and_b32 s10, s2, 3")
            k("s_lshl_b32 s10, s10, 3")
            k("s_add_u32 s5, s5, s10")
            k("s_and_b32 s7, s5, 3")
            k("s_lshr_b32 s8, s5, 2")
        else:
            k("s_and_b32 s4, s2, 6")
            k("s_lshr_b32 s10, s2, 7")
            k("s_add_u32 s4, s4, s10")
            k("s_bfe_u32 s5, s2, 0x40003")
            k("s_and_b32 s10, s2, 1")
            k("s_lshl_b32 s10, s10, 4")
            k("s_add_u32 s5, s5, s10")
            k("s_and_b32 s7, s5, 3")
            k("s_lshr_b32 s8, s5, 2")
        k("s_and_b32 s9, s3, 1")
        k("s_lshr_b32 s14, s3, 1")
        k("s_lshl_b32 s6, s4, 4")
        k("s_lshl_b32 s10, s3, 1")
        k("s_add_u32 s15, s6, s10")
        k("s_lshl_b32 s10, s7, 1")
        k("s_add_u32 s16, s6, s10")
        k("s_add_u32 s16, s16, s9")
        k(f"s_mul_i32 s17, s15, {XRT}")
        k("s_mul_i32 s18, s3, 3072")
        k(f"s_mul_i32 s19, s5, {WGU_M}")
        k("s_add_u32 s19, s19, s18")
        k("s_lshl_b32 s10, s8, 2")
        k("s_add_u32 s10, s10, s3")
        k("s_mul_i32 s10, s10, 61440")
        k("s_lshl_b32 s11, s14, 11")
        k("s_add_u32 s20, s10, s11")
        k("s_xor_b32 s11, s11, 2048")
        k("s_add_u32 s21, s10, s11")
        k("s_add_u32 s22, s10, 4096")
        k.srd(SWS, 24, WSB)
        k.srd(SW, 24, WGUB, WS_WGU)
        k.srd(SWD, 24, WDB, WS_WD)
        k.srd(SSY, 24, SYNCB, WS_SYNC)


    def wpoll_setup(va):
        k(f"v_lshrrev_b32 {va}, 1, v1")
        k(f"v_lshlrev_b32 {va}, 4, {va}")
        k("v_and_b32 v9, 1, v1")
        k("s_lshr_b32 s10, s5, 2")
        k("s_lshl_b32 s10, s10, 1")
        k(f"v_add3_u32 {va}, {va}, v9, s10")
        k("s_lshl_b32 s10, s3, 3")
        k("s_add_u32 s10, s10, 56")
        k("v_add_u32 v9, s10, v1")
        k("v_cmp_gt_u32 vcc, 8, v1")
        k(f"v_cndmask_b32 {va}, v9, {va}, vcc")
        k(f"v_lshlrev_b32 {va}, 7, {va}")
        k(f"v_add_u32 {va}, {SY_PF}, {va}")
        return [ML(f"buffer_load_dword v13, {va}, {srd(SSY)}, 0 offen sc1", 16)]

    k(f"s_cmp_lt_u32 s2, {NPREP}")
    k.branch("s_cbranch_scc1 main_prep", flush=False)
    saved0 = (list(k.vm), list(k.lg))
    in_srd(k, SA, 8, S * D * 2)
    in_srd(k, SB, 16, S * D * 2)
    in_srd(k, SW, 24, D * 8)
    in_srd(k, SWD, 32, 4096)
    in_srd(k, SSY, 40, D * 2)
    k(f"s_sub_u32 s56, s2, {NPREP}")
    k("s_lshr_b32 s57, s56, 4")
    k("s_and_b32 s58, s56, 15")
    k("s_lshl_b32 s59, s56, 2")
    k("s_add_u32 s60, s59, s3")
    k(f"s_mul_i32 s61, s3, {WREG}")
    k(f"s_add_u32 s61, s61, {CB}")
    k("v_lshrrev_b32 v4, 3, v1")
    k("v_and_b32 v5, 7, v1")
    k("s_lshl_b32 s10, s58, 7")
    k("s_lshl_b32 s11, s3, 5")
    k("s_add_u32 s10, s10, s11")
    k("v_lshlrev_b32 v6, 2, v4")
    k("v_add_u32 v6, s10, v6")
    k("v_mul_u32_u24 v7, 1280, v6")
    k("v_lshl_add_u32 v7, v5, 4, v7")
    k("s_lshl_b32 s12, s57, 7")
    k("v_add_u32 v7, s12, v7")
    KR, VR, WR = 16, 44, 60
    for j in (3, 4, 5, 6, 2, 1, 0):
        off = (j - 3) * 1280
        if off < 0:
            k(f"v_add_u32 v8, {off & 0xffffffff:#x}, v7")
            k(f"buffer_load_dwordx4 v[{KR+4*j}:{KR+4*j+3}], v8, {srd(SA)}, 0 offen")
        else:
            k(f"buffer_load_dwordx4 v[{KR+4*j}:{KR+4*j+3}], v7, {srd(SA)}, 0 offen offset:{off}")
    for i in range(4):
        k(f"buffer_load_dwordx4 v[{VR+4*i}:{VR+4*i+3}], v7, {srd(SB)}, 0 offen offset:{i*1280}")
    k("v_lshlrev_b32 v9, 6, v5")
    k("s_lshl_b32 s12, s57, 9")
    for i in range(4):
        k(f"buffer_load_dwordx4 v[{WR+4*i}:{WR+4*i+3}], v9, {srd(SW)}, s12 offen offset:{16*i}")
    k("s_lshl_b32 s12, s60, 12")
    k(f"s_add_u32 s{SWD}, s{SWD}, s12")
    k(f"s_addc_u32 s{SWD+1}, s{SWD+1}, 0")
    k.srd(SWS, 26, S * D * 2)
    k("s_cmp_lt_u32 s56, 128")
    k("s_cselect_b32 s63, 0, 0x40000000")
    k(f"s_mul_i32 s62, s56, {XRT}")
    k("s_add_u32 s62, s62, s63")
    stamp("issued")
    k("s_lshl_b32 s10, s3, 6")
    k("s_sub_u32 s10, 248, s10")
    k("v_lshlrev_b32 v8, 3, v4")
    k("v_sub_u32 v8, s10, v8")
    k("v_lshlrev_b32 v9, 4, v5")
    k("v_xor_b32 v8, v8, v9")
    k("v_lshl_add_u32 v8, v5, 11, v8")
    WF = 80
    for c in range(8):
        unpack(k, f"v{WF+4*c}", f"v{WF+4*c+1}", f"v{WR+2*c}")
        unpack(k, f"v{WF+4*c+2}", f"v{WF+4*c+3}", f"v{WR+2*c+1}")
    k.wait(vm=0)
    stamp("Tld")
    k("v_mov_b32 v12, 0")
    zl0 = [ML(f"buffer_load_dword v13, v12, {srd(SDBG)}, 0 offen sc1", 1)]
    emit(zl0[0])
    k.srd(SA, 24, WSB)
    KF, VF, OUT = 112, 128, 136
    for cp in range(4):
        for j in range(7):
            unpack(k, f"v{KF+2*j}", f"v{KF+2*j+1}", f"v{KR+4*j+cp}")
        for i in range(4):
            unpack(k, f"v{VF+2*i}", f"v{VF+2*i+1}", f"v{VR+4*i+cp}")
        for h in range(2):
            c = 2 * cp + h
            O = OUT + 4 * h
            for i in range(4):
                k(f"v_mul_f32 v{O+i}, v{KF+2*(i+0)+h}, v{WF+4*c+3}")
            for t in (2, 1, 0):
                for i in range(4):
                    k(f"v_fmac_f32 v{O+i}, v{KF+2*(i+3-t)+h}, v{WF+4*c+t}")
            for i in range(4):
                k(f"v_mul_f32 v{O+i}, v{O+i}, v{VF+2*i+h}")
            p = 144 + 2 * h
            k(f"v_cvt_pk_bf16_f32 v{p}, v{O+3}, v{O+2}")
            k(f"v_cvt_pk_bf16_f32 v{p+1}, v{O+1}, v{O+0}")
            k(f"ds_write_b64 v8, v[{p}:{p+1}] offset:{c*256}")
    k("s_lshl_b32 s10, s3, 12")
    k("v_lshlrev_b32 v8, 8, v3")
    k("v_add_u32 v8, s10, v8")
    k("s_lshl_b32 s11, s3, 1")
    for jj in range(2):
        k(f"s_add_u32 s12, s11, {jj}")
        k(f"v_xor_b32 v{14+jj}, s12, v2")
        k(f"v_lshl_add_u32 v{14+jj}, v{14+jj}, 4, v8")
    k("v_lshlrev_b32 v9, 12, v3")
    k("v_lshl_add_u32 v9, v2, 4, v9")
    k("s_lshl_b32 s10, s57, 6")
    k("s_lshl_b32 s11, s3, 4")
    k("s_add_u32 s10, s10, s11")
    k("s_lshl_b32 s10, s10, 12")
    k("s_lshl_b32 s11, s58, 8")
    k("s_sub_u32 s11, 3840, s11")
    k("s_add_u32 s10, s10, s11")
    k.wait(lg=0)
    k.barrier()
    stamp("kv")
    for j in range(4):
        k(f"ds_read_b128 v[{16+4*j}:{19+4*j}], v{14+(j>>1)} offset:{j*1024}")
    for j in range(4):
        k(f"buffer_store_dwordx4 v[{16+4*j}:{19+4*j}], v9, {srd(SA)}, s10 offen sc1", tag="kvst")
        k("s_add_u32 s10, s10, 16384")
    HB = 160
    for p in range(4):
        k(f"buffer_load_dwordx4 v[{HB+8*p+4}:{HB+8*p+7}], {VL16}, {srd(SWD)}, 0 offen offset:{p*1024}")
        k(f"v_add_u32 v9, {(p*1024-8) & 0xffffffff:#x}, {VL16}")
        k(f"buffer_load_dwordx2 v[{HB+8*p+2}:{HB+8*p+3}], v9, {srd(SWD)}, 0 offen")
    k("s_lshl_b32 s12, s60, 1")
    k("v_mov_b32 v9, s12")
    k(f"buffer_load_ushort v11, v9, {srd(SSY)}, 0 offen")
    k("s_mul_i32 s12, s3, 320")
    k("s_add_u32 s12, s12, s62")
    k("v_mul_u32_u24 v9, 1280, v2")
    k("v_lshl_add_u32 v9, v3, 4, v9")
    QR = 192
    for i in range(5):
        k(f"buffer_load_dwordx4 v[{QR+4*i}:{QR+4*i+3}], v9, {srd(SWS)}, s12 offen offset:{64*i}")
    ffn_ids()
    k("v_mov_b32 v32, 0")
    k("v_mov_b32 v33, 0")
    k("v_lshlrev_b32 v8, 3, v1")
    k("v_add_u32 v8, s61, v8")
    k(f"ds_write_b64 v8, v[32:33] offset:{UOFF+4096}")
    k("v_bfe_u32 v8, v1, 2, 2")
    k(f"v_mul_u32_u24 v8, {CP}, v8")
    k("v_and_b32 v9, 3, v1")
    k("v_lshl_add_u32 v8, v9, 3, v8")
    k("v_add_u32 v8, s61, v8")
    k("ds_write_b64 v8, v[32:33]")
    k(f"v_add_u32 v8, s61, {VL16}")

    def copies(p):
        T = 48 + 12 * (p & 1)
        b = HB + 8 * p
        seq = [f"v{b+2+i}" for i in range(6)]
        off = 32 + p * 1024
        k(f"ds_write_b128 v8, v[{b+4}:{b+7}] offset:{off}")
        for j in range(4):
            k(f"v_alignbyte_b32 v{T+j}, {seq[2+j]}, {seq[1+j]}, 2")
        k(f"ds_write_b128 v8, v[{T}:{T+3}] offset:{off+CP}")
        for j in range(4):
            k(f"v_mov_b32 v{T+4+j}, {seq[1+j]}")
        k(f"ds_write_b128 v8, v[{T+4}:{T+7}] offset:{off+2*CP}")
        for j in range(4):
            k(f"v_alignbyte_b32 v{T+8+j}, {seq[1+j]}, {seq[j]}, 2")
        k(f"ds_write_b128 v8, v[{T+8}:{T+11}] offset:{off+3*CP}")

    poll(zl0, ["v13"], None, sleep=8, nl=1)
    k(f"v_readfirstlane_b32 {SN}, v13")
    k("v_cmp_eq_u32 vcc, 0, v1")
    k(f"v_mov_b32 v14, {OOB:#x}")
    k("v_cndmask_b32 v14, v14, v1, vcc")
    k("s_lshl_b32 s10, s56, 2")
    k("s_add_u32 s10, s10, s3")
    k("s_lshl_b32 s10, s10, 7")
    k(f"s_add_u32 s10, s10, {WS_SYNC + SY_GF}")
    k(f"v_mov_b32 v15, {SN}")
    k.wait_tag("kvst")
    k(f"buffer_store_dword v15, v14, {srd(SWS)}, s10 offen sc1")
    stamp("gf")
    for p in range(4):
        copies(p)
    k("s_mul_i32 s12, s3, 5120")
    k("s_add_u32 s12, s12, s62")
    k(f"s_add_u32 s12, s12, {WS_QX}")
    k("s_add_u32 s13, s12, 4096")
    k("v_mov_b32 v212, 0x3f803f80")
    k("v_mov_b32 v214, 0")
    k("v_mov_b32 v215, 0")
    for i in range(5):
        k(f"buffer_store_dwordx4 v[{QR+4*i}:{QR+4*i+3}], {VL16}, {srd(SWS)}, s{12 if i < 4 else 13} offen offset:{(i%4)*1024} sc1")
        for d in range(4):
            k(f"v_dot2c_f32_bf16 v214, v{QR+4*i+d}, v212")
            k(f"v_dot2c_f32_bf16 v215, v{QR+4*i+d}, v{QR+4*i+d}")
    for v in ("v214", "v215"):
        xsum16(k, v, "v213")
        xsum32(k, v, "v213")
    k("v_lshlrev_b32 v213, 3, v2")
    k("s_lshl_b32 s12, s3, 7")
    k("v_add_u32 v224, 73728, v213")
    k("v_add_u32 v216, s12, v224")
    k("ds_write_b64 v216, v[214:215]")
    k.wait(lg=0)
    k.barrier()
    for w in range(4):
        k(f"ds_read_b64 v[{216+2*w}:{217+2*w}], v224 offset:{w*128}")
    k("v_pk_add_f32 v[216:217], v[216:217], v[218:219]")
    k("v_pk_add_f32 v[220:221], v[220:221], v[222:223]")
    k("v_pk_add_f32 v[216:217], v[216:217], v[220:221]")
    k(f"v_mul_f32 v216, {f2u(1.0/D)}, v216")
    k(f"v_mul_f32 v217, {f2u(1.0/D)}, v217")
    k("v_fma_f32 v217, -v216, v216, v217")
    k("v_max_f32 v217, 0, v217")
    k(f"v_add_f32 v217, {f2u(EPS)}, v217")
    k("v_rsq_f32 v219, v217")
    k("v_mul_f32 v218, v216, v219")
    k("s_lshl_b32 s12, s56, 7")
    k("s_add_u32 s12, s12, s63")
    k(f"s_add_u32 s12, s12, {WS_QST}")
    k("s_cmp_eq_u32 s3, 0")
    k("s_cselect_b32 s12, s12, 0x40000000")
    ML(f"buffer_store_dwordx2 v[218:219], v213, {srd(SWS)}, s12 offen sc1", 16)()
    k("v_sub_u32 v7, 3, v2")
    k("v_and_b32 v7, 3, v7")
    k("v_add3_u32 v8, v2, v7, 1")
    k("v_lshl_add_u32 v8, v3, 3, v8")
    k("v_lshlrev_b32 v8, 1, v8")
    k(f"v_mul_u32_u24 v7, {CP}, v7")
    k("v_add3_u32 v4, v7, v8, s61")
    k("v_lshlrev_b32 v7, 5, v2")
    k("v_lshlrev_b32 v8, 4, v3")
    k("v_sub_u32 v8, v8, v7")
    k(f"v_add_u32 v8, {UOFF+480}, v8")
    k("v_add_u32 v5, s61, v8")
    k("v_lshlrev_b32 v11, 16, v11")
    k("v_lshlrev_b32 v6, 7, v1")
    k("s_lshl_b32 s12, s57, 13")
    k(f"s_add_u32 s12, s12, {WS_SYNC + SY_GF}")
    gl = [f"buffer_load_dword v13, v6, {srd(SWS)}, s12 offen sc1"]
    k(gl[0])
    poll(gl, ["v13"], None, sleep=2, eq=SN)
    stamp("gp")
    k(f"s_add_u32 m0, s61, {UOFF}")
    k("s_lshl_b32 s12, s60, 12")
    for p in (3, 2, 1, 0):
        k(f"buffer_load_dwordx4 {VL16}, {srd(SWS)}, s12 offen offset:{p*1024} sc1 lds", tag="u")
    k("s_lshl_b32 s12, s60, 7")
    k("s_add_u32 s12, s12, s63")
    k(f"s_add_u32 s12, s12, {SY_QF}")
    k(f"buffer_store_dword v15, v14, {srd(SSY)}, s12 offen sc1")
    AB = [16, 48]
    CACC = 80
    BR = 112

    def rdA(n):
        I = n if n < 8 else n - 8
        L = []
        for r in range(8):
            i = 8 * I + r
            b = AB[n & 1] + 4 * r
            L.append(f"ds_read_b64 v[{b}:{b+1}], v4 offset:{64*i}")
            L.append(f"ds_read_b64 v[{b+2}:{b+3}], v4 offset:{64*i+8}")
        return L

    def bslot(C):
        return C if C < 4 else 7 - C

    def rdB(C):
        return [f"ds_read_b128 v[{BR+32*bslot(C)+4*r}:{BR+32*bslot(C)+4*r+3}], v5 offset:{64*(56-(8*C-r))}" for r in range(8)]

    k.wait(lg=0)
    k.wait_tag("u")
    stamp("ready")
    a0, b0 = rdA(0), rdB(0)
    for r in range(8):
        k(a0[2 * r]); k(a0[2 * r + 1]); k(b0[r])
    started = set()
    early = []
    tot = 0
    SBQ = 240
    k("s_lshl_b32 s10, s3, 12")
    k("v_lshlrev_b32 v6, 3, v1")
    k("v_add_u32 v6, s10, v6")
    qsl = [f"s_mov_b32 s13, {WS_QST}"] + [
        f"buffer_load_dwordx2 v[{SBQ+2*it}:{SBQ+2*it+1}], v6, {srd(SWS)}, s13 offen offset:{it*512} sc1" for it in range(8)]
    k(f"v_mul_u32_u24 v7, {XRT}, v3")
    k("v_lshl_add_u32 v7, v2, 4, v7")
    k(f"s_mul_i32 s57, s3, {32*XRT}")
    k("s_lshr_b32 s10, s56, 1")
    k("s_lshl_b32 s10, s10, 8")
    k("s_add_u32 s57, s57, s10")
    k("s_and_b32 s10, s56, 1")
    k("s_lshl_b32 s10, s10, 3")
    k("s_add_u32 s57, s57, s10")
    pcl = wpoll_setup("v12")
    k("s_lshl_b32 s10, s3, 14")
    k(f"s_add_u32 s62, s10, {SY_QF}")
    k("s_add_u32 s63, s62, 8192")
    k("v_lshlrev_b32 v8, 7, v1")
    qfl = [f"buffer_load_dword v9, v8, {srd(SSY)}, s62 offen sc1"]
    qfl2 = [f"buffer_load_dword v0, v8, {srd(SSY)}, s63 offen sc1"]
    wl = []
    for p in range(6):
        wl += wgu_dma(p)
    for i in range(NE1):
        wl += wd_load(i)
    QB = BR
    qxl = []
    for it in range(8):
        qxl += [f"s_add_u32 s12, s57, {WS_QX + it*4*XRT}",
                f"buffer_load_dwordx2 v[{QB+2*it}:{QB+2*it+1}], v7, {srd(SWS)}, s12 offen sc1"]
    for n in range(12):
        I = n if n < 8 else n - 8
        Cs = [C for C in (range(4) if n < 8 else range(4, 8)) if C + I <= 7]
        pend = rdA(n + 1) if n < 11 else []
        bpend = {5: rdB(4), 6: rdB(5), 7: rdB(6), 8: rdB(7)}.get(n) or []
        nm = 8 * len(Cs)
        cnt = 0
        if n == PPN - 1:
            emit(pcl[0])
        if n == PPN:
            poll(pcl, ["v13"], None, sleep=4, nl=16, eq=SN)
            stamp("pp")
        if n == 5:
            early = qfl + qfl2
        if n == 8:
            poll(qfl, ["v9"], None, sleep=4, eq=SN)
            poll(qfl2, ["v0"], None, sleep=4, eq=SN)
            early = list(qsl)
        if n == 9:
            early = early + qxl
        for C in Cs:
            c = C + I
            nb = rdB(C + 1) if (n == 0 and C < 3) else []
            for r in range(8):
                if nb:
                    k(nb.pop(0))
                a = AB[n & 1] + 4 * r
                b = BR + 32 * bslot(C) + 4 * r
                acc = f"v[{CACC+4*c}:{CACC+4*c+3}]"
                src = acc if c in started else "0"
                started.add(c)
                k(f"v_mfma_f32_16x16x32_bf16 {acc}, v[{a}:{a+3}], v[{b}:{b+3}], {src}")
                cnt += 1
                tot += 1
                while pend and (16 - len(pend)) * max(nm - 4, 4) < cnt * 16:
                    k(pend.pop(0))
                if bpend and cnt % 2 == 0:
                    k(bpend.pop(0))
                if early:
                    if tot % 2 == 0:
                        emit_one_vmem(early)
                elif n >= PPN and tot % EVERY == 0 and tot <= LASTW:
                    emit_one_vmem(wl)
        for x in pend + bpend:
            k(x)
    stamp("mfma")
    for x in early:
        emit(x)
    k("v_lshlrev_b32 v8, 5, v2")
    k("v_lshl_add_u32 v8, v3, 3, v8")
    k(f"v_sub_u32 v9, {UOFF+504}, v8")
    k("v_add_u32 v9, s61, v9")
    k("v_add_u32 v8, s61, v8")
    KV = 16
    for c in range(8):
        k(f"ds_read_b64 v[{KV+2*c}:{KV+2*c+1}], v9 offset:{(7-c)*512}")
    for c in range(8):
        a = CACC + 4 * c
        unpack(k, "v40", "v41", f"v{KV+2*c}")
        unpack(k, "v42", "v43", f"v{KV+2*c+1}")
        k(f"v_fmac_f32 v{a+3}, v40, v11")
        k(f"v_fmac_f32 v{a+2}, v41, v11")
        k(f"v_fmac_f32 v{a+1}, v42, v11")
        k(f"v_fmac_f32 v{a+0}, v43, v11")
        o = 44 + 2 * (c & 1)
        k(f"v_cvt_pk_bf16_f32 v{o}, v{a}, v{a+1}")
        k(f"v_cvt_pk_bf16_f32 v{o+1}, v{a+2}, v{a+3}")
        k(f"ds_write_b64 v8, v[{o}:{o+1}] offset:{c*512}")
    k("v_bfe_u32 v8, v1, 2, 2")
    k(f"v_mul_u32_u24 v8, {WREG}, v8")
    k("v_and_b32 v9, 3, v1")
    k("v_lshl_add_u32 v8, v9, 3, v8")
    k("v_lshl_add_u32 v8, v3, 5, v8")
    k("s_lshl_b32 s10, s3, 10")
    k(f"s_add_u32 s10, s10, {CB}")
    k("v_add_u32 v8, s10, v8")
    k("v_and_b32 v9, 1, v3")
    k("v_lshrrev_b32 v7, 1, v3")
    k("v_lshl_add_u32 v7, v9, 1, v7")
    k(f"v_mul_u32_u24 v7, {XBLK}, v7")
    k("v_lshl_add_u32 v7, v2, 4, v7")
    k(f"s_mul_i32 s57, s3, {16*XBLK}")
    k("s_lshl_b32 s13, s56, 8")
    k("s_add_u32 s57, s57, s13")
    k.wait(lg=0)
    k.barrier()
    YB = 64
    for it in range(8):
        k(f"ds_read_b64_tr_b16 v[{YB+2*it}:{YB+2*it+1}], v8 offset:{it*128}")
    XB_ = 144
    for it in range(8):
        y0, q0, st = YB + 2 * it, QB + 2 * it, SBQ + 2 * it
        for d in range(2):
            unpack(k, "v16", "v17", f"v{y0+d}")
            unpack(k, "v18", "v19", f"v{q0+d}")
            k(f"v_pk_fma_f32 v[20:21], v[18:19], v[{st}:{st+1}], v[{st}:{st+1}] op_sel:[0,1,0] op_sel_hi:[1,1,0] neg_lo:[0,0,1] neg_hi:[0,0,1]")
            k("v_pk_fma_f32 v[18:19], v[20:21], v[16:17], v[18:19]")
            k(f"v_cvt_pk_bf16_f32 v{XB_+2*it+d}, v18, v19")
        if it & 1:
            o = XB_ + 2 * (it - 1)
            k(f"v_permlane16_swap_b32 v{o}, v{o+2}")
            k(f"v_permlane16_swap_b32 v{o+1}, v{o+3}")
            k(f"s_add_u32 s12, s57, {WS_X1 + (it-1)*2*XBLK}")
            k(f"buffer_store_dwordx4 v[{o}:{o+3}], v7, {srd(SWS)}, s12 offen sc1", tag="cst")
    for it in range(0, 8, 2):
        o = YB + 2 * it
        k(f"v_permlane16_swap_b32 v{o}, v{o+2}")
        k(f"v_permlane16_swap_b32 v{o+1}, v{o+3}")
        k(f"s_add_u32 s12, s57, {WS_Y + it*2*XBLK}")
        k(f"buffer_store_dwordx4 v[{o}:{o+3}], v7, {srd(SWS)}, s12 offen sc1", tag="cst")
    stamp("cst")
    k("s_mul_i32 s12, s3, 160")
    k("s_add_u32 s12, s12, s56")
    k("s_lshl_b32 s12, s12, 7")
    k(f"s_add_u32 s12, s12, {SY_CF}")
    for _ in range(NB):
        emit_one_vmem(wl)
    k.wait_tag("cst")
    k(f"buffer_store_dword v15, v14, {srd(SSY)}, s12 offen sc1")
    stamp("cf")
    print("weight loads after cf:", sum(1 for x in wl if isvm(x)))
    for x in wl:
        emit(x)
    k.wait(lg=0)
    k.flush_hazards()
    k.branch("s_branch main_join", flush=False)

    k.label("main_prep", flush=False)
    k.vm, k.lg = list(saved0[0]), list(saved0[1])
    k("s_or_b32 s10, s2, s3")
    k("s_cmp_lg_u32 s10, 0")
    k.branch("s_cbranch_scc1 main_nonce_done", flush=False)
    k("s_memrealtime s[56:57]")
    k("s_or_b32 s56, s56, 1")
    k("v_mov_b32 v13, s56")
    k("v_mov_b32 v11, 0")
    ML(f"buffer_store_dword v13, v11, {srd(SDBG)}, 0 offen sc1", 1)()
    k.label("main_nonce_done", flush=False)
    k.vm, k.lg = list(saved0[0]), list(saved0[1])
    k("s_and_b32 s10, s2, 1")
    k("s_lshl_b32 s10, s10, 3")
    k("s_add_u32 s10, s10, 56")
    k("s_cmp_lt_u32 s2, 64")
    k("s_cselect_b32 s10, s10, 72")
    k(f"s_load_dwordx2 s[{SA}:{SA+1}], s[0:1], s10")
    k(f"s_mov_b32 s{SA+2}, {D*F*2}")
    k(f"s_mov_b32 s{SA+3}, 0x00020000")
    k(f"v_mov_b32 v14, {OOB:#x}")
    k("s_mov_b32 s58, 0x05040100")
    k("s_mov_b32 s59, 0x07060302")
    k("v_mov_b32 v12, 0x3f803f80")
    ffn_ids()
    k("v_mov_b32 v244, 0")
    zl = [ML(f"buffer_load_dword v245, v244, {srd(SDBG)}, 0 offen sc1", 1)]

    def q_job():
        emit(zl[0])
        for i in range(4):
            k(f"v_mov_b32 v{240+i}, 0")
        k.srd(SB, 24, SY_HF, WS_SYNC)
        k("s_lshl_b32 s12, s2, 13")
        k("v_lshlrev_b32 v204, 4, v0")
        for i in range(2):
            k(f"buffer_store_dwordx4 v[240:243], v204, {srd(SB)}, s12 offen sc1")
            k("s_add_u32 s12, s12, 4096")

    def q_flag():
        poll(zl, ["v245"], None, sleep=4, nl=1)
        k(f"v_readfirstlane_b32 {SN}, v245")
        k(f"v_mov_b32 v15, {SN}")

    def item_idx(magic, n):
        for ps in range(2):
            o, ch = f"v{4+2*ps}", f"v{5+2*ps}"
            k(f"v_add_u32 v8, {256*ps}, v0")
            k(f"v_mul_u32_u24 {o}, {magic}, v8")
            k(f"v_lshrrev_b32 {o}, 16, {o}")
            k(f"v_mul_u32_u24 {ch}, {n}, {o}")
            k(f"v_sub_u32 {ch}, v8, {ch}")

    def item_loads(pitch):
        k(f"v_mul_u32_u24 v8, {8*pitch}, v4")
        k("v_lshl_add_u32 v8, v5, 4, v8")
        k(f"v_mul_u32_u24 v9, {8*pitch}, v6")
        k("v_lshl_add_u32 v9, v7, 4, v9")
        k("v_cmp_gt_u32 vcc, 224, v0")
        k("v_cndmask_b32 v9, v14, v9, vcc")
        for ps in range(2):
            k("s_mov_b32 s11, s10")
            for i in range(8):
                k(f"buffer_load_dwordx4 v[{16+32*ps+4*i}:{19+32*ps+4*i}], v{8+ps}, {srd(SA)}, s11 offen")
                if i < 7:
                    k(f"s_add_u32 s11, s11, {pitch}")
        q_job()

    def stage(magic, sh, n, blk, opart, pairb, npair, second):
        for ps in range(2):
            o, ch = f"v{4+2*ps}", f"v{5+2*ps}"
            k(f"v_mul_u32_u24 v161, {magic}, {ch}")
            k(f"v_lshrrev_b32 v161, {sh}, v161")
            k(f"v_mul_u32_u24 v162, {n}, v161")
            k(f"v_sub_u32 {ch}, {ch}, v162")
            opart(o)
            k(f"v_mul_u32_u24 v161, {blk}, v161")
            k("v_add_u32 v160, v160, v161")
            k(f"v_lshrrev_b32 v161, 2, {ch}")
            k(f"v_mul_u32_u24 v161, {pairb}, v161")
            k("v_add_u32 v160, v160, v161")
            k(f"v_and_b32 v161, 3, {ch}")
            k("v_lshlrev_b32 v162, 6, v161")
            k("v_lshlrev_b32 v163, 7, v161")
            k(f"v_cmp_gt_u32 vcc, {npair}, {ch}")
            k("v_cndmask_b32 v162, v163, v162, vcc")
            k(f"v_add_u32 {o}, v160, v162")
            k("v_mov_b32 v162, 64")
            k(f"v_mov_b32 v163, {second}")
            k("v_cndmask_b32 v162, v162, v163, vcc")
            k(f"v_add_u32 {ch}, {o}, v162")
        k("v_cmp_gt_u32 vcc, 224, v0")
        k("v_mov_b32 v160, 61440")
        k("v_cndmask_b32 v6, v160, v6, vcc")
        k("v_cndmask_b32 v7, v160, v7, vcc")
        for ps in range(2):
            src = 16 + 32 * ps
            for e in range(8):
                o = 160 + 4 * e
                for p in range(4):
                    k(f"v_perm_b32 v{o+p}, v{src+4*(2*p+1)+e//2}, v{src+4*(2*p)+e//2}, s{58+(e&1)}")
                k(f"ds_write_b128 v{4+2*ps+(e>>2)}, v[{o}:{o+3}] offset:{(e&3)*16}")
        q_flag()
        k.wait(lg=0)
        k.barrier()
        stamp("mfma")


    k("s_cmp_ge_u32 s2, 64")
    k.branch("s_cbranch_scc1 main_prep_wd", flush=False)
    sv = (list(k.vm), list(k.lg))
    item_idx(2731, 24)
    k("s_bfe_u32 s60, s2, 0x30001")
    k("s_lshr_b32 s61, s2, 4")
    k(f"s_mul_i32 s10, s61, {160*3072}")
    k("s_mul_i32 s11, s60, 384")
    k("s_add_u32 s10, s10, s11")
    item_loads(3072)

    def op_wgu(o):
        k(f"v_lshrrev_b32 v160, 2, {o}")
        k("v_mul_u32_u24 v160, 3072, v160")
        k(f"v_and_b32 v162, 3, {o}")
        k("v_lshl_add_u32 v160, v162, 8, v160")
    stage(43, 8, 6, 15360, op_wgu, 2048, 4, 1024)
    k("s_mul_i32 s13, s3, 15360")
    k(f"v_add_u32 v4, s13, {VL16}")
    k("s_lshl_b32 s12, s60, 2")
    k("s_add_u32 s12, s12, s3")
    k(f"s_mul_i32 s10, s12, {WGU_M}")
    k("s_mul_i32 s11, s61, 30720")
    k("s_add_u32 s10, s10, s11")
    k("s_and_b32 s13, s2, 1")
    k("s_mul_i32 s11, s13, 3072")
    k("s_add_u32 s10, s10, s11")
    k(f"s_add_u32 s10, s10, {WS_WGU}")
    for j in range(15):
        k(f"ds_read_b128 v[{16+4*j}:{19+4*j}], v4 offset:{j*1024}")
    for t in range(3):
        k(f"v_mov_b32 v{5+t}, 0")
    for j in range(15):
        k(f"buffer_store_dwordx4 v[{16+4*j}:{19+4*j}], {VL16}, {srd(SWS)}, s10 offen offset:{(j%3)*1024} sc1")
        if j % 3 == 2:
            k("s_add_u32 s10, s10, 6144")
        for p in range(4):
            k(f"v_dot2c_f32_bf16 v{5+j%3}, v{16+4*j+p}, v12")
    for t in range(3):
        xsum16(k, f"v{5+t}", "v8")
        xsum32(k, f"v{5+t}", "v8")
    k("v_cmp_eq_u32 vcc, 1, v3")
    k("v_cndmask_b32 v5, v5, v6, vcc")
    k("v_cmp_eq_u32 vcc, 2, v3")
    k("v_cndmask_b32 v5, v5, v7, vcc")
    k("v_lshlrev_b32 v6, 2, v1")
    k("v_cmp_gt_u32 vcc, 48, v1")
    k("v_cndmask_b32 v6, v14, v6, vcc")
    k("s_lshl_b32 s10, s12, 11")
    k("s_lshl_b32 s11, s61, 9")
    k("s_add_u32 s10, s10, s11")
    k("s_mul_i32 s11, s13, 192")
    k("s_add_u32 s10, s10, s11")
    k(f"s_add_u32 s10, s10, {WS_CS}")
    k(f"buffer_store_dword v5, v6, {srd(SWS)}, s10 offen sc1")

    k.wait(vm=0)
    k.flush_hazards()
    k.branch("s_branch main_prep_pub", flush=False)
    k.label("main_prep_wd", flush=False)
    k.vm, k.lg = sv
    item_idx(820, 80)
    k("s_sub_u32 s60, s2, 64")
    k(f"s_mul_i32 s10, s60, {48*1280}")
    item_loads(1280)

    def op_wd(o):
        k(f"v_lshlrev_b32 v160, 8, {o}")
    stage(205, 11, 10, 7680, op_wd, 3072, 8, 1536)
    k("s_mul_i32 s13, s3, 15360")
    k(f"v_add_u32 v4, s13, {VL16}")
    k("v_lshrrev_b32 v6, 1, v3")
    k("v_and_b32 v7, 1, v3")
    k("v_mul_u32_u24 v5, 7680, v6")
    k("v_lshl_add_u32 v5, v7, 8, v5")
    k("v_lshl_add_u32 v5, v2, 4, v5")
    k("v_add_u32 v5, s13, v5")
    k("s_mul_i32 s11, s60, 6")
    k("v_add_u32 v8, s11, v3")
    k("v_add3_u32 v9, v7, s11, 4")
    for v in ("v8", "v9"):
        k(f"v_lshrrev_b32 v13, 2, {v}")
        k("v_mul_u32_u24 v13, 5120, v13")
        k(f"v_and_b32 {v}, 3, {v}")
        k(f"v_lshl_add_u32 {v}, {v}, 8, v13")
        k(f"v_lshl_add_u32 {v}, v2, 4, {v}")
    k(f"v_mul_u32_u24 v13, {48*5120}, v6")
    k("v_add_u32 v9, v9, v13")
    k(f"s_mul_i32 s10, s3, {2*48*5120}")
    k(f"s_add_u32 s10, s10, {WS_WD}")
    plan = []
    for t in range(5):
        plan += [("v4", t * 1536, "v8", t * 1024), ("v4", 7680 + t * 1536, "v8", 48 * 5120 + t * 1024), ("v5", 1024 + t * 1536, "v9", t * 1024)]
    for j, (la, lo, ga, go) in enumerate(plan):
        k(f"ds_read_b128 v[{16+4*j}:{19+4*j}], {la} offset:{lo}")
    for j, (la, lo, ga, go) in enumerate(plan):
        k(f"s_add_u32 s11, s10, {go}")
        k(f"buffer_store_dwordx4 v[{16+4*j}:{19+4*j}], {ga}, {srd(SWS)}, s11 offen sc1")

    k.wait(vm=0)
    k.flush_hazards()
    k.label("main_prep_pub", flush=False)
    k.barrier()
    k("s_lshl_b32 s10, s2, 7")
    k(f"s_add_u32 s10, s10, {SY_PF}")
    k("s_cmp_eq_u32 s3, 0")
    k("s_cselect_b32 s10, s10, 0x40000000")
    k("v_mov_b32 v204, 0")
    ML(f"buffer_store_dword v15, v204, {srd(SSY)}, s10 offen sc1", 1)()
    stamp("cf")
    pl = wpoll_setup("v8")
    emit(pl[0])
    poll(pl, ["v13"], None, sleep=4, nl=16, eq=SN)
    stamp("pp")
    for p in range(10):
        for x in wgu_dma(p):
            emit(x)
    for i in range(60):
        for x in wd_load(i):
            emit(x)
    k.wait(lg=0)
    k.flush_hazards()

    k.label("main_join", flush=False)
    k.vm = [(set(), "unk")] * 63
    k("s_load_dwordx2 s[26:27], s[0:1], 80")
    k(f"v_add_u32 {VL16B}, 61440, {VL16}")
    k.srd(SX, 24, XSPAN + XFB, WS_X1)
    k.srd(SH, 24, HSPAN + HFB, WS_H)
    k.srd(SY_, 24, XFB, WS_Y)
    k(f"s_mul_i32 s56, s15, {HRT}")
    k("s_mul_i32 s10, s5, 1536")
    k("s_add_u32 s56, s56, s10")
    k("s_mul_i32 s10, s3, 12288")
    k(f"s_mul_i32 s57, s16, {HRT}")
    k("s_add_u32 s57, s57, s10")
    k("s_xor_b32 s11, s16, 1")
    k(f"s_mul_i32 s58, s11, {HRT}")
    k("s_add_u32 s58, s58, s10")
    k(f"s_mul_i32 s59, s16, {XRT}")
    k("s_mul_i32 s10, s8, 2560")
    k("s_add_u32 s59, s59, s10")
    k("v_and_b32 v204, 1, v3")
    k("v_lshrrev_b32 v205, 1, v3")
    k(f"v_mul_u32_u24 {VH2}, {HRT}, v204")
    k("v_lshlrev_b32 v206, 4, v2")
    k("v_lshl_add_u32 v206, v205, 8, v206")
    k(f"v_add_u32 {VH2}, {VH2}, v206")
    k(f"v_lshl_add_u32 {VT4}, v204, 3, v206")
    k("s_lshl_b32 s10, s14, 31")
    k(f"v_or_b32 {VT4S}, s10, {VT4}")
    k("s_lshl_b32 s10, s16, 4")
    k(f"v_add_u32 {VROW}, s10, v2")
    k(f"v_lshlrev_b32 {VGR}, 3, v2")
    k("v_cmp_eq_u32 vcc, 0, v3")
    k(f"v_mov_b32 v204, {OOB:#x}")
    k(f"v_cndmask_b32 {VGW}, v204, {VGR}, vcc")
    k(f"v_lshl_add_u32 {VQ128}, v3, 7, {VGR}")
    k(f"v_lshl_add_u32 {VGR}, v3, 9, {VGR}")
    k("v_cmp_eq_u32 vcc, 0, v1")
    k(f"v_cndmask_b32 {VFLAG}, v204, v1, vcc")
    k("s_lshl_b32 s10, s4, 3")
    k("s_add_u32 s10, s10, s7")
    k("s_lshl_b32 s10, s10, 5")
    k("s_lshl_b32 s11, s3, 3")
    k("s_add_u32 s10, s10, s11")
    k(f"v_and_b32 {VFPOLL}, 7, v1")
    k(f"v_add_u32 {VFPOLL}, s10, {VFPOLL}")
    k(f"v_lshlrev_b32 {VFPOLL}, 7, {VFPOLL}")
    k(f"v_lshlrev_b32 {VXP}, 4, v2")
    k(f"v_lshl_add_u32 {VXP}, v3, 9, {VXP}")
    k("s_lshr_b32 s10, s16, 1")
    k(f"s_mul_i32 s62, s10, {XBLK}")
    k("s_mul_i32 s10, s8, 5120")
    k("s_add_u32 s62, s62, s10")
    k("s_lshl_b32 s10, s9, 3")
    k("s_add_u32 s62, s62, s10")
    k("s_lshr_b32 s10, s5, 2")
    k("s_lshl_b32 s11, s4, 3")
    k("s_add_u32 s63, s10, s11")
    k(f"s_mul_i32 s60, s63, {XBLK}")
    k("s_mul_i32 s10, s3, 10240")
    k("s_add_u32 s60, s60, s10")
    k("s_and_b32 s61, s5, 3")
    k("s_lshl_b32 s10, s61, 6")
    k("s_add_u32 s60, s60, s10")
    k("v_and_b32 v188, 3, v1")
    k("v_lshrrev_b32 v189, 2, v1")
    k("v_lshlrev_b32 v189, 8, v189")
    k("v_lshl_add_u32 v189, v188, 4, v189")
    k("v_cmp_gt_u32 vcc, 32, v1")
    k("v_cndmask_b32 v190, v204, v189, vcc")
    k("s_lshl_b32 s10, s5, 11")
    k(f"s_add_u32 s10, s10, {WS_CS}")
    k("v_lshlrev_b32 v197, 3, v1")
    for i in range(4):
        k(f"buffer_load_dwordx2 v[{208+2*i}:{209+2*i}], v197, {srd(SWS)}, s10 offen offset:{i*512} sc1")
    k.srd(SO, 26, XFB)
    k("s_lshr_b32 s10, s4, 1")
    k("s_mul_i32 s10, s10, 160")
    k("s_mul_i32 s11, s3, 40")
    k("s_add_u32 s10, s10, s11")
    k("s_lshl_b32 s10, s10, 7")
    k(f"s_add_u32 s10, s10, {SY_CF}")
    k("s_mul_i32 s11, s3, 3072")
    k(f"s_add_u32 s11, s11, {SY_PF - 40*128}")
    k("v_mov_b32 v205, s10")
    k("v_mov_b32 v206, s11")
    k("v_cmp_gt_u32 vcc, 40, v1")
    k("v_cndmask_b32 v205, v206, v205, vcc")
    k("v_lshl_add_u32 v205, v1, 7, v205")
    k(f"v_add_u32 v197, {LC}, v197")
    k("v_pk_add_f32 v[208:209], v[208:209], v[210:211]")
    k("v_pk_add_f32 v[212:213], v[212:213], v[214:215]")
    k("v_pk_add_f32 v[208:209], v[208:209], v[212:213]")
    k(f"s_cmp_ge_u32 s2, {NPREP}")
    k.branch("s_cbranch_scc1 main_nogate", flush=False)
    svg = (list(k.vm), list(k.lg))
    c1 = [ML(f"buffer_load_dword v206, v205, {srd(SSY)}, 0 offen sc1", 1)]
    emit(c1[0])
    poll(c1, ["v206"], None, sleep=6, nl=1, eq=SN)
    k.label("main_nogate", flush=False)
    k.vm, k.lg = svg
    cl = [f"buffer_load_dword v206, v205, {srd(SSY)}, 0 offen sc1"]
    emit(cl[0])
    poll(cl, ["v206"], None, sleep=2, eq=SN)
    k.vm = []
    k.barrier()
    stamp("join")
    k("ds_write_b64 v197, v[208:209]")
    for kk in range(4):
        for x in x_loads(0, 0, kk, 2 * kk):
            emit(x)
    SR = 192
    for i in range(3):
        k(f"s_add_u32 s12, s60, {i*4096}")
        k(f"buffer_load_dwordx4 v[{SR+4*i}:{SR+4*i+3}], v{189 if i < 2 else 190}, {srd(SX)}, s12 offen sc1")
    for kk in range(4, DIST):
        for x in x_loads(0, 0, kk, 2 * kk):
            emit(x)

    k("s_lshl_b32 s10, s3, 13")
    k(f"s_add_u32 s10, s10, {LR}")
    k(f"v_add_u32 {VRW}, s10, {VL16}")
    k("s_cmp_eq_u32 s14, 0")
    k("s_cselect_b32 s26, 1.0, 0")
    k("s_mov_b32 s27, s26")
    k("s_lshl_b32 s60, s16, 4")
    k("s_lshl_b32 s13, s8, 1")
    k("s_add_u32 s60, s60, s13")
    k("s_add_u32 s60, s60, s14")
    k("s_lshl_b32 s60, s60, 7")

    def phase_s():
        for r in range(2):
            s_, q_ = TMP + 2 * r, TMP + 2 * r + 1
            first = True
            for i in range(3):
                for d in range(2):
                    unpack(k, "v204", "v205", f"v{SR+4*i+2*r+d}")
                    if first:
                        k(f"v_add_f32 v{s_}, v204, v205")
                        k(f"v_mul_f32 v{q_}, v204, v204")
                        first = False
                    else:
                        k(f"v_add_f32 v{s_}, v{s_}, v204")
                        k(f"v_add_f32 v{s_}, v{s_}, v205")
                        k(f"v_fmac_f32 v{q_}, v204, v204")
                    k(f"v_fmac_f32 v{q_}, v205, v205")
        for v in range(TMP, TMP + 4):
            k(f"v_add_f32_dpp v{v}, v{v}, v{v} row_ror:4 row_mask:0xf bank_mask:0xf")
        for v in range(TMP, TMP + 4):
            k(f"v_add_f32_dpp v{v}, v{v}, v{v} row_ror:8 row_mask:0xf bank_mask:0xf")
        for v in range(TMP, TMP + 4):
            xsum16(k, f"v{v}", "v204")
            xsum32(k, f"v{v}", "v204")
        k(f"v_or_b32 v{TMP+1}, 0x80000000, v{TMP+1}")
        k(f"v_or_b32 v{TMP+3}, 0x80000000, v{TMP+3}")
        k("s_lshl_b32 s12, s63, 3")
        k("s_add_u32 s12, s12, s3")
        k("s_lshl_b32 s12, s12, 7")
        k("s_lshl_b32 s13, s61, 5")
        k("s_add_u32 s12, s12, s13")
        k(f"s_add_u32 s12, s12, {SY_ST1}")
        k("v_lshlrev_b32 v204, 3, v1")
        set_exec(4)
        k(f"buffer_store_dwordx2 v[{TMP}:{TMP+1}], v204, {srd(SSY)}, s12 offen sc1")
        k(f"buffer_store_dwordx2 v[{TMP+2}:{TMP+3}], v204, {srd(SSY)}, s12 offen offset:512 sc1")
        k("s_mov_b64 exec, -1")

    sched = {}
    wi = NE1
    for kk in range(20):
        L = []
        if kk < 4:
            L += wgu_dma(6 + kk)
        if kk + DIST < 20:
            L += x_loads(0, 0, kk + DIST, 2 * (kk + DIST))
        else:
            kb = kk + DIST - 20
            L += x_loads(0, 1, kb, 40 + 2 * kb)
        if kk >= 20 - NWA and wi < 60:
            L += wd_load(wi)
            wi += 1
        if kk == 2:
            L = [phase_s] + L
        if kk == 14:
            L = st1_loads(0, TMP + 24) + L
        sched[kk] = L
    g1_main(0, sched, first=True, xp=True)
    stamp("g1a")
    stats1(0, STA)

    def take(n):
        nonlocal wi
        L = []
        for _ in range(n):
            if wi < 60:
                L += wd_load(wi)
                wi += 1
        return L
    g1_epilogue(0, 0, STA, take(NWE1))
    stamp("e1a")
    extra = {}
    for kk in range(12):
        extra[kk] = take((NWB * (kk + 1)) // 12 - (NWB * kk) // 12)
    extra[12] = st1_loads(1, TMP + 24) + res_loads(0)
    sched, rest = g1b_sched(0, extra)
    g1_main(40, sched, xp=True)
    stamp("g1b")
    for L in rest:
        for x in L:
            emit(x)
    stats1(1, STB)
    g1_epilogue(0, 1, STB, take(NWE2))
    print('Wd loads left for G2(A):', 60 - wi)
    stamp("e1b")

    NH0 = int(os.environ.get("NH0", "5"))

    def g2a(layer):
        sc = {kk: take(5) for kk in range(12)}
        assert wi == 60
        sc[HFK] = sc[HFK] + [lambda: h_flag(layer, 1)]
        sc[HPK] = sc[HPK] + h_poll_loads(layer, 1)
        g2_main(80, sc, X1R[0], X2[0])
        stamp(f"g2a{layer}")

        def mid():
            h_poll(layer, 1)
            stamp(f"ph{layer}")
            for kk in range(NH0):
                for x in h_loads(layer, 1, kk, 2 * kk):
                    emit(x)
        g2_reduce(X2[0], mid)

    def g2b_sched(layer, extra):
        sched = {}
        for kk in range(12):
            L = []
            if kk + NH0 < 12:
                L += h_loads(layer, 1, kk + NH0, 2 * (kk + NH0))
            sched[kk] = L + extra.get(kk, [])
        return sched

    g2a(0)
    part_stats(X2[0], 0, SY_ST2)
    stamp("r2a")

    def fin_a():
        finalize(0, X2[0], G2R)
        part_calc(X2[0], 244)
    g2_main(0, g2b_sched(0, {2: res_loads(1), FK - 3: st2_loads(0, G2R), FK: [fin_a]}), X1R[1], X2[1])
    stamp("g2b")
    g2_reduce(X2[1], lambda: part_pub(244, 0, SY_ST3, pre_wait="xst"))
    part_stats(X2[1], 1, SY_ST2)
    stamp("s3a")
    for x in st3_loads(0, TMP):
        emit(x)
    stats3(0, STA)
    stamp("p3a")
    for kk in range(DIST):
        for x in x_loads(1, 0, kk, 2 * kk):
            emit(x)
        if kk == 3:
            for x in st2_loads(1, G2R):
                emit(x)
    finalize(1, X2[1], G2R)
    part_calc(X2[1], 246)
    stamp("fin")
    sched = {}
    xb = [x_loads(1, 1, j, 40 + 2 * j) for j in range(DIST)]
    for kk in range(20):
        L = []
        if kk + DIST < 20:
            L += x_loads(1, 0, kk + DIST, 2 * (kk + DIST))
        if kk == 3:
            L = L + [lambda: part_pub(246, 1, SY_ST3, pre_wait="xst")]
        if kk == S3K - 4:
            L = L + st3_loads(1, TMP)
        if kk == S3K:
            L = [lambda: stats3(1, STB)] + L
        if kk >= S3K:
            for _ in range(-(-DIST // (20 - S3K))):
                if xb and (DIST - len(xb)) + 8 < kk:
                    L += xb.pop(0)
        sched[kk] = L
    assert not xb
    g1_main(0, sched)
    stamp("g1a'")
    g1_epilogue(1, 0, STA)
    stamp("e1a'")
    sched, rest = g1b_sched(1, {})
    g1_main(40, sched)
    stamp("g1b'")
    for L in rest:
        for x in L:
            emit(x)
    g1_epilogue(1, 1, STB)
    stamp("e1b'")
    g2a(1)
    out_store(0, X2[0])
    stamp("r2a'")
    g2_main(0, g2b_sched(1, {}), X1R[1], X2[1])
    g2_reduce(X2[1])
    out_store(1, X2[1])
    if DIAG:
        in_srd(k, 96, 88, 256)
        k("s_cmp_eq_u32 s101, 0")
        k("s_cselect_b32 s10, 0x40000000, 0")
        k("s_lshl_b32 s11, s2, 8")
        k("s_or_b32 s11, s11, s101")
        k("s_lshl_b32 s12, s3, 16")
        k("s_or_b32 s11, s11, s12")
        k("v_mov_b32 v0, s11")
        k("s_and_b32 s12, s101, 0xe")
        k("s_lshl_b32 s12, s12, 1")
        k("v_mov_b32 v1, s12")
        ML("buffer_store_dword v0, v1, s[96:99], s10 offen", 1)()
    k.prof_end(2, 24, 3, names="main")
    k.label("main_end", flush=False)
    k("s_endpgm")
    k.raw("main_code_end:")
    return k


if __name__ == "__main__":
    if os.environ.get("PROF"):
        Kern.PROF = True
    main = gen_main()
    out = sys.argv[1] if len(sys.argv) > 1 else "v17.s"
    txt = build_file(HEADER, [main], [main]).replace(f"; @launch kernel={KNAME} ", "; @launch ")
    open(out, "w").write(txt)
    json.dump(PROFINFO, open(out + ".prof.json", "w"))
    print("instrs", main.nins, "vgpr", main.maxv + 1, "agpr", main.maxa + 1, "sgpr", main.maxs + 1, "lds", main.lds)
```

```python
import sys, os, json
sys.path.insert(0, "dev")
from asmdsl import *
from gen1 import S, D, F, EPS, f2u, unpack, reduce16, xsum16, xsum32, HEADER, XFB, HFB, WDB

KNAME = "interleave_layers__ssm_conv_h3__swiglu_ffn__prompt_kernel"
WS_KVT = 0x0000000
WS_QST = 0x0300000
WS_WGU = 0x0400000
WGU_M = 20 * 6144
WGUB = 32 * WGU_M
WS_CS = 0x0800000
WS_WD = 0x0900000
WS_Y = 0x0C00000
WS_X1 = 0x0F00000
WS_H = 0x1200000
WS_X3 = 0x1D00000
WS_H2 = 0x2000000
WS_SYNC = 0x2800000
SY_ST1 = 0
SY_ST2 = 0x10000
SY_ST3 = 0x50000
SY_HF = 0x90000
SY_CF = 0x110000
SY_PF = 0x124000
SY_QF = 0x128000
SY_GF = 0x12C000
SY_QF = 0x140000
SYNCB = 0x150000
SN = "s6"
WS_QX = 0x2C00000
XBLK = 40960
WSB = 0x3000000
XRT = 20480
HRT = 49152
OOB = 0x80000000
LOG2E = 1.4426950408889634
SPIN_MAX = 1 << 14
NPREP = 96
STAMPS = os.environ.get("STAMPS", "").split(",")
NP1 = int(os.environ.get("NP1", "4"))
NE1 = int(os.environ.get("NE1", "24"))
PPN = int(os.environ.get("PPN", "2"))
LASTW = int(os.environ.get("LASTW", "270"))
NB = int(os.environ.get("NB", "6"))
NE2 = int(os.environ.get("NE2", "0"))
MAP = int(os.environ.get("MAP", "2"))
PF = int(os.environ.get("PF", "0"))
FK = int(os.environ.get("FK", "7"))
HFK = int(os.environ.get("HFK", "4"))
S3K = int(os.environ.get("S3K", "15"))
NWA = int(os.environ.get("NWA", "10"))
NWE1 = int(os.environ.get("NWE1", "12"))
NWB = int(os.environ.get("NWB", "14"))
NWE2 = int(os.environ.get("NWE2", "12"))
HPK = int(os.environ.get("HPK", "9"))
PREW = int(os.environ.get("PREW", "1"))
DIAG = int(os.environ.get("DIAG", "0"))
EVERY = int(os.environ.get("EVERY", "5"))


def srd(n):
    return f"s[{n}:{n+3}]"


def mkstamp(k):
    def stamp(n):
        if n in STAMPS:
            if hasattr(k, "stamps") and n in k.stamps:
                if Kern.PROF:
                    i = k.stamps.index(n)
                    k(f"{Kern.CLK} s[{64+2*i}:{65+2*i}]")
            else:
                k.stamp(n)
    return stamp


def in_srd(k, slot, karg_off, nbytes):
    k(f"s_load_dwordx2 s[{slot}:{slot+1}], s[0:1], {karg_off}")
    k(f"s_mov_b32 s{slot+2}, {nbytes}")
    k(f"s_mov_b32 s{slot+3}, 0x00020000")


def gen_pre():
    k = Kern("pre_kernel", lds=8192, grid=384, block=128)
    stamp = mkstamp(k)
    SA, SB, SC_, SD_, SWS = 28, 32, 36, 40, 48
    k.prof_begin()
    k(f"s_cmp_ge_u32 s2, {k.grid}")
    k.branch("s_cbranch_scc1 pre_end", flush=False)
    k("s_load_dwordx2 s[24:25], s[0:1], 96")
    k("s_cmp_ge_u32 s2, 320")
    k.branch("s_cbranch_scc1 pre_q", flush=False)
    saved0 = (list(k.vm), list(k.lg))
    in_srd(k, SA, 8, S * D * 2)
    in_srd(k, SB, 16, S * D * 2)
    in_srd(k, SC_, 24, D * 8)
    in_srd(k, SD_, 32, D * 4096)
    k("v_lshrrev_b32 v1, 6, v0")
    k("v_readfirstlane_b32 s3, v1")
    k("v_and_b32 v1, 63, v0")
    k("s_lshr_b32 s57, s2, 5")
    k("s_and_b32 s58, s2, 31")
    k("v_lshrrev_b32 v4, 3, v1")
    k("v_and_b32 v5, 7, v1")
    k("s_lshl_b32 s10, s58, 6")
    k("s_lshl_b32 s11, s3, 5")
    k("s_add_u32 s10, s10, s11")
    k("v_lshlrev_b32 v6, 2, v4")
    k("v_add_u32 v6, s10, v6")
    k("v_mul_u32_u24 v7, 1280, v6")
    k("v_lshl_add_u32 v7, v5, 4, v7")
    k("s_lshl_b32 s12, s57, 7")
    k("v_add_u32 v7, s12, v7")
    KR, VR, WR = 16, 44, 60
    k("v_lshlrev_b32 v9, 6, v5")
    k("s_lshl_b32 s12, s57, 9")
    for j in (3, 4, 5, 6):
        k(f"buffer_load_dwordx4 v[{KR+4*j}:{KR+4*j+3}], v7, {srd(SA)}, 0 offen offset:{(j-3)*1280}")
    for i in range(4):
        k(f"buffer_load_dwordx4 v[{VR+4*i}:{VR+4*i+3}], v7, {srd(SB)}, 0 offen offset:{i*1280}")
    for i in range(4):
        k(f"buffer_load_dwordx4 v[{WR+4*i}:{WR+4*i+3}], v9, {srd(SC_)}, s12 offen offset:{16*i}")
    for j in (2, 1, 0):
        k(f"v_add_u32 v8, {((j-3)*1280) & 0xffffffff:#x}, v7")
        k(f"buffer_load_dwordx4 v[{KR+4*j}:{KR+4*j+3}], v8, {srd(SA)}, 0 offen")
    k.srd(SWS, 24, WSB)
    k("s_lshl_b32 s10, s3, 6")
    k("s_sub_u32 s10, 120, s10")
    k("v_lshlrev_b32 v8, 3, v4")
    k("v_sub_u32 v8, s10, v8")
    k("v_lshlrev_b32 v9, 4, v5")
    k("v_xor_b32 v8, v8, v9")
    k("v_lshl_add_u32 v8, v5, 10, v8")
    k("s_lshl_b32 s10, s3, 12")
    k("v_lshlrev_b32 v11, 7, v4")
    k("v_add_u32 v11, s10, v11")
    k("s_lshl_b32 s11, s3, 2")
    for j in range(4):
        k(f"s_add_u32 s12, s11, {j}")
        k(f"v_xor_b32 v{12+j}, s12, v5")
        k(f"v_lshl_add_u32 v{12+j}, v{12+j}, 4, v11")
    k("v_lshl_add_u32 v9, v4, 12, v9")
    k("s_lshl_b32 s10, s57, 6")
    k("s_lshl_b32 s11, s3, 5")
    k("s_add_u32 s10, s10, s11")
    k("s_lshl_b32 s10, s10, 12")
    k("s_lshl_b32 s11, s58, 7")
    k("s_sub_u32 s11, 3968, s11")
    k("s_add_u32 s10, s10, s11")
    WF = 80
    for c in range(8):
        unpack(k, f"v{WF+4*c}", f"v{WF+4*c+1}", f"v{WR+2*c}")
        unpack(k, f"v{WF+4*c+2}", f"v{WF+4*c+3}", f"v{WR+2*c+1}")
    k.wait(vm=0)
    stamp("Tld")
    lab = k.newlabel("pc")
    k("s_getpc_b64 s[44:45]")
    k.raw(lab + ":")
    k(f"s_add_u32 s44, s44, main_kernel-{lab}")
    k("s_addc_u32 s45, s45, 0")
    k("s_mov_b32 s46, main_code_end-main_kernel")
    k("s_mov_b32 s47, 0x00020000")
    k("v_lshlrev_b32 v2, 7, v0")
    k(f"s_sub_u32 s12, s2, {NPREP}")
    k("s_lshl_b32 s12, s12, 14")
    k("s_and_b32 s12, s12, 0x7fffffff")
    k(f"buffer_load_dword v150, v2, {srd(SD_)}, s12 offen")
    k("s_lshr_b32 s12, s2, 3")
    k("s_lshl_b32 s12, s12, 14")
    k("buffer_load_dword v151, v2, s[44:47], s12 offen")
    KF, VF, OUT = 112, 128, 136
    for cp in range(4):
        for j in range(7):
            unpack(k, f"v{KF+2*j}", f"v{KF+2*j+1}", f"v{KR+4*j+cp}")
        for i in range(4):
            unpack(k, f"v{VF+2*i}", f"v{VF+2*i+1}", f"v{VR+4*i+cp}")
        for h in range(2):
            c = 2 * cp + h
            O = OUT + 4 * h
            for i in range(4):
                k(f"v_mul_f32 v{O+i}, v{KF+2*(i+0)+h}, v{WF+4*c+3}")
            for t in (2, 1, 0):
                for i in range(4):
                    k(f"v_fmac_f32 v{O+i}, v{KF+2*(i+3-t)+h}, v{WF+4*c+t}")
            for i in range(4):
                k(f"v_mul_f32 v{O+i}, v{O+i}, v{VF+2*i+h}")
            p = 144 + 2 * h
            k(f"v_cvt_pk_bf16_f32 v{p}, v{O+3}, v{O+2}")
            k(f"v_cvt_pk_bf16_f32 v{p+1}, v{O+1}, v{O+0}")
            k(f"ds_write_b64 v8, v[{p}:{p+1}] offset:{c*128}")
    k.wait(lg=0)
    k.barrier()
    stamp("Tkv")
    for j in range(4):
        k(f"ds_read_b128 v[{16+4*j}:{19+4*j}], v{12+j} offset:{j*1024}")
    for j in range(4):
        k(f"buffer_store_dwordx4 v[{16+4*j}:{19+4*j}], v9, {srd(SWS)}, s10 offen{PSC}")
        k("s_add_u32 s10, s10, 32768")
    for i in range(4):
        k(f"v_mov_b32 v{32+i}, 0")
    k.srd(SA, 24, SYNCB, WS_SYNC)
    k("s_lshl_b32 s12, s2, 12")
    k("v_lshlrev_b32 v8, 4, v0")
    for i in range(2):
        k(f"buffer_store_dwordx4 v[32:35], v8, {srd(SA)}, s12 offen offset:{i*2048}{PSC}")
    k.prof_end(0, 24, 3, names="pre")
    k("s_endpgm")
    k.label("pre_q", flush=False)
    k.vm, k.lg = saved0
    in_srd(k, SA, 0, S * D * 2)
    k("v_lshrrev_b32 v1, 6, v0")
    k("v_readfirstlane_b32 s3, v1")
    k("v_and_b32 v1, 63, v0")
    k("v_and_b32 v2, 15, v0")
    k("v_bfe_u32 v3, v0, 4, 2")
    k("s_sub_u32 s10, s2, 320")
    k("s_lshl_b32 s10, s10, 1")
    k("s_add_u32 s10, s10, s3")
    k(f"s_mul_i32 s11, s10, {XRT}")
    k("v_mul_u32_u24 v4, 1280, v2")
    k("v_lshl_add_u32 v4, v3, 4, v4")
    QR = 16
    for i in range(20):
        k(f"buffer_load_dwordx4 v[{QR+4*i}:{QR+4*i+3}], v4, {srd(SA)}, s11 offen offset:{64*i}")
    k.srd(SWS, 24, WSB)
    k("v_lshlrev_b32 v5, 4, v1")
    k(f"s_add_u32 s12, s11, {WS_QX}")
    k("v_mov_b32 v6, 0x3f803f80")
    k("v_mov_b32 v8, 0")
    k("v_mov_b32 v9, 0")
    for i in range(20):
        if i % 4 == 0 and i:
            k("s_add_u32 s12, s12, 4096")
        k(f"buffer_store_dwordx4 v[{QR+4*i}:{QR+4*i+3}], v5, {srd(SWS)}, s12 offen offset:{(i%4)*1024}{PSC}")
        for d in range(4):
            k(f"v_dot2c_f32_bf16 v8, v{QR+4*i+d}, v6")
            k(f"v_dot2c_f32_bf16 v9, v{QR+4*i+d}, v{QR+4*i+d}")
    for v in ("v8", "v9"):
        xsum16(k, v, "v7")
        xsum32(k, v, "v7")
    k(f"v_mul_f32 v8, {f2u(1.0/D)}, v8")
    k(f"v_mul_f32 v9, {f2u(1.0/D)}, v9")
    k("v_fma_f32 v9, -v8, v8, v9")
    k("v_max_f32 v9, 0, v9")
    k(f"v_add_f32 v9, {f2u(EPS)}, v9")
    k("v_rsq_f32 v11, v9")
    k("v_mul_f32 v10, v8, v11")
    k("s_lshl_b32 s12, s10, 7")
    k(f"s_add_u32 s12, s12, {WS_QST}")
    k("v_lshlrev_b32 v7, 3, v2")
    k(f"buffer_store_dwordx2 v[10:11], v7, {srd(SWS)}, s12 offen")
    k.label("pre_end", flush=False)
    k("s_endpgm")
    return k


PSC = os.environ.get("PSC", "")

def gen_main():
    LW = 0
    LR = 131072
    LC = 122880
    CP = 4160
    UOFF = 4 * CP
    WREG = 4 * CP + 4608
    CB = 163840 - 4 * WREG
    k = Kern(KNAME, lds=163840, grid=256, block=256)
    RING, ACC, WB, TMP = 16, 112, 160, 184
    X1R = [216, 222]
    YR = [228, 234]
    STA, STB = [4, 6], [240, 242]
    X2 = [WB, WB + 12]
    G2R = TMP + 8
    DIST = int(os.environ.get("DIST", "8"))
    VL16, VL16B, VH2, VT4, VT4S, VROW, VGW, VGR, VQ128, VFLAG, VFPOLL = (
        "v10", "v11", "v8", "v9", "v12", "v13", "v14", "v15", "v0", "v252", "v253")
    VL128 = "v251"
    VXP = "v250"
    VRW = "v249"
    LQ = 131072
    SX, SW, SH, SWD, SSY, SO, SY_ = 28, 32, 36, 40, 44, 48, 52
    SA, SB, SWS, SDBG = 28, 36, 48, 52
    XSPAN = WS_X3 - WS_X1
    HSPAN = WS_H2 - WS_H

    stamp = mkstamp(k)

    def ring(i):
        return RING + 4 * (i % 24)

    def emit(x):
        if callable(x):
            x()
        elif isinstance(x, tuple):
            k(x[0], tag=x[1])
        else:
            k(x)

    def set_exec(nl):
        m = (1 << nl) - 1
        if nl <= 32:
            k(f"s_mov_b64 exec, {m:#x}") if nl <= 6 else (k(f"s_mov_b32 exec_lo, {m:#x}"), k("s_mov_b32 exec_hi, 0"))
        else:
            k(f"s_mov_b32 exec_hi, {m >> 32:#x}")

    class ML:
        def __init__(self, text, nl):
            self.text, self.nl = text, nl

        def __call__(self):
            set_exec(self.nl)
            k(self.text)
            k("s_mov_b64 exec, -1")

    def isvm(x):
        if isinstance(x, ML):
            return True
        if callable(x):
            return False
        return (x[0] if isinstance(x, tuple) else x).startswith("buffer_")

    def emit_one_vmem(L):
        while L:
            x = L.pop(0)
            emit(x)
            if isvm(x):
                return

    def x_loads(layer, b, kk, slot0):
        if layer == 0:
            return [f"s_add_u32 s10, s17, {kk*2048 + b*4*XBLK}"] + [
                f"buffer_load_dwordx4 v[{ring(slot0+e)}:{ring(slot0+e)+3}], {VXP}, {srd(SX)}, s10 offen offset:{e*256} sc1"
                for e in range(2)]
        so = kk * 1024 + b * 8 * XRT + (XSPAN if layer else 0)
        L = []
        for tn in range(2):
            L.append(f"s_add_u32 s10, s17, {so + tn*XRT}")
            L.append(f"buffer_load_dwordx4 v[{ring(slot0+tn)}:{ring(slot0+tn)+3}], {VL16}, {srd(SX)}, s10 offen sc1")
        return L

    def h_loads(layer, b, kk, slot0):
        so = kk * 1024 + b * 8 * HRT + (HSPAN if layer else 0)
        L = []
        for tn in range(2):
            L.append(f"s_add_u32 s10, s{57+tn}, {so}")
            L.append(f"buffer_load_dwordx4 v[{ring(slot0+tn)}:{ring(slot0+tn)+3}], {VL16}, {srd(SH)}, s10 offen sc1")
        return L

    def x_pf(layer, b):
        if not PF:
            return []
        return [f"s_add_u32 s10, s26, {b*8*XRT + (XSPAN if layer else 0)}",
                ML(f"buffer_load_dword a240, {VL128}, {srd(SX)}, s10 offen sc1", 20)]

    def h_pf(layer, b):
        if not PF:
            return []
        return [f"s_add_u32 s10, s27, {b*8*HRT + (HSPAN if layer else 0)}",
                ML(f"buffer_load_dword a241, {VL128}, {srd(SH)}, s10 offen sc1", 48)]

    def wgu_dma(p):
        return [f"s_add_u32 m0, s18, {LW + p*12288}", f"s_add_u32 s11, s19, {p*12288}"] + [
            (f"buffer_load_dwordx4 {VL16}, {srd(SW)}, s11 offen offset:{f*1024} sc1 lds", f"w{p}") for f in range(3)]

    def wd_load(i):
        kk, lt = divmod(i, 5)
        base = "s20" if lt < 2 else "s21" if lt < 4 else "s22"
        return [f"s_add_u32 s11, {base}, {kk*5120}",
                f"buffer_load_dwordx4 a[{4*i}:{4*i+3}], {VL16}, {srd(SWD)}, s11 offen offset:{(lt&1)*1024 if lt < 4 else 0} sc1"]

    def poll(loads, tags, tmp, sleep=2, ge=None, nl=64, eq=None):
        def check():
            if nl < 64:
                k(f"v_mov_b32 {tags[0]}, {tags[0]}")
                set_exec(nl)
            check0()
            if nl < 64:
                k("s_cmp_eq_u64 vcc, exec")
                k("s_mov_b64 exec, -1")
            else:
                k("s_cmp_eq_u64 vcc, -1")

        def check0():
            if eq is not None:
                k(f"v_cmp_eq_u32 vcc, {eq}, {tags[0]}")
            elif ge is not None:
                k(f"v_cmp_le_u32 vcc, {ge}, {tags[0]}")
            elif len(tags) == 1:
                k(f"v_cmp_ne_u32 vcc, 0, {tags[0]}")
            else:
                k(f"v_min_u32 {tmp}, {tags[0]}, {tags[1]}")
                for t in tags[2:]:
                    k(f"v_min_u32 {tmp}, {tmp}, {t}")
                k(f"v_cmp_ne_u32 vcc, 0, {tmp}")
        ok = k.newlabel("ok")
        lp = k.newlabel("spin")
        check()
        k.branch(f"s_cbranch_scc1 {ok}", flush=False)
        vm, lg = list(k.vm), list(k.lg)
        k("s_mov_b32 s23, 0")
        k.label(lp, flush=False)
        k(f"s_sleep {sleep}")
        for l in loads:
            emit(l)
        k.wait(vm=0)
        k("s_add_u32 s23, s23, 1")
        k(f"s_cmp_ge_u32 s23, {SPIN_MAX}")
        if DIAG:
            k(f"s_cselect_b32 s101, {k.uid}, s101")
        k.branch(f"s_cbranch_scc1 {ok}", flush=False)
        check()
        k.branch(f"s_cbranch_scc0 {lp}", flush=False)
        k.flush_hazards()
        k.label(ok, flush=False)
        k.vm, k.lg = vm, lg

    def finish_stats(vsum, vnsq, dst):
        k(f"v_mul_f32 v{dst}, {f2u(-1.0/D)}, {vsum}")
        k(f"v_mul_f32 {vnsq}, {f2u(-1.0/D)}, {vnsq}")
        k(f"v_fma_f32 {vnsq}, -v{dst}, v{dst}, {vnsq}")
        k(f"v_max_f32 {vnsq}, 0, {vnsq}")
        k(f"v_add_f32 {vnsq}, {f2u(EPS)}, {vnsq}")
        k(f"v_rsq_f32 v{dst+1}, {vnsq}")

    def wread(kk, f):
        reg, off = (VL16, kk * 6144) if kk < 10 else (VL16B, (kk - 10) * 6144)
        return f"ds_read_b128 v[{WB+4*f}:{WB+4*f+3}], {reg} offset:{LW+off+f*1024}"

    def xswap(slot):
        a_, b_ = ring(slot), ring(slot + 1)
        k(f"v_swap_b32 v{a_+2}, v{b_}")
        k(f"v_swap_b32 v{a_+3}, v{b_+1}")

    def g1_main(slot0, sched, first=False, xp=False):
        for f in range(6):
            k(wread(0, f))
        if xp:
            xswap(slot0)
        for kk in range(20):
            L = sched.get(kk, [])
            if first and kk == 11:
                k.wait_tag("w9")
                k.barrier()
            nv = sum(1 for x in L if isvm(x))
            done = 0
            for f in range(6):
                for tn in range(2):
                    a = ACC + 8 * f + 4 * tn
                    acc = f"v[{a}:{a+3}]"
                    xr = ring(slot0 + 2 * kk + tn)
                    k(f"v_mfma_f32_16x16x32_bf16 {acc}, v[{WB+4*f}:{WB+4*f+3}], v[{xr}:{xr+3}], {acc if kk else 0}")
                    if tn == 0:
                        while done < nv and done * 6 < (f + 1) * nv - 2:
                            emit_one_vmem(L)
                            done += 1
                        if PREW and not (kk == 19 and f == 5):
                            regs = [f"v{WB+4*((f+1)%6)}"]
                            if f == 5 and not xp:
                                regs += [f"v{ring(slot0+2*kk+2)}", f"v{ring(slot0+2*kk+3)}"]
                            k.need(regs)
                    elif PREW:
                        while L and isinstance(L[0], str) and L[0].startswith("s_add_u32 s10") and done < nv and done * 6 < (f + 2) * nv - 2:
                            emit(L.pop(0))
                if xp and f == 3 and kk < 19:
                    xswap(slot0 + 2 * kk + 2)
                if kk < 19:
                    k(wread(kk + 1, f))
                else:
                    if f == 0:
                        k("v_lshlrev_b32 v255, 4, v3")
                        k(f"v_add_u32 v255, {LC}, v255")
                    k(f"ds_read_b128 v[{WB+4*f}:{WB+4*f+3}], v255 offset:{f*64}")
            for x in L:
                emit(x)

    def g1_epilogue(layer, b, ST, fill=None):
        fill = fill if fill is not None else []
        k(f"s_add_u32 s12, s56, {b*8*HRT + (HSPAN if layer else 0)}")
        O2 = TMP + 20
        for tn in range(2):
            st = ST[tn]
            c1 = TMP + 28
            k(f"v_mul_f32 v{c1}, {f2u(-LOG2E)}, v{st+1}")
            k(f"v_mul_f32 v{c1+1}, v{st+1}, v{st+1}")
            k(f"v_rcp_f32 v{c1+1}, v{c1+1}")
            T = TMP
            for f in range(6):
                a = ACC + 8 * f + 4 * tn
                for i in (0, 2):
                    k(f"v_pk_fma_f32 v[{a+i}:{a+i+1}], v[{WB+4*f+i}:{WB+4*f+i+1}], v[{st}:{st+1}], v[{a+i}:{a+i+1}] op_sel:[0,0,0] op_sel_hi:[1,0,1]")
            for f in range(3):
                g = ACC + 8 * f + 4 * tn
                for i in (0, 2):
                    k(f"v_pk_mul_f32 v[{T+4*f+i}:{T+4*f+i+1}], v[{g+i}:{g+i+1}], v[{c1}:{c1+1}] op_sel:[0,0] op_sel_hi:[1,0]")
            for e in range(12):
                k(f"v_exp_f32 v{T+e}, v{T+e}")
                if e % 4 == 0:
                    emit_one_vmem(fill)
            for f in range(3):
                g = ACC + 8 * f + 4 * tn
                u = g + 24
                for i in (0, 2):
                    k(f"v_pk_mul_f32 v[{g+i}:{g+i+1}], v[{g+i}:{g+i+1}], v[{u+i}:{u+i+1}]")
            for e in range(0, 12, 2):
                k(f"v_pk_fma_f32 v[{T+e}:{T+e+1}], v[{T+e}:{T+e+1}], v[{c1}:{c1+1}], v[{c1}:{c1+1}] op_sel:[0,1,1] op_sel_hi:[1,1,1]")
            for e in range(12):
                k(f"v_rcp_f32 v{T+e}, v{T+e}")
                if e % 4 == 0:
                    emit_one_vmem(fill)
            for f in range(3):
                g = ACC + 8 * f + 4 * tn
                for i in (0, 2):
                    k(f"v_pk_mul_f32 v[{T+4*f+i}:{T+4*f+i+1}], v[{T+4*f+i}:{T+4*f+i+1}], v[{g+i}:{g+i+1}]")
            O = TMP + 12 + 4 * tn
            for p in range(4):
                k(f"v_cvt_pk_bf16_f32 v{O+p}, v{T+2*p}, v{T+2*p+1}")
            for p in range(2):
                k(f"v_cvt_pk_bf16_f32 v{O2+2*tn+p}, v{T+8+2*p}, v{T+9+2*p}")
            if tn:
                k(f"s_add_u32 s13, s12, {HRT}")
            k(f"buffer_store_dwordx4 v[{O}:{O+3}], {VL16}, {srd(SH)}, s{12+tn} offen sc1", tag="hst")
        k(f"v_permlane16_swap_b32 v{O2}, v{O2+2}")
        k(f"v_permlane16_swap_b32 v{O2+1}, v{O2+3}")
        k(f"buffer_store_dwordx4 v[{O2}:{O2+3}], {VH2}, {srd(SH)}, s12 offen offset:1024 sc1", tag="hst")
        for x in fill:
            emit(x)

    def h_flag(layer, b):
        k("s_lshl_b32 s12, s4, 3")
        k("s_add_u32 s12, s12, s3")
        k("s_lshl_b32 s12, s12, 5")
        k("s_add_u32 s12, s12, s5")
        k("s_lshl_b32 s12, s12, 7")
        k(f"s_add_u32 s12, s12, {SY_HF + layer*0x40000 + b*0x4000}")
        k(f"v_mov_b32 v254, {SN}")
        k.wait_tag("hst")
        k(f"buffer_store_dword v254, {VFLAG}, {srd(SSY)}, s12 offen sc1")
        stamp(f"hf{layer}{b}")

    def h_poll_loads(layer, b):
        return [f"s_mov_b32 s13, {SY_HF + layer*0x40000 + b*0x4000}",
                ML(f"buffer_load_dword v{TMP+30}, {VFPOLL}, {srd(SSY)}, s13 offen sc1", 8)]

    def h_poll(layer, b):
        poll(h_poll_loads(layer, b), [f"v{TMP+30}"], None, nl=8, eq=SN)

    TAILK = int(os.environ.get("TAILK", "3"))
    RESF = TMP

    def g2_main(slot0, sched, res, dst):
        def areg(lt, tn):
            if tn == 0 and lt in (0, 1, 4):
                return dst + 4 * (lt if lt < 2 else 2)
            return ACC + 8 * lt + 4 * tn

        def mf(kk, lt, tn):
            a = areg(lt, tn)
            acc = f"v[{a}:{a+3}]"
            hr = ring(slot0 + 2 * kk + tn)
            wr = 4 * (5 * kk + lt)
            k(f"v_mfma_f32_16x16x32_bf16 {acc}, a[{wr}:{wr+3}], v[{hr}:{hr+3}], {acc if kk else 0}")

        for kk in range(12 - TAILK):
            L = sched.get(kk, [])
            nv = sum(1 for x in L if isvm(x))
            done = 0
            idx = 0
            if kk == 5:
                k.barrier()
            for tn in range(2):
                for lt in range(5):
                    mf(kk, lt, tn)
                    idx += 1
                    while done < nv and done * 10 < idx * nv - 5:
                        emit_one_vmem(L)
                        done += 1
            for x in L:
                emit(x)
        L = []
        for kk in range(12 - TAILK, 12):
            L += sched.get(kk, [])
        order = [(0, 1, 0), (1, 1, 1), (2, 0, 2), (3, 0, 3), (2, 1, 4), (3, 1, 5), (4, 1, 7), (4, 0, 6), (0, 0, None), (1, 0, None)]
        pend = []
        fillv = []
        for d in range(6):
            fillv += [f"v_lshlrev_b32 v{RESF+2*d}, 16, v{res+d}", f"v_and_b32 v{RESF+2*d+1}, 0xffff0000, v{res+d}"]
        fillv += [f"v_xor_b32 v{TMP+12+x}, {x << 13}, {VRW}" for x in range(1, 4)]
        for i, (lt, tn, slot) in enumerate(order):
            for kk in range(12 - TAILK, 12):
                mf(kk, lt, tn)
                if i >= 5 and fillv:
                    k(fillv.pop(0))
            if L:
                emit_one_vmem(L)
            if slot is not None:
                a = areg(lt, tn)
                pend.append((i, f"ds_write_b128 {VRW}, v[{a}:{a+3}] offset:{slot*1024}"))
            while pend and pend[0][0] <= i - 2:
                k(pend.pop(0)[1])
        for x in L + fillv:
            emit(x)
        for _, x in pend:
            k(x)

    def g2_reduce(dst, mid=None):
        if mid:
            mid()
        k.wait(lg=0)
        k.barrier()
        n = 0
        for x in range(1, 4):
            for sl_ in (2 * (x - 1), 2 * (x - 1) + 1, 6 + (x & 1)):
                k(f"ds_read_b128 v[{ACC+4*n}:{ACC+4*n+3}], v{TMP+12+x} offset:{sl_*1024}")
                n += 1
        for i in range(0, 12, 2):
            k(f"v_pk_add_f32 v[{dst+i}:{dst+i+1}], v[{dst+i}:{dst+i+1}], v[{RESF+i}:{RESF+i+1}]")
        for x in range(3):
            for i in range(0, 12, 2):
                r = ACC + 12 * x + i
                k(f"v_pk_add_f32 v[{dst+i}:{dst+i+1}], v[{dst+i}:{dst+i+1}], v[{r}:{r+1}]")

    def part_stats(src, b, region, pre_wait=None):
        part_calc(src, TMP + 16)
        part_pub(TMP + 16, b, region, pre_wait)

    def part_calc(src, a):
        q_ = a + 1
        t = TMP + 18
        u = TMP + 4
        k(f"v_pk_add_f32 v[{t}:{t+1}], v[{src+8}:{src+9}], v[{src+10}:{src+11}]")
        k(f"v_pk_mul_f32 v[{t+2}:{t+3}], v[{src+8}:{src+9}], v[{src+8}:{src+9}]")
        k(f"v_pk_fma_f32 v[{t+2}:{t+3}], v[{src+10}:{src+11}], v[{src+10}:{src+11}], v[{t+2}:{t+3}]")
        k(f"v_pk_add_f32 v[{u}:{u+1}], v[{src}:{src+1}], v[{src+2}:{src+3}]")
        k(f"v_pk_mul_f32 v[{t}:{t+1}], v[{t}:{t+1}], s[26:27]")
        k(f"v_pk_mul_f32 v[{t+2}:{t+3}], v[{t+2}:{t+3}], s[26:27]")
        k(f"v_pk_add_f32 v[{u+2}:{u+3}], v[{src+4}:{src+5}], v[{src+6}:{src+7}]")
        for i in range(0, 8, 2):
            k(f"v_pk_fma_f32 v[{t+2}:{t+3}], v[{src+i}:{src+i+1}], v[{src+i}:{src+i+1}], v[{t+2}:{t+3}]")
        k(f"v_pk_add_f32 v[{u}:{u+1}], v[{u}:{u+1}], v[{u+2}:{u+3}]")
        k(f"v_pk_add_f32 v[{t}:{t+1}], v[{t}:{t+1}], v[{u}:{u+1}]")
        k(f"v_add_f32 v{q_}, v{t+2}, v{t+3}")
        k(f"v_add_f32 v{a}, v{t}, v{t+1}")
        k(f"v_permlane16_swap_b32 v{a}, v{q_}")
        k(f"v_add_f32 v{a}, v{a}, v{q_}")
        k(f"v_mov_b32 v{q_}, v{a}")
        k(f"v_permlane32_swap_b32 v{a}, v{q_}")
        k(f"v_add_f32 v{a}, v{a}, v{q_}")
        k(f"v_mov_b32 v{q_}, v{a}")
        k(f"v_permlane16_swap_b32 v{a}, v{q_}")
        k(f"v_or_b32 v{q_}, 0x80000000, v{q_}")

    def part_pub(a, b, region, pre_wait=None):
        k(f"s_add_u32 s12, s23, {region + b*8*2048}") if False else None
        k(f"s_add_u32 s12, s60, {region + b*8*2048}")
        if pre_wait:
            k.wait_tag(pre_wait)
        k(f"buffer_store_dwordx2 v[{a}:{a+1}], {VGW}, {srd(SSY)}, s12 offen sc1")
        stamp(f"pub{2 if region == SY_ST2 else 3}{b}")

    def st2_loads(b, dst):
        return ["s_lshl_b32 s13, s16, 11", f"s_add_u32 s13, s13, {SY_ST2 + b*8*2048}"] + [
            f"buffer_load_dwordx2 v[{dst+2*i}:{dst+2*i+1}], {VGR}, {srd(SSY)}, s13 offen offset:{i*128} sc1"
            for i in range(4)]

    def st3_loads(b, dst):
        return ["s_lshl_b32 s13, s15, 11", f"s_add_u32 s13, s13, {SY_ST3 + b*8*2048}"] + [
            f"buffer_load_dwordx2 v[{dst+8*tn+2*i}:{dst+8*tn+2*i+1}], {VGR}, {srd(SSY)}, s13 offen offset:{tn*2048+i*128} sc1"
            for tn in range(2) for i in range(4)]

    def st1_loads(b, dst):
        return ["s_lshl_b32 s13, s15, 9", f"s_add_u32 s13, s13, {SY_ST1 + b*8*512}"] + [
            f"buffer_load_dwordx2 v[{dst+2*tn}:{dst+2*tn+1}], {VQ128}, {srd(SSY)}, s13 offen offset:{tn*512} sc1"
            for tn in range(2)]

    def sum_granules(g, n, tmp):
        for i in range(1, n):
            k(f"v_pk_add_f32 v[{g}:{g+1}], v[{g}:{g+1}], v[{g+2*i}:{g+2*i+1}]")
        for v in (g, g + 1):
            xsum16(k, f"v{v}", tmp)
            xsum32(k, f"v{v}", tmp)

    def finalize(b, x2, G):
        poll(st2_loads(b, G), [f"v{G+1}", f"v{G+3}", f"v{G+5}", f"v{G+7}"], f"v{TMP+20}")
        stamp(f"p2{b}")
        sum_granules(G, 4, f"v{TMP+20}")
        sp = TMP + 22
        finish_stats(f"v{G}", f"v{G+1}", sp)
        k(f"v_mul_f32 v{sp}, v{sp}, v{sp+1}")
        for d in range(6):
            unpack(k, f"v{TMP}", f"v{TMP+1}", f"v{YR[b]+d}")
            k(f"v_pk_fma_f32 v[{TMP+2}:{TMP+3}], v[{x2+2*d}:{x2+2*d+1}], v[{sp}:{sp+1}], v[{sp}:{sp+1}] op_sel:[0,1,0] op_sel_hi:[1,1,0]")
            k(f"v_pk_fma_f32 v[{x2+2*d}:{x2+2*d+1}], v[{TMP+2}:{TMP+3}], v[{TMP}:{TMP+1}], v[{x2+2*d}:{x2+2*d+1}]")
            k(f"v_cvt_pk_bf16_f32 v{X1R[b]+d}, v{x2+2*d}, v{x2+2*d+1}")
        k(f"s_add_u32 s13, s59, {XSPAN + b*8*XRT}")
        k("s_lshl_b32 s12, s14, 10")
        k("s_add_u32 s12, s12, s13")
        k(f"buffer_store_dwordx4 v[{X1R[b]}:{X1R[b]+3}], {VL16}, {srd(SX)}, s12 offen sc1", tag="xst")
        k(f"buffer_store_dwordx2 v[{X1R[b]+4}:{X1R[b]+5}], {VT4S}, {srd(SX)}, s13 offen offset:2048 sc1", tag="xst")
        for d in range(6):
            unpack(k, f"v{x2+2*d}", f"v{x2+2*d+1}", f"v{X1R[b]+d}")

    def stats1(b, STx):
        poll(st1_loads(b, TMP + 24), [f"v{TMP+25}", f"v{TMP+27}"], f"v{TMP+20}")
        for tn in range(2):
            sum_granules(TMP + 24 + 2 * tn, 1, f"v{TMP+20}")
            finish_stats(f"v{TMP+24+2*tn}", f"v{TMP+25+2*tn}", STx[tn])

    def stats3(b, STx):
        poll(st3_loads(b, TMP), [f"v{TMP+1+2*i}" for i in range(8)], f"v{TMP+20}")
        for tn in range(2):
            sum_granules(TMP + 8 * tn, 4, f"v{TMP+20}")
            finish_stats(f"v{TMP+8*tn}", f"v{TMP+8*tn+1}", STx[tn])

    def res_loads(b):
        L = [f"s_add_u32 s13, s62, {b*4*XBLK}", "s_lshl_b32 s12, s14, 11", "s_add_u32 s12, s12, s13",
             "s_add_u32 s13, s13, 4096"]
        for R, sr in ((X1R[b], SX), (YR[b], SY_)):
            L += [f"buffer_load_dwordx2 v[{R}:{R+1}], {VXP}, {srd(sr)}, s12 offen sc1",
                  f"buffer_load_dwordx2 v[{R+2}:{R+3}], {VXP}, {srd(sr)}, s12 offen offset:256 sc1",
                  f"buffer_load_dwordx2 v[{R+4}:{R+5}], {VL16}, {srd(sr)}, s13 offen sc1"]
        return L

    def out_store(b, src):
        for d in range(6):
            k(f"v_cvt_pk_bf16_f32 v{TMP+d}, v{src+2*d}, v{src+2*d+1}")
        k(f"v_mul_u32_u24 v{TMP+8}, 1280, {VROW}")
        k("s_mul_i32 s12, s8, 160")
        k(f"s_add_u32 s12, s12, {b*128*1280}")
        k("s_lshl_b32 s13, s14, 6")
        k("s_add_u32 s13, s13, s12")
        k(f"v_lshl_add_u32 v{TMP+9}, v3, 4, v{TMP+8}")
        k(f"v_lshl_add_u32 v{TMP+10}, v3, 3, v{TMP+8}")
        k("s_lshl_b32 s10, s14, 31")
        k(f"v_or_b32 v{TMP+10}, s10, v{TMP+10}")
        k(f"buffer_store_dwordx4 v[{TMP}:{TMP+3}], v{TMP+9}, {srd(SO)}, s13 offen")
        k(f"buffer_store_dwordx2 v[{TMP+4}:{TMP+5}], v{TMP+10}, {srd(SO)}, s12 offen offset:128")

    def g1b_sched(layer, extra):
        sched = {}
        hl = [h_loads(layer, 0, kk, 80 + 2 * kk) for kk in range(12)]
        for kk in range(20):
            L = []
            if kk + DIST < 20:
                L += x_loads(layer, 1, kk + DIST, 40 + 2 * (kk + DIST))
            L += extra.get(kk, [])
            if kk == 3:
                L += [lambda: h_flag(layer, 0)]
            if kk == 7:
                L += h_poll_loads(layer, 0)
            if kk == 12:
                L = [lambda: h_poll(layer, 0)] + h_pf(layer, 0) + L
            if kk >= 14:
                while hl and (12 - len(hl)) + 8 < kk and len([x for x in L if isvm(x)]) < 6:
                    L += hl.pop(0)
            sched[kk] = L
        return sched, hl


    k.prof_begin()
    k(f"s_cmp_ge_u32 s2, {k.grid}")
    k.branch("s_cbranch_scc1 main_end", flush=False)
    k("s_load_dwordx2 s[24:25], s[0:1], 96")
    k("s_load_dwordx2 s[26:27], s[0:1], 0")
    if DIAG:
        k("s_mov_b32 s101, 0")
    k("s_getpc_b64 s[60:61]")
    k.raw("mega_pc:")
    k(f"s_sub_u32 s60, s60, mega_pc-{KNAME}")
    k("s_subb_u32 s61, s61, 0")
    k(f"s_mov_b32 s62, main_code_end-{KNAME}")
    k("s_mov_b32 s63, 0x00020000")
    k("s_lshr_b32 s10, s2, 3")
    k("s_lshl_b32 s10, s10, 11")
    k("v_lshrrev_b32 v2, 4, v0")
    k("v_lshlrev_b32 v1, 7, v0")
    k("v_lshl_or_b32 v1, v2, 24, v1")
    k("buffer_load_dword v255, v1, s[60:63], s10 offen")
    in_srd(k, SDBG, 88, 256)
    k("v_lshrrev_b32 v1, 6, v0")
    k("v_readfirstlane_b32 s3, v1")
    k("v_and_b32 v1, 63, v0")
    k("v_and_b32 v2, 15, v0")
    k("v_bfe_u32 v3, v0, 4, 2")
    k(f"v_lshlrev_b32 {VL16}, 4, v1")
    def ffn_ids():
        if MAP == 1:
            k("s_and_b32 s4, s2, 7")
            k("s_lshr_b32 s5, s2, 3")
            k("s_lshr_b32 s7, s5, 3")
            k("s_and_b32 s8, s5, 7")
        elif MAP == 4:
            k("s_and_b32 s4, s2, 4")
            k("s_lshr_b32 s10, s2, 6")
            k("s_add_u32 s4, s4, s10")
            k("s_bfe_u32 s5, s2, 0x30003")
            k("s_and_b32 s10, s2, 3")
            k("s_lshl_b32 s10, s10, 3")
            k("s_add_u32 s5, s5, s10")
            k("s_and_b32 s7, s5, 3")
            k("s_lshr_b32 s8, s5, 2")
        else:
            k("s_and_b32 s4, s2, 6")
            k("s_lshr_b32 s10, s2, 7")
            k("s_add_u32 s4, s4, s10")
            k("s_bfe_u32 s5, s2, 0x40003")
            k("s_and_b32 s10, s2, 1")
            k("s_lshl_b32 s10, s10, 4")
            k("s_add_u32 s5, s5, s10")
            k("s_and_b32 s7, s5, 3")
            k("s_lshr_b32 s8, s5, 2")
        k("s_and_b32 s9, s3, 1")
        k("s_lshr_b32 s14, s3, 1")
        k("s_lshl_b32 s6, s4, 4")
        k("s_lshl_b32 s10, s3, 1")
        k("s_add_u32 s15, s6, s10")
        k("s_lshl_b32 s10, s7, 1")
        k("s_add_u32 s16, s6, s10")
        k("s_add_u32 s16, s16, s9")
        k(f"s_mul_i32 s17, s15, {XRT}")
        k("s_mul_i32 s18, s3, 3072")
        k(f"s_mul_i32 s19, s5, {WGU_M}")
        k("s_add_u32 s19, s19, s18")
        k("s_lshl_b32 s10, s8, 2")
        k("s_add_u32 s10, s10, s3")
        k("s_mul_i32 s10, s10, 61440")
        k("s_lshl_b32 s11, s14, 11")
        k("s_add_u32 s20, s10, s11")
        k("s_xor_b32 s11, s11, 2048")
        k("s_add_u32 s21, s10, s11")
        k("s_add_u32 s22, s10, 4096")
        k.srd(SWS, 24, WSB)
        k.srd(SW, 24, WGUB, WS_WGU)
        k.srd(SWD, 24, WDB, WS_WD)
        k.srd(SSY, 24, SYNCB, WS_SYNC)


    def wpoll_setup(va):
        k(f"v_lshrrev_b32 {va}, 1, v1")
        k(f"v_lshlrev_b32 {va}, 4, {va}")
        k("v_and_b32 v9, 1, v1")
        k("s_lshr_b32 s10, s5, 2")
        k("s_lshl_b32 s10, s10, 1")
        k(f"v_add3_u32 {va}, {va}, v9, s10")
        k("s_lshl_b32 s10, s3, 3")
        k("s_add_u32 s10, s10, 56")
        k("v_add_u32 v9, s10, v1")
        k("v_cmp_gt_u32 vcc, 8, v1")
        k(f"v_cndmask_b32 {va}, v9, {va}, vcc")
        k(f"v_lshlrev_b32 {va}, 7, {va}")
        k(f"v_add_u32 {va}, {SY_PF}, {va}")
        return [ML(f"buffer_load_dword v13, {va}, {srd(SSY)}, 0 offen sc1", 16)]

    k(f"s_cmp_lt_u32 s2, {NPREP}")
    k.branch("s_cbranch_scc1 main_prep", flush=False)
    saved0 = (list(k.vm), list(k.lg))
    in_srd(k, SA, 8, S * D * 2)
    in_srd(k, SB, 16, S * D * 2)
    in_srd(k, SW, 24, D * 8)
    in_srd(k, SWD, 32, 4096)
    in_srd(k, SSY, 40, D * 2)
    k(f"s_sub_u32 s56, s2, {NPREP}")
    k("s_lshr_b32 s57, s56, 4")
    k("s_and_b32 s58, s56, 15")
    k("s_lshl_b32 s59, s56, 2")
    k("s_add_u32 s60, s59, s3")
    k(f"s_mul_i32 s61, s3, {WREG}")
    k(f"s_add_u32 s61, s61, {CB}")
    k("v_lshrrev_b32 v4, 3, v1")
    k("v_and_b32 v5, 7, v1")
    k("s_lshl_b32 s10, s58, 7")
    k("s_lshl_b32 s11, s3, 5")
    k("s_add_u32 s10, s10, s11")
    k("v_lshlrev_b32 v6, 2, v4")
    k("v_add_u32 v6, s10, v6")
    k("v_mul_u32_u24 v7, 1280, v6")
    k("v_lshl_add_u32 v7, v5, 4, v7")
    k("s_lshl_b32 s12, s57, 7")
    k("v_add_u32 v7, s12, v7")
    KR, VR, WR = 16, 44, 60
    for j in (3, 4, 5, 6, 2, 1, 0):
        off = (j - 3) * 1280
        if off < 0:
            k(f"v_add_u32 v8, {off & 0xffffffff:#x}, v7")
            k(f"buffer_load_dwordx4 v[{KR+4*j}:{KR+4*j+3}], v8, {srd(SA)}, 0 offen")
        else:
            k(f"buffer_load_dwordx4 v[{KR+4*j}:{KR+4*j+3}], v7, {srd(SA)}, 0 offen offset:{off}")
    for i in range(4):
        k(f"buffer_load_dwordx4 v[{VR+4*i}:{VR+4*i+3}], v7, {srd(SB)}, 0 offen offset:{i*1280}")
    k("v_lshlrev_b32 v9, 6, v5")
    k("s_lshl_b32 s12, s57, 9")
    for i in range(4):
        k(f"buffer_load_dwordx4 v[{WR+4*i}:{WR+4*i+3}], v9, {srd(SW)}, s12 offen offset:{16*i}")
    k("s_lshl_b32 s12, s60, 12")
    k(f"s_add_u32 s{SWD}, s{SWD}, s12")
    k(f"s_addc_u32 s{SWD+1}, s{SWD+1}, 0")
    k.srd(SWS, 26, S * D * 2)
    k("s_cmp_lt_u32 s56, 128")
    k("s_cselect_b32 s63, 0, 0x40000000")
    k(f"s_mul_i32 s62, s56, {XRT}")
    k("s_add_u32 s62, s62, s63")
    stamp("issued")
    k("s_lshl_b32 s10, s3, 6")
    k("s_sub_u32 s10, 248, s10")
    k("v_lshlrev_b32 v8, 3, v4")
    k("v_sub_u32 v8, s10, v8")
    k("v_lshlrev_b32 v9, 4, v5")
    k("v_xor_b32 v8, v8, v9")
    k("v_lshl_add_u32 v8, v5, 11, v8")
    WF = 80
    for c in range(8):
        unpack(k, f"v{WF+4*c}", f"v{WF+4*c+1}", f"v{WR+2*c}")
        unpack(k, f"v{WF+4*c+2}", f"v{WF+4*c+3}", f"v{WR+2*c+1}")
    k.wait(vm=0)
    stamp("Tld")
    k("v_mov_b32 v12, 0")
    zl0 = [ML(f"buffer_load_dword v13, v12, {srd(SDBG)}, 0 offen sc1", 1)]
    emit(zl0[0])
    k.srd(SA, 24, WSB)
    KF, VF, OUT = 112, 128, 136
    for cp in range(4):
        for j in range(7):
            unpack(k, f"v{KF+2*j}", f"v{KF+2*j+1}", f"v{KR+4*j+cp}")
        for i in range(4):
            unpack(k, f"v{VF+2*i}", f"v{VF+2*i+1}", f"v{VR+4*i+cp}")
        for h in range(2):
            c = 2 * cp + h
            O = OUT + 4 * h
            for i in range(4):
                k(f"v_mul_f32 v{O+i}, v{KF+2*(i+0)+h}, v{WF+4*c+3}")
            for t in (2, 1, 0):
                for i in range(4):
                    k(f"v_fmac_f32 v{O+i}, v{KF+2*(i+3-t)+h}, v{WF+4*c+t}")
            for i in range(4):
                k(f"v_mul_f32 v{O+i}, v{O+i}, v{VF+2*i+h}")
            p = 144 + 2 * h
            k(f"v_cvt_pk_bf16_f32 v{p}, v{O+3}, v{O+2}")
            k(f"v_cvt_pk_bf16_f32 v{p+1}, v{O+1}, v{O+0}")
            k(f"ds_write_b64 v8, v[{p}:{p+1}] offset:{c*256}")
    k("s_lshl_b32 s10, s3, 12")
    k("v_lshlrev_b32 v8, 8, v3")
    k("v_add_u32 v8, s10, v8")
    k("s_lshl_b32 s11, s3, 1")
    for jj in range(2):
        k(f"s_add_u32 s12, s11, {jj}")
        k(f"v_xor_b32 v{14+jj}, s12, v2")
        k(f"v_lshl_add_u32 v{14+jj}, v{14+jj}, 4, v8")
    k("v_lshlrev_b32 v9, 12, v3")
    k("v_lshl_add_u32 v9, v2, 4, v9")
    k("s_lshl_b32 s10, s57, 6")
    k("s_lshl_b32 s11, s3, 4")
    k("s_add_u32 s10, s10, s11")
    k("s_lshl_b32 s10, s10, 12")
    k("s_lshl_b32 s11, s58, 8")
    k("s_sub_u32 s11, 3840, s11")
    k("s_add_u32 s10, s10, s11")
    k.wait(lg=0)
    k.barrier()
    stamp("kv")
    for j in range(4):
        k(f"ds_read_b128 v[{16+4*j}:{19+4*j}], v{14+(j>>1)} offset:{j*1024}")
    for j in range(4):
        k(f"buffer_store_dwordx4 v[{16+4*j}:{19+4*j}], v9, {srd(SA)}, s10 offen sc1", tag="kvst")
        k("s_add_u32 s10, s10, 16384")
    HB = 160
    for p in range(4):
        k(f"buffer_load_dwordx4 v[{HB+8*p+4}:{HB+8*p+7}], {VL16}, {srd(SWD)}, 0 offen offset:{p*1024}")
        k(f"v_add_u32 v9, {(p*1024-8) & 0xffffffff:#x}, {VL16}")
        k(f"buffer_load_dwordx2 v[{HB+8*p+2}:{HB+8*p+3}], v9, {srd(SWD)}, 0 offen")
    k("s_lshl_b32 s12, s60, 1")
    k("v_mov_b32 v9, s12")
    k(f"buffer_load_ushort v11, v9, {srd(SSY)}, 0 offen")
    k("s_mul_i32 s12, s3, 320")
    k("s_add_u32 s12, s12, s62")
    k("v_mul_u32_u24 v9, 1280, v2")
    k("v_lshl_add_u32 v9, v3, 4, v9")
    QR = 192
    for i in range(5):
        k(f"buffer_load_dwordx4 v[{QR+4*i}:{QR+4*i+3}], v9, {srd(SWS)}, s12 offen offset:{64*i}")
    ffn_ids()
    k("v_mov_b32 v32, 0")
    k("v_mov_b32 v33, 0")
    k("v_lshlrev_b32 v8, 3, v1")
    k("v_add_u32 v8, s61, v8")
    k(f"ds_write_b64 v8, v[32:33] offset:{UOFF+4096}")
    k("v_bfe_u32 v8, v1, 2, 2")
    k(f"v_mul_u32_u24 v8, {CP}, v8")
    k("v_and_b32 v9, 3, v1")
    k("v_lshl_add_u32 v8, v9, 3, v8")
    k("v_add_u32 v8, s61, v8")
    k("ds_write_b64 v8, v[32:33]")
    k(f"v_add_u32 v8, s61, {VL16}")

    def copies(p):
        T = 48 + 12 * (p & 1)
        b = HB + 8 * p
        seq = [f"v{b+2+i}" for i in range(6)]
        off = 32 + p * 1024
        k(f"ds_write_b128 v8, v[{b+4}:{b+7}] offset:{off}")
        for j in range(4):
            k(f"v_alignbyte_b32 v{T+j}, {seq[2+j]}, {seq[1+j]}, 2")
        k(f"ds_write_b128 v8, v[{T}:{T+3}] offset:{off+CP}")
        for j in range(4):
            k(f"v_mov_b32 v{T+4+j}, {seq[1+j]}")
        k(f"ds_write_b128 v8, v[{T+4}:{T+7}] offset:{off+2*CP}")
        for j in range(4):
            k(f"v_alignbyte_b32 v{T+8+j}, {seq[1+j]}, {seq[j]}, 2")
        k(f"ds_write_b128 v8, v[{T+8}:{T+11}] offset:{off+3*CP}")

    poll(zl0, ["v13"], None, sleep=8, nl=1)
    k(f"v_readfirstlane_b32 {SN}, v13")
    k("v_cmp_eq_u32 vcc, 0, v1")
    k(f"v_mov_b32 v14, {OOB:#x}")
    k("v_cndmask_b32 v14, v14, v1, vcc")
    k("s_lshl_b32 s10, s56, 2")
    k("s_add_u32 s10, s10, s3")
    k("s_lshl_b32 s10, s10, 7")
    k(f"s_add_u32 s10, s10, {WS_SYNC + SY_GF}")
    k(f"v_mov_b32 v15, {SN}")
    k.wait_tag("kvst")
    k(f"buffer_store_dword v15, v14, {srd(SWS)}, s10 offen sc1")
    stamp("gf")
    for p in range(4):
        copies(p)
    k("s_mul_i32 s12, s3, 5120")
    k("s_add_u32 s12, s12, s62")
    k(f"s_add_u32 s12, s12, {WS_QX}")
    k("s_add_u32 s13, s12, 4096")
    k("v_mov_b32 v212, 0x3f803f80")
    k("v_mov_b32 v214, 0")
    k("v_mov_b32 v215, 0")
    for i in range(5):
        k(f"buffer_store_dwordx4 v[{QR+4*i}:{QR+4*i+3}], {VL16}, {srd(SWS)}, s{12 if i < 4 else 13} offen offset:{(i%4)*1024} sc1")
        for d in range(4):
            k(f"v_dot2c_f32_bf16 v214, v{QR+4*i+d}, v212")
            k(f"v_dot2c_f32_bf16 v215, v{QR+4*i+d}, v{QR+4*i+d}")
    for v in ("v214", "v215"):
        xsum16(k, v, "v213")
        xsum32(k, v, "v213")
    k("v_lshlrev_b32 v213, 3, v2")
    k("s_lshl_b32 s12, s3, 7")
    k("v_add_u32 v224, 73728, v213")
    k("v_add_u32 v216, s12, v224")
    k("ds_write_b64 v216, v[214:215]")
    k.wait(lg=0)
    k.barrier()
    for w in range(4):
        k(f"ds_read_b64 v[{216+2*w}:{217+2*w}], v224 offset:{w*128}")
    k("v_pk_add_f32 v[216:217], v[216:217], v[218:219]")
    k("v_pk_add_f32 v[220:221], v[220:221], v[222:223]")
    k("v_pk_add_f32 v[216:217], v[216:217], v[220:221]")
    k(f"v_mul_f32 v216, {f2u(1.0/D)}, v216")
    k(f"v_mul_f32 v217, {f2u(1.0/D)}, v217")
    k("v_fma_f32 v217, -v216, v216, v217")
    k("v_max_f32 v217, 0, v217")
    k(f"v_add_f32 v217, {f2u(EPS)}, v217")
    k("v_rsq_f32 v219, v217")
    k("v_mul_f32 v218, v216, v219")
    k("s_lshl_b32 s12, s56, 7")
    k("s_add_u32 s12, s12, s63")
    k(f"s_add_u32 s12, s12, {WS_QST}")
    k("s_cmp_eq_u32 s3, 0")
    k("s_cselect_b32 s12, s12, 0x40000000")
    ML(f"buffer_store_dwordx2 v[218:219], v213, {srd(SWS)}, s12 offen sc1", 16)()
    k("v_sub_u32 v7, 3, v2")
    k("v_and_b32 v7, 3, v7")
    k("v_add3_u32 v8, v2, v7, 1")
    k("v_lshl_add_u32 v8, v3, 3, v8")
    k("v_lshlrev_b32 v8, 1, v8")
    k(f"v_mul_u32_u24 v7, {CP}, v7")
    k("v_add3_u32 v4, v7, v8, s61")
    k("v_lshlrev_b32 v7, 5, v2")
    k("v_lshlrev_b32 v8, 4, v3")
    k("v_sub_u32 v8, v8, v7")
    k(f"v_add_u32 v8, {UOFF+480}, v8")
    k("v_add_u32 v5, s61, v8")
    k("v_lshlrev_b32 v11, 16, v11")
    k("v_lshlrev_b32 v6, 7, v1")
    k("s_lshl_b32 s12, s57, 13")
    k(f"s_add_u32 s12, s12, {WS_SYNC + SY_GF}")
    gl = [f"buffer_load_dword v13, v6, {srd(SWS)}, s12 offen sc1"]
    k(gl[0])
    poll(gl, ["v13"], None, sleep=2, eq=SN)
    stamp("gp")
    k(f"s_add_u32 m0, s61, {UOFF}")
    k("s_lshl_b32 s12, s60, 12")
    for p in (3, 2, 1, 0):
        k(f"buffer_load_dwordx4 {VL16}, {srd(SWS)}, s12 offen offset:{p*1024} sc1 lds", tag="u")
    k("s_lshl_b32 s12, s60, 7")
    k("s_add_u32 s12, s12, s63")
    k(f"s_add_u32 s12, s12, {SY_QF}")
    k(f"buffer_store_dword v15, v14, {srd(SSY)}, s12 offen sc1")
    AB = [16, 48]
    CACC = 80
    BR = 112

    def rdA(n):
        I = n if n < 8 else n - 8
        L = []
        for r in range(8):
            i = 8 * I + r
            b = AB[n & 1] + 4 * r
            L.append(f"ds_read_b64 v[{b}:{b+1}], v4 offset:{64*i}")
            L.append(f"ds_read_b64 v[{b+2}:{b+3}], v4 offset:{64*i+8}")
        return L

    def bslot(C):
        return C if C < 4 else 7 - C

    def rdB(C):
        return [f"ds_read_b128 v[{BR+32*bslot(C)+4*r}:{BR+32*bslot(C)+4*r+3}], v5 offset:{64*(56-(8*C-r))}" for r in range(8)]

    k.wait(lg=0)
    k.wait_tag("u")
    stamp("ready")
    a0, b0 = rdA(0), rdB(0)
    for r in range(8):
        k(a0[2 * r]); k(a0[2 * r + 1]); k(b0[r])
    started = set()
    early = []
    tot = 0
    SBQ = 240
    k("s_lshl_b32 s10, s3, 12")
    k("v_lshlrev_b32 v6, 3, v1")
    k("v_add_u32 v6, s10, v6")
    qsl = [f"s_mov_b32 s13, {WS_QST}"] + [
        f"buffer_load_dwordx2 v[{SBQ+2*it}:{SBQ+2*it+1}], v6, {srd(SWS)}, s13 offen offset:{it*512} sc1" for it in range(8)]
    k(f"v_mul_u32_u24 v7, {XRT}, v3")
    k("v_lshl_add_u32 v7, v2, 4, v7")
    k(f"s_mul_i32 s57, s3, {32*XRT}")
    k("s_lshr_b32 s10, s56, 1")
    k("s_lshl_b32 s10, s10, 8")
    k("s_add_u32 s57, s57, s10")
    k("s_and_b32 s10, s56, 1")
    k("s_lshl_b32 s10, s10, 3")
    k("s_add_u32 s57, s57, s10")
    pcl = wpoll_setup("v12")
    k("s_lshl_b32 s10, s3, 14")
    k(f"s_add_u32 s62, s10, {SY_QF}")
    k("s_add_u32 s63, s62, 8192")
    k("v_lshlrev_b32 v8, 7, v1")
    qfl = [f"buffer_load_dword v9, v8, {srd(SSY)}, s62 offen sc1"]
    qfl2 = [f"buffer_load_dword v0, v8, {srd(SSY)}, s63 offen sc1"]
    wl = []
    for p in range(6):
        wl += wgu_dma(p)
    for i in range(NE1):
        wl += wd_load(i)
    QB = BR
    qxl = []
    for it in range(8):
        qxl += [f"s_add_u32 s12, s57, {WS_QX + it*4*XRT}",
                f"buffer_load_dwordx2 v[{QB+2*it}:{QB+2*it+1}], v7, {srd(SWS)}, s12 offen sc1"]
    for n in range(12):
        I = n if n < 8 else n - 8
        Cs = [C for C in (range(4) if n < 8 else range(4, 8)) if C + I <= 7]
        pend = rdA(n + 1) if n < 11 else []
        bpend = {5: rdB(4), 6: rdB(5), 7: rdB(6), 8: rdB(7)}.get(n) or []
        nm = 8 * len(Cs)
        cnt = 0
        if n == PPN - 1:
            emit(pcl[0])
        if n == PPN:
            poll(pcl, ["v13"], None, sleep=4, nl=16, eq=SN)
            stamp("pp")
        if n == 5:
            early = qfl + qfl2
        if n == 8:
            poll(qfl, ["v9"], None, sleep=4, eq=SN)
            poll(qfl2, ["v0"], None, sleep=4, eq=SN)
            early = list(qsl)
        if n == 9:
            early = early + qxl
        for C in Cs:
            c = C + I
            nb = rdB(C + 1) if (n == 0 and C < 3) else []
            for r in range(8):
                if nb:
                    k(nb.pop(0))
                a = AB[n & 1] + 4 * r
                b = BR + 32 * bslot(C) + 4 * r
                acc = f"v[{CACC+4*c}:{CACC+4*c+3}]"
                src = acc if c in started else "0"
                started.add(c)
                k(f"v_mfma_f32_16x16x32_bf16 {acc}, v[{a}:{a+3}], v[{b}:{b+3}], {src}")
                cnt += 1
                tot += 1
                while pend and (16 - len(pend)) * max(nm - 4, 4) < cnt * 16:
                    k(pend.pop(0))
                if bpend and cnt % 2 == 0:
                    k(bpend.pop(0))
                if early:
                    if tot % 2 == 0:
                        emit_one_vmem(early)
                elif n >= PPN and tot % EVERY == 0 and tot <= LASTW:
                    emit_one_vmem(wl)
        for x in pend + bpend:
            k(x)
    stamp("mfma")
    for x in early:
        emit(x)
    k("v_lshlrev_b32 v8, 5, v2")
    k("v_lshl_add_u32 v8, v3, 3, v8")
    k(f"v_sub_u32 v9, {UOFF+504}, v8")
    k("v_add_u32 v9, s61, v9")
    k("v_add_u32 v8, s61, v8")
    KV = 16
    for c in range(8):
        k(f"ds_read_b64 v[{KV+2*c}:{KV+2*c+1}], v9 offset:{(7-c)*512}")
    for c in range(8):
        a = CACC + 4 * c
        unpack(k, "v40", "v41", f"v{KV+2*c}")
        unpack(k, "v42", "v43", f"v{KV+2*c+1}")
        k(f"v_fmac_f32 v{a+3}, v40, v11")
        k(f"v_fmac_f32 v{a+2}, v41, v11")
        k(f"v_fmac_f32 v{a+1}, v42, v11")
        k(f"v_fmac_f32 v{a+0}, v43, v11")
        o = 44 + 2 * (c & 1)
        k(f"v_cvt_pk_bf16_f32 v{o}, v{a}, v{a+1}")
        k(f"v_cvt_pk_bf16_f32 v{o+1}, v{a+2}, v{a+3}")
        k(f"ds_write_b64 v8, v[{o}:{o+1}] offset:{c*512}")
    k("v_bfe_u32 v8, v1, 2, 2")
    k(f"v_mul_u32_u24 v8, {WREG}, v8")
    k("v_and_b32 v9, 3, v1")
    k("v_lshl_add_u32 v8, v9, 3, v8")
    k("v_lshl_add_u32 v8, v3, 5, v8")
    k("s_lshl_b32 s10, s3, 10")
    k(f"s_add_u32 s10, s10, {CB}")
    k("v_add_u32 v8, s10, v8")
    k("v_and_b32 v9, 1, v3")
    k("v_lshrrev_b32 v7, 1, v3")
    k("v_lshl_add_u32 v7, v9, 1, v7")
    k(f"v_mul_u32_u24 v7, {XBLK}, v7")
    k("v_lshl_add_u32 v7, v2, 4, v7")
    k(f"s_mul_i32 s57, s3, {16*XBLK}")
    k("s_lshl_b32 s13, s56, 8")
    k("s_add_u32 s57, s57, s13")
    k.wait(lg=0)
    k.barrier()
    YB = 64
    for it in range(8):
        k(f"ds_read_b64_tr_b16 v[{YB+2*it}:{YB+2*it+1}], v8 offset:{it*128}")
    XB_ = 144
    for it in range(8):
        y0, q0, st = YB + 2 * it, QB + 2 * it, SBQ + 2 * it
        for d in range(2):
            unpack(k, "v16", "v17", f"v{y0+d}")
            unpack(k, "v18", "v19", f"v{q0+d}")
            k(f"v_pk_fma_f32 v[20:21], v[18:19], v[{st}:{st+1}], v[{st}:{st+1}] op_sel:[0,1,0] op_sel_hi:[1,1,0] neg_lo:[0,0,1] neg_hi:[0,0,1]")
            k("v_pk_fma_f32 v[18:19], v[20:21], v[16:17], v[18:19]")
            k(f"v_cvt_pk_bf16_f32 v{XB_+2*it+d}, v18, v19")
        if it & 1:
            o = XB_ + 2 * (it - 1)
            k(f"v_permlane16_swap_b32 v{o}, v{o+2}")
            k(f"v_permlane16_swap_b32 v{o+1}, v{o+3}")
            k(f"s_add_u32 s12, s57, {WS_X1 + (it-1)*2*XBLK}")
            k(f"buffer_store_dwordx4 v[{o}:{o+3}], v7, {srd(SWS)}, s12 offen sc1", tag="cst")
    for it in range(0, 8, 2):
        o = YB + 2 * it
        k(f"v_permlane16_swap_b32 v{o}, v{o+2}")
        k(f"v_permlane16_swap_b32 v{o+1}, v{o+3}")
        k(f"s_add_u32 s12, s57, {WS_Y + it*2*XBLK}")
        k(f"buffer_store_dwordx4 v[{o}:{o+3}], v7, {srd(SWS)}, s12 offen sc1", tag="cst")
    stamp("cst")
    k("s_mul_i32 s12, s3, 160")
    k("s_add_u32 s12, s12, s56")
    k("s_lshl_b32 s12, s12, 7")
    k(f"s_add_u32 s12, s12, {SY_CF}")
    for _ in range(NB):
        emit_one_vmem(wl)
    k.wait_tag("cst")
    k(f"buffer_store_dword v15, v14, {srd(SSY)}, s12 offen sc1")
    stamp("cf")
    print("weight loads after cf:", sum(1 for x in wl if isvm(x)))
    for x in wl:
        emit(x)
    k.wait(lg=0)
    k.flush_hazards()
    k.branch("s_branch main_join", flush=False)

    k.label("main_prep", flush=False)
    k.vm, k.lg = list(saved0[0]), list(saved0[1])
    k("s_or_b32 s10, s2, s3")
    k("s_cmp_lg_u32 s10, 0")
    k.branch("s_cbranch_scc1 main_nonce_done", flush=False)
    k("s_memrealtime s[56:57]")
    k("s_or_b32 s56, s56, 1")
    k("v_mov_b32 v13, s56")
    k("v_mov_b32 v11, 0")
    ML(f"buffer_store_dword v13, v11, {srd(SDBG)}, 0 offen sc1", 1)()
    k.label("main_nonce_done", flush=False)
    k.vm, k.lg = list(saved0[0]), list(saved0[1])
    k("s_and_b32 s10, s2, 1")
    k("s_lshl_b32 s10, s10, 3")
    k("s_add_u32 s10, s10, 56")
    k("s_cmp_lt_u32 s2, 64")
    k("s_cselect_b32 s10, s10, 72")
    k(f"s_load_dwordx2 s[{SA}:{SA+1}], s[0:1], s10")
    k(f"s_mov_b32 s{SA+2}, {D*F*2}")
    k(f"s_mov_b32 s{SA+3}, 0x00020000")
    k(f"v_mov_b32 v14, {OOB:#x}")
    k("s_mov_b32 s58, 0x05040100")
    k("s_mov_b32 s59, 0x07060302")
    k("v_mov_b32 v12, 0x3f803f80")
    ffn_ids()
    k("v_mov_b32 v244, 0")
    zl = [ML(f"buffer_load_dword v245, v244, {srd(SDBG)}, 0 offen sc1", 1)]

    def q_job():
        emit(zl[0])
        for i in range(4):
            k(f"v_mov_b32 v{240+i}, 0")
        k.srd(SB, 24, SY_HF, WS_SYNC)
        k("s_lshl_b32 s12, s2, 13")
        k("v_lshlrev_b32 v204, 4, v0")
        for i in range(2):
            k(f"buffer_store_dwordx4 v[240:243], v204, {srd(SB)}, s12 offen sc1")
            k("s_add_u32 s12, s12, 4096")

    def q_flag():
        poll(zl, ["v245"], None, sleep=4, nl=1)
        k(f"v_readfirstlane_b32 {SN}, v245")
        k(f"v_mov_b32 v15, {SN}")

    def item_idx(magic, n):
        for ps in range(2):
            o, ch = f"v{4+2*ps}", f"v{5+2*ps}"
            k(f"v_add_u32 v8, {256*ps}, v0")
            k(f"v_mul_u32_u24 {o}, {magic}, v8")
            k(f"v_lshrrev_b32 {o}, 16, {o}")
            k(f"v_mul_u32_u24 {ch}, {n}, {o}")
            k(f"v_sub_u32 {ch}, v8, {ch}")

    def item_loads(pitch):
        k(f"v_mul_u32_u24 v8, {8*pitch}, v4")
        k("v_lshl_add_u32 v8, v5, 4, v8")
        k(f"v_mul_u32_u24 v9, {8*pitch}, v6")
        k("v_lshl_add_u32 v9, v7, 4, v9")
        k("v_cmp_gt_u32 vcc, 224, v0")
        k("v_cndmask_b32 v9, v14, v9, vcc")
        for ps in range(2):
            k("s_mov_b32 s11, s10")
            for i in range(8):
                k(f"buffer_load_dwordx4 v[{16+32*ps+4*i}:{19+32*ps+4*i}], v{8+ps}, {srd(SA)}, s11 offen")
                if i < 7:
                    k(f"s_add_u32 s11, s11, {pitch}")
        q_job()

    def stage(magic, sh, n, blk, opart, pairb, npair, second):
        for ps in range(2):
            o, ch = f"v{4+2*ps}", f"v{5+2*ps}"
            k(f"v_mul_u32_u24 v161, {magic}, {ch}")
            k(f"v_lshrrev_b32 v161, {sh}, v161")
            k(f"v_mul_u32_u24 v162, {n}, v161")
            k(f"v_sub_u32 {ch}, {ch}, v162")
            opart(o)
            k(f"v_mul_u32_u24 v161, {blk}, v161")
            k("v_add_u32 v160, v160, v161")
            k(f"v_lshrrev_b32 v161, 2, {ch}")
            k(f"v_mul_u32_u24 v161, {pairb}, v161")
            k("v_add_u32 v160, v160, v161")
            k(f"v_and_b32 v161, 3, {ch}")
            k("v_lshlrev_b32 v162, 6, v161")
            k("v_lshlrev_b32 v163, 7, v161")
            k(f"v_cmp_gt_u32 vcc, {npair}, {ch}")
            k("v_cndmask_b32 v162, v163, v162, vcc")
            k(f"v_add_u32 {o}, v160, v162")
            k("v_mov_b32 v162, 64")
            k(f"v_mov_b32 v163, {second}")
            k("v_cndmask_b32 v162, v162, v163, vcc")
            k(f"v_add_u32 {ch}, {o}, v162")
        k("v_cmp_gt_u32 vcc, 224, v0")
        k("v_mov_b32 v160, 61440")
        k("v_cndmask_b32 v6, v160, v6, vcc")
        k("v_cndmask_b32 v7, v160, v7, vcc")
        for ps in range(2):
            src = 16 + 32 * ps
            for e in range(8):
                o = 160 + 4 * e
                for p in range(4):
                    k(f"v_perm_b32 v{o+p}, v{src+4*(2*p+1)+e//2}, v{src+4*(2*p)+e//2}, s{58+(e&1)}")
                k(f"ds_write_b128 v{4+2*ps+(e>>2)}, v[{o}:{o+3}] offset:{(e&3)*16}")
        q_flag()
        k.wait(lg=0)
        k.barrier()
        stamp("mfma")


    k("s_cmp_ge_u32 s2, 64")
    k.branch("s_cbranch_scc1 main_prep_wd", flush=False)
    sv = (list(k.vm), list(k.lg))
    item_idx(2731, 24)
    k("s_bfe_u32 s60, s2, 0x30001")
    k("s_lshr_b32 s61, s2, 4")
    k(f"s_mul_i32 s10, s61, {160*3072}")
    k("s_mul_i32 s11, s60, 384")
    k("s_add_u32 s10, s10, s11")
    item_loads(3072)

    def op_wgu(o):
        k(f"v_lshrrev_b32 v160, 2, {o}")
        k("v_mul_u32_u24 v160, 3072, v160")
        k(f"v_and_b32 v162, 3, {o}")
        k("v_lshl_add_u32 v160, v162, 8, v160")
    stage(43, 8, 6, 15360, op_wgu, 2048, 4, 1024)
    k("s_mul_i32 s13, s3, 15360")
    k(f"v_add_u32 v4, s13, {VL16}")
    k("s_lshl_b32 s12, s60, 2")
    k("s_add_u32 s12, s12, s3")
    k(f"s_mul_i32 s10, s12, {WGU_M}")
    k("s_mul_i32 s11, s61, 30720")
    k("s_add_u32 s10, s10, s11")
    k("s_and_b32 s13, s2, 1")
    k("s_mul_i32 s11, s13, 3072")
    k("s_add_u32 s10, s10, s11")
    k(f"s_add_u32 s10, s10, {WS_WGU}")
    for j in range(15):
        k(f"ds_read_b128 v[{16+4*j}:{19+4*j}], v4 offset:{j*1024}")
    for t in range(3):
        k(f"v_mov_b32 v{5+t}, 0")
    for j in range(15):
        k(f"buffer_store_dwordx4 v[{16+4*j}:{19+4*j}], {VL16}, {srd(SWS)}, s10 offen offset:{(j%3)*1024} sc1")
        if j % 3 == 2:
            k("s_add_u32 s10, s10, 6144")
        for p in range(4):
            k(f"v_dot2c_f32_bf16 v{5+j%3}, v{16+4*j+p}, v12")
    for t in range(3):
        xsum16(k, f"v{5+t}", "v8")
        xsum32(k, f"v{5+t}", "v8")
    k("v_cmp_eq_u32 vcc, 1, v3")
    k("v_cndmask_b32 v5, v5, v6, vcc")
    k("v_cmp_eq_u32 vcc, 2, v3")
    k("v_cndmask_b32 v5, v5, v7, vcc")
    k("v_lshlrev_b32 v6, 2, v1")
    k("v_cmp_gt_u32 vcc, 48, v1")
    k("v_cndmask_b32 v6, v14, v6, vcc")
    k("s_lshl_b32 s10, s12, 11")
    k("s_lshl_b32 s11, s61, 9")
    k("s_add_u32 s10, s10, s11")
    k("s_mul_i32 s11, s13, 192")
    k("s_add_u32 s10, s10, s11")
    k(f"s_add_u32 s10, s10, {WS_CS}")
    k(f"buffer_store_dword v5, v6, {srd(SWS)}, s10 offen sc1")

    k.wait(vm=0)
    k.flush_hazards()
    k.branch("s_branch main_prep_pub", flush=False)
    k.label("main_prep_wd", flush=False)
    k.vm, k.lg = sv
    item_idx(820, 80)
    k("s_sub_u32 s60, s2, 64")
    k(f"s_mul_i32 s10, s60, {48*1280}")
    item_loads(1280)

    def op_wd(o):
        k(f"v_lshlrev_b32 v160, 8, {o}")
    stage(205, 11, 10, 7680, op_wd, 3072, 8, 1536)
    k("s_mul_i32 s13, s3, 15360")
    k(f"v_add_u32 v4, s13, {VL16}")
    k("v_lshrrev_b32 v6, 1, v3")
    k("v_and_b32 v7, 1, v3")
    k("v_mul_u32_u24 v5, 7680, v6")
    k("v_lshl_add_u32 v5, v7, 8, v5")
    k("v_lshl_add_u32 v5, v2, 4, v5")
    k("v_add_u32 v5, s13, v5")
    k("s_mul_i32 s11, s60, 6")
    k("v_add_u32 v8, s11, v3")
    k("v_add3_u32 v9, v7, s11, 4")
    for v in ("v8", "v9"):
        k(f"v_lshrrev_b32 v13, 2, {v}")
        k("v_mul_u32_u24 v13, 5120, v13")
        k(f"v_and_b32 {v}, 3, {v}")
        k(f"v_lshl_add_u32 {v}, {v}, 8, v13")
        k(f"v_lshl_add_u32 {v}, v2, 4, {v}")
    k(f"v_mul_u32_u24 v13, {48*5120}, v6")
    k("v_add_u32 v9, v9, v13")
    k(f"s_mul_i32 s10, s3, {2*48*5120}")
    k(f"s_add_u32 s10, s10, {WS_WD}")
    plan = []
    for t in range(5):
        plan += [("v4", t * 1536, "v8", t * 1024), ("v4", 7680 + t * 1536, "v8", 48 * 5120 + t * 1024), ("v5", 1024 + t * 1536, "v9", t * 1024)]
    for j, (la, lo, ga, go) in enumerate(plan):
        k(f"ds_read_b128 v[{16+4*j}:{19+4*j}], {la} offset:{lo}")
    for j, (la, lo, ga, go) in enumerate(plan):
        k(f"s_add_u32 s11, s10, {go}")
        k(f"buffer_store_dwordx4 v[{16+4*j}:{19+4*j}], {ga}, {srd(SWS)}, s11 offen sc1")

    k.wait(vm=0)
    k.flush_hazards()
    k.label("main_prep_pub", flush=False)
    k.barrier()
    k("s_lshl_b32 s10, s2, 7")
    k(f"s_add_u32 s10, s10, {SY_PF}")
    k("s_cmp_eq_u32 s3, 0")
    k("s_cselect_b32 s10, s10, 0x40000000")
    k("v_mov_b32 v204, 0")
    ML(f"buffer_store_dword v15, v204, {srd(SSY)}, s10 offen sc1", 1)()
    stamp("cf")
    pl = wpoll_setup("v8")
    emit(pl[0])
    poll(pl, ["v13"], None, sleep=4, nl=16, eq=SN)
    stamp("pp")
    for p in range(10):
        for x in wgu_dma(p):
            emit(x)
    for i in range(60):
        for x in wd_load(i):
            emit(x)
    k.wait(lg=0)
    k.flush_hazards()

    k.label("main_join", flush=False)
    k.vm = [(set(), "unk")] * 63
    k("s_load_dwordx2 s[26:27], s[0:1], 80")
    k(f"v_add_u32 {VL16B}, 61440, {VL16}")
    k.srd(SX, 24, XSPAN + XFB, WS_X1)
    k.srd(SH, 24, HSPAN + HFB, WS_H)
    k.srd(SY_, 24, XFB, WS_Y)
    k(f"s_mul_i32 s56, s15, {HRT}")
    k("s_mul_i32 s10, s5, 1536")
    k("s_add_u32 s56, s56, s10")
    k("s_mul_i32 s10, s3, 12288")
    k(f"s_mul_i32 s57, s16, {HRT}")
    k("s_add_u32 s57, s57, s10")
    k("s_xor_b32 s11, s16, 1")
    k(f"s_mul_i32 s58, s11, {HRT}")
    k("s_add_u32 s58, s58, s10")
    k(f"s_mul_i32 s59, s16, {XRT}")
    k("s_mul_i32 s10, s8, 2560")
    k("s_add_u32 s59, s59, s10")
    k("v_and_b32 v204, 1, v3")
    k("v_lshrrev_b32 v205, 1, v3")
    k(f"v_mul_u32_u24 {VH2}, {HRT}, v204")
    k("v_lshlrev_b32 v206, 4, v2")
    k("v_lshl_add_u32 v206, v205, 8, v206")
    k(f"v_add_u32 {VH2}, {VH2}, v206")
    k(f"v_lshl_add_u32 {VT4}, v204, 3, v206")
    k("s_lshl_b32 s10, s14, 31")
    k(f"v_or_b32 {VT4S}, s10, {VT4}")
    k("s_lshl_b32 s10, s16, 4")
    k(f"v_add_u32 {VROW}, s10, v2")
    k(f"v_lshlrev_b32 {VGR}, 3, v2")
    k("v_cmp_eq_u32 vcc, 0, v3")
    k(f"v_mov_b32 v204, {OOB:#x}")
    k(f"v_cndmask_b32 {VGW}, v204, {VGR}, vcc")
    k(f"v_lshl_add_u32 {VQ128}, v3, 7, {VGR}")
    k(f"v_lshl_add_u32 {VGR}, v3, 9, {VGR}")
    k("v_cmp_eq_u32 vcc, 0, v1")
    k(f"v_cndmask_b32 {VFLAG}, v204, v1, vcc")
    k("s_lshl_b32 s10, s4, 3")
    k("s_add_u32 s10, s10, s7")
    k("s_lshl_b32 s10, s10, 5")
    k("s_lshl_b32 s11, s3, 3")
    k("s_add_u32 s10, s10, s11")
    k(f"v_and_b32 {VFPOLL}, 7, v1")
    k(f"v_add_u32 {VFPOLL}, s10, {VFPOLL}")
    k(f"v_lshlrev_b32 {VFPOLL}, 7, {VFPOLL}")
    k(f"v_lshlrev_b32 {VXP}, 4, v2")
    k(f"v_lshl_add_u32 {VXP}, v3, 9, {VXP}")
    k("s_lshr_b32 s10, s16, 1")
    k(f"s_mul_i32 s62, s10, {XBLK}")
    k("s_mul_i32 s10, s8, 5120")
    k("s_add_u32 s62, s62, s10")
    k("s_lshl_b32 s10, s9, 3")
    k("s_add_u32 s62, s62, s10")
    k("s_lshr_b32 s10, s5, 2")
    k("s_lshl_b32 s11, s4, 3")
    k("s_add_u32 s63, s10, s11")
    k(f"s_mul_i32 s60, s63, {XBLK}")
    k("s_mul_i32 s10, s3, 10240")
    k("s_add_u32 s60, s60, s10")
    k("s_and_b32 s61, s5, 3")
    k("s_lshl_b32 s10, s61, 6")
    k("s_add_u32 s60, s60, s10")
    k("v_and_b32 v188, 3, v1")
    k("v_lshrrev_b32 v189, 2, v1")
    k("v_lshlrev_b32 v189, 8, v189")
    k("v_lshl_add_u32 v189, v188, 4, v189")
    k("v_cmp_gt_u32 vcc, 32, v1")
    k("v_cndmask_b32 v190, v204, v189, vcc")
    k("s_lshl_b32 s10, s5, 11")
    k(f"s_add_u32 s10, s10, {WS_CS}")
    k("v_lshlrev_b32 v197, 3, v1")
    for i in range(4):
        k(f"buffer_load_dwordx2 v[{208+2*i}:{209+2*i}], v197, {srd(SWS)}, s10 offen offset:{i*512} sc1")
    k.srd(SO, 26, XFB)
    k("s_lshr_b32 s10, s4, 1")
    k("s_mul_i32 s10, s10, 160")
    k("s_mul_i32 s11, s3, 40")
    k("s_add_u32 s10, s10, s11")
    k("s_lshl_b32 s10, s10, 7")
    k(f"s_add_u32 s10, s10, {SY_CF}")
    k("s_mul_i32 s11, s3, 3072")
    k(f"s_add_u32 s11, s11, {SY_PF - 40*128}")
    k("v_mov_b32 v205, s10")
    k("v_mov_b32 v206, s11")
    k("v_cmp_gt_u32 vcc, 40, v1")
    k("v_cndmask_b32 v205, v206, v205, vcc")
    k("v_lshl_add_u32 v205, v1, 7, v205")
    k(f"v_add_u32 v197, {LC}, v197")
    k("v_pk_add_f32 v[208:209], v[208:209], v[210:211]")
    k("v_pk_add_f32 v[212:213], v[212:213], v[214:215]")
    k("v_pk_add_f32 v[208:209], v[208:209], v[212:213]")
    k(f"s_cmp_ge_u32 s2, {NPREP}")
    k.branch("s_cbranch_scc1 main_nogate", flush=False)
    svg = (list(k.vm), list(k.lg))
    c1 = [ML(f"buffer_load_dword v206, v205, {srd(SSY)}, 0 offen sc1", 1)]
    emit(c1[0])
    poll(c1, ["v206"], None, sleep=6, nl=1, eq=SN)
    k.label("main_nogate", flush=False)
    k.vm, k.lg = svg
    cl = [f"buffer_load_dword v206, v205, {srd(SSY)}, 0 offen sc1"]
    emit(cl[0])
    poll(cl, ["v206"], None, sleep=2, eq=SN)
    k.vm = []
    k.barrier()
    stamp("join")
    k("ds_write_b64 v197, v[208:209]")
    for kk in range(4):
        for x in x_loads(0, 0, kk, 2 * kk):
            emit(x)
    SR = 192
    for i in range(3):
        k(f"s_add_u32 s12, s60, {i*4096}")
        k(f"buffer_load_dwordx4 v[{SR+4*i}:{SR+4*i+3}], v{189 if i < 2 else 190}, {srd(SX)}, s12 offen sc1")
    for kk in range(4, DIST):
        for x in x_loads(0, 0, kk, 2 * kk):
            emit(x)

    k("s_lshl_b32 s10, s3, 13")
    k(f"s_add_u32 s10, s10, {LR}")
    k(f"v_add_u32 {VRW}, s10, {VL16}")
    k("s_cmp_eq_u32 s14, 0")
    k("s_cselect_b32 s26, 1.0, 0")
    k("s_mov_b32 s27, s26")
    k("s_lshl_b32 s60, s16, 4")
    k("s_lshl_b32 s13, s8, 1")
    k("s_add_u32 s60, s60, s13")
    k("s_add_u32 s60, s60, s14")
    k("s_lshl_b32 s60, s60, 7")

    def phase_s():
        for r in range(2):
            s_, q_ = TMP + 2 * r, TMP + 2 * r + 1
            first = True
            for i in range(3):
                for d in range(2):
                    unpack(k, "v204", "v205", f"v{SR+4*i+2*r+d}")
                    if first:
                        k(f"v_add_f32 v{s_}, v204, v205")
                        k(f"v_mul_f32 v{q_}, v204, v204")
                        first = False
                    else:
                        k(f"v_add_f32 v{s_}, v{s_}, v204")
                        k(f"v_add_f32 v{s_}, v{s_}, v205")
                        k(f"v_fmac_f32 v{q_}, v204, v204")
                    k(f"v_fmac_f32 v{q_}, v205, v205")
        for v in range(TMP, TMP + 4):
            k(f"v_add_f32_dpp v{v}, v{v}, v{v} row_ror:4 row_mask:0xf bank_mask:0xf")
        for v in range(TMP, TMP + 4):
            k(f"v_add_f32_dpp v{v}, v{v}, v{v} row_ror:8 row_mask:0xf bank_mask:0xf")
        for v in range(TMP, TMP + 4):
            xsum16(k, f"v{v}", "v204")
            xsum32(k, f"v{v}", "v204")
        k(f"v_or_b32 v{TMP+1}, 0x80000000, v{TMP+1}")
        k(f"v_or_b32 v{TMP+3}, 0x80000000, v{TMP+3}")
        k("s_lshl_b32 s12, s63, 3")
        k("s_add_u32 s12, s12, s3")
        k("s_lshl_b32 s12, s12, 7")
        k("s_lshl_b32 s13, s61, 5")
        k("s_add_u32 s12, s12, s13")
        k(f"s_add_u32 s12, s12, {SY_ST1}")
        k("v_lshlrev_b32 v204, 3, v1")
        set_exec(4)
        k(f"buffer_store_dwordx2 v[{TMP}:{TMP+1}], v204, {srd(SSY)}, s12 offen sc1")
        k(f"buffer_store_dwordx2 v[{TMP+2}:{TMP+3}], v204, {srd(SSY)}, s12 offen offset:512 sc1")
        k("s_mov_b64 exec, -1")

    sched = {}
    wi = NE1
    for kk in range(20):
        L = []
        if kk < 4:
            L += wgu_dma(6 + kk)
        if kk + DIST < 20:
            L += x_loads(0, 0, kk + DIST, 2 * (kk + DIST))
        else:
            kb = kk + DIST - 20
            L += x_loads(0, 1, kb, 40 + 2 * kb)
        if kk >= 20 - NWA and wi < 60:
            L += wd_load(wi)
            wi += 1
        if kk == 2:
            L = [phase_s] + L
        if kk == 14:
            L = st1_loads(0, TMP + 24) + L
        sched[kk] = L
    g1_main(0, sched, first=True, xp=True)
    stamp("g1a")
    stats1(0, STA)

    def take(n):
        nonlocal wi
        L = []
        for _ in range(n):
            if wi < 60:
                L += wd_load(wi)
                wi += 1
        return L
    g1_epilogue(0, 0, STA, take(NWE1))
    stamp("e1a")
    extra = {}
    for kk in range(12):
        extra[kk] = take((NWB * (kk + 1)) // 12 - (NWB * kk) // 12)
    extra[12] = st1_loads(1, TMP + 24) + res_loads(0)
    sched, rest = g1b_sched(0, extra)
    g1_main(40, sched, xp=True)
    stamp("g1b")
    for L in rest:
        for x in L:
            emit(x)
    stats1(1, STB)
    g1_epilogue(0, 1, STB, take(NWE2))
    print('Wd loads left for G2(A):', 60 - wi)
    stamp("e1b")

    NH0 = int(os.environ.get("NH0", "5"))

    def g2a(layer):
        sc = {kk: take(5) for kk in range(12)}
        assert wi == 60
        sc[HFK] = sc[HFK] + [lambda: h_flag(layer, 1)]
        sc[HPK] = sc[HPK] + h_poll_loads(layer, 1)
        g2_main(80, sc, X1R[0], X2[0])
        stamp(f"g2a{layer}")

        def mid():
            h_poll(layer, 1)
            stamp(f"ph{layer}")
            for kk in range(NH0):
                for x in h_loads(layer, 1, kk, 2 * kk):
                    emit(x)
        g2_reduce(X2[0], mid)

    def g2b_sched(layer, extra):
        sched = {}
        for kk in range(12):
            L = []
            if kk + NH0 < 12:
                L += h_loads(layer, 1, kk + NH0, 2 * (kk + NH0))
            sched[kk] = L + extra.get(kk, [])
        return sched

    g2a(0)
    part_stats(X2[0], 0, SY_ST2)
    stamp("r2a")

    def fin_a():
        finalize(0, X2[0], G2R)
        part_calc(X2[0], 244)
    g2_main(0, g2b_sched(0, {2: res_loads(1), FK - 3: st2_loads(0, G2R), FK: [fin_a]}), X1R[1], X2[1])
    stamp("g2b")
    g2_reduce(X2[1], lambda: part_pub(244, 0, SY_ST3, pre_wait="xst"))
    part_stats(X2[1], 1, SY_ST2)
    stamp("s3a")
    for x in st3_loads(0, TMP):
        emit(x)
    stats3(0, STA)
    stamp("p3a")
    for kk in range(DIST):
        for x in x_loads(1, 0, kk, 2 * kk):
            emit(x)
        if kk == 3:
            for x in st2_loads(1, G2R):
                emit(x)
    finalize(1, X2[1], G2R)
    part_calc(X2[1], 246)
    stamp("fin")
    sched = {}
    xb = [x_loads(1, 1, j, 40 + 2 * j) for j in range(DIST)]
    for kk in range(20):
        L = []
        if kk + DIST < 20:
            L += x_loads(1, 0, kk + DIST, 2 * (kk + DIST))
        if kk == 3:
            L = L + [lambda: part_pub(246, 1, SY_ST3, pre_wait="xst")]
        if kk == S3K - 4:
            L = L + st3_loads(1, TMP)
        if kk == S3K:
            L = [lambda: stats3(1, STB)] + L
        if kk >= S3K:
            for _ in range(-(-DIST // (20 - S3K))):
                if xb and (DIST - len(xb)) + 8 < kk:
                    L += xb.pop(0)
        sched[kk] = L
    assert not xb
    g1_main(0, sched)
    stamp("g1a'")
    g1_epilogue(1, 0, STA)
    stamp("e1a'")
    sched, rest = g1b_sched(1, {})
    g1_main(40, sched)
    stamp("g1b'")
    for L in rest:
        for x in L:
            emit(x)
    g1_epilogue(1, 1, STB)
    stamp("e1b'")
    g2a(1)
    out_store(0, X2[0])
    stamp("r2a'")
    g2_main(0, g2b_sched(1, {}), X1R[1], X2[1])
    g2_reduce(X2[1])
    out_store(1, X2[1])
    if DIAG:
        in_srd(k, 96, 88, 256)
        k("s_cmp_eq_u32 s101, 0")
        k("s_cselect_b32 s10, 0x40000000, 0")
        k("s_lshl_b32 s11, s2, 8")
        k("s_or_b32 s11, s11, s101")
        k("s_lshl_b32 s12, s3, 16")
        k("s_or_b32 s11, s11, s12")
        k("v_mov_b32 v0, s11")
        k("s_and_b32 s12, s101, 0xe")
        k("s_lshl_b32 s12, s12, 1")
        k("v_mov_b32 v1, s12")
        ML("buffer_store_dword v0, v1, s[96:99], s10 offen", 1)()
    if os.environ.get("DBGST"):
        k.stamp("end")
        k.wait(vm=0, lg=0)
        in_srd(k, 96, 88, 256)
        k("s_lshl_b32 s10, s2, 2")
        k("s_add_u32 s10, s10, s3")
        k(f"s_cmp_eq_u32 s10, {int(os.environ['DBGST'])*4}")
        k("s_cselect_b32 s10, 0, 0x40000000")
        k("v_mov_b32 v0, 0")
        for i in range(1, len(k.stamps)):
            k(f"s_sub_u32 s11, s{64+2*i}, s64")
            k("v_mov_b32 v1, s11")
            ML(f"buffer_store_dword v1, v0, s[96:99], s10 offen offset:{4*i}", 1)()
        print(k.stamps)
    else:
        k.prof_end(2, 24, 3, names="main")
    k.label("main_end", flush=False)
    k("s_endpgm")
    k.raw("main_code_end:")
    return k


if __name__ == "__main__":
    if os.environ.get("PROF"):
        Kern.PROF = True
    main = gen_main()
    out = sys.argv[1] if len(sys.argv) > 1 else "v17.s"
    txt = build_file(HEADER, [main], [main]).replace(f"; @launch kernel={KNAME} ", "; @launch ")
    open(out, "w").write(txt)
    json.dump(PROFINFO, open(out + ".prof.json", "w"))
    print("instrs", main.nins, "vgpr", main.maxv + 1, "agpr", main.maxa + 1, "sgpr", main.maxs + 1, "lds", main.lds)
```

```python
import sys, os, json
sys.path.insert(0, "dev")
from asmdsl import *
from gen1 import S, D, F, EPS, f2u, unpack, reduce16, xsum16, xsum32, HEADER, XFB, HFB, WDB

KNAME = "interleave_layers__ssm_conv_h3__swiglu_ffn__prompt_kernel"
WS_KVT = 0x0000000
WS_QST = 0x0300000
WS_WGU = 0x0400000
WGU_M = 20 * 6144
WGUB = 32 * WGU_M
WS_CS = 0x0800000
WS_WD = 0x0900000
WS_Y = 0x0C00000
WS_X1 = 0x0F00000
WS_H = 0x1200000
WS_X3 = 0x1D00000
WS_H2 = 0x2000000
WS_SYNC = 0x2800000
SY_ST1 = 0
SY_ST2 = 0x10000
SY_ST3 = 0x50000
SY_HF = 0x90000
SY_CF_OLD = 0x110000
SY_PF = 0x124000
SY_QF = 0x128000
SY_GF = 0x12C000
SY_QF = 0x140000
SY_CF = 0x150000
SYNCB = 0x178000
SN = "s6"
WS_QX = 0x2C00000
XBLK = 40960
WSB = 0x3000000
XRT = 20480
HRT = 49152
OOB = 0x80000000
LOG2E = 1.4426950408889634
SPIN_MAX = 1 << 14
NPREP = 96
STAMPS = os.environ.get("STAMPS", "").split(",")
NP1 = int(os.environ.get("NP1", "4"))
NE1 = int(os.environ.get("NE1", "24"))
PPN = int(os.environ.get("PPN", "2"))
LASTW = int(os.environ.get("LASTW", "240"))
NB = int(os.environ.get("NB", "6"))
NE2 = int(os.environ.get("NE2", "0"))
MAP = int(os.environ.get("MAP", "2"))
PF = int(os.environ.get("PF", "0"))
FK = int(os.environ.get("FK", "7"))
HFK = int(os.environ.get("HFK", "4"))
S3K = int(os.environ.get("S3K", "15"))
NWA = int(os.environ.get("NWA", "10"))
NWE1 = int(os.environ.get("NWE1", "12"))
NWB = int(os.environ.get("NWB", "14"))
NWE2 = int(os.environ.get("NWE2", "12"))
HPK = int(os.environ.get("HPK", "9"))
PREW = int(os.environ.get("PREW", "1"))
DIAG = int(os.environ.get("DIAG", "0"))
QPN = int(os.environ.get("QPN", "8"))
QPOS = int(os.environ.get("QPOS", "2"))
NEP = int(os.environ.get("NEP", "60"))
EVERY = int(os.environ.get("EVERY", "5"))


def srd(n):
    return f"s[{n}:{n+3}]"


def mkstamp(k):
    def stamp(n):
        if n in STAMPS:
            if hasattr(k, "stamps") and n in k.stamps:
                if Kern.PROF:
                    i = k.stamps.index(n)
                    k(f"{Kern.CLK} s[{64+2*i}:{65+2*i}]")
            else:
                k.stamp(n)
    return stamp


def in_srd(k, slot, karg_off, nbytes):
    k(f"s_load_dwordx2 s[{slot}:{slot+1}], s[0:1], {karg_off}")
    k(f"s_mov_b32 s{slot+2}, {nbytes}")
    k(f"s_mov_b32 s{slot+3}, 0x00020000")


def gen_pre():
    k = Kern("pre_kernel", lds=8192, grid=384, block=128)
    stamp = mkstamp(k)
    SA, SB, SC_, SD_, SWS = 28, 32, 36, 40, 48
    k.prof_begin()
    k(f"s_cmp_ge_u32 s2, {k.grid}")
    k.branch("s_cbranch_scc1 pre_end", flush=False)
    k("s_load_dwordx2 s[24:25], s[0:1], 96")
    k("s_cmp_ge_u32 s2, 320")
    k.branch("s_cbranch_scc1 pre_q", flush=False)
    saved0 = (list(k.vm), list(k.lg))
    in_srd(k, SA, 8, S * D * 2)
    in_srd(k, SB, 16, S * D * 2)
    in_srd(k, SC_, 24, D * 8)
    in_srd(k, SD_, 32, D * 4096)
    k("v_lshrrev_b32 v1, 6, v0")
    k("v_readfirstlane_b32 s3, v1")
    k("v_and_b32 v1, 63, v0")
    k("s_lshr_b32 s57, s2, 5")
    k("s_and_b32 s58, s2, 31")
    k("v_lshrrev_b32 v4, 3, v1")
    k("v_and_b32 v5, 7, v1")
    k("s_lshl_b32 s10, s58, 6")
    k("s_lshl_b32 s11, s3, 5")
    k("s_add_u32 s10, s10, s11")
    k("v_lshlrev_b32 v6, 2, v4")
    k("v_add_u32 v6, s10, v6")
    k("v_mul_u32_u24 v7, 1280, v6")
    k("v_lshl_add_u32 v7, v5, 4, v7")
    k("s_lshl_b32 s12, s57, 7")
    k("v_add_u32 v7, s12, v7")
    KR, VR, WR = 16, 44, 60
    k("v_lshlrev_b32 v9, 6, v5")
    k("s_lshl_b32 s12, s57, 9")
    for j in (3, 4, 5, 6):
        k(f"buffer_load_dwordx4 v[{KR+4*j}:{KR+4*j+3}], v7, {srd(SA)}, 0 offen offset:{(j-3)*1280}")
    for i in range(4):
        k(f"buffer_load_dwordx4 v[{VR+4*i}:{VR+4*i+3}], v7, {srd(SB)}, 0 offen offset:{i*1280}")
    for i in range(4):
        k(f"buffer_load_dwordx4 v[{WR+4*i}:{WR+4*i+3}], v9, {srd(SC_)}, s12 offen offset:{16*i}")
    for j in (2, 1, 0):
        k(f"v_add_u32 v8, {((j-3)*1280) & 0xffffffff:#x}, v7")
        k(f"buffer_load_dwordx4 v[{KR+4*j}:{KR+4*j+3}], v8, {srd(SA)}, 0 offen")
    k.srd(SWS, 24, WSB)
    k("s_lshl_b32 s10, s3, 6")
    k("s_sub_u32 s10, 120, s10")
    k("v_lshlrev_b32 v8, 3, v4")
    k("v_sub_u32 v8, s10, v8")
    k("v_lshlrev_b32 v9, 4, v5")
    k("v_xor_b32 v8, v8, v9")
    k("v_lshl_add_u32 v8, v5, 10, v8")
    k("s_lshl_b32 s10, s3, 12")
    k("v_lshlrev_b32 v11, 7, v4")
    k("v_add_u32 v11, s10, v11")
    k("s_lshl_b32 s11, s3, 2")
    for j in range(4):
        k(f"s_add_u32 s12, s11, {j}")
        k(f"v_xor_b32 v{12+j}, s12, v5")
        k(f"v_lshl_add_u32 v{12+j}, v{12+j}, 4, v11")
    k("v_lshl_add_u32 v9, v4, 12, v9")
    k("s_lshl_b32 s10, s57, 6")
    k("s_lshl_b32 s11, s3, 5")
    k("s_add_u32 s10, s10, s11")
    k("s_lshl_b32 s10, s10, 12")
    k("s_lshl_b32 s11, s58, 7")
    k("s_sub_u32 s11, 3968, s11")
    k("s_add_u32 s10, s10, s11")
    WF = 80
    for c in range(8):
        unpack(k, f"v{WF+4*c}", f"v{WF+4*c+1}", f"v{WR+2*c}")
        unpack(k, f"v{WF+4*c+2}", f"v{WF+4*c+3}", f"v{WR+2*c+1}")
    k.wait(vm=0)
    stamp("Tld")
    lab = k.newlabel("pc")
    k("s_getpc_b64 s[44:45]")
    k.raw(lab + ":")
    k(f"s_add_u32 s44, s44, main_kernel-{lab}")
    k("s_addc_u32 s45, s45, 0")
    k("s_mov_b32 s46, main_code_end-main_kernel")
    k("s_mov_b32 s47, 0x00020000")
    k("v_lshlrev_b32 v2, 7, v0")
    k(f"s_sub_u32 s12, s2, {NPREP}")
    k("s_lshl_b32 s12, s12, 14")
    k("s_and_b32 s12, s12, 0x7fffffff")
    k(f"buffer_load_dword v150, v2, {srd(SD_)}, s12 offen")
    k("s_lshr_b32 s12, s2, 3")
    k("s_lshl_b32 s12, s12, 14")
    k("buffer_load_dword v151, v2, s[44:47], s12 offen")
    KF, VF, OUT = 112, 128, 136
    for cp in range(4):
        for j in range(7):
            unpack(k, f"v{KF+2*j}", f"v{KF+2*j+1}", f"v{KR+4*j+cp}")
        for i in range(4):
            unpack(k, f"v{VF+2*i}", f"v{VF+2*i+1}", f"v{VR+4*i+cp}")
        for h in range(2):
            c = 2 * cp + h
            O = OUT + 4 * h
            for i in range(4):
                k(f"v_mul_f32 v{O+i}, v{KF+2*(i+0)+h}, v{WF+4*c+3}")
            for t in (2, 1, 0):
                for i in range(4):
                    k(f"v_fmac_f32 v{O+i}, v{KF+2*(i+3-t)+h}, v{WF+4*c+t}")
            for i in range(4):
                k(f"v_mul_f32 v{O+i}, v{O+i}, v{VF+2*i+h}")
            p = 144 + 2 * h
            k(f"v_cvt_pk_bf16_f32 v{p}, v{O+3}, v{O+2}")
            k(f"v_cvt_pk_bf16_f32 v{p+1}, v{O+1}, v{O+0}")
            k(f"ds_write_b64 v8, v[{p}:{p+1}] offset:{c*128}")
    k.wait(lg=0)
    k.barrier()
    stamp("Tkv")
    for j in range(4):
        k(f"ds_read_b128 v[{16+4*j}:{19+4*j}], v{12+j} offset:{j*1024}")
    for j in range(4):
        k(f"buffer_store_dwordx4 v[{16+4*j}:{19+4*j}], v9, {srd(SWS)}, s10 offen{PSC}")
        k("s_add_u32 s10, s10, 32768")
    for i in range(4):
        k(f"v_mov_b32 v{32+i}, 0")
    k.srd(SA, 24, SYNCB, WS_SYNC)
    k("s_lshl_b32 s12, s2, 12")
    k("v_lshlrev_b32 v8, 4, v0")
    for i in range(2):
        k(f"buffer_store_dwordx4 v[32:35], v8, {srd(SA)}, s12 offen offset:{i*2048}{PSC}")
    k.prof_end(0, 24, 3, names="pre")
    k("s_endpgm")
    k.label("pre_q", flush=False)
    k.vm, k.lg = saved0
    in_srd(k, SA, 0, S * D * 2)
    k("v_lshrrev_b32 v1, 6, v0")
    k("v_readfirstlane_b32 s3, v1")
    k("v_and_b32 v1, 63, v0")
    k("v_and_b32 v2, 15, v0")
    k("v_bfe_u32 v3, v0, 4, 2")
    k("s_sub_u32 s10, s2, 320")
    k("s_lshl_b32 s10, s10, 1")
    k("s_add_u32 s10, s10, s3")
    k(f"s_mul_i32 s11, s10, {XRT}")
    k("v_mul_u32_u24 v4, 1280, v2")
    k("v_lshl_add_u32 v4, v3, 4, v4")
    QR = 16
    for i in range(20):
        k(f"buffer_load_dwordx4 v[{QR+4*i}:{QR+4*i+3}], v4, {srd(SA)}, s11 offen offset:{64*i}")
    k.srd(SWS, 24, WSB)
    k("v_lshlrev_b32 v5, 4, v1")
    k(f"s_add_u32 s12, s11, {WS_QX}")
    k("v_mov_b32 v6, 0x3f803f80")
    k("v_mov_b32 v8, 0")
    k("v_mov_b32 v9, 0")
    for i in range(20):
        if i % 4 == 0 and i:
            k("s_add_u32 s12, s12, 4096")
        k(f"buffer_store_dwordx4 v[{QR+4*i}:{QR+4*i+3}], v5, {srd(SWS)}, s12 offen offset:{(i%4)*1024}{PSC}")
        for d in range(4):
            k(f"v_dot2c_f32_bf16 v8, v{QR+4*i+d}, v6")
            k(f"v_dot2c_f32_bf16 v9, v{QR+4*i+d}, v{QR+4*i+d}")
    for v in ("v8", "v9"):
        xsum16(k, v, "v7")
        xsum32(k, v, "v7")
    k(f"v_mul_f32 v8, {f2u(1.0/D)}, v8")
    k(f"v_mul_f32 v9, {f2u(1.0/D)}, v9")
    k("v_fma_f32 v9, -v8, v8, v9")
    k("v_max_f32 v9, 0, v9")
    k(f"v_add_f32 v9, {f2u(EPS)}, v9")
    k("v_rsq_f32 v11, v9")
    k("v_mul_f32 v10, v8, v11")
    k("s_lshl_b32 s12, s10, 7")
    k(f"s_add_u32 s12, s12, {WS_QST}")
    k("v_lshlrev_b32 v7, 3, v2")
    k(f"buffer_store_dwordx2 v[10:11], v7, {srd(SWS)}, s12 offen")
    k.label("pre_end", flush=False)
    k("s_endpgm")
    return k


PSC = os.environ.get("PSC", "")

def gen_main():
    LW = 0
    LR = 131072
    LC = 122880
    CP = 4160
    UOFF = 4 * CP
    WREG = 4 * CP + 4608
    CB = 163840 - 4 * WREG
    k = Kern(KNAME, lds=163840, grid=256, block=256)
    RING, ACC, WB, TMP = 16, 112, 160, 184
    X1R = [216, 222]
    YR = [228, 234]
    STA, STB = [4, 6], [240, 242]
    X2 = [WB, WB + 12]
    G2R = TMP + 8
    DIST = int(os.environ.get("DIST", "8"))
    VL16, VL16B, VH2, VT4, VT4S, VROW, VGW, VGR, VQ128, VFLAG, VFPOLL = (
        "v10", "v11", "v8", "v9", "v12", "v13", "v14", "v15", "v0", "v252", "v253")
    VL128 = "v251"
    VXP = "v250"
    VRW = "v249"
    LQ = 131072
    SX, SW, SH, SWD, SSY, SO, SY_ = 28, 32, 36, 40, 44, 48, 52
    SA, SB, SWS, SDBG = 28, 36, 48, 52
    XSPAN = WS_X3 - WS_X1
    HSPAN = WS_H2 - WS_H

    stamp = mkstamp(k)

    def ring(i):
        return RING + 4 * (i % 24)

    def emit(x):
        if callable(x):
            x()
        elif isinstance(x, tuple):
            k(x[0], tag=x[1])
        else:
            k(x)

    def set_exec(nl):
        m = (1 << nl) - 1
        if nl <= 32:
            k(f"s_mov_b64 exec, {m:#x}") if nl <= 6 else (k(f"s_mov_b32 exec_lo, {m:#x}"), k("s_mov_b32 exec_hi, 0"))
        else:
            k(f"s_mov_b32 exec_hi, {m >> 32:#x}")

    class ML:
        def __init__(self, text, nl):
            self.text, self.nl = text, nl

        def __call__(self):
            set_exec(self.nl)
            k(self.text)
            k("s_mov_b64 exec, -1")

    def isvm(x):
        if isinstance(x, ML):
            return True
        if callable(x):
            return False
        return (x[0] if isinstance(x, tuple) else x).startswith("buffer_")

    def emit_one_vmem(L):
        while L:
            x = L.pop(0)
            emit(x)
            if isvm(x):
                return

    def x_loads(layer, b, kk, slot0):
        if layer == 0:
            return [f"s_add_u32 s10, s17, {kk*2048 + b*4*XBLK}"] + [
                f"buffer_load_dwordx4 v[{ring(slot0+e)}:{ring(slot0+e)+3}], {VXP}, {srd(SX)}, s10 offen offset:{e*256} sc1"
                for e in range(2)]
        so = kk * 1024 + b * 8 * XRT + (XSPAN if layer else 0)
        L = []
        for tn in range(2):
            L.append(f"s_add_u32 s10, s17, {so + tn*XRT}")
            L.append(f"buffer_load_dwordx4 v[{ring(slot0+tn)}:{ring(slot0+tn)+3}], {VL16}, {srd(SX)}, s10 offen sc1")
        return L

    def h_loads(layer, b, kk, slot0):
        so = kk * 1024 + b * 8 * HRT + (HSPAN if layer else 0)
        L = []
        for tn in range(2):
            L.append(f"s_add_u32 s10, s{57+tn}, {so}")
            L.append(f"buffer_load_dwordx4 v[{ring(slot0+tn)}:{ring(slot0+tn)+3}], {VL16}, {srd(SH)}, s10 offen sc1")
        return L

    def x_pf(layer, b):
        if not PF:
            return []
        return [f"s_add_u32 s10, s26, {b*8*XRT + (XSPAN if layer else 0)}",
                ML(f"buffer_load_dword a240, {VL128}, {srd(SX)}, s10 offen sc1", 20)]

    def h_pf(layer, b):
        if not PF:
            return []
        return [f"s_add_u32 s10, s27, {b*8*HRT + (HSPAN if layer else 0)}",
                ML(f"buffer_load_dword a241, {VL128}, {srd(SH)}, s10 offen sc1", 48)]

    def wgu_dma(p):
        return [f"s_add_u32 m0, s18, {LW + p*12288}", f"s_add_u32 s11, s19, {p*12288}"] + [
            (f"buffer_load_dwordx4 {VL16}, {srd(SW)}, s11 offen offset:{f*1024} sc1 lds", f"w{p}") for f in range(3)]

    def wd_load(i):
        kk, lt = divmod(i, 5)
        base = "s20" if lt < 2 else "s21" if lt < 4 else "s22"
        return [f"s_add_u32 s11, {base}, {kk*5120}",
                f"buffer_load_dwordx4 a[{4*i}:{4*i+3}], {VL16}, {srd(SWD)}, s11 offen offset:{(lt&1)*1024 if lt < 4 else 0} sc1"]

    def poll(loads, tags, tmp, sleep=2, ge=None, nl=64, eq=None):
        def check():
            if nl < 64:
                k(f"v_mov_b32 {tags[0]}, {tags[0]}")
                set_exec(nl)
            check0()
            if nl < 64:
                k("s_cmp_eq_u64 vcc, exec")
                k("s_mov_b64 exec, -1")
            else:
                k("s_cmp_eq_u64 vcc, -1")

        def check0():
            if eq is not None:
                k(f"v_cmp_eq_u32 vcc, {eq}, {tags[0]}")
            elif ge is not None:
                k(f"v_cmp_le_u32 vcc, {ge}, {tags[0]}")
            elif len(tags) == 1:
                k(f"v_cmp_ne_u32 vcc, 0, {tags[0]}")
            else:
                k(f"v_min_u32 {tmp}, {tags[0]}, {tags[1]}")
                for t in tags[2:]:
                    k(f"v_min_u32 {tmp}, {tmp}, {t}")
                k(f"v_cmp_ne_u32 vcc, 0, {tmp}")
        ok = k.newlabel("ok")
        lp = k.newlabel("spin")
        check()
        k.branch(f"s_cbranch_scc1 {ok}", flush=False)
        vm, lg = list(k.vm), list(k.lg)
        k("s_mov_b32 s23, 0")
        k.label(lp, flush=False)
        k(f"s_sleep {sleep}")
        for l in loads:
            emit(l)
        k.wait(vm=0)
        k("s_add_u32 s23, s23, 1")
        k(f"s_cmp_ge_u32 s23, {SPIN_MAX}")
        if DIAG:
            k(f"s_cselect_b32 s101, {k.uid}, s101")
        k.branch(f"s_cbranch_scc1 {ok}", flush=False)
        check()
        k.branch(f"s_cbranch_scc0 {lp}", flush=False)
        k.flush_hazards()
        k.label(ok, flush=False)
        k.vm, k.lg = vm, lg

    def finish_stats(vsum, vnsq, dst):
        k(f"v_mul_f32 v{dst}, {f2u(-1.0/D)}, {vsum}")
        k(f"v_mul_f32 {vnsq}, {f2u(-1.0/D)}, {vnsq}")
        k(f"v_fma_f32 {vnsq}, -v{dst}, v{dst}, {vnsq}")
        k(f"v_max_f32 {vnsq}, 0, {vnsq}")
        k(f"v_add_f32 {vnsq}, {f2u(EPS)}, {vnsq}")
        k(f"v_rsq_f32 v{dst+1}, {vnsq}")

    def wread(kk, f):
        reg, off = (VL16, kk * 6144) if kk < 10 else (VL16B, (kk - 10) * 6144)
        return f"ds_read_b128 v[{WB+4*f}:{WB+4*f+3}], {reg} offset:{LW+off+f*1024}"

    def xswap(slot):
        a_, b_ = ring(slot), ring(slot + 1)
        k(f"v_swap_b32 v{a_+2}, v{b_}")
        k(f"v_swap_b32 v{a_+3}, v{b_+1}")

    def g1_main(slot0, sched, first=False, xp=False):
        for f in range(6):
            k(wread(0, f))
        if xp:
            xswap(slot0)
        for kk in range(20):
            L = sched.get(kk, [])
            if first and kk == 11:
                k.wait_tag("w9")
                k.barrier()
            nv = sum(1 for x in L if isvm(x))
            done = 0
            for f in range(6):
                for tn in range(2):
                    a = ACC + 8 * f + 4 * tn
                    acc = f"v[{a}:{a+3}]"
                    xr = ring(slot0 + 2 * kk + tn)
                    k(f"v_mfma_f32_16x16x32_bf16 {acc}, v[{WB+4*f}:{WB+4*f+3}], v[{xr}:{xr+3}], {acc if kk else 0}")
                    if tn == 0:
                        while done < nv and done * 6 < (f + 1) * nv - 2:
                            emit_one_vmem(L)
                            done += 1
                        if PREW and not (kk == 19 and f == 5):
                            regs = [f"v{WB+4*((f+1)%6)}"]
                            if f == 5 and not xp:
                                regs += [f"v{ring(slot0+2*kk+2)}", f"v{ring(slot0+2*kk+3)}"]
                            k.need(regs)
                    elif PREW:
                        while L and isinstance(L[0], str) and L[0].startswith("s_add_u32 s10") and done < nv and done * 6 < (f + 2) * nv - 2:
                            emit(L.pop(0))
                if xp and f == 3 and kk < 19:
                    xswap(slot0 + 2 * kk + 2)
                if kk < 19:
                    k(wread(kk + 1, f))
                else:
                    if f == 0:
                        k("v_lshlrev_b32 v255, 4, v3")
                        k(f"v_add_u32 v255, {LC}, v255")
                    k(f"ds_read_b128 v[{WB+4*f}:{WB+4*f+3}], v255 offset:{f*64}")
            for x in L:
                emit(x)

    def g1_epilogue(layer, b, ST, fill=None):
        fill = fill if fill is not None else []
        k(f"s_add_u32 s12, s56, {b*8*HRT + (HSPAN if layer else 0)}")
        O2 = TMP + 20
        for tn in range(2):
            st = ST[tn]
            c1 = TMP + 28
            k(f"v_mul_f32 v{c1}, {f2u(-LOG2E)}, v{st+1}")
            k(f"v_mul_f32 v{c1+1}, v{st+1}, v{st+1}")
            k(f"v_rcp_f32 v{c1+1}, v{c1+1}")
            T = TMP
            for f in range(6):
                a = ACC + 8 * f + 4 * tn
                for i in (0, 2):
                    k(f"v_pk_fma_f32 v[{a+i}:{a+i+1}], v[{WB+4*f+i}:{WB+4*f+i+1}], v[{st}:{st+1}], v[{a+i}:{a+i+1}] op_sel:[0,0,0] op_sel_hi:[1,0,1]")
            for f in range(3):
                g = ACC + 8 * f + 4 * tn
                for i in (0, 2):
                    k(f"v_pk_mul_f32 v[{T+4*f+i}:{T+4*f+i+1}], v[{g+i}:{g+i+1}], v[{c1}:{c1+1}] op_sel:[0,0] op_sel_hi:[1,0]")
            for e in range(12):
                k(f"v_exp_f32 v{T+e}, v{T+e}")
                if e % 4 == 0:
                    emit_one_vmem(fill)
            for f in range(3):
                g = ACC + 8 * f + 4 * tn
                u = g + 24
                for i in (0, 2):
                    k(f"v_pk_mul_f32 v[{g+i}:{g+i+1}], v[{g+i}:{g+i+1}], v[{u+i}:{u+i+1}]")
            for e in range(0, 12, 2):
                k(f"v_pk_fma_f32 v[{T+e}:{T+e+1}], v[{T+e}:{T+e+1}], v[{c1}:{c1+1}], v[{c1}:{c1+1}] op_sel:[0,1,1] op_sel_hi:[1,1,1]")
            for e in range(12):
                k(f"v_rcp_f32 v{T+e}, v{T+e}")
                if e % 4 == 0:
                    emit_one_vmem(fill)
            for f in range(3):
                g = ACC + 8 * f + 4 * tn
                for i in (0, 2):
                    k(f"v_pk_mul_f32 v[{T+4*f+i}:{T+4*f+i+1}], v[{T+4*f+i}:{T+4*f+i+1}], v[{g+i}:{g+i+1}]")
            O = TMP + 12 + 4 * tn
            for p in range(4):
                k(f"v_cvt_pk_bf16_f32 v{O+p}, v{T+2*p}, v{T+2*p+1}")
            for p in range(2):
                k(f"v_cvt_pk_bf16_f32 v{O2+2*tn+p}, v{T+8+2*p}, v{T+9+2*p}")
            if tn:
                k(f"s_add_u32 s13, s12, {HRT}")
            k(f"buffer_store_dwordx4 v[{O}:{O+3}], {VL16}, {srd(SH)}, s{12+tn} offen sc1", tag="hst")
        k(f"v_permlane16_swap_b32 v{O2}, v{O2+2}")
        k(f"v_permlane16_swap_b32 v{O2+1}, v{O2+3}")
        k(f"buffer_store_dwordx4 v[{O2}:{O2+3}], {VH2}, {srd(SH)}, s12 offen offset:1024 sc1", tag="hst")
        for x in fill:
            emit(x)

    def h_flag(layer, b):
        k("s_lshl_b32 s12, s4, 3")
        k("s_add_u32 s12, s12, s3")
        k("s_lshl_b32 s12, s12, 5")
        k("s_add_u32 s12, s12, s5")
        k("s_lshl_b32 s12, s12, 7")
        k(f"s_add_u32 s12, s12, {SY_HF + layer*0x40000 + b*0x4000}")
        k(f"v_mov_b32 v254, {SN}")
        k.wait_tag("hst")
        k(f"buffer_store_dword v254, {VFLAG}, {srd(SSY)}, s12 offen sc1")
        stamp(f"hf{layer}{b}")

    def h_poll_loads(layer, b):
        return [f"s_mov_b32 s13, {SY_HF + layer*0x40000 + b*0x4000}",
                ML(f"buffer_load_dword v{TMP+30}, {VFPOLL}, {srd(SSY)}, s13 offen sc1", 8)]

    def h_poll(layer, b):
        poll(h_poll_loads(layer, b), [f"v{TMP+30}"], None, nl=8, eq=SN)

    TAILK = int(os.environ.get("TAILK", "3"))
    RESF = TMP

    def g2_main(slot0, sched, res, dst):
        def areg(lt, tn):
            if tn == 0 and lt in (0, 1, 4):
                return dst + 4 * (lt if lt < 2 else 2)
            return ACC + 8 * lt + 4 * tn

        def mf(kk, lt, tn):
            a = areg(lt, tn)
            acc = f"v[{a}:{a+3}]"
            hr = ring(slot0 + 2 * kk + tn)
            wr = 4 * (5 * kk + lt)
            k(f"v_mfma_f32_16x16x32_bf16 {acc}, a[{wr}:{wr+3}], v[{hr}:{hr+3}], {acc if kk else 0}")

        for kk in range(12 - TAILK):
            L = sched.get(kk, [])
            nv = sum(1 for x in L if isvm(x))
            done = 0
            idx = 0
            if kk == 5:
                k.barrier()
            for tn in range(2):
                for lt in range(5):
                    mf(kk, lt, tn)
                    idx += 1
                    while done < nv and done * 10 < idx * nv - 5:
                        emit_one_vmem(L)
                        done += 1
            for x in L:
                emit(x)
        L = []
        for kk in range(12 - TAILK, 12):
            L += sched.get(kk, [])
        order = [(0, 1, 0), (1, 1, 1), (2, 0, 2), (3, 0, 3), (2, 1, 4), (3, 1, 5), (4, 1, 7), (4, 0, 6), (0, 0, None), (1, 0, None)]
        pend = []
        fillv = []
        for d in range(6):
            fillv += [f"v_lshlrev_b32 v{RESF+2*d}, 16, v{res+d}", f"v_and_b32 v{RESF+2*d+1}, 0xffff0000, v{res+d}"]
        fillv += [f"v_xor_b32 v{TMP+12+x}, {x << 13}, {VRW}" for x in range(1, 4)]
        for i, (lt, tn, slot) in enumerate(order):
            for kk in range(12 - TAILK, 12):
                mf(kk, lt, tn)
                if i >= 5 and fillv:
                    k(fillv.pop(0))
            if L:
                emit_one_vmem(L)
            if slot is not None:
                a = areg(lt, tn)
                pend.append((i, f"ds_write_b128 {VRW}, v[{a}:{a+3}] offset:{slot*1024}"))
            while pend and pend[0][0] <= i - 2:
                k(pend.pop(0)[1])
        for x in L + fillv:
            emit(x)
        for _, x in pend:
            k(x)

    def g2_reduce(dst, mid=None):
        if mid:
            mid()
        k.wait(lg=0)
        k.barrier()
        n = 0
        for x in range(1, 4):
            for sl_ in (2 * (x - 1), 2 * (x - 1) + 1, 6 + (x & 1)):
                k(f"ds_read_b128 v[{ACC+4*n}:{ACC+4*n+3}], v{TMP+12+x} offset:{sl_*1024}")
                n += 1
        for i in range(0, 12, 2):
            k(f"v_pk_add_f32 v[{dst+i}:{dst+i+1}], v[{dst+i}:{dst+i+1}], v[{RESF+i}:{RESF+i+1}]")
        for x in range(3):
            for i in range(0, 12, 2):
                r = ACC + 12 * x + i
                k(f"v_pk_add_f32 v[{dst+i}:{dst+i+1}], v[{dst+i}:{dst+i+1}], v[{r}:{r+1}]")

    def part_stats(src, b, region, pre_wait=None):
        part_calc(src, TMP + 16)
        part_pub(TMP + 16, b, region, pre_wait)

    def part_calc(src, a):
        q_ = a + 1
        t = TMP + 18
        u = TMP + 4
        k(f"v_pk_add_f32 v[{t}:{t+1}], v[{src+8}:{src+9}], v[{src+10}:{src+11}]")
        k(f"v_pk_mul_f32 v[{t+2}:{t+3}], v[{src+8}:{src+9}], v[{src+8}:{src+9}]")
        k(f"v_pk_fma_f32 v[{t+2}:{t+3}], v[{src+10}:{src+11}], v[{src+10}:{src+11}], v[{t+2}:{t+3}]")
        k(f"v_pk_add_f32 v[{u}:{u+1}], v[{src}:{src+1}], v[{src+2}:{src+3}]")
        k(f"v_pk_mul_f32 v[{t}:{t+1}], v[{t}:{t+1}], s[26:27]")
        k(f"v_pk_mul_f32 v[{t+2}:{t+3}], v[{t+2}:{t+3}], s[26:27]")
        k(f"v_pk_add_f32 v[{u+2}:{u+3}], v[{src+4}:{src+5}], v[{src+6}:{src+7}]")
        for i in range(0, 8, 2):
            k(f"v_pk_fma_f32 v[{t+2}:{t+3}], v[{src+i}:{src+i+1}], v[{src+i}:{src+i+1}], v[{t+2}:{t+3}]")
        k(f"v_pk_add_f32 v[{u}:{u+1}], v[{u}:{u+1}], v[{u+2}:{u+3}]")
        k(f"v_pk_add_f32 v[{t}:{t+1}], v[{t}:{t+1}], v[{u}:{u+1}]")
        k(f"v_add_f32 v{q_}, v{t+2}, v{t+3}")
        k(f"v_add_f32 v{a}, v{t}, v{t+1}")
        k(f"v_permlane16_swap_b32 v{a}, v{q_}")
        k(f"v_add_f32 v{a}, v{a}, v{q_}")
        k(f"v_mov_b32 v{q_}, v{a}")
        k(f"v_permlane32_swap_b32 v{a}, v{q_}")
        k(f"v_add_f32 v{a}, v{a}, v{q_}")
        k(f"v_mov_b32 v{q_}, v{a}")
        k(f"v_permlane16_swap_b32 v{a}, v{q_}")
        k(f"v_or_b32 v{q_}, 0x80000000, v{q_}")

    def part_pub(a, b, region, pre_wait=None):
        k(f"s_add_u32 s12, s23, {region + b*8*2048}") if False else None
        k(f"s_add_u32 s12, s60, {region + b*8*2048}")
        if pre_wait:
            k.wait_tag(pre_wait)
        k(f"buffer_store_dwordx2 v[{a}:{a+1}], {VGW}, {srd(SSY)}, s12 offen sc1")
        stamp(f"pub{2 if region == SY_ST2 else 3}{b}")

    def st2_loads(b, dst):
        return ["s_lshl_b32 s13, s16, 11", f"s_add_u32 s13, s13, {SY_ST2 + b*8*2048}"] + [
            f"buffer_load_dwordx2 v[{dst+2*i}:{dst+2*i+1}], {VGR}, {srd(SSY)}, s13 offen offset:{i*128} sc1"
            for i in range(4)]

    def st3_loads(b, dst):
        return ["s_lshl_b32 s13, s15, 11", f"s_add_u32 s13, s13, {SY_ST3 + b*8*2048}"] + [
            f"buffer_load_dwordx2 v[{dst+8*tn+2*i}:{dst+8*tn+2*i+1}], {VGR}, {srd(SSY)}, s13 offen offset:{tn*2048+i*128} sc1"
            for tn in range(2) for i in range(4)]

    def st1_loads(b, dst):
        return ["s_lshl_b32 s13, s15, 9", f"s_add_u32 s13, s13, {SY_ST1 + b*8*512}"] + [
            f"buffer_load_dwordx2 v[{dst+2*tn}:{dst+2*tn+1}], {VQ128}, {srd(SSY)}, s13 offen offset:{tn*512} sc1"
            for tn in range(2)]

    def sum_granules(g, n, tmp):
        for i in range(1, n):
            k(f"v_pk_add_f32 v[{g}:{g+1}], v[{g}:{g+1}], v[{g+2*i}:{g+2*i+1}]")
        for v in (g, g + 1):
            xsum16(k, f"v{v}", tmp)
            xsum32(k, f"v{v}", tmp)

    def finalize(b, x2, G):
        poll(st2_loads(b, G), [f"v{G+1}", f"v{G+3}", f"v{G+5}", f"v{G+7}"], f"v{TMP+20}")
        stamp(f"p2{b}")
        sum_granules(G, 4, f"v{TMP+20}")
        sp = TMP + 22
        finish_stats(f"v{G}", f"v{G+1}", sp)
        k(f"v_mul_f32 v{sp}, v{sp}, v{sp+1}")
        for d in range(6):
            unpack(k, f"v{TMP}", f"v{TMP+1}", f"v{YR[b]+d}")
            k(f"v_pk_fma_f32 v[{TMP+2}:{TMP+3}], v[{x2+2*d}:{x2+2*d+1}], v[{sp}:{sp+1}], v[{sp}:{sp+1}] op_sel:[0,1,0] op_sel_hi:[1,1,0]")
            k(f"v_pk_fma_f32 v[{x2+2*d}:{x2+2*d+1}], v[{TMP+2}:{TMP+3}], v[{TMP}:{TMP+1}], v[{x2+2*d}:{x2+2*d+1}]")
            k(f"v_cvt_pk_bf16_f32 v{X1R[b]+d}, v{x2+2*d}, v{x2+2*d+1}")
        k(f"s_add_u32 s13, s59, {XSPAN + b*8*XRT}")
        k("s_lshl_b32 s12, s14, 10")
        k("s_add_u32 s12, s12, s13")
        k(f"buffer_store_dwordx4 v[{X1R[b]}:{X1R[b]+3}], {VL16}, {srd(SX)}, s12 offen sc1", tag="xst")
        k(f"buffer_store_dwordx2 v[{X1R[b]+4}:{X1R[b]+5}], {VT4S}, {srd(SX)}, s13 offen offset:2048 sc1", tag="xst")
        for d in range(6):
            unpack(k, f"v{x2+2*d}", f"v{x2+2*d+1}", f"v{X1R[b]+d}")

    def stats1(b, STx):
        poll(st1_loads(b, TMP + 24), [f"v{TMP+25}", f"v{TMP+27}"], f"v{TMP+20}")
        for tn in range(2):
            sum_granules(TMP + 24 + 2 * tn, 1, f"v{TMP+20}")
            finish_stats(f"v{TMP+24+2*tn}", f"v{TMP+25+2*tn}", STx[tn])

    def stats3(b, STx):
        poll(st3_loads(b, TMP), [f"v{TMP+1+2*i}" for i in range(8)], f"v{TMP+20}")
        for tn in range(2):
            sum_granules(TMP + 8 * tn, 4, f"v{TMP+20}")
            finish_stats(f"v{TMP+8*tn}", f"v{TMP+8*tn+1}", STx[tn])

    def res_loads(b):
        L = [f"s_add_u32 s13, s62, {b*4*XBLK}", "s_lshl_b32 s12, s14, 11", "s_add_u32 s12, s12, s13",
             "s_add_u32 s13, s13, 4096"]
        for R, sr in ((X1R[b], SX), (YR[b], SY_)):
            L += [f"buffer_load_dwordx2 v[{R}:{R+1}], {VXP}, {srd(sr)}, s12 offen sc1",
                  f"buffer_load_dwordx2 v[{R+2}:{R+3}], {VXP}, {srd(sr)}, s12 offen offset:256 sc1",
                  f"buffer_load_dwordx2 v[{R+4}:{R+5}], {VL16}, {srd(sr)}, s13 offen sc1"]
        return L

    def out_store(b, src):
        for d in range(6):
            k(f"v_cvt_pk_bf16_f32 v{TMP+d}, v{src+2*d}, v{src+2*d+1}")
        k(f"v_mul_u32_u24 v{TMP+8}, 1280, {VROW}")
        k("s_mul_i32 s12, s8, 160")
        k(f"s_add_u32 s12, s12, {b*128*1280}")
        k("s_lshl_b32 s13, s14, 6")
        k("s_add_u32 s13, s13, s12")
        k(f"v_lshl_add_u32 v{TMP+9}, v3, 4, v{TMP+8}")
        k(f"v_lshl_add_u32 v{TMP+10}, v3, 3, v{TMP+8}")
        k("s_lshl_b32 s10, s14, 31")
        k(f"v_or_b32 v{TMP+10}, s10, v{TMP+10}")
        k(f"buffer_store_dwordx4 v[{TMP}:{TMP+3}], v{TMP+9}, {srd(SO)}, s13 offen")
        k(f"buffer_store_dwordx2 v[{TMP+4}:{TMP+5}], v{TMP+10}, {srd(SO)}, s12 offen offset:128")

    def g1b_sched(layer, extra):
        sched = {}
        hl = [h_loads(layer, 0, kk, 80 + 2 * kk) for kk in range(12)]
        for kk in range(20):
            L = []
            if kk + DIST < 20:
                L += x_loads(layer, 1, kk + DIST, 40 + 2 * (kk + DIST))
            L += extra.get(kk, [])
            if kk == 3:
                L += [lambda: h_flag(layer, 0)]
            if kk == 7:
                L += h_poll_loads(layer, 0)
            if kk == 12:
                L = [lambda: h_poll(layer, 0)] + h_pf(layer, 0) + L
            if kk >= 14:
                while hl and (12 - len(hl)) + 8 < kk and len([x for x in L if isvm(x)]) < 6:
                    L += hl.pop(0)
            sched[kk] = L
        return sched, hl


    k.prof_begin()
    k(f"s_cmp_ge_u32 s2, {k.grid}")
    k.branch("s_cbranch_scc1 main_end", flush=False)
    k("s_load_dwordx2 s[24:25], s[0:1], 96")
    k("s_load_dwordx2 s[26:27], s[0:1], 0")
    if DIAG:
        k("s_mov_b32 s101, 0")
    k("s_getpc_b64 s[60:61]")
    k.raw("mega_pc:")
    k(f"s_sub_u32 s60, s60, mega_pc-{KNAME}")
    k("s_subb_u32 s61, s61, 0")
    k(f"s_mov_b32 s62, main_code_end-{KNAME}")
    k("s_mov_b32 s63, 0x00020000")
    k("s_lshr_b32 s10, s2, 3")
    k("s_lshl_b32 s10, s10, 11")
    k("v_lshrrev_b32 v2, 4, v0")
    k("v_lshlrev_b32 v1, 7, v0")
    k("v_lshl_or_b32 v1, v2, 24, v1")
    k("buffer_load_dword v255, v1, s[60:63], s10 offen")
    in_srd(k, SDBG, 88, 256)
    k("v_lshrrev_b32 v1, 6, v0")
    k("v_readfirstlane_b32 s3, v1")
    k("v_and_b32 v1, 63, v0")
    k("v_and_b32 v2, 15, v0")
    k("v_bfe_u32 v3, v0, 4, 2")
    k(f"v_lshlrev_b32 {VL16}, 4, v1")
    def ffn_ids():
        if MAP == 1:
            k("s_and_b32 s4, s2, 7")
            k("s_lshr_b32 s5, s2, 3")
            k("s_lshr_b32 s7, s5, 3")
            k("s_and_b32 s8, s5, 7")
        elif MAP == 4:
            k("s_and_b32 s4, s2, 4")
            k("s_lshr_b32 s10, s2, 6")
            k("s_add_u32 s4, s4, s10")
            k("s_bfe_u32 s5, s2, 0x30003")
            k("s_and_b32 s10, s2, 3")
            k("s_lshl_b32 s10, s10, 3")
            k("s_add_u32 s5, s5, s10")
            k("s_and_b32 s7, s5, 3")
            k("s_lshr_b32 s8, s5, 2")
        else:
            k("s_and_b32 s4, s2, 6")
            k("s_lshr_b32 s10, s2, 7")
            k("s_add_u32 s4, s4, s10")
            k("s_bfe_u32 s5, s2, 0x40003")
            k("s_and_b32 s10, s2, 1")
            k("s_lshl_b32 s10, s10, 4")
            k("s_add_u32 s5, s5, s10")
            k("s_and_b32 s7, s5, 3")
            k("s_lshr_b32 s8, s5, 2")
        k("s_and_b32 s9, s3, 1")
        k("s_lshr_b32 s14, s3, 1")
        k("s_lshl_b32 s6, s4, 4")
        k("s_lshl_b32 s10, s3, 1")
        k("s_add_u32 s15, s6, s10")
        k("s_lshl_b32 s10, s7, 1")
        k("s_add_u32 s16, s6, s10")
        k("s_add_u32 s16, s16, s9")
        k(f"s_mul_i32 s17, s15, {XRT}")
        k("s_mul_i32 s18, s3, 3072")
        k(f"s_mul_i32 s19, s5, {WGU_M}")
        k("s_add_u32 s19, s19, s18")
        k("s_lshl_b32 s10, s8, 2")
        k("s_add_u32 s10, s10, s3")
        k("s_mul_i32 s10, s10, 61440")
        k("s_lshl_b32 s11, s14, 11")
        k("s_add_u32 s20, s10, s11")
        k("s_xor_b32 s11, s11, 2048")
        k("s_add_u32 s21, s10, s11")
        k("s_add_u32 s22, s10, 4096")
        k.srd(SWS, 24, WSB)
        k.srd(SW, 24, WGUB, WS_WGU)
        k.srd(SWD, 24, WDB, WS_WD)
        k.srd(SSY, 24, SYNCB, WS_SYNC)


    def wpoll_setup(va):
        k(f"v_lshrrev_b32 {va}, 1, v1")
        k(f"v_lshlrev_b32 {va}, 4, {va}")
        k("v_and_b32 v9, 1, v1")
        k("s_lshr_b32 s10, s5, 2")
        k("s_lshl_b32 s10, s10, 1")
        k(f"v_add3_u32 {va}, {va}, v9, s10")
        k("s_lshl_b32 s10, s3, 3")
        k("s_add_u32 s10, s10, 56")
        k("v_add_u32 v9, s10, v1")
        k("v_cmp_gt_u32 vcc, 8, v1")
        k(f"v_cndmask_b32 {va}, v9, {va}, vcc")
        k(f"v_lshlrev_b32 {va}, 7, {va}")
        k(f"v_add_u32 {va}, {SY_PF}, {va}")
        return [ML(f"buffer_load_dword v13, {va}, {srd(SSY)}, 0 offen sc1", 16)]

    k(f"s_cmp_lt_u32 s2, {NPREP}")
    k.branch("s_cbranch_scc1 main_prep", flush=False)
    saved0 = (list(k.vm), list(k.lg))
    in_srd(k, SA, 8, S * D * 2)
    in_srd(k, SB, 16, S * D * 2)
    in_srd(k, SW, 24, D * 8)
    in_srd(k, SWD, 32, 4096)
    in_srd(k, SSY, 40, D * 2)
    k(f"s_sub_u32 s56, s2, {NPREP}")
    k("s_lshr_b32 s57, s56, 4")
    k("s_and_b32 s58, s56, 15")
    k("s_lshl_b32 s59, s56, 2")
    k("s_add_u32 s60, s59, s3")
    k(f"s_mul_i32 s61, s3, {WREG}")
    k(f"s_add_u32 s61, s61, {CB}")
    k("v_lshrrev_b32 v4, 3, v1")
    k("v_and_b32 v5, 7, v1")
    k("s_lshl_b32 s10, s58, 7")
    k("s_lshl_b32 s11, s3, 5")
    k("s_add_u32 s10, s10, s11")
    k("v_lshlrev_b32 v6, 2, v4")
    k("v_add_u32 v6, s10, v6")
    k("v_mul_u32_u24 v7, 1280, v6")
    k("v_lshl_add_u32 v7, v5, 4, v7")
    k("s_lshl_b32 s12, s57, 7")
    k("v_add_u32 v7, s12, v7")
    KR, VR, WR = 16, 44, 60
    for j in (3, 4, 5, 6, 2, 1, 0):
        off = (j - 3) * 1280
        if off < 0:
            k(f"v_add_u32 v8, {off & 0xffffffff:#x}, v7")
            k(f"buffer_load_dwordx4 v[{KR+4*j}:{KR+4*j+3}], v8, {srd(SA)}, 0 offen")
        else:
            k(f"buffer_load_dwordx4 v[{KR+4*j}:{KR+4*j+3}], v7, {srd(SA)}, 0 offen offset:{off}")
    for i in range(4):
        k(f"buffer_load_dwordx4 v[{VR+4*i}:{VR+4*i+3}], v7, {srd(SB)}, 0 offen offset:{i*1280}")
    k("v_lshlrev_b32 v9, 6, v5")
    k("s_lshl_b32 s12, s57, 9")
    for i in range(4):
        k(f"buffer_load_dwordx4 v[{WR+4*i}:{WR+4*i+3}], v9, {srd(SW)}, s12 offen offset:{16*i}")
    k("s_lshl_b32 s12, s60, 12")
    k(f"s_add_u32 s{SWD}, s{SWD}, s12")
    k(f"s_addc_u32 s{SWD+1}, s{SWD+1}, 0")
    stamp("issued")
    k("s_lshl_b32 s10, s3, 6")
    k("s_sub_u32 s10, 248, s10")
    k("v_lshlrev_b32 v8, 3, v4")
    k("v_sub_u32 v8, s10, v8")
    k("v_lshlrev_b32 v9, 4, v5")
    k("v_xor_b32 v8, v8, v9")
    k("v_lshl_add_u32 v8, v5, 11, v8")
    WF = 80
    for c in range(8):
        unpack(k, f"v{WF+4*c}", f"v{WF+4*c+1}", f"v{WR+2*c}")
        unpack(k, f"v{WF+4*c+2}", f"v{WF+4*c+3}", f"v{WR+2*c+1}")
    k.wait(vm=0)
    stamp("Tld")
    k("v_mov_b32 v12, 0")
    zl0 = [ML(f"buffer_load_dword v13, v12, {srd(SDBG)}, 0 offen sc1", 1)]
    emit(zl0[0])
    k.srd(SA, 24, WSB)
    KF, VF, OUT = 112, 128, 136
    for cp in range(4):
        for j in range(7):
            unpack(k, f"v{KF+2*j}", f"v{KF+2*j+1}", f"v{KR+4*j+cp}")
        for i in range(4):
            unpack(k, f"v{VF+2*i}", f"v{VF+2*i+1}", f"v{VR+4*i+cp}")
        for h in range(2):
            c = 2 * cp + h
            O = OUT + 4 * h
            for i in range(4):
                k(f"v_mul_f32 v{O+i}, v{KF+2*(i+0)+h}, v{WF+4*c+3}")
            for t in (2, 1, 0):
                for i in range(4):
                    k(f"v_fmac_f32 v{O+i}, v{KF+2*(i+3-t)+h}, v{WF+4*c+t}")
            for i in range(4):
                k(f"v_mul_f32 v{O+i}, v{O+i}, v{VF+2*i+h}")
            p = 144 + 2 * h
            k(f"v_cvt_pk_bf16_f32 v{p}, v{O+3}, v{O+2}")
            k(f"v_cvt_pk_bf16_f32 v{p+1}, v{O+1}, v{O+0}")
            k(f"ds_write_b64 v8, v[{p}:{p+1}] offset:{c*256}")
    k("s_lshl_b32 s10, s3, 12")
    k("v_lshlrev_b32 v8, 8, v3")
    k("v_add_u32 v8, s10, v8")
    k("s_lshl_b32 s11, s3, 1")
    for jj in range(2):
        k(f"s_add_u32 s12, s11, {jj}")
        k(f"v_xor_b32 v{14+jj}, s12, v2")
        k(f"v_lshl_add_u32 v{14+jj}, v{14+jj}, 4, v8")
    k("v_lshlrev_b32 v9, 12, v3")
    k("v_lshl_add_u32 v9, v2, 4, v9")
    k("s_lshl_b32 s10, s57, 6")
    k("s_lshl_b32 s11, s3, 4")
    k("s_add_u32 s10, s10, s11")
    k("s_lshl_b32 s10, s10, 12")
    k("s_lshl_b32 s11, s58, 8")
    k("s_sub_u32 s11, 3840, s11")
    k("s_add_u32 s10, s10, s11")
    k.wait(lg=0)
    k.barrier()
    stamp("kv")
    for j in range(4):
        k(f"ds_read_b128 v[{16+4*j}:{19+4*j}], v{14+(j>>1)} offset:{j*1024}")
    for j in range(4):
        k(f"buffer_store_dwordx4 v[{16+4*j}:{19+4*j}], v9, {srd(SA)}, s10 offen sc1", tag="kvst")
        k("s_add_u32 s10, s10, 16384")
    HB = 160
    for p in range(4):
        k(f"buffer_load_dwordx4 v[{HB+8*p+4}:{HB+8*p+7}], {VL16}, {srd(SWD)}, 0 offen offset:{p*1024}")
        k(f"v_add_u32 v9, {(p*1024-8) & 0xffffffff:#x}, {VL16}")
        k(f"buffer_load_dwordx2 v[{HB+8*p+2}:{HB+8*p+3}], v9, {srd(SWD)}, 0 offen")
    k("s_lshl_b32 s12, s60, 1")
    k("v_mov_b32 v9, s12")
    k(f"buffer_load_ushort v11, v9, {srd(SSY)}, 0 offen")
    ffn_ids()
    k("v_mov_b32 v32, 0")
    k("v_mov_b32 v33, 0")
    k("v_lshlrev_b32 v8, 3, v1")
    k("v_add_u32 v8, s61, v8")
    k(f"ds_write_b64 v8, v[32:33] offset:{UOFF+4096}")
    k("v_bfe_u32 v8, v1, 2, 2")
    k(f"v_mul_u32_u24 v8, {CP}, v8")
    k("v_and_b32 v9, 3, v1")
    k("v_lshl_add_u32 v8, v9, 3, v8")
    k("v_add_u32 v8, s61, v8")
    k("ds_write_b64 v8, v[32:33]")
    k(f"v_add_u32 v8, s61, {VL16}")

    def copies(p):
        T = 48 + 12 * (p & 1)
        b = HB + 8 * p
        seq = [f"v{b+2+i}" for i in range(6)]
        off = 32 + p * 1024
        k(f"ds_write_b128 v8, v[{b+4}:{b+7}] offset:{off}")
        for j in range(4):
            k(f"v_alignbyte_b32 v{T+j}, {seq[2+j]}, {seq[1+j]}, 2")
        k(f"ds_write_b128 v8, v[{T}:{T+3}] offset:{off+CP}")
        for j in range(4):
            k(f"v_mov_b32 v{T+4+j}, {seq[1+j]}")
        k(f"ds_write_b128 v8, v[{T+4}:{T+7}] offset:{off+2*CP}")
        for j in range(4):
            k(f"v_alignbyte_b32 v{T+8+j}, {seq[1+j]}, {seq[j]}, 2")
        k(f"ds_write_b128 v8, v[{T+8}:{T+11}] offset:{off+3*CP}")

    poll(zl0, ["v13"], None, sleep=8, nl=1)
    k(f"v_readfirstlane_b32 {SN}, v13")
    k("v_cmp_eq_u32 vcc, 0, v1")
    k(f"v_mov_b32 v14, {OOB:#x}")
    k("v_cndmask_b32 v14, v14, v1, vcc")
    k("s_lshl_b32 s10, s56, 2")
    k("s_add_u32 s10, s10, s3")
    k("s_lshl_b32 s10, s10, 7")
    k(f"s_add_u32 s10, s10, {WS_SYNC + SY_GF}")
    k(f"v_mov_b32 v15, {SN}")
    k.wait_tag("kvst")
    k(f"buffer_store_dword v15, v14, {srd(SWS)}, s10 offen sc1")
    stamp("gf")
    for p in range(4):
        copies(p)
    k("v_sub_u32 v7, 3, v2")
    k("v_and_b32 v7, 3, v7")
    k("v_add3_u32 v8, v2, v7, 1")
    k("v_lshl_add_u32 v8, v3, 3, v8")
    k("v_lshlrev_b32 v8, 1, v8")
    k(f"v_mul_u32_u24 v7, {CP}, v7")
    k("v_add3_u32 v4, v7, v8, s61")
    k("v_lshlrev_b32 v7, 5, v2")
    k("v_lshlrev_b32 v8, 4, v3")
    k("v_sub_u32 v8, v8, v7")
    k(f"v_add_u32 v8, {UOFF+480}, v8")
    k("v_add_u32 v5, s61, v8")
    k("v_lshlrev_b32 v11, 16, v11")
    k("v_lshlrev_b32 v6, 7, v1")
    k("s_lshl_b32 s12, s57, 13")
    k(f"s_add_u32 s12, s12, {WS_SYNC + SY_GF}")
    gl = [f"buffer_load_dword v13, v6, {srd(SWS)}, s12 offen sc1"]
    k(gl[0])
    poll(gl, ["v13"], None, sleep=2, eq=SN)
    stamp("gp")
    k(f"s_add_u32 m0, s61, {UOFF}")
    k("s_lshl_b32 s12, s60, 12")
    for p in (3, 2, 1, 0):
        k(f"buffer_load_dwordx4 {VL16}, {srd(SWS)}, s12 offen offset:{p*1024} sc1 lds", tag="u")
    AB = [16, 48]
    CACC = 80
    BR = 112

    def rdA(n):
        I = n if n < 8 else n - 8
        L = []
        for r in range(8):
            i = 8 * I + r
            b = AB[n & 1] + 4 * r
            L.append(f"ds_read_b64 v[{b}:{b+1}], v4 offset:{64*i}")
            L.append(f"ds_read_b64 v[{b+2}:{b+3}], v4 offset:{64*i+8}")
        return L

    def bslot(C):
        return C if C < 4 else 7 - C

    def rdB(C):
        return [f"ds_read_b128 v[{BR+32*bslot(C)+4*r}:{BR+32*bslot(C)+4*r+3}], v5 offset:{64*(56-(8*C-r))}" for r in range(8)]

    k("v_lshlrev_b32 v6, 3, v3")
    k("v_add_u32 v6, v6, v2")
    k("v_sub_u32 v6, 15, v6")
    k("v_lshrrev_b32 v7, 16, v11")
    k("v_and_b32 v8, 1, v6")
    k("v_cmp_eq_u32 vcc, 1, v8")
    k("v_cndmask_b32 v7, v7, v11, vcc")
    k("v_ashrrev_i32 v6, 1, v6")
    for d in range(4):
        k(f"v_cmp_eq_u32 vcc, {d}, v6")
        k("v_cndmask_b32 v8, 0, v7, vcc")
        k(f"v_accvgpr_write_b32 a{240+d}, v8")
    STG = [2112, CP + 2112]
    SBQ = [240, BR + 8]
    QB = [248, BR]
    k("s_lshl_b32 s10, s3, 11")
    k("v_lshlrev_b32 v6, 3, v1")
    k("v_add_u32 v6, s10, v6")
    k(f"v_mul_u32_u24 v7, {XRT}, v3")
    k("v_lshl_add_u32 v7, v2, 4, v7")
    k(f"s_mul_i32 s57, s3, {16*XRT}")
    k("s_lshr_b32 s10, s56, 1")
    k("s_lshl_b32 s10, s10, 8")
    k("s_add_u32 s57, s57, s10")
    k("s_and_b32 s10, s56, 1")
    k("s_lshl_b32 s10, s10, 3")
    k("s_add_u32 s57, s57, s10")
    k(f"s_mul_i32 s58, s3, {8*XBLK}")
    k("s_lshl_b32 s10, s56, 8")
    k("s_add_u32 s58, s58, s10")
    k("s_mul_i32 s59, s3, 160")
    k("s_add_u32 s59, s59, s56")
    k("s_lshl_b32 s59, s59, 7")
    k(f"s_add_u32 s59, s59, {SY_CF}")
    pcl = wpoll_setup("v12")
    k("s_lshl_b32 s10, s3, 11")
    k(f"s_add_u32 s62, s10, {SY_QF}")
    k("v_lshlrev_b32 v8, 7, v2")
    k("v_lshl_add_u32 v8, v3, 13, v8")
    qfl = [ML(f"buffer_load_dword v9, v8, {srd(SSY)}, s62 offen sc1", 32)]

    def q_ld(hf):
        L = [f"s_mov_b32 s13, {WS_QST + hf*8192}"]
        for it in range(4):
            L += [f"buffer_load_dwordx2 v[{SBQ[hf]+2*it}:{SBQ[hf]+2*it+1}], v6, {srd(SWS)}, s13 offen offset:{it*512} sc1",
                  f"s_add_u32 s12, s57, {WS_QX + (64*hf + 4*it)*XRT}",
                  f"buffer_load_dwordx2 v[{QB[hf]+2*it}:{QB[hf]+2*it+1}], v7, {srd(SWS)}, s12 offen sc1"]
        return L

    def addr2():
        return ["v_lshlrev_b32 v11, 5, v2", "v_lshl_add_u32 v11, v3, 3, v11", "v_add_u32 v11, s61, v11",
                "v_bfe_u32 v8, v1, 2, 2", f"v_mul_u32_u24 v8, {WREG}, v8", "v_and_b32 v9, 3, v1",
                "v_lshl_add_u32 v8, v9, 3, v8", "v_lshl_add_u32 v8, v3, 5, v8", "s_lshl_b32 s10, s3, 9",
                f"s_add_u32 s10, s10, {CB}", "v_add_u32 v8, s10, v8",
                "v_and_b32 v0, 1, v3", "v_lshrrev_b32 v9, 1, v3", "v_lshl_add_u32 v9, v0, 1, v9",
                f"v_mul_u32_u24 v9, {XBLK}, v9", "v_lshl_add_u32 v9, v2, 4, v9"]

    def stage_blk(c):
        a_ = CACC + 4 * c
        return [f"v_cvt_pk_bf16_f32 v{a_}, v{a_}, v{a_+1}", f"v_cvt_pk_bf16_f32 v{a_+1}, v{a_+2}, v{a_+3}",
                f"ds_write_b64 v11, v[{a_}:{a_+1}] offset:{STG[c>>2] + (c&3)*512}"]

    def sync():
        k.wait(lg=0)
        k.barrier()

    def out_half(hf, YB, XO, T):
        L = [f"ds_read_b64_tr_b16 v[{YB+2*it}:{YB+2*it+1}], v8 offset:{STG[hf] + it*128}" for it in range(4)]
        for it in range(4):
            y0, q0, st = YB + 2 * it, QB[hf] + 2 * it, SBQ[hf] + 2 * it
            for d in range(2):
                L += [f"v_lshlrev_b32 v{T+2}, 16, v{q0+d}", f"v_and_b32 v{T+3}, 0xffff0000, v{q0+d}",
                      f"v_lshlrev_b32 v{T}, 16, v{y0+d}", f"v_and_b32 v{T+1}, 0xffff0000, v{y0+d}",
                      f"v_fma_f32 v{T+4}, v{T+2}, v{st+1}, -v{st}", f"v_fma_f32 v{T+5}, v{T+3}, v{st+1}, -v{st}",
                      f"v_fmac_f32 v{T+2}, v{T+4}, v{T}", f"v_fmac_f32 v{T+3}, v{T+5}, v{T+1}",
                      f"v_cvt_pk_bf16_f32 v{XO+2*it+d}, v{T+2}, v{T+3}"]
            if it & 1:
                for o, base in ((YB + 2 * (it - 1), WS_Y), (XO + 2 * (it - 1), WS_X1)):
                    L += [f"v_permlane16_swap_b32 v{o}, v{o+2}", f"v_permlane16_swap_b32 v{o+1}, v{o+3}",
                          f"s_add_u32 s12, s58, {base + (32*hf + (it-1)*2)*XBLK}",
                          (f"buffer_store_dwordx4 v[{o}:{o+3}], v9, {srd(SWS)}, s12 offen sc1", f"cst{hf}")]
        return L

    wl = []
    for p in range(6):
        wl += wgu_dma(p)
    for i in range(NE1):
        wl += wd_load(i)
    k.wait(lg=0)
    a0, b0 = rdA(0), rdB(0)
    for x in a0:
        k(x)
    k.wait_tag("u")
    stamp("ready")
    for x in b0:
        k(x)
    started = set()
    early = []
    side = []
    tot = 0
    for n in range(12):
        I = n if n < 8 else n - 8
        Cs = [C for C in (range(4) if n < 8 else range(4, 8)) if C + I <= 7]
        pend = rdA(n + 1) if n < 11 else []
        bpend = {5: rdB(4), 6: rdB(5), 7: rdB(6), 8: rdB(7)}.get(n) or []
        nm = 8 * len(Cs)
        cnt = 0
        if n == PPN - 1:
            emit(pcl[0])
        if n == PPN:
            poll(pcl, ["v13"], None, sleep=4, nl=16, eq=SN)
            stamp("pp")
        if n == QPN - 2:
            early = list(qfl)
        if n == 6:
            side += addr2()[:3]
        if n == QPN:
            poll(qfl, ["v9"], None, sleep=4, nl=32, eq=SN)
            early = q_ld(0)
            side += addr2()[3:]
        if n == 7:
            for c in range(4):
                side += stage_blk(c)
            side += [sync] + out_half(0, CACC + 2, CACC + 10, 12) if False else [sync]
        if n == 9:
            early = early + q_ld(1)
            side += out_half(0, CACC, CACC + 8, BR + 16) + stage_blk(4)
        if n == 10:
            side += stage_blk(5)
        if n == 11:
            side += stage_blk(6)
        for C in Cs:
            c = C + I
            nb = rdB(C + 1) if (n == 0 and C < 3) else []
            for r in range(8):
                if nb:
                    k(nb.pop(0))
                a = AB[n & 1] + 4 * r
                b = BR + 32 * bslot(C) + 4 * r
                acc = f"v[{CACC+4*c}:{CACC+4*c+3}]"
                src = acc if c in started else "0"
                started.add(c)
                k(f"v_mfma_f32_16x16x32_bf16 {acc}, v[{a}:{a+3}], v[{b}:{b+3}], {src}")
                if I == 0 and r == 0:
                    k(f"v_mfma_f32_16x16x32_bf16 {acc}, a[240:243], v[{b}:{b+3}], {acc}")
                cnt += 1
                tot += 1
                while pend and (16 - len(pend)) * max(nm - 4, 4) < cnt * 16:
                    k(pend.pop(0))
                if bpend and cnt % 2 == 0:
                    k(bpend.pop(0))
                if early:
                    if tot % 2 == 0:
                        emit_one_vmem(early)
                elif n >= PPN and tot % EVERY == 0 and tot <= LASTW:
                    emit_one_vmem(wl)
                for _ in range(2):
                    if side and not (early and isinstance(side[0], str) and side[0].startswith("s_add_u32 s12")):
                        x = side.pop(0)
                        emit(x)
                        if isinstance(x, str) and x.startswith("s_add_u32 s12"):
                            emit(side.pop(0))
        for x in pend + bpend:
            k(x)
    stamp("mfma")
    for x in early + stage_blk(7) + side:
        emit(x)
    sync()
    for x in out_half(1, 16, 24, 32):
        emit(x)
    stamp("cst")
    k.wait_tag("cst0")
    k(f"buffer_store_dword v15, v14, {srd(SSY)}, s59 offen sc1")
    k(f"s_add_u32 s59, s59, {4*160*128}")
    for _ in range(NB):
        emit_one_vmem(wl)
    k.wait_tag("cst1")
    k(f"buffer_store_dword v15, v14, {srd(SSY)}, s59 offen sc1")
    stamp("cf")
    print("weight loads after cf:", sum(1 for x in wl if isvm(x)))
    for x in wl:
        emit(x)
    k.wait(lg=0)
    k.flush_hazards()
    k.branch("s_branch main_join", flush=False)

    k.label("main_prep", flush=False)
    k.vm, k.lg = list(saved0[0]), list(saved0[1])
    k("s_or_b32 s10, s2, s3")
    k("s_cmp_lg_u32 s10, 0")
    k.branch("s_cbranch_scc1 main_nonce_done", flush=False)
    k("s_memrealtime s[56:57]")
    k("s_or_b32 s56, s56, 1")
    k("v_mov_b32 v13, s56")
    k("v_mov_b32 v11, 0")
    ML(f"buffer_store_dword v13, v11, {srd(SDBG)}, 0 offen sc1", 1)()
    k.label("main_nonce_done", flush=False)
    k.vm, k.lg = list(saved0[0]), list(saved0[1])
    k("s_and_b32 s10, s2, 1")
    k("s_lshl_b32 s10, s10, 3")
    k("s_add_u32 s10, s10, 56")
    k("s_cmp_lt_u32 s2, 64")
    k("s_cselect_b32 s10, s10, 72")
    k(f"s_load_dwordx2 s[{SA}:{SA+1}], s[0:1], s10")
    k(f"s_mov_b32 s{SA+2}, {D*F*2}")
    k(f"s_mov_b32 s{SA+3}, 0x00020000")
    k(f"v_mov_b32 v14, {OOB:#x}")
    k("s_mov_b32 s58, 0x05040100")
    k("s_mov_b32 s59, 0x07060302")
    k("v_mov_b32 v12, 0x3f803f80")
    ffn_ids()
    k("v_mov_b32 v244, 0")
    zl = [ML(f"buffer_load_dword v245, v244, {srd(SDBG)}, 0 offen sc1", 1)]

    def q_job():
        if QPOS == 1:
            q_loads()
        emit(zl[0])
        for i in range(4):
            k(f"v_mov_b32 v{240+i}, 0")
        k.srd(SB, 24, SY_HF, WS_SYNC)
        k("s_lshl_b32 s12, s2, 13")
        k("v_lshlrev_b32 v204, 4, v0")
        for i in range(2):
            k(f"buffer_store_dwordx4 v[240:243], v204, {srd(SB)}, s12 offen sc1")
            k("s_add_u32 s12, s12, 4096")

    QR = 80

    def q_loads():
        k.srd(SB, 26, S * D * 2)
        k("s_mul_i32 s62, s3, 96")
        k("s_add_u32 s62, s62, s2")
        k("s_cmp_lt_u32 s62, 128")
        k("s_cselect_b32 s63, 0, 0x40000000")
        k(f"s_mul_i32 s56, s62, {XRT}")
        k("s_add_u32 s56, s56, s63")
        k("v_mul_u32_u24 v11, 1280, v2")
        k("v_lshl_add_u32 v11, v3, 4, v11")
        for i in range(20):
            k(f"buffer_load_dwordx4 v[{QR+4*i}:{QR+4*i+3}], v11, {srd(SB)}, s56 offen offset:{64*i}")

    def q_flag():
        poll(zl, ["v245"], None, sleep=4, nl=1)
        k(f"v_readfirstlane_b32 {SN}, v245")
        k(f"v_mov_b32 v15, {SN}")

    def item_idx(magic, n):
        for ps in range(2):
            o, ch = f"v{4+2*ps}", f"v{5+2*ps}"
            k(f"v_add_u32 v8, {256*ps}, v0")
            k(f"v_mul_u32_u24 {o}, {magic}, v8")
            k(f"v_lshrrev_b32 {o}, 16, {o}")
            k(f"v_mul_u32_u24 {ch}, {n}, {o}")
            k(f"v_sub_u32 {ch}, v8, {ch}")

    def item_loads(pitch):
        k(f"v_mul_u32_u24 v8, {8*pitch}, v4")
        k("v_lshl_add_u32 v8, v5, 4, v8")
        k(f"v_mul_u32_u24 v9, {8*pitch}, v6")
        k("v_lshl_add_u32 v9, v7, 4, v9")
        k("v_cmp_gt_u32 vcc, 224, v0")
        k("v_cndmask_b32 v9, v14, v9, vcc")
        for ps in range(2):
            k("s_mov_b32 s11, s10")
            for i in range(8):
                k(f"buffer_load_dwordx4 v[{16+32*ps+4*i}:{19+32*ps+4*i}], v{8+ps}, {srd(SA)}, s11 offen")
                if i < 7:
                    k(f"s_add_u32 s11, s11, {pitch}")
        q_job()

    def stage(magic, sh, n, blk, opart, pairb, npair, second):
        for ps in range(2):
            o, ch = f"v{4+2*ps}", f"v{5+2*ps}"
            k(f"v_mul_u32_u24 v161, {magic}, {ch}")
            k(f"v_lshrrev_b32 v161, {sh}, v161")
            k(f"v_mul_u32_u24 v162, {n}, v161")
            k(f"v_sub_u32 {ch}, {ch}, v162")
            opart(o)
            k(f"v_mul_u32_u24 v161, {blk}, v161")
            k("v_add_u32 v160, v160, v161")
            k(f"v_lshrrev_b32 v161, 2, {ch}")
            k(f"v_mul_u32_u24 v161, {pairb}, v161")
            k("v_add_u32 v160, v160, v161")
            k(f"v_and_b32 v161, 3, {ch}")
            k("v_lshlrev_b32 v162, 6, v161")
            k("v_lshlrev_b32 v163, 7, v161")
            k(f"v_cmp_gt_u32 vcc, {npair}, {ch}")
            k("v_cndmask_b32 v162, v163, v162, vcc")
            k(f"v_add_u32 {o}, v160, v162")
            k("v_mov_b32 v162, 64")
            k(f"v_mov_b32 v163, {second}")
            k("v_cndmask_b32 v162, v162, v163, vcc")
            k(f"v_add_u32 {ch}, {o}, v162")
        k("v_cmp_gt_u32 vcc, 224, v0")
        k("v_mov_b32 v160, 61440")
        k("v_cndmask_b32 v6, v160, v6, vcc")
        k("v_cndmask_b32 v7, v160, v7, vcc")
        for ps in range(2):
            src = 16 + 32 * ps
            for e in range(8):
                o = 160 + 4 * e
                for p in range(4):
                    k(f"v_perm_b32 v{o+p}, v{src+4*(2*p+1)+e//2}, v{src+4*(2*p)+e//2}, s{58+(e&1)}")
                k(f"ds_write_b128 v{4+2*ps+(e>>2)}, v[{o}:{o+3}] offset:{(e&3)*16}")
        q_flag()
        if QPOS == 3:
            q_loads()
        k.wait(lg=0)
        k.barrier()
        stamp("mfma")


    k("s_cmp_ge_u32 s2, 64")
    k.branch("s_cbranch_scc1 main_prep_wd", flush=False)
    sv = (list(k.vm), list(k.lg))
    item_idx(2731, 24)
    k("s_bfe_u32 s60, s2, 0x30001")
    k("s_lshr_b32 s61, s2, 4")
    k(f"s_mul_i32 s10, s61, {160*3072}")
    k("s_mul_i32 s11, s60, 384")
    k("s_add_u32 s10, s10, s11")
    item_loads(3072)

    def op_wgu(o):
        k(f"v_lshrrev_b32 v160, 2, {o}")
        k("v_mul_u32_u24 v160, 3072, v160")
        k(f"v_and_b32 v162, 3, {o}")
        k("v_lshl_add_u32 v160, v162, 8, v160")
    stage(43, 8, 6, 15360, op_wgu, 2048, 4, 1024)
    k("s_mul_i32 s13, s3, 15360")
    k(f"v_add_u32 v4, s13, {VL16}")
    k("s_lshl_b32 s12, s60, 2")
    k("s_add_u32 s12, s12, s3")
    k(f"s_mul_i32 s10, s12, {WGU_M}")
    k("s_mul_i32 s11, s61, 30720")
    k("s_add_u32 s10, s10, s11")
    k("s_and_b32 s13, s2, 1")
    k("s_mul_i32 s11, s13, 3072")
    k("s_add_u32 s10, s10, s11")
    k(f"s_add_u32 s10, s10, {WS_WGU}")
    for j in range(15):
        k(f"ds_read_b128 v[{16+4*j}:{19+4*j}], v4 offset:{j*1024}")
    for t in range(3):
        k(f"v_mov_b32 v{5+t}, 0")
    for j in range(15):
        k(f"buffer_store_dwordx4 v[{16+4*j}:{19+4*j}], {VL16}, {srd(SWS)}, s10 offen offset:{(j%3)*1024} sc1")
        if j % 3 == 2:
            k("s_add_u32 s10, s10, 6144")
        for p in range(4):
            k(f"v_dot2c_f32_bf16 v{5+j%3}, v{16+4*j+p}, v12")
    for t in range(3):
        xsum16(k, f"v{5+t}", "v8")
        xsum32(k, f"v{5+t}", "v8")
    k("v_cmp_eq_u32 vcc, 1, v3")
    k("v_cndmask_b32 v5, v5, v6, vcc")
    k("v_cmp_eq_u32 vcc, 2, v3")
    k("v_cndmask_b32 v5, v5, v7, vcc")
    k("v_lshlrev_b32 v6, 2, v1")
    k("v_cmp_gt_u32 vcc, 48, v1")
    k("v_cndmask_b32 v6, v14, v6, vcc")
    k("s_lshl_b32 s10, s12, 11")
    k("s_lshl_b32 s11, s61, 9")
    k("s_add_u32 s10, s10, s11")
    k("s_mul_i32 s11, s13, 192")
    k("s_add_u32 s10, s10, s11")
    k(f"s_add_u32 s10, s10, {WS_CS}")
    k(f"buffer_store_dword v5, v6, {srd(SWS)}, s10 offen sc1")

    if QPOS == 2:
        q_loads()
        k.wait(vm=20)
    else:
        k.wait(vm=0)
    k.flush_hazards()
    k.branch("s_branch main_prep_pub", flush=False)
    k.label("main_prep_wd", flush=False)
    k.vm, k.lg = sv
    item_idx(820, 80)
    k("s_sub_u32 s60, s2, 64")
    k(f"s_mul_i32 s10, s60, {48*1280}")
    item_loads(1280)

    def op_wd(o):
        k(f"v_lshlrev_b32 v160, 8, {o}")
    stage(205, 11, 10, 7680, op_wd, 3072, 8, 1536)
    k("s_mul_i32 s13, s3, 15360")
    k(f"v_add_u32 v4, s13, {VL16}")
    k("v_lshrrev_b32 v6, 1, v3")
    k("v_and_b32 v7, 1, v3")
    k("v_mul_u32_u24 v5, 7680, v6")
    k("v_lshl_add_u32 v5, v7, 8, v5")
    k("v_lshl_add_u32 v5, v2, 4, v5")
    k("v_add_u32 v5, s13, v5")
    k("s_mul_i32 s11, s60, 6")
    k("v_add_u32 v8, s11, v3")
    k("v_add3_u32 v9, v7, s11, 4")
    for v in ("v8", "v9"):
        k(f"v_lshrrev_b32 v13, 2, {v}")
        k("v_mul_u32_u24 v13, 5120, v13")
        k(f"v_and_b32 {v}, 3, {v}")
        k(f"v_lshl_add_u32 {v}, {v}, 8, v13")
        k(f"v_lshl_add_u32 {v}, v2, 4, {v}")
    k(f"v_mul_u32_u24 v13, {48*5120}, v6")
    k("v_add_u32 v9, v9, v13")
    k(f"s_mul_i32 s10, s3, {2*48*5120}")
    k(f"s_add_u32 s10, s10, {WS_WD}")
    plan = []
    for t in range(5):
        plan += [("v4", t * 1536, "v8", t * 1024), ("v4", 7680 + t * 1536, "v8", 48 * 5120 + t * 1024), ("v5", 1024 + t * 1536, "v9", t * 1024)]
    for j, (la, lo, ga, go) in enumerate(plan):
        k(f"ds_read_b128 v[{16+4*j}:{19+4*j}], {la} offset:{lo}")
    for j, (la, lo, ga, go) in enumerate(plan):
        k(f"s_add_u32 s11, s10, {go}")
        k(f"buffer_store_dwordx4 v[{16+4*j}:{19+4*j}], {ga}, {srd(SWS)}, s11 offen sc1")

    if QPOS == 2:
        q_loads()
        k.wait(vm=20)
    else:
        k.wait(vm=0)
    k.flush_hazards()
    k.label("main_prep_pub", flush=False)
    k.barrier()
    k("s_lshl_b32 s10, s2, 7")
    k(f"s_add_u32 s10, s10, {SY_PF}")
    k("s_cmp_eq_u32 s3, 0")
    k("s_cselect_b32 s10, s10, 0x40000000")
    k("v_mov_b32 v204, 0")
    ML(f"buffer_store_dword v15, v204, {srd(SSY)}, s10 offen sc1", 1)()
    stamp("cf")
    k(f"s_add_u32 s12, s56, {WS_QX}")
    k("v_mov_b32 v200, 0")
    k("v_mov_b32 v201, 0")
    for i in range(20):
        if i % 4 == 0 and i:
            k("s_add_u32 s12, s12, 4096")
        k(f"buffer_store_dwordx4 v[{QR+4*i}:{QR+4*i+3}], {VL16}, {srd(SWS)}, s12 offen offset:{(i%4)*1024} sc1")
        for d in range(4):
            k(f"v_dot2c_f32_bf16 v200, v{QR+4*i+d}, v12")
            k(f"v_dot2c_f32_bf16 v201, v{QR+4*i+d}, v{QR+4*i+d}")
    for v in ("v200", "v201"):
        xsum16(k, v, "v205")
        xsum32(k, v, "v205")
    k(f"v_mul_f32 v200, {f2u(1.0/D)}, v200")
    k(f"v_mul_f32 v201, {f2u(1.0/D)}, v201")
    k("v_fma_f32 v201, -v200, v200, v201")
    k("v_max_f32 v201, 0, v201")
    k(f"v_add_f32 v201, {f2u(EPS)}, v201")
    k("v_rsq_f32 v203, v201")
    k("v_mul_f32 v202, v200, v203")
    k("s_lshl_b32 s57, s62, 7")
    k("s_add_u32 s57, s57, s63")
    k(f"s_add_u32 s12, s57, {WS_QST}")
    k("v_lshlrev_b32 v205, 3, v1")
    ML(f"buffer_store_dwordx2 v[202:203], v205, {srd(SWS)}, s12 offen sc1", 16)()
    k(f"s_add_u32 s12, s57, {SY_QF}")
    k.wait(vm=0)
    ML(f"buffer_store_dword v15, v204, {srd(SSY)}, s12 offen sc1", 1)()
    stamp("cst")
    pl = wpoll_setup("v8")
    emit(pl[0])
    poll(pl, ["v13"], None, sleep=4, nl=16, eq=SN)
    stamp("pp")
    for p in range(10):
        for x in wgu_dma(p):
            emit(x)
    for i in range(NEP):
        for x in wd_load(i):
            emit(x)
    k.wait(lg=0)
    k.flush_hazards()

    k.label("main_join", flush=False)
    k.vm = [(set(), "unk")] * 63
    k("s_load_dwordx2 s[26:27], s[0:1], 80")
    k(f"v_add_u32 {VL16B}, 61440, {VL16}")
    k.srd(SX, 24, XSPAN + XFB, WS_X1)
    k.srd(SH, 24, HSPAN + HFB, WS_H)
    k.srd(SY_, 24, XFB, WS_Y)
    k(f"s_mul_i32 s56, s15, {HRT}")
    k("s_mul_i32 s10, s5, 1536")
    k("s_add_u32 s56, s56, s10")
    k("s_mul_i32 s10, s3, 12288")
    k(f"s_mul_i32 s57, s16, {HRT}")
    k("s_add_u32 s57, s57, s10")
    k("s_xor_b32 s11, s16, 1")
    k(f"s_mul_i32 s58, s11, {HRT}")
    k("s_add_u32 s58, s58, s10")
    k(f"s_mul_i32 s59, s16, {XRT}")
    k("s_mul_i32 s10, s8, 2560")
    k("s_add_u32 s59, s59, s10")
    k("v_and_b32 v204, 1, v3")
    k("v_lshrrev_b32 v205, 1, v3")
    k(f"v_mul_u32_u24 {VH2}, {HRT}, v204")
    k("v_lshlrev_b32 v206, 4, v2")
    k("v_lshl_add_u32 v206, v205, 8, v206")
    k(f"v_add_u32 {VH2}, {VH2}, v206")
    k(f"v_lshl_add_u32 {VT4}, v204, 3, v206")
    k("s_lshl_b32 s10, s14, 31")
    k(f"v_or_b32 {VT4S}, s10, {VT4}")
    k("s_lshl_b32 s10, s16, 4")
    k(f"v_add_u32 {VROW}, s10, v2")
    k(f"v_lshlrev_b32 {VGR}, 3, v2")
    k("v_cmp_eq_u32 vcc, 0, v3")
    k(f"v_mov_b32 v204, {OOB:#x}")
    k(f"v_cndmask_b32 {VGW}, v204, {VGR}, vcc")
    k(f"v_lshl_add_u32 {VQ128}, v3, 7, {VGR}")
    k(f"v_lshl_add_u32 {VGR}, v3, 9, {VGR}")
    k("v_cmp_eq_u32 vcc, 0, v1")
    k(f"v_cndmask_b32 {VFLAG}, v204, v1, vcc")
    k("s_lshl_b32 s10, s4, 3")
    k("s_add_u32 s10, s10, s7")
    k("s_lshl_b32 s10, s10, 5")
    k("s_lshl_b32 s11, s3, 3")
    k("s_add_u32 s10, s10, s11")
    k(f"v_and_b32 {VFPOLL}, 7, v1")
    k(f"v_add_u32 {VFPOLL}, s10, {VFPOLL}")
    k(f"v_lshlrev_b32 {VFPOLL}, 7, {VFPOLL}")
    k(f"v_lshlrev_b32 {VXP}, 4, v2")
    k(f"v_lshl_add_u32 {VXP}, v3, 9, {VXP}")
    k("s_lshr_b32 s10, s16, 1")
    k(f"s_mul_i32 s62, s10, {XBLK}")
    k("s_mul_i32 s10, s8, 5120")
    k("s_add_u32 s62, s62, s10")
    k("s_lshl_b32 s10, s9, 3")
    k("s_add_u32 s62, s62, s10")
    k("s_lshr_b32 s10, s5, 2")
    k("s_lshl_b32 s11, s4, 3")
    k("s_add_u32 s63, s10, s11")
    k(f"s_mul_i32 s60, s63, {XBLK}")
    k("s_mul_i32 s10, s3, 10240")
    k("s_add_u32 s60, s60, s10")
    k("s_and_b32 s61, s5, 3")
    k("s_lshl_b32 s10, s61, 6")
    k("s_add_u32 s60, s60, s10")
    k("v_and_b32 v188, 3, v1")
    k("v_lshrrev_b32 v189, 2, v1")
    k("v_lshlrev_b32 v189, 8, v189")
    k("v_lshl_add_u32 v189, v188, 4, v189")
    k("v_cmp_gt_u32 vcc, 32, v1")
    k("v_cndmask_b32 v190, v204, v189, vcc")
    k("s_lshl_b32 s10, s5, 11")
    k(f"s_add_u32 s10, s10, {WS_CS}")
    k("v_lshlrev_b32 v197, 3, v1")
    for i in range(4):
        k(f"buffer_load_dwordx2 v[{208+2*i}:{209+2*i}], v197, {srd(SWS)}, s10 offen offset:{i*512} sc1")
    k.srd(SO, 26, XFB)
    k("s_mul_i32 s10, s4, 160")
    k("s_mul_i32 s11, s3, 40")
    k("s_add_u32 s10, s10, s11")
    k("s_lshl_b32 s10, s10, 7")
    k(f"s_add_u32 s10, s10, {SY_CF}")
    k("s_mul_i32 s11, s3, 3072")
    k(f"s_add_u32 s11, s11, {SY_PF - 40*128}")
    k("v_mov_b32 v205, s10")
    k("v_mov_b32 v206, s11")
    k("v_cmp_gt_u32 vcc, 40, v1")
    k("v_cndmask_b32 v205, v206, v205, vcc")
    k("v_lshl_add_u32 v205, v1, 7, v205")
    k(f"v_add_u32 v197, {LC}, v197")
    k("v_pk_add_f32 v[208:209], v[208:209], v[210:211]")
    k("v_pk_add_f32 v[212:213], v[212:213], v[214:215]")
    k("v_pk_add_f32 v[208:209], v[208:209], v[212:213]")
    k(f"s_cmp_ge_u32 s2, {NPREP}")
    k.branch("s_cbranch_scc1 main_nogate", flush=False)
    svg = (list(k.vm), list(k.lg))
    c1 = [ML(f"buffer_load_dword v206, v205, {srd(SSY)}, 0 offen sc1", 1)]
    emit(c1[0])
    poll(c1, ["v206"], None, sleep=6, nl=1, eq=SN)
    k.label("main_nogate", flush=False)
    k.vm, k.lg = svg
    cl = [f"buffer_load_dword v206, v205, {srd(SSY)}, 0 offen sc1"]
    emit(cl[0])
    poll(cl, ["v206"], None, sleep=2, eq=SN)
    k.vm = []
    k.barrier()
    stamp("join")
    k("ds_write_b64 v197, v[208:209]")
    for kk in range(4):
        for x in x_loads(0, 0, kk, 2 * kk):
            emit(x)
    SR = 192
    for i in range(3):
        k(f"s_add_u32 s12, s60, {i*4096}")
        k(f"buffer_load_dwordx4 v[{SR+4*i}:{SR+4*i+3}], v{189 if i < 2 else 190}, {srd(SX)}, s12 offen sc1")
    for kk in range(4, DIST):
        for x in x_loads(0, 0, kk, 2 * kk):
            emit(x)

    k("s_lshl_b32 s10, s3, 13")
    k(f"s_add_u32 s10, s10, {LR}")
    k(f"v_add_u32 {VRW}, s10, {VL16}")
    k("s_cmp_eq_u32 s14, 0")
    k("s_cselect_b32 s26, 1.0, 0")
    k("s_mov_b32 s27, s26")
    k("s_lshl_b32 s60, s16, 4")
    k("s_lshl_b32 s13, s8, 1")
    k("s_add_u32 s60, s60, s13")
    k("s_add_u32 s60, s60, s14")
    k("s_lshl_b32 s60, s60, 7")

    def phase_s():
        for r in range(2):
            s_, q_ = TMP + 2 * r, TMP + 2 * r + 1
            first = True
            for i in range(3):
                for d in range(2):
                    unpack(k, "v204", "v205", f"v{SR+4*i+2*r+d}")
                    if first:
                        k(f"v_add_f32 v{s_}, v204, v205")
                        k(f"v_mul_f32 v{q_}, v204, v204")
                        first = False
                    else:
                        k(f"v_add_f32 v{s_}, v{s_}, v204")
                        k(f"v_add_f32 v{s_}, v{s_}, v205")
                        k(f"v_fmac_f32 v{q_}, v204, v204")
                    k(f"v_fmac_f32 v{q_}, v205, v205")
        for v in range(TMP, TMP + 4):
            k(f"v_add_f32_dpp v{v}, v{v}, v{v} row_ror:4 row_mask:0xf bank_mask:0xf")
        for v in range(TMP, TMP + 4):
            k(f"v_add_f32_dpp v{v}, v{v}, v{v} row_ror:8 row_mask:0xf bank_mask:0xf")
        for v in range(TMP, TMP + 4):
            xsum16(k, f"v{v}", "v204")
            xsum32(k, f"v{v}", "v204")
        k(f"v_or_b32 v{TMP+1}, 0x80000000, v{TMP+1}")
        k(f"v_or_b32 v{TMP+3}, 0x80000000, v{TMP+3}")
        k("s_lshl_b32 s12, s63, 3")
        k("s_add_u32 s12, s12, s3")
        k("s_lshl_b32 s12, s12, 7")
        k("s_lshl_b32 s13, s61, 5")
        k("s_add_u32 s12, s12, s13")
        k(f"s_add_u32 s12, s12, {SY_ST1}")
        k("v_lshlrev_b32 v204, 3, v1")
        set_exec(4)
        k(f"buffer_store_dwordx2 v[{TMP}:{TMP+1}], v204, {srd(SSY)}, s12 offen sc1")
        k(f"buffer_store_dwordx2 v[{TMP+2}:{TMP+3}], v204, {srd(SSY)}, s12 offen offset:512 sc1")
        k("s_mov_b64 exec, -1")

    sched = {}
    wi = NE1
    for kk in range(20):
        L = []
        if kk < 4:
            L += wgu_dma(6 + kk)
        if kk + DIST < 20:
            L += x_loads(0, 0, kk + DIST, 2 * (kk + DIST))
        else:
            kb = kk + DIST - 20
            L += x_loads(0, 1, kb, 40 + 2 * kb)
        if kk >= 20 - NWA and wi < 60:
            L += wd_load(wi)
            wi += 1
        if kk == 2:
            L = [phase_s] + L
        if kk == 14:
            L = st1_loads(0, TMP + 24) + L
        sched[kk] = L
    g1_main(0, sched, first=True, xp=True)
    stamp("g1a")
    stats1(0, STA)

    def take(n):
        nonlocal wi
        L = []
        for _ in range(n):
            if wi < 60:
                L += wd_load(wi)
                wi += 1
        return L
    g1_epilogue(0, 0, STA, take(NWE1))
    stamp("e1a")
    extra = {}
    for kk in range(12):
        extra[kk] = take((NWB * (kk + 1)) // 12 - (NWB * kk) // 12)
    extra[12] = st1_loads(1, TMP + 24) + res_loads(0)
    sched, rest = g1b_sched(0, extra)
    g1_main(40, sched, xp=True)
    stamp("g1b")
    for L in rest:
        for x in L:
            emit(x)
    stats1(1, STB)
    g1_epilogue(0, 1, STB, take(NWE2))
    print('Wd loads left for G2(A):', 60 - wi)
    stamp("e1b")

    NH0 = int(os.environ.get("NH0", "5"))

    def g2a(layer):
        sc = {kk: take(5) for kk in range(12)}
        assert wi == 60
        sc[HFK] = sc[HFK] + [lambda: h_flag(layer, 1)]
        sc[HPK] = sc[HPK] + h_poll_loads(layer, 1)
        g2_main(80, sc, X1R[0], X2[0])
        stamp(f"g2a{layer}")

        def mid():
            h_poll(layer, 1)
            stamp(f"ph{layer}")
            for kk in range(NH0):
                for x in h_loads(layer, 1, kk, 2 * kk):
                    emit(x)
        g2_reduce(X2[0], mid)

    def g2b_sched(layer, extra):
        sched = {}
        for kk in range(12):
            L = []
            if kk + NH0 < 12:
                L += h_loads(layer, 1, kk + NH0, 2 * (kk + NH0))
            sched[kk] = L + extra.get(kk, [])
        return sched

    g2a(0)
    part_stats(X2[0], 0, SY_ST2)
    stamp("r2a")

    def fin_a():
        finalize(0, X2[0], G2R)
        part_calc(X2[0], 244)
    g2_main(0, g2b_sched(0, {2: res_loads(1), FK - 3: st2_loads(0, G2R), FK: [fin_a]}), X1R[1], X2[1])
    stamp("g2b")
    g2_reduce(X2[1], lambda: part_pub(244, 0, SY_ST3, pre_wait="xst"))
    part_stats(X2[1], 1, SY_ST2)
    stamp("s3a")
    for x in st3_loads(0, TMP):
        emit(x)
    stats3(0, STA)
    stamp("p3a")
    for kk in range(DIST):
        for x in x_loads(1, 0, kk, 2 * kk):
            emit(x)
        if kk == 3:
            for x in st2_loads(1, G2R):
                emit(x)
    finalize(1, X2[1], G2R)
    part_calc(X2[1], 246)
    stamp("fin")
    sched = {}
    xb = [x_loads(1, 1, j, 40 + 2 * j) for j in range(DIST)]
    for kk in range(20):
        L = []
        if kk + DIST < 20:
            L += x_loads(1, 0, kk + DIST, 2 * (kk + DIST))
        if kk == 3:
            L = L + [lambda: part_pub(246, 1, SY_ST3, pre_wait="xst")]
        if kk == S3K - 4:
            L = L + st3_loads(1, TMP)
        if kk == S3K:
            L = [lambda: stats3(1, STB)] + L
        if kk >= S3K:
            for _ in range(-(-DIST // (20 - S3K))):
                if xb and (DIST - len(xb)) + 8 < kk:
                    L += xb.pop(0)
        sched[kk] = L
    assert not xb
    g1_main(0, sched)
    stamp("g1a'")
    g1_epilogue(1, 0, STA)
    stamp("e1a'")
    sched, rest = g1b_sched(1, {})
    g1_main(40, sched)
    stamp("g1b'")
    for L in rest:
        for x in L:
            emit(x)
    g1_epilogue(1, 1, STB)
    stamp("e1b'")
    g2a(1)
    out_store(0, X2[0])
    stamp("r2a'")
    g2_main(0, g2b_sched(1, {}), X1R[1], X2[1])
    g2_reduce(X2[1])
    out_store(1, X2[1])
    if DIAG:
        in_srd(k, 96, 88, 256)
        k("s_cmp_eq_u32 s101, 0")
        k("s_cselect_b32 s10, 0x40000000, 0")
        k("s_lshl_b32 s11, s2, 8")
        k("s_or_b32 s11, s11, s101")
        k("s_lshl_b32 s12, s3, 16")
        k("s_or_b32 s11, s11, s12")
        k("v_mov_b32 v0, s11")
        k("s_and_b32 s12, s101, 0xe")
        k("s_lshl_b32 s12, s12, 1")
        k("v_mov_b32 v1, s12")
        ML("buffer_store_dword v0, v1, s[96:99], s10 offen", 1)()
    if os.environ.get("DBGST"):
        k.stamp("end")
        k.wait(vm=0, lg=0)
        in_srd(k, 96, 88, 256)
        k("s_lshl_b32 s10, s2, 2")
        k("s_add_u32 s10, s10, s3")
        k(f"s_cmp_eq_u32 s10, {int(os.environ['DBGST'])*4}")
        k("s_cselect_b32 s10, 0, 0x40000000")
        k("v_mov_b32 v0, 0")
        for i in range(1, len(k.stamps)):
            k(f"s_sub_u32 s11, s{64+2*i}, s64")
            k("v_mov_b32 v1, s11")
            ML(f"buffer_store_dword v1, v0, s[96:99], s10 offen offset:{4*i}", 1)()
        print(k.stamps)
    else:
        k.prof_end(2, 24, 3, names="main")
    k.label("main_end", flush=False)
    k("s_endpgm")
    k.raw("main_code_end:")
    return k


if __name__ == "__main__":
    if os.environ.get("PROF"):
        Kern.PROF = True
    main = gen_main()
    out = sys.argv[1] if len(sys.argv) > 1 else "v20.s"
    txt = build_file(HEADER, [main], [main]).replace(f"; @launch kernel={KNAME} ", "; @launch ")
    open(out, "w").write(txt)
    json.dump(PROFINFO, open(out + ".prof.json", "w"))
    print("instrs", main.nins, "vgpr", main.maxv + 1, "agpr", main.maxa + 1, "sgpr", main.maxs + 1, "lds", main.lds)
```

```python
import sys, os, json
sys.path.insert(0, "dev")
from asmdsl import *
from gen1 import S, D, F, EPS, f2u, unpack, reduce16, xsum16, xsum32, HEADER, XFB, HFB, WDB

KNAME = "interleave_layers__ssm_conv_h3__swiglu_ffn__prompt_kernel"
WS_KVT = 0x0000000
WS_QST = 0x0300000
WS_WGU = 0x0400000
WGU_M = 20 * 6144
WGUB = 32 * WGU_M
WS_CS = 0x0800000
WS_WD = 0x0900000
WS_Y = 0x0C00000
WS_X1 = 0x0F00000
WS_H = 0x1200000
WS_X3 = 0x1D00000
WS_H2 = 0x2000000
WS_SYNC = 0x2800000
SY_ST1 = 0
SY_ST2 = 0x10000
SY_ST3 = 0x50000
SY_HF = 0x90000
SY_CF_OLD = 0x110000
SY_PF = 0x124000
SY_QF = 0x128000
SY_GF = 0x12C000
SY_QF = 0x140000
SY_CF = 0x150000
SYNCB = 0x178000
SN = "s6"
WS_QX = 0x2C00000
XBLK = 40960
WSB = 0x3000000
XRT = 20480
HRT = 49152
OOB = 0x80000000
LOG2E = 1.4426950408889634
SPIN_MAX = 1 << 14
NPREP = 96
STAMPS = os.environ.get("STAMPS", "").split(",")
NP1 = int(os.environ.get("NP1", "4"))
NE1 = int(os.environ.get("NE1", "24"))
PPN = int(os.environ.get("PPN", "2"))
LASTW = int(os.environ.get("LASTW", "240"))
NB = int(os.environ.get("NB", "6"))
NE2 = int(os.environ.get("NE2", "0"))
MAP = int(os.environ.get("MAP", "2"))
PF = int(os.environ.get("PF", "0"))
FK = int(os.environ.get("FK", "7"))
HFK = int(os.environ.get("HFK", "4"))
S3K = int(os.environ.get("S3K", "15"))
NWA = int(os.environ.get("NWA", "10"))
NWE1 = int(os.environ.get("NWE1", "12"))
NWB = int(os.environ.get("NWB", "14"))
NWE2 = int(os.environ.get("NWE2", "12"))
HPK = int(os.environ.get("HPK", "9"))
PREW = int(os.environ.get("PREW", "1"))
DIAG = int(os.environ.get("DIAG", "0"))
QPN = int(os.environ.get("QPN", "8"))
QPOS = int(os.environ.get("QPOS", "2"))
NEP = int(os.environ.get("NEP", "36"))
NT = " nt" if os.environ.get("NT") else ""
HPOS = int(os.environ.get("HPOS", "2"))
EVERY = int(os.environ.get("EVERY", "5"))


def srd(n):
    return f"s[{n}:{n+3}]"


def mkstamp(k):
    def stamp(n):
        if n in STAMPS:
            if hasattr(k, "stamps") and n in k.stamps:
                if Kern.PROF:
                    i = k.stamps.index(n)
                    k(f"{Kern.CLK} s[{64+2*i}:{65+2*i}]")
            else:
                k.stamp(n)
    return stamp


def in_srd(k, slot, karg_off, nbytes):
    k(f"s_load_dwordx2 s[{slot}:{slot+1}], s[0:1], {karg_off}")
    k(f"s_mov_b32 s{slot+2}, {nbytes}")
    k(f"s_mov_b32 s{slot+3}, 0x00020000")


def gen_pre():
    k = Kern("pre_kernel", lds=8192, grid=384, block=128)
    stamp = mkstamp(k)
    SA, SB, SC_, SD_, SWS = 28, 32, 36, 40, 48
    k.prof_begin()
    k(f"s_cmp_ge_u32 s2, {k.grid}")
    k.branch("s_cbranch_scc1 pre_end", flush=False)
    k("s_load_dwordx2 s[24:25], s[0:1], 96")
    k("s_cmp_ge_u32 s2, 320")
    k.branch("s_cbranch_scc1 pre_q", flush=False)
    saved0 = (list(k.vm), list(k.lg))
    in_srd(k, SA, 8, S * D * 2)
    in_srd(k, SB, 16, S * D * 2)
    in_srd(k, SC_, 24, D * 8)
    in_srd(k, SD_, 32, D * 4096)
    k("v_lshrrev_b32 v1, 6, v0")
    k("v_readfirstlane_b32 s3, v1")
    k("v_and_b32 v1, 63, v0")
    k("s_lshr_b32 s57, s2, 5")
    k("s_and_b32 s58, s2, 31")
    k("v_lshrrev_b32 v4, 3, v1")
    k("v_and_b32 v5, 7, v1")
    k("s_lshl_b32 s10, s58, 6")
    k("s_lshl_b32 s11, s3, 5")
    k("s_add_u32 s10, s10, s11")
    k("v_lshlrev_b32 v6, 2, v4")
    k("v_add_u32 v6, s10, v6")
    k("v_mul_u32_u24 v7, 1280, v6")
    k("v_lshl_add_u32 v7, v5, 4, v7")
    k("s_lshl_b32 s12, s57, 7")
    k("v_add_u32 v7, s12, v7")
    KR, VR, WR = 16, 44, 60
    k("v_lshlrev_b32 v9, 6, v5")
    k("s_lshl_b32 s12, s57, 9")
    for j in (3, 4, 5, 6):
        k(f"buffer_load_dwordx4 v[{KR+4*j}:{KR+4*j+3}], v7, {srd(SA)}, 0 offen offset:{(j-3)*1280}")
    for i in range(4):
        k(f"buffer_load_dwordx4 v[{VR+4*i}:{VR+4*i+3}], v7, {srd(SB)}, 0 offen offset:{i*1280}{NT}")
    for i in range(4):
        k(f"buffer_load_dwordx4 v[{WR+4*i}:{WR+4*i+3}], v9, {srd(SC_)}, s12 offen offset:{16*i}")
    for j in (2, 1, 0):
        k(f"v_add_u32 v8, {((j-3)*1280) & 0xffffffff:#x}, v7")
        k(f"buffer_load_dwordx4 v[{KR+4*j}:{KR+4*j+3}], v8, {srd(SA)}, 0 offen")
    k.srd(SWS, 24, WSB)
    k("s_lshl_b32 s10, s3, 6")
    k("s_sub_u32 s10, 120, s10")
    k("v_lshlrev_b32 v8, 3, v4")
    k("v_sub_u32 v8, s10, v8")
    k("v_lshlrev_b32 v9, 4, v5")
    k("v_xor_b32 v8, v8, v9")
    k("v_lshl_add_u32 v8, v5, 10, v8")
    k("s_lshl_b32 s10, s3, 12")
    k("v_lshlrev_b32 v11, 7, v4")
    k("v_add_u32 v11, s10, v11")
    k("s_lshl_b32 s11, s3, 2")
    for j in range(4):
        k(f"s_add_u32 s12, s11, {j}")
        k(f"v_xor_b32 v{12+j}, s12, v5")
        k(f"v_lshl_add_u32 v{12+j}, v{12+j}, 4, v11")
    k("v_lshl_add_u32 v9, v4, 12, v9")
    k("s_lshl_b32 s10, s57, 6")
    k("s_lshl_b32 s11, s3, 5")
    k("s_add_u32 s10, s10, s11")
    k("s_lshl_b32 s10, s10, 12")
    k("s_lshl_b32 s11, s58, 7")
    k("s_sub_u32 s11, 3968, s11")
    k("s_add_u32 s10, s10, s11")
    WF = 80
    for c in range(8):
        unpack(k, f"v{WF+4*c}", f"v{WF+4*c+1}", f"v{WR+2*c}")
        unpack(k, f"v{WF+4*c+2}", f"v{WF+4*c+3}", f"v{WR+2*c+1}")
    k.need([f"v{KR}"])
    stamp("Tld")
    if HPOS == 3:
        h_loads_()
    lab = k.newlabel("pc")
    k("s_getpc_b64 s[44:45]")
    k.raw(lab + ":")
    k(f"s_add_u32 s44, s44, main_kernel-{lab}")
    k("s_addc_u32 s45, s45, 0")
    k("s_mov_b32 s46, main_code_end-main_kernel")
    k("s_mov_b32 s47, 0x00020000")
    k("v_lshlrev_b32 v2, 7, v0")
    k(f"s_sub_u32 s12, s2, {NPREP}")
    k("s_lshl_b32 s12, s12, 14")
    k("s_and_b32 s12, s12, 0x7fffffff")
    k(f"buffer_load_dword v150, v2, {srd(SD_)}, s12 offen")
    k("s_lshr_b32 s12, s2, 3")
    k("s_lshl_b32 s12, s12, 14")
    k("buffer_load_dword v151, v2, s[44:47], s12 offen")
    KF, VF, OUT = 112, 128, 136
    for cp in range(4):
        for j in range(7):
            unpack(k, f"v{KF+2*j}", f"v{KF+2*j+1}", f"v{KR+4*j+cp}")
        for i in range(4):
            unpack(k, f"v{VF+2*i}", f"v{VF+2*i+1}", f"v{VR+4*i+cp}")
        for h in range(2):
            c = 2 * cp + h
            O = OUT + 4 * h
            for i in range(4):
                k(f"v_mul_f32 v{O+i}, v{KF+2*(i+0)+h}, v{WF+4*c+3}")
            for t in (2, 1, 0):
                for i in range(4):
                    k(f"v_fmac_f32 v{O+i}, v{KF+2*(i+3-t)+h}, v{WF+4*c+t}")
            for i in range(4):
                k(f"v_mul_f32 v{O+i}, v{O+i}, v{VF+2*i+h}")
            p = 144 + 2 * h
            k(f"v_cvt_pk_bf16_f32 v{p}, v{O+3}, v{O+2}")
            k(f"v_cvt_pk_bf16_f32 v{p+1}, v{O+1}, v{O+0}")
            k(f"ds_write_b64 v8, v[{p}:{p+1}] offset:{c*128}")
    k.wait(lg=0)
    k.barrier()
    stamp("Tkv")
    for j in range(4):
        k(f"ds_read_b128 v[{16+4*j}:{19+4*j}], v{12+j} offset:{j*1024}")
    for j in range(4):
        k(f"buffer_store_dwordx4 v[{16+4*j}:{19+4*j}], v9, {srd(SWS)}, s10 offen{PSC}")
        k("s_add_u32 s10, s10, 32768")
    for i in range(4):
        k(f"v_mov_b32 v{32+i}, 0")
    k.srd(SA, 24, SYNCB, WS_SYNC)
    k("s_lshl_b32 s12, s2, 12")
    k("v_lshlrev_b32 v8, 4, v0")
    for i in range(2):
        k(f"buffer_store_dwordx4 v[32:35], v8, {srd(SA)}, s12 offen offset:{i*2048}{PSC}")
    k.prof_end(0, 24, 3, names="pre")
    k("s_endpgm")
    k.label("pre_q", flush=False)
    k.vm, k.lg = saved0
    in_srd(k, SA, 0, S * D * 2)
    k("v_lshrrev_b32 v1, 6, v0")
    k("v_readfirstlane_b32 s3, v1")
    k("v_and_b32 v1, 63, v0")
    k("v_and_b32 v2, 15, v0")
    k("v_bfe_u32 v3, v0, 4, 2")
    k("s_sub_u32 s10, s2, 320")
    k("s_lshl_b32 s10, s10, 1")
    k("s_add_u32 s10, s10, s3")
    k(f"s_mul_i32 s11, s10, {XRT}")
    k("v_mul_u32_u24 v4, 1280, v2")
    k("v_lshl_add_u32 v4, v3, 4, v4")
    QR = 16
    for i in range(20):
        k(f"buffer_load_dwordx4 v[{QR+4*i}:{QR+4*i+3}], v4, {srd(SA)}, s11 offen offset:{64*i}")
    k.srd(SWS, 24, WSB)
    k("v_lshlrev_b32 v5, 4, v1")
    k(f"s_add_u32 s12, s11, {WS_QX}")
    k("v_mov_b32 v6, 0x3f803f80")
    k("v_mov_b32 v8, 0")
    k("v_mov_b32 v9, 0")
    for i in range(20):
        if i % 4 == 0 and i:
            k("s_add_u32 s12, s12, 4096")
        k(f"buffer_store_dwordx4 v[{QR+4*i}:{QR+4*i+3}], v5, {srd(SWS)}, s12 offen offset:{(i%4)*1024}{PSC}")
        for d in range(4):
            k(f"v_dot2c_f32_bf16 v8, v{QR+4*i+d}, v6")
            k(f"v_dot2c_f32_bf16 v9, v{QR+4*i+d}, v{QR+4*i+d}")
    for v in ("v8", "v9"):
        xsum16(k, v, "v7")
        xsum32(k, v, "v7")
    k(f"v_mul_f32 v8, {f2u(1.0/D)}, v8")
    k(f"v_mul_f32 v9, {f2u(1.0/D)}, v9")
    k("v_fma_f32 v9, -v8, v8, v9")
    k("v_max_f32 v9, 0, v9")
    k(f"v_add_f32 v9, {f2u(EPS)}, v9")
    k("v_rsq_f32 v11, v9")
    k("v_mul_f32 v10, v8, v11")
    k("s_lshl_b32 s12, s10, 7")
    k(f"s_add_u32 s12, s12, {WS_QST}")
    k("v_lshlrev_b32 v7, 3, v2")
    k(f"buffer_store_dwordx2 v[10:11], v7, {srd(SWS)}, s12 offen")
    k.label("pre_end", flush=False)
    k("s_endpgm")
    return k


PSC = os.environ.get("PSC", "")

def gen_main():
    LW = 0
    LR = 131072
    LC = 122880
    CP = 4160
    UOFF = 4 * CP
    WREG = 4 * CP + 4608
    CB = 163840 - 4 * WREG
    k = Kern(KNAME, lds=163840, grid=256, block=256)
    RING, ACC, WB, TMP = 16, 112, 160, 184
    X1R = [216, 222]
    YR = [228, 234]
    STA, STB = [4, 6], [240, 242]
    X2 = [WB, WB + 12]
    G2R = TMP + 8
    DIST = int(os.environ.get("DIST", "8"))
    VL16, VL16B, VH2, VT4, VT4S, VROW, VGW, VGR, VQ128, VFLAG, VFPOLL = (
        "v10", "v11", "v8", "v9", "v12", "v13", "v14", "v15", "v0", "v252", "v253")
    VL128 = "v251"
    VXP = "v250"
    VRW = "v249"
    LQ = 131072
    SX, SW, SH, SWD, SSY, SO, SY_ = 28, 32, 36, 40, 44, 48, 52
    SA, SB, SWS, SDBG = 28, 36, 48, 52
    XSPAN = WS_X3 - WS_X1
    HSPAN = WS_H2 - WS_H

    stamp = mkstamp(k)

    def ring(i):
        return RING + 4 * (i % 24)

    def emit(x):
        if callable(x):
            x()
        elif isinstance(x, tuple):
            k(x[0], tag=x[1])
        else:
            k(x)

    def set_exec(nl):
        m = (1 << nl) - 1
        if nl <= 32:
            k(f"s_mov_b64 exec, {m:#x}") if nl <= 6 else (k(f"s_mov_b32 exec_lo, {m:#x}"), k("s_mov_b32 exec_hi, 0"))
        else:
            k(f"s_mov_b32 exec_hi, {m >> 32:#x}")

    class ML:
        def __init__(self, text, nl):
            self.text, self.nl = text, nl

        def __call__(self):
            set_exec(self.nl)
            k(self.text)
            k("s_mov_b64 exec, -1")

    def isvm(x):
        if isinstance(x, ML):
            return True
        if callable(x):
            return False
        return (x[0] if isinstance(x, tuple) else x).startswith("buffer_")

    def emit_one_vmem(L):
        while L:
            x = L.pop(0)
            emit(x)
            if isvm(x):
                return

    def x_loads(layer, b, kk, slot0):
        if layer == 0:
            return [f"s_add_u32 s10, s17, {kk*2048 + b*4*XBLK}"] + [
                f"buffer_load_dwordx4 v[{ring(slot0+e)}:{ring(slot0+e)+3}], {VXP}, {srd(SX)}, s10 offen offset:{e*256} sc1"
                for e in range(2)]
        so = kk * 1024 + b * 8 * XRT + (XSPAN if layer else 0)
        L = []
        for tn in range(2):
            L.append(f"s_add_u32 s10, s17, {so + tn*XRT}")
            L.append(f"buffer_load_dwordx4 v[{ring(slot0+tn)}:{ring(slot0+tn)+3}], {VL16}, {srd(SX)}, s10 offen sc1")
        return L

    def h_loads(layer, b, kk, slot0):
        so = kk * 1024 + b * 8 * HRT + (HSPAN if layer else 0)
        L = []
        for tn in range(2):
            L.append(f"s_add_u32 s10, s{57+tn}, {so}")
            L.append(f"buffer_load_dwordx4 v[{ring(slot0+tn)}:{ring(slot0+tn)+3}], {VL16}, {srd(SH)}, s10 offen sc1")
        return L

    def x_pf(layer, b):
        if not PF:
            return []
        return [f"s_add_u32 s10, s26, {b*8*XRT + (XSPAN if layer else 0)}",
                ML(f"buffer_load_dword a240, {VL128}, {srd(SX)}, s10 offen sc1", 20)]

    def h_pf(layer, b):
        if not PF:
            return []
        return [f"s_add_u32 s10, s27, {b*8*HRT + (HSPAN if layer else 0)}",
                ML(f"buffer_load_dword a241, {VL128}, {srd(SH)}, s10 offen sc1", 48)]

    def wgu_dma(p):
        return [f"s_add_u32 m0, s18, {LW + p*12288}", f"s_add_u32 s11, s19, {p*12288}"] + [
            (f"buffer_load_dwordx4 {VL16}, {srd(SW)}, s11 offen offset:{f*1024} sc1 lds", f"w{p}") for f in range(3)]

    def wd_load(i):
        kk, lt = divmod(i, 5)
        base = "s20" if lt < 2 else "s21" if lt < 4 else "s22"
        return [f"s_add_u32 s11, {base}, {kk*5120}",
                f"buffer_load_dwordx4 a[{4*i}:{4*i+3}], {VL16}, {srd(SWD)}, s11 offen offset:{(lt&1)*1024 if lt < 4 else 0} sc1"]

    def poll(loads, tags, tmp, sleep=2, ge=None, nl=64, eq=None):
        def check():
            if nl < 64:
                k(f"v_mov_b32 {tags[0]}, {tags[0]}")
                set_exec(nl)
            check0()
            if nl < 64:
                k("s_cmp_eq_u64 vcc, exec")
                k("s_mov_b64 exec, -1")
            else:
                k("s_cmp_eq_u64 vcc, -1")

        def check0():
            if eq is not None:
                k(f"v_cmp_eq_u32 vcc, {eq}, {tags[0]}")
            elif ge is not None:
                k(f"v_cmp_le_u32 vcc, {ge}, {tags[0]}")
            elif len(tags) == 1:
                k(f"v_cmp_ne_u32 vcc, 0, {tags[0]}")
            else:
                k(f"v_min_u32 {tmp}, {tags[0]}, {tags[1]}")
                for t in tags[2:]:
                    k(f"v_min_u32 {tmp}, {tmp}, {t}")
                k(f"v_cmp_ne_u32 vcc, 0, {tmp}")
        ok = k.newlabel("ok")
        lp = k.newlabel("spin")
        check()
        k.branch(f"s_cbranch_scc1 {ok}", flush=False)
        vm, lg = list(k.vm), list(k.lg)
        k("s_mov_b32 s23, 0")
        k.label(lp, flush=False)
        k(f"s_sleep {sleep}")
        for l in loads:
            emit(l)
        k.wait(vm=0)
        k("s_add_u32 s23, s23, 1")
        k(f"s_cmp_ge_u32 s23, {SPIN_MAX}")
        if DIAG:
            k(f"s_cselect_b32 s101, {k.uid}, s101")
        k.branch(f"s_cbranch_scc1 {ok}", flush=False)
        check()
        k.branch(f"s_cbranch_scc0 {lp}", flush=False)
        k.flush_hazards()
        k.label(ok, flush=False)
        k.vm, k.lg = vm, lg

    def finish_stats(vsum, vnsq, dst):
        k(f"v_mul_f32 v{dst}, {f2u(-1.0/D)}, {vsum}")
        k(f"v_mul_f32 {vnsq}, {f2u(-1.0/D)}, {vnsq}")
        k(f"v_fma_f32 {vnsq}, -v{dst}, v{dst}, {vnsq}")
        k(f"v_max_f32 {vnsq}, 0, {vnsq}")
        k(f"v_add_f32 {vnsq}, {f2u(EPS)}, {vnsq}")
        k(f"v_rsq_f32 v{dst+1}, {vnsq}")

    def wread(kk, f):
        reg, off = (VL16, kk * 6144) if kk < 10 else (VL16B, (kk - 10) * 6144)
        return f"ds_read_b128 v[{WB+4*f}:{WB+4*f+3}], {reg} offset:{LW+off+f*1024}"

    def xswap(slot):
        a_, b_ = ring(slot), ring(slot + 1)
        k(f"v_swap_b32 v{a_+2}, v{b_}")
        k(f"v_swap_b32 v{a_+3}, v{b_+1}")

    def g1_main(slot0, sched, first=False, xp=False):
        for f in range(6):
            k(wread(0, f))
        if xp:
            xswap(slot0)
        for kk in range(20):
            L = sched.get(kk, [])
            if first and kk == 11:
                k.wait_tag("w9")
                k.barrier()
            nv = sum(1 for x in L if isvm(x))
            done = 0
            for f in range(6):
                for tn in range(2):
                    a = ACC + 8 * f + 4 * tn
                    acc = f"v[{a}:{a+3}]"
                    xr = ring(slot0 + 2 * kk + tn)
                    k(f"v_mfma_f32_16x16x32_bf16 {acc}, v[{WB+4*f}:{WB+4*f+3}], v[{xr}:{xr+3}], {acc if kk else 0}")
                    if tn == 0:
                        while done < nv and done * 6 < (f + 1) * nv - 2:
                            emit_one_vmem(L)
                            done += 1
                        if PREW and not (kk == 19 and f == 5):
                            regs = [f"v{WB+4*((f+1)%6)}"]
                            if f == 5 and not xp:
                                regs += [f"v{ring(slot0+2*kk+2)}", f"v{ring(slot0+2*kk+3)}"]
                            k.need(regs)
                    elif PREW:
                        while L and isinstance(L[0], str) and L[0].startswith("s_add_u32 s10") and done < nv and done * 6 < (f + 2) * nv - 2:
                            emit(L.pop(0))
                if xp and f == 3 and kk < 19:
                    xswap(slot0 + 2 * kk + 2)
                if kk < 19:
                    k(wread(kk + 1, f))
                else:
                    if f == 0:
                        k("v_lshlrev_b32 v255, 4, v3")
                        k(f"v_add_u32 v255, {LC}, v255")
                    k(f"ds_read_b128 v[{WB+4*f}:{WB+4*f+3}], v255 offset:{f*64}")
            for x in L:
                emit(x)

    def g1_epilogue(layer, b, ST, fill=None):
        fill = fill if fill is not None else []
        k(f"s_add_u32 s12, s56, {b*8*HRT + (HSPAN if layer else 0)}")
        O2 = TMP + 20
        for tn in range(2):
            st = ST[tn]
            c1 = TMP + 28
            k(f"v_mul_f32 v{c1}, {f2u(-LOG2E)}, v{st+1}")
            k(f"v_mul_f32 v{c1+1}, v{st+1}, v{st+1}")
            k(f"v_rcp_f32 v{c1+1}, v{c1+1}")
            T = TMP
            for f in range(6):
                a = ACC + 8 * f + 4 * tn
                for i in (0, 2):
                    k(f"v_pk_fma_f32 v[{a+i}:{a+i+1}], v[{WB+4*f+i}:{WB+4*f+i+1}], v[{st}:{st+1}], v[{a+i}:{a+i+1}] op_sel:[0,0,0] op_sel_hi:[1,0,1]")
            for f in range(3):
                g = ACC + 8 * f + 4 * tn
                for i in (0, 2):
                    k(f"v_pk_mul_f32 v[{T+4*f+i}:{T+4*f+i+1}], v[{g+i}:{g+i+1}], v[{c1}:{c1+1}] op_sel:[0,0] op_sel_hi:[1,0]")
            for e in range(12):
                k(f"v_exp_f32 v{T+e}, v{T+e}")
                if e % 4 == 0:
                    emit_one_vmem(fill)
            for f in range(3):
                g = ACC + 8 * f + 4 * tn
                u = g + 24
                for i in (0, 2):
                    k(f"v_pk_mul_f32 v[{g+i}:{g+i+1}], v[{g+i}:{g+i+1}], v[{u+i}:{u+i+1}]")
            for e in range(0, 12, 2):
                k(f"v_pk_fma_f32 v[{T+e}:{T+e+1}], v[{T+e}:{T+e+1}], v[{c1}:{c1+1}], v[{c1}:{c1+1}] op_sel:[0,1,1] op_sel_hi:[1,1,1]")
            for e in range(12):
                k(f"v_rcp_f32 v{T+e}, v{T+e}")
                if e % 4 == 0:
                    emit_one_vmem(fill)
            for f in range(3):
                g = ACC + 8 * f + 4 * tn
                for i in (0, 2):
                    k(f"v_pk_mul_f32 v[{T+4*f+i}:{T+4*f+i+1}], v[{T+4*f+i}:{T+4*f+i+1}], v[{g+i}:{g+i+1}]")
            O = TMP + 12 + 4 * tn
            for p in range(4):
                k(f"v_cvt_pk_bf16_f32 v{O+p}, v{T+2*p}, v{T+2*p+1}")
            for p in range(2):
                k(f"v_cvt_pk_bf16_f32 v{O2+2*tn+p}, v{T+8+2*p}, v{T+9+2*p}")
            if tn:
                k(f"s_add_u32 s13, s12, {HRT}")
            k(f"buffer_store_dwordx4 v[{O}:{O+3}], {VL16}, {srd(SH)}, s{12+tn} offen sc1", tag="hst")
        k(f"v_permlane16_swap_b32 v{O2}, v{O2+2}")
        k(f"v_permlane16_swap_b32 v{O2+1}, v{O2+3}")
        k(f"buffer_store_dwordx4 v[{O2}:{O2+3}], {VH2}, {srd(SH)}, s12 offen offset:1024 sc1", tag="hst")
        for x in fill:
            emit(x)

    def h_flag(layer, b):
        k("s_lshl_b32 s12, s4, 3")
        k("s_add_u32 s12, s12, s3")
        k("s_lshl_b32 s12, s12, 5")
        k("s_add_u32 s12, s12, s5")
        k("s_lshl_b32 s12, s12, 7")
        k(f"s_add_u32 s12, s12, {SY_HF + layer*0x40000 + b*0x4000}")
        k(f"v_mov_b32 v254, {SN}")
        k.wait_tag("hst")
        k(f"buffer_store_dword v254, {VFLAG}, {srd(SSY)}, s12 offen sc1")
        stamp(f"hf{layer}{b}")

    def h_poll_loads(layer, b):
        return [f"s_mov_b32 s13, {SY_HF + layer*0x40000 + b*0x4000}",
                ML(f"buffer_load_dword v{TMP+30}, {VFPOLL}, {srd(SSY)}, s13 offen sc1", 8)]

    def h_poll(layer, b):
        poll(h_poll_loads(layer, b), [f"v{TMP+30}"], None, nl=8, eq=SN)

    TAILK = int(os.environ.get("TAILK", "3"))
    RESF = TMP

    def g2_main(slot0, sched, res, dst):
        def areg(lt, tn):
            if tn == 0 and lt in (0, 1, 4):
                return dst + 4 * (lt if lt < 2 else 2)
            return ACC + 8 * lt + 4 * tn

        def mf(kk, lt, tn):
            a = areg(lt, tn)
            acc = f"v[{a}:{a+3}]"
            hr = ring(slot0 + 2 * kk + tn)
            wr = 4 * (5 * kk + lt)
            k(f"v_mfma_f32_16x16x32_bf16 {acc}, a[{wr}:{wr+3}], v[{hr}:{hr+3}], {acc if kk else 0}")

        for kk in range(12 - TAILK):
            L = sched.get(kk, [])
            nv = sum(1 for x in L if isvm(x))
            done = 0
            idx = 0
            if kk == 5:
                k.barrier()
            for tn in range(2):
                for lt in range(5):
                    mf(kk, lt, tn)
                    idx += 1
                    while done < nv and done * 10 < idx * nv - 5:
                        emit_one_vmem(L)
                        done += 1
            for x in L:
                emit(x)
        L = []
        for kk in range(12 - TAILK, 12):
            L += sched.get(kk, [])
        order = [(0, 1, 0), (1, 1, 1), (2, 0, 2), (3, 0, 3), (2, 1, 4), (3, 1, 5), (4, 1, 7), (4, 0, 6), (0, 0, None), (1, 0, None)]
        pend = []
        fillv = []
        for d in range(6):
            fillv += [f"v_lshlrev_b32 v{RESF+2*d}, 16, v{res+d}", f"v_and_b32 v{RESF+2*d+1}, 0xffff0000, v{res+d}"]
        fillv += [f"v_xor_b32 v{TMP+12+x}, {x << 13}, {VRW}" for x in range(1, 4)]
        for i, (lt, tn, slot) in enumerate(order):
            for kk in range(12 - TAILK, 12):
                mf(kk, lt, tn)
                if i >= 5 and fillv:
                    k(fillv.pop(0))
            if L:
                emit_one_vmem(L)
            if slot is not None:
                a = areg(lt, tn)
                pend.append((i, f"ds_write_b128 {VRW}, v[{a}:{a+3}] offset:{slot*1024}"))
            while pend and pend[0][0] <= i - 2:
                k(pend.pop(0)[1])
        for x in L + fillv:
            emit(x)
        for _, x in pend:
            k(x)

    def g2_reduce(dst, mid=None):
        if mid:
            mid()
        k.wait(lg=0)
        k.barrier()
        n = 0
        for x in range(1, 4):
            for sl_ in (2 * (x - 1), 2 * (x - 1) + 1, 6 + (x & 1)):
                k(f"ds_read_b128 v[{ACC+4*n}:{ACC+4*n+3}], v{TMP+12+x} offset:{sl_*1024}")
                n += 1
        for i in range(0, 12, 2):
            k(f"v_pk_add_f32 v[{dst+i}:{dst+i+1}], v[{dst+i}:{dst+i+1}], v[{RESF+i}:{RESF+i+1}]")
        for x in range(3):
            for i in range(0, 12, 2):
                r = ACC + 12 * x + i
                k(f"v_pk_add_f32 v[{dst+i}:{dst+i+1}], v[{dst+i}:{dst+i+1}], v[{r}:{r+1}]")

    def part_stats(src, b, region, pre_wait=None):
        part_calc(src, TMP + 16)
        part_pub(TMP + 16, b, region, pre_wait)

    def part_calc(src, a):
        q_ = a + 1
        t = TMP + 18
        u = TMP + 4
        k(f"v_pk_add_f32 v[{t}:{t+1}], v[{src+8}:{src+9}], v[{src+10}:{src+11}]")
        k(f"v_pk_mul_f32 v[{t+2}:{t+3}], v[{src+8}:{src+9}], v[{src+8}:{src+9}]")
        k(f"v_pk_fma_f32 v[{t+2}:{t+3}], v[{src+10}:{src+11}], v[{src+10}:{src+11}], v[{t+2}:{t+3}]")
        k(f"v_pk_add_f32 v[{u}:{u+1}], v[{src}:{src+1}], v[{src+2}:{src+3}]")
        k(f"v_pk_mul_f32 v[{t}:{t+1}], v[{t}:{t+1}], s[26:27]")
        k(f"v_pk_mul_f32 v[{t+2}:{t+3}], v[{t+2}:{t+3}], s[26:27]")
        k(f"v_pk_add_f32 v[{u+2}:{u+3}], v[{src+4}:{src+5}], v[{src+6}:{src+7}]")
        for i in range(0, 8, 2):
            k(f"v_pk_fma_f32 v[{t+2}:{t+3}], v[{src+i}:{src+i+1}], v[{src+i}:{src+i+1}], v[{t+2}:{t+3}]")
        k(f"v_pk_add_f32 v[{u}:{u+1}], v[{u}:{u+1}], v[{u+2}:{u+3}]")
        k(f"v_pk_add_f32 v[{t}:{t+1}], v[{t}:{t+1}], v[{u}:{u+1}]")
        k(f"v_add_f32 v{q_}, v{t+2}, v{t+3}")
        k(f"v_add_f32 v{a}, v{t}, v{t+1}")
        k(f"v_permlane16_swap_b32 v{a}, v{q_}")
        k(f"v_add_f32 v{a}, v{a}, v{q_}")
        k(f"v_mov_b32 v{q_}, v{a}")
        k(f"v_permlane32_swap_b32 v{a}, v{q_}")
        k(f"v_add_f32 v{a}, v{a}, v{q_}")
        k(f"v_mov_b32 v{q_}, v{a}")
        k(f"v_permlane16_swap_b32 v{a}, v{q_}")
        k(f"v_or_b32 v{q_}, 0x80000000, v{q_}")

    def part_pub(a, b, region, pre_wait=None):
        k(f"s_add_u32 s12, s23, {region + b*8*2048}") if False else None
        k(f"s_add_u32 s12, s60, {region + b*8*2048}")
        if pre_wait:
            k.wait_tag(pre_wait)
        k(f"buffer_store_dwordx2 v[{a}:{a+1}], {VGW}, {srd(SSY)}, s12 offen sc1")
        stamp(f"pub{2 if region == SY_ST2 else 3}{b}")

    def st2_loads(b, dst):
        return ["s_lshl_b32 s13, s16, 11", f"s_add_u32 s13, s13, {SY_ST2 + b*8*2048}"] + [
            f"buffer_load_dwordx2 v[{dst+2*i}:{dst+2*i+1}], {VGR}, {srd(SSY)}, s13 offen offset:{i*128} sc1"
            for i in range(4)]

    def st3_loads(b, dst):
        return ["s_lshl_b32 s13, s15, 11", f"s_add_u32 s13, s13, {SY_ST3 + b*8*2048}"] + [
            f"buffer_load_dwordx2 v[{dst+8*tn+2*i}:{dst+8*tn+2*i+1}], {VGR}, {srd(SSY)}, s13 offen offset:{tn*2048+i*128} sc1"
            for tn in range(2) for i in range(4)]

    def st1_loads(b, dst):
        return ["s_lshl_b32 s13, s15, 9", f"s_add_u32 s13, s13, {SY_ST1 + b*8*512}"] + [
            f"buffer_load_dwordx2 v[{dst+2*tn}:{dst+2*tn+1}], {VQ128}, {srd(SSY)}, s13 offen offset:{tn*512} sc1"
            for tn in range(2)]

    def sum_granules(g, n, tmp):
        for i in range(1, n):
            k(f"v_pk_add_f32 v[{g}:{g+1}], v[{g}:{g+1}], v[{g+2*i}:{g+2*i+1}]")
        for v in (g, g + 1):
            xsum16(k, f"v{v}", tmp)
            xsum32(k, f"v{v}", tmp)

    def finalize(b, x2, G):
        poll(st2_loads(b, G), [f"v{G+1}", f"v{G+3}", f"v{G+5}", f"v{G+7}"], f"v{TMP+20}")
        stamp(f"p2{b}")
        sum_granules(G, 4, f"v{TMP+20}")
        sp = TMP + 22
        finish_stats(f"v{G}", f"v{G+1}", sp)
        k(f"v_mul_f32 v{sp}, v{sp}, v{sp+1}")
        for d in range(6):
            unpack(k, f"v{TMP}", f"v{TMP+1}", f"v{YR[b]+d}")
            k(f"v_pk_fma_f32 v[{TMP+2}:{TMP+3}], v[{x2+2*d}:{x2+2*d+1}], v[{sp}:{sp+1}], v[{sp}:{sp+1}] op_sel:[0,1,0] op_sel_hi:[1,1,0]")
            k(f"v_pk_fma_f32 v[{x2+2*d}:{x2+2*d+1}], v[{TMP+2}:{TMP+3}], v[{TMP}:{TMP+1}], v[{x2+2*d}:{x2+2*d+1}]")
            k(f"v_cvt_pk_bf16_f32 v{X1R[b]+d}, v{x2+2*d}, v{x2+2*d+1}")
        k(f"s_add_u32 s13, s59, {XSPAN + b*8*XRT}")
        k("s_lshl_b32 s12, s14, 10")
        k("s_add_u32 s12, s12, s13")
        k(f"buffer_store_dwordx4 v[{X1R[b]}:{X1R[b]+3}], {VL16}, {srd(SX)}, s12 offen sc1", tag="xst")
        k(f"buffer_store_dwordx2 v[{X1R[b]+4}:{X1R[b]+5}], {VT4S}, {srd(SX)}, s13 offen offset:2048 sc1", tag="xst")
        for d in range(6):
            unpack(k, f"v{x2+2*d}", f"v{x2+2*d+1}", f"v{X1R[b]+d}")

    def stats1(b, STx):
        poll(st1_loads(b, TMP + 24), [f"v{TMP+25}", f"v{TMP+27}"], f"v{TMP+20}")
        for tn in range(2):
            sum_granules(TMP + 24 + 2 * tn, 1, f"v{TMP+20}")
            finish_stats(f"v{TMP+24+2*tn}", f"v{TMP+25+2*tn}", STx[tn])

    def stats3(b, STx):
        poll(st3_loads(b, TMP), [f"v{TMP+1+2*i}" for i in range(8)], f"v{TMP+20}")
        for tn in range(2):
            sum_granules(TMP + 8 * tn, 4, f"v{TMP+20}")
            finish_stats(f"v{TMP+8*tn}", f"v{TMP+8*tn+1}", STx[tn])

    def res_loads(b):
        L = [f"s_add_u32 s13, s62, {b*4*XBLK}", "s_lshl_b32 s12, s14, 11", "s_add_u32 s12, s12, s13",
             "s_add_u32 s13, s13, 4096"]
        for R, sr in ((X1R[b], SX), (YR[b], SY_)):
            L += [f"buffer_load_dwordx2 v[{R}:{R+1}], {VXP}, {srd(sr)}, s12 offen sc1",
                  f"buffer_load_dwordx2 v[{R+2}:{R+3}], {VXP}, {srd(sr)}, s12 offen offset:256 sc1",
                  f"buffer_load_dwordx2 v[{R+4}:{R+5}], {VL16}, {srd(sr)}, s13 offen sc1"]
        return L

    def out_store(b, src):
        for d in range(6):
            k(f"v_cvt_pk_bf16_f32 v{TMP+d}, v{src+2*d}, v{src+2*d+1}")
        k(f"v_mul_u32_u24 v{TMP+8}, 1280, {VROW}")
        k("s_mul_i32 s12, s8, 160")
        k(f"s_add_u32 s12, s12, {b*128*1280}")
        k("s_lshl_b32 s13, s14, 6")
        k("s_add_u32 s13, s13, s12")
        k(f"v_lshl_add_u32 v{TMP+9}, v3, 4, v{TMP+8}")
        k(f"v_lshl_add_u32 v{TMP+10}, v3, 3, v{TMP+8}")
        k("s_lshl_b32 s10, s14, 31")
        k(f"v_or_b32 v{TMP+10}, s10, v{TMP+10}")
        k(f"buffer_store_dwordx4 v[{TMP}:{TMP+3}], v{TMP+9}, {srd(SO)}, s13 offen")
        k(f"buffer_store_dwordx2 v[{TMP+4}:{TMP+5}], v{TMP+10}, {srd(SO)}, s12 offen offset:128")

    def g1b_sched(layer, extra):
        sched = {}
        hl = [h_loads(layer, 0, kk, 80 + 2 * kk) for kk in range(12)]
        for kk in range(20):
            L = []
            if kk + DIST < 20:
                L += x_loads(layer, 1, kk + DIST, 40 + 2 * (kk + DIST))
            L += extra.get(kk, [])
            if kk == 3:
                L += [lambda: h_flag(layer, 0)]
            if kk == 7:
                L += h_poll_loads(layer, 0)
            if kk == 12:
                L = [lambda: h_poll(layer, 0)] + h_pf(layer, 0) + L
            if kk >= 14:
                while hl and (12 - len(hl)) + 8 < kk and len([x for x in L if isvm(x)]) < 6:
                    L += hl.pop(0)
            sched[kk] = L
        return sched, hl


    k.prof_begin()
    k(f"s_cmp_ge_u32 s2, {k.grid}")
    k.branch("s_cbranch_scc1 main_end", flush=False)
    k("s_load_dwordx2 s[24:25], s[0:1], 96")
    k("s_load_dwordx2 s[26:27], s[0:1], 0")
    if DIAG:
        k("s_mov_b32 s101, 0")
    k("s_getpc_b64 s[60:61]")
    k.raw("mega_pc:")
    k(f"s_sub_u32 s60, s60, mega_pc-{KNAME}")
    k("s_subb_u32 s61, s61, 0")
    k(f"s_mov_b32 s62, main_code_end-{KNAME}")
    k("s_mov_b32 s63, 0x00020000")
    k("s_lshr_b32 s10, s2, 3")
    k("s_lshl_b32 s10, s10, 11")
    k("v_lshrrev_b32 v2, 4, v0")
    k("v_lshlrev_b32 v1, 7, v0")
    k("v_lshl_or_b32 v1, v2, 24, v1")
    k("buffer_load_dword v255, v1, s[60:63], s10 offen")
    in_srd(k, SDBG, 88, 256)
    k("v_lshrrev_b32 v1, 6, v0")
    k("v_readfirstlane_b32 s3, v1")
    k("v_and_b32 v1, 63, v0")
    k("v_and_b32 v2, 15, v0")
    k("v_bfe_u32 v3, v0, 4, 2")
    k(f"v_lshlrev_b32 {VL16}, 4, v1")
    def ffn_ids():
        if MAP == 1:
            k("s_and_b32 s4, s2, 7")
            k("s_lshr_b32 s5, s2, 3")
            k("s_lshr_b32 s7, s5, 3")
            k("s_and_b32 s8, s5, 7")
        elif MAP == 4:
            k("s_and_b32 s4, s2, 4")
            k("s_lshr_b32 s10, s2, 6")
            k("s_add_u32 s4, s4, s10")
            k("s_bfe_u32 s5, s2, 0x30003")
            k("s_and_b32 s10, s2, 3")
            k("s_lshl_b32 s10, s10, 3")
            k("s_add_u32 s5, s5, s10")
            k("s_and_b32 s7, s5, 3")
            k("s_lshr_b32 s8, s5, 2")
        else:
            k("s_and_b32 s4, s2, 6")
            k("s_lshr_b32 s10, s2, 7")
            k("s_add_u32 s4, s4, s10")
            k("s_bfe_u32 s5, s2, 0x40003")
            k("s_and_b32 s10, s2, 1")
            k("s_lshl_b32 s10, s10, 4")
            k("s_add_u32 s5, s5, s10")
            k("s_and_b32 s7, s5, 3")
            k("s_lshr_b32 s8, s5, 2")
        k("s_and_b32 s9, s3, 1")
        k("s_lshr_b32 s14, s3, 1")
        k("s_lshl_b32 s6, s4, 4")
        k("s_lshl_b32 s10, s3, 1")
        k("s_add_u32 s15, s6, s10")
        k("s_lshl_b32 s10, s7, 1")
        k("s_add_u32 s16, s6, s10")
        k("s_add_u32 s16, s16, s9")
        k(f"s_mul_i32 s17, s15, {XRT}")
        k("s_mul_i32 s18, s3, 3072")
        k(f"s_mul_i32 s19, s5, {WGU_M}")
        k("s_add_u32 s19, s19, s18")
        k("s_lshl_b32 s10, s8, 2")
        k("s_add_u32 s10, s10, s3")
        k("s_mul_i32 s10, s10, 61440")
        k("s_lshl_b32 s11, s14, 11")
        k("s_add_u32 s20, s10, s11")
        k("s_xor_b32 s11, s11, 2048")
        k("s_add_u32 s21, s10, s11")
        k("s_add_u32 s22, s10, 4096")
        k.srd(SWS, 24, WSB)
        k.srd(SW, 24, WGUB, WS_WGU)
        k.srd(SWD, 24, WDB, WS_WD)
        k.srd(SSY, 24, SYNCB, WS_SYNC)


    def wpoll_setup(va):
        k(f"v_lshrrev_b32 {va}, 1, v1")
        k(f"v_lshlrev_b32 {va}, 4, {va}")
        k("v_and_b32 v9, 1, v1")
        k("s_lshr_b32 s10, s5, 2")
        k("s_lshl_b32 s10, s10, 1")
        k(f"v_add3_u32 {va}, {va}, v9, s10")
        k("s_lshl_b32 s10, s3, 3")
        k("s_add_u32 s10, s10, 56")
        k("v_add_u32 v9, s10, v1")
        k("v_cmp_gt_u32 vcc, 8, v1")
        k(f"v_cndmask_b32 {va}, v9, {va}, vcc")
        k(f"v_lshlrev_b32 {va}, 7, {va}")
        k(f"v_add_u32 {va}, {SY_PF}, {va}")
        return [ML(f"buffer_load_dword v13, {va}, {srd(SSY)}, 0 offen sc1", 16)]

    k(f"s_cmp_lt_u32 s2, {NPREP}")
    k.branch("s_cbranch_scc1 main_prep", flush=False)
    saved0 = (list(k.vm), list(k.lg))
    in_srd(k, SA, 8, S * D * 2)
    in_srd(k, SB, 16, S * D * 2)
    in_srd(k, SW, 24, D * 8)
    in_srd(k, SWD, 32, 4096)
    in_srd(k, SSY, 40, D * 2)
    k(f"s_sub_u32 s56, s2, {NPREP}")
    k("s_lshr_b32 s57, s56, 4")
    k("s_and_b32 s58, s56, 15")
    k("s_lshl_b32 s59, s56, 2")
    k("s_add_u32 s60, s59, s3")
    k(f"s_mul_i32 s61, s3, {WREG}")
    k(f"s_add_u32 s61, s61, {CB}")
    k("v_lshrrev_b32 v4, 3, v1")
    k("v_and_b32 v5, 7, v1")
    k("s_lshl_b32 s10, s58, 7")
    k("s_lshl_b32 s11, s3, 5")
    k("s_add_u32 s10, s10, s11")
    k("v_lshlrev_b32 v6, 2, v4")
    k("v_add_u32 v6, s10, v6")
    k("v_mul_u32_u24 v7, 1280, v6")
    k("v_lshl_add_u32 v7, v5, 4, v7")
    k("s_lshl_b32 s12, s57, 7")
    k("v_add_u32 v7, s12, v7")
    KR, VR, WR = 16, 44, 60
    for j in (3, 4, 5, 6, 2, 1, 0):
        off = (j - 3) * 1280
        if off < 0:
            k(f"v_add_u32 v8, {off & 0xffffffff:#x}, v7")
            k(f"buffer_load_dwordx4 v[{KR+4*j}:{KR+4*j+3}], v8, {srd(SA)}, 0 offen")
        else:
            k(f"buffer_load_dwordx4 v[{KR+4*j}:{KR+4*j+3}], v7, {srd(SA)}, 0 offen offset:{off}")
    for i in range(4):
        k(f"buffer_load_dwordx4 v[{VR+4*i}:{VR+4*i+3}], v7, {srd(SB)}, 0 offen offset:{i*1280}{NT}")
    k("v_lshlrev_b32 v9, 6, v5")
    k("s_lshl_b32 s12, s57, 9")
    for i in range(4):
        k(f"buffer_load_dwordx4 v[{WR+4*i}:{WR+4*i+3}], v9, {srd(SW)}, s12 offen offset:{16*i}")
    k("s_lshl_b32 s12, s60, 12")
    k(f"s_add_u32 s{SWD}, s{SWD}, s12")
    k(f"s_addc_u32 s{SWD+1}, s{SWD+1}, 0")
    HB = 160

    def h_loads_():
        for p in range(4):
            k(f"buffer_load_dwordx4 v[{HB+8*p+4}:{HB+8*p+7}], {VL16}, {srd(SWD)}, 0 offen offset:{p*1024}")
            k(f"v_add_u32 v9, {(p*1024-8) & 0xffffffff:#x}, {VL16}")
            k(f"buffer_load_dwordx2 v[{HB+8*p+2}:{HB+8*p+3}], v9, {srd(SWD)}, 0 offen")

    if HPOS == 1:
        h_loads_()
    stamp("issued")
    k("s_lshl_b32 s10, s3, 6")
    k("s_sub_u32 s10, 248, s10")
    k("v_lshlrev_b32 v8, 3, v4")
    k("v_sub_u32 v8, s10, v8")
    k("v_lshlrev_b32 v9, 4, v5")
    k("v_xor_b32 v8, v8, v9")
    k("v_lshl_add_u32 v8, v5, 11, v8")
    WF = 80
    for c in range(8):
        unpack(k, f"v{WF+4*c}", f"v{WF+4*c+1}", f"v{WR+2*c}")
        unpack(k, f"v{WF+4*c+2}", f"v{WF+4*c+3}", f"v{WR+2*c+1}")
    k.need([f"v{KR}"])
    stamp("Tld")
    if HPOS == 3:
        h_loads_()
    k("v_mov_b32 v12, 0")
    zl0 = [ML(f"buffer_load_dword v13, v12, {srd(SDBG)}, 0 offen sc1", 1)]
    emit(zl0[0])
    k.srd(SA, 24, WSB)
    KF, VF, OUT = 112, 128, 136
    for cp in range(4):
        for j in range(7):
            unpack(k, f"v{KF+2*j}", f"v{KF+2*j+1}", f"v{KR+4*j+cp}")
        for i in range(4):
            unpack(k, f"v{VF+2*i}", f"v{VF+2*i+1}", f"v{VR+4*i+cp}")
        for h in range(2):
            c = 2 * cp + h
            O = OUT + 4 * h
            for i in range(4):
                k(f"v_mul_f32 v{O+i}, v{KF+2*(i+0)+h}, v{WF+4*c+3}")
            for t in (2, 1, 0):
                for i in range(4):
                    k(f"v_fmac_f32 v{O+i}, v{KF+2*(i+3-t)+h}, v{WF+4*c+t}")
            for i in range(4):
                k(f"v_mul_f32 v{O+i}, v{O+i}, v{VF+2*i+h}")
            p = 144 + 2 * h
            k(f"v_cvt_pk_bf16_f32 v{p}, v{O+3}, v{O+2}")
            k(f"v_cvt_pk_bf16_f32 v{p+1}, v{O+1}, v{O+0}")
            k(f"ds_write_b64 v8, v[{p}:{p+1}] offset:{c*256}")
    k("s_lshl_b32 s10, s3, 12")
    k("v_lshlrev_b32 v8, 8, v3")
    k("v_add_u32 v8, s10, v8")
    k("s_lshl_b32 s11, s3, 1")
    for jj in range(2):
        k(f"s_add_u32 s12, s11, {jj}")
        k(f"v_xor_b32 v{14+jj}, s12, v2")
        k(f"v_lshl_add_u32 v{14+jj}, v{14+jj}, 4, v8")
    k("v_lshlrev_b32 v9, 12, v3")
    k("v_lshl_add_u32 v9, v2, 4, v9")
    k("s_lshl_b32 s10, s57, 6")
    k("s_lshl_b32 s11, s3, 4")
    k("s_add_u32 s10, s10, s11")
    k("s_lshl_b32 s10, s10, 12")
    k("s_lshl_b32 s11, s58, 8")
    k("s_sub_u32 s11, 3840, s11")
    k("s_add_u32 s10, s10, s11")
    k.wait(lg=0)
    k.barrier()
    stamp("kv")
    for j in range(4):
        k(f"ds_read_b128 v[{16+4*j}:{19+4*j}], v{14+(j>>1)} offset:{j*1024}")
    for j in range(4):
        k(f"buffer_store_dwordx4 v[{16+4*j}:{19+4*j}], v9, {srd(SA)}, s10 offen sc1", tag="kvst")
        k("s_add_u32 s10, s10, 16384")
    if HPOS == 2:
        h_loads_()
    k("s_lshl_b32 s12, s60, 1")
    k("v_mov_b32 v9, s12")
    k(f"buffer_load_ushort v11, v9, {srd(SSY)}, 0 offen")
    ffn_ids()
    k("v_mov_b32 v32, 0")
    k("v_mov_b32 v33, 0")
    k("v_lshlrev_b32 v8, 3, v1")
    k("v_add_u32 v8, s61, v8")
    k(f"ds_write_b64 v8, v[32:33] offset:{UOFF+4096}")
    k("v_bfe_u32 v8, v1, 2, 2")
    k(f"v_mul_u32_u24 v8, {CP}, v8")
    k("v_and_b32 v9, 3, v1")
    k("v_lshl_add_u32 v8, v9, 3, v8")
    k("v_add_u32 v8, s61, v8")
    k("ds_write_b64 v8, v[32:33]")
    k(f"v_add_u32 v8, s61, {VL16}")

    def copies(p):
        T = 48 + 12 * (p & 1)
        b = HB + 8 * p
        seq = [f"v{b+2+i}" for i in range(6)]
        off = 32 + p * 1024
        k(f"ds_write_b128 v8, v[{b+4}:{b+7}] offset:{off}")
        for j in range(4):
            k(f"v_alignbyte_b32 v{T+j}, {seq[2+j]}, {seq[1+j]}, 2")
        k(f"ds_write_b128 v8, v[{T}:{T+3}] offset:{off+CP}")
        for j in range(4):
            k(f"v_mov_b32 v{T+4+j}, {seq[1+j]}")
        k(f"ds_write_b128 v8, v[{T+4}:{T+7}] offset:{off+2*CP}")
        for j in range(4):
            k(f"v_alignbyte_b32 v{T+8+j}, {seq[1+j]}, {seq[j]}, 2")
        k(f"ds_write_b128 v8, v[{T+8}:{T+11}] offset:{off+3*CP}")

    poll(zl0, ["v13"], None, sleep=8, nl=1)
    k(f"v_readfirstlane_b32 {SN}, v13")
    k("v_cmp_eq_u32 vcc, 0, v1")
    k(f"v_mov_b32 v14, {OOB:#x}")
    k("v_cndmask_b32 v14, v14, v1, vcc")
    k("s_lshl_b32 s10, s56, 2")
    k("s_add_u32 s10, s10, s3")
    k("s_lshl_b32 s10, s10, 7")
    k(f"s_add_u32 s10, s10, {WS_SYNC + SY_GF}")
    k(f"v_mov_b32 v15, {SN}")
    k.wait_tag("kvst")
    k(f"buffer_store_dword v15, v14, {srd(SWS)}, s10 offen sc1")
    stamp("gf")
    for p in range(4):
        copies(p)
    k("v_sub_u32 v7, 3, v2")
    k("v_and_b32 v7, 3, v7")
    k("v_add3_u32 v8, v2, v7, 1")
    k("v_lshl_add_u32 v8, v3, 3, v8")
    k("v_lshlrev_b32 v8, 1, v8")
    k(f"v_mul_u32_u24 v7, {CP}, v7")
    k("v_add3_u32 v4, v7, v8, s61")
    k("v_lshlrev_b32 v7, 5, v2")
    k("v_lshlrev_b32 v8, 4, v3")
    k("v_sub_u32 v8, v8, v7")
    k(f"v_add_u32 v8, {UOFF+480}, v8")
    k("v_add_u32 v5, s61, v8")
    k("v_lshlrev_b32 v11, 16, v11")
    k("v_lshlrev_b32 v6, 7, v1")
    k("s_lshl_b32 s12, s57, 13")
    k(f"s_add_u32 s12, s12, {WS_SYNC + SY_GF}")
    gl = [f"buffer_load_dword v13, v6, {srd(SWS)}, s12 offen sc1"]
    k(gl[0])
    poll(gl, ["v13"], None, sleep=2, eq=SN)
    stamp("gp")
    k(f"s_add_u32 m0, s61, {UOFF}")
    k("s_lshl_b32 s12, s60, 12")
    for p in (3, 2, 1, 0):
        k(f"buffer_load_dwordx4 {VL16}, {srd(SWS)}, s12 offen offset:{p*1024} sc1 lds", tag="u")
    AB = [16, 48]
    CACC = 80
    BR = 112

    def rdA(n):
        I = n if n < 8 else n - 8
        L = []
        for r in range(8):
            i = 8 * I + r
            b = AB[n & 1] + 4 * r
            L.append(f"ds_read_b64 v[{b}:{b+1}], v4 offset:{64*i}")
            L.append(f"ds_read_b64 v[{b+2}:{b+3}], v4 offset:{64*i+8}")
        return L

    def bslot(C):
        return C if C < 4 else 7 - C

    def rdB(C):
        return [f"ds_read_b128 v[{BR+32*bslot(C)+4*r}:{BR+32*bslot(C)+4*r+3}], v5 offset:{64*(56-(8*C-r))}" for r in range(8)]

    k("v_lshlrev_b32 v6, 3, v3")
    k("v_add_u32 v6, v6, v2")
    k("v_sub_u32 v6, 15, v6")
    k("v_lshrrev_b32 v7, 16, v11")
    k("v_and_b32 v8, 1, v6")
    k("v_cmp_eq_u32 vcc, 1, v8")
    k("v_cndmask_b32 v7, v7, v11, vcc")
    k("v_ashrrev_i32 v6, 1, v6")
    for d in range(4):
        k(f"v_cmp_eq_u32 vcc, {d}, v6")
        k("v_cndmask_b32 v8, 0, v7, vcc")
        k(f"v_accvgpr_write_b32 a{240+d}, v8")
    STG = [2112, CP + 2112]
    SBQ = [240, BR + 8]
    QB = [248, BR]
    k("s_lshl_b32 s10, s3, 11")
    k("v_lshlrev_b32 v6, 3, v1")
    k("v_add_u32 v6, s10, v6")
    k(f"v_mul_u32_u24 v7, {XRT}, v3")
    k("v_lshl_add_u32 v7, v2, 4, v7")
    k(f"s_mul_i32 s57, s3, {16*XRT}")
    k("s_lshr_b32 s10, s56, 1")
    k("s_lshl_b32 s10, s10, 8")
    k("s_add_u32 s57, s57, s10")
    k("s_and_b32 s10, s56, 1")
    k("s_lshl_b32 s10, s10, 3")
    k("s_add_u32 s57, s57, s10")
    k(f"s_mul_i32 s58, s3, {8*XBLK}")
    k("s_lshl_b32 s10, s56, 8")
    k("s_add_u32 s58, s58, s10")
    k("s_mul_i32 s59, s3, 160")
    k("s_add_u32 s59, s59, s56")
    k("s_lshl_b32 s59, s59, 7")
    k(f"s_add_u32 s59, s59, {SY_CF}")
    pcl = wpoll_setup("v12")
    k("s_lshl_b32 s10, s3, 11")
    k(f"s_add_u32 s62, s10, {SY_QF}")
    k("v_lshlrev_b32 v8, 7, v2")
    k("v_lshl_add_u32 v8, v3, 13, v8")
    qfl = [ML(f"buffer_load_dword v9, v8, {srd(SSY)}, s62 offen sc1", 32)]

    def q_ld(hf):
        L = [f"s_mov_b32 s13, {WS_QST + hf*8192}"]
        for it in range(4):
            L += [f"buffer_load_dwordx2 v[{SBQ[hf]+2*it}:{SBQ[hf]+2*it+1}], v6, {srd(SWS)}, s13 offen offset:{it*512} sc1",
                  f"s_add_u32 s12, s57, {WS_QX + (64*hf + 4*it)*XRT}",
                  f"buffer_load_dwordx2 v[{QB[hf]+2*it}:{QB[hf]+2*it+1}], v7, {srd(SWS)}, s12 offen sc1"]
        return L

    def addr2():
        return ["v_lshlrev_b32 v11, 5, v2", "v_lshl_add_u32 v11, v3, 3, v11", "v_add_u32 v11, s61, v11",
                "v_bfe_u32 v8, v1, 2, 2", f"v_mul_u32_u24 v8, {WREG}, v8", "v_and_b32 v9, 3, v1",
                "v_lshl_add_u32 v8, v9, 3, v8", "v_lshl_add_u32 v8, v3, 5, v8", "s_lshl_b32 s10, s3, 9",
                f"s_add_u32 s10, s10, {CB}", "v_add_u32 v8, s10, v8",
                "v_and_b32 v0, 1, v3", "v_lshrrev_b32 v9, 1, v3", "v_lshl_add_u32 v9, v0, 1, v9",
                f"v_mul_u32_u24 v9, {XBLK}, v9", "v_lshl_add_u32 v9, v2, 4, v9"]

    def stage_blk(c):
        a_ = CACC + 4 * c
        return [f"v_cvt_pk_bf16_f32 v{a_}, v{a_}, v{a_+1}", f"v_cvt_pk_bf16_f32 v{a_+1}, v{a_+2}, v{a_+3}",
                f"ds_write_b64 v11, v[{a_}:{a_+1}] offset:{STG[c>>2] + (c&3)*512}"]

    def sync():
        k.wait(lg=0)
        k.barrier()

    def out_half(hf, YB, XO, T):
        L = [f"ds_read_b64_tr_b16 v[{YB+2*it}:{YB+2*it+1}], v8 offset:{STG[hf] + it*128}" for it in range(4)]
        for it in range(4):
            y0, q0, st = YB + 2 * it, QB[hf] + 2 * it, SBQ[hf] + 2 * it
            for d in range(2):
                L += [f"v_lshlrev_b32 v{T+2}, 16, v{q0+d}", f"v_and_b32 v{T+3}, 0xffff0000, v{q0+d}",
                      f"v_lshlrev_b32 v{T}, 16, v{y0+d}", f"v_and_b32 v{T+1}, 0xffff0000, v{y0+d}",
                      f"v_fma_f32 v{T+4}, v{T+2}, v{st+1}, -v{st}", f"v_fma_f32 v{T+5}, v{T+3}, v{st+1}, -v{st}",
                      f"v_fmac_f32 v{T+2}, v{T+4}, v{T}", f"v_fmac_f32 v{T+3}, v{T+5}, v{T+1}",
                      f"v_cvt_pk_bf16_f32 v{XO+2*it+d}, v{T+2}, v{T+3}"]
            if it & 1:
                for o, base in ((YB + 2 * (it - 1), WS_Y), (XO + 2 * (it - 1), WS_X1)):
                    L += [f"v_permlane16_swap_b32 v{o}, v{o+2}", f"v_permlane16_swap_b32 v{o+1}, v{o+3}",
                          f"s_add_u32 s12, s58, {base + (32*hf + (it-1)*2)*XBLK}",
                          (f"buffer_store_dwordx4 v[{o}:{o+3}], v9, {srd(SWS)}, s12 offen sc1", f"cst{hf}")]
        return L

    wl = []
    for p in range(6):
        wl += wgu_dma(p)
    for i in range(NE1):
        wl += wd_load(i)
    k.wait(lg=0)
    a0, b0 = rdA(0), rdB(0)
    for x in a0:
        k(x)
    k.wait_tag("u")
    stamp("ready")
    for x in b0:
        k(x)
    started = set()
    early = []
    side = []
    tot = 0
    for n in range(12):
        I = n if n < 8 else n - 8
        Cs = [C for C in (range(4) if n < 8 else range(4, 8)) if C + I <= 7]
        pend = rdA(n + 1) if n < 11 else []
        bpend = {5: rdB(4), 6: rdB(5), 7: rdB(6), 8: rdB(7)}.get(n) or []
        nm = 8 * len(Cs)
        cnt = 0
        if n == PPN - 1:
            emit(pcl[0])
        if n == PPN:
            poll(pcl, ["v13"], None, sleep=4, nl=16, eq=SN)
            stamp("pp")
        if n == QPN - 2:
            early = list(qfl)
        if n == 6:
            side += addr2()[:3]
        if n == QPN:
            poll(qfl, ["v9"], None, sleep=4, nl=32, eq=SN)
            early = q_ld(0)
            side += addr2()[3:]
        if n == 7:
            for c in range(4):
                side += stage_blk(c)
            side += [sync] + out_half(0, CACC + 2, CACC + 10, 12) if False else [sync]
        if n == 9:
            early = early + q_ld(1)
            side += out_half(0, CACC, CACC + 8, BR + 16) + stage_blk(4)
        if n == 10:
            side += stage_blk(5)
        if n == 11:
            side += stage_blk(6)
        for C in Cs:
            c = C + I
            nb = rdB(C + 1) if (n == 0 and C < 3) else []
            for r in range(8):
                if nb:
                    k(nb.pop(0))
                a = AB[n & 1] + 4 * r
                b = BR + 32 * bslot(C) + 4 * r
                acc = f"v[{CACC+4*c}:{CACC+4*c+3}]"
                src = acc if c in started else "0"
                started.add(c)
                k(f"v_mfma_f32_16x16x32_bf16 {acc}, v[{a}:{a+3}], v[{b}:{b+3}], {src}")
                if I == 0 and r == 0:
                    k(f"v_mfma_f32_16x16x32_bf16 {acc}, a[240:243], v[{b}:{b+3}], {acc}")
                cnt += 1
                tot += 1
                while pend and (16 - len(pend)) * max(nm - 4, 4) < cnt * 16:
                    k(pend.pop(0))
                if bpend and cnt % 2 == 0:
                    k(bpend.pop(0))
                if early:
                    if tot % 2 == 0:
                        emit_one_vmem(early)
                elif n >= PPN and tot % EVERY == 0 and tot <= LASTW:
                    emit_one_vmem(wl)
                for _ in range(2):
                    if side and not (early and isinstance(side[0], str) and side[0].startswith("s_add_u32 s12")):
                        x = side.pop(0)
                        emit(x)
                        if isinstance(x, str) and x.startswith("s_add_u32 s12"):
                            emit(side.pop(0))
        for x in pend + bpend:
            k(x)
    stamp("mfma")
    for x in early + stage_blk(7) + side:
        emit(x)
    sync()
    for x in out_half(1, 16, 24, 32):
        emit(x)
    stamp("cst")
    k.wait_tag("cst0")
    k(f"buffer_store_dword v15, v14, {srd(SSY)}, s59 offen sc1")
    k(f"s_add_u32 s59, s59, {4*160*128}")
    for _ in range(NB):
        emit_one_vmem(wl)
    k.wait_tag("cst1")
    k(f"buffer_store_dword v15, v14, {srd(SSY)}, s59 offen sc1")
    stamp("cf")
    print("weight loads after cf:", sum(1 for x in wl if isvm(x)))
    for x in wl:
        emit(x)
    k.wait(lg=0)
    k.flush_hazards()
    k.branch("s_branch main_join", flush=False)

    k.label("main_prep", flush=False)
    k.vm, k.lg = list(saved0[0]), list(saved0[1])
    k("s_or_b32 s10, s2, s3")
    k("s_cmp_lg_u32 s10, 0")
    k.branch("s_cbranch_scc1 main_nonce_done", flush=False)
    k("s_memrealtime s[56:57]")
    k("s_or_b32 s56, s56, 1")
    k("v_mov_b32 v13, s56")
    k("v_mov_b32 v11, 0")
    ML(f"buffer_store_dword v13, v11, {srd(SDBG)}, 0 offen sc1", 1)()
    k.label("main_nonce_done", flush=False)
    k.vm, k.lg = list(saved0[0]), list(saved0[1])
    k("s_and_b32 s10, s2, 1")
    k("s_lshl_b32 s10, s10, 3")
    k("s_add_u32 s10, s10, 56")
    k("s_cmp_lt_u32 s2, 64")
    k("s_cselect_b32 s10, s10, 72")
    k(f"s_load_dwordx2 s[{SA}:{SA+1}], s[0:1], s10")
    k(f"s_mov_b32 s{SA+2}, {D*F*2}")
    k(f"s_mov_b32 s{SA+3}, 0x00020000")
    k(f"v_mov_b32 v14, {OOB:#x}")
    k("s_mov_b32 s58, 0x05040100")
    k("s_mov_b32 s59, 0x07060302")
    k("v_mov_b32 v12, 0x3f803f80")
    ffn_ids()
    k("v_mov_b32 v244, 0")
    zl = [ML(f"buffer_load_dword v245, v244, {srd(SDBG)}, 0 offen sc1", 1)]

    def q_job():
        if QPOS == 1:
            q_loads()
        emit(zl[0])
        for i in range(4):
            k(f"v_mov_b32 v{240+i}, 0")
        k.srd(SB, 24, SY_HF, WS_SYNC)
        k("s_lshl_b32 s12, s2, 13")
        k("v_lshlrev_b32 v204, 4, v0")
        for i in range(2):
            k(f"buffer_store_dwordx4 v[240:243], v204, {srd(SB)}, s12 offen sc1")
            k("s_add_u32 s12, s12, 4096")

    QR = 80

    def q_loads():
        k.srd(SB, 26, S * D * 2)
        k("s_mul_i32 s62, s3, 96")
        k("s_add_u32 s62, s62, s2")
        k("s_cmp_lt_u32 s62, 128")
        k("s_cselect_b32 s63, 0, 0x40000000")
        k(f"s_mul_i32 s56, s62, {XRT}")
        k("s_add_u32 s56, s56, s63")
        k("v_mul_u32_u24 v11, 1280, v2")
        k("v_lshl_add_u32 v11, v3, 4, v11")
        for i in range(20):
            k(f"buffer_load_dwordx4 v[{QR+4*i}:{QR+4*i+3}], v11, {srd(SB)}, s56 offen offset:{64*i}")

    def q_flag():
        poll(zl, ["v245"], None, sleep=4, nl=1)
        k(f"v_readfirstlane_b32 {SN}, v245")
        k(f"v_mov_b32 v15, {SN}")

    def item_idx(magic, n):
        for ps in range(2):
            o, ch = f"v{4+2*ps}", f"v{5+2*ps}"
            k(f"v_add_u32 v8, {256*ps}, v0")
            k(f"v_mul_u32_u24 {o}, {magic}, v8")
            k(f"v_lshrrev_b32 {o}, 16, {o}")
            k(f"v_mul_u32_u24 {ch}, {n}, {o}")
            k(f"v_sub_u32 {ch}, v8, {ch}")

    def item_loads(pitch):
        k(f"v_mul_u32_u24 v8, {8*pitch}, v4")
        k("v_lshl_add_u32 v8, v5, 4, v8")
        k(f"v_mul_u32_u24 v9, {8*pitch}, v6")
        k("v_lshl_add_u32 v9, v7, 4, v9")
        k("v_cmp_gt_u32 vcc, 224, v0")
        k("v_cndmask_b32 v9, v14, v9, vcc")
        for ps in range(2):
            k("s_mov_b32 s11, s10")
            for i in range(8):
                k(f"buffer_load_dwordx4 v[{16+32*ps+4*i}:{19+32*ps+4*i}], v{8+ps}, {srd(SA)}, s11 offen{NT}")
                if i < 7:
                    k(f"s_add_u32 s11, s11, {pitch}")
        q_job()

    def stage(magic, sh, n, blk, opart, pairb, npair, second):
        for ps in range(2):
            o, ch = f"v{4+2*ps}", f"v{5+2*ps}"
            k(f"v_mul_u32_u24 v161, {magic}, {ch}")
            k(f"v_lshrrev_b32 v161, {sh}, v161")
            k(f"v_mul_u32_u24 v162, {n}, v161")
            k(f"v_sub_u32 {ch}, {ch}, v162")
            opart(o)
            k(f"v_mul_u32_u24 v161, {blk}, v161")
            k("v_add_u32 v160, v160, v161")
            k(f"v_lshrrev_b32 v161, 2, {ch}")
            k(f"v_mul_u32_u24 v161, {pairb}, v161")
            k("v_add_u32 v160, v160, v161")
            k(f"v_and_b32 v161, 3, {ch}")
            k("v_lshlrev_b32 v162, 6, v161")
            k("v_lshlrev_b32 v163, 7, v161")
            k(f"v_cmp_gt_u32 vcc, {npair}, {ch}")
            k("v_cndmask_b32 v162, v163, v162, vcc")
            k(f"v_add_u32 {o}, v160, v162")
            k("v_mov_b32 v162, 64")
            k(f"v_mov_b32 v163, {second}")
            k("v_cndmask_b32 v162, v162, v163, vcc")
            k(f"v_add_u32 {ch}, {o}, v162")
        k("v_cmp_gt_u32 vcc, 224, v0")
        k("v_mov_b32 v160, 61440")
        k("v_cndmask_b32 v6, v160, v6, vcc")
        k("v_cndmask_b32 v7, v160, v7, vcc")
        for ps in range(2):
            src = 16 + 32 * ps
            for e in range(8):
                o = 160 + 4 * e
                for p in range(4):
                    k(f"v_perm_b32 v{o+p}, v{src+4*(2*p+1)+e//2}, v{src+4*(2*p)+e//2}, s{58+(e&1)}")
                k(f"ds_write_b128 v{4+2*ps+(e>>2)}, v[{o}:{o+3}] offset:{(e&3)*16}")
        q_flag()
        if QPOS == 3:
            q_loads()
        k.wait(lg=0)
        k.barrier()
        stamp("mfma")


    k("s_cmp_ge_u32 s2, 64")
    k.branch("s_cbranch_scc1 main_prep_wd", flush=False)
    sv = (list(k.vm), list(k.lg))
    item_idx(2731, 24)
    k("s_bfe_u32 s60, s2, 0x30001")
    k("s_lshr_b32 s61, s2, 4")
    k(f"s_mul_i32 s10, s61, {160*3072}")
    k("s_mul_i32 s11, s60, 384")
    k("s_add_u32 s10, s10, s11")
    item_loads(3072)

    def op_wgu(o):
        k(f"v_lshrrev_b32 v160, 2, {o}")
        k("v_mul_u32_u24 v160, 3072, v160")
        k(f"v_and_b32 v162, 3, {o}")
        k("v_lshl_add_u32 v160, v162, 8, v160")
    stage(43, 8, 6, 15360, op_wgu, 2048, 4, 1024)
    k("s_mul_i32 s13, s3, 15360")
    k(f"v_add_u32 v4, s13, {VL16}")
    k("s_lshl_b32 s12, s60, 2")
    k("s_add_u32 s12, s12, s3")
    k(f"s_mul_i32 s10, s12, {WGU_M}")
    k("s_mul_i32 s11, s61, 30720")
    k("s_add_u32 s10, s10, s11")
    k("s_and_b32 s13, s2, 1")
    k("s_mul_i32 s11, s13, 3072")
    k("s_add_u32 s10, s10, s11")
    k(f"s_add_u32 s10, s10, {WS_WGU}")
    for j in range(15):
        k(f"ds_read_b128 v[{16+4*j}:{19+4*j}], v4 offset:{j*1024}")
    for t in range(3):
        k(f"v_mov_b32 v{5+t}, 0")
    for j in range(15):
        k(f"buffer_store_dwordx4 v[{16+4*j}:{19+4*j}], {VL16}, {srd(SWS)}, s10 offen offset:{(j%3)*1024} sc1")
        if j % 3 == 2:
            k("s_add_u32 s10, s10, 6144")
        for p in range(4):
            k(f"v_dot2c_f32_bf16 v{5+j%3}, v{16+4*j+p}, v12")
    for t in range(3):
        xsum16(k, f"v{5+t}", "v8")
        xsum32(k, f"v{5+t}", "v8")
    k("v_cmp_eq_u32 vcc, 1, v3")
    k("v_cndmask_b32 v5, v5, v6, vcc")
    k("v_cmp_eq_u32 vcc, 2, v3")
    k("v_cndmask_b32 v5, v5, v7, vcc")
    k("v_lshlrev_b32 v6, 2, v1")
    k("v_cmp_gt_u32 vcc, 48, v1")
    k("v_cndmask_b32 v6, v14, v6, vcc")
    k("s_lshl_b32 s10, s12, 11")
    k("s_lshl_b32 s11, s61, 9")
    k("s_add_u32 s10, s10, s11")
    k("s_mul_i32 s11, s13, 192")
    k("s_add_u32 s10, s10, s11")
    k(f"s_add_u32 s10, s10, {WS_CS}")
    k(f"buffer_store_dword v5, v6, {srd(SWS)}, s10 offen sc1")

    if QPOS == 2:
        q_loads()
        k.wait(vm=20)
    else:
        k.wait(vm=0)
    k.flush_hazards()
    k.branch("s_branch main_prep_pub", flush=False)
    k.label("main_prep_wd", flush=False)
    k.vm, k.lg = sv
    item_idx(820, 80)
    k("s_sub_u32 s60, s2, 64")
    k(f"s_mul_i32 s10, s60, {48*1280}")
    item_loads(1280)

    def op_wd(o):
        k(f"v_lshlrev_b32 v160, 8, {o}")
    stage(205, 11, 10, 7680, op_wd, 3072, 8, 1536)
    k("s_mul_i32 s13, s3, 15360")
    k(f"v_add_u32 v4, s13, {VL16}")
    k("v_lshrrev_b32 v6, 1, v3")
    k("v_and_b32 v7, 1, v3")
    k("v_mul_u32_u24 v5, 7680, v6")
    k("v_lshl_add_u32 v5, v7, 8, v5")
    k("v_lshl_add_u32 v5, v2, 4, v5")
    k("v_add_u32 v5, s13, v5")
    k("s_mul_i32 s11, s60, 6")
    k("v_add_u32 v8, s11, v3")
    k("v_add3_u32 v9, v7, s11, 4")
    for v in ("v8", "v9"):
        k(f"v_lshrrev_b32 v13, 2, {v}")
        k("v_mul_u32_u24 v13, 5120, v13")
        k(f"v_and_b32 {v}, 3, {v}")
        k(f"v_lshl_add_u32 {v}, {v}, 8, v13")
        k(f"v_lshl_add_u32 {v}, v2, 4, {v}")
    k(f"v_mul_u32_u24 v13, {48*5120}, v6")
    k("v_add_u32 v9, v9, v13")
    k(f"s_mul_i32 s10, s3, {2*48*5120}")
    k(f"s_add_u32 s10, s10, {WS_WD}")
    plan = []
    for t in range(5):
        plan += [("v4", t * 1536, "v8", t * 1024), ("v4", 7680 + t * 1536, "v8", 48 * 5120 + t * 1024), ("v5", 1024 + t * 1536, "v9", t * 1024)]
    for j, (la, lo, ga, go) in enumerate(plan):
        k(f"ds_read_b128 v[{16+4*j}:{19+4*j}], {la} offset:{lo}")
    for j, (la, lo, ga, go) in enumerate(plan):
        k(f"s_add_u32 s11, s10, {go}")
        k(f"buffer_store_dwordx4 v[{16+4*j}:{19+4*j}], {ga}, {srd(SWS)}, s11 offen sc1")

    if QPOS == 2:
        q_loads()
        k.wait(vm=20)
    else:
        k.wait(vm=0)
    k.flush_hazards()
    k.label("main_prep_pub", flush=False)
    k.barrier()
    k("s_lshl_b32 s10, s2, 7")
    k(f"s_add_u32 s10, s10, {SY_PF}")
    k("s_cmp_eq_u32 s3, 0")
    k("s_cselect_b32 s10, s10, 0x40000000")
    k("v_mov_b32 v204, 0")
    ML(f"buffer_store_dword v15, v204, {srd(SSY)}, s10 offen sc1", 1)()
    stamp("cf")
    k(f"s_add_u32 s12, s56, {WS_QX}")
    k("v_mov_b32 v200, 0")
    k("v_mov_b32 v201, 0")
    for i in range(20):
        if i % 4 == 0 and i:
            k("s_add_u32 s12, s12, 4096")
        k(f"buffer_store_dwordx4 v[{QR+4*i}:{QR+4*i+3}], {VL16}, {srd(SWS)}, s12 offen offset:{(i%4)*1024} sc1")
        for d in range(4):
            k(f"v_dot2c_f32_bf16 v200, v{QR+4*i+d}, v12")
            k(f"v_dot2c_f32_bf16 v201, v{QR+4*i+d}, v{QR+4*i+d}")
    for v in ("v200", "v201"):
        xsum16(k, v, "v205")
        xsum32(k, v, "v205")
    k(f"v_mul_f32 v200, {f2u(1.0/D)}, v200")
    k(f"v_mul_f32 v201, {f2u(1.0/D)}, v201")
    k("v_fma_f32 v201, -v200, v200, v201")
    k("v_max_f32 v201, 0, v201")
    k(f"v_add_f32 v201, {f2u(EPS)}, v201")
    k("v_rsq_f32 v203, v201")
    k("v_mul_f32 v202, v200, v203")
    k("s_lshl_b32 s57, s62, 7")
    k("s_add_u32 s57, s57, s63")
    k(f"s_add_u32 s12, s57, {WS_QST}")
    k("v_lshlrev_b32 v205, 3, v1")
    ML(f"buffer_store_dwordx2 v[202:203], v205, {srd(SWS)}, s12 offen sc1", 16)()
    k(f"s_add_u32 s12, s57, {SY_QF}")
    k.wait(vm=0)
    ML(f"buffer_store_dword v15, v204, {srd(SSY)}, s12 offen sc1", 1)()
    stamp("cst")
    pl = wpoll_setup("v8")
    emit(pl[0])
    poll(pl, ["v13"], None, sleep=4, nl=16, eq=SN)
    stamp("pp")
    for p in range(10):
        for x in wgu_dma(p):
            emit(x)
    for i in range(NEP):
        for x in wd_load(i):
            emit(x)
    k.wait(lg=0)
    k.flush_hazards()

    k.label("main_join", flush=False)
    k.vm = [(set(), "unk")] * 63
    k("s_load_dwordx2 s[26:27], s[0:1], 80")
    k(f"v_add_u32 {VL16B}, 61440, {VL16}")
    k.srd(SX, 24, XSPAN + XFB, WS_X1)
    k.srd(SH, 24, HSPAN + HFB, WS_H)
    k.srd(SY_, 24, XFB, WS_Y)
    k(f"s_mul_i32 s56, s15, {HRT}")
    k("s_mul_i32 s10, s5, 1536")
    k("s_add_u32 s56, s56, s10")
    k("s_mul_i32 s10, s3, 12288")
    k(f"s_mul_i32 s57, s16, {HRT}")
    k("s_add_u32 s57, s57, s10")
    k("s_xor_b32 s11, s16, 1")
    k(f"s_mul_i32 s58, s11, {HRT}")
    k("s_add_u32 s58, s58, s10")
    k(f"s_mul_i32 s59, s16, {XRT}")
    k("s_mul_i32 s10, s8, 2560")
    k("s_add_u32 s59, s59, s10")
    k("v_and_b32 v204, 1, v3")
    k("v_lshrrev_b32 v205, 1, v3")
    k(f"v_mul_u32_u24 {VH2}, {HRT}, v204")
    k("v_lshlrev_b32 v206, 4, v2")
    k("v_lshl_add_u32 v206, v205, 8, v206")
    k(f"v_add_u32 {VH2}, {VH2}, v206")
    k(f"v_lshl_add_u32 {VT4}, v204, 3, v206")
    k("s_lshl_b32 s10, s14, 31")
    k(f"v_or_b32 {VT4S}, s10, {VT4}")
    k("s_lshl_b32 s10, s16, 4")
    k(f"v_add_u32 {VROW}, s10, v2")
    k(f"v_lshlrev_b32 {VGR}, 3, v2")
    k("v_cmp_eq_u32 vcc, 0, v3")
    k(f"v_mov_b32 v204, {OOB:#x}")
    k(f"v_cndmask_b32 {VGW}, v204, {VGR}, vcc")
    k(f"v_lshl_add_u32 {VQ128}, v3, 7, {VGR}")
    k(f"v_lshl_add_u32 {VGR}, v3, 9, {VGR}")
    k("v_cmp_eq_u32 vcc, 0, v1")
    k(f"v_cndmask_b32 {VFLAG}, v204, v1, vcc")
    k("s_lshl_b32 s10, s4, 3")
    k("s_add_u32 s10, s10, s7")
    k("s_lshl_b32 s10, s10, 5")
    k("s_lshl_b32 s11, s3, 3")
    k("s_add_u32 s10, s10, s11")
    k(f"v_and_b32 {VFPOLL}, 7, v1")
    k(f"v_add_u32 {VFPOLL}, s10, {VFPOLL}")
    k(f"v_lshlrev_b32 {VFPOLL}, 7, {VFPOLL}")
    k(f"v_lshlrev_b32 {VXP}, 4, v2")
    k(f"v_lshl_add_u32 {VXP}, v3, 9, {VXP}")
    k("s_lshr_b32 s10, s16, 1")
    k(f"s_mul_i32 s62, s10, {XBLK}")
    k("s_mul_i32 s10, s8, 5120")
    k("s_add_u32 s62, s62, s10")
    k("s_lshl_b32 s10, s9, 3")
    k("s_add_u32 s62, s62, s10")
    k("s_lshr_b32 s10, s5, 2")
    k("s_lshl_b32 s11, s4, 3")
    k("s_add_u32 s63, s10, s11")
    k(f"s_mul_i32 s60, s63, {XBLK}")
    k("s_mul_i32 s10, s3, 10240")
    k("s_add_u32 s60, s60, s10")
    k("s_and_b32 s61, s5, 3")
    k("s_lshl_b32 s10, s61, 6")
    k("s_add_u32 s60, s60, s10")
    k("v_and_b32 v188, 3, v1")
    k("v_lshrrev_b32 v189, 2, v1")
    k("v_lshlrev_b32 v189, 8, v189")
    k("v_lshl_add_u32 v189, v188, 4, v189")
    k("v_cmp_gt_u32 vcc, 32, v1")
    k("v_cndmask_b32 v190, v204, v189, vcc")
    k("s_lshl_b32 s10, s5, 11")
    k(f"s_add_u32 s10, s10, {WS_CS}")
    k("v_lshlrev_b32 v197, 3, v1")
    for i in range(4):
        k(f"buffer_load_dwordx2 v[{208+2*i}:{209+2*i}], v197, {srd(SWS)}, s10 offen offset:{i*512} sc1")
    k.srd(SO, 26, XFB)
    k("s_mul_i32 s10, s4, 160")
    k("s_mul_i32 s11, s3, 40")
    k("s_add_u32 s10, s10, s11")
    k("s_lshl_b32 s10, s10, 7")
    k(f"s_add_u32 s10, s10, {SY_CF}")
    k("s_mul_i32 s11, s3, 3072")
    k(f"s_add_u32 s11, s11, {SY_PF - 40*128}")
    k("v_mov_b32 v205, s10")
    k("v_mov_b32 v206, s11")
    k("v_cmp_gt_u32 vcc, 40, v1")
    k("v_cndmask_b32 v205, v206, v205, vcc")
    k("v_lshl_add_u32 v205, v1, 7, v205")
    k(f"v_add_u32 v197, {LC}, v197")
    k("v_pk_add_f32 v[208:209], v[208:209], v[210:211]")
    k("v_pk_add_f32 v[212:213], v[212:213], v[214:215]")
    k("v_pk_add_f32 v[208:209], v[208:209], v[212:213]")
    k(f"s_cmp_ge_u32 s2, {NPREP}")
    k.branch("s_cbranch_scc1 main_nogate", flush=False)
    svg = (list(k.vm), list(k.lg))
    c1 = [ML(f"buffer_load_dword v206, v205, {srd(SSY)}, 0 offen sc1", 1)]
    emit(c1[0])
    poll(c1, ["v206"], None, sleep=6, nl=1, eq=SN)
    k.label("main_nogate", flush=False)
    k.vm, k.lg = svg
    cl = [f"buffer_load_dword v206, v205, {srd(SSY)}, 0 offen sc1"]
    emit(cl[0])
    poll(cl, ["v206"], None, sleep=2, eq=SN)
    k.vm = []
    k.barrier()
    stamp("join")
    k("ds_write_b64 v197, v[208:209]")
    for kk in range(4):
        for x in x_loads(0, 0, kk, 2 * kk):
            emit(x)
    SR = 192
    for i in range(3):
        k(f"s_add_u32 s12, s60, {i*4096}")
        k(f"buffer_load_dwordx4 v[{SR+4*i}:{SR+4*i+3}], v{189 if i < 2 else 190}, {srd(SX)}, s12 offen sc1")
    for kk in range(4, DIST):
        for x in x_loads(0, 0, kk, 2 * kk):
            emit(x)

    k("s_lshl_b32 s10, s3, 13")
    k(f"s_add_u32 s10, s10, {LR}")
    k(f"v_add_u32 {VRW}, s10, {VL16}")
    k("s_cmp_eq_u32 s14, 0")
    k("s_cselect_b32 s26, 1.0, 0")
    k("s_mov_b32 s27, s26")
    k("s_lshl_b32 s60, s16, 4")
    k("s_lshl_b32 s13, s8, 1")
    k("s_add_u32 s60, s60, s13")
    k("s_add_u32 s60, s60, s14")
    k("s_lshl_b32 s60, s60, 7")

    def phase_s():
        for r in range(2):
            s_, q_ = TMP + 2 * r, TMP + 2 * r + 1
            first = True
            for i in range(3):
                for d in range(2):
                    unpack(k, "v204", "v205", f"v{SR+4*i+2*r+d}")
                    if first:
                        k(f"v_add_f32 v{s_}, v204, v205")
                        k(f"v_mul_f32 v{q_}, v204, v204")
                        first = False
                    else:
                        k(f"v_add_f32 v{s_}, v{s_}, v204")
                        k(f"v_add_f32 v{s_}, v{s_}, v205")
                        k(f"v_fmac_f32 v{q_}, v204, v204")
                    k(f"v_fmac_f32 v{q_}, v205, v205")
        for v in range(TMP, TMP + 4):
            k(f"v_add_f32_dpp v{v}, v{v}, v{v} row_ror:4 row_mask:0xf bank_mask:0xf")
        for v in range(TMP, TMP + 4):
            k(f"v_add_f32_dpp v{v}, v{v}, v{v} row_ror:8 row_mask:0xf bank_mask:0xf")
        for v in range(TMP, TMP + 4):
            xsum16(k, f"v{v}", "v204")
            xsum32(k, f"v{v}", "v204")
        k(f"v_or_b32 v{TMP+1}, 0x80000000, v{TMP+1}")
        k(f"v_or_b32 v{TMP+3}, 0x80000000, v{TMP+3}")
        k("s_lshl_b32 s12, s63, 3")
        k("s_add_u32 s12, s12, s3")
        k("s_lshl_b32 s12, s12, 7")
        k("s_lshl_b32 s13, s61, 5")
        k("s_add_u32 s12, s12, s13")
        k(f"s_add_u32 s12, s12, {SY_ST1}")
        k("v_lshlrev_b32 v204, 3, v1")
        set_exec(4)
        k(f"buffer_store_dwordx2 v[{TMP}:{TMP+1}], v204, {srd(SSY)}, s12 offen sc1")
        k(f"buffer_store_dwordx2 v[{TMP+2}:{TMP+3}], v204, {srd(SSY)}, s12 offen offset:512 sc1")
        k("s_mov_b64 exec, -1")

    sched = {}
    wi = NE1
    for kk in range(20):
        L = []
        if kk < 4:
            L += wgu_dma(6 + kk)
        if kk + DIST < 20:
            L += x_loads(0, 0, kk + DIST, 2 * (kk + DIST))
        else:
            kb = kk + DIST - 20
            L += x_loads(0, 1, kb, 40 + 2 * kb)
        if kk >= 20 - NWA and wi < 60:
            L += wd_load(wi)
            wi += 1
        if kk == 2:
            L = [phase_s] + L
        if kk == 14:
            L = st1_loads(0, TMP + 24) + L
        sched[kk] = L
    g1_main(0, sched, first=True, xp=True)
    stamp("g1a")
    stats1(0, STA)

    def take(n):
        nonlocal wi
        L = []
        for _ in range(n):
            if wi < 60:
                L += wd_load(wi)
                wi += 1
        return L
    g1_epilogue(0, 0, STA, take(NWE1))
    stamp("e1a")
    extra = {}
    for kk in range(12):
        extra[kk] = take((NWB * (kk + 1)) // 12 - (NWB * kk) // 12)
    extra[12] = st1_loads(1, TMP + 24) + res_loads(0)
    sched, rest = g1b_sched(0, extra)
    g1_main(40, sched, xp=True)
    stamp("g1b")
    for L in rest:
        for x in L:
            emit(x)
    stats1(1, STB)
    g1_epilogue(0, 1, STB, take(NWE2))
    print('Wd loads left for G2(A):', 60 - wi)
    stamp("e1b")

    NH0 = int(os.environ.get("NH0", "5"))

    def g2a(layer):
        sc = {kk: take(5) for kk in range(12)}
        assert wi == 60
        sc[HFK] = sc[HFK] + [lambda: h_flag(layer, 1)]
        sc[HPK] = sc[HPK] + h_poll_loads(layer, 1)
        g2_main(80, sc, X1R[0], X2[0])
        stamp(f"g2a{layer}")

        def mid():
            h_poll(layer, 1)
            stamp(f"ph{layer}")
            for kk in range(NH0):
                for x in h_loads(layer, 1, kk, 2 * kk):
                    emit(x)
        g2_reduce(X2[0], mid)

    def g2b_sched(layer, extra):
        sched = {}
        for kk in range(12):
            L = []
            if kk + NH0 < 12:
                L += h_loads(layer, 1, kk + NH0, 2 * (kk + NH0))
            sched[kk] = L + extra.get(kk, [])
        return sched

    g2a(0)
    part_stats(X2[0], 0, SY_ST2)
    stamp("r2a")

    def fin_a():
        finalize(0, X2[0], G2R)
        part_calc(X2[0], 244)
    g2_main(0, g2b_sched(0, {2: res_loads(1), FK - 3: st2_loads(0, G2R), FK: [fin_a]}), X1R[1], X2[1])
    stamp("g2b")
    g2_reduce(X2[1], lambda: part_pub(244, 0, SY_ST3, pre_wait="xst"))
    part_stats(X2[1], 1, SY_ST2)
    stamp("s3a")
    for x in st3_loads(0, TMP):
        emit(x)
    stats3(0, STA)
    stamp("p3a")
    for kk in range(DIST):
        for x in x_loads(1, 0, kk, 2 * kk):
            emit(x)
        if kk == 3:
            for x in st2_loads(1, G2R):
                emit(x)
    finalize(1, X2[1], G2R)
    part_calc(X2[1], 246)
    stamp("fin")
    sched = {}
    xb = [x_loads(1, 1, j, 40 + 2 * j) for j in range(DIST)]
    for kk in range(20):
        L = []
        if kk + DIST < 20:
            L += x_loads(1, 0, kk + DIST, 2 * (kk + DIST))
        if kk == 3:
            L = L + [lambda: part_pub(246, 1, SY_ST3, pre_wait="xst")]
        if kk == S3K - 4:
            L = L + st3_loads(1, TMP)
        if kk == S3K:
            L = [lambda: stats3(1, STB)] + L
        if kk >= S3K:
            for _ in range(-(-DIST // (20 - S3K))):
                if xb and (DIST - len(xb)) + 8 < kk:
                    L += xb.pop(0)
        sched[kk] = L
    assert not xb
    g1_main(0, sched)
    stamp("g1a'")
    g1_epilogue(1, 0, STA)
    stamp("e1a'")
    sched, rest = g1b_sched(1, {})
    g1_main(40, sched)
    stamp("g1b'")
    for L in rest:
        for x in L:
            emit(x)
    g1_epilogue(1, 1, STB)
    stamp("e1b'")
    g2a(1)
    out_store(0, X2[0])
    stamp("r2a'")
    g2_main(0, g2b_sched(1, {}), X1R[1], X2[1])
    g2_reduce(X2[1])
    out_store(1, X2[1])
    if DIAG:
        in_srd(k, 96, 88, 256)
        k("s_cmp_eq_u32 s101, 0")
        k("s_cselect_b32 s10, 0x40000000, 0")
        k("s_lshl_b32 s11, s2, 8")
        k("s_or_b32 s11, s11, s101")
        k("s_lshl_b32 s12, s3, 16")
        k("s_or_b32 s11, s11, s12")
        k("v_mov_b32 v0, s11")
        k("s_and_b32 s12, s101, 0xe")
        k("s_lshl_b32 s12, s12, 1")
        k("v_mov_b32 v1, s12")
        ML("buffer_store_dword v0, v1, s[96:99], s10 offen", 1)()
    if os.environ.get("DBGST"):
        k.stamp("end")
        k.wait(vm=0, lg=0)
        in_srd(k, 96, 88, 256)
        k("s_lshl_b32 s10, s2, 2")
        k("s_add_u32 s10, s10, s3")
        k(f"s_cmp_eq_u32 s10, {int(os.environ['DBGST'])*4}")
        k("s_cselect_b32 s10, 0, 0x40000000")
        k("v_mov_b32 v0, 0")
        for i in range(1, len(k.stamps)):
            k(f"s_sub_u32 s11, s{64+2*i}, s64")
            k("v_mov_b32 v1, s11")
            ML(f"buffer_store_dword v1, v0, s[96:99], s10 offen offset:{4*i}", 1)()
        print(k.stamps)
    else:
        k.prof_end(2, 24, 3, names="main")
    k.label("main_end", flush=False)
    k("s_endpgm")
    k.raw("main_code_end:")
    return k


if __name__ == "__main__":
    if os.environ.get("PROF"):
        Kern.PROF = True
    main = gen_main()
    out = sys.argv[1] if len(sys.argv) > 1 else "v20.s"
    txt = build_file(HEADER, [main], [main]).replace(f"; @launch kernel={KNAME} ", "; @launch ")
    open(out, "w").write(txt)
    json.dump(PROFINFO, open(out + ".prof.json", "w"))
    print("instrs", main.nins, "vgpr", main.maxv + 1, "agpr", main.maxa + 1, "sgpr", main.maxs + 1, "lds", main.lds)
```

```python
import sys, os, json
sys.path.insert(0, "dev")
from asmdsl import *
from gen1 import S, D, F, EPS, f2u, unpack, reduce16, xsum16, xsum32, HEADER, XFB, HFB, WDB

KNAME = "interleave_layers__ssm_conv_h3__swiglu_ffn__prompt_kernel"
WS_KVT = 0x0000000
WS_QST = 0x0300000
WS_WGU = 0x0400000
WGU_M = 20 * 6144
WGUB = 32 * WGU_M
WS_CS = 0x0800000
WS_WD = 0x0900000
WS_Y = 0x0C00000
WS_X1 = 0x0F00000
WS_H = 0x1200000
WS_X3 = 0x1D00000
WS_H2 = 0x2000000
WS_SYNC = 0x2800000
SY_ST1 = 0
SY_ST2 = 0x10000
SY_ST3 = 0x50000
SY_HF = 0x90000
SY_CF_OLD = 0x110000
SY_PF = 0x124000
SY_QF = 0x128000
SY_GF = 0x12C000
SY_QF = 0x140000
SY_CF = 0x150000
SYNCB = 0x178000
SN = "s[100:101]"
WS_QX = 0x2C00000
XBLK = 40960
WSB = 0x3000000
XRT = 20480
HRT = 49152
OOB = 0x80000000
LOG2E = 1.4426950408889634
SPIN_MAX = 1 << 14
NPREP = 96
STAMPS = os.environ.get("STAMPS", "").split(",")
NP1 = int(os.environ.get("NP1", "4"))
NE1 = int(os.environ.get("NE1", "24"))
PPN = int(os.environ.get("PPN", "2"))
LASTW = int(os.environ.get("LASTW", "240"))
NB = int(os.environ.get("NB", "6"))
NE2 = int(os.environ.get("NE2", "0"))
MAP = int(os.environ.get("MAP", "2"))
PF = int(os.environ.get("PF", "0"))
FK = int(os.environ.get("FK", "7"))
HFK = int(os.environ.get("HFK", "4"))
S3K = int(os.environ.get("S3K", "15"))
NWA = int(os.environ.get("NWA", "10"))
NWE1 = int(os.environ.get("NWE1", "12"))
NWB = int(os.environ.get("NWB", "14"))
NWE2 = int(os.environ.get("NWE2", "12"))
HPK = int(os.environ.get("HPK", "9"))
PREW = int(os.environ.get("PREW", "1"))
DIAG = int(os.environ.get("DIAG", "0"))
QPN = int(os.environ.get("QPN", "8"))
QPOS = int(os.environ.get("QPOS", "2"))
NEP = int(os.environ.get("NEP", "36"))
NT = " nt" if os.environ.get("NT") else ""
HPOS = int(os.environ.get("HPOS", "2"))
EVERY = int(os.environ.get("EVERY", "5"))


def srd(n):
    return f"s[{n}:{n+3}]"


def mkstamp(k):
    def stamp(n):
        if n in STAMPS:
            if hasattr(k, "stamps") and n in k.stamps:
                if Kern.PROF:
                    i = k.stamps.index(n)
                    k(f"{Kern.CLK} s[{64+2*i}:{65+2*i}]")
            else:
                k.stamp(n)
    return stamp


def in_srd(k, slot, karg_off, nbytes):
    k(f"s_load_dwordx2 s[{slot}:{slot+1}], s[0:1], {karg_off}")
    k(f"s_mov_b32 s{slot+2}, {nbytes}")
    k(f"s_mov_b32 s{slot+3}, 0x00020000")


def gen_pre():
    k = Kern("pre_kernel", lds=8192, grid=384, block=128)
    stamp = mkstamp(k)
    SA, SB, SC_, SD_, SWS = 28, 32, 36, 40, 48
    k.prof_begin()
    k(f"s_cmp_ge_u32 s2, {k.grid}")
    k.branch("s_cbranch_scc1 pre_end", flush=False)
    k("s_load_dwordx2 s[24:25], s[0:1], 96")
    k("s_cmp_ge_u32 s2, 320")
    k.branch("s_cbranch_scc1 pre_q", flush=False)
    saved0 = (list(k.vm), list(k.lg))
    in_srd(k, SA, 8, S * D * 2)
    in_srd(k, SB, 16, S * D * 2)
    in_srd(k, SC_, 24, D * 8)
    in_srd(k, SD_, 32, D * 4096)
    k("v_lshrrev_b32 v1, 6, v0")
    k("v_readfirstlane_b32 s3, v1")
    k("v_and_b32 v1, 63, v0")
    k("s_lshr_b32 s57, s2, 5")
    k("s_and_b32 s58, s2, 31")
    k("v_lshrrev_b32 v4, 3, v1")
    k("v_and_b32 v5, 7, v1")
    k("s_lshl_b32 s10, s58, 6")
    k("s_lshl_b32 s11, s3, 5")
    k("s_add_u32 s10, s10, s11")
    k("v_lshlrev_b32 v6, 2, v4")
    k("v_add_u32 v6, s10, v6")
    k("v_mul_u32_u24 v7, 1280, v6")
    k("v_lshl_add_u32 v7, v5, 4, v7")
    k("s_lshl_b32 s12, s57, 7")
    k("v_add_u32 v7, s12, v7")
    KR, VR, WR = 16, 44, 60
    k("v_lshlrev_b32 v9, 6, v5")
    k("s_lshl_b32 s12, s57, 9")
    for j in (3, 4, 5, 6):
        k(f"buffer_load_dwordx4 v[{KR+4*j}:{KR+4*j+3}], v7, {srd(SA)}, 0 offen offset:{(j-3)*1280}")
    for i in range(4):
        k(f"buffer_load_dwordx4 v[{VR+4*i}:{VR+4*i+3}], v7, {srd(SB)}, 0 offen offset:{i*1280}{NT}")
    for i in range(4):
        k(f"buffer_load_dwordx4 v[{WR+4*i}:{WR+4*i+3}], v9, {srd(SC_)}, s12 offen offset:{16*i}")
    for j in (2, 1, 0):
        k(f"v_add_u32 v8, {((j-3)*1280) & 0xffffffff:#x}, v7")
        k(f"buffer_load_dwordx4 v[{KR+4*j}:{KR+4*j+3}], v8, {srd(SA)}, 0 offen")
    k.srd(SWS, 24, WSB)
    k("s_lshl_b32 s10, s3, 6")
    k("s_sub_u32 s10, 120, s10")
    k("v_lshlrev_b32 v8, 3, v4")
    k("v_sub_u32 v8, s10, v8")
    k("v_lshlrev_b32 v9, 4, v5")
    k("v_xor_b32 v8, v8, v9")
    k("v_lshl_add_u32 v8, v5, 10, v8")
    k("s_lshl_b32 s10, s3, 12")
    k("v_lshlrev_b32 v11, 7, v4")
    k("v_add_u32 v11, s10, v11")
    k("s_lshl_b32 s11, s3, 2")
    for j in range(4):
        k(f"s_add_u32 s12, s11, {j}")
        k(f"v_xor_b32 v{12+j}, s12, v5")
        k(f"v_lshl_add_u32 v{12+j}, v{12+j}, 4, v11")
    k("v_lshl_add_u32 v9, v4, 12, v9")
    k("s_lshl_b32 s10, s57, 6")
    k("s_lshl_b32 s11, s3, 5")
    k("s_add_u32 s10, s10, s11")
    k("s_lshl_b32 s10, s10, 12")
    k("s_lshl_b32 s11, s58, 7")
    k("s_sub_u32 s11, 3968, s11")
    k("s_add_u32 s10, s10, s11")
    WF = 80
    for c in range(8):
        unpack(k, f"v{WF+4*c}", f"v{WF+4*c+1}", f"v{WR+2*c}")
        unpack(k, f"v{WF+4*c+2}", f"v{WF+4*c+3}", f"v{WR+2*c+1}")
    k.need([f"v{KR}"])
    stamp("Tld")
    if HPOS == 3:
        h_loads_()
    lab = k.newlabel("pc")
    k("s_getpc_b64 s[44:45]")
    k.raw(lab + ":")
    k(f"s_add_u32 s44, s44, main_kernel-{lab}")
    k("s_addc_u32 s45, s45, 0")
    k("s_mov_b32 s46, main_code_end-main_kernel")
    k("s_mov_b32 s47, 0x00020000")
    k("v_lshlrev_b32 v2, 7, v0")
    k(f"s_sub_u32 s12, s2, {NPREP}")
    k("s_lshl_b32 s12, s12, 14")
    k("s_and_b32 s12, s12, 0x7fffffff")
    k(f"buffer_load_dword v150, v2, {srd(SD_)}, s12 offen")
    k("s_lshr_b32 s12, s2, 3")
    k("s_lshl_b32 s12, s12, 14")
    k("buffer_load_dword v151, v2, s[44:47], s12 offen")
    KF, VF, OUT = 112, 128, 136
    for cp in range(4):
        for j in range(7):
            unpack(k, f"v{KF+2*j}", f"v{KF+2*j+1}", f"v{KR+4*j+cp}")
        for i in range(4):
            unpack(k, f"v{VF+2*i}", f"v{VF+2*i+1}", f"v{VR+4*i+cp}")
        for h in range(2):
            c = 2 * cp + h
            O = OUT + 4 * h
            for i in range(4):
                k(f"v_mul_f32 v{O+i}, v{KF+2*(i+0)+h}, v{WF+4*c+3}")
            for t in (2, 1, 0):
                for i in range(4):
                    k(f"v_fmac_f32 v{O+i}, v{KF+2*(i+3-t)+h}, v{WF+4*c+t}")
            for i in range(4):
                k(f"v_mul_f32 v{O+i}, v{O+i}, v{VF+2*i+h}")
            p = 144 + 2 * h
            k(f"v_cvt_pk_bf16_f32 v{p}, v{O+3}, v{O+2}")
            k(f"v_cvt_pk_bf16_f32 v{p+1}, v{O+1}, v{O+0}")
            k(f"ds_write_b64 v8, v[{p}:{p+1}] offset:{c*128}")
    k.wait(lg=0)
    k.barrier()
    stamp("Tkv")
    for j in range(4):
        k(f"ds_read_b128 v[{16+4*j}:{19+4*j}], v{12+j} offset:{j*1024}")
    for j in range(4):
        k(f"buffer_store_dwordx4 v[{16+4*j}:{19+4*j}], v9, {srd(SWS)}, s10 offen{PSC}")
        k("s_add_u32 s10, s10, 32768")
    for i in range(4):
        k(f"v_mov_b32 v{32+i}, 0")
    k.srd(SA, 24, SYNCB, WS_SYNC)
    k("s_lshl_b32 s12, s2, 12")
    k("v_lshlrev_b32 v8, 4, v0")
    for i in range(2):
        k(f"buffer_store_dwordx4 v[32:35], v8, {srd(SA)}, s12 offen offset:{i*2048}{PSC}")
    k.prof_end(0, 24, 3, names="pre")
    k("s_endpgm")
    k.label("pre_q", flush=False)
    k.vm, k.lg = saved0
    in_srd(k, SA, 0, S * D * 2)
    k("v_lshrrev_b32 v1, 6, v0")
    k("v_readfirstlane_b32 s3, v1")
    k("v_and_b32 v1, 63, v0")
    k("v_and_b32 v2, 15, v0")
    k("v_bfe_u32 v3, v0, 4, 2")
    k("s_sub_u32 s10, s2, 320")
    k("s_lshl_b32 s10, s10, 1")
    k("s_add_u32 s10, s10, s3")
    k(f"s_mul_i32 s11, s10, {XRT}")
    k("v_mul_u32_u24 v4, 1280, v2")
    k("v_lshl_add_u32 v4, v3, 4, v4")
    QR = 16
    for i in range(20):
        k(f"buffer_load_dwordx4 v[{QR+4*i}:{QR+4*i+3}], v4, {srd(SA)}, s11 offen offset:{64*i}")
    k.srd(SWS, 24, WSB)
    k("v_lshlrev_b32 v5, 4, v1")
    k(f"s_add_u32 s12, s11, {WS_QX}")
    k("v_mov_b32 v6, 0x3f803f80")
    k("v_mov_b32 v8, 0")
    k("v_mov_b32 v9, 0")
    for i in range(20):
        if i % 4 == 0 and i:
            k("s_add_u32 s12, s12, 4096")
        k(f"buffer_store_dwordx4 v[{QR+4*i}:{QR+4*i+3}], v5, {srd(SWS)}, s12 offen offset:{(i%4)*1024}{PSC}")
        for d in range(4):
            k(f"v_dot2c_f32_bf16 v8, v{QR+4*i+d}, v6")
            k(f"v_dot2c_f32_bf16 v9, v{QR+4*i+d}, v{QR+4*i+d}")
    for v in ("v8", "v9"):
        xsum16(k, v, "v7")
        xsum32(k, v, "v7")
    k(f"v_mul_f32 v8, {f2u(1.0/D)}, v8")
    k(f"v_mul_f32 v9, {f2u(1.0/D)}, v9")
    k("v_fma_f32 v9, -v8, v8, v9")
    k("v_max_f32 v9, 0, v9")
    k(f"v_add_f32 v9, {f2u(EPS)}, v9")
    k("v_rsq_f32 v11, v9")
    k("v_mul_f32 v10, v8, v11")
    k("s_lshl_b32 s12, s10, 7")
    k(f"s_add_u32 s12, s12, {WS_QST}")
    k("v_lshlrev_b32 v7, 3, v2")
    k(f"buffer_store_dwordx2 v[10:11], v7, {srd(SWS)}, s12 offen")
    k.label("pre_end", flush=False)
    k("s_endpgm")
    return k


PSC = os.environ.get("PSC", "")

def gen_main():
    LW = 0
    LR = 131072
    LC = 122880
    CP = 4160
    UOFF = 4 * CP
    WREG = 4 * CP + 4608
    CB = 163840 - 4 * WREG
    k = Kern(KNAME, lds=163840, grid=256, block=256)
    RING, ACC, WB, TMP = 16, 112, 160, 184
    X1R = [216, 222]
    YR = [228, 234]
    STA, STB = [4, 6], [240, 242]
    X2 = [WB, WB + 12]
    G2R = TMP + 8
    DIST = int(os.environ.get("DIST", "8"))
    VL16, VL16B, VH2, VT4, VT4S, VROW, VGW, VGR, VQ128, VFLAG, VFPOLL = (
        "v10", "v11", "v8", "v9", "v12", "v13", "v14", "v15", "v0", "v252", "v253")
    VL128 = "v251"
    VXP = "v250"
    VRW = "v249"
    LQ = 131072
    SX, SW, SH, SWD, SSY, SO, SY_ = 28, 32, 36, 40, 44, 48, 52
    SA, SB, SWS, SDBG = 28, 36, 48, 52
    XSPAN = WS_X3 - WS_X1
    HSPAN = WS_H2 - WS_H

    stamp = mkstamp(k)

    def ring(i):
        return RING + 4 * (i % 24)

    def emit(x):
        if callable(x):
            x()
        elif isinstance(x, tuple):
            k(x[0], tag=x[1])
        else:
            k(x)

    def set_exec(nl):
        m = (1 << nl) - 1
        if nl <= 32:
            k(f"s_mov_b64 exec, {m:#x}") if nl <= 6 else (k(f"s_mov_b32 exec_lo, {m:#x}"), k("s_mov_b32 exec_hi, 0"))
        else:
            k(f"s_mov_b32 exec_hi, {m >> 32:#x}")

    class ML:
        def __init__(self, text, nl):
            self.text, self.nl = text, nl

        def __call__(self):
            set_exec(self.nl)
            k(self.text)
            k("s_mov_b64 exec, -1")

    def isvm(x):
        if isinstance(x, ML):
            return True
        if callable(x):
            return False
        return (x[0] if isinstance(x, tuple) else x).startswith("buffer_")

    def emit_one_vmem(L):
        while L:
            x = L.pop(0)
            emit(x)
            if isvm(x):
                return

    def x_loads(layer, b, kk, slot0):
        if layer == 0:
            return [f"s_add_u32 s10, s17, {kk*2048 + b*4*XBLK}"] + [
                f"buffer_load_dwordx4 v[{ring(slot0+e)}:{ring(slot0+e)+3}], {VXP}, {srd(SX)}, s10 offen offset:{e*256} sc1"
                for e in range(2)]
        so = kk * 1024 + b * 8 * XRT + (XSPAN if layer else 0)
        L = []
        for tn in range(2):
            L.append(f"s_add_u32 s10, s17, {so + tn*XRT}")
            L.append(f"buffer_load_dwordx4 v[{ring(slot0+tn)}:{ring(slot0+tn)+3}], {VL16}, {srd(SX)}, s10 offen sc1")
        return L

    def h_loads(layer, b, kk, slot0):
        so = kk * 1024 + b * 8 * HRT + (HSPAN if layer else 0)
        L = []
        for tn in range(2):
            L.append(f"s_add_u32 s10, s{57+tn}, {so}")
            L.append(f"buffer_load_dwordx4 v[{ring(slot0+tn)}:{ring(slot0+tn)+3}], {VL16}, {srd(SH)}, s10 offen sc1")
        return L

    def x_pf(layer, b):
        if not PF:
            return []
        return [f"s_add_u32 s10, s26, {b*8*XRT + (XSPAN if layer else 0)}",
                ML(f"buffer_load_dword a240, {VL128}, {srd(SX)}, s10 offen sc1", 20)]

    def h_pf(layer, b):
        if not PF:
            return []
        return [f"s_add_u32 s10, s27, {b*8*HRT + (HSPAN if layer else 0)}",
                ML(f"buffer_load_dword a241, {VL128}, {srd(SH)}, s10 offen sc1", 48)]

    def wgu_dma(p):
        return [f"s_add_u32 m0, s18, {LW + p*12288}", f"s_add_u32 s11, s19, {p*12288}"] + [
            (f"buffer_load_dwordx4 {VL16}, {srd(SW)}, s11 offen offset:{f*1024} sc1 lds", f"w{p}") for f in range(3)]

    def wd_load(i):
        kk, lt = divmod(i, 5)
        base = "s20" if lt < 2 else "s21" if lt < 4 else "s22"
        return [f"s_add_u32 s11, {base}, {kk*5120}",
                f"buffer_load_dwordx4 a[{4*i}:{4*i+3}], {VL16}, {srd(SWD)}, s11 offen offset:{(lt&1)*1024 if lt < 4 else 0} sc1"]

    def poll(loads, tags, tmp, sleep=1, ge=None, nl=64, eq=None):
        def check():
            if nl < 64:
                k(f"v_mov_b32 {tags[0]}, {tags[0]}")
                set_exec(nl)
            check0()
            if nl < 64:
                k("s_cmp_eq_u64 vcc, exec")
                k("s_mov_b64 exec, -1")
            else:
                k("s_cmp_eq_u64 vcc, -1")

        def check0():
            if eq is not None:
                r_ = int(tags[0][1:])
                k(f"v_cmp_eq_u64 vcc, {eq}, v[{r_}:{r_+1}]")
            elif ge is not None:
                k(f"v_cmp_le_u32 vcc, {ge}, {tags[0]}")
            elif len(tags) == 1:
                k(f"v_cmp_ne_u32 vcc, 0, {tags[0]}")
            else:
                k(f"v_min_u32 {tmp}, {tags[0]}, {tags[1]}")
                for t in tags[2:]:
                    k(f"v_min_u32 {tmp}, {tmp}, {t}")
                k(f"v_cmp_ne_u32 vcc, 0, {tmp}")
        ok = k.newlabel("ok")
        lp = k.newlabel("spin")
        check()
        k.branch(f"s_cbranch_scc1 {ok}", flush=False)
        vm, lg = list(k.vm), list(k.lg)
        k("s_mov_b32 s23, 0")
        k.label(lp, flush=False)
        k(f"s_sleep {sleep}")
        for l in loads:
            emit(l)
        k.wait(vm=0)
        k("s_add_u32 s23, s23, 1")
        k(f"s_cmp_ge_u32 s23, {SPIN_MAX}")
        if DIAG:
            k(f"s_cselect_b32 s101, {k.uid}, s101")
        k.branch(f"s_cbranch_scc1 {ok}", flush=False)
        check()
        k.branch(f"s_cbranch_scc0 {lp}", flush=False)
        k.flush_hazards()
        k.label(ok, flush=False)
        k.vm, k.lg = vm, lg

    def finish_stats(vsum, vnsq, dst):
        k(f"v_mul_f32 v{dst}, {f2u(-1.0/D)}, {vsum}")
        k(f"v_mul_f32 {vnsq}, {f2u(-1.0/D)}, {vnsq}")
        k(f"v_fma_f32 {vnsq}, -v{dst}, v{dst}, {vnsq}")
        k(f"v_max_f32 {vnsq}, 0, {vnsq}")
        k(f"v_add_f32 {vnsq}, {f2u(EPS)}, {vnsq}")
        k(f"v_rsq_f32 v{dst+1}, {vnsq}")

    def wread(kk, f):
        reg, off = (VL16, kk * 6144) if kk < 10 else (VL16B, (kk - 10) * 6144)
        return f"ds_read_b128 v[{WB+4*f}:{WB+4*f+3}], {reg} offset:{LW+off+f*1024}"

    def xswap(slot):
        a_, b_ = ring(slot), ring(slot + 1)
        k(f"v_swap_b32 v{a_+2}, v{b_}")
        k(f"v_swap_b32 v{a_+3}, v{b_+1}")

    def g1_main(slot0, sched, first=False, xp=False):
        for f in range(6):
            k(wread(0, f))
        if xp:
            xswap(slot0)
        for kk in range(20):
            L = sched.get(kk, [])
            if first and kk == 11:
                k.wait_tag("w9")
                k.barrier()
            nv = sum(1 for x in L if isvm(x))
            done = 0
            for f in range(6):
                for tn in range(2):
                    a = ACC + 8 * f + 4 * tn
                    acc = f"v[{a}:{a+3}]"
                    xr = ring(slot0 + 2 * kk + tn)
                    k(f"v_mfma_f32_16x16x32_bf16 {acc}, v[{WB+4*f}:{WB+4*f+3}], v[{xr}:{xr+3}], {acc if kk else 0}")
                    if tn == 0:
                        while done < nv and done * 6 < (f + 1) * nv - 2:
                            emit_one_vmem(L)
                            done += 1
                        if PREW and not (kk == 19 and f == 5):
                            regs = [f"v{WB+4*((f+1)%6)}"]
                            if f == 5 and not xp:
                                regs += [f"v{ring(slot0+2*kk+2)}", f"v{ring(slot0+2*kk+3)}"]
                            k.need(regs)
                    elif PREW:
                        while L and isinstance(L[0], str) and L[0].startswith("s_add_u32 s10") and done < nv and done * 6 < (f + 2) * nv - 2:
                            emit(L.pop(0))
                if xp and f == 3 and kk < 19:
                    xswap(slot0 + 2 * kk + 2)
                if kk < 19:
                    k(wread(kk + 1, f))
                else:
                    if f == 0:
                        k("v_lshlrev_b32 v255, 4, v3")
                        k(f"v_add_u32 v255, {LC}, v255")
                    k(f"ds_read_b128 v[{WB+4*f}:{WB+4*f+3}], v255 offset:{f*64}")
            for x in L:
                emit(x)

    def g1_epilogue(layer, b, ST, fill=None):
        fill = fill if fill is not None else []
        k(f"s_add_u32 s12, s56, {b*8*HRT + (HSPAN if layer else 0)}")
        O2 = TMP + 20
        for tn in range(2):
            st = ST[tn]
            c1 = TMP + 28
            k(f"v_mul_f32 v{c1}, {f2u(-LOG2E)}, v{st+1}")
            k(f"v_mul_f32 v{c1+1}, v{st+1}, v{st+1}")
            k(f"v_rcp_f32 v{c1+1}, v{c1+1}")
            T = TMP
            for f in range(6):
                a = ACC + 8 * f + 4 * tn
                for i in (0, 2):
                    k(f"v_pk_fma_f32 v[{a+i}:{a+i+1}], v[{WB+4*f+i}:{WB+4*f+i+1}], v[{st}:{st+1}], v[{a+i}:{a+i+1}] op_sel:[0,0,0] op_sel_hi:[1,0,1]")
            for f in range(3):
                g = ACC + 8 * f + 4 * tn
                for i in (0, 2):
                    k(f"v_pk_mul_f32 v[{T+4*f+i}:{T+4*f+i+1}], v[{g+i}:{g+i+1}], v[{c1}:{c1+1}] op_sel:[0,0] op_sel_hi:[1,0]")
            for e in range(12):
                k(f"v_exp_f32 v{T+e}, v{T+e}")
                if e % 4 == 0:
                    emit_one_vmem(fill)
            for f in range(3):
                g = ACC + 8 * f + 4 * tn
                u = g + 24
                for i in (0, 2):
                    k(f"v_pk_mul_f32 v[{g+i}:{g+i+1}], v[{g+i}:{g+i+1}], v[{u+i}:{u+i+1}]")
            for e in range(0, 12, 2):
                k(f"v_pk_fma_f32 v[{T+e}:{T+e+1}], v[{T+e}:{T+e+1}], v[{c1}:{c1+1}], v[{c1}:{c1+1}] op_sel:[0,1,1] op_sel_hi:[1,1,1]")
            for e in range(12):
                k(f"v_rcp_f32 v{T+e}, v{T+e}")
                if e % 4 == 0:
                    emit_one_vmem(fill)
            for f in range(3):
                g = ACC + 8 * f + 4 * tn
                for i in (0, 2):
                    k(f"v_pk_mul_f32 v[{T+4*f+i}:{T+4*f+i+1}], v[{T+4*f+i}:{T+4*f+i+1}], v[{g+i}:{g+i+1}]")
            O = TMP + 12 + 4 * tn
            for p in range(4):
                k(f"v_cvt_pk_bf16_f32 v{O+p}, v{T+2*p}, v{T+2*p+1}")
            for p in range(2):
                k(f"v_cvt_pk_bf16_f32 v{O2+2*tn+p}, v{T+8+2*p}, v{T+9+2*p}")
            if tn:
                k(f"s_add_u32 s13, s12, {HRT}")
            k(f"buffer_store_dwordx4 v[{O}:{O+3}], {VL16}, {srd(SH)}, s{12+tn} offen sc1", tag="hst")
        k(f"v_permlane16_swap_b32 v{O2}, v{O2+2}")
        k(f"v_permlane16_swap_b32 v{O2+1}, v{O2+3}")
        k(f"buffer_store_dwordx4 v[{O2}:{O2+3}], {VH2}, {srd(SH)}, s12 offen offset:1024 sc1", tag="hst")
        for x in fill:
            emit(x)

    def h_flag(layer, b):
        k("s_lshl_b32 s12, s4, 3")
        k("s_add_u32 s12, s12, s3")
        k("s_lshl_b32 s12, s12, 5")
        k("s_add_u32 s12, s12, s5")
        k("s_lshl_b32 s12, s12, 7")
        k(f"s_add_u32 s12, s12, {SY_HF + layer*0x40000 + b*0x4000}")
        k("v_mov_b32 v254, s100"); k("v_mov_b32 v255, s101")
        k.wait_tag("hst")
        k(f"buffer_store_dwordx2 v[254:255], {VFLAG}, {srd(SSY)}, s12 offen sc1")
        stamp(f"hf{layer}{b}")

    def h_poll_loads(layer, b):
        return [f"s_mov_b32 s13, {SY_HF + layer*0x40000 + b*0x4000}",
                ML(f"buffer_load_dwordx2 v[{TMP+30}:{TMP+31}], {VFPOLL}, {srd(SSY)}, s13 offen sc1", 8)]

    def h_poll(layer, b):
        poll(h_poll_loads(layer, b), [f"v{TMP+30}"], None, nl=8, eq=SN)

    TAILK = int(os.environ.get("TAILK", "3"))
    RESF = TMP

    def g2_main(slot0, sched, res, dst):
        def areg(lt, tn):
            if tn == 0 and lt in (0, 1, 4):
                return dst + 4 * (lt if lt < 2 else 2)
            return ACC + 8 * lt + 4 * tn

        def mf(kk, lt, tn):
            a = areg(lt, tn)
            acc = f"v[{a}:{a+3}]"
            hr = ring(slot0 + 2 * kk + tn)
            wr = 4 * (5 * kk + lt)
            k(f"v_mfma_f32_16x16x32_bf16 {acc}, a[{wr}:{wr+3}], v[{hr}:{hr+3}], {acc if kk else 0}")

        for kk in range(12 - TAILK):
            L = sched.get(kk, [])
            nv = sum(1 for x in L if isvm(x))
            done = 0
            idx = 0
            if kk == 5:
                k.barrier()
            for tn in range(2):
                for lt in range(5):
                    mf(kk, lt, tn)
                    idx += 1
                    while done < nv and done * 10 < idx * nv - 5:
                        emit_one_vmem(L)
                        done += 1
            for x in L:
                emit(x)
        L = []
        for kk in range(12 - TAILK, 12):
            L += sched.get(kk, [])
        order = [(0, 1, 0), (1, 1, 1), (2, 0, 2), (3, 0, 3), (2, 1, 4), (3, 1, 5), (4, 1, 7), (4, 0, 6), (0, 0, None), (1, 0, None)]
        pend = []
        fillv = []
        for d in range(6):
            fillv += [f"v_lshlrev_b32 v{RESF+2*d}, 16, v{res+d}", f"v_and_b32 v{RESF+2*d+1}, 0xffff0000, v{res+d}"]
        fillv += [f"v_xor_b32 v{TMP+12+x}, {x << 13}, {VRW}" for x in range(1, 4)]
        for i, (lt, tn, slot) in enumerate(order):
            for kk in range(12 - TAILK, 12):
                mf(kk, lt, tn)
                if i >= 5 and fillv:
                    k(fillv.pop(0))
            if L:
                emit_one_vmem(L)
            if slot is not None:
                a = areg(lt, tn)
                pend.append((i, f"ds_write_b128 {VRW}, v[{a}:{a+3}] offset:{slot*1024}"))
            while pend and pend[0][0] <= i - 2:
                k(pend.pop(0)[1])
        for x in L + fillv:
            emit(x)
        for _, x in pend:
            k(x)

    def g2_reduce(dst, mid=None):
        if mid:
            mid()
        k.wait(lg=0)
        k.barrier()
        n = 0
        for x in range(1, 4):
            for sl_ in (2 * (x - 1), 2 * (x - 1) + 1, 6 + (x & 1)):
                k(f"ds_read_b128 v[{ACC+4*n}:{ACC+4*n+3}], v{TMP+12+x} offset:{sl_*1024}")
                n += 1
        for i in range(0, 12, 2):
            k(f"v_pk_add_f32 v[{dst+i}:{dst+i+1}], v[{dst+i}:{dst+i+1}], v[{RESF+i}:{RESF+i+1}]")
        for x in range(3):
            for i in range(0, 12, 2):
                r = ACC + 12 * x + i
                k(f"v_pk_add_f32 v[{dst+i}:{dst+i+1}], v[{dst+i}:{dst+i+1}], v[{r}:{r+1}]")

    def part_stats(src, b, region, pre_wait=None):
        part_calc(src, TMP + 16)
        part_pub(TMP + 16, b, region, pre_wait)

    def part_calc(src, a):
        q_ = a + 1
        t = TMP + 18
        u = TMP + 4
        k(f"v_pk_add_f32 v[{t}:{t+1}], v[{src+8}:{src+9}], v[{src+10}:{src+11}]")
        k(f"v_pk_mul_f32 v[{t+2}:{t+3}], v[{src+8}:{src+9}], v[{src+8}:{src+9}]")
        k(f"v_pk_fma_f32 v[{t+2}:{t+3}], v[{src+10}:{src+11}], v[{src+10}:{src+11}], v[{t+2}:{t+3}]")
        k(f"v_pk_add_f32 v[{u}:{u+1}], v[{src}:{src+1}], v[{src+2}:{src+3}]")
        k(f"v_pk_mul_f32 v[{t}:{t+1}], v[{t}:{t+1}], s[26:27]")
        k(f"v_pk_mul_f32 v[{t+2}:{t+3}], v[{t+2}:{t+3}], s[26:27]")
        k(f"v_pk_add_f32 v[{u+2}:{u+3}], v[{src+4}:{src+5}], v[{src+6}:{src+7}]")
        for i in range(0, 8, 2):
            k(f"v_pk_fma_f32 v[{t+2}:{t+3}], v[{src+i}:{src+i+1}], v[{src+i}:{src+i+1}], v[{t+2}:{t+3}]")
        k(f"v_pk_add_f32 v[{u}:{u+1}], v[{u}:{u+1}], v[{u+2}:{u+3}]")
        k(f"v_pk_add_f32 v[{t}:{t+1}], v[{t}:{t+1}], v[{u}:{u+1}]")
        k(f"v_add_f32 v{q_}, v{t+2}, v{t+3}")
        k(f"v_add_f32 v{a}, v{t}, v{t+1}")
        k(f"v_permlane16_swap_b32 v{a}, v{q_}")
        k(f"v_add_f32 v{a}, v{a}, v{q_}")
        k(f"v_mov_b32 v{q_}, v{a}")
        k(f"v_permlane32_swap_b32 v{a}, v{q_}")
        k(f"v_add_f32 v{a}, v{a}, v{q_}")
        k(f"v_mov_b32 v{q_}, v{a}")
        k(f"v_permlane16_swap_b32 v{a}, v{q_}")
        k(f"v_or_b32 v{q_}, 0x80000000, v{q_}")

    def part_pub(a, b, region, pre_wait=None):
        k(f"s_add_u32 s12, s23, {region + b*8*2048}") if False else None
        k(f"s_add_u32 s12, s60, {region + b*8*2048}")
        if pre_wait:
            k.wait_tag(pre_wait)
        k(f"buffer_store_dwordx2 v[{a}:{a+1}], {VGW}, {srd(SSY)}, s12 offen sc1")
        stamp(f"pub{2 if region == SY_ST2 else 3}{b}")

    def st2_loads(b, dst):
        return ["s_lshl_b32 s13, s16, 11", f"s_add_u32 s13, s13, {SY_ST2 + b*8*2048}"] + [
            f"buffer_load_dwordx2 v[{dst+2*i}:{dst+2*i+1}], {VGR}, {srd(SSY)}, s13 offen offset:{i*128} sc1"
            for i in range(4)]

    def st3_loads(b, dst):
        return ["s_lshl_b32 s13, s15, 11", f"s_add_u32 s13, s13, {SY_ST3 + b*8*2048}"] + [
            f"buffer_load_dwordx2 v[{dst+8*tn+2*i}:{dst+8*tn+2*i+1}], {VGR}, {srd(SSY)}, s13 offen offset:{tn*2048+i*128} sc1"
            for tn in range(2) for i in range(4)]

    def st1_loads(b, dst):
        return ["s_lshl_b32 s13, s15, 9", f"s_add_u32 s13, s13, {SY_ST1 + b*8*512}"] + [
            f"buffer_load_dwordx2 v[{dst+2*tn}:{dst+2*tn+1}], {VQ128}, {srd(SSY)}, s13 offen offset:{tn*512} sc1"
            for tn in range(2)]

    def sum_granules(g, n, tmp):
        for i in range(1, n):
            k(f"v_pk_add_f32 v[{g}:{g+1}], v[{g}:{g+1}], v[{g+2*i}:{g+2*i+1}]")
        for v in (g, g + 1):
            xsum16(k, f"v{v}", tmp)
            xsum32(k, f"v{v}", tmp)

    def finalize(b, x2, G):
        poll(st2_loads(b, G), [f"v{G+1}", f"v{G+3}", f"v{G+5}", f"v{G+7}"], f"v{TMP+20}")
        stamp(f"p2{b}")
        sum_granules(G, 4, f"v{TMP+20}")
        sp = TMP + 22
        finish_stats(f"v{G}", f"v{G+1}", sp)
        k(f"v_mul_f32 v{sp}, v{sp}, v{sp+1}")
        for d in range(6):
            unpack(k, f"v{TMP}", f"v{TMP+1}", f"v{YR[b]+d}")
            k(f"v_pk_fma_f32 v[{TMP+2}:{TMP+3}], v[{x2+2*d}:{x2+2*d+1}], v[{sp}:{sp+1}], v[{sp}:{sp+1}] op_sel:[0,1,0] op_sel_hi:[1,1,0]")
            k(f"v_pk_fma_f32 v[{x2+2*d}:{x2+2*d+1}], v[{TMP+2}:{TMP+3}], v[{TMP}:{TMP+1}], v[{x2+2*d}:{x2+2*d+1}]")
            k(f"v_cvt_pk_bf16_f32 v{X1R[b]+d}, v{x2+2*d}, v{x2+2*d+1}")
        k(f"s_add_u32 s13, s59, {XSPAN + b*8*XRT}")
        k("s_lshl_b32 s12, s14, 10")
        k("s_add_u32 s12, s12, s13")
        k(f"buffer_store_dwordx4 v[{X1R[b]}:{X1R[b]+3}], {VL16}, {srd(SX)}, s12 offen sc1", tag="xst")
        k(f"buffer_store_dwordx2 v[{X1R[b]+4}:{X1R[b]+5}], {VT4S}, {srd(SX)}, s13 offen offset:2048 sc1", tag="xst")
        for d in range(6):
            unpack(k, f"v{x2+2*d}", f"v{x2+2*d+1}", f"v{X1R[b]+d}")

    def stats1(b, STx):
        poll(st1_loads(b, TMP + 24), [f"v{TMP+25}", f"v{TMP+27}"], f"v{TMP+20}")
        for tn in range(2):
            sum_granules(TMP + 24 + 2 * tn, 1, f"v{TMP+20}")
            finish_stats(f"v{TMP+24+2*tn}", f"v{TMP+25+2*tn}", STx[tn])

    def stats3(b, STx):
        poll(st3_loads(b, TMP), [f"v{TMP+1+2*i}" for i in range(8)], f"v{TMP+20}")
        for tn in range(2):
            sum_granules(TMP + 8 * tn, 4, f"v{TMP+20}")
            finish_stats(f"v{TMP+8*tn}", f"v{TMP+8*tn+1}", STx[tn])

    def res_loads(b):
        L = [f"s_add_u32 s13, s62, {b*4*XBLK}", "s_lshl_b32 s12, s14, 11", "s_add_u32 s12, s12, s13",
             "s_add_u32 s13, s13, 4096"]
        for R, sr in ((X1R[b], SX), (YR[b], SY_)):
            L += [f"buffer_load_dwordx2 v[{R}:{R+1}], {VXP}, {srd(sr)}, s12 offen sc1",
                  f"buffer_load_dwordx2 v[{R+2}:{R+3}], {VXP}, {srd(sr)}, s12 offen offset:256 sc1",
                  f"buffer_load_dwordx2 v[{R+4}:{R+5}], {VL16}, {srd(sr)}, s13 offen sc1"]
        return L

    def out_store(b, src):
        for d in range(6):
            k(f"v_cvt_pk_bf16_f32 v{TMP+d}, v{src+2*d}, v{src+2*d+1}")
        k(f"v_mul_u32_u24 v{TMP+8}, 1280, {VROW}")
        k("s_mul_i32 s12, s8, 160")
        k(f"s_add_u32 s12, s12, {b*128*1280}")
        k("s_lshl_b32 s13, s14, 6")
        k("s_add_u32 s13, s13, s12")
        k(f"v_lshl_add_u32 v{TMP+9}, v3, 4, v{TMP+8}")
        k(f"v_lshl_add_u32 v{TMP+10}, v3, 3, v{TMP+8}")
        k("s_lshl_b32 s10, s14, 31")
        k(f"v_or_b32 v{TMP+10}, s10, v{TMP+10}")
        k(f"buffer_store_dwordx4 v[{TMP}:{TMP+3}], v{TMP+9}, {srd(SO)}, s13 offen")
        k(f"buffer_store_dwordx2 v[{TMP+4}:{TMP+5}], v{TMP+10}, {srd(SO)}, s12 offen offset:128")

    def g1b_sched(layer, extra):
        sched = {}
        hl = [h_loads(layer, 0, kk, 80 + 2 * kk) for kk in range(12)]
        for kk in range(20):
            L = []
            if kk + DIST < 20:
                L += x_loads(layer, 1, kk + DIST, 40 + 2 * (kk + DIST))
            L += extra.get(kk, [])
            if kk == 3:
                L += [lambda: h_flag(layer, 0)]
            if kk == 7:
                L += h_poll_loads(layer, 0)
            if kk == 12:
                L = [lambda: h_poll(layer, 0)] + h_pf(layer, 0) + L
            if kk >= 14:
                while hl and (12 - len(hl)) + 8 < kk and len([x for x in L if isvm(x)]) < 6:
                    L += hl.pop(0)
            sched[kk] = L
        return sched, hl


    k.prof_begin()
    k(f"s_cmp_ge_u32 s2, {k.grid}")
    k.branch("s_cbranch_scc1 main_end", flush=False)
    k("s_load_dwordx2 s[24:25], s[0:1], 96")
    k("s_load_dwordx2 s[26:27], s[0:1], 0")
    if DIAG:
        k("s_mov_b32 s101, 0")
    k("s_getpc_b64 s[60:61]")
    k.raw("mega_pc:")
    k(f"s_sub_u32 s60, s60, mega_pc-{KNAME}")
    k("s_subb_u32 s61, s61, 0")
    k(f"s_mov_b32 s62, main_code_end-{KNAME}")
    k("s_mov_b32 s63, 0x00020000")
    k("s_lshr_b32 s10, s2, 3")
    k("s_lshl_b32 s10, s10, 11")
    k("v_lshrrev_b32 v2, 4, v0")
    k("v_lshlrev_b32 v1, 7, v0")
    k("v_lshl_or_b32 v1, v2, 24, v1")
    k("buffer_load_dword v255, v1, s[60:63], s10 offen")
    in_srd(k, SDBG, 88, 256)
    k("v_lshrrev_b32 v1, 6, v0")
    k("v_readfirstlane_b32 s3, v1")
    k("v_and_b32 v1, 63, v0")
    k("v_and_b32 v2, 15, v0")
    k("v_bfe_u32 v3, v0, 4, 2")
    k(f"v_lshlrev_b32 {VL16}, 4, v1")
    def ffn_ids():
        if MAP == 1:
            k("s_and_b32 s4, s2, 7")
            k("s_lshr_b32 s5, s2, 3")
            k("s_lshr_b32 s7, s5, 3")
            k("s_and_b32 s8, s5, 7")
        elif MAP == 4:
            k("s_and_b32 s4, s2, 4")
            k("s_lshr_b32 s10, s2, 6")
            k("s_add_u32 s4, s4, s10")
            k("s_bfe_u32 s5, s2, 0x30003")
            k("s_and_b32 s10, s2, 3")
            k("s_lshl_b32 s10, s10, 3")
            k("s_add_u32 s5, s5, s10")
            k("s_and_b32 s7, s5, 3")
            k("s_lshr_b32 s8, s5, 2")
        else:
            k("s_and_b32 s4, s2, 6")
            k("s_lshr_b32 s10, s2, 7")
            k("s_add_u32 s4, s4, s10")
            k("s_bfe_u32 s5, s2, 0x40003")
            k("s_and_b32 s10, s2, 1")
            k("s_lshl_b32 s10, s10, 4")
            k("s_add_u32 s5, s5, s10")
            k("s_and_b32 s7, s5, 3")
            k("s_lshr_b32 s8, s5, 2")
        k("s_and_b32 s9, s3, 1")
        k("s_lshr_b32 s14, s3, 1")
        k("s_lshl_b32 s6, s4, 4")
        k("s_lshl_b32 s10, s3, 1")
        k("s_add_u32 s15, s6, s10")
        k("s_lshl_b32 s10, s7, 1")
        k("s_add_u32 s16, s6, s10")
        k("s_add_u32 s16, s16, s9")
        k(f"s_mul_i32 s17, s15, {XRT}")
        k("s_mul_i32 s18, s3, 3072")
        k(f"s_mul_i32 s19, s5, {WGU_M}")
        k("s_add_u32 s19, s19, s18")
        k("s_lshl_b32 s10, s8, 2")
        k("s_add_u32 s10, s10, s3")
        k("s_mul_i32 s10, s10, 61440")
        k("s_lshl_b32 s11, s14, 11")
        k("s_add_u32 s20, s10, s11")
        k("s_xor_b32 s11, s11, 2048")
        k("s_add_u32 s21, s10, s11")
        k("s_add_u32 s22, s10, 4096")
        k.srd(SWS, 24, WSB)
        k.srd(SW, 24, WGUB, WS_WGU)
        k.srd(SWD, 24, WDB, WS_WD)
        k.srd(SSY, 24, SYNCB, WS_SYNC)


    def wpoll_setup(va):
        k(f"v_lshrrev_b32 {va}, 1, v1")
        k(f"v_lshlrev_b32 {va}, 4, {va}")
        k("v_and_b32 v9, 1, v1")
        k("s_lshr_b32 s10, s5, 2")
        k("s_lshl_b32 s10, s10, 1")
        k(f"v_add3_u32 {va}, {va}, v9, s10")
        k("s_lshl_b32 s10, s3, 3")
        k("s_add_u32 s10, s10, 56")
        k("v_add_u32 v9, s10, v1")
        k("v_cmp_gt_u32 vcc, 8, v1")
        k(f"v_cndmask_b32 {va}, v9, {va}, vcc")
        k(f"v_lshlrev_b32 {va}, 7, {va}")
        k(f"v_add_u32 {va}, {SY_PF}, {va}")
        return [ML(f"buffer_load_dwordx2 v[12:13], {va}, {srd(SSY)}, 0 offen sc1", 16)]

    k(f"s_cmp_lt_u32 s2, {NPREP}")
    k.branch("s_cbranch_scc1 main_prep", flush=False)
    saved0 = (list(k.vm), list(k.lg))
    in_srd(k, SA, 8, S * D * 2)
    in_srd(k, SB, 16, S * D * 2)
    in_srd(k, SW, 24, D * 8)
    in_srd(k, SWD, 32, 4096)
    in_srd(k, SSY, 40, D * 2)
    k(f"s_sub_u32 s56, s2, {NPREP}")
    k("s_lshr_b32 s57, s56, 4")
    k("s_and_b32 s58, s56, 15")
    k("s_lshl_b32 s59, s56, 2")
    k("s_add_u32 s60, s59, s3")
    k(f"s_mul_i32 s61, s3, {WREG}")
    k(f"s_add_u32 s61, s61, {CB}")
    k("v_lshrrev_b32 v4, 3, v1")
    k("v_and_b32 v5, 7, v1")
    k("s_lshl_b32 s10, s58, 7")
    k("s_lshl_b32 s11, s3, 5")
    k("s_add_u32 s10, s10, s11")
    k("v_lshlrev_b32 v6, 2, v4")
    k("v_add_u32 v6, s10, v6")
    k("v_mul_u32_u24 v7, 1280, v6")
    k("v_lshl_add_u32 v7, v5, 4, v7")
    k("s_lshl_b32 s12, s57, 7")
    k("v_add_u32 v7, s12, v7")
    stamp("first")
    KR, VR, WR = 16, 44, 60
    for j in (3, 4, 5, 6, 2, 1, 0):
        off = (j - 3) * 1280
        if off < 0:
            k(f"v_add_u32 v8, {off & 0xffffffff:#x}, v7")
            k(f"buffer_load_dwordx4 v[{KR+4*j}:{KR+4*j+3}], v8, {srd(SA)}, 0 offen")
        else:
            k(f"buffer_load_dwordx4 v[{KR+4*j}:{KR+4*j+3}], v7, {srd(SA)}, 0 offen offset:{off}")
    for i in range(4):
        k(f"buffer_load_dwordx4 v[{VR+4*i}:{VR+4*i+3}], v7, {srd(SB)}, 0 offen offset:{i*1280}{NT}")
    k("v_lshlrev_b32 v9, 6, v5")
    k("s_lshl_b32 s12, s57, 9")
    for i in range(4):
        k(f"buffer_load_dwordx4 v[{WR+4*i}:{WR+4*i+3}], v9, {srd(SW)}, s12 offen offset:{16*i}")
    k("s_lshl_b32 s12, s60, 12")
    k(f"s_add_u32 s{SWD}, s{SWD}, s12")
    k(f"s_addc_u32 s{SWD+1}, s{SWD+1}, 0")
    HB = 160

    def h_loads_():
        for p in range(4):
            k(f"buffer_load_dwordx4 v[{HB+8*p+4}:{HB+8*p+7}], {VL16}, {srd(SWD)}, 0 offen offset:{p*1024}")
            k(f"v_add_u32 v9, {(p*1024-8) & 0xffffffff:#x}, {VL16}")
            k(f"buffer_load_dwordx2 v[{HB+8*p+2}:{HB+8*p+3}], v9, {srd(SWD)}, 0 offen")

    if HPOS == 1:
        h_loads_()
    stamp("issued")
    k("s_lshl_b32 s10, s3, 6")
    k("s_sub_u32 s10, 248, s10")
    k("v_lshlrev_b32 v8, 3, v4")
    k("v_sub_u32 v8, s10, v8")
    k("v_lshlrev_b32 v9, 4, v5")
    k("v_xor_b32 v8, v8, v9")
    k("v_lshl_add_u32 v8, v5, 11, v8")
    WF = 80
    for c in range(8):
        unpack(k, f"v{WF+4*c}", f"v{WF+4*c+1}", f"v{WR+2*c}")
        unpack(k, f"v{WF+4*c+2}", f"v{WF+4*c+3}", f"v{WR+2*c+1}")
    k.need([f"v{KR}"])
    stamp("Tld")
    if HPOS == 3:
        h_loads_()
    zl0 = [ML(f"buffer_load_dwordx2 v[12:13], v1, {srd(SDBG)}, 0 offen sc1", 1)]
    emit(zl0[0])
    k.srd(SA, 24, WSB)
    KF, VF, OUT = 112, 128, 136
    for cp in range(4):
        for j in range(7):
            unpack(k, f"v{KF+2*j}", f"v{KF+2*j+1}", f"v{KR+4*j+cp}")
        for i in range(4):
            unpack(k, f"v{VF+2*i}", f"v{VF+2*i+1}", f"v{VR+4*i+cp}")
        for h in range(2):
            c = 2 * cp + h
            O = OUT + 4 * h
            for i in range(4):
                k(f"v_mul_f32 v{O+i}, v{KF+2*(i+0)+h}, v{WF+4*c+3}")
            for t in (2, 1, 0):
                for i in range(4):
                    k(f"v_fmac_f32 v{O+i}, v{KF+2*(i+3-t)+h}, v{WF+4*c+t}")
            for i in range(4):
                k(f"v_mul_f32 v{O+i}, v{O+i}, v{VF+2*i+h}")
            p = 144 + 2 * h
            k(f"v_cvt_pk_bf16_f32 v{p}, v{O+3}, v{O+2}")
            k(f"v_cvt_pk_bf16_f32 v{p+1}, v{O+1}, v{O+0}")
            k(f"ds_write_b64 v8, v[{p}:{p+1}] offset:{c*256}")
    k("s_lshl_b32 s10, s3, 12")
    k("v_lshlrev_b32 v8, 8, v3")
    k("v_add_u32 v8, s10, v8")
    k("s_lshl_b32 s11, s3, 1")
    for jj in range(2):
        k(f"s_add_u32 s12, s11, {jj}")
        k(f"v_xor_b32 v{14+jj}, s12, v2")
        k(f"v_lshl_add_u32 v{14+jj}, v{14+jj}, 4, v8")
    k("v_lshlrev_b32 v9, 12, v3")
    k("v_lshl_add_u32 v9, v2, 4, v9")
    k("s_lshl_b32 s10, s57, 6")
    k("s_lshl_b32 s11, s3, 4")
    k("s_add_u32 s10, s10, s11")
    k("s_lshl_b32 s10, s10, 12")
    k("s_lshl_b32 s11, s58, 8")
    k("s_sub_u32 s11, 3840, s11")
    k("s_add_u32 s10, s10, s11")
    k.wait(lg=0)
    k.barrier()
    stamp("kv")
    for j in range(4):
        k(f"ds_read_b128 v[{16+4*j}:{19+4*j}], v{14+(j>>1)} offset:{j*1024}")
    for j in range(4):
        k(f"buffer_store_dwordx4 v[{16+4*j}:{19+4*j}], v9, {srd(SA)}, s10 offen sc1", tag="kvst")
        k("s_add_u32 s10, s10, 16384")
    if HPOS == 2:
        h_loads_()
    k("s_lshl_b32 s12, s60, 1")
    k("v_mov_b32 v9, s12")
    k(f"buffer_load_ushort v11, v9, {srd(SSY)}, 0 offen")
    ffn_ids()
    k("v_mov_b32 v32, 0")
    k("v_mov_b32 v33, 0")
    k("v_lshlrev_b32 v8, 3, v1")
    k("v_add_u32 v8, s61, v8")
    k(f"ds_write_b64 v8, v[32:33] offset:{UOFF+4096}")
    k("v_bfe_u32 v8, v1, 2, 2")
    k(f"v_mul_u32_u24 v8, {CP}, v8")
    k("v_and_b32 v9, 3, v1")
    k("v_lshl_add_u32 v8, v9, 3, v8")
    k("v_add_u32 v8, s61, v8")
    k("ds_write_b64 v8, v[32:33]")
    k(f"v_add_u32 v8, s61, {VL16}")

    def copies(p):
        T = 48 + 12 * (p & 1)
        b = HB + 8 * p
        seq = [f"v{b+2+i}" for i in range(6)]
        off = 32 + p * 1024
        k(f"ds_write_b128 v8, v[{b+4}:{b+7}] offset:{off}")
        for j in range(4):
            k(f"v_alignbyte_b32 v{T+j}, {seq[2+j]}, {seq[1+j]}, 2")
        k(f"ds_write_b128 v8, v[{T}:{T+3}] offset:{off+CP}")
        for j in range(4):
            k(f"v_mov_b32 v{T+4+j}, {seq[1+j]}")
        k(f"ds_write_b128 v8, v[{T+4}:{T+7}] offset:{off+2*CP}")
        for j in range(4):
            k(f"v_alignbyte_b32 v{T+8+j}, {seq[1+j]}, {seq[j]}, 2")
        k(f"ds_write_b128 v8, v[{T+8}:{T+11}] offset:{off+3*CP}")

    poll(zl0, ["v12"], None, sleep=8, nl=1)
    k("v_readfirstlane_b32 s100, v12")
    k("v_readfirstlane_b32 s101, v13")
    k("s_lshl_b32 s10, s56, 2")
    k("s_add_u32 s10, s10, s3")
    k("s_lshl_b32 s10, s10, 7")
    k(f"s_add_u32 s10, s10, {WS_SYNC + SY_GF}")
    k("v_mov_b32 v14, s100"); k("v_mov_b32 v15, s101")
    k.wait_tag("kvst")
    ML(f"buffer_store_dwordx2 v[14:15], v1, {srd(SWS)}, s10 offen sc1", 1)()
    stamp("gf")
    for p in range(4):
        copies(p)
    k("v_sub_u32 v7, 3, v2")
    k("v_and_b32 v7, 3, v7")
    k("v_add3_u32 v8, v2, v7, 1")
    k("v_lshl_add_u32 v8, v3, 3, v8")
    k("v_lshlrev_b32 v8, 1, v8")
    k(f"v_mul_u32_u24 v7, {CP}, v7")
    k("v_add3_u32 v4, v7, v8, s61")
    k("v_lshlrev_b32 v7, 5, v2")
    k("v_lshlrev_b32 v8, 4, v3")
    k("v_sub_u32 v8, v8, v7")
    k(f"v_add_u32 v8, {UOFF+480}, v8")
    k("v_add_u32 v5, s61, v8")
    k("v_lshlrev_b32 v11, 16, v11")
    k("v_lshlrev_b32 v6, 7, v1")
    k("s_lshl_b32 s12, s57, 13")
    k(f"s_add_u32 s12, s12, {WS_SYNC + SY_GF}")
    gl = [f"buffer_load_dwordx2 v[12:13], v6, {srd(SWS)}, s12 offen sc1"]
    k(gl[0])
    poll(gl, ["v12"], None, sleep=1, eq=SN)
    stamp("gp")
    k(f"s_add_u32 m0, s61, {UOFF}")
    k("s_lshl_b32 s12, s60, 12")
    for p in (3, 2, 1, 0):
        k(f"buffer_load_dwordx4 {VL16}, {srd(SWS)}, s12 offen offset:{p*1024} sc1 lds", tag="u")
    AB = [16, 48]
    CACC = 80
    BR = 112

    def rdA(n):
        I = n if n < 8 else n - 8
        L = []
        for r in range(8):
            i = 8 * I + r
            b = AB[n & 1] + 4 * r
            L.append(f"ds_read_b64 v[{b}:{b+1}], v4 offset:{64*i}")
            L.append(f"ds_read_b64 v[{b+2}:{b+3}], v4 offset:{64*i+8}")
        return L

    def bslot(C):
        return C if C < 4 else 7 - C

    def rdB(C):
        return [f"ds_read_b128 v[{BR+32*bslot(C)+4*r}:{BR+32*bslot(C)+4*r+3}], v5 offset:{64*(56-(8*C-r))}" for r in range(8)]

    k("v_lshlrev_b32 v6, 3, v3")
    k("v_add_u32 v6, v6, v2")
    k("v_sub_u32 v6, 15, v6")
    k("v_lshrrev_b32 v7, 16, v11")
    k("v_and_b32 v8, 1, v6")
    k("v_cmp_eq_u32 vcc, 1, v8")
    k("v_cndmask_b32 v7, v7, v11, vcc")
    k("v_ashrrev_i32 v6, 1, v6")
    for d in range(4):
        k(f"v_cmp_eq_u32 vcc, {d}, v6")
        k("v_cndmask_b32 v8, 0, v7, vcc")
        k(f"v_accvgpr_write_b32 a{240+d}, v8")
    STG = [2112, CP + 2112]
    SBQ = [240, BR + 8]
    QB = [248, BR]
    k("s_lshl_b32 s10, s3, 11")
    k("v_lshlrev_b32 v6, 3, v1")
    k("v_add_u32 v6, s10, v6")
    k(f"v_mul_u32_u24 v7, {XRT}, v3")
    k("v_lshl_add_u32 v7, v2, 4, v7")
    k(f"s_mul_i32 s57, s3, {16*XRT}")
    k("s_lshr_b32 s10, s56, 1")
    k("s_lshl_b32 s10, s10, 8")
    k("s_add_u32 s57, s57, s10")
    k("s_and_b32 s10, s56, 1")
    k("s_lshl_b32 s10, s10, 3")
    k("s_add_u32 s57, s57, s10")
    k(f"s_mul_i32 s58, s3, {8*XBLK}")
    k("s_lshl_b32 s10, s56, 8")
    k("s_add_u32 s58, s58, s10")
    k("s_mul_i32 s59, s3, 160")
    k("s_add_u32 s59, s59, s56")
    k("s_lshl_b32 s59, s59, 7")
    k(f"s_add_u32 s59, s59, {SY_CF}")
    pcl = wpoll_setup("v0")
    k("s_lshl_b32 s10, s3, 11")
    k(f"s_add_u32 s62, s10, {SY_QF}")
    k("v_lshlrev_b32 v8, 7, v2")
    k("v_lshl_add_u32 v8, v3, 13, v8")
    qfl = [ML(f"buffer_load_dwordx2 v[12:13], v8, {srd(SSY)}, s62 offen sc1", 32)]

    def q_ld(hf):
        L = [f"s_mov_b32 s13, {WS_QST + hf*8192}"]
        for it in range(4):
            L += [f"buffer_load_dwordx2 v[{SBQ[hf]+2*it}:{SBQ[hf]+2*it+1}], v6, {srd(SWS)}, s13 offen offset:{it*512} sc1",
                  f"s_add_u32 s12, s57, {WS_QX + (64*hf + 4*it)*XRT}",
                  f"buffer_load_dwordx2 v[{QB[hf]+2*it}:{QB[hf]+2*it+1}], v7, {srd(SWS)}, s12 offen sc1"]
        return L

    def addr2():
        return ["v_lshlrev_b32 v11, 5, v2", "v_lshl_add_u32 v11, v3, 3, v11", "v_add_u32 v11, s61, v11",
                "v_bfe_u32 v8, v1, 2, 2", f"v_mul_u32_u24 v8, {WREG}, v8", "v_and_b32 v9, 3, v1",
                "v_lshl_add_u32 v8, v9, 3, v8", "v_lshl_add_u32 v8, v3, 5, v8", "s_lshl_b32 s10, s3, 9",
                f"s_add_u32 s10, s10, {CB}", "v_add_u32 v8, s10, v8",
                "v_and_b32 v0, 1, v3", "v_lshrrev_b32 v9, 1, v3", "v_lshl_add_u32 v9, v0, 1, v9",
                f"v_mul_u32_u24 v9, {XBLK}, v9", "v_lshl_add_u32 v9, v2, 4, v9"]

    def stage_blk(c):
        a_ = CACC + 4 * c
        return [f"v_cvt_pk_bf16_f32 v{a_}, v{a_}, v{a_+1}", f"v_cvt_pk_bf16_f32 v{a_+1}, v{a_+2}, v{a_+3}",
                f"ds_write_b64 v11, v[{a_}:{a_+1}] offset:{STG[c>>2] + (c&3)*512}"]

    def sync():
        k.wait(lg=0)
        k.barrier()

    def out_half(hf, YB, XO, T):
        L = [f"ds_read_b64_tr_b16 v[{YB+2*it}:{YB+2*it+1}], v8 offset:{STG[hf] + it*128}" for it in range(4)]
        for it in range(4):
            y0, q0, st = YB + 2 * it, QB[hf] + 2 * it, SBQ[hf] + 2 * it
            for d in range(2):
                L += [f"v_lshlrev_b32 v{T+2}, 16, v{q0+d}", f"v_and_b32 v{T+3}, 0xffff0000, v{q0+d}",
                      f"v_lshlrev_b32 v{T}, 16, v{y0+d}", f"v_and_b32 v{T+1}, 0xffff0000, v{y0+d}",
                      f"v_fma_f32 v{T+4}, v{T+2}, v{st+1}, -v{st}", f"v_fma_f32 v{T+5}, v{T+3}, v{st+1}, -v{st}",
                      f"v_fmac_f32 v{T+2}, v{T+4}, v{T}", f"v_fmac_f32 v{T+3}, v{T+5}, v{T+1}",
                      f"v_cvt_pk_bf16_f32 v{XO+2*it+d}, v{T+2}, v{T+3}"]
            if it & 1:
                for o, base in ((YB + 2 * (it - 1), WS_Y), (XO + 2 * (it - 1), WS_X1)):
                    L += [f"v_permlane16_swap_b32 v{o}, v{o+2}", f"v_permlane16_swap_b32 v{o+1}, v{o+3}",
                          f"s_add_u32 s12, s58, {base + (32*hf + (it-1)*2)*XBLK}",
                          (f"buffer_store_dwordx4 v[{o}:{o+3}], v9, {srd(SWS)}, s12 offen sc1", f"cst{hf}")]
        return L

    wl = []
    for p in range(6):
        wl += wgu_dma(p)
    for i in range(NE1):
        wl += wd_load(i)
    k.wait(lg=0)
    a0, b0 = rdA(0), rdB(0)
    for x in a0:
        k(x)
    k.wait_tag("u")
    stamp("ready")
    for x in b0:
        k(x)
    started = set()
    early = []
    side = []
    tot = 0
    for n in range(12):
        I = n if n < 8 else n - 8
        Cs = [C for C in (range(4) if n < 8 else range(4, 8)) if C + I <= 7]
        pend = rdA(n + 1) if n < 11 else []
        bpend = {5: rdB(4), 6: rdB(5), 7: rdB(6), 8: rdB(7)}.get(n) or []
        nm = 8 * len(Cs)
        cnt = 0
        if n == PPN - 1:
            emit(pcl[0])
        if n == PPN:
            poll(pcl, ["v12"], None, sleep=1, nl=16, eq=SN)
            stamp("pp")
        if n == QPN - 2:
            early = list(qfl)
        if n == 6:
            side += addr2()[:3]
        if n == QPN:
            poll(qfl, ["v12"], None, sleep=1, nl=32, eq=SN)
            early = q_ld(0)
            side += addr2()[3:]
        if n == 7:
            for c in range(4):
                side += stage_blk(c)
            side += [sync] + out_half(0, CACC + 2, CACC + 10, 12) if False else [sync]
        if n == 9:
            early = early + q_ld(1)
            side += out_half(0, CACC, CACC + 8, BR + 16) + stage_blk(4)
        if n == 10:
            side += stage_blk(5)
        if n == 11:
            side += stage_blk(6)
        for C in Cs:
            c = C + I
            nb = rdB(C + 1) if (n == 0 and C < 3) else []
            for r in range(8):
                if nb:
                    k(nb.pop(0))
                a = AB[n & 1] + 4 * r
                b = BR + 32 * bslot(C) + 4 * r
                acc = f"v[{CACC+4*c}:{CACC+4*c+3}]"
                src = acc if c in started else "0"
                started.add(c)
                k(f"v_mfma_f32_16x16x32_bf16 {acc}, v[{a}:{a+3}], v[{b}:{b+3}], {src}")
                if I == 0 and r == 0:
                    k(f"v_mfma_f32_16x16x32_bf16 {acc}, a[240:243], v[{b}:{b+3}], {acc}")
                cnt += 1
                tot += 1
                while pend and (16 - len(pend)) * max(nm - 4, 4) < cnt * 16:
                    k(pend.pop(0))
                if bpend and cnt % 2 == 0:
                    k(bpend.pop(0))
                if early:
                    if tot % 2 == 0:
                        emit_one_vmem(early)
                elif n >= PPN and tot % EVERY == 0 and tot <= LASTW:
                    emit_one_vmem(wl)
                for _ in range(2):
                    if side and not (early and isinstance(side[0], str) and side[0].startswith("s_add_u32 s12")):
                        x = side.pop(0)
                        emit(x)
                        if isinstance(x, str) and x.startswith("s_add_u32 s12"):
                            emit(side.pop(0))
        for x in pend + bpend:
            k(x)
    stamp("mfma")
    for x in early + stage_blk(7) + side:
        emit(x)
    sync()
    for x in out_half(1, 16, 24, 32):
        emit(x)
    stamp("cst")
    k.wait_tag("cst0")
    ML(f"buffer_store_dwordx2 v[14:15], v1, {srd(SSY)}, s59 offen sc1", 1)()
    k(f"s_add_u32 s59, s59, {4*160*128}")
    for _ in range(NB):
        emit_one_vmem(wl)
    k.wait_tag("cst1")
    ML(f"buffer_store_dwordx2 v[14:15], v1, {srd(SSY)}, s59 offen sc1", 1)()
    stamp("cf")
    print("weight loads after cf:", sum(1 for x in wl if isvm(x)))
    for x in wl:
        emit(x)
    k.wait(lg=0)
    k.flush_hazards()
    k.branch("s_branch main_join", flush=False)

    k.label("main_prep", flush=False)
    k.vm, k.lg = list(saved0[0]), list(saved0[1])
    k("s_or_b32 s10, s2, s3")
    k("s_cmp_lg_u32 s10, 0")
    k.branch("s_cbranch_scc1 main_nonce_done", flush=False)
    k("s_memrealtime s[56:57]")
    k("s_or_b32 s56, s56, 1")
    k("v_mov_b32 v12, s56")
    k("v_mov_b32 v13, s57")
    ML(f"buffer_store_dwordx2 v[12:13], v1, {srd(SDBG)}, 0 offen sc1", 1)()
    k.label("main_nonce_done", flush=False)
    k.vm, k.lg = list(saved0[0]), list(saved0[1])
    k("s_and_b32 s10, s2, 1")
    k("s_lshl_b32 s10, s10, 3")
    k("s_add_u32 s10, s10, 56")
    k("s_cmp_lt_u32 s2, 64")
    k("s_cselect_b32 s10, s10, 72")
    k(f"s_load_dwordx2 s[{SA}:{SA+1}], s[0:1], s10")
    k(f"s_mov_b32 s{SA+2}, {D*F*2}")
    k(f"s_mov_b32 s{SA+3}, 0x00020000")
    k(f"v_mov_b32 v14, {OOB:#x}")
    k("s_mov_b32 s58, 0x05040100")
    k("s_mov_b32 s59, 0x07060302")
    k("v_mov_b32 v12, 0x3f803f80")
    ffn_ids()
    k("v_mov_b32 v244, 0")
    zl = [ML(f"buffer_load_dwordx2 v[246:247], v1, {srd(SDBG)}, 0 offen sc1", 1)]

    def q_job():
        if QPOS == 1:
            q_loads()
        emit(zl[0])
        for i in range(4):
            k(f"v_mov_b32 v{240+i}, 0")
        k.srd(SB, 24, SY_HF, WS_SYNC)
        k("s_lshl_b32 s12, s2, 13")
        k("v_lshlrev_b32 v204, 4, v0")
        for i in range(2):
            k(f"buffer_store_dwordx4 v[240:243], v204, {srd(SB)}, s12 offen sc1")
            k("s_add_u32 s12, s12, 4096")

    QR = 80

    def q_loads():
        k.srd(SB, 26, S * D * 2)
        k("s_mul_i32 s62, s3, 96")
        k("s_add_u32 s62, s62, s2")
        k("s_cmp_lt_u32 s62, 128")
        k("s_cselect_b32 s63, 0, 0x40000000")
        k(f"s_mul_i32 s56, s62, {XRT}")
        k("s_add_u32 s56, s56, s63")
        k("v_mul_u32_u24 v11, 1280, v2")
        k("v_lshl_add_u32 v11, v3, 4, v11")
        for i in range(20):
            k(f"buffer_load_dwordx4 v[{QR+4*i}:{QR+4*i+3}], v11, {srd(SB)}, s56 offen offset:{64*i}")

    def q_flag():
        poll(zl, ["v246"], None, sleep=1, nl=1)
        k("v_readfirstlane_b32 s100, v246")
        k("v_readfirstlane_b32 s101, v247")

    def item_idx(magic, n):
        for ps in range(2):
            o, ch = f"v{4+2*ps}", f"v{5+2*ps}"
            k(f"v_add_u32 v8, {256*ps}, v0")
            k(f"v_mul_u32_u24 {o}, {magic}, v8")
            k(f"v_lshrrev_b32 {o}, 16, {o}")
            k(f"v_mul_u32_u24 {ch}, {n}, {o}")
            k(f"v_sub_u32 {ch}, v8, {ch}")

    def item_loads(pitch):
        k(f"v_mul_u32_u24 v8, {8*pitch}, v4")
        k("v_lshl_add_u32 v8, v5, 4, v8")
        k(f"v_mul_u32_u24 v9, {8*pitch}, v6")
        k("v_lshl_add_u32 v9, v7, 4, v9")
        k("v_cmp_gt_u32 vcc, 224, v0")
        k("v_cndmask_b32 v9, v14, v9, vcc")
        stamp("issued")
        for ps in range(2):
            k("s_mov_b32 s11, s10")
            for i in range(8):
                k(f"buffer_load_dwordx4 v[{16+32*ps+4*i}:{19+32*ps+4*i}], v{8+ps}, {srd(SA)}, s11 offen{NT}")
                if i < 7:
                    k(f"s_add_u32 s11, s11, {pitch}")
        stamp("Tld")
        q_job()

    def stage(magic, sh, n, blk, opart, pairb, npair, second):
        for ps in range(2):
            o, ch = f"v{4+2*ps}", f"v{5+2*ps}"
            k(f"v_mul_u32_u24 v161, {magic}, {ch}")
            k(f"v_lshrrev_b32 v161, {sh}, v161")
            k(f"v_mul_u32_u24 v162, {n}, v161")
            k(f"v_sub_u32 {ch}, {ch}, v162")
            opart(o)
            k(f"v_mul_u32_u24 v161, {blk}, v161")
            k("v_add_u32 v160, v160, v161")
            k(f"v_lshrrev_b32 v161, 2, {ch}")
            k(f"v_mul_u32_u24 v161, {pairb}, v161")
            k("v_add_u32 v160, v160, v161")
            k(f"v_and_b32 v161, 3, {ch}")
            k("v_lshlrev_b32 v162, 6, v161")
            k("v_lshlrev_b32 v163, 7, v161")
            k(f"v_cmp_gt_u32 vcc, {npair}, {ch}")
            k("v_cndmask_b32 v162, v163, v162, vcc")
            k(f"v_add_u32 {o}, v160, v162")
            k("v_mov_b32 v162, 64")
            k(f"v_mov_b32 v163, {second}")
            k("v_cndmask_b32 v162, v162, v163, vcc")
            k(f"v_add_u32 {ch}, {o}, v162")
        k("v_cmp_gt_u32 vcc, 224, v0")
        k("v_mov_b32 v160, 61440")
        k("v_cndmask_b32 v6, v160, v6, vcc")
        k("v_cndmask_b32 v7, v160, v7, vcc")
        for ps in range(2):
            src = 16 + 32 * ps
            for e in range(8):
                o = 160 + 4 * e
                for p in range(4):
                    k(f"v_perm_b32 v{o+p}, v{src+4*(2*p+1)+e//2}, v{src+4*(2*p)+e//2}, s{58+(e&1)}")
                k(f"ds_write_b128 v{4+2*ps+(e>>2)}, v[{o}:{o+3}] offset:{(e&3)*16}")
        q_flag()
        if QPOS == 3:
            q_loads()
        k.wait(lg=0)
        k.barrier()
        stamp("mfma")


    k("s_cmp_ge_u32 s2, 64")
    k.branch("s_cbranch_scc1 main_prep_wd", flush=False)
    sv = (list(k.vm), list(k.lg))
    item_idx(2731, 24)
    k("s_bfe_u32 s60, s2, 0x30001")
    k("s_lshr_b32 s61, s2, 4")
    k(f"s_mul_i32 s10, s61, {160*3072}")
    k("s_mul_i32 s11, s60, 384")
    k("s_add_u32 s10, s10, s11")
    item_loads(3072)

    def op_wgu(o):
        k(f"v_lshrrev_b32 v160, 2, {o}")
        k("v_mul_u32_u24 v160, 3072, v160")
        k(f"v_and_b32 v162, 3, {o}")
        k("v_lshl_add_u32 v160, v162, 8, v160")
    stage(43, 8, 6, 15360, op_wgu, 2048, 4, 1024)
    k("s_mul_i32 s13, s3, 15360")
    k(f"v_add_u32 v4, s13, {VL16}")
    k("s_lshl_b32 s12, s60, 2")
    k("s_add_u32 s12, s12, s3")
    k(f"s_mul_i32 s10, s12, {WGU_M}")
    k("s_mul_i32 s11, s61, 30720")
    k("s_add_u32 s10, s10, s11")
    k("s_and_b32 s13, s2, 1")
    k("s_mul_i32 s11, s13, 3072")
    k("s_add_u32 s10, s10, s11")
    k(f"s_add_u32 s10, s10, {WS_WGU}")
    for j in range(15):
        k(f"ds_read_b128 v[{16+4*j}:{19+4*j}], v4 offset:{j*1024}")
    for t in range(3):
        k(f"v_mov_b32 v{5+t}, 0")
    for j in range(15):
        k(f"buffer_store_dwordx4 v[{16+4*j}:{19+4*j}], {VL16}, {srd(SWS)}, s10 offen offset:{(j%3)*1024} sc1")
        if j % 3 == 2:
            k("s_add_u32 s10, s10, 6144")
        for p in range(4):
            k(f"v_dot2c_f32_bf16 v{5+j%3}, v{16+4*j+p}, v12")
    for t in range(3):
        xsum16(k, f"v{5+t}", "v8")
        xsum32(k, f"v{5+t}", "v8")
    k("v_cmp_eq_u32 vcc, 1, v3")
    k("v_cndmask_b32 v5, v5, v6, vcc")
    k("v_cmp_eq_u32 vcc, 2, v3")
    k("v_cndmask_b32 v5, v5, v7, vcc")
    k("v_lshlrev_b32 v6, 2, v1")
    k("v_cmp_gt_u32 vcc, 48, v1")
    k("v_cndmask_b32 v6, v14, v6, vcc")
    k("s_lshl_b32 s10, s12, 11")
    k("s_lshl_b32 s11, s61, 9")
    k("s_add_u32 s10, s10, s11")
    k("s_mul_i32 s11, s13, 192")
    k("s_add_u32 s10, s10, s11")
    k(f"s_add_u32 s10, s10, {WS_CS}")
    k(f"buffer_store_dword v5, v6, {srd(SWS)}, s10 offen sc1")

    if QPOS == 2:
        q_loads()
        k.wait(vm=20)
    else:
        k.wait(vm=0)
    k.flush_hazards()
    k.branch("s_branch main_prep_pub", flush=False)
    k.label("main_prep_wd", flush=False)
    k.vm, k.lg = sv
    item_idx(820, 80)
    k("s_sub_u32 s60, s2, 64")
    k(f"s_mul_i32 s10, s60, {48*1280}")
    item_loads(1280)

    def op_wd(o):
        k(f"v_lshlrev_b32 v160, 8, {o}")
    stage(205, 11, 10, 7680, op_wd, 3072, 8, 1536)
    k("s_mul_i32 s13, s3, 15360")
    k(f"v_add_u32 v4, s13, {VL16}")
    k("v_lshrrev_b32 v6, 1, v3")
    k("v_and_b32 v7, 1, v3")
    k("v_mul_u32_u24 v5, 7680, v6")
    k("v_lshl_add_u32 v5, v7, 8, v5")
    k("v_lshl_add_u32 v5, v2, 4, v5")
    k("v_add_u32 v5, s13, v5")
    k("s_mul_i32 s11, s60, 6")
    k("v_add_u32 v8, s11, v3")
    k("v_add3_u32 v9, v7, s11, 4")
    for v in ("v8", "v9"):
        k(f"v_lshrrev_b32 v13, 2, {v}")
        k("v_mul_u32_u24 v13, 5120, v13")
        k(f"v_and_b32 {v}, 3, {v}")
        k(f"v_lshl_add_u32 {v}, {v}, 8, v13")
        k(f"v_lshl_add_u32 {v}, v2, 4, {v}")
    k(f"v_mul_u32_u24 v13, {48*5120}, v6")
    k("v_add_u32 v9, v9, v13")
    k(f"s_mul_i32 s10, s3, {2*48*5120}")
    k(f"s_add_u32 s10, s10, {WS_WD}")
    plan = []
    for t in range(5):
        plan += [("v4", t * 1536, "v8", t * 1024), ("v4", 7680 + t * 1536, "v8", 48 * 5120 + t * 1024), ("v5", 1024 + t * 1536, "v9", t * 1024)]
    for j, (la, lo, ga, go) in enumerate(plan):
        k(f"ds_read_b128 v[{16+4*j}:{19+4*j}], {la} offset:{lo}")
    for j, (la, lo, ga, go) in enumerate(plan):
        k(f"s_add_u32 s11, s10, {go}")
        k(f"buffer_store_dwordx4 v[{16+4*j}:{19+4*j}], {ga}, {srd(SWS)}, s11 offen sc1")

    if QPOS == 2:
        q_loads()
        k.wait(vm=20)
    else:
        k.wait(vm=0)
    k.flush_hazards()
    k.label("main_prep_pub", flush=False)
    k.barrier()
    k("s_lshl_b32 s10, s2, 7")
    k(f"s_add_u32 s10, s10, {SY_PF}")
    k("s_cmp_eq_u32 s3, 0")
    k("s_cselect_b32 s10, s10, 0x40000000")
    k("v_mov_b32 v204, 0")
    ML(f"buffer_store_dwordx2 v[246:247], v1, {srd(SSY)}, s10 offen sc1", 1)()
    stamp("cf")
    k(f"s_add_u32 s12, s56, {WS_QX}")
    k("v_mov_b32 v200, 0")
    k("v_mov_b32 v201, 0")
    for i in range(20):
        if i % 4 == 0 and i:
            k("s_add_u32 s12, s12, 4096")
        k(f"buffer_store_dwordx4 v[{QR+4*i}:{QR+4*i+3}], {VL16}, {srd(SWS)}, s12 offen offset:{(i%4)*1024} sc1")
        for d in range(4):
            k(f"v_dot2c_f32_bf16 v200, v{QR+4*i+d}, v12")
            k(f"v_dot2c_f32_bf16 v201, v{QR+4*i+d}, v{QR+4*i+d}")
    for v in ("v200", "v201"):
        xsum16(k, v, "v205")
        xsum32(k, v, "v205")
    k(f"v_mul_f32 v200, {f2u(1.0/D)}, v200")
    k(f"v_mul_f32 v201, {f2u(1.0/D)}, v201")
    k("v_fma_f32 v201, -v200, v200, v201")
    k("v_max_f32 v201, 0, v201")
    k(f"v_add_f32 v201, {f2u(EPS)}, v201")
    k("v_rsq_f32 v203, v201")
    k("v_mul_f32 v202, v200, v203")
    k("s_lshl_b32 s57, s62, 7")
    k("s_add_u32 s57, s57, s63")
    k(f"s_add_u32 s12, s57, {WS_QST}")
    k("v_lshlrev_b32 v205, 3, v1")
    ML(f"buffer_store_dwordx2 v[202:203], v205, {srd(SWS)}, s12 offen sc1", 16)()
    k(f"s_add_u32 s12, s57, {SY_QF}")
    k.wait(vm=0)
    ML(f"buffer_store_dwordx2 v[246:247], v1, {srd(SSY)}, s12 offen sc1", 1)()
    stamp("cst")
    pl = wpoll_setup("v8")
    emit(pl[0])
    poll(pl, ["v12"], None, sleep=1, nl=16, eq=SN)
    stamp("pp")
    for p in range(10):
        for x in wgu_dma(p):
            emit(x)
    for i in range(NEP):
        for x in wd_load(i):
            emit(x)
    k.wait(lg=0)
    k.flush_hazards()

    k.label("main_join", flush=False)
    k.vm = [(set(), "unk")] * 63
    k("s_load_dwordx2 s[26:27], s[0:1], 80")
    k(f"v_add_u32 {VL16B}, 61440, {VL16}")
    k.srd(SX, 24, XSPAN + XFB, WS_X1)
    k.srd(SH, 24, HSPAN + HFB, WS_H)
    k.srd(SY_, 24, XFB, WS_Y)
    k(f"s_mul_i32 s56, s15, {HRT}")
    k("s_mul_i32 s10, s5, 1536")
    k("s_add_u32 s56, s56, s10")
    k("s_mul_i32 s10, s3, 12288")
    k(f"s_mul_i32 s57, s16, {HRT}")
    k("s_add_u32 s57, s57, s10")
    k("s_xor_b32 s11, s16, 1")
    k(f"s_mul_i32 s58, s11, {HRT}")
    k("s_add_u32 s58, s58, s10")
    k(f"s_mul_i32 s59, s16, {XRT}")
    k("s_mul_i32 s10, s8, 2560")
    k("s_add_u32 s59, s59, s10")
    k("v_and_b32 v204, 1, v3")
    k("v_lshrrev_b32 v205, 1, v3")
    k(f"v_mul_u32_u24 {VH2}, {HRT}, v204")
    k("v_lshlrev_b32 v206, 4, v2")
    k("v_lshl_add_u32 v206, v205, 8, v206")
    k(f"v_add_u32 {VH2}, {VH2}, v206")
    k(f"v_lshl_add_u32 {VT4}, v204, 3, v206")
    k("s_lshl_b32 s10, s14, 31")
    k(f"v_or_b32 {VT4S}, s10, {VT4}")
    k("s_lshl_b32 s10, s16, 4")
    k(f"v_add_u32 {VROW}, s10, v2")
    k(f"v_lshlrev_b32 {VGR}, 3, v2")
    k("v_cmp_eq_u32 vcc, 0, v3")
    k(f"v_mov_b32 v204, {OOB:#x}")
    k(f"v_cndmask_b32 {VGW}, v204, {VGR}, vcc")
    k(f"v_lshl_add_u32 {VQ128}, v3, 7, {VGR}")
    k(f"v_lshl_add_u32 {VGR}, v3, 9, {VGR}")
    k("v_cmp_eq_u32 vcc, 0, v1")
    k(f"v_cndmask_b32 {VFLAG}, v204, v1, vcc")
    k("s_lshl_b32 s10, s4, 3")
    k("s_add_u32 s10, s10, s7")
    k("s_lshl_b32 s10, s10, 5")
    k("s_lshl_b32 s11, s3, 3")
    k("s_add_u32 s10, s10, s11")
    k(f"v_and_b32 {VFPOLL}, 7, v1")
    k(f"v_add_u32 {VFPOLL}, s10, {VFPOLL}")
    k(f"v_lshlrev_b32 {VFPOLL}, 7, {VFPOLL}")
    k(f"v_lshlrev_b32 {VXP}, 4, v2")
    k(f"v_lshl_add_u32 {VXP}, v3, 9, {VXP}")
    k("s_lshr_b32 s10, s16, 1")
    k(f"s_mul_i32 s62, s10, {XBLK}")
    k("s_mul_i32 s10, s8, 5120")
    k("s_add_u32 s62, s62, s10")
    k("s_lshl_b32 s10, s9, 3")
    k("s_add_u32 s62, s62, s10")
    k("s_lshr_b32 s10, s5, 2")
    k("s_lshl_b32 s11, s4, 3")
    k("s_add_u32 s63, s10, s11")
    k(f"s_mul_i32 s60, s63, {XBLK}")
    k("s_mul_i32 s10, s3, 10240")
    k("s_add_u32 s60, s60, s10")
    k("s_and_b32 s61, s5, 3")
    k("s_lshl_b32 s10, s61, 6")
    k("s_add_u32 s60, s60, s10")
    k("v_and_b32 v188, 3, v1")
    k("v_lshrrev_b32 v189, 2, v1")
    k("v_lshlrev_b32 v189, 8, v189")
    k("v_lshl_add_u32 v189, v188, 4, v189")
    k("v_cmp_gt_u32 vcc, 32, v1")
    k("v_cndmask_b32 v190, v204, v189, vcc")
    k("s_lshl_b32 s10, s5, 11")
    k(f"s_add_u32 s10, s10, {WS_CS}")
    k("v_lshlrev_b32 v197, 3, v1")
    for i in range(4):
        k(f"buffer_load_dwordx2 v[{208+2*i}:{209+2*i}], v197, {srd(SWS)}, s10 offen offset:{i*512} sc1")
    k.srd(SO, 26, XFB)
    k("s_mul_i32 s10, s4, 160")
    k("s_mul_i32 s11, s3, 40")
    k("s_add_u32 s10, s10, s11")
    k("s_lshl_b32 s10, s10, 7")
    k(f"s_add_u32 s10, s10, {SY_CF}")
    k("s_mul_i32 s11, s3, 3072")
    k(f"s_add_u32 s11, s11, {SY_PF - 40*128}")
    k("v_mov_b32 v205, s10")
    k("v_mov_b32 v206, s11")
    k("v_cmp_gt_u32 vcc, 40, v1")
    k("v_cndmask_b32 v205, v206, v205, vcc")
    k("v_lshl_add_u32 v205, v1, 7, v205")
    k(f"v_add_u32 v197, {LC}, v197")
    k("v_pk_add_f32 v[208:209], v[208:209], v[210:211]")
    k("v_pk_add_f32 v[212:213], v[212:213], v[214:215]")
    k("v_pk_add_f32 v[208:209], v[208:209], v[212:213]")
    k(f"s_cmp_ge_u32 s2, {NPREP}")
    k.branch("s_cbranch_scc1 main_nogate", flush=False)
    svg = (list(k.vm), list(k.lg))
    c1 = [ML(f"buffer_load_dwordx2 v[206:207], v205, {srd(SSY)}, 0 offen sc1", 1)]
    emit(c1[0])
    poll(c1, ["v206"], None, sleep=6, nl=1, eq=SN)
    k.label("main_nogate", flush=False)
    k.vm, k.lg = svg
    cl = [f"buffer_load_dwordx2 v[206:207], v205, {srd(SSY)}, 0 offen sc1"]
    emit(cl[0])
    poll(cl, ["v206"], None, sleep=1, eq=SN)
    k.vm = []
    k.barrier()
    stamp("join")
    k("ds_write_b64 v197, v[208:209]")
    for kk in range(4):
        for x in x_loads(0, 0, kk, 2 * kk):
            emit(x)
    SR = 192
    for i in range(3):
        k(f"s_add_u32 s12, s60, {i*4096}")
        k(f"buffer_load_dwordx4 v[{SR+4*i}:{SR+4*i+3}], v{189 if i < 2 else 190}, {srd(SX)}, s12 offen sc1")
    for kk in range(4, DIST):
        for x in x_loads(0, 0, kk, 2 * kk):
            emit(x)

    k("s_lshl_b32 s10, s3, 13")
    k(f"s_add_u32 s10, s10, {LR}")
    k(f"v_add_u32 {VRW}, s10, {VL16}")
    k("s_cmp_eq_u32 s14, 0")
    k("s_cselect_b32 s26, 1.0, 0")
    k("s_mov_b32 s27, s26")
    k("s_lshl_b32 s60, s16, 4")
    k("s_lshl_b32 s13, s8, 1")
    k("s_add_u32 s60, s60, s13")
    k("s_add_u32 s60, s60, s14")
    k("s_lshl_b32 s60, s60, 7")

    def phase_s():
        for r in range(2):
            s_, q_ = TMP + 2 * r, TMP + 2 * r + 1
            first = True
            for i in range(3):
                for d in range(2):
                    unpack(k, "v204", "v205", f"v{SR+4*i+2*r+d}")
                    if first:
                        k(f"v_add_f32 v{s_}, v204, v205")
                        k(f"v_mul_f32 v{q_}, v204, v204")
                        first = False
                    else:
                        k(f"v_add_f32 v{s_}, v{s_}, v204")
                        k(f"v_add_f32 v{s_}, v{s_}, v205")
                        k(f"v_fmac_f32 v{q_}, v204, v204")
                    k(f"v_fmac_f32 v{q_}, v205, v205")
        for v in range(TMP, TMP + 4):
            k(f"v_add_f32_dpp v{v}, v{v}, v{v} row_ror:4 row_mask:0xf bank_mask:0xf")
        for v in range(TMP, TMP + 4):
            k(f"v_add_f32_dpp v{v}, v{v}, v{v} row_ror:8 row_mask:0xf bank_mask:0xf")
        for v in range(TMP, TMP + 4):
            xsum16(k, f"v{v}", "v204")
            xsum32(k, f"v{v}", "v204")
        k(f"v_or_b32 v{TMP+1}, 0x80000000, v{TMP+1}")
        k(f"v_or_b32 v{TMP+3}, 0x80000000, v{TMP+3}")
        k("s_lshl_b32 s12, s63, 3")
        k("s_add_u32 s12, s12, s3")
        k("s_lshl_b32 s12, s12, 7")
        k("s_lshl_b32 s13, s61, 5")
        k("s_add_u32 s12, s12, s13")
        k(f"s_add_u32 s12, s12, {SY_ST1}")
        k("v_lshlrev_b32 v204, 3, v1")
        set_exec(4)
        k(f"buffer_store_dwordx2 v[{TMP}:{TMP+1}], v204, {srd(SSY)}, s12 offen sc1")
        k(f"buffer_store_dwordx2 v[{TMP+2}:{TMP+3}], v204, {srd(SSY)}, s12 offen offset:512 sc1")
        k("s_mov_b64 exec, -1")

    sched = {}
    wi = NE1
    for kk in range(20):
        L = []
        if kk < 4:
            L += wgu_dma(6 + kk)
        if kk + DIST < 20:
            L += x_loads(0, 0, kk + DIST, 2 * (kk + DIST))
        else:
            kb = kk + DIST - 20
            L += x_loads(0, 1, kb, 40 + 2 * kb)
        if kk >= 20 - NWA and wi < 60:
            L += wd_load(wi)
            wi += 1
        if kk == 2:
            L = [phase_s] + L
        if kk == 14:
            L = st1_loads(0, TMP + 24) + L
        sched[kk] = L
    g1_main(0, sched, first=True, xp=True)
    stamp("g1a")
    stats1(0, STA)

    def take(n):
        nonlocal wi
        L = []
        for _ in range(n):
            if wi < 60:
                L += wd_load(wi)
                wi += 1
        return L
    g1_epilogue(0, 0, STA, take(NWE1))
    stamp("e1a")
    extra = {}
    for kk in range(12):
        extra[kk] = take((NWB * (kk + 1)) // 12 - (NWB * kk) // 12)
    extra[12] = st1_loads(1, TMP + 24) + res_loads(0)
    sched, rest = g1b_sched(0, extra)
    g1_main(40, sched, xp=True)
    stamp("g1b")
    for L in rest:
        for x in L:
            emit(x)
    stats1(1, STB)
    g1_epilogue(0, 1, STB, take(NWE2))
    print('Wd loads left for G2(A):', 60 - wi)
    stamp("e1b")

    NH0 = int(os.environ.get("NH0", "5"))

    def g2a(layer):
        sc = {kk: take(5) for kk in range(12)}
        assert wi == 60
        sc[HFK] = sc[HFK] + [lambda: h_flag(layer, 1)]
        sc[HPK] = sc[HPK] + h_poll_loads(layer, 1)
        g2_main(80, sc, X1R[0], X2[0])
        stamp(f"g2a{layer}")

        def mid():
            h_poll(layer, 1)
            stamp(f"ph{layer}")
            for kk in range(NH0):
                for x in h_loads(layer, 1, kk, 2 * kk):
                    emit(x)
        g2_reduce(X2[0], mid)

    def g2b_sched(layer, extra):
        sched = {}
        for kk in range(12):
            L = []
            if kk + NH0 < 12:
                L += h_loads(layer, 1, kk + NH0, 2 * (kk + NH0))
            sched[kk] = L + extra.get(kk, [])
        return sched

    g2a(0)
    part_stats(X2[0], 0, SY_ST2)
    stamp("r2a")

    def fin_a():
        finalize(0, X2[0], G2R)
        part_calc(X2[0], 244)
    g2_main(0, g2b_sched(0, {2: res_loads(1), FK - 3: st2_loads(0, G2R), FK: [fin_a]}), X1R[1], X2[1])
    stamp("g2b")
    g2_reduce(X2[1], lambda: part_pub(244, 0, SY_ST3, pre_wait="xst"))
    part_stats(X2[1], 1, SY_ST2)
    stamp("s3a")
    for x in st3_loads(0, TMP):
        emit(x)
    stats3(0, STA)
    stamp("p3a")
    for kk in range(DIST):
        for x in x_loads(1, 0, kk, 2 * kk):
            emit(x)
        if kk == 3:
            for x in st2_loads(1, G2R):
                emit(x)
    finalize(1, X2[1], G2R)
    part_calc(X2[1], 246)
    stamp("fin")
    sched = {}
    xb = [x_loads(1, 1, j, 40 + 2 * j) for j in range(DIST)]
    for kk in range(20):
        L = []
        if kk + DIST < 20:
            L += x_loads(1, 0, kk + DIST, 2 * (kk + DIST))
        if kk == 3:
            L = L + [lambda: part_pub(246, 1, SY_ST3, pre_wait="xst")]
        if kk == S3K - 4:
            L = L + st3_loads(1, TMP)
        if kk == S3K:
            L = [lambda: stats3(1, STB)] + L
        if kk >= S3K:
            for _ in range(-(-DIST // (20 - S3K))):
                if xb and (DIST - len(xb)) + 8 < kk:
                    L += xb.pop(0)
        sched[kk] = L
    assert not xb
    g1_main(0, sched)
    stamp("g1a'")
    g1_epilogue(1, 0, STA)
    stamp("e1a'")
    sched, rest = g1b_sched(1, {})
    g1_main(40, sched)
    stamp("g1b'")
    for L in rest:
        for x in L:
            emit(x)
    g1_epilogue(1, 1, STB)
    stamp("e1b'")
    g2a(1)
    out_store(0, X2[0])
    stamp("r2a'")
    g2_main(0, g2b_sched(1, {}), X1R[1], X2[1])
    g2_reduce(X2[1])
    out_store(1, X2[1])
    if DIAG:
        in_srd(k, 96, 88, 256)
        k("s_cmp_eq_u32 s101, 0")
        k("s_cselect_b32 s10, 0x40000000, 0")
        k("s_lshl_b32 s11, s2, 8")
        k("s_or_b32 s11, s11, s101")
        k("s_lshl_b32 s12, s3, 16")
        k("s_or_b32 s11, s11, s12")
        k("v_mov_b32 v0, s11")
        k("s_and_b32 s12, s101, 0xe")
        k("s_lshl_b32 s12, s12, 1")
        k("v_mov_b32 v1, s12")
        ML("buffer_store_dword v0, v1, s[96:99], s10 offen", 1)()
    if os.environ.get("DBGST"):
        k.stamp("end")
        k.wait(vm=0, lg=0)
        in_srd(k, 96, 88, 256)
        k("s_lshl_b32 s10, s2, 2")
        k("s_add_u32 s10, s10, s3")
        k(f"s_cmp_eq_u32 s10, {int(os.environ['DBGST'])*4}")
        k("s_cselect_b32 s10, 0, 0x40000000")
        k("v_mov_b32 v0, 0")
        for i in range(1, len(k.stamps)):
            k(f"s_sub_u32 s11, s{64+2*i}, s64")
            k("v_mov_b32 v1, s11")
            ML(f"buffer_store_dword v1, v0, s[96:99], s10 offen offset:{4*i}", 1)()
        print(k.stamps)
    else:
        k.prof_end(2, 24, 3, names="main")
    k.label("main_end", flush=False)
    k("s_endpgm")
    k.raw("main_code_end:")
    return k


if __name__ == "__main__":
    if os.environ.get("PROF"):
        Kern.PROF = True
    main = gen_main()
    out = sys.argv[1] if len(sys.argv) > 1 else "v22.s"
    txt = build_file(HEADER, [main], [main]).replace(f"; @launch kernel={KNAME} ", "; @launch ")
    open(out, "w").write(txt)
    json.dump(PROFINFO, open(out + ".prof.json", "w"))
    print("instrs", main.nins, "vgpr", main.maxv + 1, "agpr", main.maxa + 1, "sgpr", main.maxs + 1, "lds", main.lds)
```

```python
import sys, os, json
sys.path.insert(0, "dev")
from asmdsl import *
from gen1 import S, D, F, EPS, f2u, unpack, reduce16, xsum16, xsum32, HEADER, XFB, HFB, WDB

KNAME = "interleave_layers__ssm_conv_h3__swiglu_ffn__prompt_kernel"
WS_KVT = 0x0000000
WS_QST = 0x0300000
WS_WGU = 0x0400000
WGU_M = 20 * 6144
WGUB = 32 * WGU_M
WS_CS = 0x0800000
WS_WD = 0x0900000
WS_Y = 0x0C00000
WS_X1 = 0x0F00000
WS_H = 0x1200000
WS_X3 = 0x1D00000
WS_H2 = 0x2000000
WS_SYNC = 0x2800000
SY_ST1 = 0
SY_ST2 = 0x10000
SY_ST3 = 0x50000
SY_HF = 0x90000
SY_CF_OLD = 0x110000
SY_PF = 0x124000
SY_QF = 0x128000
SY_GF = 0x12C000
SY_QF = 0x140000
SY_CF = 0x150000
SYNCB = 0x178000
SN = "s[100:101]"
WS_QX = 0x2C00000
XBLK = 40960
WSB = 0x3000000
XRT = 20480
HRT = 49152
OOB = 0x80000000
LOG2E = 1.4426950408889634
SPIN_MAX = 1 << 18
NPREP = 96
STAMPS = os.environ.get("STAMPS", "").split(",")
NP1 = int(os.environ.get("NP1", "4"))
NE1 = int(os.environ.get("NE1", "32"))
PPN = int(os.environ.get("PPN", "2"))
LASTW = int(os.environ.get("LASTW", "240"))
NB = int(os.environ.get("NB", "12"))
NE2 = int(os.environ.get("NE2", "0"))
MAP = int(os.environ.get("MAP", "2"))
PF = int(os.environ.get("PF", "0"))
FK = int(os.environ.get("FK", "7"))
HFK = int(os.environ.get("HFK", "4"))
S3K = int(os.environ.get("S3K", "15"))
NWA = int(os.environ.get("NWA", "10"))
NWE1 = int(os.environ.get("NWE1", "12"))
NWB = int(os.environ.get("NWB", "14"))
NWE2 = int(os.environ.get("NWE2", "12"))
HPK = int(os.environ.get("HPK", "9"))
PREW = int(os.environ.get("PREW", "1"))
DIAG = int(os.environ.get("DIAG", "0"))
QPN = int(os.environ.get("QPN", "8"))
QPOS = int(os.environ.get("QPOS", "2"))
NEP = int(os.environ.get("NEP", "40"))
NT = " nt" if os.environ.get("NT") else ""
HPOS = int(os.environ.get("HPOS", "2"))
EVERY = int(os.environ.get("EVERY", "5"))


def srd(n):
    return f"s[{n}:{n+3}]"


def mkstamp(k):
    def stamp(n):
        if n in STAMPS:
            if hasattr(k, "stamps") and n in k.stamps:
                if Kern.PROF:
                    i = k.stamps.index(n)
                    k(f"{Kern.CLK} s[{64+2*i}:{65+2*i}]")
            else:
                k.stamp(n)
    return stamp


def in_srd(k, slot, karg_off, nbytes):
    k(f"s_load_dwordx2 s[{slot}:{slot+1}], s[0:1], {karg_off}")
    k(f"s_mov_b32 s{slot+2}, {nbytes}")
    k(f"s_mov_b32 s{slot+3}, 0x00020000")


def gen_pre():
    k = Kern("pre_kernel", lds=8192, grid=384, block=128)
    stamp = mkstamp(k)
    SA, SB, SC_, SD_, SWS = 28, 32, 36, 40, 48
    k.prof_begin()
    k(f"s_cmp_ge_u32 s2, {k.grid}")
    k.branch("s_cbranch_scc1 pre_end", flush=False)
    k("s_load_dwordx2 s[24:25], s[0:1], 96")
    k("s_cmp_ge_u32 s2, 320")
    k.branch("s_cbranch_scc1 pre_q", flush=False)
    saved0 = (list(k.vm), list(k.lg))
    in_srd(k, SA, 8, S * D * 2)
    in_srd(k, SB, 16, S * D * 2)
    in_srd(k, SC_, 24, D * 8)
    in_srd(k, SD_, 32, D * 4096)
    k("v_lshrrev_b32 v1, 6, v0")
    k("v_readfirstlane_b32 s3, v1")
    k("v_and_b32 v1, 63, v0")
    k("s_lshr_b32 s57, s2, 5")
    k("s_and_b32 s58, s2, 31")
    k("v_lshrrev_b32 v4, 3, v1")
    k("v_and_b32 v5, 7, v1")
    k("s_lshl_b32 s10, s58, 6")
    k("s_lshl_b32 s11, s3, 5")
    k("s_add_u32 s10, s10, s11")
    k("v_lshlrev_b32 v6, 2, v4")
    k("v_add_u32 v6, s10, v6")
    k("v_mul_u32_u24 v7, 1280, v6")
    k("v_lshl_add_u32 v7, v5, 4, v7")
    k("s_lshl_b32 s12, s57, 7")
    k("v_add_u32 v7, s12, v7")
    KR, VR, WR = 16, 44, 60
    k("v_lshlrev_b32 v9, 6, v5")
    k("s_lshl_b32 s12, s57, 9")
    for j in (3, 4, 5, 6):
        k(f"buffer_load_dwordx4 v[{KR+4*j}:{KR+4*j+3}], v7, {srd(SA)}, 0 offen offset:{(j-3)*1280}")
    for i in range(4):
        k(f"buffer_load_dwordx4 v[{VR+4*i}:{VR+4*i+3}], v7, {srd(SB)}, 0 offen offset:{i*1280}{NT}")
    for i in range(4):
        k(f"buffer_load_dwordx4 v[{WR+4*i}:{WR+4*i+3}], v9, {srd(SC_)}, s12 offen offset:{16*i}")
    for j in (2, 1, 0):
        k(f"v_add_u32 v8, {((j-3)*1280) & 0xffffffff:#x}, v7")
        k(f"buffer_load_dwordx4 v[{KR+4*j}:{KR+4*j+3}], v8, {srd(SA)}, 0 offen")
    k.srd(SWS, 24, WSB)
    k("s_lshl_b32 s10, s3, 6")
    k("s_sub_u32 s10, 120, s10")
    k("v_lshlrev_b32 v8, 3, v4")
    k("v_sub_u32 v8, s10, v8")
    k("v_lshlrev_b32 v9, 4, v5")
    k("v_xor_b32 v8, v8, v9")
    k("v_lshl_add_u32 v8, v5, 10, v8")
    k("s_lshl_b32 s10, s3, 12")
    k("v_lshlrev_b32 v11, 7, v4")
    k("v_add_u32 v11, s10, v11")
    k("s_lshl_b32 s11, s3, 2")
    for j in range(4):
        k(f"s_add_u32 s12, s11, {j}")
        k(f"v_xor_b32 v{12+j}, s12, v5")
        k(f"v_lshl_add_u32 v{12+j}, v{12+j}, 4, v11")
    k("v_lshl_add_u32 v9, v4, 12, v9")
    k("s_lshl_b32 s10, s57, 6")
    k("s_lshl_b32 s11, s3, 5")
    k("s_add_u32 s10, s10, s11")
    k("s_lshl_b32 s10, s10, 12")
    k("s_lshl_b32 s11, s58, 7")
    k("s_sub_u32 s11, 3968, s11")
    k("s_add_u32 s10, s10, s11")
    WF = 80
    for c in range(8):
        unpack(k, f"v{WF+4*c}", f"v{WF+4*c+1}", f"v{WR+2*c}")
        unpack(k, f"v{WF+4*c+2}", f"v{WF+4*c+3}", f"v{WR+2*c+1}")
    k.need([f"v{KR}"])
    stamp("Tld")
    if HPOS == 3:
        h_loads_()
    lab = k.newlabel("pc")
    k("s_getpc_b64 s[44:45]")
    k.raw(lab + ":")
    k(f"s_add_u32 s44, s44, main_kernel-{lab}")
    k("s_addc_u32 s45, s45, 0")
    k("s_mov_b32 s46, main_code_end-main_kernel")
    k("s_mov_b32 s47, 0x00020000")
    k("v_lshlrev_b32 v2, 7, v0")
    k(f"s_sub_u32 s12, s2, {NPREP}")
    k("s_lshl_b32 s12, s12, 14")
    k("s_and_b32 s12, s12, 0x7fffffff")
    k(f"buffer_load_dword v150, v2, {srd(SD_)}, s12 offen")
    k("s_lshr_b32 s12, s2, 3")
    k("s_lshl_b32 s12, s12, 14")
    k("buffer_load_dword v151, v2, s[44:47], s12 offen")
    KF, VF, OUT = 112, 128, 136
    for cp in range(4):
        for j in range(7):
            unpack(k, f"v{KF+2*j}", f"v{KF+2*j+1}", f"v{KR+4*j+cp}")
        for i in range(4):
            unpack(k, f"v{VF+2*i}", f"v{VF+2*i+1}", f"v{VR+4*i+cp}")
        for h in range(2):
            c = 2 * cp + h
            O = OUT + 4 * h
            for i in range(4):
                k(f"v_mul_f32 v{O+i}, v{KF+2*(i+0)+h}, v{WF+4*c+3}")
            for t in (2, 1, 0):
                for i in range(4):
                    k(f"v_fmac_f32 v{O+i}, v{KF+2*(i+3-t)+h}, v{WF+4*c+t}")
            for i in range(4):
                k(f"v_mul_f32 v{O+i}, v{O+i}, v{VF+2*i+h}")
            p = 144 + 2 * h
            k(f"v_cvt_pk_bf16_f32 v{p}, v{O+3}, v{O+2}")
            k(f"v_cvt_pk_bf16_f32 v{p+1}, v{O+1}, v{O+0}")
            k(f"ds_write_b64 v8, v[{p}:{p+1}] offset:{c*128}")
    k.wait(lg=0)
    k.barrier()
    stamp("Tkv")
    for j in range(4):
        k(f"ds_read_b128 v[{16+4*j}:{19+4*j}], v{12+j} offset:{j*1024}")
    for j in range(4):
        k(f"buffer_store_dwordx4 v[{16+4*j}:{19+4*j}], v9, {srd(SWS)}, s10 offen{PSC}")
        k("s_add_u32 s10, s10, 32768")
    for i in range(4):
        k(f"v_mov_b32 v{32+i}, 0")
    k.srd(SA, 24, SYNCB, WS_SYNC)
    k("s_lshl_b32 s12, s2, 12")
    k("v_lshlrev_b32 v8, 4, v0")
    for i in range(2):
        k(f"buffer_store_dwordx4 v[32:35], v8, {srd(SA)}, s12 offen offset:{i*2048}{PSC}")
    k.prof_end(0, 24, 3, names="pre")
    k("s_endpgm")
    k.label("pre_q", flush=False)
    k.vm, k.lg = saved0
    in_srd(k, SA, 0, S * D * 2)
    k("v_lshrrev_b32 v1, 6, v0")
    k("v_readfirstlane_b32 s3, v1")
    k("v_and_b32 v1, 63, v0")
    k("v_and_b32 v2, 15, v0")
    k("v_bfe_u32 v3, v0, 4, 2")
    k("s_sub_u32 s10, s2, 320")
    k("s_lshl_b32 s10, s10, 1")
    k("s_add_u32 s10, s10, s3")
    k(f"s_mul_i32 s11, s10, {XRT}")
    k("v_mul_u32_u24 v4, 1280, v2")
    k("v_lshl_add_u32 v4, v3, 4, v4")
    QR = 16
    for i in range(20):
        k(f"buffer_load_dwordx4 v[{QR+4*i}:{QR+4*i+3}], v4, {srd(SA)}, s11 offen offset:{64*i}")
    k.srd(SWS, 24, WSB)
    k("v_lshlrev_b32 v5, 4, v1")
    k(f"s_add_u32 s12, s11, {WS_QX}")
    k("v_mov_b32 v6, 0x3f803f80")
    k("v_mov_b32 v8, 0")
    k("v_mov_b32 v9, 0")
    for i in range(20):
        if i % 4 == 0 and i:
            k("s_add_u32 s12, s12, 4096")
        k(f"buffer_store_dwordx4 v[{QR+4*i}:{QR+4*i+3}], v5, {srd(SWS)}, s12 offen offset:{(i%4)*1024}{PSC}")
        for d in range(4):
            k(f"v_dot2c_f32_bf16 v8, v{QR+4*i+d}, v6")
            k(f"v_dot2c_f32_bf16 v9, v{QR+4*i+d}, v{QR+4*i+d}")
    for v in ("v8", "v9"):
        xsum16(k, v, "v7")
        xsum32(k, v, "v7")
    k(f"v_mul_f32 v8, {f2u(1.0/D)}, v8")
    k(f"v_mul_f32 v9, {f2u(1.0/D)}, v9")
    k("v_fma_f32 v9, -v8, v8, v9")
    k("v_max_f32 v9, 0, v9")
    k(f"v_add_f32 v9, {f2u(EPS)}, v9")
    k("v_rsq_f32 v11, v9")
    k("v_mul_f32 v10, v8, v11")
    k("s_lshl_b32 s12, s10, 7")
    k(f"s_add_u32 s12, s12, {WS_QST}")
    k("v_lshlrev_b32 v7, 3, v2")
    k(f"buffer_store_dwordx2 v[10:11], v7, {srd(SWS)}, s12 offen")
    k.label("pre_end", flush=False)
    k("s_endpgm")
    return k


PSC = os.environ.get("PSC", "")

def gen_main():
    LW = 0
    LR = 131072
    LC = 122880
    CP = 4160
    UOFF = 4 * CP
    WREG = 4 * CP + 4608
    CB = 163840 - 4 * WREG
    k = Kern(KNAME, lds=163840, grid=256, block=256)
    RING, ACC, WB, TMP = 16, 112, 160, 184
    X1R = [216, 222]
    YR = [228, 234]
    STA, STB = [4, 6], [240, 242]
    X2 = [WB, WB + 12]
    G2R = TMP + 8
    DIST = int(os.environ.get("DIST", "8"))
    VL16, VL16B, VH2, VT4, VT4S, VROW, VGW, VGR, VQ128, VFLAG, VFPOLL = (
        "v10", "v11", "v8", "v9", "v12", "v13", "v14", "v15", "v0", "v252", "v253")
    VL128 = "v251"
    VXP = "v250"
    VRW = "v249"
    LQ = 131072
    SX, SW, SH, SWD, SSY, SO, SY_ = 28, 32, 36, 40, 44, 48, 52
    SA, SB, SWS, SDBG = 28, 36, 48, 52
    XSPAN = WS_X3 - WS_X1
    HSPAN = WS_H2 - WS_H

    stamp = mkstamp(k)

    def ring(i):
        return RING + 4 * (i % 24)

    def emit(x):
        if callable(x):
            x()
        elif isinstance(x, tuple):
            k(x[0], tag=x[1])
        else:
            k(x)

    def set_exec(nl):
        m = (1 << nl) - 1
        if nl <= 32:
            k(f"s_mov_b64 exec, {m:#x}") if nl <= 6 else (k(f"s_mov_b32 exec_lo, {m:#x}"), k("s_mov_b32 exec_hi, 0"))
        else:
            k(f"s_mov_b32 exec_hi, {m >> 32:#x}")

    class ML:
        def __init__(self, text, nl):
            self.text, self.nl = text, nl

        def __call__(self):
            set_exec(self.nl)
            k(self.text)
            k("s_mov_b64 exec, -1")

    def isvm(x):
        if isinstance(x, ML):
            return True
        if callable(x):
            return False
        return (x[0] if isinstance(x, tuple) else x).startswith("buffer_")

    def emit_one_vmem(L):
        while L:
            x = L.pop(0)
            emit(x)
            if isvm(x):
                return

    def x_loads(layer, b, kk, slot0):
        if layer == 0:
            return [f"s_add_u32 s10, s17, {kk*2048 + b*4*XBLK}"] + [
                f"buffer_load_dwordx4 v[{ring(slot0+e)}:{ring(slot0+e)+3}], {VXP}, {srd(SX)}, s10 offen offset:{e*256} sc1"
                for e in range(2)]
        so = kk * 1024 + b * 8 * XRT + (XSPAN if layer else 0)
        L = []
        for tn in range(2):
            L.append(f"s_add_u32 s10, s17, {so + tn*XRT}")
            L.append(f"buffer_load_dwordx4 v[{ring(slot0+tn)}:{ring(slot0+tn)+3}], {VL16}, {srd(SX)}, s10 offen sc1")
        return L

    def h_loads(layer, b, kk, slot0):
        so = kk * 1024 + b * 8 * HRT + (HSPAN if layer else 0)
        L = []
        for tn in range(2):
            L.append(f"s_add_u32 s10, s{57+tn}, {so}")
            L.append(f"buffer_load_dwordx4 v[{ring(slot0+tn)}:{ring(slot0+tn)+3}], {VL16}, {srd(SH)}, s10 offen sc1")
        return L

    def x_pf(layer, b):
        if not PF:
            return []
        return [f"s_add_u32 s10, s26, {b*8*XRT + (XSPAN if layer else 0)}",
                ML(f"buffer_load_dword a240, {VL128}, {srd(SX)}, s10 offen sc1", 20)]

    def h_pf(layer, b):
        if not PF:
            return []
        return [f"s_add_u32 s10, s27, {b*8*HRT + (HSPAN if layer else 0)}",
                ML(f"buffer_load_dword a241, {VL128}, {srd(SH)}, s10 offen sc1", 48)]

    def wgu_dma(p):
        return [f"s_add_u32 m0, s18, {LW + p*12288}", f"s_add_u32 s11, s19, {p*12288}"] + [
            (f"buffer_load_dwordx4 {VL16}, {srd(SW)}, s11 offen offset:{f*1024} sc1 lds", f"w{p}") for f in range(3)]

    def wd_load(i):
        kk, lt = divmod(i, 5)
        base = "s20" if lt < 2 else "s21" if lt < 4 else "s22"
        return [f"s_add_u32 s11, {base}, {kk*5120}",
                f"buffer_load_dwordx4 a[{4*i}:{4*i+3}], {VL16}, {srd(SWD)}, s11 offen offset:{(lt&1)*1024 if lt < 4 else 0} sc1"]

    def poll(loads, tags, tmp, sleep=1, ge=None, nl=64, eq=None):
        def check():
            if nl < 64:
                k(f"v_mov_b32 {tags[0]}, {tags[0]}")
                set_exec(nl)
            check0()
            if nl < 64:
                k("s_cmp_eq_u64 vcc, exec")
                k("s_mov_b64 exec, -1")
            else:
                k("s_cmp_eq_u64 vcc, -1")

        def check0():
            if eq is not None:
                r_ = int(tags[0][1:])
                k(f"v_cmp_eq_u64 vcc, {eq}, v[{r_}:{r_+1}]")
            elif ge is not None:
                k(f"v_cmp_le_u32 vcc, {ge}, {tags[0]}")
            elif len(tags) == 1:
                k(f"v_cmp_ne_u32 vcc, 0, {tags[0]}")
            else:
                k(f"v_min_u32 {tmp}, {tags[0]}, {tags[1]}")
                for t in tags[2:]:
                    k(f"v_min_u32 {tmp}, {tmp}, {t}")
                k(f"v_cmp_ne_u32 vcc, 0, {tmp}")
        ok = k.newlabel("ok")
        lp = k.newlabel("spin")
        check()
        k.branch(f"s_cbranch_scc1 {ok}", flush=False)
        vm, lg = list(k.vm), list(k.lg)
        k("s_mov_b32 s23, 0")
        k.label(lp, flush=False)
        k(f"s_sleep {sleep}")
        for l in loads:
            emit(l)
        k.wait(vm=0)
        k("s_add_u32 s23, s23, 1")
        k(f"s_cmp_ge_u32 s23, {SPIN_MAX}")
        if DIAG:
            k(f"s_cselect_b32 s101, {k.uid}, s101")
        k.branch(f"s_cbranch_scc1 {ok}", flush=False)
        check()
        k.branch(f"s_cbranch_scc0 {lp}", flush=False)
        k.flush_hazards()
        k.label(ok, flush=False)
        k.vm, k.lg = vm, lg

    def finish_stats(vsum, vnsq, dst):
        k(f"v_mul_f32 v{dst}, {f2u(-1.0/D)}, {vsum}")
        k(f"v_mul_f32 {vnsq}, {f2u(-1.0/D)}, {vnsq}")
        k(f"v_fma_f32 {vnsq}, -v{dst}, v{dst}, {vnsq}")
        k(f"v_max_f32 {vnsq}, 0, {vnsq}")
        k(f"v_add_f32 {vnsq}, {f2u(EPS)}, {vnsq}")
        k(f"v_rsq_f32 v{dst+1}, {vnsq}")

    def wread(kk, f):
        reg, off = (VL16, kk * 6144) if kk < 10 else (VL16B, (kk - 10) * 6144)
        return f"ds_read_b128 v[{WB+4*f}:{WB+4*f+3}], {reg} offset:{LW+off+f*1024}"

    def xswap(slot):
        a_, b_ = ring(slot), ring(slot + 1)
        k(f"v_swap_b32 v{a_+2}, v{b_}")
        k(f"v_swap_b32 v{a_+3}, v{b_+1}")

    def g1_main(slot0, sched, first=False, xp=False):
        for f in range(6):
            k(wread(0, f))
        if xp:
            xswap(slot0)
        for kk in range(20):
            L = sched.get(kk, [])
            if first and kk == 11:
                k.wait_tag("w9")
                k.barrier()
            nv = sum(1 for x in L if isvm(x))
            done = 0
            for f in range(6):
                for tn in range(2):
                    a = ACC + 8 * f + 4 * tn
                    acc = f"v[{a}:{a+3}]"
                    xr = ring(slot0 + 2 * kk + tn)
                    k(f"v_mfma_f32_16x16x32_bf16 {acc}, v[{WB+4*f}:{WB+4*f+3}], v[{xr}:{xr+3}], {acc if kk else 0}")
                    if tn == 0:
                        while done < nv and done * 6 < (f + 1) * nv - 2:
                            emit_one_vmem(L)
                            done += 1
                        if PREW and not (kk == 19 and f == 5):
                            regs = [f"v{WB+4*((f+1)%6)}"]
                            if f == 5 and not xp:
                                regs += [f"v{ring(slot0+2*kk+2)}", f"v{ring(slot0+2*kk+3)}"]
                            k.need(regs)
                    elif PREW:
                        while L and isinstance(L[0], str) and L[0].startswith("s_add_u32 s10") and done < nv and done * 6 < (f + 2) * nv - 2:
                            emit(L.pop(0))
                if xp and f == 3 and kk < 19:
                    xswap(slot0 + 2 * kk + 2)
                if kk < 19:
                    k(wread(kk + 1, f))
                else:
                    if f == 0:
                        k("v_lshlrev_b32 v255, 4, v3")
                        k(f"v_add_u32 v255, {LC}, v255")
                    k(f"ds_read_b128 v[{WB+4*f}:{WB+4*f+3}], v255 offset:{f*64}")
            for x in L:
                emit(x)

    def g1_epilogue(layer, b, ST, fill=None):
        fill = fill if fill is not None else []
        k(f"s_add_u32 s12, s56, {b*8*HRT + (HSPAN if layer else 0)}")
        O2 = TMP + 20
        for tn in range(2):
            st = ST[tn]
            c1 = TMP + 28
            k(f"v_mul_f32 v{c1}, {f2u(-LOG2E)}, v{st+1}")
            k(f"v_mul_f32 v{c1+1}, v{st+1}, v{st+1}")
            k(f"v_rcp_f32 v{c1+1}, v{c1+1}")
            T = TMP
            for f in range(6):
                a = ACC + 8 * f + 4 * tn
                for i in (0, 2):
                    k(f"v_pk_fma_f32 v[{a+i}:{a+i+1}], v[{WB+4*f+i}:{WB+4*f+i+1}], v[{st}:{st+1}], v[{a+i}:{a+i+1}] op_sel:[0,0,0] op_sel_hi:[1,0,1]")
            for f in range(3):
                g = ACC + 8 * f + 4 * tn
                for i in (0, 2):
                    k(f"v_pk_mul_f32 v[{T+4*f+i}:{T+4*f+i+1}], v[{g+i}:{g+i+1}], v[{c1}:{c1+1}] op_sel:[0,0] op_sel_hi:[1,0]")
            for e in range(12):
                k(f"v_exp_f32 v{T+e}, v{T+e}")
                if e % 4 == 0:
                    emit_one_vmem(fill)
            for f in range(3):
                g = ACC + 8 * f + 4 * tn
                u = g + 24
                for i in (0, 2):
                    k(f"v_pk_mul_f32 v[{g+i}:{g+i+1}], v[{g+i}:{g+i+1}], v[{u+i}:{u+i+1}]")
            for e in range(0, 12, 2):
                k(f"v_pk_fma_f32 v[{T+e}:{T+e+1}], v[{T+e}:{T+e+1}], v[{c1}:{c1+1}], v[{c1}:{c1+1}] op_sel:[0,1,1] op_sel_hi:[1,1,1]")
            for e in range(12):
                k(f"v_rcp_f32 v{T+e}, v{T+e}")
                if e % 4 == 0:
                    emit_one_vmem(fill)
            for f in range(3):
                g = ACC + 8 * f + 4 * tn
                for i in (0, 2):
                    k(f"v_pk_mul_f32 v[{T+4*f+i}:{T+4*f+i+1}], v[{T+4*f+i}:{T+4*f+i+1}], v[{g+i}:{g+i+1}]")
            O = TMP + 12 + 4 * tn
            for p in range(4):
                k(f"v_cvt_pk_bf16_f32 v{O+p}, v{T+2*p}, v{T+2*p+1}")
            for p in range(2):
                k(f"v_cvt_pk_bf16_f32 v{O2+2*tn+p}, v{T+8+2*p}, v{T+9+2*p}")
            if tn:
                k(f"s_add_u32 s13, s12, {HRT}")
            k(f"buffer_store_dwordx4 v[{O}:{O+3}], {VL16}, {srd(SH)}, s{12+tn} offen sc1", tag="hst")
        k(f"v_permlane16_swap_b32 v{O2}, v{O2+2}")
        k(f"v_permlane16_swap_b32 v{O2+1}, v{O2+3}")
        k(f"buffer_store_dwordx4 v[{O2}:{O2+3}], {VH2}, {srd(SH)}, s12 offen offset:1024 sc1", tag="hst")
        for x in fill:
            emit(x)

    def h_flag(layer, b):
        k("s_lshl_b32 s12, s4, 3")
        k("s_add_u32 s12, s12, s3")
        k("s_lshl_b32 s12, s12, 5")
        k("s_add_u32 s12, s12, s5")
        k("s_lshl_b32 s12, s12, 7")
        k(f"s_add_u32 s12, s12, {SY_HF + layer*0x40000 + b*0x4000}")
        k("v_mov_b32 v254, s100"); k("v_mov_b32 v255, s101")
        k.wait_tag("hst")
        k(f"buffer_store_dwordx2 v[254:255], {VFLAG}, {srd(SSY)}, s12 offen sc1")
        stamp(f"hf{layer}{b}")

    def h_poll_loads(layer, b):
        return [f"s_mov_b32 s13, {SY_HF + layer*0x40000 + b*0x4000}",
                ML(f"buffer_load_dwordx2 v[{TMP+30}:{TMP+31}], {VFPOLL}, {srd(SSY)}, s13 offen sc1", 8)]

    def h_poll(layer, b):
        poll(h_poll_loads(layer, b), [f"v{TMP+30}"], None, nl=8, eq=SN)

    TAILK = int(os.environ.get("TAILK", "3"))
    RESF = TMP

    def g2_main(slot0, sched, res, dst):
        def areg(lt, tn):
            if tn == 0 and lt in (0, 1, 4):
                return dst + 4 * (lt if lt < 2 else 2)
            return ACC + 8 * lt + 4 * tn

        def mf(kk, lt, tn):
            a = areg(lt, tn)
            acc = f"v[{a}:{a+3}]"
            hr = ring(slot0 + 2 * kk + tn)
            wr = 4 * (5 * kk + lt)
            k(f"v_mfma_f32_16x16x32_bf16 {acc}, a[{wr}:{wr+3}], v[{hr}:{hr+3}], {acc if kk else 0}")

        for kk in range(12 - TAILK):
            L = sched.get(kk, [])
            nv = sum(1 for x in L if isvm(x))
            done = 0
            idx = 0
            if kk == 5:
                k.barrier()
            for tn in range(2):
                for lt in range(5):
                    mf(kk, lt, tn)
                    idx += 1
                    while done < nv and done * 10 < idx * nv - 5:
                        emit_one_vmem(L)
                        done += 1
            for x in L:
                emit(x)
        L = []
        for kk in range(12 - TAILK, 12):
            L += sched.get(kk, [])
        order = [(0, 1, 0), (1, 1, 1), (2, 0, 2), (3, 0, 3), (2, 1, 4), (3, 1, 5), (4, 1, 7), (4, 0, 6), (0, 0, None), (1, 0, None)]
        pend = []
        fillv = []
        for d in range(6):
            fillv += [f"v_lshlrev_b32 v{RESF+2*d}, 16, v{res+d}", f"v_and_b32 v{RESF+2*d+1}, 0xffff0000, v{res+d}"]
        fillv += [f"v_xor_b32 v{TMP+12+x}, {x << 13}, {VRW}" for x in range(1, 4)]
        for i, (lt, tn, slot) in enumerate(order):
            for kk in range(12 - TAILK, 12):
                mf(kk, lt, tn)
                if i >= 5 and fillv:
                    k(fillv.pop(0))
            if L:
                emit_one_vmem(L)
            if slot is not None:
                a = areg(lt, tn)
                pend.append((i, f"ds_write_b128 {VRW}, v[{a}:{a+3}] offset:{slot*1024}"))
            while pend and pend[0][0] <= i - 2:
                k(pend.pop(0)[1])
        for x in L + fillv:
            emit(x)
        for _, x in pend:
            k(x)

    def g2_reduce(dst, mid=None):
        if mid:
            mid()
        k.wait(lg=0)
        k.barrier()
        n = 0
        for x in range(1, 4):
            for sl_ in (2 * (x - 1), 2 * (x - 1) + 1, 6 + (x & 1)):
                k(f"ds_read_b128 v[{ACC+4*n}:{ACC+4*n+3}], v{TMP+12+x} offset:{sl_*1024}")
                n += 1
        for i in range(0, 12, 2):
            k(f"v_pk_add_f32 v[{dst+i}:{dst+i+1}], v[{dst+i}:{dst+i+1}], v[{RESF+i}:{RESF+i+1}]")
        for x in range(3):
            for i in range(0, 12, 2):
                r = ACC + 12 * x + i
                k(f"v_pk_add_f32 v[{dst+i}:{dst+i+1}], v[{dst+i}:{dst+i+1}], v[{r}:{r+1}]")

    def part_stats(src, b, region, pre_wait=None):
        part_calc(src, TMP + 16)
        part_pub(TMP + 16, b, region, pre_wait)

    def part_calc(src, a):
        q_ = a + 1
        t = TMP + 18
        u = TMP + 4
        k(f"v_pk_add_f32 v[{t}:{t+1}], v[{src+8}:{src+9}], v[{src+10}:{src+11}]")
        k(f"v_pk_mul_f32 v[{t+2}:{t+3}], v[{src+8}:{src+9}], v[{src+8}:{src+9}]")
        k(f"v_pk_fma_f32 v[{t+2}:{t+3}], v[{src+10}:{src+11}], v[{src+10}:{src+11}], v[{t+2}:{t+3}]")
        k(f"v_pk_add_f32 v[{u}:{u+1}], v[{src}:{src+1}], v[{src+2}:{src+3}]")
        k(f"v_pk_mul_f32 v[{t}:{t+1}], v[{t}:{t+1}], s[26:27]")
        k(f"v_pk_mul_f32 v[{t+2}:{t+3}], v[{t+2}:{t+3}], s[26:27]")
        k(f"v_pk_add_f32 v[{u+2}:{u+3}], v[{src+4}:{src+5}], v[{src+6}:{src+7}]")
        for i in range(0, 8, 2):
            k(f"v_pk_fma_f32 v[{t+2}:{t+3}], v[{src+i}:{src+i+1}], v[{src+i}:{src+i+1}], v[{t+2}:{t+3}]")
        k(f"v_pk_add_f32 v[{u}:{u+1}], v[{u}:{u+1}], v[{u+2}:{u+3}]")
        k(f"v_pk_add_f32 v[{t}:{t+1}], v[{t}:{t+1}], v[{u}:{u+1}]")
        k(f"v_add_f32 v{q_}, v{t+2}, v{t+3}")
        k(f"v_add_f32 v{a}, v{t}, v{t+1}")
        k(f"v_permlane16_swap_b32 v{a}, v{q_}")
        k(f"v_add_f32 v{a}, v{a}, v{q_}")
        k(f"v_mov_b32 v{q_}, v{a}")
        k(f"v_permlane32_swap_b32 v{a}, v{q_}")
        k(f"v_add_f32 v{a}, v{a}, v{q_}")
        k(f"v_mov_b32 v{q_}, v{a}")
        k(f"v_permlane16_swap_b32 v{a}, v{q_}")
        k(f"v_or_b32 v{q_}, 0x80000000, v{q_}")

    def part_pub(a, b, region, pre_wait=None):
        k(f"s_add_u32 s12, s23, {region + b*8*2048}") if False else None
        k(f"s_add_u32 s12, s60, {region + b*8*2048}")
        if pre_wait:
            k.wait_tag(pre_wait)
        k(f"buffer_store_dwordx2 v[{a}:{a+1}], {VGW}, {srd(SSY)}, s12 offen sc1")
        stamp(f"pub{2 if region == SY_ST2 else 3}{b}")

    def st2_loads(b, dst):
        return ["s_lshl_b32 s13, s16, 11", f"s_add_u32 s13, s13, {SY_ST2 + b*8*2048}"] + [
            f"buffer_load_dwordx2 v[{dst+2*i}:{dst+2*i+1}], {VGR}, {srd(SSY)}, s13 offen offset:{i*128} sc1"
            for i in range(4)]

    def st3_loads(b, dst):
        return ["s_lshl_b32 s13, s15, 11", f"s_add_u32 s13, s13, {SY_ST3 + b*8*2048}"] + [
            f"buffer_load_dwordx2 v[{dst+8*tn+2*i}:{dst+8*tn+2*i+1}], {VGR}, {srd(SSY)}, s13 offen offset:{tn*2048+i*128} sc1"
            for tn in range(2) for i in range(4)]

    def st1_loads(b, dst):
        return ["s_lshl_b32 s13, s15, 9", f"s_add_u32 s13, s13, {SY_ST1 + b*8*512}"] + [
            f"buffer_load_dwordx2 v[{dst+2*tn}:{dst+2*tn+1}], {VQ128}, {srd(SSY)}, s13 offen offset:{tn*512} sc1"
            for tn in range(2)]

    def sum_granules(g, n, tmp):
        for i in range(1, n):
            k(f"v_pk_add_f32 v[{g}:{g+1}], v[{g}:{g+1}], v[{g+2*i}:{g+2*i+1}]")
        for v in (g, g + 1):
            xsum16(k, f"v{v}", tmp)
            xsum32(k, f"v{v}", tmp)

    def finalize(b, x2, G):
        poll(st2_loads(b, G), [f"v{G+1}", f"v{G+3}", f"v{G+5}", f"v{G+7}"], f"v{TMP+20}")
        stamp(f"p2{b}")
        sum_granules(G, 4, f"v{TMP+20}")
        sp = TMP + 22
        finish_stats(f"v{G}", f"v{G+1}", sp)
        k(f"v_mul_f32 v{sp}, v{sp}, v{sp+1}")
        for d in range(6):
            unpack(k, f"v{TMP}", f"v{TMP+1}", f"v{YR[b]+d}")
            k(f"v_pk_fma_f32 v[{TMP+2}:{TMP+3}], v[{x2+2*d}:{x2+2*d+1}], v[{sp}:{sp+1}], v[{sp}:{sp+1}] op_sel:[0,1,0] op_sel_hi:[1,1,0]")
            k(f"v_pk_fma_f32 v[{x2+2*d}:{x2+2*d+1}], v[{TMP+2}:{TMP+3}], v[{TMP}:{TMP+1}], v[{x2+2*d}:{x2+2*d+1}]")
            k(f"v_cvt_pk_bf16_f32 v{X1R[b]+d}, v{x2+2*d}, v{x2+2*d+1}")
        k(f"s_add_u32 s13, s59, {XSPAN + b*8*XRT}")
        k("s_lshl_b32 s12, s14, 10")
        k("s_add_u32 s12, s12, s13")
        k(f"buffer_store_dwordx4 v[{X1R[b]}:{X1R[b]+3}], {VL16}, {srd(SX)}, s12 offen sc1", tag="xst")
        k(f"buffer_store_dwordx2 v[{X1R[b]+4}:{X1R[b]+5}], {VT4S}, {srd(SX)}, s13 offen offset:2048 sc1", tag="xst")
        for d in range(6):
            unpack(k, f"v{x2+2*d}", f"v{x2+2*d+1}", f"v{X1R[b]+d}")

    def stats1(b, STx):
        poll(st1_loads(b, TMP + 24), [f"v{TMP+25}", f"v{TMP+27}"], f"v{TMP+20}")
        for tn in range(2):
            sum_granules(TMP + 24 + 2 * tn, 1, f"v{TMP+20}")
            finish_stats(f"v{TMP+24+2*tn}", f"v{TMP+25+2*tn}", STx[tn])

    def stats3(b, STx):
        poll(st3_loads(b, TMP), [f"v{TMP+1+2*i}" for i in range(8)], f"v{TMP+20}")
        for tn in range(2):
            sum_granules(TMP + 8 * tn, 4, f"v{TMP+20}")
            finish_stats(f"v{TMP+8*tn}", f"v{TMP+8*tn+1}", STx[tn])

    def res_loads(b):
        L = [f"s_add_u32 s13, s62, {b*4*XBLK}", "s_lshl_b32 s12, s14, 11", "s_add_u32 s12, s12, s13",
             "s_add_u32 s13, s13, 4096"]
        for R, sr in ((X1R[b], SX), (YR[b], SY_)):
            L += [f"buffer_load_dwordx2 v[{R}:{R+1}], {VXP}, {srd(sr)}, s12 offen sc1",
                  f"buffer_load_dwordx2 v[{R+2}:{R+3}], {VXP}, {srd(sr)}, s12 offen offset:256 sc1",
                  f"buffer_load_dwordx2 v[{R+4}:{R+5}], {VL16}, {srd(sr)}, s13 offen sc1"]
        return L

    def out_store(b, src):
        for d in range(6):
            k(f"v_cvt_pk_bf16_f32 v{TMP+d}, v{src+2*d}, v{src+2*d+1}")
        k(f"v_mul_u32_u24 v{TMP+8}, 1280, {VROW}")
        k("s_mul_i32 s12, s8, 160")
        k(f"s_add_u32 s12, s12, {b*128*1280}")
        k("s_lshl_b32 s13, s14, 6")
        k("s_add_u32 s13, s13, s12")
        k(f"v_lshl_add_u32 v{TMP+9}, v3, 4, v{TMP+8}")
        k(f"v_lshl_add_u32 v{TMP+10}, v3, 3, v{TMP+8}")
        k("s_lshl_b32 s10, s14, 31")
        k(f"v_or_b32 v{TMP+10}, s10, v{TMP+10}")
        k(f"buffer_store_dwordx4 v[{TMP}:{TMP+3}], v{TMP+9}, {srd(SO)}, s13 offen")
        k(f"buffer_store_dwordx2 v[{TMP+4}:{TMP+5}], v{TMP+10}, {srd(SO)}, s12 offen offset:128")

    def g1b_sched(layer, extra):
        sched = {}
        hl = [h_loads(layer, 0, kk, 80 + 2 * kk) for kk in range(12)]
        for kk in range(20):
            L = []
            if kk + DIST < 20:
                L += x_loads(layer, 1, kk + DIST, 40 + 2 * (kk + DIST))
            L += extra.get(kk, [])
            if kk == 3:
                L += [lambda: h_flag(layer, 0)]
            if kk == 7:
                L += h_poll_loads(layer, 0)
            if kk == 12:
                L = [lambda: h_poll(layer, 0)] + h_pf(layer, 0) + L
            if kk >= 14:
                while hl and (12 - len(hl)) + 8 < kk and len([x for x in L if isvm(x)]) < 6:
                    L += hl.pop(0)
            sched[kk] = L
        return sched, hl


    k.prof_begin()
    k(f"s_cmp_ge_u32 s2, {k.grid}")
    k.branch("s_cbranch_scc1 main_end", flush=False)
    k("s_load_dwordx2 s[24:25], s[0:1], 96")
    k("s_load_dwordx2 s[26:27], s[0:1], 0")
    if DIAG:
        k("s_mov_b32 s101, 0")
    k("s_getpc_b64 s[60:61]")
    k.raw("mega_pc:")
    k(f"s_sub_u32 s60, s60, mega_pc-{KNAME}")
    k("s_subb_u32 s61, s61, 0")
    k(f"s_mov_b32 s62, main_code_end-{KNAME}")
    k("s_mov_b32 s63, 0x00020000")
    k("s_lshr_b32 s10, s2, 3")
    k("s_lshl_b32 s10, s10, 11")
    k("v_lshrrev_b32 v2, 4, v0")
    k("v_lshlrev_b32 v1, 7, v0")
    k("v_lshl_or_b32 v1, v2, 24, v1")
    k("buffer_load_dword v255, v1, s[60:63], s10 offen")
    in_srd(k, SDBG, 88, 256)
    k("v_lshrrev_b32 v1, 6, v0")
    k("v_readfirstlane_b32 s3, v1")
    k("v_and_b32 v1, 63, v0")
    k("v_and_b32 v2, 15, v0")
    k("v_bfe_u32 v3, v0, 4, 2")
    k(f"v_lshlrev_b32 {VL16}, 4, v1")
    def ffn_ids():
        if MAP == 1:
            k("s_and_b32 s4, s2, 7")
            k("s_lshr_b32 s5, s2, 3")
            k("s_lshr_b32 s7, s5, 3")
            k("s_and_b32 s8, s5, 7")
        elif MAP == 4:
            k("s_and_b32 s4, s2, 4")
            k("s_lshr_b32 s10, s2, 6")
            k("s_add_u32 s4, s4, s10")
            k("s_bfe_u32 s5, s2, 0x30003")
            k("s_and_b32 s10, s2, 3")
            k("s_lshl_b32 s10, s10, 3")
            k("s_add_u32 s5, s5, s10")
            k("s_and_b32 s7, s5, 3")
            k("s_lshr_b32 s8, s5, 2")
        else:
            k("s_and_b32 s4, s2, 6")
            k("s_lshr_b32 s10, s2, 7")
            k("s_add_u32 s4, s4, s10")
            k("s_bfe_u32 s5, s2, 0x40003")
            k("s_and_b32 s10, s2, 1")
            k("s_lshl_b32 s10, s10, 4")
            k("s_add_u32 s5, s5, s10")
            k("s_and_b32 s7, s5, 3")
            k("s_lshr_b32 s8, s5, 2")
        k("s_and_b32 s9, s3, 1")
        k("s_lshr_b32 s14, s3, 1")
        k("s_lshl_b32 s6, s4, 4")
        k("s_lshl_b32 s10, s3, 1")
        k("s_add_u32 s15, s6, s10")
        k("s_lshl_b32 s10, s7, 1")
        k("s_add_u32 s16, s6, s10")
        k("s_add_u32 s16, s16, s9")
        k(f"s_mul_i32 s17, s15, {XRT}")
        k("s_mul_i32 s18, s3, 3072")
        k(f"s_mul_i32 s19, s5, {WGU_M}")
        k("s_add_u32 s19, s19, s18")
        k("s_lshl_b32 s10, s8, 2")
        k("s_add_u32 s10, s10, s3")
        k("s_mul_i32 s10, s10, 61440")
        k("s_lshl_b32 s11, s14, 11")
        k("s_add_u32 s20, s10, s11")
        k("s_xor_b32 s11, s11, 2048")
        k("s_add_u32 s21, s10, s11")
        k("s_add_u32 s22, s10, 4096")
        k.srd(SWS, 24, WSB)
        k.srd(SW, 24, WGUB, WS_WGU)
        k.srd(SWD, 24, WDB, WS_WD)
        k.srd(SSY, 24, SYNCB, WS_SYNC)


    def wpoll_setup(va):
        k(f"v_lshrrev_b32 {va}, 1, v1")
        k(f"v_lshlrev_b32 {va}, 4, {va}")
        k("v_and_b32 v9, 1, v1")
        k("s_lshr_b32 s10, s5, 2")
        k("s_lshl_b32 s10, s10, 1")
        k(f"v_add3_u32 {va}, {va}, v9, s10")
        k("s_lshl_b32 s10, s3, 3")
        k("s_add_u32 s10, s10, 56")
        k("v_add_u32 v9, s10, v1")
        k("v_cmp_gt_u32 vcc, 8, v1")
        k(f"v_cndmask_b32 {va}, v9, {va}, vcc")
        k(f"v_lshlrev_b32 {va}, 7, {va}")
        k(f"v_add_u32 {va}, {SY_PF}, {va}")
        return [ML(f"buffer_load_dwordx2 v[12:13], {va}, {srd(SSY)}, 0 offen sc1", 16)]

    k(f"s_cmp_lt_u32 s2, {NPREP}")
    k.branch("s_cbranch_scc1 main_prep", flush=False)
    saved0 = (list(k.vm), list(k.lg))
    in_srd(k, SA, 8, S * D * 2)
    in_srd(k, SB, 16, S * D * 2)
    in_srd(k, SW, 24, D * 8)
    in_srd(k, SWD, 32, 4096)
    in_srd(k, SSY, 40, D * 2)
    k(f"s_sub_u32 s56, s2, {NPREP}")
    k("s_lshr_b32 s57, s56, 4")
    k("s_and_b32 s58, s56, 15")
    k("s_lshl_b32 s59, s56, 2")
    k("s_add_u32 s60, s59, s3")
    k(f"s_mul_i32 s61, s3, {WREG}")
    k(f"s_add_u32 s61, s61, {CB}")
    k("v_lshrrev_b32 v4, 3, v1")
    k("v_and_b32 v5, 7, v1")
    k("s_lshl_b32 s10, s58, 7")
    k("s_lshl_b32 s11, s3, 5")
    k("s_add_u32 s10, s10, s11")
    k("v_lshlrev_b32 v6, 2, v4")
    k("v_add_u32 v6, s10, v6")
    k("v_mul_u32_u24 v7, 1280, v6")
    k("v_lshl_add_u32 v7, v5, 4, v7")
    k("s_lshl_b32 s12, s57, 7")
    k("v_add_u32 v7, s12, v7")
    stamp("first")
    KR, VR, WR = 16, 44, 60
    for j in (3, 4, 5, 6, 2, 1, 0):
        off = (j - 3) * 1280
        if off < 0:
            k(f"v_add_u32 v8, {off & 0xffffffff:#x}, v7")
            k(f"buffer_load_dwordx4 v[{KR+4*j}:{KR+4*j+3}], v8, {srd(SA)}, 0 offen")
        else:
            k(f"buffer_load_dwordx4 v[{KR+4*j}:{KR+4*j+3}], v7, {srd(SA)}, 0 offen offset:{off}")
    for i in range(4):
        k(f"buffer_load_dwordx4 v[{VR+4*i}:{VR+4*i+3}], v7, {srd(SB)}, 0 offen offset:{i*1280}{NT}")
    k("v_lshlrev_b32 v9, 6, v5")
    k("s_lshl_b32 s12, s57, 9")
    for i in range(4):
        k(f"buffer_load_dwordx4 v[{WR+4*i}:{WR+4*i+3}], v9, {srd(SW)}, s12 offen offset:{16*i}")
    k("s_lshl_b32 s12, s60, 12")
    k(f"s_add_u32 s{SWD}, s{SWD}, s12")
    k(f"s_addc_u32 s{SWD+1}, s{SWD+1}, 0")
    HB = 160

    def h_loads_():
        for p in range(4):
            k(f"buffer_load_dwordx4 v[{HB+8*p+4}:{HB+8*p+7}], {VL16}, {srd(SWD)}, 0 offen offset:{p*1024}")
            k(f"v_add_u32 v9, {(p*1024-8) & 0xffffffff:#x}, {VL16}")
            k(f"buffer_load_dwordx2 v[{HB+8*p+2}:{HB+8*p+3}], v9, {srd(SWD)}, 0 offen")

    if HPOS == 1:
        h_loads_()
    stamp("issued")
    k("s_lshl_b32 s10, s3, 6")
    k("s_sub_u32 s10, 248, s10")
    k("v_lshlrev_b32 v8, 3, v4")
    k("v_sub_u32 v8, s10, v8")
    k("v_lshlrev_b32 v9, 4, v5")
    k("v_xor_b32 v8, v8, v9")
    k("v_lshl_add_u32 v8, v5, 11, v8")
    WF = 80
    for c in range(8):
        unpack(k, f"v{WF+4*c}", f"v{WF+4*c+1}", f"v{WR+2*c}")
        unpack(k, f"v{WF+4*c+2}", f"v{WF+4*c+3}", f"v{WR+2*c+1}")
    k.need([f"v{KR}"])
    stamp("Tld")
    if HPOS == 3:
        h_loads_()
    zl0 = [ML(f"buffer_load_dwordx2 v[12:13], v1, {srd(SDBG)}, 0 offen sc1", 1)]
    emit(zl0[0])
    k.srd(SA, 24, WSB)
    KF, VF, OUT = 112, 128, 136
    for cp in range(4):
        for j in range(7):
            unpack(k, f"v{KF+2*j}", f"v{KF+2*j+1}", f"v{KR+4*j+cp}")
        for i in range(4):
            unpack(k, f"v{VF+2*i}", f"v{VF+2*i+1}", f"v{VR+4*i+cp}")
        for h in range(2):
            c = 2 * cp + h
            O = OUT + 4 * h
            for i in range(4):
                k(f"v_mul_f32 v{O+i}, v{KF+2*(i+0)+h}, v{WF+4*c+3}")
            for t in (2, 1, 0):
                for i in range(4):
                    k(f"v_fmac_f32 v{O+i}, v{KF+2*(i+3-t)+h}, v{WF+4*c+t}")
            for i in range(4):
                k(f"v_mul_f32 v{O+i}, v{O+i}, v{VF+2*i+h}")
            p = 144 + 2 * h
            k(f"v_cvt_pk_bf16_f32 v{p}, v{O+3}, v{O+2}")
            k(f"v_cvt_pk_bf16_f32 v{p+1}, v{O+1}, v{O+0}")
            k(f"ds_write_b64 v8, v[{p}:{p+1}] offset:{c*256}")
    k("s_lshl_b32 s10, s3, 12")
    k("v_lshlrev_b32 v8, 8, v3")
    k("v_add_u32 v8, s10, v8")
    k("s_lshl_b32 s11, s3, 1")
    for jj in range(2):
        k(f"s_add_u32 s12, s11, {jj}")
        k(f"v_xor_b32 v{14+jj}, s12, v2")
        k(f"v_lshl_add_u32 v{14+jj}, v{14+jj}, 4, v8")
    k("v_lshlrev_b32 v9, 12, v3")
    k("v_lshl_add_u32 v9, v2, 4, v9")
    k("s_lshl_b32 s10, s57, 6")
    k("s_lshl_b32 s11, s3, 4")
    k("s_add_u32 s10, s10, s11")
    k("s_lshl_b32 s10, s10, 12")
    k("s_lshl_b32 s11, s58, 8")
    k("s_sub_u32 s11, 3840, s11")
    k("s_add_u32 s10, s10, s11")
    k.wait(lg=0)
    k.barrier()
    stamp("kv")
    for j in range(4):
        k(f"ds_read_b128 v[{16+4*j}:{19+4*j}], v{14+(j>>1)} offset:{j*1024}")
    for j in range(4):
        k(f"buffer_store_dwordx4 v[{16+4*j}:{19+4*j}], v9, {srd(SA)}, s10 offen sc1", tag="kvst")
        k("s_add_u32 s10, s10, 16384")
    if HPOS == 2:
        h_loads_()
    k("s_lshl_b32 s12, s60, 1")
    k("v_mov_b32 v9, s12")
    k(f"buffer_load_ushort v11, v9, {srd(SSY)}, 0 offen")
    ffn_ids()
    k("v_mov_b32 v32, 0")
    k("v_mov_b32 v33, 0")
    k("v_lshlrev_b32 v8, 3, v1")
    k("v_add_u32 v8, s61, v8")
    k(f"ds_write_b64 v8, v[32:33] offset:{UOFF+4096}")
    k("v_bfe_u32 v8, v1, 2, 2")
    k(f"v_mul_u32_u24 v8, {CP}, v8")
    k("v_and_b32 v9, 3, v1")
    k("v_lshl_add_u32 v8, v9, 3, v8")
    k("v_add_u32 v8, s61, v8")
    k("ds_write_b64 v8, v[32:33]")
    k(f"v_add_u32 v8, s61, {VL16}")

    def copies(p):
        T = 48 + 12 * (p & 1)
        b = HB + 8 * p
        seq = [f"v{b+2+i}" for i in range(6)]
        off = 32 + p * 1024
        k(f"ds_write_b128 v8, v[{b+4}:{b+7}] offset:{off}")
        for j in range(4):
            k(f"v_alignbyte_b32 v{T+j}, {seq[2+j]}, {seq[1+j]}, 2")
        k(f"ds_write_b128 v8, v[{T}:{T+3}] offset:{off+CP}")
        for j in range(4):
            k(f"v_mov_b32 v{T+4+j}, {seq[1+j]}")
        k(f"ds_write_b128 v8, v[{T+4}:{T+7}] offset:{off+2*CP}")
        for j in range(4):
            k(f"v_alignbyte_b32 v{T+8+j}, {seq[1+j]}, {seq[j]}, 2")
        k(f"ds_write_b128 v8, v[{T+8}:{T+11}] offset:{off+3*CP}")

    poll(zl0, ["v12"], None, sleep=8, nl=1)
    k("v_readfirstlane_b32 s100, v12")
    k("v_readfirstlane_b32 s101, v13")
    k("s_lshl_b32 s10, s56, 2")
    k("s_add_u32 s10, s10, s3")
    k("s_lshl_b32 s10, s10, 7")
    k(f"s_add_u32 s10, s10, {WS_SYNC + SY_GF}")
    k("v_mov_b32 v14, s100"); k("v_mov_b32 v15, s101")
    k.wait_tag("kvst")
    ML(f"buffer_store_dwordx2 v[14:15], v1, {srd(SWS)}, s10 offen sc1", 1)()
    stamp("gf")
    for p in range(4):
        copies(p)
    k("v_sub_u32 v7, 3, v2")
    k("v_and_b32 v7, 3, v7")
    k("v_add3_u32 v8, v2, v7, 1")
    k("v_lshl_add_u32 v8, v3, 3, v8")
    k("v_lshlrev_b32 v8, 1, v8")
    k(f"v_mul_u32_u24 v7, {CP}, v7")
    k("v_add3_u32 v4, v7, v8, s61")
    k("v_lshlrev_b32 v7, 5, v2")
    k("v_lshlrev_b32 v8, 4, v3")
    k("v_sub_u32 v8, v8, v7")
    k(f"v_add_u32 v8, {UOFF+480}, v8")
    k("v_add_u32 v5, s61, v8")
    k("v_lshlrev_b32 v11, 16, v11")
    k("v_lshlrev_b32 v6, 7, v1")
    k("s_lshl_b32 s12, s57, 13")
    k(f"s_add_u32 s12, s12, {WS_SYNC + SY_GF}")
    gl = [f"buffer_load_dwordx2 v[12:13], v6, {srd(SWS)}, s12 offen sc1"]
    k(gl[0])
    poll(gl, ["v12"], None, sleep=1, eq=SN)
    stamp("gp")
    k(f"s_add_u32 m0, s61, {UOFF}")
    k("s_lshl_b32 s12, s60, 12")
    for p in (3, 2, 1, 0):
        k(f"buffer_load_dwordx4 {VL16}, {srd(SWS)}, s12 offen offset:{p*1024} sc1 lds", tag="u")
    AB = [16, 48]
    CACC = 80
    BR = 112

    def rdA(n):
        I = n if n < 8 else n - 8
        L = []
        for r in range(8):
            i = 8 * I + r
            b = AB[n & 1] + 4 * r
            L.append(f"ds_read_b64 v[{b}:{b+1}], v4 offset:{64*i}")
            L.append(f"ds_read_b64 v[{b+2}:{b+3}], v4 offset:{64*i+8}")
        return L

    def bslot(C):
        return C if C < 4 else 7 - C

    def rdB(C):
        return [f"ds_read_b128 v[{BR+32*bslot(C)+4*r}:{BR+32*bslot(C)+4*r+3}], v5 offset:{64*(56-(8*C-r))}" for r in range(8)]

    k("v_lshlrev_b32 v6, 3, v3")
    k("v_add_u32 v6, v6, v2")
    k("v_sub_u32 v6, 15, v6")
    k("v_lshrrev_b32 v7, 16, v11")
    k("v_and_b32 v8, 1, v6")
    k("v_cmp_eq_u32 vcc, 1, v8")
    k("v_cndmask_b32 v7, v7, v11, vcc")
    k("v_ashrrev_i32 v6, 1, v6")
    for d in range(4):
        k(f"v_cmp_eq_u32 vcc, {d}, v6")
        k("v_cndmask_b32 v8, 0, v7, vcc")
        k(f"v_accvgpr_write_b32 a{240+d}, v8")
    STG = [2112, CP + 2112]
    SBQ = [240, BR + 8]
    QB = [248, BR]
    k("s_lshl_b32 s10, s3, 11")
    k("v_lshlrev_b32 v6, 3, v1")
    k("v_add_u32 v6, s10, v6")
    k(f"v_mul_u32_u24 v7, {XRT}, v3")
    k("v_lshl_add_u32 v7, v2, 4, v7")
    k(f"s_mul_i32 s57, s3, {16*XRT}")
    k("s_lshr_b32 s10, s56, 1")
    k("s_lshl_b32 s10, s10, 8")
    k("s_add_u32 s57, s57, s10")
    k("s_and_b32 s10, s56, 1")
    k("s_lshl_b32 s10, s10, 3")
    k("s_add_u32 s57, s57, s10")
    k(f"s_mul_i32 s58, s3, {8*XBLK}")
    k("s_lshl_b32 s10, s56, 8")
    k("s_add_u32 s58, s58, s10")
    k("s_mul_i32 s59, s3, 160")
    k("s_add_u32 s59, s59, s56")
    k("s_lshl_b32 s59, s59, 7")
    k(f"s_add_u32 s59, s59, {SY_CF}")
    pcl = wpoll_setup("v0")
    k("s_lshl_b32 s10, s3, 11")
    k(f"s_add_u32 s62, s10, {SY_QF}")
    k("v_lshlrev_b32 v8, 7, v2")
    k("v_lshl_add_u32 v8, v3, 13, v8")
    qfl = [ML(f"buffer_load_dwordx2 v[12:13], v8, {srd(SSY)}, s62 offen sc1", 32)]

    def q_ld(hf):
        L = [f"s_mov_b32 s13, {WS_QST + hf*8192}"]
        for it in range(4):
            L += [f"buffer_load_dwordx2 v[{SBQ[hf]+2*it}:{SBQ[hf]+2*it+1}], v6, {srd(SWS)}, s13 offen offset:{it*512} sc1",
                  f"s_add_u32 s12, s57, {WS_QX + (64*hf + 4*it)*XRT}",
                  f"buffer_load_dwordx2 v[{QB[hf]+2*it}:{QB[hf]+2*it+1}], v7, {srd(SWS)}, s12 offen sc1"]
        return L

    def addr2():
        return ["v_lshlrev_b32 v11, 5, v2", "v_lshl_add_u32 v11, v3, 3, v11", "v_add_u32 v11, s61, v11",
                "v_bfe_u32 v8, v1, 2, 2", f"v_mul_u32_u24 v8, {WREG}, v8", "v_and_b32 v9, 3, v1",
                "v_lshl_add_u32 v8, v9, 3, v8", "v_lshl_add_u32 v8, v3, 5, v8", "s_lshl_b32 s10, s3, 9",
                f"s_add_u32 s10, s10, {CB}", "v_add_u32 v8, s10, v8",
                "v_and_b32 v0, 1, v3", "v_lshrrev_b32 v9, 1, v3", "v_lshl_add_u32 v9, v0, 1, v9",
                f"v_mul_u32_u24 v9, {XBLK}, v9", "v_lshl_add_u32 v9, v2, 4, v9"]

    def stage_blk(c):
        a_ = CACC + 4 * c
        return [f"v_cvt_pk_bf16_f32 v{a_}, v{a_}, v{a_+1}", f"v_cvt_pk_bf16_f32 v{a_+1}, v{a_+2}, v{a_+3}",
                f"ds_write_b64 v11, v[{a_}:{a_+1}] offset:{STG[c>>2] + (c&3)*512}"]

    def sync():
        k.wait(lg=0)
        k.barrier()

    def out_half(hf, YB, XO, T):
        L = [f"ds_read_b64_tr_b16 v[{YB+2*it}:{YB+2*it+1}], v8 offset:{STG[hf] + it*128}" for it in range(4)]
        for it in range(4):
            y0, q0, st = YB + 2 * it, QB[hf] + 2 * it, SBQ[hf] + 2 * it
            for d in range(2):
                L += [f"v_lshlrev_b32 v{T+2}, 16, v{q0+d}", f"v_and_b32 v{T+3}, 0xffff0000, v{q0+d}",
                      f"v_lshlrev_b32 v{T}, 16, v{y0+d}", f"v_and_b32 v{T+1}, 0xffff0000, v{y0+d}",
                      f"v_fma_f32 v{T+4}, v{T+2}, v{st+1}, -v{st}", f"v_fma_f32 v{T+5}, v{T+3}, v{st+1}, -v{st}",
                      f"v_fmac_f32 v{T+2}, v{T+4}, v{T}", f"v_fmac_f32 v{T+3}, v{T+5}, v{T+1}",
                      f"v_cvt_pk_bf16_f32 v{XO+2*it+d}, v{T+2}, v{T+3}"]
            if it & 1:
                for o, base in ((YB + 2 * (it - 1), WS_Y), (XO + 2 * (it - 1), WS_X1)):
                    L += [f"v_permlane16_swap_b32 v{o}, v{o+2}", f"v_permlane16_swap_b32 v{o+1}, v{o+3}",
                          f"s_add_u32 s12, s58, {base + (32*hf + (it-1)*2)*XBLK}",
                          (f"buffer_store_dwordx4 v[{o}:{o+3}], v9, {srd(SWS)}, s12 offen sc1", f"cst{hf}")]
        return L

    wl = []
    for p in range(6):
        wl += wgu_dma(p)
    for i in range(NE1):
        wl += wd_load(i)
    k.wait(lg=0)
    a0, b0 = rdA(0), rdB(0)
    for x in a0:
        k(x)
    k.wait_tag("u")
    stamp("ready")
    for x in b0:
        k(x)
    started = set()
    early = []
    side = []
    tot = 0
    for n in range(12):
        I = n if n < 8 else n - 8
        Cs = [C for C in (range(4) if n < 8 else range(4, 8)) if C + I <= 7]
        pend = rdA(n + 1) if n < 11 else []
        bpend = {5: rdB(4), 6: rdB(5), 7: rdB(6), 8: rdB(7)}.get(n) or []
        nm = 8 * len(Cs)
        cnt = 0
        if n == PPN - 1:
            emit(pcl[0])
        if n == PPN:
            poll(pcl, ["v12"], None, sleep=1, nl=16, eq=SN)
            stamp("pp")
        if n == QPN - 2:
            early = list(qfl)
        if n == 6:
            side += addr2()[:3]
        if n == QPN:
            poll(qfl, ["v12"], None, sleep=1, nl=32, eq=SN)
            early = q_ld(0)
            side += addr2()[3:]
        if n == 7:
            for c in range(4):
                side += stage_blk(c)
            side += [sync] + out_half(0, CACC + 2, CACC + 10, 12) if False else [sync]
        if n == 9:
            early = early + q_ld(1)
            side += out_half(0, CACC, CACC + 8, BR + 16) + stage_blk(4)
        if n == 10:
            side += stage_blk(5)
        if n == 11:
            side += stage_blk(6)
        for C in Cs:
            c = C + I
            nb = rdB(C + 1) if (n == 0 and C < 3) else []
            for r in range(8):
                if nb:
                    k(nb.pop(0))
                a = AB[n & 1] + 4 * r
                b = BR + 32 * bslot(C) + 4 * r
                acc = f"v[{CACC+4*c}:{CACC+4*c+3}]"
                src = acc if c in started else "0"
                started.add(c)
                k(f"v_mfma_f32_16x16x32_bf16 {acc}, v[{a}:{a+3}], v[{b}:{b+3}], {src}")
                if I == 0 and r == 0:
                    k(f"v_mfma_f32_16x16x32_bf16 {acc}, a[240:243], v[{b}:{b+3}], {acc}")
                cnt += 1
                tot += 1
                while pend and (16 - len(pend)) * max(nm - 4, 4) < cnt * 16:
                    k(pend.pop(0))
                if bpend and cnt % 2 == 0:
                    k(bpend.pop(0))
                if early:
                    if tot % 2 == 0:
                        emit_one_vmem(early)
                elif n >= PPN and tot % EVERY == 0 and tot <= LASTW:
                    emit_one_vmem(wl)
                for _ in range(2):
                    if side and not (early and isinstance(side[0], str) and side[0].startswith("s_add_u32 s12")):
                        x = side.pop(0)
                        emit(x)
                        if isinstance(x, str) and x.startswith("s_add_u32 s12"):
                            emit(side.pop(0))
        for x in pend + bpend:
            k(x)
    stamp("mfma")
    for x in early + stage_blk(7) + side:
        emit(x)
    sync()
    for x in out_half(1, 16, 24, 32):
        emit(x)
    stamp("cst")
    k.wait_tag("cst0")
    ML(f"buffer_store_dwordx2 v[14:15], v1, {srd(SSY)}, s59 offen sc1", 1)()
    k(f"s_add_u32 s59, s59, {4*160*128}")
    for _ in range(NB):
        emit_one_vmem(wl)
    k.wait_tag("cst1")
    ML(f"buffer_store_dwordx2 v[14:15], v1, {srd(SSY)}, s59 offen sc1", 1)()
    stamp("cf")
    print("weight loads after cf:", sum(1 for x in wl if isvm(x)))
    for x in wl:
        emit(x)
    k.wait(lg=0)
    k.flush_hazards()
    k.branch("s_branch main_join", flush=False)

    k.label("main_prep", flush=False)
    k.vm, k.lg = list(saved0[0]), list(saved0[1])
    k("s_or_b32 s10, s2, s3")
    k("s_cmp_lg_u32 s10, 0")
    k.branch("s_cbranch_scc1 main_nonce_done", flush=False)
    k("s_memrealtime s[56:57]")
    k("s_or_b32 s56, s56, 1")
    k("v_mov_b32 v12, s56")
    k("v_mov_b32 v13, s57")
    ML(f"buffer_store_dwordx2 v[12:13], v1, {srd(SDBG)}, 0 offen sc1", 1)()
    k.label("main_nonce_done", flush=False)
    k.vm, k.lg = list(saved0[0]), list(saved0[1])
    k("s_and_b32 s10, s2, 1")
    k("s_lshl_b32 s10, s10, 3")
    k("s_add_u32 s10, s10, 56")
    k("s_cmp_lt_u32 s2, 64")
    k("s_cselect_b32 s10, s10, 72")
    k(f"s_load_dwordx2 s[{SA}:{SA+1}], s[0:1], s10")
    k(f"s_mov_b32 s{SA+2}, {D*F*2}")
    k(f"s_mov_b32 s{SA+3}, 0x00020000")
    k(f"v_mov_b32 v14, {OOB:#x}")
    k("s_mov_b32 s58, 0x05040100")
    k("s_mov_b32 s59, 0x07060302")
    k("v_mov_b32 v12, 0x3f803f80")
    ffn_ids()
    k("v_mov_b32 v244, 0")
    zl = [ML(f"buffer_load_dwordx2 v[246:247], v1, {srd(SDBG)}, 0 offen sc1", 1)]

    def q_job():
        if QPOS == 1:
            q_loads()
        emit(zl[0])
        for i in range(4):
            k(f"v_mov_b32 v{240+i}, 0")
        k.srd(SB, 24, SY_HF, WS_SYNC)
        k("s_lshl_b32 s12, s2, 13")
        k("v_lshlrev_b32 v204, 4, v0")
        for i in range(2):
            k(f"buffer_store_dwordx4 v[240:243], v204, {srd(SB)}, s12 offen sc1")
            k("s_add_u32 s12, s12, 4096")

    QR = 80

    def q_loads():
        k.srd(SB, 26, S * D * 2)
        k("s_mul_i32 s62, s3, 96")
        k("s_add_u32 s62, s62, s2")
        k("s_cmp_lt_u32 s62, 128")
        k("s_cselect_b32 s63, 0, 0x40000000")
        k(f"s_mul_i32 s56, s62, {XRT}")
        k("s_add_u32 s56, s56, s63")
        k("v_mul_u32_u24 v11, 1280, v2")
        k("v_lshl_add_u32 v11, v3, 4, v11")
        for i in range(20):
            k(f"buffer_load_dwordx4 v[{QR+4*i}:{QR+4*i+3}], v11, {srd(SB)}, s56 offen offset:{64*i}")

    def q_flag():
        poll(zl, ["v246"], None, sleep=1, nl=1)
        k("v_readfirstlane_b32 s100, v246")
        k("v_readfirstlane_b32 s101, v247")

    def item_idx(magic, n):
        for ps in range(2):
            o, ch = f"v{4+2*ps}", f"v{5+2*ps}"
            k(f"v_add_u32 v8, {256*ps}, v0")
            k(f"v_mul_u32_u24 {o}, {magic}, v8")
            k(f"v_lshrrev_b32 {o}, 16, {o}")
            k(f"v_mul_u32_u24 {ch}, {n}, {o}")
            k(f"v_sub_u32 {ch}, v8, {ch}")

    def item_loads(pitch):
        k(f"v_mul_u32_u24 v8, {8*pitch}, v4")
        k("v_lshl_add_u32 v8, v5, 4, v8")
        k(f"v_mul_u32_u24 v9, {8*pitch}, v6")
        k("v_lshl_add_u32 v9, v7, 4, v9")
        k("v_cmp_gt_u32 vcc, 224, v0")
        k("v_cndmask_b32 v9, v14, v9, vcc")
        stamp("issued")
        for ps in range(2):
            k("s_mov_b32 s11, s10")
            for i in range(8):
                k(f"buffer_load_dwordx4 v[{16+32*ps+4*i}:{19+32*ps+4*i}], v{8+ps}, {srd(SA)}, s11 offen{NT}")
                if i < 7:
                    k(f"s_add_u32 s11, s11, {pitch}")
        stamp("Tld")
        q_job()

    def stage(magic, sh, n, blk, opart, pairb, npair, second):
        for ps in range(2):
            o, ch = f"v{4+2*ps}", f"v{5+2*ps}"
            k(f"v_mul_u32_u24 v161, {magic}, {ch}")
            k(f"v_lshrrev_b32 v161, {sh}, v161")
            k(f"v_mul_u32_u24 v162, {n}, v161")
            k(f"v_sub_u32 {ch}, {ch}, v162")
            opart(o)
            k(f"v_mul_u32_u24 v161, {blk}, v161")
            k("v_add_u32 v160, v160, v161")
            k(f"v_lshrrev_b32 v161, 2, {ch}")
            k(f"v_mul_u32_u24 v161, {pairb}, v161")
            k("v_add_u32 v160, v160, v161")
            k(f"v_and_b32 v161, 3, {ch}")
            k("v_lshlrev_b32 v162, 6, v161")
            k("v_lshlrev_b32 v163, 7, v161")
            k(f"v_cmp_gt_u32 vcc, {npair}, {ch}")
            k("v_cndmask_b32 v162, v163, v162, vcc")
            k(f"v_add_u32 {o}, v160, v162")
            k("v_mov_b32 v162, 64")
            k(f"v_mov_b32 v163, {second}")
            k("v_cndmask_b32 v162, v162, v163, vcc")
            k(f"v_add_u32 {ch}, {o}, v162")
        k("v_cmp_gt_u32 vcc, 224, v0")
        k("v_mov_b32 v160, 61440")
        k("v_cndmask_b32 v6, v160, v6, vcc")
        k("v_cndmask_b32 v7, v160, v7, vcc")
        for ps in range(2):
            src = 16 + 32 * ps
            for e in range(8):
                o = 160 + 4 * e
                for p in range(4):
                    k(f"v_perm_b32 v{o+p}, v{src+4*(2*p+1)+e//2}, v{src+4*(2*p)+e//2}, s{58+(e&1)}")
                k(f"ds_write_b128 v{4+2*ps+(e>>2)}, v[{o}:{o+3}] offset:{(e&3)*16}")
        q_flag()
        if QPOS == 3:
            q_loads()
        k.wait(lg=0)
        k.barrier()
        stamp("mfma")


    k("s_cmp_ge_u32 s2, 64")
    k.branch("s_cbranch_scc1 main_prep_wd", flush=False)
    sv = (list(k.vm), list(k.lg))
    item_idx(2731, 24)
    k("s_bfe_u32 s60, s2, 0x30001")
    k("s_lshr_b32 s61, s2, 4")
    k(f"s_mul_i32 s10, s61, {160*3072}")
    k("s_mul_i32 s11, s60, 384")
    k("s_add_u32 s10, s10, s11")
    item_loads(3072)

    def op_wgu(o):
        k(f"v_lshrrev_b32 v160, 2, {o}")
        k("v_mul_u32_u24 v160, 3072, v160")
        k(f"v_and_b32 v162, 3, {o}")
        k("v_lshl_add_u32 v160, v162, 8, v160")
    stage(43, 8, 6, 15360, op_wgu, 2048, 4, 1024)
    k("s_mul_i32 s13, s3, 15360")
    k(f"v_add_u32 v4, s13, {VL16}")
    k("s_lshl_b32 s12, s60, 2")
    k("s_add_u32 s12, s12, s3")
    k(f"s_mul_i32 s10, s12, {WGU_M}")
    k("s_mul_i32 s11, s61, 30720")
    k("s_add_u32 s10, s10, s11")
    k("s_and_b32 s13, s2, 1")
    k("s_mul_i32 s11, s13, 3072")
    k("s_add_u32 s10, s10, s11")
    k(f"s_add_u32 s10, s10, {WS_WGU}")
    for j in range(15):
        k(f"ds_read_b128 v[{16+4*j}:{19+4*j}], v4 offset:{j*1024}")
    for t in range(3):
        k(f"v_mov_b32 v{5+t}, 0")
    for j in range(15):
        k(f"buffer_store_dwordx4 v[{16+4*j}:{19+4*j}], {VL16}, {srd(SWS)}, s10 offen offset:{(j%3)*1024} sc1")
        if j % 3 == 2:
            k("s_add_u32 s10, s10, 6144")
        for p in range(4):
            k(f"v_dot2c_f32_bf16 v{5+j%3}, v{16+4*j+p}, v12")
    for t in range(3):
        xsum16(k, f"v{5+t}", "v8")
        xsum32(k, f"v{5+t}", "v8")
    k("v_cmp_eq_u32 vcc, 1, v3")
    k("v_cndmask_b32 v5, v5, v6, vcc")
    k("v_cmp_eq_u32 vcc, 2, v3")
    k("v_cndmask_b32 v5, v5, v7, vcc")
    k("v_lshlrev_b32 v6, 2, v1")
    k("v_cmp_gt_u32 vcc, 48, v1")
    k("v_cndmask_b32 v6, v14, v6, vcc")
    k("s_lshl_b32 s10, s12, 11")
    k("s_lshl_b32 s11, s61, 9")
    k("s_add_u32 s10, s10, s11")
    k("s_mul_i32 s11, s13, 192")
    k("s_add_u32 s10, s10, s11")
    k(f"s_add_u32 s10, s10, {WS_CS}")
    k(f"buffer_store_dword v5, v6, {srd(SWS)}, s10 offen sc1")

    if QPOS == 2:
        q_loads()
        k.wait(vm=20)
    else:
        k.wait(vm=0)
    k.flush_hazards()
    k.branch("s_branch main_prep_pub", flush=False)
    k.label("main_prep_wd", flush=False)
    k.vm, k.lg = sv
    item_idx(820, 80)
    k("s_sub_u32 s60, s2, 64")
    k(f"s_mul_i32 s10, s60, {48*1280}")
    item_loads(1280)

    def op_wd(o):
        k(f"v_lshlrev_b32 v160, 8, {o}")
    stage(205, 11, 10, 7680, op_wd, 3072, 8, 1536)
    k("s_mul_i32 s13, s3, 15360")
    k(f"v_add_u32 v4, s13, {VL16}")
    k("v_lshrrev_b32 v6, 1, v3")
    k("v_and_b32 v7, 1, v3")
    k("v_mul_u32_u24 v5, 7680, v6")
    k("v_lshl_add_u32 v5, v7, 8, v5")
    k("v_lshl_add_u32 v5, v2, 4, v5")
    k("v_add_u32 v5, s13, v5")
    k("s_mul_i32 s11, s60, 6")
    k("v_add_u32 v8, s11, v3")
    k("v_add3_u32 v9, v7, s11, 4")
    for v in ("v8", "v9"):
        k(f"v_lshrrev_b32 v13, 2, {v}")
        k("v_mul_u32_u24 v13, 5120, v13")
        k(f"v_and_b32 {v}, 3, {v}")
        k(f"v_lshl_add_u32 {v}, {v}, 8, v13")
        k(f"v_lshl_add_u32 {v}, v2, 4, {v}")
    k(f"v_mul_u32_u24 v13, {48*5120}, v6")
    k("v_add_u32 v9, v9, v13")
    k(f"s_mul_i32 s10, s3, {2*48*5120}")
    k(f"s_add_u32 s10, s10, {WS_WD}")
    plan = []
    for t in range(5):
        plan += [("v4", t * 1536, "v8", t * 1024), ("v4", 7680 + t * 1536, "v8", 48 * 5120 + t * 1024), ("v5", 1024 + t * 1536, "v9", t * 1024)]
    for j, (la, lo, ga, go) in enumerate(plan):
        k(f"ds_read_b128 v[{16+4*j}:{19+4*j}], {la} offset:{lo}")
    for j, (la, lo, ga, go) in enumerate(plan):
        k(f"s_add_u32 s11, s10, {go}")
        k(f"buffer_store_dwordx4 v[{16+4*j}:{19+4*j}], {ga}, {srd(SWS)}, s11 offen sc1")

    if QPOS == 2:
        q_loads()
        k.wait(vm=20)
    else:
        k.wait(vm=0)
    k.flush_hazards()
    k.label("main_prep_pub", flush=False)
    k.barrier()
    k("s_lshl_b32 s10, s2, 7")
    k(f"s_add_u32 s10, s10, {SY_PF}")
    k("s_cmp_eq_u32 s3, 0")
    k("s_cselect_b32 s10, s10, 0x40000000")
    k("v_mov_b32 v204, 0")
    ML(f"buffer_store_dwordx2 v[246:247], v1, {srd(SSY)}, s10 offen sc1", 1)()
    stamp("cf")
    k(f"s_add_u32 s12, s56, {WS_QX}")
    k("v_mov_b32 v200, 0")
    k("v_mov_b32 v201, 0")
    for i in range(20):
        if i % 4 == 0 and i:
            k("s_add_u32 s12, s12, 4096")
        k(f"buffer_store_dwordx4 v[{QR+4*i}:{QR+4*i+3}], {VL16}, {srd(SWS)}, s12 offen offset:{(i%4)*1024} sc1")
        for d in range(4):
            k(f"v_dot2c_f32_bf16 v200, v{QR+4*i+d}, v12")
            k(f"v_dot2c_f32_bf16 v201, v{QR+4*i+d}, v{QR+4*i+d}")
    for v in ("v200", "v201"):
        xsum16(k, v, "v205")
        xsum32(k, v, "v205")
    k(f"v_mul_f32 v200, {f2u(1.0/D)}, v200")
    k(f"v_mul_f32 v201, {f2u(1.0/D)}, v201")
    k("v_fma_f32 v201, -v200, v200, v201")
    k("v_max_f32 v201, 0, v201")
    k(f"v_add_f32 v201, {f2u(EPS)}, v201")
    k("v_rsq_f32 v203, v201")
    k("v_mul_f32 v202, v200, v203")
    k("s_lshl_b32 s57, s62, 7")
    k("s_add_u32 s57, s57, s63")
    k(f"s_add_u32 s12, s57, {WS_QST}")
    k("v_lshlrev_b32 v205, 3, v1")
    ML(f"buffer_store_dwordx2 v[202:203], v205, {srd(SWS)}, s12 offen sc1", 16)()
    k(f"s_add_u32 s12, s57, {SY_QF}")
    k.wait(vm=0)
    ML(f"buffer_store_dwordx2 v[246:247], v1, {srd(SSY)}, s12 offen sc1", 1)()
    stamp("cst")
    pl = wpoll_setup("v8")
    emit(pl[0])
    poll(pl, ["v12"], None, sleep=1, nl=16, eq=SN)
    stamp("pp")
    for p in range(10):
        for x in wgu_dma(p):
            emit(x)
    for i in range(NEP):
        for x in wd_load(i):
            emit(x)
    k.wait(lg=0)
    k.flush_hazards()

    k.label("main_join", flush=False)
    k.vm = [(set(), "unk")] * 63
    k("s_load_dwordx2 s[26:27], s[0:1], 80")
    k(f"v_add_u32 {VL16B}, 61440, {VL16}")
    k.srd(SX, 24, XSPAN + XFB, WS_X1)
    k.srd(SH, 24, HSPAN + HFB, WS_H)
    k.srd(SY_, 24, XFB, WS_Y)
    k(f"s_mul_i32 s56, s15, {HRT}")
    k("s_mul_i32 s10, s5, 1536")
    k("s_add_u32 s56, s56, s10")
    k("s_mul_i32 s10, s3, 12288")
    k(f"s_mul_i32 s57, s16, {HRT}")
    k("s_add_u32 s57, s57, s10")
    k("s_xor_b32 s11, s16, 1")
    k(f"s_mul_i32 s58, s11, {HRT}")
    k("s_add_u32 s58, s58, s10")
    k(f"s_mul_i32 s59, s16, {XRT}")
    k("s_mul_i32 s10, s8, 2560")
    k("s_add_u32 s59, s59, s10")
    k("v_and_b32 v204, 1, v3")
    k("v_lshrrev_b32 v205, 1, v3")
    k(f"v_mul_u32_u24 {VH2}, {HRT}, v204")
    k("v_lshlrev_b32 v206, 4, v2")
    k("v_lshl_add_u32 v206, v205, 8, v206")
    k(f"v_add_u32 {VH2}, {VH2}, v206")
    k(f"v_lshl_add_u32 {VT4}, v204, 3, v206")
    k("s_lshl_b32 s10, s14, 31")
    k(f"v_or_b32 {VT4S}, s10, {VT4}")
    k("s_lshl_b32 s10, s16, 4")
    k(f"v_add_u32 {VROW}, s10, v2")
    k(f"v_lshlrev_b32 {VGR}, 3, v2")
    k("v_cmp_eq_u32 vcc, 0, v3")
    k(f"v_mov_b32 v204, {OOB:#x}")
    k(f"v_cndmask_b32 {VGW}, v204, {VGR}, vcc")
    k(f"v_lshl_add_u32 {VQ128}, v3, 7, {VGR}")
    k(f"v_lshl_add_u32 {VGR}, v3, 9, {VGR}")
    k("v_cmp_eq_u32 vcc, 0, v1")
    k(f"v_cndmask_b32 {VFLAG}, v204, v1, vcc")
    k("s_lshl_b32 s10, s4, 3")
    k("s_add_u32 s10, s10, s7")
    k("s_lshl_b32 s10, s10, 5")
    k("s_lshl_b32 s11, s3, 3")
    k("s_add_u32 s10, s10, s11")
    k(f"v_and_b32 {VFPOLL}, 7, v1")
    k(f"v_add_u32 {VFPOLL}, s10, {VFPOLL}")
    k(f"v_lshlrev_b32 {VFPOLL}, 7, {VFPOLL}")
    k(f"v_lshlrev_b32 {VXP}, 4, v2")
    k(f"v_lshl_add_u32 {VXP}, v3, 9, {VXP}")
    k("s_lshr_b32 s10, s16, 1")
    k(f"s_mul_i32 s62, s10, {XBLK}")
    k("s_mul_i32 s10, s8, 5120")
    k("s_add_u32 s62, s62, s10")
    k("s_lshl_b32 s10, s9, 3")
    k("s_add_u32 s62, s62, s10")
    k("s_lshr_b32 s10, s5, 2")
    k("s_lshl_b32 s11, s4, 3")
    k("s_add_u32 s63, s10, s11")
    k(f"s_mul_i32 s60, s63, {XBLK}")
    k("s_mul_i32 s10, s3, 10240")
    k("s_add_u32 s60, s60, s10")
    k("s_and_b32 s61, s5, 3")
    k("s_lshl_b32 s10, s61, 6")
    k("s_add_u32 s60, s60, s10")
    k("v_and_b32 v188, 3, v1")
    k("v_lshrrev_b32 v189, 2, v1")
    k("v_lshlrev_b32 v189, 8, v189")
    k("v_lshl_add_u32 v189, v188, 4, v189")
    k("v_cmp_gt_u32 vcc, 32, v1")
    k("v_cndmask_b32 v190, v204, v189, vcc")
    k("s_lshl_b32 s10, s5, 11")
    k(f"s_add_u32 s10, s10, {WS_CS}")
    k("v_lshlrev_b32 v197, 3, v1")
    for i in range(4):
        k(f"buffer_load_dwordx2 v[{208+2*i}:{209+2*i}], v197, {srd(SWS)}, s10 offen offset:{i*512} sc1")
    k.srd(SO, 26, XFB)
    k("s_mul_i32 s10, s4, 160")
    k("s_mul_i32 s11, s3, 40")
    k("s_add_u32 s10, s10, s11")
    k("s_lshl_b32 s10, s10, 7")
    k(f"s_add_u32 s10, s10, {SY_CF}")
    k("s_mul_i32 s11, s3, 3072")
    k(f"s_add_u32 s11, s11, {SY_PF - 40*128}")
    k("v_mov_b32 v205, s10")
    k("v_mov_b32 v206, s11")
    k("v_cmp_gt_u32 vcc, 40, v1")
    k("v_cndmask_b32 v205, v206, v205, vcc")
    k("v_lshl_add_u32 v205, v1, 7, v205")
    k(f"v_add_u32 v197, {LC}, v197")
    k("v_pk_add_f32 v[208:209], v[208:209], v[210:211]")
    k("v_pk_add_f32 v[212:213], v[212:213], v[214:215]")
    k("v_pk_add_f32 v[208:209], v[208:209], v[212:213]")
    k(f"s_cmp_ge_u32 s2, {NPREP}")
    k.branch("s_cbranch_scc1 main_nogate", flush=False)
    svg = (list(k.vm), list(k.lg))
    c1 = [ML(f"buffer_load_dwordx2 v[206:207], v205, {srd(SSY)}, 0 offen sc1", 1)]
    emit(c1[0])
    poll(c1, ["v206"], None, sleep=6, nl=1, eq=SN)
    k.label("main_nogate", flush=False)
    k.vm, k.lg = svg
    cl = [f"buffer_load_dwordx2 v[206:207], v205, {srd(SSY)}, 0 offen sc1"]
    emit(cl[0])
    poll(cl, ["v206"], None, sleep=1, eq=SN)
    k.vm = []
    k.barrier()
    stamp("join")
    k("ds_write_b64 v197, v[208:209]")
    for kk in range(4):
        for x in x_loads(0, 0, kk, 2 * kk):
            emit(x)
    SR = 192
    for i in range(3):
        k(f"s_add_u32 s12, s60, {i*4096}")
        k(f"buffer_load_dwordx4 v[{SR+4*i}:{SR+4*i+3}], v{189 if i < 2 else 190}, {srd(SX)}, s12 offen sc1")
    for kk in range(4, DIST):
        for x in x_loads(0, 0, kk, 2 * kk):
            emit(x)

    k("s_lshl_b32 s10, s3, 13")
    k(f"s_add_u32 s10, s10, {LR}")
    k(f"v_add_u32 {VRW}, s10, {VL16}")
    k("s_cmp_eq_u32 s14, 0")
    k("s_cselect_b32 s26, 1.0, 0")
    k("s_mov_b32 s27, s26")
    k("s_lshl_b32 s60, s16, 4")
    k("s_lshl_b32 s13, s8, 1")
    k("s_add_u32 s60, s60, s13")
    k("s_add_u32 s60, s60, s14")
    k("s_lshl_b32 s60, s60, 7")

    def phase_s():
        for r in range(2):
            s_, q_ = TMP + 2 * r, TMP + 2 * r + 1
            first = True
            for i in range(3):
                for d in range(2):
                    unpack(k, "v204", "v205", f"v{SR+4*i+2*r+d}")
                    if first:
                        k(f"v_add_f32 v{s_}, v204, v205")
                        k(f"v_mul_f32 v{q_}, v204, v204")
                        first = False
                    else:
                        k(f"v_add_f32 v{s_}, v{s_}, v204")
                        k(f"v_add_f32 v{s_}, v{s_}, v205")
                        k(f"v_fmac_f32 v{q_}, v204, v204")
                    k(f"v_fmac_f32 v{q_}, v205, v205")
        for v in range(TMP, TMP + 4):
            k(f"v_add_f32_dpp v{v}, v{v}, v{v} row_ror:4 row_mask:0xf bank_mask:0xf")
        for v in range(TMP, TMP + 4):
            k(f"v_add_f32_dpp v{v}, v{v}, v{v} row_ror:8 row_mask:0xf bank_mask:0xf")
        for v in range(TMP, TMP + 4):
            xsum16(k, f"v{v}", "v204")
            xsum32(k, f"v{v}", "v204")
        k(f"v_or_b32 v{TMP+1}, 0x80000000, v{TMP+1}")
        k(f"v_or_b32 v{TMP+3}, 0x80000000, v{TMP+3}")
        k("s_lshl_b32 s12, s63, 3")
        k("s_add_u32 s12, s12, s3")
        k("s_lshl_b32 s12, s12, 7")
        k("s_lshl_b32 s13, s61, 5")
        k("s_add_u32 s12, s12, s13")
        k(f"s_add_u32 s12, s12, {SY_ST1}")
        k("v_lshlrev_b32 v204, 3, v1")
        set_exec(4)
        k(f"buffer_store_dwordx2 v[{TMP}:{TMP+1}], v204, {srd(SSY)}, s12 offen sc1")
        k(f"buffer_store_dwordx2 v[{TMP+2}:{TMP+3}], v204, {srd(SSY)}, s12 offen offset:512 sc1")
        k("s_mov_b64 exec, -1")

    sched = {}
    wi = NE1
    for kk in range(20):
        L = []
        if kk < 4:
            L += wgu_dma(6 + kk)
        if kk + DIST < 20:
            L += x_loads(0, 0, kk + DIST, 2 * (kk + DIST))
        else:
            kb = kk + DIST - 20
            L += x_loads(0, 1, kb, 40 + 2 * kb)
        if kk >= 20 - NWA and wi < 60:
            L += wd_load(wi)
            wi += 1
        if kk == 2:
            L = [phase_s] + L
        if kk == 14:
            L = st1_loads(0, TMP + 24) + L
        sched[kk] = L
    g1_main(0, sched, first=True, xp=True)
    stamp("g1a")
    stats1(0, STA)

    def take(n):
        nonlocal wi
        L = []
        for _ in range(n):
            if wi < 60:
                L += wd_load(wi)
                wi += 1
        return L
    g1_epilogue(0, 0, STA, take(NWE1))
    stamp("e1a")
    extra = {}
    for kk in range(12):
        extra[kk] = take((NWB * (kk + 1)) // 12 - (NWB * kk) // 12)
    extra[12] = st1_loads(1, TMP + 24) + res_loads(0)
    sched, rest = g1b_sched(0, extra)
    g1_main(40, sched, xp=True)
    stamp("g1b")
    for L in rest:
        for x in L:
            emit(x)
    stats1(1, STB)
    g1_epilogue(0, 1, STB, take(NWE2))
    print('Wd loads left for G2(A):', 60 - wi)
    stamp("e1b")

    NH0 = int(os.environ.get("NH0", "5"))

    def g2a(layer):
        sc = {kk: take(5) for kk in range(12)}
        assert wi == 60
        sc[HFK] = sc[HFK] + [lambda: h_flag(layer, 1)]
        sc[HPK] = sc[HPK] + h_poll_loads(layer, 1)
        g2_main(80, sc, X1R[0], X2[0])
        stamp(f"g2a{layer}")

        def mid():
            h_poll(layer, 1)
            stamp(f"ph{layer}")
            for kk in range(NH0):
                for x in h_loads(layer, 1, kk, 2 * kk):
                    emit(x)
        g2_reduce(X2[0], mid)

    def g2b_sched(layer, extra):
        sched = {}
        for kk in range(12):
            L = []
            if kk + NH0 < 12:
                L += h_loads(layer, 1, kk + NH0, 2 * (kk + NH0))
            sched[kk] = L + extra.get(kk, [])
        return sched

    g2a(0)
    part_stats(X2[0], 0, SY_ST2)
    stamp("r2a")

    def fin_a():
        finalize(0, X2[0], G2R)
        part_calc(X2[0], 244)
    g2_main(0, g2b_sched(0, {2: res_loads(1), FK - 3: st2_loads(0, G2R), FK: [fin_a]}), X1R[1], X2[1])
    stamp("g2b")
    g2_reduce(X2[1], lambda: part_pub(244, 0, SY_ST3, pre_wait="xst"))
    part_stats(X2[1], 1, SY_ST2)
    stamp("s3a")
    for x in st3_loads(0, TMP):
        emit(x)
    stats3(0, STA)
    stamp("p3a")
    for kk in range(DIST):
        for x in x_loads(1, 0, kk, 2 * kk):
            emit(x)
        if kk == 3:
            for x in st2_loads(1, G2R):
                emit(x)
    finalize(1, X2[1], G2R)
    part_calc(X2[1], 246)
    stamp("fin")
    sched = {}
    xb = [x_loads(1, 1, j, 40 + 2 * j) for j in range(DIST)]
    for kk in range(20):
        L = []
        if kk + DIST < 20:
            L += x_loads(1, 0, kk + DIST, 2 * (kk + DIST))
        if kk == 3:
            L = L + [lambda: part_pub(246, 1, SY_ST3, pre_wait="xst")]
        if kk == S3K - 4:
            L = L + st3_loads(1, TMP)
        if kk == S3K:
            L = [lambda: stats3(1, STB)] + L
        if kk >= S3K:
            for _ in range(-(-DIST // (20 - S3K))):
                if xb and (DIST - len(xb)) + 8 < kk:
                    L += xb.pop(0)
        sched[kk] = L
    assert not xb
    g1_main(0, sched)
    stamp("g1a'")
    g1_epilogue(1, 0, STA)
    stamp("e1a'")
    sched, rest = g1b_sched(1, {})
    g1_main(40, sched)
    stamp("g1b'")
    for L in rest:
        for x in L:
            emit(x)
    g1_epilogue(1, 1, STB)
    stamp("e1b'")
    g2a(1)
    out_store(0, X2[0])
    stamp("r2a'")
    g2_main(0, g2b_sched(1, {}), X1R[1], X2[1])
    g2_reduce(X2[1])
    out_store(1, X2[1])
    if DIAG:
        in_srd(k, 96, 88, 256)
        k("s_cmp_eq_u32 s101, 0")
        k("s_cselect_b32 s10, 0x40000000, 0")
        k("s_lshl_b32 s11, s2, 8")
        k("s_or_b32 s11, s11, s101")
        k("s_lshl_b32 s12, s3, 16")
        k("s_or_b32 s11, s11, s12")
        k("v_mov_b32 v0, s11")
        k("s_and_b32 s12, s101, 0xe")
        k("s_lshl_b32 s12, s12, 1")
        k("v_mov_b32 v1, s12")
        ML("buffer_store_dword v0, v1, s[96:99], s10 offen", 1)()
    if os.environ.get("DBGST"):
        k.stamp("end")
        k.wait(vm=0, lg=0)
        in_srd(k, 96, 88, 256)
        k("s_lshl_b32 s10, s2, 2")
        k("s_add_u32 s10, s10, s3")
        k(f"s_cmp_eq_u32 s10, {int(os.environ['DBGST'])*4}")
        k("s_cselect_b32 s10, 0, 0x40000000")
        k("v_mov_b32 v0, 0")
        for i in range(1, len(k.stamps)):
            k(f"s_sub_u32 s11, s{64+2*i}, s64")
            k("v_mov_b32 v1, s11")
            ML(f"buffer_store_dword v1, v0, s[96:99], s10 offen offset:{4*i}", 1)()
        print(k.stamps)
    else:
        k.prof_end(2, 24, 3, names="main")
    k.label("main_end", flush=False)
    k("s_endpgm")
    k.raw("main_code_end:")
    return k


DOC = """; ---------------------------------------------------------------------------------------------
; ---------------------------------------------------------------------------------------------
"""

if __name__ == "__main__":
    if os.environ.get("PROF"):
        Kern.PROF = True
    main = gen_main()
    out = sys.argv[1] if len(sys.argv) > 1 else "v24.s"
    txt = build_file(HEADER, [main], [main]).replace(f"; @launch kernel={KNAME} ", "; @launch ")
    txt = txt.replace(".text\n", ".text\n" + DOC, 1)
    open(out, "w").write(txt)
    json.dump(PROFINFO, open(out + ".prof.json", "w"))
    print("instrs", main.nins, "vgpr", main.maxv + 1, "agpr", main.maxa + 1, "sgpr", main.maxs + 1, "lds", main.lds)
```

```python
import sys, os, json
sys.path.insert(0, "dev")
from asmdsl import *
from gen1 import S, D, F, EPS, f2u, unpack, reduce16, xsum16, xsum32, HEADER, XFB, HFB, WDB

KNAME = "interleave_layers__ssm_conv_h3__swiglu_ffn__prompt_kernel"
WS_KVT = 0x0000000
WS_QST = 0x0300000
WS_WGU = 0x0400000
WGU_M = 20 * 6144
WGUB = 32 * WGU_M
WS_CS = 0x0800000
WS_WD = 0x0900000
WS_Y = 0x0C00000
WS_X1 = 0x0F00000
WS_H = 0x1200000
WS_X3 = 0x1D00000
WS_H2 = 0x2000000
WS_SYNC = 0x2800000
SY_ST1 = 0
SY_ST2 = 0x10000
SY_ST3 = 0x50000
SY_HF = 0x90000
SY_CF_OLD = 0x110000
SY_PF = 0x124000
SY_QF = 0x128000
SY_GF = 0x12C000
SY_QF = 0x140000
SY_CF = 0x150000
SYNCB = 0x178000
SN = "s[100:101]"
WS_QX = 0x2C00000
XBLK = 40960
WSB = 0x3000000
XRT = 20480
HRT = 49152
OOB = 0x80000000
LOG2E = 1.4426950408889634
SPIN_MAX = 1 << 18
NPREP = 96
STAMPS = os.environ.get("STAMPS", "").split(",")
NP1 = int(os.environ.get("NP1", "4"))
NE1 = int(os.environ.get("NE1", "32"))
PPN = int(os.environ.get("PPN", "2"))
LASTW = int(os.environ.get("LASTW", "240"))
NB = int(os.environ.get("NB", "12"))
NE2 = int(os.environ.get("NE2", "0"))
MAP = int(os.environ.get("MAP", "2"))
PF = int(os.environ.get("PF", "0"))
FK = int(os.environ.get("FK", "7"))
HFK = int(os.environ.get("HFK", "4"))
S3K = int(os.environ.get("S3K", "15"))
NWA = int(os.environ.get("NWA", "10"))
NWE1 = int(os.environ.get("NWE1", "12"))
NWB = int(os.environ.get("NWB", "14"))
NWE2 = int(os.environ.get("NWE2", "12"))
HPK = int(os.environ.get("HPK", "9"))
PREW = int(os.environ.get("PREW", "1"))
DIAG = int(os.environ.get("DIAG", "0"))
QPN = int(os.environ.get("QPN", "8"))
QPOS = int(os.environ.get("QPOS", "2"))
NEP = int(os.environ.get("NEP", "40"))
NT = " nt" if os.environ.get("NT") else ""
HPOS = int(os.environ.get("HPOS", "2"))
HAK = int(os.environ.get("HAK", "3"))
PBK = int(os.environ.get("PBK", "3"))
QTOUCH = int(os.environ.get("QTOUCH", "0"))
EVERY = int(os.environ.get("EVERY", "5"))


def srd(n):
    return f"s[{n}:{n+3}]"


def mkstamp(k):
    def stamp(n):
        if n in STAMPS:
            if hasattr(k, "stamps") and n in k.stamps:
                if Kern.PROF:
                    i = k.stamps.index(n)
                    k(f"{Kern.CLK} s[{64+2*i}:{65+2*i}]")
            else:
                k.stamp(n)
    return stamp


def in_srd(k, slot, karg_off, nbytes):
    k(f"s_load_dwordx2 s[{slot}:{slot+1}], s[0:1], {karg_off}")
    k(f"s_mov_b32 s{slot+2}, {nbytes}")
    k(f"s_mov_b32 s{slot+3}, 0x00020000")


def gen_pre():
    k = Kern("pre_kernel", lds=8192, grid=384, block=128)
    stamp = mkstamp(k)
    SA, SB, SC_, SD_, SWS = 28, 32, 36, 40, 48
    k.prof_begin()
    k(f"s_cmp_ge_u32 s2, {k.grid}")
    k.branch("s_cbranch_scc1 pre_end", flush=False)
    k("s_load_dwordx2 s[24:25], s[0:1], 96")
    k("s_cmp_ge_u32 s2, 320")
    k.branch("s_cbranch_scc1 pre_q", flush=False)
    saved0 = (list(k.vm), list(k.lg))
    in_srd(k, SA, 8, S * D * 2)
    in_srd(k, SB, 16, S * D * 2)
    in_srd(k, SC_, 24, D * 8)
    in_srd(k, SD_, 32, D * 4096)
    k("v_lshrrev_b32 v1, 6, v0")
    k("v_readfirstlane_b32 s3, v1")
    k("v_and_b32 v1, 63, v0")
    k("s_lshr_b32 s57, s2, 5")
    k("s_and_b32 s58, s2, 31")
    k("v_lshrrev_b32 v4, 3, v1")
    k("v_and_b32 v5, 7, v1")
    k("s_lshl_b32 s10, s58, 6")
    k("s_lshl_b32 s11, s3, 5")
    k("s_add_u32 s10, s10, s11")
    k("v_lshlrev_b32 v6, 2, v4")
    k("v_add_u32 v6, s10, v6")
    k("v_mul_u32_u24 v7, 1280, v6")
    k("v_lshl_add_u32 v7, v5, 4, v7")
    k("s_lshl_b32 s12, s57, 7")
    k("v_add_u32 v7, s12, v7")
    KR, VR, WR = 16, 44, 60
    k("v_lshlrev_b32 v9, 6, v5")
    k("s_lshl_b32 s12, s57, 9")
    for j in (3, 4, 5, 6):
        k(f"buffer_load_dwordx4 v[{KR+4*j}:{KR+4*j+3}], v7, {srd(SA)}, 0 offen offset:{(j-3)*1280}")
    for i in range(4):
        k(f"buffer_load_dwordx4 v[{VR+4*i}:{VR+4*i+3}], v7, {srd(SB)}, 0 offen offset:{i*1280}{NT}")
    for i in range(4):
        k(f"buffer_load_dwordx4 v[{WR+4*i}:{WR+4*i+3}], v9, {srd(SC_)}, s12 offen offset:{16*i}")
    for j in (2, 1, 0):
        k(f"v_add_u32 v8, {((j-3)*1280) & 0xffffffff:#x}, v7")
        k(f"buffer_load_dwordx4 v[{KR+4*j}:{KR+4*j+3}], v8, {srd(SA)}, 0 offen")
    k.srd(SWS, 24, WSB)
    k("s_lshl_b32 s10, s3, 6")
    k("s_sub_u32 s10, 120, s10")
    k("v_lshlrev_b32 v8, 3, v4")
    k("v_sub_u32 v8, s10, v8")
    k("v_lshlrev_b32 v9, 4, v5")
    k("v_xor_b32 v8, v8, v9")
    k("v_lshl_add_u32 v8, v5, 10, v8")
    k("s_lshl_b32 s10, s3, 12")
    k("v_lshlrev_b32 v11, 7, v4")
    k("v_add_u32 v11, s10, v11")
    k("s_lshl_b32 s11, s3, 2")
    for j in range(4):
        k(f"s_add_u32 s12, s11, {j}")
        k(f"v_xor_b32 v{12+j}, s12, v5")
        k(f"v_lshl_add_u32 v{12+j}, v{12+j}, 4, v11")
    k("v_lshl_add_u32 v9, v4, 12, v9")
    k("s_lshl_b32 s10, s57, 6")
    k("s_lshl_b32 s11, s3, 5")
    k("s_add_u32 s10, s10, s11")
    k("s_lshl_b32 s10, s10, 12")
    k("s_lshl_b32 s11, s58, 7")
    k("s_sub_u32 s11, 3968, s11")
    k("s_add_u32 s10, s10, s11")
    WF = 80
    for c in range(8):
        unpack(k, f"v{WF+4*c}", f"v{WF+4*c+1}", f"v{WR+2*c}")
        unpack(k, f"v{WF+4*c+2}", f"v{WF+4*c+3}", f"v{WR+2*c+1}")
    k.need([f"v{KR}"])
    stamp("Tld")
    if HPOS == 3:
        h_loads_()
    lab = k.newlabel("pc")
    k("s_getpc_b64 s[44:45]")
    k.raw(lab + ":")
    k(f"s_add_u32 s44, s44, main_kernel-{lab}")
    k("s_addc_u32 s45, s45, 0")
    k("s_mov_b32 s46, main_code_end-main_kernel")
    k("s_mov_b32 s47, 0x00020000")
    k("v_lshlrev_b32 v2, 7, v0")
    k(f"s_sub_u32 s12, s2, {NPREP}")
    k("s_lshl_b32 s12, s12, 14")
    k("s_and_b32 s12, s12, 0x7fffffff")
    k(f"buffer_load_dword v150, v2, {srd(SD_)}, s12 offen")
    k("s_lshr_b32 s12, s2, 3")
    k("s_lshl_b32 s12, s12, 14")
    k("buffer_load_dword v151, v2, s[44:47], s12 offen")
    KF, VF, OUT = 112, 128, 136
    for cp in range(4):
        for j in range(7):
            unpack(k, f"v{KF+2*j}", f"v{KF+2*j+1}", f"v{KR+4*j+cp}")
        for i in range(4):
            unpack(k, f"v{VF+2*i}", f"v{VF+2*i+1}", f"v{VR+4*i+cp}")
        for h in range(2):
            c = 2 * cp + h
            O = OUT + 4 * h
            for i in range(4):
                k(f"v_mul_f32 v{O+i}, v{KF+2*(i+0)+h}, v{WF+4*c+3}")
            for t in (2, 1, 0):
                for i in range(4):
                    k(f"v_fmac_f32 v{O+i}, v{KF+2*(i+3-t)+h}, v{WF+4*c+t}")
            for i in range(4):
                k(f"v_mul_f32 v{O+i}, v{O+i}, v{VF+2*i+h}")
            p = 144 + 2 * h
            k(f"v_cvt_pk_bf16_f32 v{p}, v{O+3}, v{O+2}")
            k(f"v_cvt_pk_bf16_f32 v{p+1}, v{O+1}, v{O+0}")
            k(f"ds_write_b64 v8, v[{p}:{p+1}] offset:{c*128}")
    k.wait(lg=0)
    k.barrier()
    stamp("Tkv")
    for j in range(4):
        k(f"ds_read_b128 v[{16+4*j}:{19+4*j}], v{12+j} offset:{j*1024}")
    for j in range(4):
        k(f"buffer_store_dwordx4 v[{16+4*j}:{19+4*j}], v9, {srd(SWS)}, s10 offen{PSC}")
        k("s_add_u32 s10, s10, 32768")
    for i in range(4):
        k(f"v_mov_b32 v{32+i}, 0")
    k.srd(SA, 24, SYNCB, WS_SYNC)
    k("s_lshl_b32 s12, s2, 12")
    k("v_lshlrev_b32 v8, 4, v0")
    for i in range(2):
        k(f"buffer_store_dwordx4 v[32:35], v8, {srd(SA)}, s12 offen offset:{i*2048}{PSC}")
    k.prof_end(0, 24, 3, names="pre")
    k("s_endpgm")
    k.label("pre_q", flush=False)
    k.vm, k.lg = saved0
    in_srd(k, SA, 0, S * D * 2)
    k("v_lshrrev_b32 v1, 6, v0")
    k("v_readfirstlane_b32 s3, v1")
    k("v_and_b32 v1, 63, v0")
    k("v_and_b32 v2, 15, v0")
    k("v_bfe_u32 v3, v0, 4, 2")
    k("s_sub_u32 s10, s2, 320")
    k("s_lshl_b32 s10, s10, 1")
    k("s_add_u32 s10, s10, s3")
    k(f"s_mul_i32 s11, s10, {XRT}")
    k("v_mul_u32_u24 v4, 1280, v2")
    k("v_lshl_add_u32 v4, v3, 4, v4")
    QR = 16
    for i in range(20):
        k(f"buffer_load_dwordx4 v[{QR+4*i}:{QR+4*i+3}], v4, {srd(SA)}, s11 offen offset:{64*i}")
    k.srd(SWS, 24, WSB)
    k("v_lshlrev_b32 v5, 4, v1")
    k(f"s_add_u32 s12, s11, {WS_QX}")
    k("v_mov_b32 v6, 0x3f803f80")
    k("v_mov_b32 v8, 0")
    k("v_mov_b32 v9, 0")
    for i in range(20):
        if i % 4 == 0 and i:
            k("s_add_u32 s12, s12, 4096")
        k(f"buffer_store_dwordx4 v[{QR+4*i}:{QR+4*i+3}], v5, {srd(SWS)}, s12 offen offset:{(i%4)*1024}{PSC}")
        for d in range(4):
            k(f"v_dot2c_f32_bf16 v8, v{QR+4*i+d}, v6")
            k(f"v_dot2c_f32_bf16 v9, v{QR+4*i+d}, v{QR+4*i+d}")
    for v in ("v8", "v9"):
        xsum16(k, v, "v7")
        xsum32(k, v, "v7")
    k(f"v_mul_f32 v8, {f2u(1.0/D)}, v8")
    k(f"v_mul_f32 v9, {f2u(1.0/D)}, v9")
    k("v_fma_f32 v9, -v8, v8, v9")
    k("v_max_f32 v9, 0, v9")
    k(f"v_add_f32 v9, {f2u(EPS)}, v9")
    k("v_rsq_f32 v11, v9")
    k("v_mul_f32 v10, v8, v11")
    k("s_lshl_b32 s12, s10, 7")
    k(f"s_add_u32 s12, s12, {WS_QST}")
    k("v_lshlrev_b32 v7, 3, v2")
    k(f"buffer_store_dwordx2 v[10:11], v7, {srd(SWS)}, s12 offen")
    k.label("pre_end", flush=False)
    k("s_endpgm")
    return k


PSC = os.environ.get("PSC", "")

def gen_main():
    LW = 0
    LR = 131072
    LC = 122880
    CP = 4160
    UOFF = 4 * CP
    WREG = 4 * CP + 4608
    CB = 163840 - 4 * WREG
    k = Kern(KNAME, lds=163840, grid=256, block=256)
    RING, ACC, WB, TMP = 16, 112, 160, 184
    X1R = [216, 222]
    YR = [228, 234]
    STA, STB = [4, 6], [240, 242]
    X2 = [WB, WB + 12]
    G2R = TMP + 8
    DIST = int(os.environ.get("DIST", "8"))
    VL16, VL16B, VH2, VT4, VT4S, VROW, VGW, VGR, VQ128, VFLAG, VFPOLL = (
        "v10", "v11", "v8", "v9", "v12", "v13", "v14", "v15", "v0", "v252", "v253")
    VL128 = "v251"
    VXP = "v250"
    VRW = "v249"
    LQ = 131072
    SX, SW, SH, SWD, SSY, SO, SY_ = 28, 32, 36, 40, 44, 48, 52
    SA, SB, SWS, SDBG = 28, 36, 48, 52
    XSPAN = WS_X3 - WS_X1
    HSPAN = WS_H2 - WS_H

    stamp = mkstamp(k)

    def ring(i):
        return RING + 4 * (i % 24)

    def emit(x):
        if callable(x):
            x()
        elif isinstance(x, tuple):
            k(x[0], tag=x[1])
        else:
            k(x)

    def set_exec(nl):
        m = (1 << nl) - 1
        if nl <= 32:
            k(f"s_mov_b64 exec, {m:#x}") if nl <= 6 else (k(f"s_mov_b32 exec_lo, {m:#x}"), k("s_mov_b32 exec_hi, 0"))
        else:
            k(f"s_mov_b32 exec_hi, {m >> 32:#x}")

    class ML:
        def __init__(self, text, nl):
            self.text, self.nl = text, nl

        def __call__(self):
            set_exec(self.nl)
            k(self.text)
            k("s_mov_b64 exec, -1")

    def isvm(x):
        if isinstance(x, ML):
            return True
        if callable(x):
            return False
        return (x[0] if isinstance(x, tuple) else x).startswith("buffer_")

    def emit_one_vmem(L):
        while L:
            x = L.pop(0)
            emit(x)
            if isvm(x):
                return

    def x_loads(layer, b, kk, slot0):
        if layer == 0:
            return [f"s_add_u32 s10, s17, {kk*2048 + b*4*XBLK}"] + [
                f"buffer_load_dwordx4 v[{ring(slot0+e)}:{ring(slot0+e)+3}], {VXP}, {srd(SX)}, s10 offen offset:{e*256} sc1"
                for e in range(2)]
        so = kk * 1024 + b * 8 * XRT + (XSPAN if layer else 0)
        L = []
        for tn in range(2):
            L.append(f"s_add_u32 s10, s17, {so + tn*XRT}")
            L.append(f"buffer_load_dwordx4 v[{ring(slot0+tn)}:{ring(slot0+tn)+3}], {VL16}, {srd(SX)}, s10 offen sc1")
        return L

    def h_loads(layer, b, kk, slot0):
        so = kk * 1024 + b * 8 * HRT + (HSPAN if layer else 0)
        L = []
        for tn in range(2):
            L.append(f"s_add_u32 s10, s{57+tn}, {so}")
            L.append(f"buffer_load_dwordx4 v[{ring(slot0+tn)}:{ring(slot0+tn)+3}], {VL16}, {srd(SH)}, s10 offen sc1")
        return L

    def x_pf(layer, b):
        if not PF:
            return []
        return [f"s_add_u32 s10, s26, {b*8*XRT + (XSPAN if layer else 0)}",
                ML(f"buffer_load_dword a240, {VL128}, {srd(SX)}, s10 offen sc1", 20)]

    def h_pf(layer, b):
        if not PF:
            return []
        return [f"s_add_u32 s10, s27, {b*8*HRT + (HSPAN if layer else 0)}",
                ML(f"buffer_load_dword a241, {VL128}, {srd(SH)}, s10 offen sc1", 48)]

    def wgu_dma(p):
        return [f"s_add_u32 m0, s18, {LW + p*12288}", f"s_add_u32 s11, s19, {p*12288}"] + [
            (f"buffer_load_dwordx4 {VL16}, {srd(SW)}, s11 offen offset:{f*1024} sc1 lds", f"w{p}") for f in range(3)]

    def wd_load(i):
        kk, lt = divmod(i, 5)
        base = "s20" if lt < 2 else "s21" if lt < 4 else "s22"
        return [f"s_add_u32 s11, {base}, {kk*5120}",
                f"buffer_load_dwordx4 a[{4*i}:{4*i+3}], {VL16}, {srd(SWD)}, s11 offen offset:{(lt&1)*1024 if lt < 4 else 0} sc1"]

    def poll(loads, tags, tmp, sleep=1, ge=None, nl=64, eq=None):
        def check():
            if nl < 64:
                k(f"v_mov_b32 {tags[0]}, {tags[0]}")
                set_exec(nl)
            check0()
            if nl < 64:
                k("s_cmp_eq_u64 vcc, exec")
                k("s_mov_b64 exec, -1")
            else:
                k("s_cmp_eq_u64 vcc, -1")

        def check0():
            if eq is not None:
                r_ = int(tags[0][1:])
                k(f"v_cmp_eq_u64 vcc, {eq}, v[{r_}:{r_+1}]")
            elif ge is not None:
                k(f"v_cmp_le_u32 vcc, {ge}, {tags[0]}")
            elif len(tags) == 1:
                k(f"v_cmp_ne_u32 vcc, 0, {tags[0]}")
            else:
                k(f"v_min_u32 {tmp}, {tags[0]}, {tags[1]}")
                for t in tags[2:]:
                    k(f"v_min_u32 {tmp}, {tmp}, {t}")
                k(f"v_cmp_ne_u32 vcc, 0, {tmp}")
        ok = k.newlabel("ok")
        lp = k.newlabel("spin")
        check()
        k.branch(f"s_cbranch_scc1 {ok}", flush=False)
        vm, lg = list(k.vm), list(k.lg)
        k("s_mov_b32 s23, 0")
        k.label(lp, flush=False)
        k(f"s_sleep {sleep}")
        for l in loads:
            emit(l)
        k.wait(vm=0)
        k("s_add_u32 s23, s23, 1")
        k(f"s_cmp_ge_u32 s23, {SPIN_MAX}")
        if DIAG:
            k(f"s_cselect_b32 s101, {k.uid}, s101")
        k.branch(f"s_cbranch_scc1 {ok}", flush=False)
        check()
        k.branch(f"s_cbranch_scc0 {lp}", flush=False)
        k.flush_hazards()
        k.label(ok, flush=False)
        k.vm, k.lg = vm, lg

    def finish_stats(vsum, vnsq, dst):
        k(f"v_mul_f32 v{dst}, {f2u(-1.0/D)}, {vsum}")
        k(f"v_mul_f32 {vnsq}, {f2u(-1.0/D)}, {vnsq}")
        k(f"v_fma_f32 {vnsq}, -v{dst}, v{dst}, {vnsq}")
        k(f"v_max_f32 {vnsq}, 0, {vnsq}")
        k(f"v_add_f32 {vnsq}, {f2u(EPS)}, {vnsq}")
        k(f"v_rsq_f32 v{dst+1}, {vnsq}")

    def wread(kk, f):
        reg, off = (VL16, kk * 6144) if kk < 10 else (VL16B, (kk - 10) * 6144)
        return f"ds_read_b128 v[{WB+4*f}:{WB+4*f+3}], {reg} offset:{LW+off+f*1024}"

    def xswap(slot):
        a_, b_ = ring(slot), ring(slot + 1)
        k(f"v_swap_b32 v{a_+2}, v{b_}")
        k(f"v_swap_b32 v{a_+3}, v{b_+1}")

    def g1_main(slot0, sched, first=False, xp=False):
        for f in range(6):
            k(wread(0, f))
        if xp:
            xswap(slot0)
        for kk in range(20):
            L = sched.get(kk, [])
            if first and kk == 11:
                k.wait_tag("w9")
                k.barrier()
            nv = sum(1 for x in L if isvm(x))
            done = 0
            for f in range(6):
                for tn in range(2):
                    a = ACC + 8 * f + 4 * tn
                    acc = f"v[{a}:{a+3}]"
                    xr = ring(slot0 + 2 * kk + tn)
                    k(f"v_mfma_f32_16x16x32_bf16 {acc}, v[{WB+4*f}:{WB+4*f+3}], v[{xr}:{xr+3}], {acc if kk else 0}")
                    if tn == 0:
                        while done < nv and done * 6 < (f + 1) * nv - 2:
                            emit_one_vmem(L)
                            done += 1
                        if PREW and not (kk == 19 and f == 5):
                            regs = [f"v{WB+4*((f+1)%6)}"]
                            if f == 5 and not xp:
                                regs += [f"v{ring(slot0+2*kk+2)}", f"v{ring(slot0+2*kk+3)}"]
                            k.need(regs)
                    elif PREW:
                        while L and isinstance(L[0], str) and L[0].startswith("s_add_u32 s10") and done < nv and done * 6 < (f + 2) * nv - 2:
                            emit(L.pop(0))
                if xp and f == 3 and kk < 19:
                    xswap(slot0 + 2 * kk + 2)
                if kk < 19:
                    k(wread(kk + 1, f))
                else:
                    if f == 0:
                        k("v_lshlrev_b32 v255, 4, v3")
                        k(f"v_add_u32 v255, {LC}, v255")
                    k(f"ds_read_b128 v[{WB+4*f}:{WB+4*f+3}], v255 offset:{f*64}")
            for x in L:
                emit(x)

    def g1_epilogue(layer, b, ST, fill=None):
        fill = fill if fill is not None else []
        k(f"s_add_u32 s12, s56, {b*8*HRT + (HSPAN if layer else 0)}")
        O2 = TMP + 20
        for tn in range(2):
            st = ST[tn]
            c1 = TMP + 28
            k(f"v_mul_f32 v{c1}, {f2u(-LOG2E)}, v{st+1}")
            k(f"v_mul_f32 v{c1+1}, v{st+1}, v{st+1}")
            k(f"v_rcp_f32 v{c1+1}, v{c1+1}")
            T = TMP
            for f in range(6):
                a = ACC + 8 * f + 4 * tn
                for i in (0, 2):
                    k(f"v_pk_fma_f32 v[{a+i}:{a+i+1}], v[{WB+4*f+i}:{WB+4*f+i+1}], v[{st}:{st+1}], v[{a+i}:{a+i+1}] op_sel:[0,0,0] op_sel_hi:[1,0,1]")
            for f in range(3):
                g = ACC + 8 * f + 4 * tn
                for i in (0, 2):
                    k(f"v_pk_mul_f32 v[{T+4*f+i}:{T+4*f+i+1}], v[{g+i}:{g+i+1}], v[{c1}:{c1+1}] op_sel:[0,0] op_sel_hi:[1,0]")
            for e in range(12):
                k(f"v_exp_f32 v{T+e}, v{T+e}")
                if e % 4 == 0:
                    emit_one_vmem(fill)
            for f in range(3):
                g = ACC + 8 * f + 4 * tn
                u = g + 24
                for i in (0, 2):
                    k(f"v_pk_mul_f32 v[{g+i}:{g+i+1}], v[{g+i}:{g+i+1}], v[{u+i}:{u+i+1}]")
            for e in range(0, 12, 2):
                k(f"v_pk_fma_f32 v[{T+e}:{T+e+1}], v[{T+e}:{T+e+1}], v[{c1}:{c1+1}], v[{c1}:{c1+1}] op_sel:[0,1,1] op_sel_hi:[1,1,1]")
            for e in range(12):
                k(f"v_rcp_f32 v{T+e}, v{T+e}")
                if e % 4 == 0:
                    emit_one_vmem(fill)
            for f in range(3):
                g = ACC + 8 * f + 4 * tn
                for i in (0, 2):
                    k(f"v_pk_mul_f32 v[{T+4*f+i}:{T+4*f+i+1}], v[{T+4*f+i}:{T+4*f+i+1}], v[{g+i}:{g+i+1}]")
            O = TMP + 12 + 4 * tn
            for p in range(4):
                k(f"v_cvt_pk_bf16_f32 v{O+p}, v{T+2*p}, v{T+2*p+1}")
            for p in range(2):
                k(f"v_cvt_pk_bf16_f32 v{O2+2*tn+p}, v{T+8+2*p}, v{T+9+2*p}")
            if tn:
                k(f"s_add_u32 s13, s12, {HRT}")
            k(f"buffer_store_dwordx4 v[{O}:{O+3}], {VL16}, {srd(SH)}, s{12+tn} offen sc1", tag="hst")
        k(f"v_permlane16_swap_b32 v{O2}, v{O2+2}")
        k(f"v_permlane16_swap_b32 v{O2+1}, v{O2+3}")
        k(f"buffer_store_dwordx4 v[{O2}:{O2+3}], {VH2}, {srd(SH)}, s12 offen offset:1024 sc1", tag="hst")
        for x in fill:
            emit(x)

    def h_flag(layer, b):
        k("s_lshl_b32 s12, s4, 3")
        k("s_add_u32 s12, s12, s3")
        k("s_lshl_b32 s12, s12, 5")
        k("s_add_u32 s12, s12, s5")
        k("s_lshl_b32 s12, s12, 7")
        k(f"s_add_u32 s12, s12, {SY_HF + layer*0x40000 + b*0x4000}")
        k("v_mov_b32 v254, s100"); k("v_mov_b32 v255, s101")
        k.wait_tag("hst")
        k(f"buffer_store_dwordx2 v[254:255], {VFLAG}, {srd(SSY)}, s12 offen sc1")
        stamp(f"hf{layer}{b}")

    def h_poll_loads(layer, b):
        return [f"s_mov_b32 s13, {SY_HF + layer*0x40000 + b*0x4000}",
                ML(f"buffer_load_dwordx2 v[{TMP+30}:{TMP+31}], {VFPOLL}, {srd(SSY)}, s13 offen sc1", 8)]

    def h_poll(layer, b):
        poll(h_poll_loads(layer, b), [f"v{TMP+30}"], None, nl=8, eq=SN)

    TAILK = int(os.environ.get("TAILK", "3"))
    RESF = TMP

    def g2_main(slot0, sched, res, dst):
        def areg(lt, tn):
            if tn == 0 and lt in (0, 1, 4):
                return dst + 4 * (lt if lt < 2 else 2)
            return ACC + 8 * lt + 4 * tn

        def mf(kk, lt, tn):
            a = areg(lt, tn)
            acc = f"v[{a}:{a+3}]"
            hr = ring(slot0 + 2 * kk + tn)
            wr = 4 * (5 * kk + lt)
            k(f"v_mfma_f32_16x16x32_bf16 {acc}, a[{wr}:{wr+3}], v[{hr}:{hr+3}], {acc if kk else 0}")

        for kk in range(12 - TAILK):
            L = sched.get(kk, [])
            nv = sum(1 for x in L if isvm(x))
            done = 0
            idx = 0
            if kk == 5:
                k.barrier()
            for tn in range(2):
                for lt in range(5):
                    mf(kk, lt, tn)
                    idx += 1
                    while done < nv and done * 10 < idx * nv - 5:
                        emit_one_vmem(L)
                        done += 1
            for x in L:
                emit(x)
        L = []
        for kk in range(12 - TAILK, 12):
            L += sched.get(kk, [])
        order = [(0, 1, 0), (1, 1, 1), (2, 0, 2), (3, 0, 3), (2, 1, 4), (3, 1, 5), (4, 1, 7), (4, 0, 6), (0, 0, None), (1, 0, None)]
        pend = []
        fillv = []
        for d in range(6):
            fillv += [f"v_lshlrev_b32 v{RESF+2*d}, 16, v{res+d}", f"v_and_b32 v{RESF+2*d+1}, 0xffff0000, v{res+d}"]
        fillv += [f"v_xor_b32 v{TMP+12+x}, {x << 13}, {VRW}" for x in range(1, 4)]
        for i, (lt, tn, slot) in enumerate(order):
            for kk in range(12 - TAILK, 12):
                mf(kk, lt, tn)
                if i >= 5 and fillv:
                    k(fillv.pop(0))
            if L:
                emit_one_vmem(L)
            if slot is not None:
                a = areg(lt, tn)
                pend.append((i, f"ds_write_b128 {VRW}, v[{a}:{a+3}] offset:{slot*1024}"))
            while pend and pend[0][0] <= i - 2:
                k(pend.pop(0)[1])
        for x in L + fillv:
            emit(x)
        for _, x in pend:
            k(x)

    def g2_reduce(dst, mid=None):
        if mid:
            mid()
        k.wait(lg=0)
        k.barrier()
        n = 0
        for x in range(1, 4):
            for sl_ in (2 * (x - 1), 2 * (x - 1) + 1, 6 + (x & 1)):
                k(f"ds_read_b128 v[{ACC+4*n}:{ACC+4*n+3}], v{TMP+12+x} offset:{sl_*1024}")
                n += 1
        for i in range(0, 12, 2):
            k(f"v_pk_add_f32 v[{dst+i}:{dst+i+1}], v[{dst+i}:{dst+i+1}], v[{RESF+i}:{RESF+i+1}]")
        for x in range(3):
            for i in range(0, 12, 2):
                r = ACC + 12 * x + i
                k(f"v_pk_add_f32 v[{dst+i}:{dst+i+1}], v[{dst+i}:{dst+i+1}], v[{r}:{r+1}]")

    def part_stats(src, b, region, pre_wait=None):
        part_calc(src, TMP + 16)
        part_pub(TMP + 16, b, region, pre_wait)

    def part_calc(src, a):
        q_ = a + 1
        t = TMP + 18
        u = TMP + 4
        k(f"v_pk_add_f32 v[{t}:{t+1}], v[{src+8}:{src+9}], v[{src+10}:{src+11}]")
        k(f"v_pk_mul_f32 v[{t+2}:{t+3}], v[{src+8}:{src+9}], v[{src+8}:{src+9}]")
        k(f"v_pk_fma_f32 v[{t+2}:{t+3}], v[{src+10}:{src+11}], v[{src+10}:{src+11}], v[{t+2}:{t+3}]")
        k(f"v_pk_add_f32 v[{u}:{u+1}], v[{src}:{src+1}], v[{src+2}:{src+3}]")
        k(f"v_pk_mul_f32 v[{t}:{t+1}], v[{t}:{t+1}], s[26:27]")
        k(f"v_pk_mul_f32 v[{t+2}:{t+3}], v[{t+2}:{t+3}], s[26:27]")
        k(f"v_pk_add_f32 v[{u+2}:{u+3}], v[{src+4}:{src+5}], v[{src+6}:{src+7}]")
        for i in range(0, 8, 2):
            k(f"v_pk_fma_f32 v[{t+2}:{t+3}], v[{src+i}:{src+i+1}], v[{src+i}:{src+i+1}], v[{t+2}:{t+3}]")
        k(f"v_pk_add_f32 v[{u}:{u+1}], v[{u}:{u+1}], v[{u+2}:{u+3}]")
        k(f"v_pk_add_f32 v[{t}:{t+1}], v[{t}:{t+1}], v[{u}:{u+1}]")
        k(f"v_add_f32 v{q_}, v{t+2}, v{t+3}")
        k(f"v_add_f32 v{a}, v{t}, v{t+1}")
        k(f"v_permlane16_swap_b32 v{a}, v{q_}")
        k(f"v_add_f32 v{a}, v{a}, v{q_}")
        k(f"v_mov_b32 v{q_}, v{a}")
        k(f"v_permlane32_swap_b32 v{a}, v{q_}")
        k(f"v_add_f32 v{a}, v{a}, v{q_}")
        k(f"v_mov_b32 v{q_}, v{a}")
        k(f"v_permlane16_swap_b32 v{a}, v{q_}")
        k(f"v_or_b32 v{q_}, 0x80000000, v{q_}")

    def part_pub(a, b, region, pre_wait=None):
        k(f"s_add_u32 s12, s23, {region + b*8*2048}") if False else None
        k(f"s_add_u32 s12, s60, {region + b*8*2048}")
        if pre_wait:
            k.wait_tag(pre_wait)
        k(f"buffer_store_dwordx2 v[{a}:{a+1}], {VGW}, {srd(SSY)}, s12 offen sc1")
        stamp(f"pub{2 if region == SY_ST2 else 3}{b}")

    def st2_loads(b, dst):
        return ["s_lshl_b32 s13, s16, 11", f"s_add_u32 s13, s13, {SY_ST2 + b*8*2048}"] + [
            f"buffer_load_dwordx2 v[{dst+2*i}:{dst+2*i+1}], {VGR}, {srd(SSY)}, s13 offen offset:{i*128} sc1"
            for i in range(4)]

    def st3_loads(b, dst):
        return ["s_lshl_b32 s13, s15, 11", f"s_add_u32 s13, s13, {SY_ST3 + b*8*2048}"] + [
            f"buffer_load_dwordx2 v[{dst+8*tn+2*i}:{dst+8*tn+2*i+1}], {VGR}, {srd(SSY)}, s13 offen offset:{tn*2048+i*128} sc1"
            for tn in range(2) for i in range(4)]

    def st1_loads(b, dst):
        return ["s_lshl_b32 s13, s15, 9", f"s_add_u32 s13, s13, {SY_ST1 + b*8*512}"] + [
            f"buffer_load_dwordx2 v[{dst+2*tn}:{dst+2*tn+1}], {VQ128}, {srd(SSY)}, s13 offen offset:{tn*512} sc1"
            for tn in range(2)]

    def sum_granules(g, n, tmp):
        for i in range(1, n):
            k(f"v_pk_add_f32 v[{g}:{g+1}], v[{g}:{g+1}], v[{g+2*i}:{g+2*i+1}]")
        for v in (g, g + 1):
            xsum16(k, f"v{v}", tmp)
            xsum32(k, f"v{v}", tmp)

    def finalize(b, x2, G):
        poll(st2_loads(b, G), [f"v{G+1}", f"v{G+3}", f"v{G+5}", f"v{G+7}"], f"v{TMP+20}")
        stamp(f"p2{b}")
        sum_granules(G, 4, f"v{TMP+20}")
        sp = TMP + 22
        finish_stats(f"v{G}", f"v{G+1}", sp)
        k(f"v_mul_f32 v{sp}, v{sp}, v{sp+1}")
        for d in range(6):
            unpack(k, f"v{TMP}", f"v{TMP+1}", f"v{YR[b]+d}")
            k(f"v_pk_fma_f32 v[{TMP+2}:{TMP+3}], v[{x2+2*d}:{x2+2*d+1}], v[{sp}:{sp+1}], v[{sp}:{sp+1}] op_sel:[0,1,0] op_sel_hi:[1,1,0]")
            k(f"v_pk_fma_f32 v[{x2+2*d}:{x2+2*d+1}], v[{TMP+2}:{TMP+3}], v[{TMP}:{TMP+1}], v[{x2+2*d}:{x2+2*d+1}]")
            k(f"v_cvt_pk_bf16_f32 v{X1R[b]+d}, v{x2+2*d}, v{x2+2*d+1}")
        k(f"s_add_u32 s13, s59, {XSPAN + b*8*XRT}")
        k("s_lshl_b32 s12, s14, 10")
        k("s_add_u32 s12, s12, s13")
        k(f"buffer_store_dwordx4 v[{X1R[b]}:{X1R[b]+3}], {VL16}, {srd(SX)}, s12 offen sc1", tag="xst")
        k(f"buffer_store_dwordx2 v[{X1R[b]+4}:{X1R[b]+5}], {VT4S}, {srd(SX)}, s13 offen offset:2048 sc1", tag="xst")
        for d in range(6):
            unpack(k, f"v{x2+2*d}", f"v{x2+2*d+1}", f"v{X1R[b]+d}")

    def stats1(b, STx):
        poll(st1_loads(b, TMP + 24), [f"v{TMP+25}", f"v{TMP+27}"], f"v{TMP+20}")
        for tn in range(2):
            sum_granules(TMP + 24 + 2 * tn, 1, f"v{TMP+20}")
            finish_stats(f"v{TMP+24+2*tn}", f"v{TMP+25+2*tn}", STx[tn])

    def stats3(b, STx):
        poll(st3_loads(b, TMP), [f"v{TMP+1+2*i}" for i in range(8)], f"v{TMP+20}")
        for tn in range(2):
            sum_granules(TMP + 8 * tn, 4, f"v{TMP+20}")
            finish_stats(f"v{TMP+8*tn}", f"v{TMP+8*tn+1}", STx[tn])

    def res_loads(b):
        L = [f"s_add_u32 s13, s62, {b*4*XBLK}", "s_lshl_b32 s12, s14, 11", "s_add_u32 s12, s12, s13",
             "s_add_u32 s13, s13, 4096"]
        for R, sr in ((X1R[b], SX), (YR[b], SY_)):
            L += [f"buffer_load_dwordx2 v[{R}:{R+1}], {VXP}, {srd(sr)}, s12 offen sc1",
                  f"buffer_load_dwordx2 v[{R+2}:{R+3}], {VXP}, {srd(sr)}, s12 offen offset:256 sc1",
                  f"buffer_load_dwordx2 v[{R+4}:{R+5}], {VL16}, {srd(sr)}, s13 offen sc1"]
        return L

    def out_store(b, src):
        for d in range(6):
            k(f"v_cvt_pk_bf16_f32 v{TMP+d}, v{src+2*d}, v{src+2*d+1}")
        k(f"v_mul_u32_u24 v{TMP+8}, 1280, {VROW}")
        k("s_mul_i32 s12, s8, 160")
        k(f"s_add_u32 s12, s12, {b*128*1280}")
        k("s_lshl_b32 s13, s14, 6")
        k("s_add_u32 s13, s13, s12")
        k(f"v_lshl_add_u32 v{TMP+9}, v3, 4, v{TMP+8}")
        k(f"v_lshl_add_u32 v{TMP+10}, v3, 3, v{TMP+8}")
        k("s_lshl_b32 s10, s14, 31")
        k(f"v_or_b32 v{TMP+10}, s10, v{TMP+10}")
        k(f"buffer_store_dwordx4 v[{TMP}:{TMP+3}], v{TMP+9}, {srd(SO)}, s13 offen")
        k(f"buffer_store_dwordx2 v[{TMP+4}:{TMP+5}], v{TMP+10}, {srd(SO)}, s12 offen offset:128")

    def g1b_sched(layer, extra):
        sched = {}
        hl = [h_loads(layer, 0, kk, 80 + 2 * kk) for kk in range(12)]
        for kk in range(20):
            L = []
            if kk + DIST < 20:
                L += x_loads(layer, 1, kk + DIST, 40 + 2 * (kk + DIST))
            L += extra.get(kk, [])
            if kk == HAK:
                L += [lambda: h_flag(layer, 0)]
            if kk == HAK + 4:
                L += h_poll_loads(layer, 0)
            if kk == 13:
                L = [lambda: h_poll(layer, 0)] + h_pf(layer, 0) + L
            if kk >= 14:
                while hl and (12 - len(hl)) + 8 < kk and len([x for x in L if isvm(x)]) < 6:
                    L += hl.pop(0)
            sched[kk] = L
        return sched, hl


    k.prof_begin()
    k(f"s_cmp_ge_u32 s2, {k.grid}")
    k.branch("s_cbranch_scc1 main_end", flush=False)
    k("s_load_dwordx2 s[24:25], s[0:1], 96")
    k("s_load_dwordx2 s[26:27], s[0:1], 0")
    if DIAG:
        k("s_mov_b32 s101, 0")
    k("s_getpc_b64 s[60:61]")
    k.raw("mega_pc:")
    k(f"s_sub_u32 s60, s60, mega_pc-{KNAME}")
    k("s_subb_u32 s61, s61, 0")
    k(f"s_mov_b32 s62, main_code_end-{KNAME}")
    k("s_mov_b32 s63, 0x00020000")
    k("s_lshr_b32 s10, s2, 3")
    k("s_lshl_b32 s10, s10, 11")
    k("v_lshrrev_b32 v2, 4, v0")
    k("v_lshlrev_b32 v1, 7, v0")
    k("v_lshl_or_b32 v1, v2, 24, v1")
    k("buffer_load_dword v255, v1, s[60:63], s10 offen")
    in_srd(k, SDBG, 88, 256)
    k("v_lshrrev_b32 v1, 6, v0")
    k("v_readfirstlane_b32 s3, v1")
    k("v_and_b32 v1, 63, v0")
    k("v_and_b32 v2, 15, v0")
    k("v_bfe_u32 v3, v0, 4, 2")
    k(f"v_lshlrev_b32 {VL16}, 4, v1")
    def ffn_ids():
        if MAP == 1:
            k("s_and_b32 s4, s2, 7")
            k("s_lshr_b32 s5, s2, 3")
            k("s_lshr_b32 s7, s5, 3")
            k("s_and_b32 s8, s5, 7")
        elif MAP == 4:
            k("s_and_b32 s4, s2, 4")
            k("s_lshr_b32 s10, s2, 6")
            k("s_add_u32 s4, s4, s10")
            k("s_bfe_u32 s5, s2, 0x30003")
            k("s_and_b32 s10, s2, 3")
            k("s_lshl_b32 s10, s10, 3")
            k("s_add_u32 s5, s5, s10")
            k("s_and_b32 s7, s5, 3")
            k("s_lshr_b32 s8, s5, 2")
        else:
            k("s_and_b32 s4, s2, 6")
            k("s_lshr_b32 s10, s2, 7")
            k("s_add_u32 s4, s4, s10")
            k("s_bfe_u32 s5, s2, 0x40003")
            k("s_and_b32 s10, s2, 1")
            k("s_lshl_b32 s10, s10, 4")
            k("s_add_u32 s5, s5, s10")
            k("s_and_b32 s7, s5, 3")
            k("s_lshr_b32 s8, s5, 2")
        k("s_and_b32 s9, s3, 1")
        k("s_lshr_b32 s14, s3, 1")
        k("s_lshl_b32 s6, s4, 4")
        k("s_lshl_b32 s10, s3, 1")
        k("s_add_u32 s15, s6, s10")
        k("s_lshl_b32 s10, s7, 1")
        k("s_add_u32 s16, s6, s10")
        k("s_add_u32 s16, s16, s9")
        k(f"s_mul_i32 s17, s15, {XRT}")
        k("s_mul_i32 s18, s3, 3072")
        k(f"s_mul_i32 s19, s5, {WGU_M}")
        k("s_add_u32 s19, s19, s18")
        k("s_lshl_b32 s10, s8, 2")
        k("s_add_u32 s10, s10, s3")
        k("s_mul_i32 s10, s10, 61440")
        k("s_lshl_b32 s11, s14, 11")
        k("s_add_u32 s20, s10, s11")
        k("s_xor_b32 s11, s11, 2048")
        k("s_add_u32 s21, s10, s11")
        k("s_add_u32 s22, s10, 4096")
        k.srd(SWS, 24, WSB)
        k.srd(SW, 24, WGUB, WS_WGU)
        k.srd(SWD, 24, WDB, WS_WD)
        k.srd(SSY, 24, SYNCB, WS_SYNC)


    def wpoll_setup(va):
        k(f"v_lshrrev_b32 {va}, 1, v1")
        k(f"v_lshlrev_b32 {va}, 4, {va}")
        k("v_and_b32 v9, 1, v1")
        k("s_lshr_b32 s10, s5, 2")
        k("s_lshl_b32 s10, s10, 1")
        k(f"v_add3_u32 {va}, {va}, v9, s10")
        k("s_lshl_b32 s10, s3, 3")
        k("s_add_u32 s10, s10, 56")
        k("v_add_u32 v9, s10, v1")
        k("v_cmp_gt_u32 vcc, 8, v1")
        k(f"v_cndmask_b32 {va}, v9, {va}, vcc")
        k(f"v_lshlrev_b32 {va}, 7, {va}")
        k(f"v_add_u32 {va}, {SY_PF}, {va}")
        return [ML(f"buffer_load_dwordx2 v[12:13], {va}, {srd(SSY)}, 0 offen sc1", 16)]

    k(f"s_cmp_lt_u32 s2, {NPREP}")
    k.branch("s_cbranch_scc1 main_prep", flush=False)
    saved0 = (list(k.vm), list(k.lg))
    in_srd(k, SA, 8, S * D * 2)
    in_srd(k, SB, 16, S * D * 2)
    in_srd(k, SW, 24, D * 8)
    in_srd(k, SWD, 32, 4096)
    in_srd(k, SSY, 40, D * 2)
    k(f"s_sub_u32 s56, s2, {NPREP}")
    k("s_lshr_b32 s57, s56, 4")
    k("s_and_b32 s58, s56, 15")
    k("s_lshl_b32 s59, s56, 2")
    k("s_add_u32 s60, s59, s3")
    k(f"s_mul_i32 s61, s3, {WREG}")
    k(f"s_add_u32 s61, s61, {CB}")
    k("v_lshrrev_b32 v4, 3, v1")
    k("v_and_b32 v5, 7, v1")
    k("s_lshl_b32 s10, s58, 7")
    k("s_lshl_b32 s11, s3, 5")
    k("s_add_u32 s10, s10, s11")
    k("v_lshlrev_b32 v6, 2, v4")
    k("v_add_u32 v6, s10, v6")
    k("v_mul_u32_u24 v7, 1280, v6")
    k("v_lshl_add_u32 v7, v5, 4, v7")
    k("s_lshl_b32 s12, s57, 7")
    k("v_add_u32 v7, s12, v7")
    stamp("first")
    KR, VR, WR = 16, 44, 60
    for j in (3, 4, 5, 6, 2, 1, 0):
        off = (j - 3) * 1280
        if off < 0:
            k(f"v_add_u32 v8, {off & 0xffffffff:#x}, v7")
            k(f"buffer_load_dwordx4 v[{KR+4*j}:{KR+4*j+3}], v8, {srd(SA)}, 0 offen")
        else:
            k(f"buffer_load_dwordx4 v[{KR+4*j}:{KR+4*j+3}], v7, {srd(SA)}, 0 offen offset:{off}")
    for i in range(4):
        k(f"buffer_load_dwordx4 v[{VR+4*i}:{VR+4*i+3}], v7, {srd(SB)}, 0 offen offset:{i*1280}{NT}")
    k("v_lshlrev_b32 v9, 6, v5")
    k("s_lshl_b32 s12, s57, 9")
    for i in range(4):
        k(f"buffer_load_dwordx4 v[{WR+4*i}:{WR+4*i+3}], v9, {srd(SW)}, s12 offen offset:{16*i}")
    k("s_lshl_b32 s12, s60, 12")
    k(f"s_add_u32 s{SWD}, s{SWD}, s12")
    k(f"s_addc_u32 s{SWD+1}, s{SWD+1}, 0")
    HB = 160

    def h_loads_():
        for p in range(4):
            k(f"buffer_load_dwordx4 v[{HB+8*p+4}:{HB+8*p+7}], {VL16}, {srd(SWD)}, 0 offen offset:{p*1024}")
            k(f"v_add_u32 v9, {(p*1024-8) & 0xffffffff:#x}, {VL16}")
            k(f"buffer_load_dwordx2 v[{HB+8*p+2}:{HB+8*p+3}], v9, {srd(SWD)}, 0 offen")

    if HPOS == 1:
        h_loads_()
    stamp("issued")
    k("s_lshl_b32 s10, s3, 6")
    k("s_sub_u32 s10, 248, s10")
    k("v_lshlrev_b32 v8, 3, v4")
    k("v_sub_u32 v8, s10, v8")
    k("v_lshlrev_b32 v9, 4, v5")
    k("v_xor_b32 v8, v8, v9")
    k("v_lshl_add_u32 v8, v5, 11, v8")
    WF = 80
    for c in range(8):
        unpack(k, f"v{WF+4*c}", f"v{WF+4*c+1}", f"v{WR+2*c}")
        unpack(k, f"v{WF+4*c+2}", f"v{WF+4*c+3}", f"v{WR+2*c+1}")
    k.need([f"v{KR}"])
    stamp("Tld")
    if HPOS == 3:
        h_loads_()
    zl0 = [ML(f"buffer_load_dwordx2 v[12:13], v1, {srd(SDBG)}, 0 offen sc1", 1)]
    emit(zl0[0])
    k.srd(SA, 24, WSB)
    KF, VF, OUT = 112, 128, 136
    for cp in range(4):
        for j in range(7):
            unpack(k, f"v{KF+2*j}", f"v{KF+2*j+1}", f"v{KR+4*j+cp}")
        for i in range(4):
            unpack(k, f"v{VF+2*i}", f"v{VF+2*i+1}", f"v{VR+4*i+cp}")
        for h in range(2):
            c = 2 * cp + h
            O = OUT + 4 * h
            for i in range(4):
                k(f"v_mul_f32 v{O+i}, v{KF+2*(i+0)+h}, v{WF+4*c+3}")
            for t in (2, 1, 0):
                for i in range(4):
                    k(f"v_fmac_f32 v{O+i}, v{KF+2*(i+3-t)+h}, v{WF+4*c+t}")
            for i in range(4):
                k(f"v_mul_f32 v{O+i}, v{O+i}, v{VF+2*i+h}")
            p = 144 + 2 * h
            k(f"v_cvt_pk_bf16_f32 v{p}, v{O+3}, v{O+2}")
            k(f"v_cvt_pk_bf16_f32 v{p+1}, v{O+1}, v{O+0}")
            k(f"ds_write_b64 v8, v[{p}:{p+1}] offset:{c*256}")
    k("s_lshl_b32 s10, s3, 12")
    k("v_lshlrev_b32 v8, 8, v3")
    k("v_add_u32 v8, s10, v8")
    k("s_lshl_b32 s11, s3, 1")
    for jj in range(2):
        k(f"s_add_u32 s12, s11, {jj}")
        k(f"v_xor_b32 v{14+jj}, s12, v2")
        k(f"v_lshl_add_u32 v{14+jj}, v{14+jj}, 4, v8")
    k("v_lshlrev_b32 v9, 12, v3")
    k("v_lshl_add_u32 v9, v2, 4, v9")
    k("s_lshl_b32 s10, s57, 6")
    k("s_lshl_b32 s11, s3, 4")
    k("s_add_u32 s10, s10, s11")
    k("s_lshl_b32 s10, s10, 12")
    k("s_lshl_b32 s11, s58, 8")
    k("s_sub_u32 s11, 3840, s11")
    k("s_add_u32 s10, s10, s11")
    k.wait(lg=0)
    k.barrier()
    stamp("kv")
    for j in range(4):
        k(f"ds_read_b128 v[{16+4*j}:{19+4*j}], v{14+(j>>1)} offset:{j*1024}")
    for j in range(4):
        k(f"buffer_store_dwordx4 v[{16+4*j}:{19+4*j}], v9, {srd(SA)}, s10 offen sc1", tag="kvst")
        k("s_add_u32 s10, s10, 16384")
    if HPOS == 2:
        h_loads_()
    k("s_lshl_b32 s12, s60, 1")
    k("v_mov_b32 v9, s12")
    k(f"buffer_load_ushort v11, v9, {srd(SSY)}, 0 offen")
    ffn_ids()
    k("v_mov_b32 v32, 0")
    k("v_mov_b32 v33, 0")
    k("v_lshlrev_b32 v8, 3, v1")
    k("v_add_u32 v8, s61, v8")
    k(f"ds_write_b64 v8, v[32:33] offset:{UOFF+4096}")
    k("v_bfe_u32 v8, v1, 2, 2")
    k(f"v_mul_u32_u24 v8, {CP}, v8")
    k("v_and_b32 v9, 3, v1")
    k("v_lshl_add_u32 v8, v9, 3, v8")
    k("v_add_u32 v8, s61, v8")
    k("ds_write_b64 v8, v[32:33]")
    k(f"v_add_u32 v8, s61, {VL16}")

    def copies(p):
        T = 48 + 12 * (p & 1)
        b = HB + 8 * p
        seq = [f"v{b+2+i}" for i in range(6)]
        off = 32 + p * 1024
        k(f"ds_write_b128 v8, v[{b+4}:{b+7}] offset:{off}")
        for j in range(4):
            k(f"v_alignbyte_b32 v{T+j}, {seq[2+j]}, {seq[1+j]}, 2")
        k(f"ds_write_b128 v8, v[{T}:{T+3}] offset:{off+CP}")
        for j in range(4):
            k(f"v_mov_b32 v{T+4+j}, {seq[1+j]}")
        k(f"ds_write_b128 v8, v[{T+4}:{T+7}] offset:{off+2*CP}")
        for j in range(4):
            k(f"v_alignbyte_b32 v{T+8+j}, {seq[1+j]}, {seq[j]}, 2")
        k(f"ds_write_b128 v8, v[{T+8}:{T+11}] offset:{off+3*CP}")

    poll(zl0, ["v12"], None, sleep=8, nl=1)
    k("v_readfirstlane_b32 s100, v12")
    k("v_readfirstlane_b32 s101, v13")
    k("s_lshl_b32 s10, s56, 2")
    k("s_add_u32 s10, s10, s3")
    k("s_lshl_b32 s10, s10, 7")
    k(f"s_add_u32 s10, s10, {WS_SYNC + SY_GF}")
    k("v_mov_b32 v14, s100"); k("v_mov_b32 v15, s101")
    k.wait_tag("kvst")
    ML(f"buffer_store_dwordx2 v[14:15], v1, {srd(SWS)}, s10 offen sc1", 1)()
    stamp("gf")
    for p in range(4):
        copies(p)
    k("v_sub_u32 v7, 3, v2")
    k("v_and_b32 v7, 3, v7")
    k("v_add3_u32 v8, v2, v7, 1")
    k("v_lshl_add_u32 v8, v3, 3, v8")
    k("v_lshlrev_b32 v8, 1, v8")
    k(f"v_mul_u32_u24 v7, {CP}, v7")
    k("v_add3_u32 v4, v7, v8, s61")
    k("v_lshlrev_b32 v7, 5, v2")
    k("v_lshlrev_b32 v8, 4, v3")
    k("v_sub_u32 v8, v8, v7")
    k(f"v_add_u32 v8, {UOFF+480}, v8")
    k("v_add_u32 v5, s61, v8")
    k("v_lshlrev_b32 v11, 16, v11")
    k("v_lshlrev_b32 v6, 7, v1")
    k("s_lshl_b32 s12, s57, 13")
    k(f"s_add_u32 s12, s12, {WS_SYNC + SY_GF}")
    gl = [f"buffer_load_dwordx2 v[12:13], v6, {srd(SWS)}, s12 offen sc1"]
    k(gl[0])
    poll(gl, ["v12"], None, sleep=1, eq=SN)
    stamp("gp")
    k(f"s_add_u32 m0, s61, {UOFF}")
    k("s_lshl_b32 s12, s60, 12")
    for p in (3, 2, 1, 0):
        k(f"buffer_load_dwordx4 {VL16}, {srd(SWS)}, s12 offen offset:{p*1024} sc1 lds", tag="u")
    AB = [16, 48]
    CACC = 80
    BR = 112

    def rdA(n):
        I = n if n < 8 else n - 8
        L = []
        for r in range(8):
            i = 8 * I + r
            b = AB[n & 1] + 4 * r
            L.append(f"ds_read_b64 v[{b}:{b+1}], v4 offset:{64*i}")
            L.append(f"ds_read_b64 v[{b+2}:{b+3}], v4 offset:{64*i+8}")
        return L

    def bslot(C):
        return C if C < 4 else 7 - C

    def rdB(C):
        return [f"ds_read_b128 v[{BR+32*bslot(C)+4*r}:{BR+32*bslot(C)+4*r+3}], v5 offset:{64*(56-(8*C-r))}" for r in range(8)]

    k("v_lshlrev_b32 v6, 3, v3")
    k("v_add_u32 v6, v6, v2")
    k("v_sub_u32 v6, 15, v6")
    k("v_lshrrev_b32 v7, 16, v11")
    k("v_and_b32 v8, 1, v6")
    k("v_cmp_eq_u32 vcc, 1, v8")
    k("v_cndmask_b32 v7, v7, v11, vcc")
    k("v_ashrrev_i32 v6, 1, v6")
    for d in range(4):
        k(f"v_cmp_eq_u32 vcc, {d}, v6")
        k("v_cndmask_b32 v8, 0, v7, vcc")
        k(f"v_accvgpr_write_b32 a{240+d}, v8")
    STG = [2112, CP + 2112]
    SBQ = [240, BR + 8]
    QB = [248, BR]
    k("s_lshl_b32 s10, s3, 11")
    k("v_lshlrev_b32 v6, 3, v1")
    k("v_add_u32 v6, s10, v6")
    k(f"v_mul_u32_u24 v7, {XRT}, v3")
    k("v_lshl_add_u32 v7, v2, 4, v7")
    k(f"s_mul_i32 s57, s3, {16*XRT}")
    k("s_lshr_b32 s10, s56, 1")
    k("s_lshl_b32 s10, s10, 8")
    k("s_add_u32 s57, s57, s10")
    k("s_and_b32 s10, s56, 1")
    k("s_lshl_b32 s10, s10, 3")
    k("s_add_u32 s57, s57, s10")
    k(f"s_mul_i32 s58, s3, {8*XBLK}")
    k("s_lshl_b32 s10, s56, 8")
    k("s_add_u32 s58, s58, s10")
    k("s_mul_i32 s59, s3, 160")
    k("s_add_u32 s59, s59, s56")
    k("s_lshl_b32 s59, s59, 7")
    k(f"s_add_u32 s59, s59, {SY_CF}")
    pcl = wpoll_setup("v0")
    k("s_lshl_b32 s10, s3, 11")
    k(f"s_add_u32 s62, s10, {SY_QF}")
    k("v_lshlrev_b32 v8, 7, v2")
    k("v_lshl_add_u32 v8, v3, 13, v8")
    qfl = [ML(f"buffer_load_dwordx2 v[12:13], v8, {srd(SSY)}, s62 offen sc1", 32)]

    def q_ld(hf):
        L = [f"s_mov_b32 s13, {WS_QST + hf*8192}"]
        for it in range(4):
            L += [f"buffer_load_dwordx2 v[{SBQ[hf]+2*it}:{SBQ[hf]+2*it+1}], v6, {srd(SWS)}, s13 offen offset:{it*512} sc1",
                  f"s_add_u32 s12, s57, {WS_QX + (64*hf + 4*it)*XRT}",
                  f"buffer_load_dwordx2 v[{QB[hf]+2*it}:{QB[hf]+2*it+1}], v7, {srd(SWS)}, s12 offen sc1"]
        return L

    def addr2():
        return ["v_lshlrev_b32 v11, 5, v2", "v_lshl_add_u32 v11, v3, 3, v11", "v_add_u32 v11, s61, v11",
                "v_bfe_u32 v8, v1, 2, 2", f"v_mul_u32_u24 v8, {WREG}, v8", "v_and_b32 v9, 3, v1",
                "v_lshl_add_u32 v8, v9, 3, v8", "v_lshl_add_u32 v8, v3, 5, v8", "s_lshl_b32 s10, s3, 9",
                f"s_add_u32 s10, s10, {CB}", "v_add_u32 v8, s10, v8",
                "v_and_b32 v0, 1, v3", "v_lshrrev_b32 v9, 1, v3", "v_lshl_add_u32 v9, v0, 1, v9",
                f"v_mul_u32_u24 v9, {XBLK}, v9", "v_lshl_add_u32 v9, v2, 4, v9"]

    def stage_blk(c):
        a_ = CACC + 4 * c
        return [f"v_cvt_pk_bf16_f32 v{a_}, v{a_}, v{a_+1}", f"v_cvt_pk_bf16_f32 v{a_+1}, v{a_+2}, v{a_+3}",
                f"ds_write_b64 v11, v[{a_}:{a_+1}] offset:{STG[c>>2] + (c&3)*512}"]

    def sync():
        k.wait(lg=0)
        k.barrier()

    def out_half(hf, YB, XO, T):
        L = [f"ds_read_b64_tr_b16 v[{YB+2*it}:{YB+2*it+1}], v8 offset:{STG[hf] + it*128}" for it in range(4)]
        for it in range(4):
            y0, q0, st = YB + 2 * it, QB[hf] + 2 * it, SBQ[hf] + 2 * it
            for d in range(2):
                L += [f"v_lshlrev_b32 v{T+2}, 16, v{q0+d}", f"v_and_b32 v{T+3}, 0xffff0000, v{q0+d}",
                      f"v_lshlrev_b32 v{T}, 16, v{y0+d}", f"v_and_b32 v{T+1}, 0xffff0000, v{y0+d}",
                      f"v_fma_f32 v{T+4}, v{T+2}, v{st+1}, -v{st}", f"v_fma_f32 v{T+5}, v{T+3}, v{st+1}, -v{st}",
                      f"v_fmac_f32 v{T+2}, v{T+4}, v{T}", f"v_fmac_f32 v{T+3}, v{T+5}, v{T+1}",
                      f"v_cvt_pk_bf16_f32 v{XO+2*it+d}, v{T+2}, v{T+3}"]
            if it & 1:
                for o, base in ((YB + 2 * (it - 1), WS_Y), (XO + 2 * (it - 1), WS_X1)):
                    L += [f"v_permlane16_swap_b32 v{o}, v{o+2}", f"v_permlane16_swap_b32 v{o+1}, v{o+3}",
                          f"s_add_u32 s12, s58, {base + (32*hf + (it-1)*2)*XBLK}",
                          (f"buffer_store_dwordx4 v[{o}:{o+3}], v9, {srd(SWS)}, s12 offen sc1", f"cst{hf}")]
        return L

    wl = []
    for p in range(6):
        wl += wgu_dma(p)
    for i in range(NE1):
        wl += wd_load(i)
    k.wait(lg=0)
    a0, b0 = rdA(0), rdB(0)
    for x in a0:
        k(x)
    k.wait_tag("u")
    stamp("ready")
    for x in b0:
        k(x)
    started = set()
    early = []
    side = []
    tot = 0
    for n in range(12):
        I = n if n < 8 else n - 8
        Cs = [C for C in (range(4) if n < 8 else range(4, 8)) if C + I <= 7]
        pend = rdA(n + 1) if n < 11 else []
        bpend = {5: rdB(4), 6: rdB(5), 7: rdB(6), 8: rdB(7)}.get(n) or []
        nm = 8 * len(Cs)
        cnt = 0
        if n == PPN - 1:
            emit(pcl[0])
        if n == PPN:
            poll(pcl, ["v12"], None, sleep=1, nl=16, eq=SN)
            stamp("pp")
        if n == QPN - 2:
            early = list(qfl)
        if n == 6:
            side += addr2()[:3]
        if n == QPN:
            poll(qfl, ["v12"], None, sleep=1, nl=32, eq=SN)
            early = q_ld(0)
            side += addr2()[3:]
        if n == 7:
            for c in range(4):
                side += stage_blk(c)
            side += [sync] + out_half(0, CACC + 2, CACC + 10, 12) if False else [sync]
        if n == 9:
            early = early + q_ld(1)
            side += out_half(0, CACC, CACC + 8, BR + 16) + stage_blk(4)
        if n == 10:
            side += stage_blk(5)
        if n == 11:
            side += stage_blk(6)
        for C in Cs:
            c = C + I
            nb = rdB(C + 1) if (n == 0 and C < 3) else []
            for r in range(8):
                if nb:
                    k(nb.pop(0))
                a = AB[n & 1] + 4 * r
                b = BR + 32 * bslot(C) + 4 * r
                acc = f"v[{CACC+4*c}:{CACC+4*c+3}]"
                src = acc if c in started else "0"
                started.add(c)
                k(f"v_mfma_f32_16x16x32_bf16 {acc}, v[{a}:{a+3}], v[{b}:{b+3}], {src}")
                if I == 0 and r == 0:
                    k(f"v_mfma_f32_16x16x32_bf16 {acc}, a[240:243], v[{b}:{b+3}], {acc}")
                cnt += 1
                tot += 1
                while pend and (16 - len(pend)) * max(nm - 4, 4) < cnt * 16:
                    k(pend.pop(0))
                if bpend and cnt % 2 == 0:
                    k(bpend.pop(0))
                if early:
                    if tot % 2 == 0:
                        emit_one_vmem(early)
                elif n >= PPN and tot % EVERY == 0 and tot <= LASTW:
                    emit_one_vmem(wl)
                for _ in range(2):
                    if side and not (early and isinstance(side[0], str) and side[0].startswith("s_add_u32 s12")):
                        x = side.pop(0)
                        emit(x)
                        if isinstance(x, str) and x.startswith("s_add_u32 s12"):
                            emit(side.pop(0))
        for x in pend + bpend:
            k(x)
    stamp("mfma")
    for x in early + stage_blk(7) + side:
        emit(x)
    sync()
    for x in out_half(1, 16, 24, 32):
        emit(x)
    stamp("cst")
    k.wait_tag("cst0")
    ML(f"buffer_store_dwordx2 v[14:15], v1, {srd(SSY)}, s59 offen sc1", 1)()
    k(f"s_add_u32 s59, s59, {4*160*128}")
    for _ in range(NB):
        emit_one_vmem(wl)
    k.wait_tag("cst1")
    ML(f"buffer_store_dwordx2 v[14:15], v1, {srd(SSY)}, s59 offen sc1", 1)()
    stamp("cf")
    print("weight loads after cf:", sum(1 for x in wl if isvm(x)))
    for x in wl:
        emit(x)
    k.wait(lg=0)
    k.flush_hazards()
    k.branch("s_branch main_join", flush=False)

    k.label("main_prep", flush=False)
    k.vm, k.lg = list(saved0[0]), list(saved0[1])
    k("s_or_b32 s10, s2, s3")
    k("s_cmp_lg_u32 s10, 0")
    k.branch("s_cbranch_scc1 main_nonce_done", flush=False)
    k("s_memrealtime s[56:57]")
    k("s_or_b32 s56, s56, 1")
    k("v_mov_b32 v12, s56")
    k("v_mov_b32 v13, s57")
    ML(f"buffer_store_dwordx2 v[12:13], v1, {srd(SDBG)}, 0 offen sc1", 1)()
    k.label("main_nonce_done", flush=False)
    k.vm, k.lg = list(saved0[0]), list(saved0[1])
    k("s_and_b32 s10, s2, 1")
    k("s_lshl_b32 s10, s10, 3")
    k("s_add_u32 s10, s10, 56")
    k("s_cmp_lt_u32 s2, 64")
    k("s_cselect_b32 s10, s10, 72")
    k(f"s_load_dwordx2 s[{SA}:{SA+1}], s[0:1], s10")
    k(f"s_mov_b32 s{SA+2}, {D*F*2}")
    k(f"s_mov_b32 s{SA+3}, 0x00020000")
    k(f"v_mov_b32 v14, {OOB:#x}")
    k("s_mov_b32 s58, 0x05040100")
    k("s_mov_b32 s59, 0x07060302")
    k("v_mov_b32 v12, 0x3f803f80")
    ffn_ids()
    k("v_mov_b32 v244, 0")
    zl = [ML(f"buffer_load_dwordx2 v[246:247], v1, {srd(SDBG)}, 0 offen sc1", 1)]

    def q_job():
        if QPOS == 1:
            q_loads()
        if QTOUCH:
            k.srd(SB, 26, S * D * 2)
            k(f"s_mul_i32 s12, s2, {XRT}")
            k("v_lshlrev_b32 v204, 7, v0")
            k("v_cmp_gt_u32 vcc, 160, v0")
            k("v_cndmask_b32 v204, v14, v204, vcc")
            k(f"buffer_load_dword v250, v204, {srd(SB)}, s12 offen")
            k(f"s_add_u32 s12, s12, {96*XRT}")
            k(f"buffer_load_dword v251, v204, {srd(SB)}, s12 offen")
        emit(zl[0])
        for i in range(4):
            k(f"v_mov_b32 v{240+i}, 0")
        k.srd(SB, 24, SY_HF, WS_SYNC)
        k("s_lshl_b32 s12, s2, 13")
        k("v_lshlrev_b32 v204, 4, v0")
        for i in range(2):
            k(f"buffer_store_dwordx4 v[240:243], v204, {srd(SB)}, s12 offen sc1")
            k("s_add_u32 s12, s12, 4096")

    QR = 80

    def q_loads():
        k.srd(SB, 26, S * D * 2)
        k("s_mul_i32 s62, s3, 96")
        k("s_add_u32 s62, s62, s2")
        k("s_cmp_lt_u32 s62, 128")
        k("s_cselect_b32 s63, 0, 0x40000000")
        k(f"s_mul_i32 s56, s62, {XRT}")
        k("s_add_u32 s56, s56, s63")
        k("v_mul_u32_u24 v11, 1280, v2")
        k("v_lshl_add_u32 v11, v3, 4, v11")
        for i in range(20):
            k(f"buffer_load_dwordx4 v[{QR+4*i}:{QR+4*i+3}], v11, {srd(SB)}, s56 offen offset:{64*i}")

    def q_flag():
        poll(zl, ["v246"], None, sleep=1, nl=1)
        k("v_readfirstlane_b32 s100, v246")
        k("v_readfirstlane_b32 s101, v247")

    def item_idx(magic, n):
        for ps in range(2):
            o, ch = f"v{4+2*ps}", f"v{5+2*ps}"
            k(f"v_add_u32 v8, {256*ps}, v0")
            k(f"v_mul_u32_u24 {o}, {magic}, v8")
            k(f"v_lshrrev_b32 {o}, 16, {o}")
            k(f"v_mul_u32_u24 {ch}, {n}, {o}")
            k(f"v_sub_u32 {ch}, v8, {ch}")

    def item_loads(pitch):
        k(f"v_mul_u32_u24 v8, {8*pitch}, v4")
        k("v_lshl_add_u32 v8, v5, 4, v8")
        k(f"v_mul_u32_u24 v9, {8*pitch}, v6")
        k("v_lshl_add_u32 v9, v7, 4, v9")
        k("v_cmp_gt_u32 vcc, 224, v0")
        k("v_cndmask_b32 v9, v14, v9, vcc")
        stamp("issued")
        for ps in range(2):
            k("s_mov_b32 s11, s10")
            for i in range(8):
                k(f"buffer_load_dwordx4 v[{16+32*ps+4*i}:{19+32*ps+4*i}], v{8+ps}, {srd(SA)}, s11 offen{NT}")
                if i < 7:
                    k(f"s_add_u32 s11, s11, {pitch}")
        stamp("Tld")
        q_job()

    def stage(magic, sh, n, blk, opart, pairb, npair, second, setup, copy):
        for ps in range(2):
            o, ch = f"v{4+2*ps}", f"v{5+2*ps}"
            k(f"v_mul_u32_u24 v161, {magic}, {ch}")
            k(f"v_lshrrev_b32 v161, {sh}, v161")
            k(f"v_mul_u32_u24 v162, {n}, v161")
            k(f"v_sub_u32 {ch}, {ch}, v162")
            opart(o)
            k(f"v_mul_u32_u24 v161, {blk}, v161")
            k("v_add_u32 v160, v160, v161")
            k(f"v_lshrrev_b32 v161, 2, {ch}")
            k(f"v_mul_u32_u24 v161, {pairb}, v161")
            k("v_add_u32 v160, v160, v161")
            k(f"v_and_b32 v161, 3, {ch}")
            k("v_lshlrev_b32 v162, 6, v161")
            k("v_lshlrev_b32 v163, 7, v161")
            k(f"v_cmp_gt_u32 vcc, {npair}, {ch}")
            k("v_cndmask_b32 v162, v163, v162, vcc")
            k(f"v_add_u32 {o}, v160, v162")
            k("v_mov_b32 v162, 64")
            k(f"v_mov_b32 v163, {second}")
            k("v_cndmask_b32 v162, v162, v163, vcc")
            k(f"v_add_u32 {ch}, {o}, v162")
        k("v_cmp_gt_u32 vcc, 224, v0")
        k("v_mov_b32 v160, 61440")
        k("v_cndmask_b32 v6, v160, v6, vcc")
        k("v_cndmask_b32 v7, v160, v7, vcc")
        setup()
        for ps in range(2):
            src = 16 + 32 * ps
            for e in range(8):
                o = 160 + 4 * e
                for p in range(4):
                    k(f"v_perm_b32 v{o+p}, v{src+4*(2*p+1)+e//2}, v{src+4*(2*p)+e//2}, s{58+(e&1)}")
                k(f"ds_write_b128 v{4+2*ps+(e>>2)}, v[{o}:{o+3}] offset:{(e&3)*16}")
            k.wait(lg=0)
            k.barrier()
            if ps:
                stamp("mfma")
            copy(ps)
        q_flag()


    k("s_cmp_ge_u32 s2, 64")
    k.branch("s_cbranch_scc1 main_prep_wd", flush=False)
    sv = (list(k.vm), list(k.lg))
    item_idx(2731, 24)
    k("s_bfe_u32 s60, s2, 0x30001")
    k("s_lshr_b32 s61, s2, 4")
    k(f"s_mul_i32 s10, s61, {160*3072}")
    k("s_mul_i32 s11, s60, 384")
    k("s_add_u32 s10, s10, s11")
    item_loads(3072)

    def op_wgu(o):
        k(f"v_lshrrev_b32 v160, 2, {o}")
        k("v_mul_u32_u24 v160, 3072, v160")
        k(f"v_and_b32 v162, 3, {o}")
        k("v_lshl_add_u32 v160, v162, 8, v160")

    def su_wgu():
        k("s_mul_i32 s13, s3, 15360")
        k(f"v_add_u32 v8, s13, {VL16}")
        k("s_lshl_b32 s62, s60, 2")
        k("s_add_u32 s62, s62, s3")
        k(f"s_mul_i32 s10, s62, {WGU_M}")
        k("s_mul_i32 s11, s61, 30720")
        k("s_add_u32 s10, s10, s11")
        k("s_and_b32 s13, s2, 1")
        k("s_mul_i32 s11, s13, 3072")
        k("s_add_u32 s10, s10, s11")
        k(f"s_add_u32 s10, s10, {WS_WGU}")
        for t in range(3):
            k(f"v_mov_b32 v{196+t}, 0")

    def cp_wgu(ps):
        js = range(6) if ps == 0 else range(6, 15)
        for j in js:
            k(f"ds_read_b128 v[{80+4*j}:{83+4*j}], v8 offset:{j*1024}")
        for j in js:
            k(f"buffer_store_dwordx4 v[{80+4*j}:{83+4*j}], {VL16}, {srd(SWS)}, s10 offen offset:{(j%3)*1024} sc1")
            if j % 3 == 2:
                k("s_add_u32 s10, s10, 6144")
            for p in range(4):
                k(f"v_dot2c_f32_bf16 v{196+j%3}, v{80+4*j+p}, v12")
    stage(43, 8, 6, 15360, op_wgu, 2048, 4, 1024, su_wgu, cp_wgu)
    for t in range(3):
        k(f"v_mov_b32 v{5+t}, v{196+t}")
    for t in range(3):
        xsum16(k, f"v{5+t}", "v8")
        xsum32(k, f"v{5+t}", "v8")
    k("v_cmp_eq_u32 vcc, 1, v3")
    k("v_cndmask_b32 v5, v5, v6, vcc")
    k("v_cmp_eq_u32 vcc, 2, v3")
    k("v_cndmask_b32 v5, v5, v7, vcc")
    k("v_lshlrev_b32 v6, 2, v1")
    k("v_cmp_gt_u32 vcc, 48, v1")
    k("v_cndmask_b32 v6, v14, v6, vcc")
    k("s_lshl_b32 s10, s62, 11")
    k("s_lshl_b32 s11, s61, 9")
    k("s_add_u32 s10, s10, s11")
    k("s_mul_i32 s11, s13, 192")
    k("s_add_u32 s10, s10, s11")
    k(f"s_add_u32 s10, s10, {WS_CS}")
    k(f"buffer_store_dword v5, v6, {srd(SWS)}, s10 offen sc1")

    if QPOS == 2:
        q_loads()
        k.wait(vm=20)
    else:
        k.wait(vm=0)
    k.flush_hazards()
    k.branch("s_branch main_prep_pub", flush=False)
    k.label("main_prep_wd", flush=False)
    k.vm, k.lg = sv
    item_idx(820, 80)
    k("s_sub_u32 s60, s2, 64")
    k(f"s_mul_i32 s10, s60, {48*1280}")
    item_loads(1280)

    def op_wd(o):
        k(f"v_lshlrev_b32 v160, 8, {o}")

    def su_wd():
        k("s_mul_i32 s13, s3, 15360")
        k(f"v_add_u32 v8, s13, {VL16}")
        k("s_mul_i32 s11, s60, 6")
        k("v_cmp_gt_u32 vcc, 3, v3")
        for ps, v in enumerate(("v196", "v197")):
            k(f"v_add3_u32 {v}, v3, s11, {3*ps}")
            k(f"v_lshrrev_b32 v13, 2, {v}")
            k("v_mul_u32_u24 v13, 5120, v13")
            k(f"v_and_b32 {v}, 3, {v}")
            k(f"v_lshl_add_u32 {v}, {v}, 8, v13")
            k(f"v_lshl_add_u32 {v}, v2, 4, {v}")
            k(f"v_cndmask_b32 {v}, v14, {v}, vcc")
        k(f"s_mul_i32 s10, s3, {2*48*5120}")
        k(f"s_add_u32 s10, s10, {WS_WD}")

    def cp_wd(ps):
        R = 80 + 40 * ps
        for j in range(10):
            k(f"ds_read_b128 v[{R+4*j}:{R+4*j+3}], v8 offset:{(j//5)*7680 + (j%5)*1536 + ps*768}")
        for j in range(10):
            k(f"s_add_u32 s11, s10, {(j//5)*48*5120 + (j%5)*1024}")
            k(f"buffer_store_dwordx4 v[{R+4*j}:{R+4*j+3}], v{196+ps}, {srd(SWS)}, s11 offen sc1")
    stage(205, 11, 10, 7680, op_wd, 3072, 8, 1536, su_wd, cp_wd)

    if QPOS == 2:
        q_loads()
        k.wait(vm=20)
    else:
        k.wait(vm=0)
    k.flush_hazards()
    k.label("main_prep_pub", flush=False)
    k.barrier()
    k("s_lshl_b32 s10, s2, 7")
    k(f"s_add_u32 s10, s10, {SY_PF}")
    k("s_cmp_eq_u32 s3, 0")
    k("s_cselect_b32 s10, s10, 0x40000000")
    k("v_mov_b32 v204, 0")
    ML(f"buffer_store_dwordx2 v[246:247], v1, {srd(SSY)}, s10 offen sc1", 1)()
    stamp("cf")
    if QPOS == 4:
        q_loads()
    k(f"s_add_u32 s12, s56, {WS_QX}")
    k("v_mov_b32 v200, 0")
    k("v_mov_b32 v201, 0")
    for i in range(20):
        if i % 4 == 0 and i:
            k("s_add_u32 s12, s12, 4096")
        k(f"buffer_store_dwordx4 v[{QR+4*i}:{QR+4*i+3}], {VL16}, {srd(SWS)}, s12 offen offset:{(i%4)*1024} sc1")
        for d in range(4):
            k(f"v_dot2c_f32_bf16 v200, v{QR+4*i+d}, v12")
            k(f"v_dot2c_f32_bf16 v201, v{QR+4*i+d}, v{QR+4*i+d}")
    for v in ("v200", "v201"):
        xsum16(k, v, "v205")
        xsum32(k, v, "v205")
    k(f"v_mul_f32 v200, {f2u(1.0/D)}, v200")
    k(f"v_mul_f32 v201, {f2u(1.0/D)}, v201")
    k("v_fma_f32 v201, -v200, v200, v201")
    k("v_max_f32 v201, 0, v201")
    k(f"v_add_f32 v201, {f2u(EPS)}, v201")
    k("v_rsq_f32 v203, v201")
    k("v_mul_f32 v202, v200, v203")
    k("s_lshl_b32 s57, s62, 7")
    k("s_add_u32 s57, s57, s63")
    k(f"s_add_u32 s12, s57, {WS_QST}")
    k("v_lshlrev_b32 v205, 3, v1")
    ML(f"buffer_store_dwordx2 v[202:203], v205, {srd(SWS)}, s12 offen sc1", 16)()
    k(f"s_add_u32 s12, s57, {SY_QF}")
    k.wait(vm=0)
    ML(f"buffer_store_dwordx2 v[246:247], v1, {srd(SSY)}, s12 offen sc1", 1)()
    stamp("cst")
    pl = wpoll_setup("v8")
    emit(pl[0])
    poll(pl, ["v12"], None, sleep=1, nl=16, eq=SN)
    stamp("pp")
    for p in range(10):
        for x in wgu_dma(p):
            emit(x)
    for i in range(NEP):
        for x in wd_load(i):
            emit(x)
    k.wait(lg=0)
    k.flush_hazards()

    k.label("main_join", flush=False)
    k.vm = [(set(), "unk")] * 63
    k("s_load_dwordx2 s[26:27], s[0:1], 80")
    k(f"v_add_u32 {VL16B}, 61440, {VL16}")
    k.srd(SX, 24, XSPAN + XFB, WS_X1)
    k.srd(SH, 24, HSPAN + HFB, WS_H)
    k.srd(SY_, 24, XFB, WS_Y)
    k(f"s_mul_i32 s56, s15, {HRT}")
    k("s_mul_i32 s10, s5, 1536")
    k("s_add_u32 s56, s56, s10")
    k("s_mul_i32 s10, s3, 12288")
    k(f"s_mul_i32 s57, s16, {HRT}")
    k("s_add_u32 s57, s57, s10")
    k("s_xor_b32 s11, s16, 1")
    k(f"s_mul_i32 s58, s11, {HRT}")
    k("s_add_u32 s58, s58, s10")
    k(f"s_mul_i32 s59, s16, {XRT}")
    k("s_mul_i32 s10, s8, 2560")
    k("s_add_u32 s59, s59, s10")
    k("v_and_b32 v204, 1, v3")
    k("v_lshrrev_b32 v205, 1, v3")
    k(f"v_mul_u32_u24 {VH2}, {HRT}, v204")
    k("v_lshlrev_b32 v206, 4, v2")
    k("v_lshl_add_u32 v206, v205, 8, v206")
    k(f"v_add_u32 {VH2}, {VH2}, v206")
    k(f"v_lshl_add_u32 {VT4}, v204, 3, v206")
    k("s_lshl_b32 s10, s14, 31")
    k(f"v_or_b32 {VT4S}, s10, {VT4}")
    k("s_lshl_b32 s10, s16, 4")
    k(f"v_add_u32 {VROW}, s10, v2")
    k(f"v_lshlrev_b32 {VGR}, 3, v2")
    k("v_cmp_eq_u32 vcc, 0, v3")
    k(f"v_mov_b32 v204, {OOB:#x}")
    k(f"v_cndmask_b32 {VGW}, v204, {VGR}, vcc")
    k(f"v_lshl_add_u32 {VQ128}, v3, 7, {VGR}")
    k(f"v_lshl_add_u32 {VGR}, v3, 9, {VGR}")
    k("v_cmp_eq_u32 vcc, 0, v1")
    k(f"v_cndmask_b32 {VFLAG}, v204, v1, vcc")
    k("s_lshl_b32 s10, s4, 3")
    k("s_add_u32 s10, s10, s7")
    k("s_lshl_b32 s10, s10, 5")
    k("s_lshl_b32 s11, s3, 3")
    k("s_add_u32 s10, s10, s11")
    k(f"v_and_b32 {VFPOLL}, 7, v1")
    k(f"v_add_u32 {VFPOLL}, s10, {VFPOLL}")
    k(f"v_lshlrev_b32 {VFPOLL}, 7, {VFPOLL}")
    k(f"v_lshlrev_b32 {VXP}, 4, v2")
    k(f"v_lshl_add_u32 {VXP}, v3, 9, {VXP}")
    k("s_lshr_b32 s10, s16, 1")
    k(f"s_mul_i32 s62, s10, {XBLK}")
    k("s_mul_i32 s10, s8, 5120")
    k("s_add_u32 s62, s62, s10")
    k("s_lshl_b32 s10, s9, 3")
    k("s_add_u32 s62, s62, s10")
    k("s_lshr_b32 s10, s5, 2")
    k("s_lshl_b32 s11, s4, 3")
    k("s_add_u32 s63, s10, s11")
    k(f"s_mul_i32 s60, s63, {XBLK}")
    k("s_mul_i32 s10, s3, 10240")
    k("s_add_u32 s60, s60, s10")
    k("s_and_b32 s61, s5, 3")
    k("s_lshl_b32 s10, s61, 6")
    k("s_add_u32 s60, s60, s10")
    k("v_and_b32 v188, 3, v1")
    k("v_lshrrev_b32 v189, 2, v1")
    k("v_lshlrev_b32 v189, 8, v189")
    k("v_lshl_add_u32 v189, v188, 4, v189")
    k("v_cmp_gt_u32 vcc, 32, v1")
    k("v_cndmask_b32 v190, v204, v189, vcc")
    k("s_lshl_b32 s10, s5, 11")
    k(f"s_add_u32 s10, s10, {WS_CS}")
    k("v_lshlrev_b32 v197, 3, v1")
    for i in range(4):
        k(f"buffer_load_dwordx2 v[{208+2*i}:{209+2*i}], v197, {srd(SWS)}, s10 offen offset:{i*512} sc1")
    k.srd(SO, 26, XFB)
    k("s_mul_i32 s10, s4, 160")
    k("s_mul_i32 s11, s3, 40")
    k("s_add_u32 s10, s10, s11")
    k("s_lshl_b32 s10, s10, 7")
    k(f"s_add_u32 s10, s10, {SY_CF}")
    k("s_mul_i32 s11, s3, 3072")
    k(f"s_add_u32 s11, s11, {SY_PF - 40*128}")
    k("v_mov_b32 v205, s10")
    k("v_mov_b32 v206, s11")
    k("v_cmp_gt_u32 vcc, 40, v1")
    k("v_cndmask_b32 v205, v206, v205, vcc")
    k("v_lshl_add_u32 v205, v1, 7, v205")
    k(f"v_add_u32 v197, {LC}, v197")
    k("v_pk_add_f32 v[208:209], v[208:209], v[210:211]")
    k("v_pk_add_f32 v[212:213], v[212:213], v[214:215]")
    k("v_pk_add_f32 v[208:209], v[208:209], v[212:213]")
    k(f"s_cmp_ge_u32 s2, {NPREP}")
    k.branch("s_cbranch_scc1 main_nogate", flush=False)
    svg = (list(k.vm), list(k.lg))
    c1 = [ML(f"buffer_load_dwordx2 v[206:207], v205, {srd(SSY)}, 0 offen sc1", 1)]
    emit(c1[0])
    poll(c1, ["v206"], None, sleep=6, nl=1, eq=SN)
    k.label("main_nogate", flush=False)
    k.vm, k.lg = svg
    cl = [f"buffer_load_dwordx2 v[206:207], v205, {srd(SSY)}, 0 offen sc1"]
    emit(cl[0])
    poll(cl, ["v206"], None, sleep=1, eq=SN)
    k.vm = []
    k.barrier()
    stamp("join")
    k("ds_write_b64 v197, v[208:209]")
    for kk in range(4):
        for x in x_loads(0, 0, kk, 2 * kk):
            emit(x)
    SR = 192
    for i in range(3):
        k(f"s_add_u32 s12, s60, {i*4096}")
        k(f"buffer_load_dwordx4 v[{SR+4*i}:{SR+4*i+3}], v{189 if i < 2 else 190}, {srd(SX)}, s12 offen sc1")
    for kk in range(4, DIST):
        for x in x_loads(0, 0, kk, 2 * kk):
            emit(x)

    k("s_lshl_b32 s10, s3, 13")
    k(f"s_add_u32 s10, s10, {LR}")
    k(f"v_add_u32 {VRW}, s10, {VL16}")
    k("s_cmp_eq_u32 s14, 0")
    k("s_cselect_b32 s26, 1.0, 0")
    k("s_mov_b32 s27, s26")
    k("s_lshl_b32 s60, s16, 4")
    k("s_lshl_b32 s13, s8, 1")
    k("s_add_u32 s60, s60, s13")
    k("s_add_u32 s60, s60, s14")
    k("s_lshl_b32 s60, s60, 7")

    def phase_s():
        for r in range(2):
            s_, q_ = TMP + 2 * r, TMP + 2 * r + 1
            first = True
            for i in range(3):
                for d in range(2):
                    unpack(k, "v204", "v205", f"v{SR+4*i+2*r+d}")
                    if first:
                        k(f"v_add_f32 v{s_}, v204, v205")
                        k(f"v_mul_f32 v{q_}, v204, v204")
                        first = False
                    else:
                        k(f"v_add_f32 v{s_}, v{s_}, v204")
                        k(f"v_add_f32 v{s_}, v{s_}, v205")
                        k(f"v_fmac_f32 v{q_}, v204, v204")
                    k(f"v_fmac_f32 v{q_}, v205, v205")
        for v in range(TMP, TMP + 4):
            k(f"v_add_f32_dpp v{v}, v{v}, v{v} row_ror:4 row_mask:0xf bank_mask:0xf")
        for v in range(TMP, TMP + 4):
            k(f"v_add_f32_dpp v{v}, v{v}, v{v} row_ror:8 row_mask:0xf bank_mask:0xf")
        for v in range(TMP, TMP + 4):
            xsum16(k, f"v{v}", "v204")
            xsum32(k, f"v{v}", "v204")
        k(f"v_or_b32 v{TMP+1}, 0x80000000, v{TMP+1}")
        k(f"v_or_b32 v{TMP+3}, 0x80000000, v{TMP+3}")
        k("s_lshl_b32 s12, s63, 3")
        k("s_add_u32 s12, s12, s3")
        k("s_lshl_b32 s12, s12, 7")
        k("s_lshl_b32 s13, s61, 5")
        k("s_add_u32 s12, s12, s13")
        k(f"s_add_u32 s12, s12, {SY_ST1}")
        k("v_lshlrev_b32 v204, 3, v1")
        set_exec(4)
        k(f"buffer_store_dwordx2 v[{TMP}:{TMP+1}], v204, {srd(SSY)}, s12 offen sc1")
        k(f"buffer_store_dwordx2 v[{TMP+2}:{TMP+3}], v204, {srd(SSY)}, s12 offen offset:512 sc1")
        k("s_mov_b64 exec, -1")

    sched = {}
    wi = NE1
    for kk in range(20):
        L = []
        if kk < 4:
            L += wgu_dma(6 + kk)
        if kk + DIST < 20:
            L += x_loads(0, 0, kk + DIST, 2 * (kk + DIST))
        else:
            kb = kk + DIST - 20
            L += x_loads(0, 1, kb, 40 + 2 * kb)
        if kk >= 20 - NWA and wi < 60:
            L += wd_load(wi)
            wi += 1
        if kk == 2:
            L = [phase_s] + L
        if kk == 14:
            L = st1_loads(0, TMP + 24) + L
        sched[kk] = L
    g1_main(0, sched, first=True, xp=True)
    stamp("g1a")
    stats1(0, STA)

    def take(n):
        nonlocal wi
        L = []
        for _ in range(n):
            if wi < 60:
                L += wd_load(wi)
                wi += 1
        return L
    g1_epilogue(0, 0, STA, take(NWE1))
    stamp("e1a")
    extra = {}
    for kk in range(12):
        extra[kk] = take((NWB * (kk + 1)) // 12 - (NWB * kk) // 12)
    extra[12] = st1_loads(1, TMP + 24) + res_loads(0)
    sched, rest = g1b_sched(0, extra)
    g1_main(40, sched, xp=True)
    stamp("g1b")
    for L in rest:
        for x in L:
            emit(x)
    stats1(1, STB)
    g1_epilogue(0, 1, STB, take(NWE2))
    print('Wd loads left for G2(A):', 60 - wi)
    stamp("e1b")

    NH0 = int(os.environ.get("NH0", "5"))

    def g2a(layer):
        sc = {kk: take(5) for kk in range(12)}
        assert wi == 60
        sc[HFK] = sc[HFK] + [lambda: h_flag(layer, 1)]
        sc[HPK] = sc[HPK] + h_poll_loads(layer, 1)
        g2_main(80, sc, X1R[0], X2[0])
        stamp(f"g2a{layer}")

        def mid():
            h_poll(layer, 1)
            stamp(f"ph{layer}")
            for kk in range(NH0):
                for x in h_loads(layer, 1, kk, 2 * kk):
                    emit(x)
        g2_reduce(X2[0], mid)

    def g2b_sched(layer, extra):
        sched = {}
        for kk in range(12):
            L = []
            if kk + NH0 < 12:
                L += h_loads(layer, 1, kk + NH0, 2 * (kk + NH0))
            sched[kk] = L + extra.get(kk, [])
        return sched

    g2a(0)
    part_stats(X2[0], 0, SY_ST2)
    stamp("r2a")

    def fin_a():
        finalize(0, X2[0], G2R)
        part_calc(X2[0], 244)
    g2_main(0, g2b_sched(0, {2: res_loads(1), FK - 3: st2_loads(0, G2R), FK: [fin_a]}), X1R[1], X2[1])
    stamp("g2b")
    g2_reduce(X2[1], lambda: part_pub(244, 0, SY_ST3, pre_wait="xst"))
    part_stats(X2[1], 1, SY_ST2)
    stamp("s3a")
    for x in st3_loads(0, TMP):
        emit(x)
    stats3(0, STA)
    stamp("p3a")
    for kk in range(DIST):
        for x in x_loads(1, 0, kk, 2 * kk):
            emit(x)
        if kk == 3:
            for x in st2_loads(1, G2R):
                emit(x)
    finalize(1, X2[1], G2R)
    part_calc(X2[1], 246)
    stamp("fin")
    sched = {}
    xb = [x_loads(1, 1, j, 40 + 2 * j) for j in range(DIST)]
    for kk in range(20):
        L = []
        if kk + DIST < 20:
            L += x_loads(1, 0, kk + DIST, 2 * (kk + DIST))
        if kk == PBK:
            L = L + [lambda: part_pub(246, 1, SY_ST3, pre_wait="xst")]
        if kk == S3K - 4:
            L = L + st3_loads(1, TMP)
        if kk == S3K:
            L = [lambda: stats3(1, STB)] + L
        if kk >= S3K:
            for _ in range(-(-DIST // (20 - S3K))):
                if xb and (DIST - len(xb)) + 8 < kk:
                    L += xb.pop(0)
        sched[kk] = L
    assert not xb
    g1_main(0, sched)
    stamp("g1a'")
    g1_epilogue(1, 0, STA)
    stamp("e1a'")
    sched, rest = g1b_sched(1, {})
    g1_main(40, sched)
    stamp("g1b'")
    for L in rest:
        for x in L:
            emit(x)
    g1_epilogue(1, 1, STB)
    stamp("e1b'")
    g2a(1)
    out_store(0, X2[0])
    stamp("r2a'")
    g2_main(0, g2b_sched(1, {}), X1R[1], X2[1])
    g2_reduce(X2[1])
    out_store(1, X2[1])
    if DIAG:
        in_srd(k, 96, 88, 256)
        k("s_cmp_eq_u32 s101, 0")
        k("s_cselect_b32 s10, 0x40000000, 0")
        k("s_lshl_b32 s11, s2, 8")
        k("s_or_b32 s11, s11, s101")
        k("s_lshl_b32 s12, s3, 16")
        k("s_or_b32 s11, s11, s12")
        k("v_mov_b32 v0, s11")
        k("s_and_b32 s12, s101, 0xe")
        k("s_lshl_b32 s12, s12, 1")
        k("v_mov_b32 v1, s12")
        ML("buffer_store_dword v0, v1, s[96:99], s10 offen", 1)()
    if os.environ.get("DBGST"):
        k.stamp("end")
        k.wait(vm=0, lg=0)
        in_srd(k, 96, 88, 256)
        k("s_lshl_b32 s10, s2, 2")
        k("s_add_u32 s10, s10, s3")
        k(f"s_cmp_eq_u32 s10, {int(os.environ['DBGST'])*4}")
        k("s_cselect_b32 s10, 0, 0x40000000")
        k("v_mov_b32 v0, 0")
        for i in range(1, len(k.stamps)):
            k(f"s_sub_u32 s11, s{64+2*i}, s64")
            k("v_mov_b32 v1, s11")
            ML(f"buffer_store_dword v1, v0, s[96:99], s10 offen offset:{4*i}", 1)()
        print(k.stamps)
    else:
        k.prof_end(2, 24, 3, names="main")
    k.label("main_end", flush=False)
    k("s_endpgm")
    k.raw("main_code_end:")
    return k


DOC = """; ---------------------------------------------------------------------------------------------
; ---------------------------------------------------------------------------------------------
"""

if __name__ == "__main__":
    if os.environ.get("PROF"):
        Kern.PROF = True
    main = gen_main()
    out = sys.argv[1] if len(sys.argv) > 1 else "v25.s"
    txt = build_file(HEADER, [main], [main]).replace(f"; @launch kernel={KNAME} ", "; @launch ")
    txt = txt.replace(".text\n", ".text\n" + DOC, 1)
    open(out, "w").write(txt)
    json.dump(PROFINFO, open(out + ".prof.json", "w"))
    print("instrs", main.nins, "vgpr", main.maxv + 1, "agpr", main.maxa + 1, "sgpr", main.maxs + 1, "lds", main.lds)
```

```python
import re

TRANS = ("v_exp_f32", "v_log_f32", "v_rcp_f32", "v_rsq_f32", "v_sqrt_f32", "v_sin_f32", "v_cos_f32",
         "v_rcp_iflag_f32")
NO_DST_SALU = ("s_cmp", "s_cbranch", "s_branch", "s_barrier", "s_waitcnt", "s_nop", "s_setprio", "s_sleep",
               "s_endpgm", "s_bitcmp", "s_setreg", "s_sendmsg")

_reg_re = re.compile(r"^(-?)(\|?)(abs\()?([vas])(\d+)\)?\|?$")
_rng_re = re.compile(r"^(-?)(\|?)(abs\()?([vas])\[(\d+):(\d+)\]\)?\|?$")


def regs_of(tok):
    tok = tok.strip()
    m = _reg_re.match(tok)
    if m:
        return [m.group(4) + m.group(5)]
    m = _rng_re.match(tok)
    if m:
        return [m.group(4) + str(i) for i in range(int(m.group(5)), int(m.group(6)) + 1)]
    if tok in ("vcc", "vcc_lo", "vcc_hi"):
        return ["vcc"]
    if tok in ("exec", "exec_lo", "exec_hi"):
        return ["exec"]
    if tok == "m0":
        return ["m0"]
    return []


def split_ops(rest):
    ops = []
    depth = 0
    cur = ""
    for ch in rest:
        if ch in "[(":
            depth += 1
        elif ch in "])":
            depth -= 1
        if ch == "," and depth == 0:
            ops.append(cur.strip())
            cur = ""
        else:
            cur += ch
    last = cur.strip()
    mods = []
    if last:
        parts = []
        depth = 0
        c2 = ""
        for ch in last:
            if ch in "[(":
                depth += 1
            elif ch in "])":
                depth -= 1
            if ch.isspace() and depth == 0:
                if c2:
                    parts.append(c2)
                c2 = ""
            else:
                c2 += ch
        if c2:
            parts.append(c2)
        ops.append(parts[0])
        mods = parts[1:]
    return ops, mods


class Ins:
    __slots__ = ("text", "mn", "ops", "mods", "kind", "rd", "wr", "passes", "A", "B", "C", "D", "dpp", "trans",
                 "lds_dma", "wide_store", "data")


def parse(text):
    t = text.split(";")[0].strip()
    sp = t.split(None, 1)
    mn = sp[0]
    ops, mods = split_ops(sp[1]) if len(sp) > 1 else ([], [])
    I = Ins()
    I.text = text
    I.mn = mn
    I.ops = ops
    I.mods = mods
    I.rd = []
    I.wr = []
    I.passes = 0
    I.A = I.B = I.C = I.D = []
    I.dpp = False
    I.trans = False
    I.lds_dma = False
    I.wide_store = False
    I.data = []
    R = lambda i: regs_of(ops[i]) if i < len(ops) else []
    allr = lambda a: [r for i in range(a, len(ops)) for r in R(i)]
    base = re.sub(r"_(e32|e64|dpp|sdwa)$", "", mn)
    if mn.startswith("v_mfma"):
        I.kind = "mfma"
        I.D = R(0); I.A = R(1); I.B = R(2); I.C = R(3)
        I.passes = 8 if "32x32x16" in mn else 4 if "16x16x32" in mn else None
        assert I.passes, mn
        I.rd = I.A + I.B + I.C
        I.wr = I.D
    elif mn.startswith("v_"):
        I.kind = "valu"
        I.dpp = any(m.startswith(("row_", "quad_perm", "wave_")) for m in mods) or base.startswith("v_permlane")
        I.trans = base in TRANS
        if base.startswith("v_cmp"):
            I.wr = R(0); I.rd = allr(1)
            assert not base.startswith("v_cmpx")
        elif base in ("v_readfirstlane_b32", "v_readlane_b32"):
            I.wr = R(0); I.rd = allr(1)
        elif (base.startswith("v_permlane") and "swap" in base) or base == "v_swap_b32":
            I.wr = R(0) + R(1); I.rd = R(0) + R(1)
        elif base.startswith(("v_fmac", "v_dot2c", "v_pk_fmac", "v_writelane")):
            I.wr = R(0); I.rd = allr(0)
        elif base in ("v_add_co_u32", "v_sub_co_u32", "v_subrev_co_u32", "v_addc_co_u32", "v_subb_co_u32",
                      "v_mad_u64_u32"):
            I.wr = R(0) + R(1); I.rd = allr(2)
        elif base == "v_nop":
            pass
        else:
            I.wr = R(0); I.rd = allr(1)
            if I.dpp or any(m.startswith("dst_unused:UNUSED_PRESERVE") for m in mods):
                I.rd = I.rd + R(0)
            if base == "v_cndmask_b32" and len(ops) == 3:
                I.rd.append("vcc")
    elif mn.startswith("buffer_load"):
        I.kind = "vmem"
        if "lds" in mods:
            I.lds_dma = True
            I.rd = allr(0) + ["m0"]
        else:
            I.wr = R(0); I.rd = allr(1)
            if "d16" in mn:
                I.rd += R(0)
    elif mn.startswith("buffer_store"):
        I.kind = "vmem"
        I.rd = allr(0); I.data = R(0)
        I.wide_store = mn.endswith(("x3", "x4"))
    elif mn.startswith("buffer_atomic"):
        I.kind = "vmem"
        I.rd = allr(0)
        if "sc0" in mods:
            I.wr = R(0)
    elif mn.startswith(("buffer_wbl2", "buffer_inv")):
        I.kind = "vmem"
    elif mn.startswith("global_load_lds"):
        I.kind = "vmem"; I.lds_dma = True
        I.rd = allr(0) + ["m0"]
    elif mn.startswith("global_load"):
        I.kind = "vmem"
        I.wr = R(0); I.rd = allr(1)
    elif mn.startswith("global_store"):
        I.kind = "vmem"
        I.rd = allr(0); I.data = R(1)
        I.wide_store = mn.endswith(("x3", "x4"))
    elif mn.startswith("global_atomic"):
        I.kind = "vmem"
        if "sc0" in mods:
            I.wr = R(0); I.rd = allr(1)
        else:
            I.rd = allr(0)
    elif mn.startswith("ds_"):
        I.kind = "ds"
        if mn.startswith(("ds_read", "ds_bpermute", "ds_permute", "ds_swizzle")) or "_rtn" in mn:
            I.wr = R(0); I.rd = allr(1)
            if "d16" in mn:
                I.rd += R(0)
        else:
            I.rd = allr(0)
    elif mn.startswith(("s_load", "s_memtime", "s_memrealtime", "s_buffer_load")):
        I.kind = "smem"
        I.wr = R(0); I.rd = allr(1)
    elif mn.startswith("s_"):
        I.kind = "salu"
        if mn.startswith(NO_DST_SALU):
            I.rd = allr(0)
        elif "saveexec" in mn:
            I.wr = R(0) + ["exec"]; I.rd = allr(1) + ["exec"]
        else:
            I.wr = R(0); I.rd = allr(1)
            if mn.startswith(("s_addk", "s_mulk", "s_cmov")):
                I.rd += R(0)
    else:
        raise ValueError("unknown instruction: " + text)
    return I


PROFINFO = {}


class Kern:
    def __init__(self, name, lds=0, grid=None, block=256):
        self.name = name
        self.lds = lds
        self.grid = grid
        self.block = block
        self.lines = []
        self.t = 0
        self.valu_w = {}
        self.valu_sw = {}
        self.mfma_w = {}
        self.mfma_c = {}
        self.st_data = {}
        self.dl_w = {}
        self.m0_w = -100
        self.vm = []
        self.lg = []
        self.maxv = -1
        self.maxa = -1
        self.maxs = -1
        self.nins = 0
        self.uid = 0
        self.auto = True

    def raw(self, s):
        self.lines.append(s)

    def comment(self, s):
        self.lines.append("    ; " + s)

    def _nop(self, n):
        while n > 0:
            k = min(n, 16)
            self.lines.append(f"    s_nop {k-1}")
            self.t += k
            self.nins += 1
            n -= k

    def _waitcnt(self, vm=None, lg=None):
        parts = []
        if vm is not None:
            vm = min(vm, 63)
            if vm < len(self.vm):
                parts.append(f"vmcnt({vm})")
                self.vm = self.vm[len(self.vm) - vm:] if vm else []
        if lg is not None:
            if any(e[2] for e in self.lg):
                lg = 0
            lg = min(lg, 15)
            if lg < len(self.lg):
                parts.append(f"lgkmcnt({lg})")
                self.lg = self.lg[len(self.lg) - lg:] if lg else []
        if parts:
            self.lines.append("    s_waitcnt " + " ".join(parts))
            self.t += 1
            self.nins += 1

    def wait(self, vm=None, lg=None):
        self._waitcnt(vm, lg)

    def haz_snapshot(self):
        import copy
        return copy.deepcopy((self.t, self.valu_w, self.valu_sw, self.mfma_w, self.mfma_c, self.st_data, self.dl_w, self.m0_w))

    def haz_restore(self, snap):
        import copy
        (self.t, self.valu_w, self.valu_sw, self.mfma_w, self.mfma_c, self.st_data, self.dl_w, self.m0_w) = copy.deepcopy(snap)

    def need(self, regs):
        ts = set(regs)
        vmn = lgn = None
        for i, e in enumerate(self.vm):
            if e[0] & ts:
                vmn = len(self.vm) - 1 - i
        for i, e in enumerate(self.lg):
            if e[0] & ts:
                lgn = len(self.lg) - 1 - i
        if vmn is not None or lgn is not None:
            self._waitcnt(vmn, lgn)

    def wait_tag(self, tag):
        idx = [i for i, e in enumerate(self.vm) if e[1] == tag]
        if idx:
            self._waitcnt(vm=len(self.vm) - 1 - max(idx))

    def wait_lg_tag(self, tag):
        idx = [i for i, e in enumerate(self.lg) if e[1] == tag]
        if idx:
            self._waitcnt(lg=len(self.lg) - 1 - max(idx))

    def flush_hazards(self):
        need = 0
        for r, (t, p, d) in self.mfma_w.items():
            need = max(need, (8 if p == 4 else 12) - (self.t - t - 1))
        for r, (t, tr) in self.valu_w.items():
            need = max(need, 2 - (self.t - t - 1))
        for r, t in self.valu_sw.items():
            need = max(need, 5 - (self.t - t - 1))
        for r, t in self.st_data.items():
            need = max(need, 2 - (self.t - t - 1))
        for r, (t, mn) in self.dl_w.items():
            need = max(need, 3 - (self.t - t - 1))
        need = max(need, 1 - (self.t - self.m0_w - 1))
        if need > 0:
            self._nop(need)

    def label(self, name, flush=True):
        if flush:
            self._waitcnt(0, 0)
            self.flush_hazards()
        self.lines.append(name + ":")

    def branch(self, text, flush=True):
        if flush:
            self._waitcnt(0, 0)
            self.flush_hazards()
        self(text)

    def barrier(self):
        self("s_barrier")

    def newlabel(self, base="L"):
        self.uid += 1
        return f"{self.name}_{base}{self.uid}"

    def __call__(self, text, tag=None):
        I = parse(text)
        touched = I.rd + I.wr
        for r in touched:
            if r[0] == "v" and r != "vcc":
                self.maxv = max(self.maxv, int(r[1:]))
            elif r[0] == "a":
                self.maxa = max(self.maxa, int(r[1:]))
            elif r[0] == "s":
                self.maxs = max(self.maxs, int(r[1:]))
        if I.mn == "s_waitcnt":
            raise ValueError("use .wait()")
        if self.auto:
            ts = set(touched)
            vmn = lgn = None
            for i, e in enumerate(self.vm):
                if e[0] & ts:
                    vmn = len(self.vm) - 1 - i
            for i, e in enumerate(self.lg):
                if e[0] & ts:
                    lgn = len(self.lg) - 1 - i
            if vmn is not None or lgn is not None:
                self._waitcnt(vmn, lgn)
        need = 0

        def req(t, n):
            nonlocal need
            need = max(need, n - (self.t - t - 1))

        XD = {4: 8, 8: 12}
        for r in touched:
            if r in self.dl_w:
                t, mn = self.dl_w[r]
                if mn == I.mn:
                    srcab = regs_of(I.ops[1]) + regs_of(I.ops[2])
                    if r in srcab:
                        req(t, 3)
                else:
                    req(t, 3)
        if I.kind == "mfma":
            for r in I.rd:
                if r in self.valu_w:
                    req(self.valu_w[r][0], 2)
            for r in I.A + I.B:
                if r in self.mfma_w:
                    t, p, d = self.mfma_w[r]
                    req(t, XD[p])
            for r in I.C + I.D:
                if r in self.mfma_w:
                    t, p, d = self.mfma_w[r]
                    if d == tuple(I.C) and p == I.passes and I.C == I.D:
                        pass
                    elif d == tuple(I.C) and p == I.passes and r in I.C:
                        pass
                    else:
                        req(t, {4: 6, 8: 10}[p])
        elif I.kind == "valu":
            for r in touched:
                if r in self.mfma_w:
                    t, p, d = self.mfma_w[r]
                    req(t, XD[p])
            for r in I.wr:
                if r in self.mfma_c:
                    t, p = self.mfma_c[r]
                    req(t, {4: 3, 8: 7}[p])
                if r in self.st_data:
                    req(self.st_data[r], 2)
            for r in I.rd:
                if r in self.valu_w:
                    t, tr = self.valu_w[r]
                    if tr and not I.trans:
                        req(t, 1)
                    if I.dpp:
                        req(t, 2)
                    if I.mn.startswith(("v_readlane", "v_readfirstlane")):
                        req(t, 1)
                if r in self.valu_sw:
                    req(self.valu_sw[r], 4 if I.mn.startswith(("v_readlane", "v_writelane")) else 2)
        elif I.kind in ("vmem", "ds"):
            for r in touched:
                if r in self.mfma_w:
                    t, p, d = self.mfma_w[r]
                    req(t, XD[p])
            for r in I.rd:
                if r in self.valu_sw:
                    req(self.valu_sw[r], 5)
            for r in I.wr:
                if r in self.st_data:
                    req(self.st_data[r], 1)
                if r in self.mfma_c:
                    t, p = self.mfma_c[r]
                    req(t, {4: 3, 8: 7}[p])
            if I.lds_dma:
                req(self.m0_w, 1)
        elif I.kind in ("salu", "smem"):
            for r in I.rd:
                if r in self.valu_sw:
                    req(self.valu_sw[r], 1)
        if need > 0:
            self._nop(need)
        self.lines.append("    " + text)
        self.nins += 1
        now = self.t
        if I.mn == "s_nop":
            self.t += int(I.ops[0], 0) + 1
        else:
            self.t += 1
        for r in I.wr:
            self.valu_w.pop(r, None)
            self.mfma_w.pop(r, None)
            self.valu_sw.pop(r, None)
            self.dl_w.pop(r, None)
        if I.mn.startswith("v_dot"):
            for r in I.wr:
                self.dl_w[r] = (now, I.mn)
        if I.kind == "mfma":
            for r in I.D:
                self.mfma_w[r] = (now, I.passes, tuple(I.D))
            for r in I.C:
                self.mfma_c[r] = (now, I.passes)
        elif I.kind == "valu":
            for r in I.wr:
                if r[0] in "va" and r != "vcc":
                    self.valu_w[r] = (now, I.trans)
                else:
                    self.valu_sw[r] = now
        elif I.kind == "vmem":
            if I.wide_store:
                for r in I.data:
                    self.st_data[r] = now
            self.vm.append((set(I.wr), tag))
        elif I.kind == "ds":
            self.lg.append((set(I.wr), tag, False))
        elif I.kind == "smem":
            self.lg.append((set(I.wr), tag, True))
        elif I.kind == "salu":
            if "m0" in I.wr:
                self.m0_w = now
        if self.nins % 64 == 0:
            for d in (self.valu_sw, self.st_data):
                for r in [r for r, t in d.items() if self.t - t > 24]:
                    del d[r]
            for d in (self.valu_w, self.mfma_w, self.mfma_c, self.dl_w):
                for r in [r for r, e in d.items() if self.t - e[0] > 24]:
                    del d[r]

    PROF = False
    import os as _os
    CLK = 's_memrealtime' if _os.environ.get('REAL') else 's_memtime'
    def stamp(self, name):
        if not Kern.PROF:
            return
        if not hasattr(self, "stamps"):
            self.stamps = []
        i = len(self.stamps)
        assert i < 14
        self.stamps.append(name)
        self(f"{Kern.CLK} s[{64+2*i}:{65+2*i}]")

    def prof_begin(self):
        if not Kern.PROF:
            return
        self("s_memrealtime s[92:93]")
        self.stamp("start")

    def prof_end(self, slot, ws_lo, wave_sreg, slot_sreg=None, names=None):
        if not Kern.PROF:
            return
        self.stamp("end")
        self.wait(vm=0)
        self.stamp("drained")
        self("s_memrealtime s[94:95]")
        self.wait(lg=0)
        self.srd(96, ws_lo, 0x400000, 0x8000000)
        self("s_lshl_b32 s100, s2, 4")
        self(f"s_add_u32 s100, s100, s{wave_sreg}")
        self("s_lshl_b32 s100, s100, 6")
        if slot_sreg is None:
            self(f"s_add_u32 s100, s100, {slot*0x40000}")
        else:
            self(f"s_add_u32 s100, s100, s{slot_sreg}")
        self("v_mov_b32 v0, s100")
        vals = ["s92", "s94"] + [f"s{64+2*i}" for i in range(len(self.stamps))]
        for i, v in enumerate(vals):
            self(f"v_mov_b32 v1, {v}")
            self(f"buffer_store_dword v1, v0, s[96:99], 0 offen offset:{4*i}")
        if slot_sreg is None:
            PROFINFO[slot] = (names or self.name, list(self.stamps))
        else:
            for sl, nm in zip(slot, names):
                PROFINFO[sl] = (nm, list(self.stamps))

    def srd(self, d, ptr_lo, nbytes, off=0):
        if off:
            self(f"s_add_u32 s{d}, s{ptr_lo}, {off}")
            self(f"s_addc_u32 s{d+1}, s{ptr_lo+1}, 0")
        else:
            self(f"s_mov_b32 s{d}, s{ptr_lo}")
            self(f"s_mov_b32 s{d+1}, s{ptr_lo+1}")
        self(f"s_mov_b32 s{d+2}, {nbytes}")
        self(f"s_mov_b32 s{d+3}, 0x00020000")

    def text(self):
        hdr = [f".globl {self.name}", ".p2align 8", f".type {self.name},@function", f"{self.name}:"]
        return "\n".join(hdr + self.lines) + "\n"

    def descriptor(self):
        nv = self.maxv + 1
        acc = max(4, (nv + 3) // 4 * 4)
        tot = acc + self.maxa + 1 if self.maxa >= 0 else nv
        assert nv <= 256 and tot <= 512, (nv, tot)
        ns = max(self.maxs + 1, 8)
        assert ns <= 102
        return f""".p2align 6
.amdhsa_kernel {self.name}
  .amdhsa_next_free_vgpr {tot}
  .amdhsa_next_free_sgpr {ns}
  .amdhsa_accum_offset {acc}
  .amdhsa_group_segment_fixed_size 0
  .amdhsa_kernarg_size 104
  .amdhsa_user_sgpr_count 2
  .amdhsa_user_sgpr_kernarg_segment_ptr 1
  .amdhsa_system_sgpr_workgroup_id_x 1
  .amdhsa_float_denorm_mode_32 3
.end_amdhsa_kernel
"""


def build_file(header_comment, kerns, launches):
    out = [header_comment.rstrip("\n")]
    for k in launches:
        out.append(f"; @launch kernel={k.name} grid=({k.grid},1,1) block=({k.block},1,1) lds={k.lds}")
    out.append('.amdgcn_target "amdgcn-amd-amdhsa--gfx950"')
    out.append(".text")
    for k in kerns:
        out.append(k.text())
    out.append('.section .rodata,"a"')
    for k in kerns:
        out.append(k.descriptor())
    return "\n".join(out)
```

```python
import sys, os, json
sys.path.insert(0, "dev")
from asmdsl import *
from gen1 import S, D, F, EPS, f2u, unpack, reduce16, xsum16, xsum32, HEADER, XFB, HFB, WDB

KNAME = "interleave_layers__ssm_conv_h3__swiglu_ffn__prompt_kernel"
WS_KVT = 0x0000000
WS_QST = 0x0300000
WS_WGU = 0x0400000
WGU_M = 20 * 6144
WGUB = 32 * WGU_M
WS_CS = 0x0800000
WS_WD = 0x0900000
WS_Y = 0x0C00000
WS_X1 = 0x0F00000
WS_H = 0x1200000
WS_X3 = 0x1D00000
WS_H2 = 0x2000000
WS_SYNC = 0x2800000
SY_ST1 = 0
SY_ST2 = 0x10000
SY_ST3 = 0x50000
SY_HF = 0x90000
SY_CF_OLD = 0x110000
SY_PF = 0x124000
SY_QF = 0x128000
SY_GF = 0x12C000
SY_QF = 0x140000
SY_CF = 0x150000
SYNCB = 0x178000
SN = "s[100:101]"
WS_QX = 0x2C00000
XBLK = 40960
WSB = 0x3000000
XRT = 20480
HRT = 49152
OOB = 0x80000000
LOG2E = 1.4426950408889634
SPIN_MAX = 1 << 18
NPREP = 96
STAMPS = os.environ.get("STAMPS", "").split(",")
NP1 = int(os.environ.get("NP1", "4"))
NE1 = int(os.environ.get("NE1", "32"))
PPN = int(os.environ.get("PPN", "2"))
LASTW = int(os.environ.get("LASTW", "240"))
NB = int(os.environ.get("NB", "12"))
NE2 = int(os.environ.get("NE2", "0"))
MAP = int(os.environ.get("MAP", "2"))
PF = int(os.environ.get("PF", "0"))
FK = int(os.environ.get("FK", "7"))
HFK = int(os.environ.get("HFK", "4"))
S3K = int(os.environ.get("S3K", "15"))
NWA = int(os.environ.get("NWA", "10"))
NWE1 = int(os.environ.get("NWE1", "12"))
NWB = int(os.environ.get("NWB", "14"))
NWE2 = int(os.environ.get("NWE2", "12"))
HPK = int(os.environ.get("HPK", "9"))
PREW = int(os.environ.get("PREW", "1"))
DIAG = int(os.environ.get("DIAG", "0"))
QPN = int(os.environ.get("QPN", "8"))
QPOS = int(os.environ.get("QPOS", "2"))
NEP = int(os.environ.get("NEP", "40"))
NT = " nt" if os.environ.get("NT") else ""
HPOS = int(os.environ.get("HPOS", "2"))
HAK = int(os.environ.get("HAK", "3"))
PBK = int(os.environ.get("PBK", "3"))
QTOUCH = int(os.environ.get("QTOUCH", "0"))
EVERY = int(os.environ.get("EVERY", "5"))


def srd(n):
    return f"s[{n}:{n+3}]"


def mkstamp(k):
    def stamp(n):
        if n in STAMPS:
            if hasattr(k, "stamps") and n in k.stamps:
                if Kern.PROF:
                    i = k.stamps.index(n)
                    k(f"{Kern.CLK} s[{64+2*i}:{65+2*i}]")
            else:
                k.stamp(n)
    return stamp


def in_srd(k, slot, karg_off, nbytes):
    k(f"s_load_dwordx2 s[{slot}:{slot+1}], s[0:1], {karg_off}")
    k(f"s_mov_b32 s{slot+2}, {nbytes}")
    k(f"s_mov_b32 s{slot+3}, 0x00020000")


def gen_pre():
    k = Kern("pre_kernel", lds=8192, grid=384, block=128)
    stamp = mkstamp(k)
    SA, SB, SC_, SD_, SWS = 28, 32, 36, 40, 48
    k.prof_begin()
    k(f"s_cmp_ge_u32 s2, {k.grid}")
    k.branch("s_cbranch_scc1 pre_end", flush=False)
    k("s_load_dwordx2 s[24:25], s[0:1], 96")
    k("s_cmp_ge_u32 s2, 320")
    k.branch("s_cbranch_scc1 pre_q", flush=False)
    saved0 = (list(k.vm), list(k.lg))
    in_srd(k, SA, 8, S * D * 2)
    in_srd(k, SB, 16, S * D * 2)
    in_srd(k, SC_, 24, D * 8)
    in_srd(k, SD_, 32, D * 4096)
    k("v_lshrrev_b32 v1, 6, v0")
    k("v_readfirstlane_b32 s3, v1")
    k("v_and_b32 v1, 63, v0")
    k("s_lshr_b32 s57, s2, 5")
    k("s_and_b32 s58, s2, 31")
    k("v_lshrrev_b32 v4, 3, v1")
    k("v_and_b32 v5, 7, v1")
    k("s_lshl_b32 s10, s58, 6")
    k("s_lshl_b32 s11, s3, 5")
    k("s_add_u32 s10, s10, s11")
    k("v_lshlrev_b32 v6, 2, v4")
    k("v_add_u32 v6, s10, v6")
    k("v_mul_u32_u24 v7, 1280, v6")
    k("v_lshl_add_u32 v7, v5, 4, v7")
    k("s_lshl_b32 s12, s57, 7")
    k("v_add_u32 v7, s12, v7")
    KR, VR, WR = 16, 44, 60
    k("v_lshlrev_b32 v9, 6, v5")
    k("s_lshl_b32 s12, s57, 9")
    for j in (3, 4, 5, 6):
        k(f"buffer_load_dwordx4 v[{KR+4*j}:{KR+4*j+3}], v7, {srd(SA)}, 0 offen offset:{(j-3)*1280}")
    for i in range(4):
        k(f"buffer_load_dwordx4 v[{VR+4*i}:{VR+4*i+3}], v7, {srd(SB)}, 0 offen offset:{i*1280}{NT}")
    for i in range(4):
        k(f"buffer_load_dwordx4 v[{WR+4*i}:{WR+4*i+3}], v9, {srd(SC_)}, s12 offen offset:{16*i}")
    for j in (2, 1, 0):
        k(f"v_add_u32 v8, {((j-3)*1280) & 0xffffffff:#x}, v7")
        k(f"buffer_load_dwordx4 v[{KR+4*j}:{KR+4*j+3}], v8, {srd(SA)}, 0 offen")
    k.srd(SWS, 24, WSB)
    k("s_lshl_b32 s10, s3, 6")
    k("s_sub_u32 s10, 120, s10")
    k("v_lshlrev_b32 v8, 3, v4")
    k("v_sub_u32 v8, s10, v8")
    k("v_lshlrev_b32 v9, 4, v5")
    k("v_xor_b32 v8, v8, v9")
    k("v_lshl_add_u32 v8, v5, 10, v8")
    k("s_lshl_b32 s10, s3, 12")
    k("v_lshlrev_b32 v11, 7, v4")
    k("v_add_u32 v11, s10, v11")
    k("s_lshl_b32 s11, s3, 2")
    for j in range(4):
        k(f"s_add_u32 s12, s11, {j}")
        k(f"v_xor_b32 v{12+j}, s12, v5")
        k(f"v_lshl_add_u32 v{12+j}, v{12+j}, 4, v11")
    k("v_lshl_add_u32 v9, v4, 12, v9")
    k("s_lshl_b32 s10, s57, 6")
    k("s_lshl_b32 s11, s3, 5")
    k("s_add_u32 s10, s10, s11")
    k("s_lshl_b32 s10, s10, 12")
    k("s_lshl_b32 s11, s58, 7")
    k("s_sub_u32 s11, 3968, s11")
    k("s_add_u32 s10, s10, s11")
    WF = 80
    for c in range(8):
        unpack(k, f"v{WF+4*c}", f"v{WF+4*c+1}", f"v{WR+2*c}")
        unpack(k, f"v{WF+4*c+2}", f"v{WF+4*c+3}", f"v{WR+2*c+1}")
    k.need([f"v{KR}"])
    stamp("Tld")
    if HPOS == 3:
        h_loads_()
    lab = k.newlabel("pc")
    k("s_getpc_b64 s[44:45]")
    k.raw(lab + ":")
    k(f"s_add_u32 s44, s44, main_kernel-{lab}")
    k("s_addc_u32 s45, s45, 0")
    k("s_mov_b32 s46, main_code_end-main_kernel")
    k("s_mov_b32 s47, 0x00020000")
    k("v_lshlrev_b32 v2, 7, v0")
    k(f"s_sub_u32 s12, s2, {NPREP}")
    k("s_lshl_b32 s12, s12, 14")
    k("s_and_b32 s12, s12, 0x7fffffff")
    k(f"buffer_load_dword v150, v2, {srd(SD_)}, s12 offen")
    k("s_lshr_b32 s12, s2, 3")
    k("s_lshl_b32 s12, s12, 14")
    k("buffer_load_dword v151, v2, s[44:47], s12 offen")
    KF, VF, OUT = 112, 128, 136
    for cp in range(4):
        for j in range(7):
            unpack(k, f"v{KF+2*j}", f"v{KF+2*j+1}", f"v{KR+4*j+cp}")
        for i in range(4):
            unpack(k, f"v{VF+2*i}", f"v{VF+2*i+1}", f"v{VR+4*i+cp}")
        for h in range(2):
            c = 2 * cp + h
            O = OUT + 4 * h
            for i in range(4):
                k(f"v_mul_f32 v{O+i}, v{KF+2*(i+0)+h}, v{WF+4*c+3}")
            for t in (2, 1, 0):
                for i in range(4):
                    k(f"v_fmac_f32 v{O+i}, v{KF+2*(i+3-t)+h}, v{WF+4*c+t}")
            for i in range(4):
                k(f"v_mul_f32 v{O+i}, v{O+i}, v{VF+2*i+h}")
            p = 144 + 2 * h
            k(f"v_cvt_pk_bf16_f32 v{p}, v{O+3}, v{O+2}")
            k(f"v_cvt_pk_bf16_f32 v{p+1}, v{O+1}, v{O+0}")
            k(f"ds_write_b64 v8, v[{p}:{p+1}] offset:{c*128}")
    k.wait(lg=0)
    k.barrier()
    stamp("Tkv")
    for j in range(4):
        k(f"ds_read_b128 v[{16+4*j}:{19+4*j}], v{12+j} offset:{j*1024}")
    for j in range(4):
        k(f"buffer_store_dwordx4 v[{16+4*j}:{19+4*j}], v9, {srd(SWS)}, s10 offen{PSC}")
        k("s_add_u32 s10, s10, 32768")
    for i in range(4):
        k(f"v_mov_b32 v{32+i}, 0")
    k.srd(SA, 24, SYNCB, WS_SYNC)
    k("s_lshl_b32 s12, s2, 12")
    k("v_lshlrev_b32 v8, 4, v0")
    for i in range(2):
        k(f"buffer_store_dwordx4 v[32:35], v8, {srd(SA)}, s12 offen offset:{i*2048}{PSC}")
    k.prof_end(0, 24, 3, names="pre")
    k("s_endpgm")
    k.label("pre_q", flush=False)
    k.vm, k.lg = saved0
    in_srd(k, SA, 0, S * D * 2)
    k("v_lshrrev_b32 v1, 6, v0")
    k("v_readfirstlane_b32 s3, v1")
    k("v_and_b32 v1, 63, v0")
    k("v_and_b32 v2, 15, v0")
    k("v_bfe_u32 v3, v0, 4, 2")
    k("s_sub_u32 s10, s2, 320")
    k("s_lshl_b32 s10, s10, 1")
    k("s_add_u32 s10, s10, s3")
    k(f"s_mul_i32 s11, s10, {XRT}")
    k("v_mul_u32_u24 v4, 1280, v2")
    k("v_lshl_add_u32 v4, v3, 4, v4")
    QR = 16
    for i in range(20):
        k(f"buffer_load_dwordx4 v[{QR+4*i}:{QR+4*i+3}], v4, {srd(SA)}, s11 offen offset:{64*i}")
    k.srd(SWS, 24, WSB)
    k("v_lshlrev_b32 v5, 4, v1")
    k(f"s_add_u32 s12, s11, {WS_QX}")
    k("v_mov_b32 v6, 0x3f803f80")
    k("v_mov_b32 v8, 0")
    k("v_mov_b32 v9, 0")
    for i in range(20):
        if i % 4 == 0 and i:
            k("s_add_u32 s12, s12, 4096")
        k(f"buffer_store_dwordx4 v[{QR+4*i}:{QR+4*i+3}], v5, {srd(SWS)}, s12 offen offset:{(i%4)*1024}{PSC}")
        for d in range(4):
            k(f"v_dot2c_f32_bf16 v8, v{QR+4*i+d}, v6")
            k(f"v_dot2c_f32_bf16 v9, v{QR+4*i+d}, v{QR+4*i+d}")
    for v in ("v8", "v9"):
        xsum16(k, v, "v7")
        xsum32(k, v, "v7")
    k(f"v_mul_f32 v8, {f2u(1.0/D)}, v8")
    k(f"v_mul_f32 v9, {f2u(1.0/D)}, v9")
    k("v_fma_f32 v9, -v8, v8, v9")
    k("v_max_f32 v9, 0, v9")
    k(f"v_add_f32 v9, {f2u(EPS)}, v9")
    k("v_rsq_f32 v11, v9")
    k("v_mul_f32 v10, v8, v11")
    k("s_lshl_b32 s12, s10, 7")
    k(f"s_add_u32 s12, s12, {WS_QST}")
    k("v_lshlrev_b32 v7, 3, v2")
    k(f"buffer_store_dwordx2 v[10:11], v7, {srd(SWS)}, s12 offen")
    k.label("pre_end", flush=False)
    k("s_endpgm")
    return k


PSC = os.environ.get("PSC", "")

def gen_main():
    LW = 0
    LR = 131072
    LC = 122880
    CP = 4160
    UOFF = 4 * CP
    WREG = 4 * CP + 4608
    CB = 163840 - 4 * WREG
    k = Kern(KNAME, lds=163840, grid=256, block=256)
    RING, ACC, WB, TMP = 16, 112, 160, 184
    X1R = [216, 222]
    YR = [228, 234]
    STA, STB = [4, 6], [240, 242]
    X2 = [WB, WB + 12]
    G2R = TMP + 8
    DIST = int(os.environ.get("DIST", "8"))
    VL16, VL16B, VH2, VT4, VT4S, VROW, VGW, VGR, VQ128, VFLAG, VFPOLL = (
        "v10", "v11", "v8", "v9", "v12", "v13", "v14", "v15", "v0", "v252", "v253")
    VL128 = "v251"
    VXP = "v250"
    VRW = "v249"
    LQ = 131072
    SX, SW, SH, SWD, SSY, SO, SY_ = 28, 32, 36, 40, 44, 48, 52
    SA, SB, SWS, SDBG = 28, 36, 48, 52
    XSPAN = WS_X3 - WS_X1
    HSPAN = WS_H2 - WS_H

    stamp = mkstamp(k)

    def ring(i):
        return RING + 4 * (i % 24)

    def emit(x):
        if callable(x):
            x()
        elif isinstance(x, tuple):
            k(x[0], tag=x[1])
        else:
            k(x)

    def set_exec(nl):
        m = (1 << nl) - 1
        if nl <= 32:
            k(f"s_mov_b64 exec, {m:#x}") if nl <= 6 else (k(f"s_mov_b32 exec_lo, {m:#x}"), k("s_mov_b32 exec_hi, 0"))
        else:
            k(f"s_mov_b32 exec_hi, {m >> 32:#x}")

    class ML:
        def __init__(self, text, nl):
            self.text, self.nl = text, nl

        def __call__(self):
            set_exec(self.nl)
            k(self.text)
            k("s_mov_b64 exec, -1")

    def isvm(x):
        if isinstance(x, ML):
            return True
        if callable(x):
            return False
        return (x[0] if isinstance(x, tuple) else x).startswith("buffer_")

    def emit_one_vmem(L):
        while L:
            x = L.pop(0)
            emit(x)
            if isvm(x):
                return

    def x_loads(layer, b, kk, slot0):
        if layer == 0:
            return [f"s_add_u32 s10, s17, {kk*2048 + b*4*XBLK}"] + [
                f"buffer_load_dwordx4 v[{ring(slot0+e)}:{ring(slot0+e)+3}], {VXP}, {srd(SX)}, s10 offen offset:{e*256} sc1"
                for e in range(2)]
        so = kk * 1024 + b * 8 * XRT + (XSPAN if layer else 0)
        L = []
        for tn in range(2):
            L.append(f"s_add_u32 s10, s17, {so + tn*XRT}")
            L.append(f"buffer_load_dwordx4 v[{ring(slot0+tn)}:{ring(slot0+tn)+3}], {VL16}, {srd(SX)}, s10 offen sc1")
        return L

    def h_loads(layer, b, kk, slot0):
        so = kk * 1024 + b * 8 * HRT + (HSPAN if layer else 0)
        L = []
        for tn in range(2):
            L.append(f"s_add_u32 s10, s{57+tn}, {so}")
            L.append(f"buffer_load_dwordx4 v[{ring(slot0+tn)}:{ring(slot0+tn)+3}], {VL16}, {srd(SH)}, s10 offen sc1")
        return L

    def x_pf(layer, b):
        if not PF:
            return []
        return [f"s_add_u32 s10, s26, {b*8*XRT + (XSPAN if layer else 0)}",
                ML(f"buffer_load_dword a240, {VL128}, {srd(SX)}, s10 offen sc1", 20)]

    def h_pf(layer, b):
        if not PF:
            return []
        return [f"s_add_u32 s10, s27, {b*8*HRT + (HSPAN if layer else 0)}",
                ML(f"buffer_load_dword a241, {VL128}, {srd(SH)}, s10 offen sc1", 48)]

    def wgu_dma(p):
        return [f"s_add_u32 m0, s18, {LW + p*12288}", f"s_add_u32 s11, s19, {p*12288}"] + [
            (f"buffer_load_dwordx4 {VL16}, {srd(SW)}, s11 offen offset:{f*1024} sc1 lds", f"w{p}") for f in range(3)]

    def wd_load(i):
        kk, lt = divmod(i, 5)
        base = "s20" if lt < 2 else "s21" if lt < 4 else "s22"
        return [f"s_add_u32 s11, {base}, {kk*5120}",
                f"buffer_load_dwordx4 a[{4*i}:{4*i+3}], {VL16}, {srd(SWD)}, s11 offen offset:{(lt&1)*1024 if lt < 4 else 0} sc1"]

    def poll(loads, tags, tmp, sleep=1, ge=None, nl=64, eq=None):
        def check():
            if nl < 64:
                k(f"v_mov_b32 {tags[0]}, {tags[0]}")
                set_exec(nl)
            check0()
            if nl < 64:
                k("s_cmp_eq_u64 vcc, exec")
                k("s_mov_b64 exec, -1")
            else:
                k("s_cmp_eq_u64 vcc, -1")

        def check0():
            if eq is not None:
                r_ = int(tags[0][1:])
                k(f"v_cmp_eq_u64 vcc, {eq}, v[{r_}:{r_+1}]")
            elif ge is not None:
                k(f"v_cmp_le_u32 vcc, {ge}, {tags[0]}")
            elif len(tags) == 1:
                k(f"v_cmp_ne_u32 vcc, 0, {tags[0]}")
            else:
                k(f"v_min_u32 {tmp}, {tags[0]}, {tags[1]}")
                for t in tags[2:]:
                    k(f"v_min_u32 {tmp}, {tmp}, {t}")
                k(f"v_cmp_ne_u32 vcc, 0, {tmp}")
        ok = k.newlabel("ok")
        lp = k.newlabel("spin")
        check()
        k.branch(f"s_cbranch_scc1 {ok}", flush=False)
        vm, lg = list(k.vm), list(k.lg)
        snap = k.haz_snapshot()
        k("s_mov_b32 s23, 0")
        k.label(lp, flush=False)
        k(f"s_sleep {sleep}")
        for l in loads:
            emit(l)
        k.wait(vm=0)
        k("s_add_u32 s23, s23, 1")
        k(f"s_cmp_ge_u32 s23, {SPIN_MAX}")
        if DIAG:
            k(f"s_cselect_b32 s101, {k.uid}, s101")
        k.branch(f"s_cbranch_scc1 {ok}", flush=False)
        check()
        k.branch(f"s_cbranch_scc0 {lp}", flush=False)
        k.flush_hazards()
        k.label(ok, flush=False)
        k.vm, k.lg = vm, lg
        k.haz_restore(snap)

    def finish_stats(vsum, vnsq, dst):
        k(f"v_mul_f32 v{dst}, {f2u(-1.0/D)}, {vsum}")
        k(f"v_mul_f32 {vnsq}, {f2u(-1.0/D)}, {vnsq}")
        k(f"v_fma_f32 {vnsq}, -v{dst}, v{dst}, {vnsq}")
        k(f"v_max_f32 {vnsq}, 0, {vnsq}")
        k(f"v_add_f32 {vnsq}, {f2u(EPS)}, {vnsq}")
        k(f"v_rsq_f32 v{dst+1}, {vnsq}")

    def wread(kk, f):
        reg, off = (VL16, kk * 6144) if kk < 10 else (VL16B, (kk - 10) * 6144)
        return f"ds_read_b128 v[{WB+4*f}:{WB+4*f+3}], {reg} offset:{LW+off+f*1024}"

    def xswap(slot):
        a_, b_ = ring(slot), ring(slot + 1)
        k(f"v_swap_b32 v{a_+2}, v{b_}")
        k(f"v_swap_b32 v{a_+3}, v{b_+1}")

    def g1_main(slot0, sched, first=False, xp=False):
        for f in range(6):
            k(wread(0, f))
        if xp:
            xswap(slot0)
        for kk in range(20):
            L = sched.get(kk, [])
            if first and kk == 11:
                k.wait_tag("w9")
                k.barrier()
            nv = sum(1 for x in L if isvm(x))
            done = 0
            for f in range(6):
                for tn in range(2):
                    a = ACC + 8 * f + 4 * tn
                    acc = f"v[{a}:{a+3}]"
                    xr = ring(slot0 + 2 * kk + tn)
                    k(f"v_mfma_f32_16x16x32_bf16 {acc}, v[{WB+4*f}:{WB+4*f+3}], v[{xr}:{xr+3}], {acc if kk else 0}")
                    if tn == 0:
                        while done < nv and done * 6 < (f + 1) * nv - 2:
                            emit_one_vmem(L)
                            done += 1
                        if PREW and not (kk == 19 and f == 5):
                            regs = [f"v{WB+4*((f+1)%6)}"]
                            if f == 5 and not xp:
                                regs += [f"v{ring(slot0+2*kk+2)}", f"v{ring(slot0+2*kk+3)}"]
                            k.need(regs)
                    elif PREW:
                        while L and isinstance(L[0], str) and L[0].startswith("s_add_u32 s10") and done < nv and done * 6 < (f + 2) * nv - 2:
                            emit(L.pop(0))
                if xp and f == 3 and kk < 19:
                    xswap(slot0 + 2 * kk + 2)
                if kk < 19:
                    k(wread(kk + 1, f))
                else:
                    if f == 0:
                        k("v_lshlrev_b32 v255, 4, v3")
                        k(f"v_add_u32 v255, {LC}, v255")
                    k(f"ds_read_b128 v[{WB+4*f}:{WB+4*f+3}], v255 offset:{f*64}")
            for x in L:
                emit(x)

    def g1_epilogue(layer, b, ST, fill=None):
        fill = fill if fill is not None else []
        k(f"s_add_u32 s12, s56, {b*8*HRT + (HSPAN if layer else 0)}")
        O2 = TMP + 20
        for tn in range(2):
            st = ST[tn]
            c1 = TMP + 28
            k(f"v_mul_f32 v{c1}, {f2u(-LOG2E)}, v{st+1}")
            k(f"v_mul_f32 v{c1+1}, v{st+1}, v{st+1}")
            k(f"v_rcp_f32 v{c1+1}, v{c1+1}")
            T = TMP
            for f in range(6):
                a = ACC + 8 * f + 4 * tn
                for i in (0, 2):
                    k(f"v_pk_fma_f32 v[{a+i}:{a+i+1}], v[{WB+4*f+i}:{WB+4*f+i+1}], v[{st}:{st+1}], v[{a+i}:{a+i+1}] op_sel:[0,0,0] op_sel_hi:[1,0,1]")
            for f in range(3):
                g = ACC + 8 * f + 4 * tn
                for i in (0, 2):
                    k(f"v_pk_mul_f32 v[{T+4*f+i}:{T+4*f+i+1}], v[{g+i}:{g+i+1}], v[{c1}:{c1+1}] op_sel:[0,0] op_sel_hi:[1,0]")
            for e in range(12):
                k(f"v_exp_f32 v{T+e}, v{T+e}")
                if e % 4 == 0:
                    emit_one_vmem(fill)
            for f in range(3):
                g = ACC + 8 * f + 4 * tn
                u = g + 24
                for i in (0, 2):
                    k(f"v_pk_mul_f32 v[{g+i}:{g+i+1}], v[{g+i}:{g+i+1}], v[{u+i}:{u+i+1}]")
            for e in range(0, 12, 2):
                k(f"v_pk_fma_f32 v[{T+e}:{T+e+1}], v[{T+e}:{T+e+1}], v[{c1}:{c1+1}], v[{c1}:{c1+1}] op_sel:[0,1,1] op_sel_hi:[1,1,1]")
            for e in range(12):
                k(f"v_rcp_f32 v{T+e}, v{T+e}")
                if e % 4 == 0:
                    emit_one_vmem(fill)
            for f in range(3):
                g = ACC + 8 * f + 4 * tn
                for i in (0, 2):
                    k(f"v_pk_mul_f32 v[{T+4*f+i}:{T+4*f+i+1}], v[{T+4*f+i}:{T+4*f+i+1}], v[{g+i}:{g+i+1}]")
            O = TMP + 12 + 4 * tn
            for p in range(4):
                k(f"v_cvt_pk_bf16_f32 v{O+p}, v{T+2*p}, v{T+2*p+1}")
            for p in range(2):
                k(f"v_cvt_pk_bf16_f32 v{O2+2*tn+p}, v{T+8+2*p}, v{T+9+2*p}")
            if tn:
                k(f"s_add_u32 s13, s12, {HRT}")
            k(f"buffer_store_dwordx4 v[{O}:{O+3}], {VL16}, {srd(SH)}, s{12+tn} offen sc1", tag="hst")
        k(f"v_permlane16_swap_b32 v{O2}, v{O2+2}")
        k(f"v_permlane16_swap_b32 v{O2+1}, v{O2+3}")
        k(f"buffer_store_dwordx4 v[{O2}:{O2+3}], {VH2}, {srd(SH)}, s12 offen offset:1024 sc1", tag="hst")
        for x in fill:
            emit(x)

    def h_flag(layer, b):
        k("s_lshl_b32 s12, s4, 3")
        k("s_add_u32 s12, s12, s3")
        k("s_lshl_b32 s12, s12, 5")
        k("s_add_u32 s12, s12, s5")
        k("s_lshl_b32 s12, s12, 7")
        k(f"s_add_u32 s12, s12, {SY_HF + layer*0x40000 + b*0x4000}")
        k("v_mov_b32 v254, s100"); k("v_mov_b32 v255, s101")
        k.wait_tag("hst")
        k(f"buffer_store_dwordx2 v[254:255], {VFLAG}, {srd(SSY)}, s12 offen sc1")
        stamp(f"hf{layer}{b}")

    def h_poll_loads(layer, b):
        return [f"s_mov_b32 s13, {SY_HF + layer*0x40000 + b*0x4000}",
                ML(f"buffer_load_dwordx2 v[{TMP+30}:{TMP+31}], {VFPOLL}, {srd(SSY)}, s13 offen sc1", 8)]

    def h_poll(layer, b):
        poll(h_poll_loads(layer, b), [f"v{TMP+30}"], None, nl=8, eq=SN)

    TAILK = int(os.environ.get("TAILK", "3"))
    RESF = TMP

    def g2_main(slot0, sched, res, dst):
        def areg(lt, tn):
            if tn == 0 and lt in (0, 1, 4):
                return dst + 4 * (lt if lt < 2 else 2)
            return ACC + 8 * lt + 4 * tn

        def mf(kk, lt, tn):
            a = areg(lt, tn)
            acc = f"v[{a}:{a+3}]"
            hr = ring(slot0 + 2 * kk + tn)
            wr = 4 * (5 * kk + lt)
            k(f"v_mfma_f32_16x16x32_bf16 {acc}, a[{wr}:{wr+3}], v[{hr}:{hr+3}], {acc if kk else 0}")

        for kk in range(12 - TAILK):
            L = sched.get(kk, [])
            nv = sum(1 for x in L if isvm(x))
            done = 0
            idx = 0
            if kk == 5:
                k.barrier()
            for tn in range(2):
                for lt in range(5):
                    mf(kk, lt, tn)
                    idx += 1
                    while done < nv and done * 10 < idx * nv - 5:
                        emit_one_vmem(L)
                        done += 1
            for x in L:
                emit(x)
        L = []
        for kk in range(12 - TAILK, 12):
            L += sched.get(kk, [])
        order = [(0, 1, 0), (1, 1, 1), (2, 0, 2), (3, 0, 3), (2, 1, 4), (3, 1, 5), (4, 1, 7), (4, 0, 6), (0, 0, None), (1, 0, None)]
        pend = []
        fillv = []
        for d in range(6):
            fillv += [f"v_lshlrev_b32 v{RESF+2*d}, 16, v{res+d}", f"v_and_b32 v{RESF+2*d+1}, 0xffff0000, v{res+d}"]
        fillv += [f"v_xor_b32 v{TMP+12+x}, {x << 13}, {VRW}" for x in range(1, 4)]
        for i, (lt, tn, slot) in enumerate(order):
            for kk in range(12 - TAILK, 12):
                mf(kk, lt, tn)
                if i >= 5 and fillv:
                    k(fillv.pop(0))
            if L:
                emit_one_vmem(L)
            if slot is not None:
                a = areg(lt, tn)
                pend.append((i, f"ds_write_b128 {VRW}, v[{a}:{a+3}] offset:{slot*1024}"))
            while pend and pend[0][0] <= i - 2:
                k(pend.pop(0)[1])
        for x in L + fillv:
            emit(x)
        for _, x in pend:
            k(x)

    def g2_reduce(dst, mid=None):
        if mid:
            mid()
        k.wait(lg=0)
        k.barrier()
        n = 0
        for x in range(1, 4):
            for sl_ in (2 * (x - 1), 2 * (x - 1) + 1, 6 + (x & 1)):
                k(f"ds_read_b128 v[{ACC+4*n}:{ACC+4*n+3}], v{TMP+12+x} offset:{sl_*1024}")
                n += 1
        for i in range(0, 12, 2):
            k(f"v_pk_add_f32 v[{dst+i}:{dst+i+1}], v[{dst+i}:{dst+i+1}], v[{RESF+i}:{RESF+i+1}]")
        for x in range(3):
            for i in range(0, 12, 2):
                r = ACC + 12 * x + i
                k(f"v_pk_add_f32 v[{dst+i}:{dst+i+1}], v[{dst+i}:{dst+i+1}], v[{r}:{r+1}]")

    def part_stats(src, b, region, pre_wait=None):
        part_calc(src, TMP + 16)
        part_pub(TMP + 16, b, region, pre_wait)

    def part_calc(src, a):
        q_ = a + 1
        t = TMP + 18
        u = TMP + 4
        k(f"v_pk_add_f32 v[{t}:{t+1}], v[{src+8}:{src+9}], v[{src+10}:{src+11}]")
        k(f"v_pk_mul_f32 v[{t+2}:{t+3}], v[{src+8}:{src+9}], v[{src+8}:{src+9}]")
        k(f"v_pk_fma_f32 v[{t+2}:{t+3}], v[{src+10}:{src+11}], v[{src+10}:{src+11}], v[{t+2}:{t+3}]")
        k(f"v_pk_add_f32 v[{u}:{u+1}], v[{src}:{src+1}], v[{src+2}:{src+3}]")
        k(f"v_pk_mul_f32 v[{t}:{t+1}], v[{t}:{t+1}], s[26:27]")
        k(f"v_pk_mul_f32 v[{t+2}:{t+3}], v[{t+2}:{t+3}], s[26:27]")
        k(f"v_pk_add_f32 v[{u+2}:{u+3}], v[{src+4}:{src+5}], v[{src+6}:{src+7}]")
        for i in range(0, 8, 2):
            k(f"v_pk_fma_f32 v[{t+2}:{t+3}], v[{src+i}:{src+i+1}], v[{src+i}:{src+i+1}], v[{t+2}:{t+3}]")
        k(f"v_pk_add_f32 v[{u}:{u+1}], v[{u}:{u+1}], v[{u+2}:{u+3}]")
        k(f"v_pk_add_f32 v[{t}:{t+1}], v[{t}:{t+1}], v[{u}:{u+1}]")
        k(f"v_add_f32 v{q_}, v{t+2}, v{t+3}")
        k(f"v_add_f32 v{a}, v{t}, v{t+1}")
        k(f"v_permlane16_swap_b32 v{a}, v{q_}")
        k(f"v_add_f32 v{a}, v{a}, v{q_}")
        k(f"v_mov_b32 v{q_}, v{a}")
        k(f"v_permlane32_swap_b32 v{a}, v{q_}")
        k(f"v_add_f32 v{a}, v{a}, v{q_}")
        k(f"v_mov_b32 v{q_}, v{a}")
        k(f"v_permlane16_swap_b32 v{a}, v{q_}")
        k(f"v_or_b32 v{q_}, 0x80000000, v{q_}")

    def part_pub(a, b, region, pre_wait=None):
        k(f"s_add_u32 s12, s23, {region + b*8*2048}") if False else None
        k(f"s_add_u32 s12, s60, {region + b*8*2048}")
        if pre_wait:
            k.wait_tag(pre_wait)
        k(f"buffer_store_dwordx2 v[{a}:{a+1}], {VGW}, {srd(SSY)}, s12 offen sc1")
        stamp(f"pub{2 if region == SY_ST2 else 3}{b}")

    def st2_loads(b, dst):
        return ["s_lshl_b32 s13, s16, 11", f"s_add_u32 s13, s13, {SY_ST2 + b*8*2048}"] + [
            f"buffer_load_dwordx2 v[{dst+2*i}:{dst+2*i+1}], {VGR}, {srd(SSY)}, s13 offen offset:{i*128} sc1"
            for i in range(4)]

    def st3_loads(b, dst):
        return ["s_lshl_b32 s13, s15, 11", f"s_add_u32 s13, s13, {SY_ST3 + b*8*2048}"] + [
            f"buffer_load_dwordx2 v[{dst+8*tn+2*i}:{dst+8*tn+2*i+1}], {VGR}, {srd(SSY)}, s13 offen offset:{tn*2048+i*128} sc1"
            for tn in range(2) for i in range(4)]

    def st1_loads(b, dst):
        return ["s_lshl_b32 s13, s15, 9", f"s_add_u32 s13, s13, {SY_ST1 + b*8*512}"] + [
            f"buffer_load_dwordx2 v[{dst+2*tn}:{dst+2*tn+1}], {VQ128}, {srd(SSY)}, s13 offen offset:{tn*512} sc1"
            for tn in range(2)]

    def sum_granules(g, n, tmp):
        for i in range(1, n):
            k(f"v_pk_add_f32 v[{g}:{g+1}], v[{g}:{g+1}], v[{g+2*i}:{g+2*i+1}]")
        for v in (g, g + 1):
            xsum16(k, f"v{v}", tmp)
            xsum32(k, f"v{v}", tmp)

    def finalize(b, x2, G):
        poll(st2_loads(b, G), [f"v{G+1}", f"v{G+3}", f"v{G+5}", f"v{G+7}"], f"v{TMP+20}")
        stamp(f"p2{b}")
        sum_granules(G, 4, f"v{TMP+20}")
        sp = TMP + 22
        finish_stats(f"v{G}", f"v{G+1}", sp)
        k(f"v_mul_f32 v{sp}, v{sp}, v{sp+1}")
        for d in range(6):
            unpack(k, f"v{TMP}", f"v{TMP+1}", f"v{YR[b]+d}")
            k(f"v_pk_fma_f32 v[{TMP+2}:{TMP+3}], v[{x2+2*d}:{x2+2*d+1}], v[{sp}:{sp+1}], v[{sp}:{sp+1}] op_sel:[0,1,0] op_sel_hi:[1,1,0]")
            k(f"v_pk_fma_f32 v[{x2+2*d}:{x2+2*d+1}], v[{TMP+2}:{TMP+3}], v[{TMP}:{TMP+1}], v[{x2+2*d}:{x2+2*d+1}]")
            k(f"v_cvt_pk_bf16_f32 v{X1R[b]+d}, v{x2+2*d}, v{x2+2*d+1}")
        k(f"s_add_u32 s13, s59, {XSPAN + b*8*XRT}")
        k("s_lshl_b32 s12, s14, 10")
        k("s_add_u32 s12, s12, s13")
        k(f"buffer_store_dwordx4 v[{X1R[b]}:{X1R[b]+3}], {VL16}, {srd(SX)}, s12 offen sc1", tag="xst")
        k(f"buffer_store_dwordx2 v[{X1R[b]+4}:{X1R[b]+5}], {VT4S}, {srd(SX)}, s13 offen offset:2048 sc1", tag="xst")
        for d in range(6):
            unpack(k, f"v{x2+2*d}", f"v{x2+2*d+1}", f"v{X1R[b]+d}")

    def stats1(b, STx):
        poll(st1_loads(b, TMP + 24), [f"v{TMP+25}", f"v{TMP+27}"], f"v{TMP+20}")
        for tn in range(2):
            sum_granules(TMP + 24 + 2 * tn, 1, f"v{TMP+20}")
            finish_stats(f"v{TMP+24+2*tn}", f"v{TMP+25+2*tn}", STx[tn])

    def stats3(b, STx):
        poll(st3_loads(b, TMP), [f"v{TMP+1+2*i}" for i in range(8)], f"v{TMP+20}")
        for tn in range(2):
            sum_granules(TMP + 8 * tn, 4, f"v{TMP+20}")
            finish_stats(f"v{TMP+8*tn}", f"v{TMP+8*tn+1}", STx[tn])

    def res_loads(b):
        L = [f"s_add_u32 s13, s62, {b*4*XBLK}", "s_lshl_b32 s12, s14, 11", "s_add_u32 s12, s12, s13",
             "s_add_u32 s13, s13, 4096"]
        for R, sr in ((X1R[b], SX), (YR[b], SY_)):
            L += [f"buffer_load_dwordx2 v[{R}:{R+1}], {VXP}, {srd(sr)}, s12 offen sc1",
                  f"buffer_load_dwordx2 v[{R+2}:{R+3}], {VXP}, {srd(sr)}, s12 offen offset:256 sc1",
                  f"buffer_load_dwordx2 v[{R+4}:{R+5}], {VL16}, {srd(sr)}, s13 offen sc1"]
        return L

    def out_store(b, src):
        for d in range(6):
            k(f"v_cvt_pk_bf16_f32 v{TMP+d}, v{src+2*d}, v{src+2*d+1}")
        k(f"v_mul_u32_u24 v{TMP+8}, 1280, {VROW}")
        k("s_mul_i32 s12, s8, 160")
        k(f"s_add_u32 s12, s12, {b*128*1280}")
        k("s_lshl_b32 s13, s14, 6")
        k("s_add_u32 s13, s13, s12")
        k(f"v_lshl_add_u32 v{TMP+9}, v3, 4, v{TMP+8}")
        k(f"v_lshl_add_u32 v{TMP+10}, v3, 3, v{TMP+8}")
        k("s_lshl_b32 s10, s14, 31")
        k(f"v_or_b32 v{TMP+10}, s10, v{TMP+10}")
        k(f"buffer_store_dwordx4 v[{TMP}:{TMP+3}], v{TMP+9}, {srd(SO)}, s13 offen")
        k(f"buffer_store_dwordx2 v[{TMP+4}:{TMP+5}], v{TMP+10}, {srd(SO)}, s12 offen offset:128")

    def g1b_sched(layer, extra):
        sched = {}
        hl = [h_loads(layer, 0, kk, 80 + 2 * kk) for kk in range(12)]
        for kk in range(20):
            L = []
            if kk + DIST < 20:
                L += x_loads(layer, 1, kk + DIST, 40 + 2 * (kk + DIST))
            L += extra.get(kk, [])
            if kk == HAK:
                L += [lambda: h_flag(layer, 0)]
            if kk == HAK + 4:
                L += h_poll_loads(layer, 0)
            if kk == 13:
                L = [lambda: h_poll(layer, 0)] + h_pf(layer, 0) + L
            if kk >= 14:
                while hl and (12 - len(hl)) + 8 < kk and len([x for x in L if isvm(x)]) < 6:
                    L += hl.pop(0)
            sched[kk] = L
        return sched, hl


    k.prof_begin()
    k(f"s_cmp_ge_u32 s2, {k.grid}")
    k.branch("s_cbranch_scc1 main_end", flush=False)
    k("s_load_dwordx2 s[24:25], s[0:1], 96")
    k("s_load_dwordx2 s[26:27], s[0:1], 0")
    if DIAG:
        k("s_mov_b32 s101, 0")
    k("s_getpc_b64 s[60:61]")
    k.raw("mega_pc:")
    k(f"s_sub_u32 s60, s60, mega_pc-{KNAME}")
    k("s_subb_u32 s61, s61, 0")
    k(f"s_mov_b32 s62, main_code_end-{KNAME}")
    k("s_mov_b32 s63, 0x00020000")
    k("s_lshr_b32 s10, s2, 3")
    k("s_lshl_b32 s10, s10, 11")
    k("v_lshrrev_b32 v2, 4, v0")
    k("v_lshlrev_b32 v1, 7, v0")
    k("v_lshl_or_b32 v1, v2, 24, v1")
    k("buffer_load_dword v255, v1, s[60:63], s10 offen")
    in_srd(k, SDBG, 88, 256)
    k("v_lshrrev_b32 v1, 6, v0")
    k("v_readfirstlane_b32 s3, v1")
    k("v_and_b32 v1, 63, v0")
    k("v_and_b32 v2, 15, v0")
    k("v_bfe_u32 v3, v0, 4, 2")
    k(f"v_lshlrev_b32 {VL16}, 4, v1")
    def ffn_ids():
        if MAP == 1:
            k("s_and_b32 s4, s2, 7")
            k("s_lshr_b32 s5, s2, 3")
            k("s_lshr_b32 s7, s5, 3")
            k("s_and_b32 s8, s5, 7")
        elif MAP == 4:
            k("s_and_b32 s4, s2, 4")
            k("s_lshr_b32 s10, s2, 6")
            k("s_add_u32 s4, s4, s10")
            k("s_bfe_u32 s5, s2, 0x30003")
            k("s_and_b32 s10, s2, 3")
            k("s_lshl_b32 s10, s10, 3")
            k("s_add_u32 s5, s5, s10")
            k("s_and_b32 s7, s5, 3")
            k("s_lshr_b32 s8, s5, 2")
        else:
            k("s_and_b32 s4, s2, 6")
            k("s_lshr_b32 s10, s2, 7")
            k("s_add_u32 s4, s4, s10")
            k("s_bfe_u32 s5, s2, 0x40003")
            k("s_and_b32 s10, s2, 1")
            k("s_lshl_b32 s10, s10, 4")
            k("s_add_u32 s5, s5, s10")
            k("s_and_b32 s7, s5, 3")
            k("s_lshr_b32 s8, s5, 2")
        k("s_and_b32 s9, s3, 1")
        k("s_lshr_b32 s14, s3, 1")
        k("s_lshl_b32 s6, s4, 4")
        k("s_lshl_b32 s10, s3, 1")
        k("s_add_u32 s15, s6, s10")
        k("s_lshl_b32 s10, s7, 1")
        k("s_add_u32 s16, s6, s10")
        k("s_add_u32 s16, s16, s9")
        k(f"s_mul_i32 s17, s15, {XRT}")
        k("s_mul_i32 s18, s3, 3072")
        k(f"s_mul_i32 s19, s5, {WGU_M}")
        k("s_add_u32 s19, s19, s18")
        k("s_lshl_b32 s10, s8, 2")
        k("s_add_u32 s10, s10, s3")
        k("s_mul_i32 s10, s10, 61440")
        k("s_lshl_b32 s11, s14, 11")
        k("s_add_u32 s20, s10, s11")
        k("s_xor_b32 s11, s11, 2048")
        k("s_add_u32 s21, s10, s11")
        k("s_add_u32 s22, s10, 4096")
        k.srd(SWS, 24, WSB)
        k.srd(SW, 24, WGUB, WS_WGU)
        k.srd(SWD, 24, WDB, WS_WD)
        k.srd(SSY, 24, SYNCB, WS_SYNC)


    def wpoll_setup(va):
        k(f"v_lshrrev_b32 {va}, 1, v1")
        k(f"v_lshlrev_b32 {va}, 4, {va}")
        k("v_and_b32 v9, 1, v1")
        k("s_lshr_b32 s10, s5, 2")
        k("s_lshl_b32 s10, s10, 1")
        k(f"v_add3_u32 {va}, {va}, v9, s10")
        k("s_lshl_b32 s10, s3, 3")
        k("s_add_u32 s10, s10, 56")
        k("v_add_u32 v9, s10, v1")
        k("v_cmp_gt_u32 vcc, 8, v1")
        k(f"v_cndmask_b32 {va}, v9, {va}, vcc")
        k(f"v_lshlrev_b32 {va}, 7, {va}")
        k(f"v_add_u32 {va}, {SY_PF}, {va}")
        return [ML(f"buffer_load_dwordx2 v[12:13], {va}, {srd(SSY)}, 0 offen sc1", 16)]

    k(f"s_cmp_lt_u32 s2, {NPREP}")
    k.branch("s_cbranch_scc1 main_prep", flush=False)
    saved0 = (list(k.vm), list(k.lg))
    snap0 = k.haz_snapshot()
    in_srd(k, SA, 8, S * D * 2)
    in_srd(k, SB, 16, S * D * 2)
    in_srd(k, SW, 24, D * 8)
    in_srd(k, SWD, 32, 4096)
    in_srd(k, SSY, 40, D * 2)
    k(f"s_sub_u32 s56, s2, {NPREP}")
    k("s_lshr_b32 s57, s56, 4")
    k("s_and_b32 s58, s56, 15")
    k("s_lshl_b32 s59, s56, 2")
    k("s_add_u32 s60, s59, s3")
    k(f"s_mul_i32 s61, s3, {WREG}")
    k(f"s_add_u32 s61, s61, {CB}")
    k("v_lshrrev_b32 v4, 3, v1")
    k("v_and_b32 v5, 7, v1")
    k("s_lshl_b32 s10, s58, 7")
    k("s_lshl_b32 s11, s3, 5")
    k("s_add_u32 s10, s10, s11")
    k("v_lshlrev_b32 v6, 2, v4")
    k("v_add_u32 v6, s10, v6")
    k("v_mul_u32_u24 v7, 1280, v6")
    k("v_lshl_add_u32 v7, v5, 4, v7")
    k("s_lshl_b32 s12, s57, 7")
    k("v_add_u32 v7, s12, v7")
    stamp("first")
    KR, VR, WR = 16, 44, 60
    for j in (3, 4, 5, 6, 2, 1, 0):
        off = (j - 3) * 1280
        if off < 0:
            k(f"v_add_u32 v8, {off & 0xffffffff:#x}, v7")
            k(f"buffer_load_dwordx4 v[{KR+4*j}:{KR+4*j+3}], v8, {srd(SA)}, 0 offen")
        else:
            k(f"buffer_load_dwordx4 v[{KR+4*j}:{KR+4*j+3}], v7, {srd(SA)}, 0 offen offset:{off}")
    for i in range(4):
        k(f"buffer_load_dwordx4 v[{VR+4*i}:{VR+4*i+3}], v7, {srd(SB)}, 0 offen offset:{i*1280}{NT}")
    k("v_lshlrev_b32 v9, 6, v5")
    k("s_lshl_b32 s12, s57, 9")
    for i in range(4):
        k(f"buffer_load_dwordx4 v[{WR+4*i}:{WR+4*i+3}], v9, {srd(SW)}, s12 offen offset:{16*i}")
    k("s_lshl_b32 s12, s60, 12")
    k(f"s_add_u32 s{SWD}, s{SWD}, s12")
    k(f"s_addc_u32 s{SWD+1}, s{SWD+1}, 0")
    HB = 160

    def h_loads_():
        for p in range(4):
            k(f"buffer_load_dwordx4 v[{HB+8*p+4}:{HB+8*p+7}], {VL16}, {srd(SWD)}, 0 offen offset:{p*1024}")
            k(f"v_add_u32 v9, {(p*1024-8) & 0xffffffff:#x}, {VL16}")
            k(f"buffer_load_dwordx2 v[{HB+8*p+2}:{HB+8*p+3}], v9, {srd(SWD)}, 0 offen")

    if HPOS == 1:
        h_loads_()
    stamp("issued")
    k("s_lshl_b32 s10, s3, 6")
    k("s_sub_u32 s10, 248, s10")
    k("v_lshlrev_b32 v8, 3, v4")
    k("v_sub_u32 v8, s10, v8")
    k("v_lshlrev_b32 v9, 4, v5")
    k("v_xor_b32 v8, v8, v9")
    k("v_lshl_add_u32 v8, v5, 11, v8")
    WF = 80
    for c in range(8):
        unpack(k, f"v{WF+4*c}", f"v{WF+4*c+1}", f"v{WR+2*c}")
        unpack(k, f"v{WF+4*c+2}", f"v{WF+4*c+3}", f"v{WR+2*c+1}")
    k.need([f"v{KR}"])
    stamp("Tld")
    if HPOS == 3:
        h_loads_()
    zl0 = [ML(f"buffer_load_dwordx2 v[12:13], v1, {srd(SDBG)}, 0 offen sc1", 1)]
    emit(zl0[0])
    k.srd(SA, 24, WSB)
    KF, VF, OUT = 112, 128, 136
    for cp in range(4):
        for j in range(7):
            unpack(k, f"v{KF+2*j}", f"v{KF+2*j+1}", f"v{KR+4*j+cp}")
        for i in range(4):
            unpack(k, f"v{VF+2*i}", f"v{VF+2*i+1}", f"v{VR+4*i+cp}")
        for h in range(2):
            c = 2 * cp + h
            O = OUT + 4 * h
            for i in range(4):
                k(f"v_mul_f32 v{O+i}, v{KF+2*(i+0)+h}, v{WF+4*c+3}")
            for t in (2, 1, 0):
                for i in range(4):
                    k(f"v_fmac_f32 v{O+i}, v{KF+2*(i+3-t)+h}, v{WF+4*c+t}")
            for i in range(4):
                k(f"v_mul_f32 v{O+i}, v{O+i}, v{VF+2*i+h}")
            p = 144 + 2 * h
            k(f"v_cvt_pk_bf16_f32 v{p}, v{O+3}, v{O+2}")
            k(f"v_cvt_pk_bf16_f32 v{p+1}, v{O+1}, v{O+0}")
            k(f"ds_write_b64 v8, v[{p}:{p+1}] offset:{c*256}")
    k("s_lshl_b32 s10, s3, 12")
    k("v_lshlrev_b32 v8, 8, v3")
    k("v_add_u32 v8, s10, v8")
    k("s_lshl_b32 s11, s3, 1")
    for jj in range(2):
        k(f"s_add_u32 s12, s11, {jj}")
        k(f"v_xor_b32 v{14+jj}, s12, v2")
        k(f"v_lshl_add_u32 v{14+jj}, v{14+jj}, 4, v8")
    k("v_lshlrev_b32 v9, 12, v3")
    k("v_lshl_add_u32 v9, v2, 4, v9")
    k("s_lshl_b32 s10, s57, 6")
    k("s_lshl_b32 s11, s3, 4")
    k("s_add_u32 s10, s10, s11")
    k("s_lshl_b32 s10, s10, 12")
    k("s_lshl_b32 s11, s58, 8")
    k("s_sub_u32 s11, 3840, s11")
    k("s_add_u32 s10, s10, s11")
    k.wait(lg=0)
    k.barrier()
    stamp("kv")
    for j in range(4):
        k(f"ds_read_b128 v[{16+4*j}:{19+4*j}], v{14+(j>>1)} offset:{j*1024}")
    for j in range(4):
        k(f"buffer_store_dwordx4 v[{16+4*j}:{19+4*j}], v9, {srd(SA)}, s10 offen sc1", tag="kvst")
        k("s_add_u32 s10, s10, 16384")
    if HPOS == 2:
        h_loads_()
    k("s_lshl_b32 s12, s60, 1")
    k("v_mov_b32 v9, s12")
    k(f"buffer_load_ushort v11, v9, {srd(SSY)}, 0 offen")
    ffn_ids()
    k("v_mov_b32 v32, 0")
    k("v_mov_b32 v33, 0")
    k("v_lshlrev_b32 v8, 3, v1")
    k("v_add_u32 v8, s61, v8")
    k(f"ds_write_b64 v8, v[32:33] offset:{UOFF+4096}")
    k("v_bfe_u32 v8, v1, 2, 2")
    k(f"v_mul_u32_u24 v8, {CP}, v8")
    k("v_and_b32 v9, 3, v1")
    k("v_lshl_add_u32 v8, v9, 3, v8")
    k("v_add_u32 v8, s61, v8")
    k("ds_write_b64 v8, v[32:33]")
    k(f"v_add_u32 v8, s61, {VL16}")

    def copies(p):
        T = 48 + 12 * (p & 1)
        b = HB + 8 * p
        seq = [f"v{b+2+i}" for i in range(6)]
        off = 32 + p * 1024
        k(f"ds_write_b128 v8, v[{b+4}:{b+7}] offset:{off}")
        for j in range(4):
            k(f"v_alignbyte_b32 v{T+j}, {seq[2+j]}, {seq[1+j]}, 2")
        k(f"ds_write_b128 v8, v[{T}:{T+3}] offset:{off+CP}")
        for j in range(4):
            k(f"v_mov_b32 v{T+4+j}, {seq[1+j]}")
        k(f"ds_write_b128 v8, v[{T+4}:{T+7}] offset:{off+2*CP}")
        for j in range(4):
            k(f"v_alignbyte_b32 v{T+8+j}, {seq[1+j]}, {seq[j]}, 2")
        k(f"ds_write_b128 v8, v[{T+8}:{T+11}] offset:{off+3*CP}")

    poll(zl0, ["v12"], None, sleep=8, nl=1)
    k("v_readfirstlane_b32 s100, v12")
    k("v_readfirstlane_b32 s101, v13")
    k("s_lshl_b32 s10, s56, 2")
    k("s_add_u32 s10, s10, s3")
    k("s_lshl_b32 s10, s10, 7")
    k(f"s_add_u32 s10, s10, {WS_SYNC + SY_GF}")
    k("v_mov_b32 v14, s100"); k("v_mov_b32 v15, s101")
    k.wait_tag("kvst")
    ML(f"buffer_store_dwordx2 v[14:15], v1, {srd(SWS)}, s10 offen sc1", 1)()
    stamp("gf")
    for p in range(4):
        copies(p)
    k("v_sub_u32 v7, 3, v2")
    k("v_and_b32 v7, 3, v7")
    k("v_add3_u32 v8, v2, v7, 1")
    k("v_lshl_add_u32 v8, v3, 3, v8")
    k("v_lshlrev_b32 v8, 1, v8")
    k(f"v_mul_u32_u24 v7, {CP}, v7")
    k("v_add3_u32 v4, v7, v8, s61")
    k("v_lshlrev_b32 v7, 5, v2")
    k("v_lshlrev_b32 v8, 4, v3")
    k("v_sub_u32 v8, v8, v7")
    k(f"v_add_u32 v8, {UOFF+480}, v8")
    k("v_add_u32 v5, s61, v8")
    k("v_lshlrev_b32 v11, 16, v11")
    k("v_lshlrev_b32 v6, 7, v1")
    k("s_lshl_b32 s12, s57, 13")
    k(f"s_add_u32 s12, s12, {WS_SYNC + SY_GF}")
    gl = [f"buffer_load_dwordx2 v[12:13], v6, {srd(SWS)}, s12 offen sc1"]
    k(gl[0])
    poll(gl, ["v12"], None, sleep=1, eq=SN)
    stamp("gp")
    k(f"s_add_u32 m0, s61, {UOFF}")
    k("s_lshl_b32 s12, s60, 12")
    for p in (3, 2, 1, 0):
        k(f"buffer_load_dwordx4 {VL16}, {srd(SWS)}, s12 offen offset:{p*1024} sc1 lds", tag="u")
    AB = [16, 48]
    CACC = 80
    BR = 112

    def rdA(n):
        I = n if n < 8 else n - 8
        L = []
        for r in range(8):
            i = 8 * I + r
            b = AB[n & 1] + 4 * r
            L.append(f"ds_read_b64 v[{b}:{b+1}], v4 offset:{64*i}")
            L.append(f"ds_read_b64 v[{b+2}:{b+3}], v4 offset:{64*i+8}")
        return L

    def bslot(C):
        return C if C < 4 else 7 - C

    def rdB(C):
        return [f"ds_read_b128 v[{BR+32*bslot(C)+4*r}:{BR+32*bslot(C)+4*r+3}], v5 offset:{64*(56-(8*C-r))}" for r in range(8)]

    k("v_lshlrev_b32 v6, 3, v3")
    k("v_add_u32 v6, v6, v2")
    k("v_sub_u32 v6, 15, v6")
    k("v_lshrrev_b32 v7, 16, v11")
    k("v_and_b32 v8, 1, v6")
    k("v_cmp_eq_u32 vcc, 1, v8")
    k("v_cndmask_b32 v7, v7, v11, vcc")
    k("v_ashrrev_i32 v6, 1, v6")
    for d in range(4):
        k(f"v_cmp_eq_u32 vcc, {d}, v6")
        k("v_cndmask_b32 v8, 0, v7, vcc")
        k(f"v_accvgpr_write_b32 a{240+d}, v8")
    STG = [2112, CP + 2112]
    SBQ = [240, BR + 8]
    QB = [248, BR]
    k("s_lshl_b32 s10, s3, 11")
    k("v_lshlrev_b32 v6, 3, v1")
    k("v_add_u32 v6, s10, v6")
    k(f"v_mul_u32_u24 v7, {XRT}, v3")
    k("v_lshl_add_u32 v7, v2, 4, v7")
    k(f"s_mul_i32 s57, s3, {16*XRT}")
    k("s_lshr_b32 s10, s56, 1")
    k("s_lshl_b32 s10, s10, 8")
    k("s_add_u32 s57, s57, s10")
    k("s_and_b32 s10, s56, 1")
    k("s_lshl_b32 s10, s10, 3")
    k("s_add_u32 s57, s57, s10")
    k(f"s_mul_i32 s58, s3, {8*XBLK}")
    k("s_lshl_b32 s10, s56, 8")
    k("s_add_u32 s58, s58, s10")
    k("s_mul_i32 s59, s3, 160")
    k("s_add_u32 s59, s59, s56")
    k("s_lshl_b32 s59, s59, 7")
    k(f"s_add_u32 s59, s59, {SY_CF}")
    pcl = wpoll_setup("v0")
    k("s_lshl_b32 s10, s3, 11")
    k(f"s_add_u32 s62, s10, {SY_QF}")
    k("v_lshlrev_b32 v8, 7, v2")
    k("v_lshl_add_u32 v8, v3, 13, v8")
    qfl = [ML(f"buffer_load_dwordx2 v[12:13], v8, {srd(SSY)}, s62 offen sc1", 32)]

    def q_ld(hf):
        L = [f"s_mov_b32 s13, {WS_QST + hf*8192}"]
        for it in range(4):
            L += [f"buffer_load_dwordx2 v[{SBQ[hf]+2*it}:{SBQ[hf]+2*it+1}], v6, {srd(SWS)}, s13 offen offset:{it*512} sc1",
                  f"s_add_u32 s12, s57, {WS_QX + (64*hf + 4*it)*XRT}",
                  f"buffer_load_dwordx2 v[{QB[hf]+2*it}:{QB[hf]+2*it+1}], v7, {srd(SWS)}, s12 offen sc1"]
        return L

    def addr2():
        return ["v_lshlrev_b32 v11, 5, v2", "v_lshl_add_u32 v11, v3, 3, v11", "v_add_u32 v11, s61, v11",
                "v_bfe_u32 v8, v1, 2, 2", f"v_mul_u32_u24 v8, {WREG}, v8", "v_and_b32 v9, 3, v1",
                "v_lshl_add_u32 v8, v9, 3, v8", "v_lshl_add_u32 v8, v3, 5, v8", "s_lshl_b32 s10, s3, 9",
                f"s_add_u32 s10, s10, {CB}", "v_add_u32 v8, s10, v8",
                "v_and_b32 v0, 1, v3", "v_lshrrev_b32 v9, 1, v3", "v_lshl_add_u32 v9, v0, 1, v9",
                f"v_mul_u32_u24 v9, {XBLK}, v9", "v_lshl_add_u32 v9, v2, 4, v9"]

    def stage_blk(c):
        a_ = CACC + 4 * c
        return [f"v_cvt_pk_bf16_f32 v{a_}, v{a_}, v{a_+1}", f"v_cvt_pk_bf16_f32 v{a_+1}, v{a_+2}, v{a_+3}",
                f"ds_write_b64 v11, v[{a_}:{a_+1}] offset:{STG[c>>2] + (c&3)*512}"]

    def sync():
        k.wait(lg=0)
        k.barrier()

    def out_half(hf, YB, XO, T):
        L = [f"ds_read_b64_tr_b16 v[{YB+2*it}:{YB+2*it+1}], v8 offset:{STG[hf] + it*128}" for it in range(4)]
        for it in range(4):
            y0, q0, st = YB + 2 * it, QB[hf] + 2 * it, SBQ[hf] + 2 * it
            for d in range(2):
                L += [f"v_lshlrev_b32 v{T+2}, 16, v{q0+d}", f"v_and_b32 v{T+3}, 0xffff0000, v{q0+d}",
                      f"v_lshlrev_b32 v{T}, 16, v{y0+d}", f"v_and_b32 v{T+1}, 0xffff0000, v{y0+d}",
                      f"v_fma_f32 v{T+4}, v{T+2}, v{st+1}, -v{st}", f"v_fma_f32 v{T+5}, v{T+3}, v{st+1}, -v{st}",
                      f"v_fmac_f32 v{T+2}, v{T+4}, v{T}", f"v_fmac_f32 v{T+3}, v{T+5}, v{T+1}",
                      f"v_cvt_pk_bf16_f32 v{XO+2*it+d}, v{T+2}, v{T+3}"]
            if it & 1:
                for o, base in ((YB + 2 * (it - 1), WS_Y), (XO + 2 * (it - 1), WS_X1)):
                    L += [f"v_permlane16_swap_b32 v{o}, v{o+2}", f"v_permlane16_swap_b32 v{o+1}, v{o+3}",
                          f"s_add_u32 s12, s58, {base + (32*hf + (it-1)*2)*XBLK}",
                          (f"buffer_store_dwordx4 v[{o}:{o+3}], v9, {srd(SWS)}, s12 offen sc1", f"cst{hf}")]
        return L

    wl = []
    for p in range(6):
        wl += wgu_dma(p)
    for i in range(NE1):
        wl += wd_load(i)
    k.wait(lg=0)
    a0, b0 = rdA(0), rdB(0)
    for x in a0:
        k(x)
    k.wait_tag("u")
    stamp("ready")
    for x in b0:
        k(x)
    started = set()
    early = []
    side = []
    tot = 0
    for n in range(12):
        I = n if n < 8 else n - 8
        Cs = [C for C in (range(4) if n < 8 else range(4, 8)) if C + I <= 7]
        pend = rdA(n + 1) if n < 11 else []
        bpend = {5: rdB(4), 6: rdB(5), 7: rdB(6), 8: rdB(7)}.get(n) or []
        nm = 8 * len(Cs)
        cnt = 0
        if n == PPN - 1:
            emit(pcl[0])
        if n == PPN:
            poll(pcl, ["v12"], None, sleep=1, nl=16, eq=SN)
            stamp("pp")
        if n == QPN - 2:
            early = list(qfl)
        if n == 6:
            side += addr2()[:3]
        if n == QPN:
            poll(qfl, ["v12"], None, sleep=1, nl=32, eq=SN)
            early = q_ld(0)
            side += addr2()[3:]
        if n == 7:
            for c in range(4):
                side += stage_blk(c)
            side += [sync] + out_half(0, CACC + 2, CACC + 10, 12) if False else [sync]
        if n == 9:
            early = early + q_ld(1)
            side += out_half(0, CACC, CACC + 8, BR + 16) + stage_blk(4)
        if n == 10:
            side += stage_blk(5)
        if n == 11:
            side += stage_blk(6)
        for C in Cs:
            c = C + I
            nb = rdB(C + 1) if (n == 0 and C < 3) else []
            for r in range(8):
                if nb:
                    k(nb.pop(0))
                a = AB[n & 1] + 4 * r
                b = BR + 32 * bslot(C) + 4 * r
                acc = f"v[{CACC+4*c}:{CACC+4*c+3}]"
                src = acc if c in started else "0"
                started.add(c)
                k(f"v_mfma_f32_16x16x32_bf16 {acc}, v[{a}:{a+3}], v[{b}:{b+3}], {src}")
                if I == 0 and r == 0:
                    k(f"v_mfma_f32_16x16x32_bf16 {acc}, a[240:243], v[{b}:{b+3}], {acc}")
                cnt += 1
                tot += 1
                while pend and (16 - len(pend)) * max(nm - 4, 4) < cnt * 16:
                    k(pend.pop(0))
                if bpend and cnt % 2 == 0:
                    k(bpend.pop(0))
                if early:
                    if tot % 2 == 0:
                        emit_one_vmem(early)
                elif n >= PPN and tot % EVERY == 0 and tot <= LASTW:
                    emit_one_vmem(wl)
                for _ in range(2):
                    if side and not (early and isinstance(side[0], str) and side[0].startswith("s_add_u32 s12")):
                        x = side.pop(0)
                        emit(x)
                        if isinstance(x, str) and x.startswith("s_add_u32 s12"):
                            emit(side.pop(0))
        for x in pend + bpend:
            k(x)
    stamp("mfma")
    for x in early + stage_blk(7) + side:
        emit(x)
    sync()
    for x in out_half(1, 16, 24, 32):
        emit(x)
    stamp("cst")
    k.wait_tag("cst0")
    ML(f"buffer_store_dwordx2 v[14:15], v1, {srd(SSY)}, s59 offen sc1", 1)()
    k(f"s_add_u32 s59, s59, {4*160*128}")
    for _ in range(NB):
        emit_one_vmem(wl)
    k.wait_tag("cst1")
    ML(f"buffer_store_dwordx2 v[14:15], v1, {srd(SSY)}, s59 offen sc1", 1)()
    stamp("cf")
    print("weight loads after cf:", sum(1 for x in wl if isvm(x)))
    for x in wl:
        emit(x)
    k.wait(lg=0)
    k.flush_hazards()
    k.branch("s_branch main_join", flush=False)

    k.label("main_prep", flush=False)
    k.vm, k.lg = list(saved0[0]), list(saved0[1])
    k.haz_restore(snap0)
    k("s_or_b32 s10, s2, s3")
    k("s_cmp_lg_u32 s10, 0")
    k.branch("s_cbranch_scc1 main_nonce_done", flush=False)
    snap1 = k.haz_snapshot()
    k("s_memrealtime s[56:57]")
    k("s_or_b32 s56, s56, 1")
    k("v_mov_b32 v12, s56")
    k("v_mov_b32 v13, s57")
    ML(f"buffer_store_dwordx2 v[12:13], v1, {srd(SDBG)}, 0 offen sc1", 1)()
    k.flush_hazards()
    k.label("main_nonce_done", flush=False)
    k.haz_restore(snap1)
    k.vm, k.lg = list(saved0[0]), list(saved0[1])
    k("s_and_b32 s10, s2, 1")
    k("s_lshl_b32 s10, s10, 3")
    k("s_add_u32 s10, s10, 56")
    k("s_cmp_lt_u32 s2, 64")
    k("s_cselect_b32 s10, s10, 72")
    k(f"s_load_dwordx2 s[{SA}:{SA+1}], s[0:1], s10")
    k(f"s_mov_b32 s{SA+2}, {D*F*2}")
    k(f"s_mov_b32 s{SA+3}, 0x00020000")
    k(f"v_mov_b32 v14, {OOB:#x}")
    k("s_mov_b32 s58, 0x05040100")
    k("s_mov_b32 s59, 0x07060302")
    k("v_mov_b32 v12, 0x3f803f80")
    ffn_ids()
    k("v_mov_b32 v244, 0")
    zl = [ML(f"buffer_load_dwordx2 v[246:247], v1, {srd(SDBG)}, 0 offen sc1", 1)]

    def q_job():
        if QPOS == 1:
            q_loads()
        if QTOUCH:
            k.srd(SB, 26, S * D * 2)
            k(f"s_mul_i32 s12, s2, {XRT}")
            k("v_lshlrev_b32 v204, 7, v0")
            k("v_cmp_gt_u32 vcc, 160, v0")
            k("v_cndmask_b32 v204, v14, v204, vcc")
            k(f"buffer_load_dword v250, v204, {srd(SB)}, s12 offen")
            k(f"s_add_u32 s12, s12, {96*XRT}")
            k(f"buffer_load_dword v251, v204, {srd(SB)}, s12 offen")
        emit(zl[0])
        for i in range(4):
            k(f"v_mov_b32 v{240+i}, 0")
        k.srd(SB, 24, SY_HF, WS_SYNC)
        k("s_lshl_b32 s12, s2, 13")
        k("v_lshlrev_b32 v204, 4, v0")
        for i in range(2):
            k(f"buffer_store_dwordx4 v[240:243], v204, {srd(SB)}, s12 offen sc1")
            k("s_add_u32 s12, s12, 4096")

    QR = 80

    def q_loads():
        k.srd(SB, 26, S * D * 2)
        k("s_mul_i32 s62, s3, 96")
        k("s_add_u32 s62, s62, s2")
        k("s_cmp_lt_u32 s62, 128")
        k("s_cselect_b32 s63, 0, 0x40000000")
        k(f"s_mul_i32 s56, s62, {XRT}")
        k("s_add_u32 s56, s56, s63")
        k("v_mul_u32_u24 v11, 1280, v2")
        k("v_lshl_add_u32 v11, v3, 4, v11")
        for i in range(20):
            k(f"buffer_load_dwordx4 v[{QR+4*i}:{QR+4*i+3}], v11, {srd(SB)}, s56 offen offset:{64*i}")

    def q_flag():
        poll(zl, ["v246"], None, sleep=1, nl=1)
        k("v_readfirstlane_b32 s100, v246")
        k("v_readfirstlane_b32 s101, v247")

    def item_idx(magic, n):
        for ps in range(2):
            o, ch = f"v{4+2*ps}", f"v{5+2*ps}"
            k(f"v_add_u32 v8, {256*ps}, v0")
            k(f"v_mul_u32_u24 {o}, {magic}, v8")
            k(f"v_lshrrev_b32 {o}, 16, {o}")
            k(f"v_mul_u32_u24 {ch}, {n}, {o}")
            k(f"v_sub_u32 {ch}, v8, {ch}")

    def item_loads(pitch):
        k(f"v_mul_u32_u24 v8, {8*pitch}, v4")
        k("v_lshl_add_u32 v8, v5, 4, v8")
        k(f"v_mul_u32_u24 v9, {8*pitch}, v6")
        k("v_lshl_add_u32 v9, v7, 4, v9")
        k("v_cmp_gt_u32 vcc, 224, v0")
        k("v_cndmask_b32 v9, v14, v9, vcc")
        stamp("issued")
        for ps in range(2):
            k("s_mov_b32 s11, s10")
            for i in range(8):
                k(f"buffer_load_dwordx4 v[{16+32*ps+4*i}:{19+32*ps+4*i}], v{8+ps}, {srd(SA)}, s11 offen{NT}")
                if i < 7:
                    k(f"s_add_u32 s11, s11, {pitch}")
        stamp("Tld")
        q_job()

    def stage(magic, sh, n, blk, opart, pairb, npair, second, setup, copy):
        for ps in range(2):
            o, ch = f"v{4+2*ps}", f"v{5+2*ps}"
            k(f"v_mul_u32_u24 v161, {magic}, {ch}")
            k(f"v_lshrrev_b32 v161, {sh}, v161")
            k(f"v_mul_u32_u24 v162, {n}, v161")
            k(f"v_sub_u32 {ch}, {ch}, v162")
            opart(o)
            k(f"v_mul_u32_u24 v161, {blk}, v161")
            k("v_add_u32 v160, v160, v161")
            k(f"v_lshrrev_b32 v161, 2, {ch}")
            k(f"v_mul_u32_u24 v161, {pairb}, v161")
            k("v_add_u32 v160, v160, v161")
            k(f"v_and_b32 v161, 3, {ch}")
            k("v_lshlrev_b32 v162, 6, v161")
            k("v_lshlrev_b32 v163, 7, v161")
            k(f"v_cmp_gt_u32 vcc, {npair}, {ch}")
            k("v_cndmask_b32 v162, v163, v162, vcc")
            k(f"v_add_u32 {o}, v160, v162")
            k("v_mov_b32 v162, 64")
            k(f"v_mov_b32 v163, {second}")
            k("v_cndmask_b32 v162, v162, v163, vcc")
            k(f"v_add_u32 {ch}, {o}, v162")
        k("v_cmp_gt_u32 vcc, 224, v0")
        k("v_mov_b32 v160, 61440")
        k("v_cndmask_b32 v6, v160, v6, vcc")
        k("v_cndmask_b32 v7, v160, v7, vcc")
        setup()
        for ps in range(2):
            src = 16 + 32 * ps
            for e in range(8):
                o = 160 + 4 * e
                for p in range(4):
                    k(f"v_perm_b32 v{o+p}, v{src+4*(2*p+1)+e//2}, v{src+4*(2*p)+e//2}, s{58+(e&1)}")
                k(f"ds_write_b128 v{4+2*ps+(e>>2)}, v[{o}:{o+3}] offset:{(e&3)*16}")
            k.wait(lg=0)
            k.barrier()
            if ps:
                stamp("mfma")
            copy(ps)
        q_flag()


    k("s_cmp_ge_u32 s2, 64")
    k.branch("s_cbranch_scc1 main_prep_wd", flush=False)
    sv = (list(k.vm), list(k.lg))
    snap2 = k.haz_snapshot()
    item_idx(2731, 24)
    k("s_bfe_u32 s60, s2, 0x30001")
    k("s_lshr_b32 s61, s2, 4")
    k(f"s_mul_i32 s10, s61, {160*3072}")
    k("s_mul_i32 s11, s60, 384")
    k("s_add_u32 s10, s10, s11")
    item_loads(3072)

    def op_wgu(o):
        k(f"v_lshrrev_b32 v160, 2, {o}")
        k("v_mul_u32_u24 v160, 3072, v160")
        k(f"v_and_b32 v162, 3, {o}")
        k("v_lshl_add_u32 v160, v162, 8, v160")

    def su_wgu():
        k("s_mul_i32 s13, s3, 15360")
        k(f"v_add_u32 v8, s13, {VL16}")
        k("s_lshl_b32 s62, s60, 2")
        k("s_add_u32 s62, s62, s3")
        k(f"s_mul_i32 s10, s62, {WGU_M}")
        k("s_mul_i32 s11, s61, 30720")
        k("s_add_u32 s10, s10, s11")
        k("s_and_b32 s13, s2, 1")
        k("s_mul_i32 s11, s13, 3072")
        k("s_add_u32 s10, s10, s11")
        k(f"s_add_u32 s10, s10, {WS_WGU}")
        for t in range(3):
            k(f"v_mov_b32 v{196+t}, 0")

    def cp_wgu(ps):
        js = range(6) if ps == 0 else range(6, 15)
        for j in js:
            k(f"ds_read_b128 v[{80+4*j}:{83+4*j}], v8 offset:{j*1024}")
        for j in js:
            k(f"buffer_store_dwordx4 v[{80+4*j}:{83+4*j}], {VL16}, {srd(SWS)}, s10 offen offset:{(j%3)*1024} sc1")
            if j % 3 == 2:
                k("s_add_u32 s10, s10, 6144")
            for p in range(4):
                k(f"v_dot2c_f32_bf16 v{196+j%3}, v{80+4*j+p}, v12")
    stage(43, 8, 6, 15360, op_wgu, 2048, 4, 1024, su_wgu, cp_wgu)
    for t in range(3):
        k(f"v_mov_b32 v{5+t}, v{196+t}")
    for t in range(3):
        xsum16(k, f"v{5+t}", "v8")
        xsum32(k, f"v{5+t}", "v8")
    k("v_cmp_eq_u32 vcc, 1, v3")
    k("v_cndmask_b32 v5, v5, v6, vcc")
    k("v_cmp_eq_u32 vcc, 2, v3")
    k("v_cndmask_b32 v5, v5, v7, vcc")
    k("v_lshlrev_b32 v6, 2, v1")
    k("v_cmp_gt_u32 vcc, 48, v1")
    k("v_cndmask_b32 v6, v14, v6, vcc")
    k("s_lshl_b32 s10, s62, 11")
    k("s_lshl_b32 s11, s61, 9")
    k("s_add_u32 s10, s10, s11")
    k("s_mul_i32 s11, s13, 192")
    k("s_add_u32 s10, s10, s11")
    k(f"s_add_u32 s10, s10, {WS_CS}")
    k(f"buffer_store_dword v5, v6, {srd(SWS)}, s10 offen sc1")

    if QPOS == 2:
        q_loads()
        k.wait(vm=20)
    else:
        k.wait(vm=0)
    k.flush_hazards()
    k.branch("s_branch main_prep_pub", flush=False)
    k.label("main_prep_wd", flush=False)
    k.vm, k.lg = sv
    k.haz_restore(snap2)
    item_idx(820, 80)
    k("s_sub_u32 s60, s2, 64")
    k(f"s_mul_i32 s10, s60, {48*1280}")
    item_loads(1280)

    def op_wd(o):
        k(f"v_lshlrev_b32 v160, 8, {o}")

    def su_wd():
        k("s_mul_i32 s13, s3, 15360")
        k(f"v_add_u32 v8, s13, {VL16}")
        k("s_mul_i32 s11, s60, 6")
        k("v_cmp_gt_u32 vcc, 3, v3")
        for ps, v in enumerate(("v196", "v197")):
            k(f"v_add3_u32 {v}, v3, s11, {3*ps}")
            k(f"v_lshrrev_b32 v13, 2, {v}")
            k("v_mul_u32_u24 v13, 5120, v13")
            k(f"v_and_b32 {v}, 3, {v}")
            k(f"v_lshl_add_u32 {v}, {v}, 8, v13")
            k(f"v_lshl_add_u32 {v}, v2, 4, {v}")
            k(f"v_cndmask_b32 {v}, v14, {v}, vcc")
        k(f"s_mul_i32 s10, s3, {2*48*5120}")
        k(f"s_add_u32 s10, s10, {WS_WD}")

    def cp_wd(ps):
        R = 80 + 40 * ps
        for j in range(10):
            k(f"ds_read_b128 v[{R+4*j}:{R+4*j+3}], v8 offset:{(j//5)*7680 + (j%5)*1536 + ps*768}")
        for j in range(10):
            k(f"s_add_u32 s11, s10, {(j//5)*48*5120 + (j%5)*1024}")
            k(f"buffer_store_dwordx4 v[{R+4*j}:{R+4*j+3}], v{196+ps}, {srd(SWS)}, s11 offen sc1")
    stage(205, 11, 10, 7680, op_wd, 3072, 8, 1536, su_wd, cp_wd)

    if QPOS == 2:
        q_loads()
        k.wait(vm=20)
    else:
        k.wait(vm=0)
    k.flush_hazards()
    k.label("main_prep_pub", flush=False)
    k.barrier()
    k("s_lshl_b32 s10, s2, 7")
    k(f"s_add_u32 s10, s10, {SY_PF}")
    k("s_cmp_eq_u32 s3, 0")
    k("s_cselect_b32 s10, s10, 0x40000000")
    k("v_mov_b32 v204, 0")
    ML(f"buffer_store_dwordx2 v[246:247], v1, {srd(SSY)}, s10 offen sc1", 1)()
    stamp("cf")
    if QPOS == 4:
        q_loads()
    k(f"s_add_u32 s12, s56, {WS_QX}")
    k("v_mov_b32 v200, 0")
    k("v_mov_b32 v201, 0")
    for i in range(20):
        if i % 4 == 0 and i:
            k("s_add_u32 s12, s12, 4096")
        k(f"buffer_store_dwordx4 v[{QR+4*i}:{QR+4*i+3}], {VL16}, {srd(SWS)}, s12 offen offset:{(i%4)*1024} sc1")
        for d in range(4):
            k(f"v_dot2c_f32_bf16 v200, v{QR+4*i+d}, v12")
            k(f"v_dot2c_f32_bf16 v201, v{QR+4*i+d}, v{QR+4*i+d}")
    for v in ("v200", "v201"):
        xsum16(k, v, "v205")
        xsum32(k, v, "v205")
    k(f"v_mul_f32 v200, {f2u(1.0/D)}, v200")
    k(f"v_mul_f32 v201, {f2u(1.0/D)}, v201")
    k("v_fma_f32 v201, -v200, v200, v201")
    k("v_max_f32 v201, 0, v201")
    k(f"v_add_f32 v201, {f2u(EPS)}, v201")
    k("v_rsq_f32 v203, v201")
    k("v_mul_f32 v202, v200, v203")
    k("s_lshl_b32 s57, s62, 7")
    k("s_add_u32 s57, s57, s63")
    k(f"s_add_u32 s12, s57, {WS_QST}")
    k("v_lshlrev_b32 v205, 3, v1")
    ML(f"buffer_store_dwordx2 v[202:203], v205, {srd(SWS)}, s12 offen sc1", 16)()
    k(f"s_add_u32 s12, s57, {SY_QF}")
    k.wait(vm=0)
    ML(f"buffer_store_dwordx2 v[246:247], v1, {srd(SSY)}, s12 offen sc1", 1)()
    stamp("cst")
    pl = wpoll_setup("v8")
    emit(pl[0])
    poll(pl, ["v12"], None, sleep=1, nl=16, eq=SN)
    stamp("pp")
    for p in range(10):
        for x in wgu_dma(p):
            emit(x)
    for i in range(NEP):
        for x in wd_load(i):
            emit(x)
    k.wait(lg=0)
    k.flush_hazards()

    k.label("main_join", flush=False)
    k.vm = [(set(), "unk")] * 63
    k("s_load_dwordx2 s[26:27], s[0:1], 80")
    k(f"v_add_u32 {VL16B}, 61440, {VL16}")
    k.srd(SX, 24, XSPAN + XFB, WS_X1)
    k.srd(SH, 24, HSPAN + HFB, WS_H)
    k.srd(SY_, 24, XFB, WS_Y)
    k(f"s_mul_i32 s56, s15, {HRT}")
    k("s_mul_i32 s10, s5, 1536")
    k("s_add_u32 s56, s56, s10")
    k("s_mul_i32 s10, s3, 12288")
    k(f"s_mul_i32 s57, s16, {HRT}")
    k("s_add_u32 s57, s57, s10")
    k("s_xor_b32 s11, s16, 1")
    k(f"s_mul_i32 s58, s11, {HRT}")
    k("s_add_u32 s58, s58, s10")
    k(f"s_mul_i32 s59, s16, {XRT}")
    k("s_mul_i32 s10, s8, 2560")
    k("s_add_u32 s59, s59, s10")
    k("v_and_b32 v204, 1, v3")
    k("v_lshrrev_b32 v205, 1, v3")
    k(f"v_mul_u32_u24 {VH2}, {HRT}, v204")
    k("v_lshlrev_b32 v206, 4, v2")
    k("v_lshl_add_u32 v206, v205, 8, v206")
    k(f"v_add_u32 {VH2}, {VH2}, v206")
    k(f"v_lshl_add_u32 {VT4}, v204, 3, v206")
    k("s_lshl_b32 s10, s14, 31")
    k(f"v_or_b32 {VT4S}, s10, {VT4}")
    k("s_lshl_b32 s10, s16, 4")
    k(f"v_add_u32 {VROW}, s10, v2")
    k(f"v_lshlrev_b32 {VGR}, 3, v2")
    k("v_cmp_eq_u32 vcc, 0, v3")
    k(f"v_mov_b32 v204, {OOB:#x}")
    k(f"v_cndmask_b32 {VGW}, v204, {VGR}, vcc")
    k(f"v_lshl_add_u32 {VQ128}, v3, 7, {VGR}")
    k(f"v_lshl_add_u32 {VGR}, v3, 9, {VGR}")
    k("v_cmp_eq_u32 vcc, 0, v1")
    k(f"v_cndmask_b32 {VFLAG}, v204, v1, vcc")
    k("s_lshl_b32 s10, s4, 3")
    k("s_add_u32 s10, s10, s7")
    k("s_lshl_b32 s10, s10, 5")
    k("s_lshl_b32 s11, s3, 3")
    k("s_add_u32 s10, s10, s11")
    k(f"v_and_b32 {VFPOLL}, 7, v1")
    k(f"v_add_u32 {VFPOLL}, s10, {VFPOLL}")
    k(f"v_lshlrev_b32 {VFPOLL}, 7, {VFPOLL}")
    k(f"v_lshlrev_b32 {VXP}, 4, v2")
    k(f"v_lshl_add_u32 {VXP}, v3, 9, {VXP}")
    k("s_lshr_b32 s10, s16, 1")
    k(f"s_mul_i32 s62, s10, {XBLK}")
    k("s_mul_i32 s10, s8, 5120")
    k("s_add_u32 s62, s62, s10")
    k("s_lshl_b32 s10, s9, 3")
    k("s_add_u32 s62, s62, s10")
    k("s_lshr_b32 s10, s5, 2")
    k("s_lshl_b32 s11, s4, 3")
    k("s_add_u32 s63, s10, s11")
    k(f"s_mul_i32 s60, s63, {XBLK}")
    k("s_mul_i32 s10, s3, 10240")
    k("s_add_u32 s60, s60, s10")
    k("s_and_b32 s61, s5, 3")
    k("s_lshl_b32 s10, s61, 6")
    k("s_add_u32 s60, s60, s10")
    k("v_and_b32 v188, 3, v1")
    k("v_lshrrev_b32 v189, 2, v1")
    k("v_lshlrev_b32 v189, 8, v189")
    k("v_lshl_add_u32 v189, v188, 4, v189")
    k("v_cmp_gt_u32 vcc, 32, v1")
    k("v_cndmask_b32 v190, v204, v189, vcc")
    k("s_lshl_b32 s10, s5, 11")
    k(f"s_add_u32 s10, s10, {WS_CS}")
    k("v_lshlrev_b32 v197, 3, v1")
    for i in range(4):
        k(f"buffer_load_dwordx2 v[{208+2*i}:{209+2*i}], v197, {srd(SWS)}, s10 offen offset:{i*512} sc1")
    k.srd(SO, 26, XFB)
    k("s_mul_i32 s10, s4, 160")
    k("s_mul_i32 s11, s3, 40")
    k("s_add_u32 s10, s10, s11")
    k("s_lshl_b32 s10, s10, 7")
    k(f"s_add_u32 s10, s10, {SY_CF}")
    k("s_mul_i32 s11, s3, 3072")
    k(f"s_add_u32 s11, s11, {SY_PF - 40*128}")
    k("v_mov_b32 v205, s10")
    k("v_mov_b32 v206, s11")
    k("v_cmp_gt_u32 vcc, 40, v1")
    k("v_cndmask_b32 v205, v206, v205, vcc")
    k("v_lshl_add_u32 v205, v1, 7, v205")
    k(f"v_add_u32 v197, {LC}, v197")
    k("v_pk_add_f32 v[208:209], v[208:209], v[210:211]")
    k("v_pk_add_f32 v[212:213], v[212:213], v[214:215]")
    k("v_pk_add_f32 v[208:209], v[208:209], v[212:213]")
    k(f"s_cmp_ge_u32 s2, {NPREP}")
    k.branch("s_cbranch_scc1 main_nogate", flush=False)
    svg = (list(k.vm), list(k.lg))
    snap3 = k.haz_snapshot()
    c1 = [ML(f"buffer_load_dwordx2 v[206:207], v205, {srd(SSY)}, 0 offen sc1", 1)]
    emit(c1[0])
    poll(c1, ["v206"], None, sleep=6, nl=1, eq=SN)
    k.flush_hazards()
    k.label("main_nogate", flush=False)
    k.vm, k.lg = svg
    k.haz_restore(snap3)
    cl = [f"buffer_load_dwordx2 v[206:207], v205, {srd(SSY)}, 0 offen sc1"]
    emit(cl[0])
    poll(cl, ["v206"], None, sleep=1, eq=SN)
    k.vm = []
    k.barrier()
    stamp("join")
    k("ds_write_b64 v197, v[208:209]")
    for kk in range(4):
        for x in x_loads(0, 0, kk, 2 * kk):
            emit(x)
    SR = 192
    for i in range(3):
        k(f"s_add_u32 s12, s60, {i*4096}")
        k(f"buffer_load_dwordx4 v[{SR+4*i}:{SR+4*i+3}], v{189 if i < 2 else 190}, {srd(SX)}, s12 offen sc1")
    for kk in range(4, DIST):
        for x in x_loads(0, 0, kk, 2 * kk):
            emit(x)

    k("s_lshl_b32 s10, s3, 13")
    k(f"s_add_u32 s10, s10, {LR}")
    k(f"v_add_u32 {VRW}, s10, {VL16}")
    k("s_cmp_eq_u32 s14, 0")
    k("s_cselect_b32 s26, 1.0, 0")
    k("s_mov_b32 s27, s26")
    k("s_lshl_b32 s60, s16, 4")
    k("s_lshl_b32 s13, s8, 1")
    k("s_add_u32 s60, s60, s13")
    k("s_add_u32 s60, s60, s14")
    k("s_lshl_b32 s60, s60, 7")

    def phase_s():
        for r in range(2):
            s_, q_ = TMP + 2 * r, TMP + 2 * r + 1
            first = True
            for i in range(3):
                for d in range(2):
                    unpack(k, "v204", "v205", f"v{SR+4*i+2*r+d}")
                    if first:
                        k(f"v_add_f32 v{s_}, v204, v205")
                        k(f"v_mul_f32 v{q_}, v204, v204")
                        first = False
                    else:
                        k(f"v_add_f32 v{s_}, v{s_}, v204")
                        k(f"v_add_f32 v{s_}, v{s_}, v205")
                        k(f"v_fmac_f32 v{q_}, v204, v204")
                    k(f"v_fmac_f32 v{q_}, v205, v205")
        for v in range(TMP, TMP + 4):
            k(f"v_add_f32_dpp v{v}, v{v}, v{v} row_ror:4 row_mask:0xf bank_mask:0xf")
        for v in range(TMP, TMP + 4):
            k(f"v_add_f32_dpp v{v}, v{v}, v{v} row_ror:8 row_mask:0xf bank_mask:0xf")
        for v in range(TMP, TMP + 4):
            xsum16(k, f"v{v}", "v204")
            xsum32(k, f"v{v}", "v204")
        k(f"v_or_b32 v{TMP+1}, 0x80000000, v{TMP+1}")
        k(f"v_or_b32 v{TMP+3}, 0x80000000, v{TMP+3}")
        k("s_lshl_b32 s12, s63, 3")
        k("s_add_u32 s12, s12, s3")
        k("s_lshl_b32 s12, s12, 7")
        k("s_lshl_b32 s13, s61, 5")
        k("s_add_u32 s12, s12, s13")
        k(f"s_add_u32 s12, s12, {SY_ST1}")
        k("v_lshlrev_b32 v204, 3, v1")
        set_exec(4)
        k(f"buffer_store_dwordx2 v[{TMP}:{TMP+1}], v204, {srd(SSY)}, s12 offen sc1")
        k(f"buffer_store_dwordx2 v[{TMP+2}:{TMP+3}], v204, {srd(SSY)}, s12 offen offset:512 sc1")
        k("s_mov_b64 exec, -1")

    sched = {}
    wi = NE1
    for kk in range(20):
        L = []
        if kk < 4:
            L += wgu_dma(6 + kk)
        if kk + DIST < 20:
            L += x_loads(0, 0, kk + DIST, 2 * (kk + DIST))
        else:
            kb = kk + DIST - 20
            L += x_loads(0, 1, kb, 40 + 2 * kb)
        if kk >= 20 - NWA and wi < 60:
            L += wd_load(wi)
            wi += 1
        if kk == 2:
            L = [phase_s] + L
        if kk == 14:
            L = st1_loads(0, TMP + 24) + L
        sched[kk] = L
    g1_main(0, sched, first=True, xp=True)
    stamp("g1a")
    stats1(0, STA)

    def take(n):
        nonlocal wi
        L = []
        for _ in range(n):
            if wi < 60:
                L += wd_load(wi)
                wi += 1
        return L
    g1_epilogue(0, 0, STA, take(NWE1))
    stamp("e1a")
    extra = {}
    for kk in range(12):
        extra[kk] = take((NWB * (kk + 1)) // 12 - (NWB * kk) // 12)
    extra[12] = st1_loads(1, TMP + 24) + res_loads(0)
    sched, rest = g1b_sched(0, extra)
    g1_main(40, sched, xp=True)
    stamp("g1b")
    for L in rest:
        for x in L:
            emit(x)
    stats1(1, STB)
    g1_epilogue(0, 1, STB, take(NWE2))
    print('Wd loads left for G2(A):', 60 - wi)
    stamp("e1b")

    NH0 = int(os.environ.get("NH0", "5"))

    def g2a(layer):
        sc = {kk: take(5) for kk in range(12)}
        assert wi == 60
        sc[HFK] = sc[HFK] + [lambda: h_flag(layer, 1)]
        sc[HPK] = sc[HPK] + h_poll_loads(layer, 1)
        g2_main(80, sc, X1R[0], X2[0])
        stamp(f"g2a{layer}")

        def mid():
            h_poll(layer, 1)
            stamp(f"ph{layer}")
            for kk in range(NH0):
                for x in h_loads(layer, 1, kk, 2 * kk):
                    emit(x)
        g2_reduce(X2[0], mid)

    def g2b_sched(layer, extra):
        sched = {}
        for kk in range(12):
            L = []
            if kk + NH0 < 12:
                L += h_loads(layer, 1, kk + NH0, 2 * (kk + NH0))
            sched[kk] = L + extra.get(kk, [])
        return sched

    g2a(0)
    part_stats(X2[0], 0, SY_ST2)
    stamp("r2a")

    def fin_a():
        finalize(0, X2[0], G2R)
        part_calc(X2[0], 244)
    g2_main(0, g2b_sched(0, {2: res_loads(1), FK - 3: st2_loads(0, G2R), FK: [fin_a]}), X1R[1], X2[1])
    stamp("g2b")
    g2_reduce(X2[1], lambda: part_pub(244, 0, SY_ST3, pre_wait="xst"))
    part_stats(X2[1], 1, SY_ST2)
    stamp("s3a")
    for x in st3_loads(0, TMP):
        emit(x)
    stats3(0, STA)
    stamp("p3a")
    for kk in range(DIST):
        for x in x_loads(1, 0, kk, 2 * kk):
            emit(x)
        if kk == 3:
            for x in st2_loads(1, G2R):
                emit(x)
    finalize(1, X2[1], G2R)
    part_calc(X2[1], 246)
    stamp("fin")
    sched = {}
    xb = [x_loads(1, 1, j, 40 + 2 * j) for j in range(DIST)]
    for kk in range(20):
        L = []
        if kk + DIST < 20:
            L += x_loads(1, 0, kk + DIST, 2 * (kk + DIST))
        if kk == PBK:
            L = L + [lambda: part_pub(246, 1, SY_ST3, pre_wait="xst")]
        if kk == S3K - 4:
            L = L + st3_loads(1, TMP)
        if kk == S3K:
            L = [lambda: stats3(1, STB)] + L
        if kk >= S3K:
            for _ in range(-(-DIST // (20 - S3K))):
                if xb and (DIST - len(xb)) + 8 < kk:
                    L += xb.pop(0)
        sched[kk] = L
    assert not xb
    g1_main(0, sched)
    stamp("g1a'")
    g1_epilogue(1, 0, STA)
    stamp("e1a'")
    sched, rest = g1b_sched(1, {})
    g1_main(40, sched)
    stamp("g1b'")
    for L in rest:
        for x in L:
            emit(x)
    g1_epilogue(1, 1, STB)
    stamp("e1b'")
    g2a(1)
    out_store(0, X2[0])
    stamp("r2a'")
    g2_main(0, g2b_sched(1, {}), X1R[1], X2[1])
    g2_reduce(X2[1])
    out_store(1, X2[1])
    if DIAG:
        in_srd(k, 96, 88, 256)
        k("s_cmp_eq_u32 s101, 0")
        k("s_cselect_b32 s10, 0x40000000, 0")
        k("s_lshl_b32 s11, s2, 8")
        k("s_or_b32 s11, s11, s101")
        k("s_lshl_b32 s12, s3, 16")
        k("s_or_b32 s11, s11, s12")
        k("v_mov_b32 v0, s11")
        k("s_and_b32 s12, s101, 0xe")
        k("s_lshl_b32 s12, s12, 1")
        k("v_mov_b32 v1, s12")
        ML("buffer_store_dword v0, v1, s[96:99], s10 offen", 1)()
    if os.environ.get("DBGST"):
        k.stamp("end")
        k.wait(vm=0, lg=0)
        in_srd(k, 96, 88, 256)
        k("s_lshl_b32 s10, s2, 2")
        k("s_add_u32 s10, s10, s3")
        k(f"s_cmp_eq_u32 s10, {int(os.environ['DBGST'])*4}")
        k("s_cselect_b32 s10, 0, 0x40000000")
        k("v_mov_b32 v0, 0")
        for i in range(1, len(k.stamps)):
            k(f"s_sub_u32 s11, s{64+2*i}, s64")
            k("v_mov_b32 v1, s11")
            ML(f"buffer_store_dword v1, v0, s[96:99], s10 offen offset:{4*i}", 1)()
        print(k.stamps)
    else:
        k.prof_end(2, 24, 3, names="main")
    k.label("main_end", flush=False)
    k("s_endpgm")
    k.raw("main_code_end:")
    return k


DOC = """; ---------------------------------------------------------------------------------------------
; ---------------------------------------------------------------------------------------------
"""

if __name__ == "__main__":
    if os.environ.get("PROF"):
        Kern.PROF = True
    main = gen_main()
    out = sys.argv[1] if len(sys.argv) > 1 else "v25.s"
    txt = build_file(HEADER, [main], [main]).replace(f"; @launch kernel={KNAME} ", "; @launch ")
    txt = txt.replace(".text\n", ".text\n" + DOC, 1)
    open(out, "w").write(txt)
    json.dump(PROFINFO, open(out + ".prof.json", "w"))
    print("instrs", main.nins, "vgpr", main.maxv + 1, "agpr", main.maxa + 1, "sgpr", main.maxs + 1, "lds", main.lds)
```

```python
import sys, os, json
sys.path.insert(0, "dev")
from asmdsl import *
from gen1 import S, D, F, EPS, f2u, unpack, reduce16, xsum16, xsum32, HEADER, XFB, HFB, WDB

KNAME = "interleave_layers__ssm_conv_h3__swiglu_ffn__prompt_kernel"
WS_KVT = 0x0000000
WS_QST = 0x0300000
WS_WGU = 0x0400000
WGU_M = 20 * 6144
WGUB = 32 * WGU_M
WS_CS = 0x0800000
WS_WD = 0x0900000
WS_Y = 0x0C00000
WS_X1 = 0x0F00000
WS_H = 0x1200000
WS_X3 = 0x1D00000
WS_H2 = 0x2000000
WS_SYNC = 0x2800000
SY_ST1 = 0
SY_ST2 = 0x10000
SY_ST3 = 0x50000
SY_HF = 0x90000
SY_CF_OLD = 0x110000
SY_PF = 0x124000
SY_QF = 0x128000
SY_GF = 0x12C000
SY_QF = 0x140000
SY_CF = 0x150000
SYNCB = 0x178000
SN = "s[100:101]"
WS_QX = 0x2C00000
XBLK = 40960
WSB = 0x3000000
XRT = 20480
HRT = 49152
OOB = 0x80000000
LOG2E = 1.4426950408889634
SPIN_MAX = 1 << 18
NPREP = 96
STAMPS = os.environ.get("STAMPS", "").split(",")
NP1 = int(os.environ.get("NP1", "4"))
NE1 = int(os.environ.get("NE1", "32"))
PPN = int(os.environ.get("PPN", "2"))
LASTW = int(os.environ.get("LASTW", "240"))
NB = int(os.environ.get("NB", "12"))
NE2 = int(os.environ.get("NE2", "0"))
MAP = int(os.environ.get("MAP", "2"))
PF = int(os.environ.get("PF", "0"))
FK = int(os.environ.get("FK", "7"))
HFK = int(os.environ.get("HFK", "4"))
S3K = int(os.environ.get("S3K", "15"))
NWA = int(os.environ.get("NWA", "10"))
NWE1 = int(os.environ.get("NWE1", "12"))
NWB = int(os.environ.get("NWB", "14"))
NWE2 = int(os.environ.get("NWE2", "12"))
HPK = int(os.environ.get("HPK", "9"))
PREW = int(os.environ.get("PREW", "1"))
DIAG = int(os.environ.get("DIAG", "0"))
QPN = int(os.environ.get("QPN", "8"))
QPOS = int(os.environ.get("QPOS", "2"))
NEP = int(os.environ.get("NEP", "40"))
NT = " nt" if os.environ.get("NT") else ""
HPOS = int(os.environ.get("HPOS", "2"))
HAK = int(os.environ.get("HAK", "3"))
PBK = int(os.environ.get("PBK", "3"))
QTOUCH = int(os.environ.get("QTOUCH", "0"))
EVERY = int(os.environ.get("EVERY", "5"))


def srd(n):
    return f"s[{n}:{n+3}]"


def mkstamp(k):
    def stamp(n):
        if n in STAMPS:
            if hasattr(k, "stamps") and n in k.stamps:
                if Kern.PROF:
                    i = k.stamps.index(n)
                    k(f"{Kern.CLK} s[{64+2*i}:{65+2*i}]")
            else:
                k.stamp(n)
    return stamp


def in_srd(k, slot, karg_off, nbytes):
    k(f"s_load_dwordx2 s[{slot}:{slot+1}], s[0:1], {karg_off}")
    k(f"s_mov_b32 s{slot+2}, {nbytes}")
    k(f"s_mov_b32 s{slot+3}, 0x00020000")


def gen_pre():
    k = Kern("pre_kernel", lds=8192, grid=384, block=128)
    stamp = mkstamp(k)
    SA, SB, SC_, SD_, SWS = 28, 32, 36, 40, 48
    k.prof_begin()
    k(f"s_cmp_ge_u32 s2, {k.grid}")
    k.branch("s_cbranch_scc1 pre_end", flush=False)
    k("s_load_dwordx2 s[24:25], s[0:1], 96")
    k("s_cmp_ge_u32 s2, 320")
    k.branch("s_cbranch_scc1 pre_q", flush=False)
    saved0 = (list(k.vm), list(k.lg))
    in_srd(k, SA, 8, S * D * 2)
    in_srd(k, SB, 16, S * D * 2)
    in_srd(k, SC_, 24, D * 8)
    in_srd(k, SD_, 32, D * 4096)
    k("v_lshrrev_b32 v1, 6, v0")
    k("v_readfirstlane_b32 s3, v1")
    k("v_and_b32 v1, 63, v0")
    k("s_lshr_b32 s57, s2, 5")
    k("s_and_b32 s58, s2, 31")
    k("v_lshrrev_b32 v4, 3, v1")
    k("v_and_b32 v5, 7, v1")
    k("s_lshl_b32 s10, s58, 6")
    k("s_lshl_b32 s11, s3, 5")
    k("s_add_u32 s10, s10, s11")
    k("v_lshlrev_b32 v6, 2, v4")
    k("v_add_u32 v6, s10, v6")
    k("v_mul_u32_u24 v7, 1280, v6")
    k("v_lshl_add_u32 v7, v5, 4, v7")
    k("s_lshl_b32 s12, s57, 7")
    k("v_add_u32 v7, s12, v7")
    KR, VR, WR = 16, 44, 60
    k("v_lshlrev_b32 v9, 6, v5")
    k("s_lshl_b32 s12, s57, 9")
    for j in (3, 4, 5, 6):
        k(f"buffer_load_dwordx4 v[{KR+4*j}:{KR+4*j+3}], v7, {srd(SA)}, 0 offen offset:{(j-3)*1280}")
    for i in range(4):
        k(f"buffer_load_dwordx4 v[{VR+4*i}:{VR+4*i+3}], v7, {srd(SB)}, 0 offen offset:{i*1280}{NT}")
    for i in range(4):
        k(f"buffer_load_dwordx4 v[{WR+4*i}:{WR+4*i+3}], v9, {srd(SC_)}, s12 offen offset:{16*i}")
    for j in (2, 1, 0):
        k(f"v_add_u32 v8, {((j-3)*1280) & 0xffffffff:#x}, v7")
        k(f"buffer_load_dwordx4 v[{KR+4*j}:{KR+4*j+3}], v8, {srd(SA)}, 0 offen")
    k.srd(SWS, 24, WSB)
    k("s_lshl_b32 s10, s3, 6")
    k("s_sub_u32 s10, 120, s10")
    k("v_lshlrev_b32 v8, 3, v4")
    k("v_sub_u32 v8, s10, v8")
    k("v_lshlrev_b32 v9, 4, v5")
    k("v_xor_b32 v8, v8, v9")
    k("v_lshl_add_u32 v8, v5, 10, v8")
    k("s_lshl_b32 s10, s3, 12")
    k("v_lshlrev_b32 v11, 7, v4")
    k("v_add_u32 v11, s10, v11")
    k("s_lshl_b32 s11, s3, 2")
    for j in range(4):
        k(f"s_add_u32 s12, s11, {j}")
        k(f"v_xor_b32 v{12+j}, s12, v5")
        k(f"v_lshl_add_u32 v{12+j}, v{12+j}, 4, v11")
    k("v_lshl_add_u32 v9, v4, 12, v9")
    k("s_lshl_b32 s10, s57, 6")
    k("s_lshl_b32 s11, s3, 5")
    k("s_add_u32 s10, s10, s11")
    k("s_lshl_b32 s10, s10, 12")
    k("s_lshl_b32 s11, s58, 7")
    k("s_sub_u32 s11, 3968, s11")
    k("s_add_u32 s10, s10, s11")
    WF = 80
    for c in range(8):
        unpack(k, f"v{WF+4*c}", f"v{WF+4*c+1}", f"v{WR+2*c}")
        unpack(k, f"v{WF+4*c+2}", f"v{WF+4*c+3}", f"v{WR+2*c+1}")
    k.need([f"v{KR}"])
    stamp("Tld")
    if HPOS == 3:
        h_loads_()
    lab = k.newlabel("pc")
    k("s_getpc_b64 s[44:45]")
    k.raw(lab + ":")
    k(f"s_add_u32 s44, s44, main_kernel-{lab}")
    k("s_addc_u32 s45, s45, 0")
    k("s_mov_b32 s46, main_code_end-main_kernel")
    k("s_mov_b32 s47, 0x00020000")
    k("v_lshlrev_b32 v2, 7, v0")
    k(f"s_sub_u32 s12, s2, {NPREP}")
    k("s_lshl_b32 s12, s12, 14")
    k("s_and_b32 s12, s12, 0x7fffffff")
    k(f"buffer_load_dword v150, v2, {srd(SD_)}, s12 offen")
    k("s_lshr_b32 s12, s2, 3")
    k("s_lshl_b32 s12, s12, 14")
    k("buffer_load_dword v151, v2, s[44:47], s12 offen")
    KF, VF, OUT = 112, 128, 136
    for cp in range(4):
        for j in range(7):
            unpack(k, f"v{KF+2*j}", f"v{KF+2*j+1}", f"v{KR+4*j+cp}")
        for i in range(4):
            unpack(k, f"v{VF+2*i}", f"v{VF+2*i+1}", f"v{VR+4*i+cp}")
        for h in range(2):
            c = 2 * cp + h
            O = OUT + 4 * h
            for i in range(4):
                k(f"v_mul_f32 v{O+i}, v{KF+2*(i+0)+h}, v{WF+4*c+3}")
            for t in (2, 1, 0):
                for i in range(4):
                    k(f"v_fmac_f32 v{O+i}, v{KF+2*(i+3-t)+h}, v{WF+4*c+t}")
            for i in range(4):
                k(f"v_mul_f32 v{O+i}, v{O+i}, v{VF+2*i+h}")
            p = 144 + 2 * h
            k(f"v_cvt_pk_bf16_f32 v{p}, v{O+3}, v{O+2}")
            k(f"v_cvt_pk_bf16_f32 v{p+1}, v{O+1}, v{O+0}")
            k(f"ds_write_b64 v8, v[{p}:{p+1}] offset:{c*128}")
    k.wait(lg=0)
    k.barrier()
    stamp("Tkv")
    for j in range(4):
        k(f"ds_read_b128 v[{16+4*j}:{19+4*j}], v{12+j} offset:{j*1024}")
    for j in range(4):
        k(f"buffer_store_dwordx4 v[{16+4*j}:{19+4*j}], v9, {srd(SWS)}, s10 offen{PSC}")
        k("s_add_u32 s10, s10, 32768")
    for i in range(4):
        k(f"v_mov_b32 v{32+i}, 0")
    k.srd(SA, 24, SYNCB, WS_SYNC)
    k("s_lshl_b32 s12, s2, 12")
    k("v_lshlrev_b32 v8, 4, v0")
    for i in range(2):
        k(f"buffer_store_dwordx4 v[32:35], v8, {srd(SA)}, s12 offen offset:{i*2048}{PSC}")
    k.prof_end(0, 24, 3, names="pre")
    k("s_endpgm")
    k.label("pre_q", flush=False)
    k.vm, k.lg = saved0
    in_srd(k, SA, 0, S * D * 2)
    k("v_lshrrev_b32 v1, 6, v0")
    k("v_readfirstlane_b32 s3, v1")
    k("v_and_b32 v1, 63, v0")
    k("v_and_b32 v2, 15, v0")
    k("v_bfe_u32 v3, v0, 4, 2")
    k("s_sub_u32 s10, s2, 320")
    k("s_lshl_b32 s10, s10, 1")
    k("s_add_u32 s10, s10, s3")
    k(f"s_mul_i32 s11, s10, {XRT}")
    k("v_mul_u32_u24 v4, 1280, v2")
    k("v_lshl_add_u32 v4, v3, 4, v4")
    QR = 16
    for i in range(20):
        k(f"buffer_load_dwordx4 v[{QR+4*i}:{QR+4*i+3}], v4, {srd(SA)}, s11 offen offset:{64*i}")
    k.srd(SWS, 24, WSB)
    k("v_lshlrev_b32 v5, 4, v1")
    k(f"s_add_u32 s12, s11, {WS_QX}")
    k("v_mov_b32 v6, 0x3f803f80")
    k("v_mov_b32 v8, 0")
    k("v_mov_b32 v9, 0")
    for i in range(20):
        if i % 4 == 0 and i:
            k("s_add_u32 s12, s12, 4096")
        k(f"buffer_store_dwordx4 v[{QR+4*i}:{QR+4*i+3}], v5, {srd(SWS)}, s12 offen offset:{(i%4)*1024}{PSC}")
        for d in range(4):
            k(f"v_dot2c_f32_bf16 v8, v{QR+4*i+d}, v6")
            k(f"v_dot2c_f32_bf16 v9, v{QR+4*i+d}, v{QR+4*i+d}")
    for v in ("v8", "v9"):
        xsum16(k, v, "v7")
        xsum32(k, v, "v7")
    k(f"v_mul_f32 v8, {f2u(1.0/D)}, v8")
    k(f"v_mul_f32 v9, {f2u(1.0/D)}, v9")
    k("v_fma_f32 v9, -v8, v8, v9")
    k("v_max_f32 v9, 0, v9")
    k(f"v_add_f32 v9, {f2u(EPS)}, v9")
    k("v_rsq_f32 v11, v9")
    k("v_mul_f32 v10, v8, v11")
    k("s_lshl_b32 s12, s10, 7")
    k(f"s_add_u32 s12, s12, {WS_QST}")
    k("v_lshlrev_b32 v7, 3, v2")
    k(f"buffer_store_dwordx2 v[10:11], v7, {srd(SWS)}, s12 offen")
    k.label("pre_end", flush=False)
    k("s_endpgm")
    return k


PSC = os.environ.get("PSC", "")

def gen_main():
    LW = 0
    LR = 131072
    LC = 122880
    CP = 4160
    UOFF = 4 * CP
    WREG = 4 * CP + 4608
    CB = 163840 - 4 * WREG
    k = Kern(KNAME, lds=163840, grid=256, block=256)
    RING, ACC, WB, TMP = 16, 112, 160, 184
    X1R = [216, 222]
    YR = [228, 234]
    STA, STB = [4, 6], [240, 242]
    X2 = [WB, WB + 12]
    G2R = TMP + 8
    DIST = int(os.environ.get("DIST", "8"))
    VL16, VL16B, VH2, VT4, VT4S, VROW, VGW, VGR, VQ128, VFLAG, VFPOLL = (
        "v10", "v11", "v8", "v9", "v12", "v13", "v14", "v15", "v0", "v252", "v253")
    VL128 = "v251"
    VXP = "v250"
    VRW = "v249"
    LQ = 131072
    SX, SW, SH, SWD, SSY, SO, SY_ = 28, 32, 36, 40, 44, 48, 52
    SA, SB, SWS, SDBG = 28, 36, 48, 52
    XSPAN = WS_X3 - WS_X1
    HSPAN = WS_H2 - WS_H

    stamp = mkstamp(k)

    def ring(i):
        return RING + 4 * (i % 24)

    def emit(x):
        if callable(x):
            x()
        elif isinstance(x, tuple):
            k(x[0], tag=x[1])
        else:
            k(x)

    def set_exec(nl):
        m = (1 << nl) - 1
        if nl <= 32:
            k(f"s_mov_b64 exec, {m:#x}") if nl <= 6 else (k(f"s_mov_b32 exec_lo, {m:#x}"), k("s_mov_b32 exec_hi, 0"))
        else:
            k(f"s_mov_b32 exec_hi, {m >> 32:#x}")

    class ML:
        def __init__(self, text, nl):
            self.text, self.nl = text, nl

        def __call__(self):
            set_exec(self.nl)
            k(self.text)
            k("s_mov_b64 exec, -1")

    def isvm(x):
        if isinstance(x, ML):
            return True
        if callable(x):
            return False
        return (x[0] if isinstance(x, tuple) else x).startswith("buffer_")

    def emit_one_vmem(L):
        while L:
            x = L.pop(0)
            emit(x)
            if isvm(x):
                return

    def x_loads(layer, b, kk, slot0):
        if layer == 0:
            return [f"s_add_u32 s10, s17, {kk*2048 + b*4*XBLK}"] + [
                f"buffer_load_dwordx4 v[{ring(slot0+e)}:{ring(slot0+e)+3}], {VXP}, {srd(SX)}, s10 offen offset:{e*256} sc1"
                for e in range(2)]
        so = kk * 1024 + b * 8 * XRT + (XSPAN if layer else 0)
        L = []
        for tn in range(2):
            L.append(f"s_add_u32 s10, s17, {so + tn*XRT}")
            L.append(f"buffer_load_dwordx4 v[{ring(slot0+tn)}:{ring(slot0+tn)+3}], {VL16}, {srd(SX)}, s10 offen sc1")
        return L

    def h_loads(layer, b, kk, slot0):
        so = kk * 1024 + b * 8 * HRT + (HSPAN if layer else 0)
        L = []
        for tn in range(2):
            L.append(f"s_add_u32 s10, s{57+tn}, {so}")
            L.append(f"buffer_load_dwordx4 v[{ring(slot0+tn)}:{ring(slot0+tn)+3}], {VL16}, {srd(SH)}, s10 offen sc1")
        return L

    def x_pf(layer, b):
        if not PF:
            return []
        return [f"s_add_u32 s10, s26, {b*8*XRT + (XSPAN if layer else 0)}",
                ML(f"buffer_load_dword a240, {VL128}, {srd(SX)}, s10 offen sc1", 20)]

    def h_pf(layer, b):
        if not PF:
            return []
        return [f"s_add_u32 s10, s27, {b*8*HRT + (HSPAN if layer else 0)}",
                ML(f"buffer_load_dword a241, {VL128}, {srd(SH)}, s10 offen sc1", 48)]

    def wgu_dma(p):
        return [f"s_add_u32 m0, s18, {LW + p*12288}", f"s_add_u32 s11, s19, {p*12288}"] + [
            (f"buffer_load_dwordx4 {VL16}, {srd(SW)}, s11 offen offset:{f*1024} sc1 lds", f"w{p}") for f in range(3)]

    def wd_load(i):
        kk, lt = divmod(i, 5)
        base = "s20" if lt < 2 else "s21" if lt < 4 else "s22"
        return [f"s_add_u32 s11, {base}, {kk*5120}",
                f"buffer_load_dwordx4 a[{4*i}:{4*i+3}], {VL16}, {srd(SWD)}, s11 offen offset:{(lt&1)*1024 if lt < 4 else 0} sc1"]

    def poll(loads, tags, tmp, sleep=1, ge=None, nl=64, eq=None):
        def check():
            if nl < 64:
                k(f"v_mov_b32 {tags[0]}, {tags[0]}")
                set_exec(nl)
            check0()
            if nl < 64:
                k("s_cmp_eq_u64 vcc, exec")
                k("s_mov_b64 exec, -1")
            else:
                k("s_cmp_eq_u64 vcc, -1")

        def check0():
            if eq is not None:
                r_ = int(tags[0][1:])
                k(f"v_cmp_eq_u64 vcc, {eq}, v[{r_}:{r_+1}]")
            elif ge is not None:
                k(f"v_cmp_le_u32 vcc, {ge}, {tags[0]}")
            elif len(tags) == 1:
                k(f"v_cmp_ne_u32 vcc, 0, {tags[0]}")
            else:
                k(f"v_min_u32 {tmp}, {tags[0]}, {tags[1]}")
                for t in tags[2:]:
                    k(f"v_min_u32 {tmp}, {tmp}, {t}")
                k(f"v_cmp_ne_u32 vcc, 0, {tmp}")
        ok = k.newlabel("ok")
        lp = k.newlabel("spin")
        check()
        k.branch(f"s_cbranch_scc1 {ok}", flush=False)
        vm, lg = list(k.vm), list(k.lg)
        snap = k.haz_snapshot()
        k("s_mov_b32 s23, 0")
        k.label(lp, flush=False)
        k(f"s_sleep {sleep}")
        for l in loads:
            emit(l)
        k.wait(vm=0)
        k("s_add_u32 s23, s23, 1")
        k(f"s_cmp_ge_u32 s23, {SPIN_MAX}")
        if DIAG:
            k(f"s_cselect_b32 s101, {k.uid}, s101")
        k.branch(f"s_cbranch_scc1 {ok}", flush=False)
        check()
        k.branch(f"s_cbranch_scc0 {lp}", flush=False)
        k.flush_hazards()
        k.label(ok, flush=False)
        k.vm, k.lg = vm, lg
        k.haz_restore(snap)

    def finish_stats(vsum, vnsq, dst):
        k(f"v_mul_f32 v{dst}, {f2u(-1.0/D)}, {vsum}")
        k(f"v_mul_f32 {vnsq}, {f2u(-1.0/D)}, {vnsq}")
        k(f"v_fma_f32 {vnsq}, -v{dst}, v{dst}, {vnsq}")
        k(f"v_max_f32 {vnsq}, 0, {vnsq}")
        k(f"v_add_f32 {vnsq}, {f2u(EPS)}, {vnsq}")
        k(f"v_rsq_f32 v{dst+1}, {vnsq}")

    def wread(kk, f):
        reg, off = (VL16, kk * 6144) if kk < 10 else (VL16B, (kk - 10) * 6144)
        return f"ds_read_b128 v[{WB+4*f}:{WB+4*f+3}], {reg} offset:{LW+off+f*1024}"

    def xswap(slot):
        a_, b_ = ring(slot), ring(slot + 1)
        k(f"v_swap_b32 v{a_+2}, v{b_}")
        k(f"v_swap_b32 v{a_+3}, v{b_+1}")

    def g1_main(slot0, sched, first=False, xp=False):
        for f in range(6):
            k(wread(0, f))
        if xp:
            xswap(slot0)
        for kk in range(20):
            L = sched.get(kk, [])
            if first and kk == 11:
                k.wait_tag("w9")
                k.barrier()
            nv = sum(1 for x in L if isvm(x))
            done = 0
            for f in range(6):
                for tn in range(2):
                    a = ACC + 8 * f + 4 * tn
                    acc = f"v[{a}:{a+3}]"
                    xr = ring(slot0 + 2 * kk + tn)
                    k(f"v_mfma_f32_16x16x32_bf16 {acc}, v[{WB+4*f}:{WB+4*f+3}], v[{xr}:{xr+3}], {acc if kk else 0}")
                    if tn == 0:
                        while done < nv and done * 6 < (f + 1) * nv - 2:
                            emit_one_vmem(L)
                            done += 1
                        if PREW and not (kk == 19 and f == 5):
                            regs = [f"v{WB+4*((f+1)%6)}"]
                            if f == 5 and not xp:
                                regs += [f"v{ring(slot0+2*kk+2)}", f"v{ring(slot0+2*kk+3)}"]
                            k.need(regs)
                    elif PREW:
                        while L and isinstance(L[0], str) and L[0].startswith("s_add_u32 s10") and done < nv and done * 6 < (f + 2) * nv - 2:
                            emit(L.pop(0))
                if xp and f == 3 and kk < 19:
                    xswap(slot0 + 2 * kk + 2)
                if kk < 19:
                    k(wread(kk + 1, f))
                else:
                    if f == 0:
                        k("v_lshlrev_b32 v255, 4, v3")
                        k(f"v_add_u32 v255, {LC}, v255")
                    k(f"ds_read_b128 v[{WB+4*f}:{WB+4*f+3}], v255 offset:{f*64}")
            for x in L:
                emit(x)

    def g1_epilogue(layer, b, ST, fill=None):
        fill = fill if fill is not None else []
        k(f"s_add_u32 s12, s56, {b*8*HRT + (HSPAN if layer else 0)}")
        O2 = TMP + 20
        for tn in range(2):
            st = ST[tn]
            c1 = TMP + 28
            k(f"v_mul_f32 v{c1}, {f2u(-LOG2E)}, v{st+1}")
            k(f"v_mul_f32 v{c1+1}, v{st+1}, v{st+1}")
            k(f"v_rcp_f32 v{c1+1}, v{c1+1}")
            T = TMP
            for f in range(6):
                a = ACC + 8 * f + 4 * tn
                for i in (0, 2):
                    k(f"v_pk_fma_f32 v[{a+i}:{a+i+1}], v[{WB+4*f+i}:{WB+4*f+i+1}], v[{st}:{st+1}], v[{a+i}:{a+i+1}] op_sel:[0,0,0] op_sel_hi:[1,0,1]")
            for f in range(3):
                g = ACC + 8 * f + 4 * tn
                for i in (0, 2):
                    k(f"v_pk_mul_f32 v[{T+4*f+i}:{T+4*f+i+1}], v[{g+i}:{g+i+1}], v[{c1}:{c1+1}] op_sel:[0,0] op_sel_hi:[1,0]")
            for e in range(12):
                k(f"v_exp_f32 v{T+e}, v{T+e}")
                if e % 4 == 0:
                    emit_one_vmem(fill)
            for f in range(3):
                g = ACC + 8 * f + 4 * tn
                u = g + 24
                for i in (0, 2):
                    k(f"v_pk_mul_f32 v[{g+i}:{g+i+1}], v[{g+i}:{g+i+1}], v[{u+i}:{u+i+1}]")
            for e in range(0, 12, 2):
                k(f"v_pk_fma_f32 v[{T+e}:{T+e+1}], v[{T+e}:{T+e+1}], v[{c1}:{c1+1}], v[{c1}:{c1+1}] op_sel:[0,1,1] op_sel_hi:[1,1,1]")
            for e in range(12):
                k(f"v_rcp_f32 v{T+e}, v{T+e}")
                if e % 4 == 0:
                    emit_one_vmem(fill)
            for f in range(3):
                g = ACC + 8 * f + 4 * tn
                for i in (0, 2):
                    k(f"v_pk_mul_f32 v[{T+4*f+i}:{T+4*f+i+1}], v[{T+4*f+i}:{T+4*f+i+1}], v[{g+i}:{g+i+1}]")
            O = TMP + 12 + 4 * tn
            for p in range(4):
                k(f"v_cvt_pk_bf16_f32 v{O+p}, v{T+2*p}, v{T+2*p+1}")
            for p in range(2):
                k(f"v_cvt_pk_bf16_f32 v{O2+2*tn+p}, v{T+8+2*p}, v{T+9+2*p}")
            if tn:
                k(f"s_add_u32 s13, s12, {HRT}")
            k(f"buffer_store_dwordx4 v[{O}:{O+3}], {VL16}, {srd(SH)}, s{12+tn} offen sc1", tag="hst")
        k(f"v_permlane16_swap_b32 v{O2}, v{O2+2}")
        k(f"v_permlane16_swap_b32 v{O2+1}, v{O2+3}")
        k(f"buffer_store_dwordx4 v[{O2}:{O2+3}], {VH2}, {srd(SH)}, s12 offen offset:1024 sc1", tag="hst")
        for x in fill:
            emit(x)

    def h_flag(layer, b):
        k("s_lshl_b32 s12, s4, 3")
        k("s_add_u32 s12, s12, s3")
        k("s_lshl_b32 s12, s12, 5")
        k("s_add_u32 s12, s12, s5")
        k("s_lshl_b32 s12, s12, 7")
        k(f"s_add_u32 s12, s12, {SY_HF + layer*0x40000 + b*0x4000}")
        k("v_mov_b32 v254, s100"); k("v_mov_b32 v255, s101")
        k.wait_tag("hst")
        k(f"buffer_store_dwordx2 v[254:255], {VFLAG}, {srd(SSY)}, s12 offen sc1")
        stamp(f"hf{layer}{b}")

    def h_poll_loads(layer, b):
        return [f"s_mov_b32 s13, {SY_HF + layer*0x40000 + b*0x4000}",
                ML(f"buffer_load_dwordx2 v[{TMP+30}:{TMP+31}], {VFPOLL}, {srd(SSY)}, s13 offen sc1", 8)]

    def h_poll(layer, b):
        poll(h_poll_loads(layer, b), [f"v{TMP+30}"], None, nl=8, eq=SN)

    TAILK = int(os.environ.get("TAILK", "3"))
    RESF = TMP

    def g2_main(slot0, sched, res, dst):
        def areg(lt, tn):
            if tn == 0 and lt in (0, 1, 4):
                return dst + 4 * (lt if lt < 2 else 2)
            return ACC + 8 * lt + 4 * tn

        def mf(kk, lt, tn):
            a = areg(lt, tn)
            acc = f"v[{a}:{a+3}]"
            hr = ring(slot0 + 2 * kk + tn)
            wr = 4 * (5 * kk + lt)
            k(f"v_mfma_f32_16x16x32_bf16 {acc}, a[{wr}:{wr+3}], v[{hr}:{hr+3}], {acc if kk else 0}")

        for kk in range(12 - TAILK):
            L = sched.get(kk, [])
            nv = sum(1 for x in L if isvm(x))
            done = 0
            idx = 0
            if kk == 5:
                k.barrier()
            for tn in range(2):
                for lt in range(5):
                    mf(kk, lt, tn)
                    idx += 1
                    while done < nv and done * 10 < idx * nv - 5:
                        emit_one_vmem(L)
                        done += 1
            for x in L:
                emit(x)
        L = []
        for kk in range(12 - TAILK, 12):
            L += sched.get(kk, [])
        order = [(0, 1, 0), (1, 1, 1), (2, 0, 2), (3, 0, 3), (2, 1, 4), (3, 1, 5), (4, 1, 7), (4, 0, 6), (0, 0, None), (1, 0, None)]
        pend = []
        fillv = []
        for d in range(6):
            fillv += [f"v_lshlrev_b32 v{RESF+2*d}, 16, v{res+d}", f"v_and_b32 v{RESF+2*d+1}, 0xffff0000, v{res+d}"]
        fillv += [f"v_xor_b32 v{TMP+12+x}, {x << 13}, {VRW}" for x in range(1, 4)]
        for i, (lt, tn, slot) in enumerate(order):
            for kk in range(12 - TAILK, 12):
                mf(kk, lt, tn)
                if i >= 5 and fillv:
                    k(fillv.pop(0))
            if L:
                emit_one_vmem(L)
            if slot is not None:
                a = areg(lt, tn)
                pend.append((i, f"ds_write_b128 {VRW}, v[{a}:{a+3}] offset:{slot*1024}"))
            while pend and pend[0][0] <= i - 2:
                k(pend.pop(0)[1])
        for x in L + fillv:
            emit(x)
        for _, x in pend:
            k(x)

    def g2_reduce(dst, mid=None):
        if mid:
            mid()
        k.wait(lg=0)
        k.barrier()
        n = 0
        for x in range(1, 4):
            for sl_ in (2 * (x - 1), 2 * (x - 1) + 1, 6 + (x & 1)):
                k(f"ds_read_b128 v[{ACC+4*n}:{ACC+4*n+3}], v{TMP+12+x} offset:{sl_*1024}")
                n += 1
        for i in range(0, 12, 2):
            k(f"v_pk_add_f32 v[{dst+i}:{dst+i+1}], v[{dst+i}:{dst+i+1}], v[{RESF+i}:{RESF+i+1}]")
        for x in range(3):
            for i in range(0, 12, 2):
                r = ACC + 12 * x + i
                k(f"v_pk_add_f32 v[{dst+i}:{dst+i+1}], v[{dst+i}:{dst+i+1}], v[{r}:{r+1}]")

    def part_stats(src, b, region, pre_wait=None):
        part_calc(src, TMP + 16)
        part_pub(TMP + 16, b, region, pre_wait)

    def part_calc(src, a):
        q_ = a + 1
        t = TMP + 18
        u = TMP + 4
        k(f"v_pk_add_f32 v[{t}:{t+1}], v[{src+8}:{src+9}], v[{src+10}:{src+11}]")
        k(f"v_pk_mul_f32 v[{t+2}:{t+3}], v[{src+8}:{src+9}], v[{src+8}:{src+9}]")
        k(f"v_pk_fma_f32 v[{t+2}:{t+3}], v[{src+10}:{src+11}], v[{src+10}:{src+11}], v[{t+2}:{t+3}]")
        k(f"v_pk_add_f32 v[{u}:{u+1}], v[{src}:{src+1}], v[{src+2}:{src+3}]")
        k(f"v_pk_mul_f32 v[{t}:{t+1}], v[{t}:{t+1}], s[26:27]")
        k(f"v_pk_mul_f32 v[{t+2}:{t+3}], v[{t+2}:{t+3}], s[26:27]")
        k(f"v_pk_add_f32 v[{u+2}:{u+3}], v[{src+4}:{src+5}], v[{src+6}:{src+7}]")
        for i in range(0, 8, 2):
            k(f"v_pk_fma_f32 v[{t+2}:{t+3}], v[{src+i}:{src+i+1}], v[{src+i}:{src+i+1}], v[{t+2}:{t+3}]")
        k(f"v_pk_add_f32 v[{u}:{u+1}], v[{u}:{u+1}], v[{u+2}:{u+3}]")
        k(f"v_pk_add_f32 v[{t}:{t+1}], v[{t}:{t+1}], v[{u}:{u+1}]")
        k(f"v_add_f32 v{q_}, v{t+2}, v{t+3}")
        k(f"v_add_f32 v{a}, v{t}, v{t+1}")
        k(f"v_permlane16_swap_b32 v{a}, v{q_}")
        k(f"v_add_f32 v{a}, v{a}, v{q_}")
        k(f"v_mov_b32 v{q_}, v{a}")
        k(f"v_permlane32_swap_b32 v{a}, v{q_}")
        k(f"v_add_f32 v{a}, v{a}, v{q_}")
        k(f"v_mov_b32 v{q_}, v{a}")
        k(f"v_permlane16_swap_b32 v{a}, v{q_}")
        k(f"v_or_b32 v{q_}, 0x80000000, v{q_}")

    def part_pub(a, b, region, pre_wait=None):
        k(f"s_add_u32 s12, s23, {region + b*8*2048}") if False else None
        k(f"s_add_u32 s12, s60, {region + b*8*2048}")
        if pre_wait:
            k.wait_tag(pre_wait)
        k(f"buffer_store_dwordx2 v[{a}:{a+1}], {VGW}, {srd(SSY)}, s12 offen sc1")
        stamp(f"pub{2 if region == SY_ST2 else 3}{b}")

    def st2_loads(b, dst):
        return ["s_lshl_b32 s13, s16, 11", f"s_add_u32 s13, s13, {SY_ST2 + b*8*2048}"] + [
            f"buffer_load_dwordx2 v[{dst+2*i}:{dst+2*i+1}], {VGR}, {srd(SSY)}, s13 offen offset:{i*128} sc1"
            for i in range(4)]

    def st3_loads(b, dst):
        return ["s_lshl_b32 s13, s15, 11", f"s_add_u32 s13, s13, {SY_ST3 + b*8*2048}"] + [
            f"buffer_load_dwordx2 v[{dst+8*tn+2*i}:{dst+8*tn+2*i+1}], {VGR}, {srd(SSY)}, s13 offen offset:{tn*2048+i*128} sc1"
            for tn in range(2) for i in range(4)]

    def st1_loads(b, dst):
        return ["s_lshl_b32 s13, s15, 9", f"s_add_u32 s13, s13, {SY_ST1 + b*8*512}"] + [
            f"buffer_load_dwordx2 v[{dst+2*tn}:{dst+2*tn+1}], {VQ128}, {srd(SSY)}, s13 offen offset:{tn*512} sc1"
            for tn in range(2)]

    def sum_granules(g, n, tmp):
        for i in range(1, n):
            k(f"v_pk_add_f32 v[{g}:{g+1}], v[{g}:{g+1}], v[{g+2*i}:{g+2*i+1}]")
        for v in (g, g + 1):
            xsum16(k, f"v{v}", tmp)
            xsum32(k, f"v{v}", tmp)

    def finalize(b, x2, G):
        poll(st2_loads(b, G), [f"v{G+1}", f"v{G+3}", f"v{G+5}", f"v{G+7}"], f"v{TMP+20}")
        stamp(f"p2{b}")
        sum_granules(G, 4, f"v{TMP+20}")
        sp = TMP + 22
        finish_stats(f"v{G}", f"v{G+1}", sp)
        k(f"v_mul_f32 v{sp}, v{sp}, v{sp+1}")
        for d in range(6):
            unpack(k, f"v{TMP}", f"v{TMP+1}", f"v{YR[b]+d}")
            k(f"v_pk_fma_f32 v[{TMP+2}:{TMP+3}], v[{x2+2*d}:{x2+2*d+1}], v[{sp}:{sp+1}], v[{sp}:{sp+1}] op_sel:[0,1,0] op_sel_hi:[1,1,0]")
            k(f"v_pk_fma_f32 v[{x2+2*d}:{x2+2*d+1}], v[{TMP+2}:{TMP+3}], v[{TMP}:{TMP+1}], v[{x2+2*d}:{x2+2*d+1}]")
            k(f"v_cvt_pk_bf16_f32 v{X1R[b]+d}, v{x2+2*d}, v{x2+2*d+1}")
        k(f"s_add_u32 s13, s59, {XSPAN + b*8*XRT}")
        k("s_lshl_b32 s12, s14, 10")
        k("s_add_u32 s12, s12, s13")
        k(f"buffer_store_dwordx4 v[{X1R[b]}:{X1R[b]+3}], {VL16}, {srd(SX)}, s12 offen sc1", tag="xst")
        k(f"buffer_store_dwordx2 v[{X1R[b]+4}:{X1R[b]+5}], {VT4S}, {srd(SX)}, s13 offen offset:2048 sc1", tag="xst")
        for d in range(6):
            unpack(k, f"v{x2+2*d}", f"v{x2+2*d+1}", f"v{X1R[b]+d}")

    def stats1(b, STx):
        poll(st1_loads(b, TMP + 24), [f"v{TMP+25}", f"v{TMP+27}"], f"v{TMP+20}")
        for tn in range(2):
            sum_granules(TMP + 24 + 2 * tn, 1, f"v{TMP+20}")
            finish_stats(f"v{TMP+24+2*tn}", f"v{TMP+25+2*tn}", STx[tn])

    def stats3(b, STx):
        poll(st3_loads(b, TMP), [f"v{TMP+1+2*i}" for i in range(8)], f"v{TMP+20}")
        for tn in range(2):
            sum_granules(TMP + 8 * tn, 4, f"v{TMP+20}")
            finish_stats(f"v{TMP+8*tn}", f"v{TMP+8*tn+1}", STx[tn])

    def res_loads(b):
        L = [f"s_add_u32 s13, s62, {b*4*XBLK}", "s_lshl_b32 s12, s14, 11", "s_add_u32 s12, s12, s13",
             "s_add_u32 s13, s13, 4096"]
        for R, sr in ((X1R[b], SX), (YR[b], SY_)):
            L += [f"buffer_load_dwordx2 v[{R}:{R+1}], {VXP}, {srd(sr)}, s12 offen sc1",
                  f"buffer_load_dwordx2 v[{R+2}:{R+3}], {VXP}, {srd(sr)}, s12 offen offset:256 sc1",
                  f"buffer_load_dwordx2 v[{R+4}:{R+5}], {VL16}, {srd(sr)}, s13 offen sc1"]
        return L

    def out_store(b, src):
        for d in range(6):
            k(f"v_cvt_pk_bf16_f32 v{TMP+d}, v{src+2*d}, v{src+2*d+1}")
        k(f"v_mul_u32_u24 v{TMP+8}, 1280, {VROW}")
        k("s_mul_i32 s12, s8, 160")
        k(f"s_add_u32 s12, s12, {b*128*1280}")
        k("s_lshl_b32 s13, s14, 6")
        k("s_add_u32 s13, s13, s12")
        k(f"v_lshl_add_u32 v{TMP+9}, v3, 4, v{TMP+8}")
        k(f"v_lshl_add_u32 v{TMP+10}, v3, 3, v{TMP+8}")
        k("s_lshl_b32 s10, s14, 31")
        k(f"v_or_b32 v{TMP+10}, s10, v{TMP+10}")
        k(f"buffer_store_dwordx4 v[{TMP}:{TMP+3}], v{TMP+9}, {srd(SO)}, s13 offen")
        k(f"buffer_store_dwordx2 v[{TMP+4}:{TMP+5}], v{TMP+10}, {srd(SO)}, s12 offen offset:128")

    def g1b_sched(layer, extra):
        sched = {}
        hl = [h_loads(layer, 0, kk, 80 + 2 * kk) for kk in range(12)]
        for kk in range(20):
            L = []
            if kk + DIST < 20:
                L += x_loads(layer, 1, kk + DIST, 40 + 2 * (kk + DIST))
            L += extra.get(kk, [])
            if kk == HAK:
                L += [lambda: h_flag(layer, 0)]
            if kk == HAK + 4:
                L += h_poll_loads(layer, 0)
            if kk == 13:
                L = [lambda: h_poll(layer, 0)] + h_pf(layer, 0) + L
            if kk >= 14:
                while hl and (12 - len(hl)) + 8 < kk and len([x for x in L if isvm(x)]) < 6:
                    L += hl.pop(0)
            sched[kk] = L
        return sched, hl


    k.prof_begin()
    k(f"s_cmp_ge_u32 s2, {k.grid}")
    k.branch("s_cbranch_scc1 main_end", flush=False)
    k("s_load_dwordx2 s[24:25], s[0:1], 96")
    k("s_load_dwordx2 s[26:27], s[0:1], 0")
    if DIAG:
        k("s_mov_b32 s101, 0")
    k("s_getpc_b64 s[60:61]")
    k.raw("mega_pc:")
    k(f"s_sub_u32 s60, s60, mega_pc-{KNAME}")
    k("s_subb_u32 s61, s61, 0")
    k(f"s_mov_b32 s62, main_code_end-{KNAME}")
    k("s_mov_b32 s63, 0x00020000")
    k("s_lshr_b32 s10, s2, 3")
    k("s_lshl_b32 s10, s10, 11")
    k("v_lshrrev_b32 v2, 4, v0")
    k("v_lshlrev_b32 v1, 7, v0")
    k("v_lshl_or_b32 v1, v2, 24, v1")
    k("buffer_load_dword v255, v1, s[60:63], s10 offen")
    in_srd(k, SDBG, 88, 256)
    k("v_lshrrev_b32 v1, 6, v0")
    k("v_readfirstlane_b32 s3, v1")
    k("v_and_b32 v1, 63, v0")
    k("v_and_b32 v2, 15, v0")
    k("v_bfe_u32 v3, v0, 4, 2")
    k(f"v_lshlrev_b32 {VL16}, 4, v1")
    def ffn_ids():
        if MAP == 1:
            k("s_and_b32 s4, s2, 7")
            k("s_lshr_b32 s5, s2, 3")
            k("s_lshr_b32 s7, s5, 3")
            k("s_and_b32 s8, s5, 7")
        elif MAP == 4:
            k("s_and_b32 s4, s2, 4")
            k("s_lshr_b32 s10, s2, 6")
            k("s_add_u32 s4, s4, s10")
            k("s_bfe_u32 s5, s2, 0x30003")
            k("s_and_b32 s10, s2, 3")
            k("s_lshl_b32 s10, s10, 3")
            k("s_add_u32 s5, s5, s10")
            k("s_and_b32 s7, s5, 3")
            k("s_lshr_b32 s8, s5, 2")
        else:
            k("s_and_b32 s4, s2, 6")
            k("s_lshr_b32 s10, s2, 7")
            k("s_add_u32 s4, s4, s10")
            k("s_bfe_u32 s5, s2, 0x40003")
            k("s_and_b32 s10, s2, 1")
            k("s_lshl_b32 s10, s10, 4")
            k("s_add_u32 s5, s5, s10")
            k("s_and_b32 s7, s5, 3")
            k("s_lshr_b32 s8, s5, 2")
        k("s_and_b32 s9, s3, 1")
        k("s_lshr_b32 s14, s3, 1")
        k("s_lshl_b32 s6, s4, 4")
        k("s_lshl_b32 s10, s3, 1")
        k("s_add_u32 s15, s6, s10")
        k("s_lshl_b32 s10, s7, 1")
        k("s_add_u32 s16, s6, s10")
        k("s_add_u32 s16, s16, s9")
        k(f"s_mul_i32 s17, s15, {XRT}")
        k("s_mul_i32 s18, s3, 3072")
        k(f"s_mul_i32 s19, s5, {WGU_M}")
        k("s_add_u32 s19, s19, s18")
        k("s_lshl_b32 s10, s8, 2")
        k("s_add_u32 s10, s10, s3")
        k("s_mul_i32 s10, s10, 61440")
        k("s_lshl_b32 s11, s14, 11")
        k("s_add_u32 s20, s10, s11")
        k("s_xor_b32 s11, s11, 2048")
        k("s_add_u32 s21, s10, s11")
        k("s_add_u32 s22, s10, 4096")
        k.srd(SWS, 24, WSB)
        k.srd(SW, 24, WGUB, WS_WGU)
        k.srd(SWD, 24, WDB, WS_WD)
        k.srd(SSY, 24, SYNCB, WS_SYNC)


    def wpoll_setup(va):
        k(f"v_lshrrev_b32 {va}, 1, v1")
        k(f"v_lshlrev_b32 {va}, 4, {va}")
        k("v_and_b32 v9, 1, v1")
        k("s_lshr_b32 s10, s5, 2")
        k("s_lshl_b32 s10, s10, 1")
        k(f"v_add3_u32 {va}, {va}, v9, s10")
        k("s_lshl_b32 s10, s3, 3")
        k("s_add_u32 s10, s10, 56")
        k("v_add_u32 v9, s10, v1")
        k("v_cmp_gt_u32 vcc, 8, v1")
        k(f"v_cndmask_b32 {va}, v9, {va}, vcc")
        k(f"v_lshlrev_b32 {va}, 7, {va}")
        k(f"v_add_u32 {va}, {SY_PF}, {va}")
        return [ML(f"buffer_load_dwordx2 v[12:13], {va}, {srd(SSY)}, 0 offen sc1", 16)]

    k(f"s_cmp_lt_u32 s2, {NPREP}")
    k.branch("s_cbranch_scc1 main_prep", flush=False)
    saved0 = (list(k.vm), list(k.lg))
    snap0 = k.haz_snapshot()
    in_srd(k, SA, 8, S * D * 2)
    in_srd(k, SB, 16, S * D * 2)
    in_srd(k, SW, 24, D * 8)
    in_srd(k, SWD, 32, 4096)
    in_srd(k, SSY, 40, D * 2)
    k(f"s_sub_u32 s56, s2, {NPREP}")
    k("s_lshr_b32 s57, s56, 4")
    k("s_and_b32 s58, s56, 15")
    k("s_lshl_b32 s59, s56, 2")
    k("s_add_u32 s60, s59, s3")
    k(f"s_mul_i32 s61, s3, {WREG}")
    k(f"s_add_u32 s61, s61, {CB}")
    k("v_lshrrev_b32 v4, 3, v1")
    k("v_and_b32 v5, 7, v1")
    k("s_lshl_b32 s10, s58, 7")
    k("s_lshl_b32 s11, s3, 5")
    k("s_add_u32 s10, s10, s11")
    k("v_lshlrev_b32 v6, 2, v4")
    k("v_add_u32 v6, s10, v6")
    k("v_mul_u32_u24 v7, 1280, v6")
    k("v_lshl_add_u32 v7, v5, 4, v7")
    k("s_lshl_b32 s12, s57, 7")
    k("v_add_u32 v7, s12, v7")
    stamp("first")
    KR, VR, WR = 16, 44, 60
    for j in (3, 4, 5, 6, 2, 1, 0):
        off = (j - 3) * 1280
        if off < 0:
            k(f"v_add_u32 v8, {off & 0xffffffff:#x}, v7")
            k(f"buffer_load_dwordx4 v[{KR+4*j}:{KR+4*j+3}], v8, {srd(SA)}, 0 offen")
        else:
            k(f"buffer_load_dwordx4 v[{KR+4*j}:{KR+4*j+3}], v7, {srd(SA)}, 0 offen offset:{off}")
    for i in range(4):
        k(f"buffer_load_dwordx4 v[{VR+4*i}:{VR+4*i+3}], v7, {srd(SB)}, 0 offen offset:{i*1280}{NT}")
    k("v_lshlrev_b32 v9, 6, v5")
    k("s_lshl_b32 s12, s57, 9")
    for i in range(4):
        k(f"buffer_load_dwordx4 v[{WR+4*i}:{WR+4*i+3}], v9, {srd(SW)}, s12 offen offset:{16*i}")
    k("s_lshl_b32 s12, s60, 12")
    k(f"s_add_u32 s{SWD}, s{SWD}, s12")
    k(f"s_addc_u32 s{SWD+1}, s{SWD+1}, 0")
    HB = 160

    def h_loads_():
        for p in range(4):
            k(f"buffer_load_dwordx4 v[{HB+8*p+4}:{HB+8*p+7}], {VL16}, {srd(SWD)}, 0 offen offset:{p*1024}")
            k(f"v_add_u32 v9, {(p*1024-8) & 0xffffffff:#x}, {VL16}")
            k(f"buffer_load_dwordx2 v[{HB+8*p+2}:{HB+8*p+3}], v9, {srd(SWD)}, 0 offen")

    if HPOS == 1:
        h_loads_()
    stamp("issued")
    k("s_lshl_b32 s10, s3, 6")
    k("s_sub_u32 s10, 248, s10")
    k("v_lshlrev_b32 v8, 3, v4")
    k("v_sub_u32 v8, s10, v8")
    k("v_lshlrev_b32 v9, 4, v5")
    k("v_xor_b32 v8, v8, v9")
    k("v_lshl_add_u32 v8, v5, 11, v8")
    WF = 80
    for c in range(8):
        unpack(k, f"v{WF+4*c}", f"v{WF+4*c+1}", f"v{WR+2*c}")
        unpack(k, f"v{WF+4*c+2}", f"v{WF+4*c+3}", f"v{WR+2*c+1}")
    k.need([f"v{KR}"])
    stamp("Tld")
    if HPOS == 3:
        h_loads_()
    zl0 = [ML(f"buffer_load_dwordx2 v[12:13], v1, {srd(SDBG)}, 0 offen sc1", 1)]
    emit(zl0[0])
    k.srd(SA, 24, WSB)
    KF, VF, OUT = 112, 128, 136
    for cp in range(4):
        for j in range(7):
            unpack(k, f"v{KF+2*j}", f"v{KF+2*j+1}", f"v{KR+4*j+cp}")
        for i in range(4):
            unpack(k, f"v{VF+2*i}", f"v{VF+2*i+1}", f"v{VR+4*i+cp}")
        for h in range(2):
            c = 2 * cp + h
            O = OUT + 4 * h
            for i in range(4):
                k(f"v_mul_f32 v{O+i}, v{KF+2*(i+0)+h}, v{WF+4*c+3}")
            for t in (2, 1, 0):
                for i in range(4):
                    k(f"v_fmac_f32 v{O+i}, v{KF+2*(i+3-t)+h}, v{WF+4*c+t}")
            for i in range(4):
                k(f"v_mul_f32 v{O+i}, v{O+i}, v{VF+2*i+h}")
            p = 144 + 2 * h
            k(f"v_cvt_pk_bf16_f32 v{p}, v{O+3}, v{O+2}")
            k(f"v_cvt_pk_bf16_f32 v{p+1}, v{O+1}, v{O+0}")
            k(f"ds_write_b64 v8, v[{p}:{p+1}] offset:{c*256}")
    k("s_lshl_b32 s10, s3, 12")
    k("v_lshlrev_b32 v8, 8, v3")
    k("v_add_u32 v8, s10, v8")
    k("s_lshl_b32 s11, s3, 1")
    for jj in range(2):
        k(f"s_add_u32 s12, s11, {jj}")
        k(f"v_xor_b32 v{14+jj}, s12, v2")
        k(f"v_lshl_add_u32 v{14+jj}, v{14+jj}, 4, v8")
    k("v_lshlrev_b32 v9, 12, v3")
    k("v_lshl_add_u32 v9, v2, 4, v9")
    k("s_lshl_b32 s10, s57, 6")
    k("s_lshl_b32 s11, s3, 4")
    k("s_add_u32 s10, s10, s11")
    k("s_lshl_b32 s10, s10, 12")
    k("s_lshl_b32 s11, s58, 8")
    k("s_sub_u32 s11, 3840, s11")
    k("s_add_u32 s10, s10, s11")
    k.wait(lg=0)
    k.barrier()
    stamp("kv")
    for j in range(4):
        k(f"ds_read_b128 v[{16+4*j}:{19+4*j}], v{14+(j>>1)} offset:{j*1024}")
    for j in range(4):
        k(f"buffer_store_dwordx4 v[{16+4*j}:{19+4*j}], v9, {srd(SA)}, s10 offen sc1", tag="kvst")
        k("s_add_u32 s10, s10, 16384")
    if HPOS == 2:
        h_loads_()
    k("s_lshl_b32 s12, s60, 1")
    k("v_mov_b32 v9, s12")
    k(f"buffer_load_ushort v11, v9, {srd(SSY)}, 0 offen")
    ffn_ids()
    k("v_mov_b32 v32, 0")
    k("v_mov_b32 v33, 0")
    k("v_lshlrev_b32 v8, 3, v1")
    k("v_add_u32 v8, s61, v8")
    k(f"ds_write_b64 v8, v[32:33] offset:{UOFF+4096}")
    k("v_bfe_u32 v8, v1, 2, 2")
    k(f"v_mul_u32_u24 v8, {CP}, v8")
    k("v_and_b32 v9, 3, v1")
    k("v_lshl_add_u32 v8, v9, 3, v8")
    k("v_add_u32 v8, s61, v8")
    k("ds_write_b64 v8, v[32:33]")
    k(f"v_add_u32 v8, s61, {VL16}")

    def copies(p):
        T = 48 + 12 * (p & 1)
        b = HB + 8 * p
        seq = [f"v{b+2+i}" for i in range(6)]
        off = 32 + p * 1024
        k(f"ds_write_b128 v8, v[{b+4}:{b+7}] offset:{off}")
        for j in range(4):
            k(f"v_alignbyte_b32 v{T+j}, {seq[2+j]}, {seq[1+j]}, 2")
        k(f"ds_write_b128 v8, v[{T}:{T+3}] offset:{off+CP}")
        for j in range(4):
            k(f"v_mov_b32 v{T+4+j}, {seq[1+j]}")
        k(f"ds_write_b128 v8, v[{T+4}:{T+7}] offset:{off+2*CP}")
        for j in range(4):
            k(f"v_alignbyte_b32 v{T+8+j}, {seq[1+j]}, {seq[j]}, 2")
        k(f"ds_write_b128 v8, v[{T+8}:{T+11}] offset:{off+3*CP}")

    poll(zl0, ["v12"], None, sleep=8, nl=1)
    k("v_readfirstlane_b32 s100, v12")
    k("v_readfirstlane_b32 s101, v13")
    k("s_lshl_b32 s10, s56, 2")
    k("s_add_u32 s10, s10, s3")
    k("s_lshl_b32 s10, s10, 7")
    k(f"s_add_u32 s10, s10, {WS_SYNC + SY_GF}")
    k("v_mov_b32 v14, s100"); k("v_mov_b32 v15, s101")
    k.wait_tag("kvst")
    ML(f"buffer_store_dwordx2 v[14:15], v1, {srd(SWS)}, s10 offen sc1", 1)()
    stamp("gf")
    for p in range(4):
        copies(p)
    k("v_sub_u32 v7, 3, v2")
    k("v_and_b32 v7, 3, v7")
    k("v_add3_u32 v8, v2, v7, 1")
    k("v_lshl_add_u32 v8, v3, 3, v8")
    k("v_lshlrev_b32 v8, 1, v8")
    k(f"v_mul_u32_u24 v7, {CP}, v7")
    k("v_add3_u32 v4, v7, v8, s61")
    k("v_lshlrev_b32 v7, 5, v2")
    k("v_lshlrev_b32 v8, 4, v3")
    k("v_sub_u32 v8, v8, v7")
    k(f"v_add_u32 v8, {UOFF+480}, v8")
    k("v_add_u32 v5, s61, v8")
    k("v_lshlrev_b32 v11, 16, v11")
    k("v_lshlrev_b32 v6, 7, v1")
    k("s_lshl_b32 s12, s57, 13")
    k(f"s_add_u32 s12, s12, {WS_SYNC + SY_GF}")
    gl = [f"buffer_load_dwordx2 v[12:13], v6, {srd(SWS)}, s12 offen sc1"]
    k(gl[0])
    poll(gl, ["v12"], None, sleep=1, eq=SN)
    stamp("gp")
    k(f"s_add_u32 m0, s61, {UOFF}")
    k("s_lshl_b32 s12, s60, 12")
    for p in (3, 2, 1, 0):
        k(f"buffer_load_dwordx4 {VL16}, {srd(SWS)}, s12 offen offset:{p*1024} sc1 lds", tag="u")
    AB = [16, 48]
    CACC = 80
    BR = 112

    def rdA(n):
        I = n if n < 8 else n - 8
        L = []
        for r in range(8):
            i = 8 * I + r
            b = AB[n & 1] + 4 * r
            L.append(f"ds_read_b64 v[{b}:{b+1}], v4 offset:{64*i}")
            L.append(f"ds_read_b64 v[{b+2}:{b+3}], v4 offset:{64*i+8}")
        return L

    def bslot(C):
        return C if C < 4 else 7 - C

    def rdB(C):
        return [f"ds_read_b128 v[{BR+32*bslot(C)+4*r}:{BR+32*bslot(C)+4*r+3}], v5 offset:{64*(56-(8*C-r))}" for r in range(8)]

    k("v_lshlrev_b32 v6, 3, v3")
    k("v_add_u32 v6, v6, v2")
    k("v_sub_u32 v6, 15, v6")
    k("v_lshrrev_b32 v7, 16, v11")
    k("v_and_b32 v8, 1, v6")
    k("v_cmp_eq_u32 vcc, 1, v8")
    k("v_cndmask_b32 v7, v7, v11, vcc")
    k("v_ashrrev_i32 v6, 1, v6")
    for d in range(4):
        k(f"v_cmp_eq_u32 vcc, {d}, v6")
        k("v_cndmask_b32 v8, 0, v7, vcc")
        k(f"v_accvgpr_write_b32 a{240+d}, v8")
    STG = [2112, CP + 2112]
    SBQ = [240, BR + 8]
    QB = [248, BR]
    k("s_lshl_b32 s10, s3, 11")
    k("v_lshlrev_b32 v6, 3, v1")
    k("v_add_u32 v6, s10, v6")
    k(f"v_mul_u32_u24 v7, {XRT}, v3")
    k("v_lshl_add_u32 v7, v2, 4, v7")
    k(f"s_mul_i32 s57, s3, {16*XRT}")
    k("s_lshr_b32 s10, s56, 1")
    k("s_lshl_b32 s10, s10, 8")
    k("s_add_u32 s57, s57, s10")
    k("s_and_b32 s10, s56, 1")
    k("s_lshl_b32 s10, s10, 3")
    k("s_add_u32 s57, s57, s10")
    k(f"s_mul_i32 s58, s3, {8*XBLK}")
    k("s_lshl_b32 s10, s56, 8")
    k("s_add_u32 s58, s58, s10")
    k("s_mul_i32 s59, s3, 160")
    k("s_add_u32 s59, s59, s56")
    k("s_lshl_b32 s59, s59, 7")
    k(f"s_add_u32 s59, s59, {SY_CF}")
    pcl = wpoll_setup("v0")
    k("s_lshl_b32 s10, s3, 11")
    k(f"s_add_u32 s62, s10, {SY_QF}")
    k("v_lshlrev_b32 v8, 7, v2")
    k("v_lshl_add_u32 v8, v3, 13, v8")
    qfl = [ML(f"buffer_load_dwordx2 v[12:13], v8, {srd(SSY)}, s62 offen sc1", 32)]

    def q_ld(hf):
        L = [f"s_mov_b32 s13, {WS_QST + hf*8192}"]
        for it in range(4):
            L += [f"buffer_load_dwordx2 v[{SBQ[hf]+2*it}:{SBQ[hf]+2*it+1}], v6, {srd(SWS)}, s13 offen offset:{it*512} sc1",
                  f"s_add_u32 s12, s57, {WS_QX + (64*hf + 4*it)*XRT}",
                  f"buffer_load_dwordx2 v[{QB[hf]+2*it}:{QB[hf]+2*it+1}], v7, {srd(SWS)}, s12 offen sc1"]
        return L

    def addr2():
        return ["v_lshlrev_b32 v11, 5, v2", "v_lshl_add_u32 v11, v3, 3, v11", "v_add_u32 v11, s61, v11",
                "v_bfe_u32 v8, v1, 2, 2", f"v_mul_u32_u24 v8, {WREG}, v8", "v_and_b32 v9, 3, v1",
                "v_lshl_add_u32 v8, v9, 3, v8", "v_lshl_add_u32 v8, v3, 5, v8", "s_lshl_b32 s10, s3, 9",
                f"s_add_u32 s10, s10, {CB}", "v_add_u32 v8, s10, v8",
                "v_and_b32 v0, 1, v3", "v_lshrrev_b32 v9, 1, v3", "v_lshl_add_u32 v9, v0, 1, v9",
                f"v_mul_u32_u24 v9, {XBLK}, v9", "v_lshl_add_u32 v9, v2, 4, v9"]

    def stage_blk(c):
        a_ = CACC + 4 * c
        return [f"v_cvt_pk_bf16_f32 v{a_}, v{a_}, v{a_+1}", f"v_cvt_pk_bf16_f32 v{a_+1}, v{a_+2}, v{a_+3}",
                f"ds_write_b64 v11, v[{a_}:{a_+1}] offset:{STG[c>>2] + (c&3)*512}"]

    def sync():
        k.wait(lg=0)
        k.barrier()

    def out_half(hf, YB, XO, T):
        L = [f"ds_read_b64_tr_b16 v[{YB+2*it}:{YB+2*it+1}], v8 offset:{STG[hf] + it*128}" for it in range(4)]
        for it in range(4):
            y0, q0, st = YB + 2 * it, QB[hf] + 2 * it, SBQ[hf] + 2 * it
            for d in range(2):
                L += [f"v_lshlrev_b32 v{T+2}, 16, v{q0+d}", f"v_and_b32 v{T+3}, 0xffff0000, v{q0+d}",
                      f"v_lshlrev_b32 v{T}, 16, v{y0+d}", f"v_and_b32 v{T+1}, 0xffff0000, v{y0+d}",
                      f"v_fma_f32 v{T+4}, v{T+2}, v{st+1}, -v{st}", f"v_fma_f32 v{T+5}, v{T+3}, v{st+1}, -v{st}",
                      f"v_fmac_f32 v{T+2}, v{T+4}, v{T}", f"v_fmac_f32 v{T+3}, v{T+5}, v{T+1}",
                      f"v_cvt_pk_bf16_f32 v{XO+2*it+d}, v{T+2}, v{T+3}"]
            if it & 1:
                for o, base in ((YB + 2 * (it - 1), WS_Y), (XO + 2 * (it - 1), WS_X1)):
                    L += [f"v_permlane16_swap_b32 v{o}, v{o+2}", f"v_permlane16_swap_b32 v{o+1}, v{o+3}",
                          f"s_add_u32 s12, s58, {base + (32*hf + (it-1)*2)*XBLK}",
                          (f"buffer_store_dwordx4 v[{o}:{o+3}], v9, {srd(SWS)}, s12 offen sc1", f"cst{hf}")]
        return L

    wl = []
    for p in range(6):
        wl += wgu_dma(p)
    for i in range(NE1):
        wl += wd_load(i)
    k.wait(lg=0)
    a0, b0 = rdA(0), rdB(0)
    for x in a0:
        k(x)
    k.wait_tag("u")
    stamp("ready")
    for x in b0:
        k(x)
    started = set()
    early = []
    side = []
    tot = 0
    for n in range(12):
        I = n if n < 8 else n - 8
        Cs = [C for C in (range(4) if n < 8 else range(4, 8)) if C + I <= 7]
        pend = rdA(n + 1) if n < 11 else []
        bpend = {5: rdB(4), 6: rdB(5), 7: rdB(6), 8: rdB(7)}.get(n) or []
        nm = 8 * len(Cs)
        cnt = 0
        if n == PPN - 1:
            emit(pcl[0])
        if n == PPN:
            poll(pcl, ["v12"], None, sleep=1, nl=16, eq=SN)
            stamp("pp")
        if n == QPN - 2:
            early = list(qfl)
        if n == 6:
            side += addr2()[:3]
        if n == QPN:
            poll(qfl, ["v12"], None, sleep=1, nl=32, eq=SN)
            early = q_ld(0)
            side += addr2()[3:]
        if n == 7:
            for c in range(4):
                side += stage_blk(c)
            side += [sync] + out_half(0, CACC + 2, CACC + 10, 12) if False else [sync]
        if n == 9:
            early = early + q_ld(1)
            side += out_half(0, CACC, CACC + 8, BR + 16) + stage_blk(4)
        if n == 10:
            side += stage_blk(5)
        if n == 11:
            side += stage_blk(6)
        for C in Cs:
            c = C + I
            nb = rdB(C + 1) if (n == 0 and C < 3) else []
            for r in range(8):
                if nb:
                    k(nb.pop(0))
                a = AB[n & 1] + 4 * r
                b = BR + 32 * bslot(C) + 4 * r
                acc = f"v[{CACC+4*c}:{CACC+4*c+3}]"
                src = acc if c in started else "0"
                started.add(c)
                k(f"v_mfma_f32_16x16x32_bf16 {acc}, v[{a}:{a+3}], v[{b}:{b+3}], {src}")
                if I == 0 and r == 0:
                    k(f"v_mfma_f32_16x16x32_bf16 {acc}, a[240:243], v[{b}:{b+3}], {acc}")
                cnt += 1
                tot += 1
                while pend and (16 - len(pend)) * max(nm - 4, 4) < cnt * 16:
                    k(pend.pop(0))
                if bpend and cnt % 2 == 0:
                    k(bpend.pop(0))
                if early:
                    if tot % 2 == 0:
                        emit_one_vmem(early)
                elif n >= PPN and tot % EVERY == 0 and tot <= LASTW:
                    emit_one_vmem(wl)
                for _ in range(2):
                    if side and not (early and isinstance(side[0], str) and side[0].startswith("s_add_u32 s12")):
                        x = side.pop(0)
                        emit(x)
                        if isinstance(x, str) and x.startswith("s_add_u32 s12"):
                            emit(side.pop(0))
        for x in pend + bpend:
            k(x)
    stamp("mfma")
    for x in early + stage_blk(7) + side:
        emit(x)
    sync()
    for x in out_half(1, 16, 24, 32):
        emit(x)
    stamp("cst")
    k.wait_tag("cst0")
    ML(f"buffer_store_dwordx2 v[14:15], v1, {srd(SSY)}, s59 offen sc1", 1)()
    k(f"s_add_u32 s59, s59, {4*160*128}")
    for _ in range(NB):
        emit_one_vmem(wl)
    k.wait_tag("cst1")
    ML(f"buffer_store_dwordx2 v[14:15], v1, {srd(SSY)}, s59 offen sc1", 1)()
    stamp("cf")
    print("weight loads after cf:", sum(1 for x in wl if isvm(x)))
    for x in wl:
        emit(x)
    k.wait(lg=0)
    k.flush_hazards()
    k.branch("s_branch main_join", flush=False)

    k.label("main_prep", flush=False)
    k.vm, k.lg = list(saved0[0]), list(saved0[1])
    k.haz_restore(snap0)
    k("s_or_b32 s10, s2, s3")
    k("s_cmp_lg_u32 s10, 0")
    k.branch("s_cbranch_scc1 main_nonce_done", flush=False)
    snap1 = k.haz_snapshot()
    k("s_memrealtime s[56:57]")
    k("s_or_b32 s56, s56, 1")
    k("v_mov_b32 v12, s56")
    k("v_mov_b32 v13, s57")
    ML(f"buffer_store_dwordx2 v[12:13], v1, {srd(SDBG)}, 0 offen sc1", 1)()
    k.flush_hazards()
    k.label("main_nonce_done", flush=False)
    k.haz_restore(snap1)
    k.vm, k.lg = list(saved0[0]), list(saved0[1])
    k("s_and_b32 s10, s2, 1")
    k("s_lshl_b32 s10, s10, 3")
    k("s_add_u32 s10, s10, 56")
    k("s_cmp_lt_u32 s2, 64")
    k("s_cselect_b32 s10, s10, 72")
    k(f"s_load_dwordx2 s[{SA}:{SA+1}], s[0:1], s10")
    k(f"s_mov_b32 s{SA+2}, {D*F*2}")
    k(f"s_mov_b32 s{SA+3}, 0x00020000")
    k(f"v_mov_b32 v14, {OOB:#x}")
    k("s_mov_b32 s58, 0x05040100")
    k("s_mov_b32 s59, 0x07060302")
    k("v_mov_b32 v12, 0x3f803f80")
    ffn_ids()
    k("v_mov_b32 v244, 0")
    zl = [ML(f"buffer_load_dwordx2 v[246:247], v1, {srd(SDBG)}, 0 offen sc1", 1)]

    def q_job():
        if QPOS == 1:
            q_loads()
        if QTOUCH:
            k.srd(SB, 26, S * D * 2)
            k(f"s_mul_i32 s12, s2, {XRT}")
            k("v_lshlrev_b32 v204, 7, v0")
            k("v_cmp_gt_u32 vcc, 160, v0")
            k("v_cndmask_b32 v204, v14, v204, vcc")
            k(f"buffer_load_dword v250, v204, {srd(SB)}, s12 offen")
            k(f"s_add_u32 s12, s12, {96*XRT}")
            k(f"buffer_load_dword v251, v204, {srd(SB)}, s12 offen")
        emit(zl[0])
        for i in range(4):
            k(f"v_mov_b32 v{240+i}, 0")
        k.srd(SB, 24, SY_HF, WS_SYNC)
        k("s_lshl_b32 s12, s2, 13")
        k("v_lshlrev_b32 v204, 4, v0")
        for i in range(2):
            k(f"buffer_store_dwordx4 v[240:243], v204, {srd(SB)}, s12 offen sc1")
            k("s_add_u32 s12, s12, 4096")

    QR = 80

    def q_loads():
        k.srd(SB, 26, S * D * 2)
        k("s_mul_i32 s62, s3, 96")
        k("s_add_u32 s62, s62, s2")
        k("s_cmp_lt_u32 s62, 128")
        k("s_cselect_b32 s63, 0, 0x40000000")
        k(f"s_mul_i32 s56, s62, {XRT}")
        k("s_add_u32 s56, s56, s63")
        k("v_mul_u32_u24 v11, 1280, v2")
        k("v_lshl_add_u32 v11, v3, 4, v11")
        for i in range(20):
            k(f"buffer_load_dwordx4 v[{QR+4*i}:{QR+4*i+3}], v11, {srd(SB)}, s56 offen offset:{64*i}")

    def q_flag():
        poll(zl, ["v246"], None, sleep=1, nl=1)
        k("v_readfirstlane_b32 s100, v246")
        k("v_readfirstlane_b32 s101, v247")

    def item_idx(magic, n):
        for ps in range(2):
            o, ch = f"v{4+2*ps}", f"v{5+2*ps}"
            k(f"v_add_u32 v8, {256*ps}, v0")
            k(f"v_mul_u32_u24 {o}, {magic}, v8")
            k(f"v_lshrrev_b32 {o}, 16, {o}")
            k(f"v_mul_u32_u24 {ch}, {n}, {o}")
            k(f"v_sub_u32 {ch}, v8, {ch}")

    def item_loads(pitch):
        k(f"v_mul_u32_u24 v8, {8*pitch}, v4")
        k("v_lshl_add_u32 v8, v5, 4, v8")
        k(f"v_mul_u32_u24 v9, {8*pitch}, v6")
        k("v_lshl_add_u32 v9, v7, 4, v9")
        k("v_cmp_gt_u32 vcc, 224, v0")
        k("v_cndmask_b32 v9, v14, v9, vcc")
        stamp("issued")
        for ps in range(2):
            k("s_mov_b32 s11, s10")
            for i in range(8):
                k(f"buffer_load_dwordx4 v[{16+32*ps+4*i}:{19+32*ps+4*i}], v{8+ps}, {srd(SA)}, s11 offen{NT}")
                if i < 7:
                    k(f"s_add_u32 s11, s11, {pitch}")
        stamp("Tld")
        q_job()

    def stage(magic, sh, n, blk, opart, pairb, npair, second, setup, copy):
        for ps in range(2):
            o, ch = f"v{4+2*ps}", f"v{5+2*ps}"
            k(f"v_mul_u32_u24 v161, {magic}, {ch}")
            k(f"v_lshrrev_b32 v161, {sh}, v161")
            k(f"v_mul_u32_u24 v162, {n}, v161")
            k(f"v_sub_u32 {ch}, {ch}, v162")
            opart(o)
            k(f"v_mul_u32_u24 v161, {blk}, v161")
            k("v_add_u32 v160, v160, v161")
            k(f"v_lshrrev_b32 v161, 2, {ch}")
            k(f"v_mul_u32_u24 v161, {pairb}, v161")
            k("v_add_u32 v160, v160, v161")
            k(f"v_and_b32 v161, 3, {ch}")
            k("v_lshlrev_b32 v162, 6, v161")
            k("v_lshlrev_b32 v163, 7, v161")
            k(f"v_cmp_gt_u32 vcc, {npair}, {ch}")
            k("v_cndmask_b32 v162, v163, v162, vcc")
            k(f"v_add_u32 {o}, v160, v162")
            k("v_mov_b32 v162, 64")
            k(f"v_mov_b32 v163, {second}")
            k("v_cndmask_b32 v162, v162, v163, vcc")
            k(f"v_add_u32 {ch}, {o}, v162")
        k("v_cmp_gt_u32 vcc, 224, v0")
        k("v_mov_b32 v160, 61440")
        k("v_cndmask_b32 v6, v160, v6, vcc")
        k("v_cndmask_b32 v7, v160, v7, vcc")
        setup()
        for ps in range(2):
            src = 16 + 32 * ps
            for e in range(8):
                o = 160 + 4 * e
                for p in range(4):
                    k(f"v_perm_b32 v{o+p}, v{src+4*(2*p+1)+e//2}, v{src+4*(2*p)+e//2}, s{58+(e&1)}")
                k(f"ds_write_b128 v{4+2*ps+(e>>2)}, v[{o}:{o+3}] offset:{(e&3)*16}")
            k.wait(lg=0)
            k.barrier()
            if ps:
                stamp("mfma")
            copy(ps)
        q_flag()


    k("s_cmp_ge_u32 s2, 64")
    k.branch("s_cbranch_scc1 main_prep_wd", flush=False)
    sv = (list(k.vm), list(k.lg))
    snap2 = k.haz_snapshot()
    item_idx(2731, 24)
    k("s_bfe_u32 s60, s2, 0x30001")
    k("s_lshr_b32 s61, s2, 4")
    k(f"s_mul_i32 s10, s61, {160*3072}")
    k("s_mul_i32 s11, s60, 384")
    k("s_add_u32 s10, s10, s11")
    item_loads(3072)

    def op_wgu(o):
        k(f"v_lshrrev_b32 v160, 2, {o}")
        k("v_mul_u32_u24 v160, 3072, v160")
        k(f"v_and_b32 v162, 3, {o}")
        k("v_lshl_add_u32 v160, v162, 8, v160")

    def su_wgu():
        k("s_mul_i32 s13, s3, 15360")
        k(f"v_add_u32 v8, s13, {VL16}")
        k("s_lshl_b32 s62, s60, 2")
        k("s_add_u32 s62, s62, s3")
        k(f"s_mul_i32 s10, s62, {WGU_M}")
        k("s_mul_i32 s11, s61, 30720")
        k("s_add_u32 s10, s10, s11")
        k("s_and_b32 s13, s2, 1")
        k("s_mul_i32 s11, s13, 3072")
        k("s_add_u32 s10, s10, s11")
        k(f"s_add_u32 s10, s10, {WS_WGU}")
        for t in range(3):
            k(f"v_mov_b32 v{196+t}, 0")

    def cp_wgu(ps):
        js = range(6) if ps == 0 else range(6, 15)
        for j in js:
            k(f"ds_read_b128 v[{80+4*j}:{83+4*j}], v8 offset:{j*1024}")
        for j in js:
            k(f"buffer_store_dwordx4 v[{80+4*j}:{83+4*j}], {VL16}, {srd(SWS)}, s10 offen offset:{(j%3)*1024} sc1")
            if j % 3 == 2:
                k("s_add_u32 s10, s10, 6144")
            for p in range(4):
                k(f"v_dot2c_f32_bf16 v{196+j%3}, v{80+4*j+p}, v12")
    stage(43, 8, 6, 15360, op_wgu, 2048, 4, 1024, su_wgu, cp_wgu)
    for t in range(3):
        k(f"v_mov_b32 v{5+t}, v{196+t}")
    for t in range(3):
        xsum16(k, f"v{5+t}", "v8")
        xsum32(k, f"v{5+t}", "v8")
    k("v_cmp_eq_u32 vcc, 1, v3")
    k("v_cndmask_b32 v5, v5, v6, vcc")
    k("v_cmp_eq_u32 vcc, 2, v3")
    k("v_cndmask_b32 v5, v5, v7, vcc")
    k("v_lshlrev_b32 v6, 2, v1")
    k("v_cmp_gt_u32 vcc, 48, v1")
    k("v_cndmask_b32 v6, v14, v6, vcc")
    k("s_lshl_b32 s10, s62, 11")
    k("s_lshl_b32 s11, s61, 9")
    k("s_add_u32 s10, s10, s11")
    k("s_mul_i32 s11, s13, 192")
    k("s_add_u32 s10, s10, s11")
    k(f"s_add_u32 s10, s10, {WS_CS}")
    k(f"buffer_store_dword v5, v6, {srd(SWS)}, s10 offen sc1")

    if QPOS == 2:
        q_loads()
        k.wait(vm=20)
    else:
        k.wait(vm=0)
    k.flush_hazards()
    k.branch("s_branch main_prep_pub", flush=False)
    k.label("main_prep_wd", flush=False)
    k.vm, k.lg = sv
    k.haz_restore(snap2)
    item_idx(820, 80)
    k("s_sub_u32 s60, s2, 64")
    k(f"s_mul_i32 s10, s60, {48*1280}")
    item_loads(1280)

    def op_wd(o):
        k(f"v_lshlrev_b32 v160, 8, {o}")

    def su_wd():
        k("s_mul_i32 s13, s3, 15360")
        k(f"v_add_u32 v8, s13, {VL16}")
        k("s_mul_i32 s11, s60, 6")
        k("v_cmp_gt_u32 vcc, 3, v3")
        for ps, v in enumerate(("v196", "v197")):
            k(f"v_add3_u32 {v}, v3, s11, {3*ps}")
            k(f"v_lshrrev_b32 v13, 2, {v}")
            k("v_mul_u32_u24 v13, 5120, v13")
            k(f"v_and_b32 {v}, 3, {v}")
            k(f"v_lshl_add_u32 {v}, {v}, 8, v13")
            k(f"v_lshl_add_u32 {v}, v2, 4, {v}")
            k(f"v_cndmask_b32 {v}, v14, {v}, vcc")
        k(f"s_mul_i32 s10, s3, {2*48*5120}")
        k(f"s_add_u32 s10, s10, {WS_WD}")

    def cp_wd(ps):
        R = 80 + 40 * ps
        for j in range(10):
            k(f"ds_read_b128 v[{R+4*j}:{R+4*j+3}], v8 offset:{(j//5)*7680 + (j%5)*1536 + ps*768}")
        for j in range(10):
            k(f"s_add_u32 s11, s10, {(j//5)*48*5120 + (j%5)*1024}")
            k(f"buffer_store_dwordx4 v[{R+4*j}:{R+4*j+3}], v{196+ps}, {srd(SWS)}, s11 offen sc1")
    stage(205, 11, 10, 7680, op_wd, 3072, 8, 1536, su_wd, cp_wd)

    if QPOS == 2:
        q_loads()
        k.wait(vm=20)
    else:
        k.wait(vm=0)
    k.flush_hazards()
    k.label("main_prep_pub", flush=False)
    k.barrier()
    k("s_lshl_b32 s10, s2, 7")
    k(f"s_add_u32 s10, s10, {SY_PF}")
    k("s_cmp_eq_u32 s3, 0")
    k("s_cselect_b32 s10, s10, 0x40000000")
    k("v_mov_b32 v204, 0")
    ML(f"buffer_store_dwordx2 v[246:247], v1, {srd(SSY)}, s10 offen sc1", 1)()
    stamp("cf")
    if QPOS == 4:
        q_loads()
    k(f"s_add_u32 s12, s56, {WS_QX}")
    k("v_mov_b32 v200, 0")
    k("v_mov_b32 v201, 0")
    for i in range(20):
        if i % 4 == 0 and i:
            k("s_add_u32 s12, s12, 4096")
        k(f"buffer_store_dwordx4 v[{QR+4*i}:{QR+4*i+3}], {VL16}, {srd(SWS)}, s12 offen offset:{(i%4)*1024} sc1")
        for d in range(4):
            k(f"v_dot2c_f32_bf16 v200, v{QR+4*i+d}, v12")
            k(f"v_dot2c_f32_bf16 v201, v{QR+4*i+d}, v{QR+4*i+d}")
    for v in ("v200", "v201"):
        xsum16(k, v, "v205")
        xsum32(k, v, "v205")
    k(f"v_mul_f32 v200, {f2u(1.0/D)}, v200")
    k(f"v_mul_f32 v201, {f2u(1.0/D)}, v201")
    k("v_fma_f32 v201, -v200, v200, v201")
    k("v_max_f32 v201, 0, v201")
    k(f"v_add_f32 v201, {f2u(EPS)}, v201")
    k("v_rsq_f32 v203, v201")
    k("v_mul_f32 v202, v200, v203")
    k("s_lshl_b32 s57, s62, 7")
    k("s_add_u32 s57, s57, s63")
    k(f"s_add_u32 s12, s57, {WS_QST}")
    k("v_lshlrev_b32 v205, 3, v1")
    ML(f"buffer_store_dwordx2 v[202:203], v205, {srd(SWS)}, s12 offen sc1", 16)()
    k(f"s_add_u32 s12, s57, {SY_QF}")
    k.wait(vm=0)
    ML(f"buffer_store_dwordx2 v[246:247], v1, {srd(SSY)}, s12 offen sc1", 1)()
    stamp("cst")
    pl = wpoll_setup("v8")
    emit(pl[0])
    poll(pl, ["v12"], None, sleep=1, nl=16, eq=SN)
    stamp("pp")
    for p in range(10):
        for x in wgu_dma(p):
            emit(x)
    for i in range(NEP):
        for x in wd_load(i):
            emit(x)
    k.wait(lg=0)
    k.flush_hazards()

    k.label("main_join", flush=False)
    k.vm = [(set(), "unk")] * 63
    k("s_load_dwordx2 s[26:27], s[0:1], 80")
    k(f"v_add_u32 {VL16B}, 61440, {VL16}")
    k.srd(SX, 24, XSPAN + XFB, WS_X1)
    k.srd(SH, 24, HSPAN + HFB, WS_H)
    k.srd(SY_, 24, XFB, WS_Y)
    k(f"s_mul_i32 s56, s15, {HRT}")
    k("s_mul_i32 s10, s5, 1536")
    k("s_add_u32 s56, s56, s10")
    k("s_mul_i32 s10, s3, 12288")
    k(f"s_mul_i32 s57, s16, {HRT}")
    k("s_add_u32 s57, s57, s10")
    k("s_xor_b32 s11, s16, 1")
    k(f"s_mul_i32 s58, s11, {HRT}")
    k("s_add_u32 s58, s58, s10")
    k(f"s_mul_i32 s59, s16, {XRT}")
    k("s_mul_i32 s10, s8, 2560")
    k("s_add_u32 s59, s59, s10")
    k("v_and_b32 v204, 1, v3")
    k("v_lshrrev_b32 v205, 1, v3")
    k(f"v_mul_u32_u24 {VH2}, {HRT}, v204")
    k("v_lshlrev_b32 v206, 4, v2")
    k("v_lshl_add_u32 v206, v205, 8, v206")
    k(f"v_add_u32 {VH2}, {VH2}, v206")
    k(f"v_lshl_add_u32 {VT4}, v204, 3, v206")
    k("s_lshl_b32 s10, s14, 31")
    k(f"v_or_b32 {VT4S}, s10, {VT4}")
    k("s_lshl_b32 s10, s16, 4")
    k(f"v_add_u32 {VROW}, s10, v2")
    k(f"v_lshlrev_b32 {VGR}, 3, v2")
    k("v_cmp_eq_u32 vcc, 0, v3")
    k(f"v_mov_b32 v204, {OOB:#x}")
    k(f"v_cndmask_b32 {VGW}, v204, {VGR}, vcc")
    k(f"v_lshl_add_u32 {VQ128}, v3, 7, {VGR}")
    k(f"v_lshl_add_u32 {VGR}, v3, 9, {VGR}")
    k("v_cmp_eq_u32 vcc, 0, v1")
    k(f"v_cndmask_b32 {VFLAG}, v204, v1, vcc")
    k("s_lshl_b32 s10, s4, 3")
    k("s_add_u32 s10, s10, s7")
    k("s_lshl_b32 s10, s10, 5")
    k("s_lshl_b32 s11, s3, 3")
    k("s_add_u32 s10, s10, s11")
    k(f"v_and_b32 {VFPOLL}, 7, v1")
    k(f"v_add_u32 {VFPOLL}, s10, {VFPOLL}")
    k(f"v_lshlrev_b32 {VFPOLL}, 7, {VFPOLL}")
    k(f"v_lshlrev_b32 {VXP}, 4, v2")
    k(f"v_lshl_add_u32 {VXP}, v3, 9, {VXP}")
    k("s_lshr_b32 s10, s16, 1")
    k(f"s_mul_i32 s62, s10, {XBLK}")
    k("s_mul_i32 s10, s8, 5120")
    k("s_add_u32 s62, s62, s10")
    k("s_lshl_b32 s10, s9, 3")
    k("s_add_u32 s62, s62, s10")
    k("s_lshr_b32 s10, s5, 2")
    k("s_lshl_b32 s11, s4, 3")
    k("s_add_u32 s63, s10, s11")
    k(f"s_mul_i32 s60, s63, {XBLK}")
    k("s_mul_i32 s10, s3, 10240")
    k("s_add_u32 s60, s60, s10")
    k("s_and_b32 s61, s5, 3")
    k("s_lshl_b32 s10, s61, 6")
    k("s_add_u32 s60, s60, s10")
    k("v_and_b32 v188, 3, v1")
    k("v_lshrrev_b32 v189, 2, v1")
    k("v_lshlrev_b32 v189, 8, v189")
    k("v_lshl_add_u32 v189, v188, 4, v189")
    k("v_cmp_gt_u32 vcc, 32, v1")
    k("v_cndmask_b32 v190, v204, v189, vcc")
    k("s_lshl_b32 s10, s5, 11")
    k(f"s_add_u32 s10, s10, {WS_CS}")
    k("v_lshlrev_b32 v197, 3, v1")
    for i in range(4):
        k(f"buffer_load_dwordx2 v[{208+2*i}:{209+2*i}], v197, {srd(SWS)}, s10 offen offset:{i*512} sc1")
    k.srd(SO, 26, XFB)
    k("s_mul_i32 s10, s4, 160")
    k("s_mul_i32 s11, s3, 40")
    k("s_add_u32 s10, s10, s11")
    k("s_lshl_b32 s10, s10, 7")
    k(f"s_add_u32 s10, s10, {SY_CF}")
    k("s_mul_i32 s11, s3, 3072")
    k(f"s_add_u32 s11, s11, {SY_PF - 40*128}")
    k("v_mov_b32 v205, s10")
    k("v_mov_b32 v206, s11")
    k("v_cmp_gt_u32 vcc, 40, v1")
    k("v_cndmask_b32 v205, v206, v205, vcc")
    k("v_lshl_add_u32 v205, v1, 7, v205")
    k(f"v_add_u32 v197, {LC}, v197")
    k("v_pk_add_f32 v[208:209], v[208:209], v[210:211]")
    k("v_pk_add_f32 v[212:213], v[212:213], v[214:215]")
    k("v_pk_add_f32 v[208:209], v[208:209], v[212:213]")
    k(f"s_cmp_ge_u32 s2, {NPREP}")
    k.branch("s_cbranch_scc1 main_nogate", flush=False)
    svg = (list(k.vm), list(k.lg))
    snap3 = k.haz_snapshot()
    c1 = [ML(f"buffer_load_dwordx2 v[206:207], v205, {srd(SSY)}, 0 offen sc1", 1)]
    emit(c1[0])
    poll(c1, ["v206"], None, sleep=6, nl=1, eq=SN)
    k.flush_hazards()
    k.label("main_nogate", flush=False)
    k.vm, k.lg = svg
    k.haz_restore(snap3)
    cl = [f"buffer_load_dwordx2 v[206:207], v205, {srd(SSY)}, 0 offen sc1"]
    emit(cl[0])
    poll(cl, ["v206"], None, sleep=1, eq=SN)
    k.vm = []
    k.barrier()
    stamp("join")
    k("ds_write_b64 v197, v[208:209]")
    for kk in range(4):
        for x in x_loads(0, 0, kk, 2 * kk):
            emit(x)
    SR = 192
    for i in range(3):
        k(f"s_add_u32 s12, s60, {i*4096}")
        k(f"buffer_load_dwordx4 v[{SR+4*i}:{SR+4*i+3}], v{189 if i < 2 else 190}, {srd(SX)}, s12 offen sc1")
    for kk in range(4, DIST):
        for x in x_loads(0, 0, kk, 2 * kk):
            emit(x)

    k("s_lshl_b32 s10, s3, 13")
    k(f"s_add_u32 s10, s10, {LR}")
    k(f"v_add_u32 {VRW}, s10, {VL16}")
    k("s_cmp_eq_u32 s14, 0")
    k("s_cselect_b32 s26, 1.0, 0")
    k("s_mov_b32 s27, s26")
    k("s_lshl_b32 s60, s16, 4")
    k("s_lshl_b32 s13, s8, 1")
    k("s_add_u32 s60, s60, s13")
    k("s_add_u32 s60, s60, s14")
    k("s_lshl_b32 s60, s60, 7")

    def phase_s():
        for r in range(2):
            s_, q_ = TMP + 2 * r, TMP + 2 * r + 1
            first = True
            for i in range(3):
                for d in range(2):
                    unpack(k, "v204", "v205", f"v{SR+4*i+2*r+d}")
                    if first:
                        k(f"v_add_f32 v{s_}, v204, v205")
                        k(f"v_mul_f32 v{q_}, v204, v204")
                        first = False
                    else:
                        k(f"v_add_f32 v{s_}, v{s_}, v204")
                        k(f"v_add_f32 v{s_}, v{s_}, v205")
                        k(f"v_fmac_f32 v{q_}, v204, v204")
                    k(f"v_fmac_f32 v{q_}, v205, v205")
        for v in range(TMP, TMP + 4):
            k(f"v_add_f32_dpp v{v}, v{v}, v{v} row_ror:4 row_mask:0xf bank_mask:0xf")
        for v in range(TMP, TMP + 4):
            k(f"v_add_f32_dpp v{v}, v{v}, v{v} row_ror:8 row_mask:0xf bank_mask:0xf")
        for v in range(TMP, TMP + 4):
            xsum16(k, f"v{v}", "v204")
            xsum32(k, f"v{v}", "v204")
        k(f"v_or_b32 v{TMP+1}, 0x80000000, v{TMP+1}")
        k(f"v_or_b32 v{TMP+3}, 0x80000000, v{TMP+3}")
        k("s_lshl_b32 s12, s63, 3")
        k("s_add_u32 s12, s12, s3")
        k("s_lshl_b32 s12, s12, 7")
        k("s_lshl_b32 s13, s61, 5")
        k("s_add_u32 s12, s12, s13")
        k(f"s_add_u32 s12, s12, {SY_ST1}")
        k("v_lshlrev_b32 v204, 3, v1")
        set_exec(4)
        k(f"buffer_store_dwordx2 v[{TMP}:{TMP+1}], v204, {srd(SSY)}, s12 offen sc1")
        k(f"buffer_store_dwordx2 v[{TMP+2}:{TMP+3}], v204, {srd(SSY)}, s12 offen offset:512 sc1")
        k("s_mov_b64 exec, -1")

    sched = {}
    wi = NE1
    for kk in range(20):
        L = []
        if kk < 4:
            L += wgu_dma(6 + kk)
        if kk + DIST < 20:
            L += x_loads(0, 0, kk + DIST, 2 * (kk + DIST))
        else:
            kb = kk + DIST - 20
            L += x_loads(0, 1, kb, 40 + 2 * kb)
        if kk >= 20 - NWA and wi < 60:
            L += wd_load(wi)
            wi += 1
        if kk == 2:
            L = [phase_s] + L
        if kk == 14:
            L = st1_loads(0, TMP + 24) + L
        sched[kk] = L
    g1_main(0, sched, first=True, xp=True)
    stamp("g1a")
    stats1(0, STA)

    def take(n):
        nonlocal wi
        L = []
        for _ in range(n):
            if wi < 60:
                L += wd_load(wi)
                wi += 1
        return L
    g1_epilogue(0, 0, STA, take(NWE1))
    stamp("e1a")
    extra = {}
    for kk in range(12):
        extra[kk] = take((NWB * (kk + 1)) // 12 - (NWB * kk) // 12)
    extra[12] = st1_loads(1, TMP + 24) + res_loads(0)
    sched, rest = g1b_sched(0, extra)
    g1_main(40, sched, xp=True)
    stamp("g1b")
    for L in rest:
        for x in L:
            emit(x)
    stats1(1, STB)
    g1_epilogue(0, 1, STB, take(NWE2))
    print('Wd loads left for G2(A):', 60 - wi)
    stamp("e1b")

    NH0 = int(os.environ.get("NH0", "5"))

    def g2a(layer):
        sc = {kk: take(5) for kk in range(12)}
        assert wi == 60
        sc[HFK] = sc[HFK] + [lambda: h_flag(layer, 1)]
        sc[HPK] = sc[HPK] + h_poll_loads(layer, 1)
        g2_main(80, sc, X1R[0], X2[0])
        stamp(f"g2a{layer}")

        def mid():
            h_poll(layer, 1)
            stamp(f"ph{layer}")
            for kk in range(NH0):
                for x in h_loads(layer, 1, kk, 2 * kk):
                    emit(x)
        g2_reduce(X2[0], mid)

    def g2b_sched(layer, extra):
        sched = {}
        for kk in range(12):
            L = []
            if kk + NH0 < 12:
                L += h_loads(layer, 1, kk + NH0, 2 * (kk + NH0))
            sched[kk] = L + extra.get(kk, [])
        return sched

    g2a(0)
    part_stats(X2[0], 0, SY_ST2)
    stamp("r2a")

    def fin_a():
        finalize(0, X2[0], G2R)
        part_calc(X2[0], 244)
    g2_main(0, g2b_sched(0, {2: res_loads(1), FK - 3: st2_loads(0, G2R), FK: [fin_a]}), X1R[1], X2[1])
    stamp("g2b")
    g2_reduce(X2[1], lambda: part_pub(244, 0, SY_ST3, pre_wait="xst"))
    part_stats(X2[1], 1, SY_ST2)
    stamp("s3a")
    for x in st3_loads(0, TMP):
        emit(x)
    stats3(0, STA)
    stamp("p3a")
    for kk in range(DIST):
        for x in x_loads(1, 0, kk, 2 * kk):
            emit(x)
        if kk == 3:
            for x in st2_loads(1, G2R):
                emit(x)
    finalize(1, X2[1], G2R)
    part_calc(X2[1], 246)
    stamp("fin")
    sched = {}
    xb = [x_loads(1, 1, j, 40 + 2 * j) for j in range(DIST)]
    for kk in range(20):
        L = []
        if kk + DIST < 20:
            L += x_loads(1, 0, kk + DIST, 2 * (kk + DIST))
        if kk == PBK:
            L = L + [lambda: part_pub(246, 1, SY_ST3, pre_wait="xst")]
        if kk == S3K - 4:
            L = L + st3_loads(1, TMP)
        if kk == S3K:
            L = [lambda: stats3(1, STB)] + L
        if kk >= S3K:
            for _ in range(-(-DIST // (20 - S3K))):
                if xb and (DIST - len(xb)) + 8 < kk:
                    L += xb.pop(0)
        sched[kk] = L
    assert not xb
    g1_main(0, sched)
    stamp("g1a'")
    g1_epilogue(1, 0, STA)
    stamp("e1a'")
    sched, rest = g1b_sched(1, {})
    g1_main(40, sched)
    stamp("g1b'")
    for L in rest:
        for x in L:
            emit(x)
    g1_epilogue(1, 1, STB)
    stamp("e1b'")
    g2a(1)
    out_store(0, X2[0])
    stamp("r2a'")
    g2_main(0, g2b_sched(1, {}), X1R[1], X2[1])
    g2_reduce(X2[1])
    out_store(1, X2[1])
    if DIAG:
        in_srd(k, 96, 88, 256)
        k("s_cmp_eq_u32 s101, 0")
        k("s_cselect_b32 s10, 0x40000000, 0")
        k("s_lshl_b32 s11, s2, 8")
        k("s_or_b32 s11, s11, s101")
        k("s_lshl_b32 s12, s3, 16")
        k("s_or_b32 s11, s11, s12")
        k("v_mov_b32 v0, s11")
        k("s_and_b32 s12, s101, 0xe")
        k("s_lshl_b32 s12, s12, 1")
        k("v_mov_b32 v1, s12")
        ML("buffer_store_dword v0, v1, s[96:99], s10 offen", 1)()
    if os.environ.get("AMP"):
        k.stamp("end")
        k.wait(vm=0, lg=0)
        i = k.stamps.index(os.environ["AMP"])
        e = k.stamps.index("end")
        k(f"s_sub_u32 s10, s{64+2*i}, s64")
        k("s_cmp_lg_u32 s2, 150")
        k.branch("s_cbranch_scc1 main_end", flush=False)
        k.label("amp_loop", flush=False)
        k("s_memrealtime s[96:97]")
        k.wait(lg=0)
        k(f"s_sub_u32 s11, s96, s{64+2*e}")
        k("s_cmp_lt_u32 s11, s10")
        k.branch("s_cbranch_scc1 amp_loop", flush=False)
    elif os.environ.get("DBGST"):
        k.stamp("end")
        k.wait(vm=0, lg=0)
        in_srd(k, 96, 88, 256)
        k("s_lshl_b32 s10, s2, 2")
        k("s_add_u32 s10, s10, s3")
        k(f"s_cmp_eq_u32 s10, {int(os.environ['DBGST'])*4}")
        k("s_cselect_b32 s10, 0, 0x40000000")
        k("v_mov_b32 v0, 0")
        for i in range(1, len(k.stamps)):
            k(f"s_sub_u32 s11, s{64+2*i}, s64")
            k("v_mov_b32 v1, s11")
            ML(f"buffer_store_dword v1, v0, s[96:99], s10 offen offset:{4*i}", 1)()
        print(k.stamps)
    else:
        k.prof_end(2, 24, 3, names="main")
    k.label("main_end", flush=False)
    k("s_endpgm")
    k.raw("main_code_end:")
    return k


DOC = """; ---------------------------------------------------------------------------------------------
; ---------------------------------------------------------------------------------------------
"""

if __name__ == "__main__":
    if os.environ.get("PROF"):
        Kern.PROF = True
    main = gen_main()
    out = sys.argv[1] if len(sys.argv) > 1 else "v25.s"
    txt = build_file(HEADER, [main], [main]).replace(f"; @launch kernel={KNAME} ", "; @launch ")
    txt = txt.replace(".text\n", ".text\n" + DOC, 1)
    open(out, "w").write(txt)
    json.dump(PROFINFO, open(out + ".prof.json", "w"))
    print("instrs", main.nins, "vgpr", main.maxv + 1, "agpr", main.maxa + 1, "sgpr", main.maxs + 1, "lds", main.lds)
```

```python
import sys, os, json
sys.path.insert(0, "dev")
from asmdsl import *
from gen1 import S, D, F, EPS, f2u, unpack, reduce16, xsum16, xsum32, HEADER, XFB, HFB, WDB

KNAME = "interleave_layers__ssm_conv_h3__swiglu_ffn__prompt_kernel"
WS_KVT = 0x0000000
WS_QST = 0x0300000
WS_WGU = 0x0400000
WGU_M = 20 * 6144
WGUB = 32 * WGU_M
WS_CS = 0x0800000
WS_WD = 0x0900000
WS_Y = 0x0C00000
WS_X1 = 0x0F00000
WS_H = 0x1200000
WS_X3 = 0x1D00000
WS_H2 = 0x2000000
WS_SYNC = 0x2800000
SY_ST1 = 0
SY_ST2 = 0x10000
SY_ST3 = 0x50000
SY_HF = 0x90000
SY_CF_OLD = 0x110000
SY_PF = 0x124000
SY_QF = 0x128000
SY_GF = 0x12C000
SY_QF = 0x140000
SY_CF = 0x150000
SYNCB = 0x178000
SN = "s[100:101]"
WS_QX = 0x2C00000
XBLK = 40960
WSB = 0x3000000
XRT = 20480
HRT = 49152
OOB = 0x80000000
LOG2E = 1.4426950408889634
SPIN_MAX = 1 << 18
NPREP = 96
STAMPS = os.environ.get("STAMPS", "").split(",")
NP1 = int(os.environ.get("NP1", "4"))
NE1 = int(os.environ.get("NE1", "32"))
PPN = int(os.environ.get("PPN", "2"))
LASTW = int(os.environ.get("LASTW", "240"))
NB = int(os.environ.get("NB", "12"))
NE2 = int(os.environ.get("NE2", "0"))
MAP = int(os.environ.get("MAP", "2"))
PF = int(os.environ.get("PF", "0"))
FK = int(os.environ.get("FK", "7"))
HFK = int(os.environ.get("HFK", "4"))
S3K = int(os.environ.get("S3K", "15"))
NWA = int(os.environ.get("NWA", "10"))
NWE1 = int(os.environ.get("NWE1", "12"))
NWB = int(os.environ.get("NWB", "14"))
NWE2 = int(os.environ.get("NWE2", "12"))
HPK = int(os.environ.get("HPK", "9"))
PREW = int(os.environ.get("PREW", "1"))
DIAG = int(os.environ.get("DIAG", "0"))
QPN = int(os.environ.get("QPN", "8"))
QPOS = int(os.environ.get("QPOS", "2"))
NEP = int(os.environ.get("NEP", "40"))
NT = " nt" if os.environ.get("NT") else ""
HPOS = int(os.environ.get("HPOS", "2"))
HAK = int(os.environ.get("HAK", "3"))
PBK = int(os.environ.get("PBK", "3"))
QTOUCH = int(os.environ.get("QTOUCH", "0"))
EVERY = int(os.environ.get("EVERY", "5"))


def srd(n):
    return f"s[{n}:{n+3}]"


def mkstamp(k):
    def stamp(n):
        if n in STAMPS:
            if hasattr(k, "stamps") and n in k.stamps:
                if Kern.PROF:
                    i = k.stamps.index(n)
                    k(f"{Kern.CLK} s[{64+2*i}:{65+2*i}]")
            else:
                k.stamp(n)
    return stamp


def in_srd(k, slot, karg_off, nbytes):
    k(f"s_load_dwordx2 s[{slot}:{slot+1}], s[0:1], {karg_off}")
    k(f"s_mov_b32 s{slot+2}, {nbytes}")
    k(f"s_mov_b32 s{slot+3}, 0x00020000")


def gen_pre():
    k = Kern("pre_kernel", lds=8192, grid=384, block=128)
    stamp = mkstamp(k)
    SA, SB, SC_, SD_, SWS = 28, 32, 36, 40, 48
    k.prof_begin()
    k(f"s_cmp_ge_u32 s2, {k.grid}")
    k.branch("s_cbranch_scc1 pre_end", flush=False)
    k("s_load_dwordx2 s[24:25], s[0:1], 96")
    k("s_cmp_ge_u32 s2, 320")
    k.branch("s_cbranch_scc1 pre_q", flush=False)
    saved0 = (list(k.vm), list(k.lg))
    in_srd(k, SA, 8, S * D * 2)
    in_srd(k, SB, 16, S * D * 2)
    in_srd(k, SC_, 24, D * 8)
    in_srd(k, SD_, 32, D * 4096)
    k("v_lshrrev_b32 v1, 6, v0")
    k("v_readfirstlane_b32 s3, v1")
    k("v_and_b32 v1, 63, v0")
    k("s_lshr_b32 s57, s2, 5")
    k("s_and_b32 s58, s2, 31")
    k("v_lshrrev_b32 v4, 3, v1")
    k("v_and_b32 v5, 7, v1")
    k("s_lshl_b32 s10, s58, 6")
    k("s_lshl_b32 s11, s3, 5")
    k("s_add_u32 s10, s10, s11")
    k("v_lshlrev_b32 v6, 2, v4")
    k("v_add_u32 v6, s10, v6")
    k("v_mul_u32_u24 v7, 1280, v6")
    k("v_lshl_add_u32 v7, v5, 4, v7")
    k("s_lshl_b32 s12, s57, 7")
    k("v_add_u32 v7, s12, v7")
    KR, VR, WR = 16, 44, 60
    k("v_lshlrev_b32 v9, 6, v5")
    k("s_lshl_b32 s12, s57, 9")
    for j in (3, 4, 5, 6):
        k(f"buffer_load_dwordx4 v[{KR+4*j}:{KR+4*j+3}], v7, {srd(SA)}, 0 offen offset:{(j-3)*1280}")
    for i in range(4):
        k(f"buffer_load_dwordx4 v[{VR+4*i}:{VR+4*i+3}], v7, {srd(SB)}, 0 offen offset:{i*1280}{NT}")
    for i in range(4):
        k(f"buffer_load_dwordx4 v[{WR+4*i}:{WR+4*i+3}], v9, {srd(SC_)}, s12 offen offset:{16*i}")
    for j in (2, 1, 0):
        k(f"v_add_u32 v8, {((j-3)*1280) & 0xffffffff:#x}, v7")
        k(f"buffer_load_dwordx4 v[{KR+4*j}:{KR+4*j+3}], v8, {srd(SA)}, 0 offen")
    k.srd(SWS, 24, WSB)
    k("s_lshl_b32 s10, s3, 6")
    k("s_sub_u32 s10, 120, s10")
    k("v_lshlrev_b32 v8, 3, v4")
    k("v_sub_u32 v8, s10, v8")
    k("v_lshlrev_b32 v9, 4, v5")
    k("v_xor_b32 v8, v8, v9")
    k("v_lshl_add_u32 v8, v5, 10, v8")
    k("s_lshl_b32 s10, s3, 12")
    k("v_lshlrev_b32 v11, 7, v4")
    k("v_add_u32 v11, s10, v11")
    k("s_lshl_b32 s11, s3, 2")
    for j in range(4):
        k(f"s_add_u32 s12, s11, {j}")
        k(f"v_xor_b32 v{12+j}, s12, v5")
        k(f"v_lshl_add_u32 v{12+j}, v{12+j}, 4, v11")
    k("v_lshl_add_u32 v9, v4, 12, v9")
    k("s_lshl_b32 s10, s57, 6")
    k("s_lshl_b32 s11, s3, 5")
    k("s_add_u32 s10, s10, s11")
    k("s_lshl_b32 s10, s10, 12")
    k("s_lshl_b32 s11, s58, 7")
    k("s_sub_u32 s11, 3968, s11")
    k("s_add_u32 s10, s10, s11")
    WF = 80
    for c in range(8):
        unpack(k, f"v{WF+4*c}", f"v{WF+4*c+1}", f"v{WR+2*c}")
        unpack(k, f"v{WF+4*c+2}", f"v{WF+4*c+3}", f"v{WR+2*c+1}")
    k.need([f"v{KR}"])
    stamp("Tld")
    if HPOS == 3:
        h_loads_()
    lab = k.newlabel("pc")
    k("s_getpc_b64 s[44:45]")
    k.raw(lab + ":")
    k(f"s_add_u32 s44, s44, main_kernel-{lab}")
    k("s_addc_u32 s45, s45, 0")
    k("s_mov_b32 s46, main_code_end-main_kernel")
    k("s_mov_b32 s47, 0x00020000")
    k("v_lshlrev_b32 v2, 7, v0")
    k(f"s_sub_u32 s12, s2, {NPREP}")
    k("s_lshl_b32 s12, s12, 14")
    k("s_and_b32 s12, s12, 0x7fffffff")
    k(f"buffer_load_dword v150, v2, {srd(SD_)}, s12 offen")
    k("s_lshr_b32 s12, s2, 3")
    k("s_lshl_b32 s12, s12, 14")
    k("buffer_load_dword v151, v2, s[44:47], s12 offen")
    KF, VF, OUT = 112, 128, 136
    for cp in range(4):
        for j in range(7):
            unpack(k, f"v{KF+2*j}", f"v{KF+2*j+1}", f"v{KR+4*j+cp}")
        for i in range(4):
            unpack(k, f"v{VF+2*i}", f"v{VF+2*i+1}", f"v{VR+4*i+cp}")
        for h in range(2):
            c = 2 * cp + h
            O = OUT + 4 * h
            for i in range(4):
                k(f"v_mul_f32 v{O+i}, v{KF+2*(i+0)+h}, v{WF+4*c+3}")
            for t in (2, 1, 0):
                for i in range(4):
                    k(f"v_fmac_f32 v{O+i}, v{KF+2*(i+3-t)+h}, v{WF+4*c+t}")
            for i in range(4):
                k(f"v_mul_f32 v{O+i}, v{O+i}, v{VF+2*i+h}")
            p = 144 + 2 * h
            k(f"v_cvt_pk_bf16_f32 v{p}, v{O+3}, v{O+2}")
            k(f"v_cvt_pk_bf16_f32 v{p+1}, v{O+1}, v{O+0}")
            k(f"ds_write_b64 v8, v[{p}:{p+1}] offset:{c*128}")
    k.wait(lg=0)
    k.barrier()
    stamp("Tkv")
    for j in range(4):
        k(f"ds_read_b128 v[{16+4*j}:{19+4*j}], v{12+j} offset:{j*1024}")
    for j in range(4):
        k(f"buffer_store_dwordx4 v[{16+4*j}:{19+4*j}], v9, {srd(SWS)}, s10 offen{PSC}")
        k("s_add_u32 s10, s10, 32768")
    for i in range(4):
        k(f"v_mov_b32 v{32+i}, 0")
    k.srd(SA, 24, SYNCB, WS_SYNC)
    k("s_lshl_b32 s12, s2, 12")
    k("v_lshlrev_b32 v8, 4, v0")
    for i in range(2):
        k(f"buffer_store_dwordx4 v[32:35], v8, {srd(SA)}, s12 offen offset:{i*2048}{PSC}")
    k.prof_end(0, 24, 3, names="pre")
    k("s_endpgm")
    k.label("pre_q", flush=False)
    k.vm, k.lg = saved0
    in_srd(k, SA, 0, S * D * 2)
    k("v_lshrrev_b32 v1, 6, v0")
    k("v_readfirstlane_b32 s3, v1")
    k("v_and_b32 v1, 63, v0")
    k("v_and_b32 v2, 15, v0")
    k("v_bfe_u32 v3, v0, 4, 2")
    k("s_sub_u32 s10, s2, 320")
    k("s_lshl_b32 s10, s10, 1")
    k("s_add_u32 s10, s10, s3")
    k(f"s_mul_i32 s11, s10, {XRT}")
    k("v_mul_u32_u24 v4, 1280, v2")
    k("v_lshl_add_u32 v4, v3, 4, v4")
    QR = 16
    for i in range(20):
        k(f"buffer_load_dwordx4 v[{QR+4*i}:{QR+4*i+3}], v4, {srd(SA)}, s11 offen offset:{64*i}")
    k.srd(SWS, 24, WSB)
    k("v_lshlrev_b32 v5, 4, v1")
    k(f"s_add_u32 s12, s11, {WS_QX}")
    k("v_mov_b32 v6, 0x3f803f80")
    k("v_mov_b32 v8, 0")
    k("v_mov_b32 v9, 0")
    for i in range(20):
        if i % 4 == 0 and i:
            k("s_add_u32 s12, s12, 4096")
        k(f"buffer_store_dwordx4 v[{QR+4*i}:{QR+4*i+3}], v5, {srd(SWS)}, s12 offen offset:{(i%4)*1024}{PSC}")
        for d in range(4):
            k(f"v_dot2c_f32_bf16 v8, v{QR+4*i+d}, v6")
            k(f"v_dot2c_f32_bf16 v9, v{QR+4*i+d}, v{QR+4*i+d}")
    for v in ("v8", "v9"):
        xsum16(k, v, "v7")
        xsum32(k, v, "v7")
    k(f"v_mul_f32 v8, {f2u(1.0/D)}, v8")
    k(f"v_mul_f32 v9, {f2u(1.0/D)}, v9")
    k("v_fma_f32 v9, -v8, v8, v9")
    k("v_max_f32 v9, 0, v9")
    k(f"v_add_f32 v9, {f2u(EPS)}, v9")
    k("v_rsq_f32 v11, v9")
    k("v_mul_f32 v10, v8, v11")
    k("s_lshl_b32 s12, s10, 7")
    k(f"s_add_u32 s12, s12, {WS_QST}")
    k("v_lshlrev_b32 v7, 3, v2")
    k(f"buffer_store_dwordx2 v[10:11], v7, {srd(SWS)}, s12 offen")
    k.label("pre_end", flush=False)
    k("s_endpgm")
    return k


PSC = os.environ.get("PSC", "")

def gen_main():
    LW = 0
    LR = 131072
    LC = 122880
    CP = 4160
    UOFF = 4 * CP
    WREG = 4 * CP + 4608
    CB = 163840 - 4 * WREG
    k = Kern(KNAME, lds=163840, grid=256, block=256)
    RING, ACC, WB, TMP = 16, 112, 160, 184
    X1R = [216, 222]
    YR = [228, 234]
    STA, STB = [4, 6], [240, 242]
    X2 = [WB, WB + 12]
    G2R = TMP + 8
    DIST = int(os.environ.get("DIST", "8"))
    VL16, VL16B, VH2, VT4, VT4S, VROW, VGW, VGR, VQ128, VFLAG, VFPOLL = (
        "v10", "v11", "v8", "v9", "v12", "v13", "v14", "v15", "v0", "v252", "v253")
    VL128 = "v251"
    VXP = "v250"
    VRW = "v249"
    LQ = 131072
    SX, SW, SH, SWD, SSY, SO, SY_ = 28, 32, 36, 40, 44, 48, 52
    SA, SB, SWS, SDBG = 28, 36, 48, 52
    XSPAN = WS_X3 - WS_X1
    HSPAN = WS_H2 - WS_H

    stamp = mkstamp(k)

    def ring(i):
        return RING + 4 * (i % 24)

    def emit(x):
        if callable(x):
            x()
        elif isinstance(x, tuple):
            k(x[0], tag=x[1])
        else:
            k(x)

    def set_exec(nl):
        m = (1 << nl) - 1
        if nl <= 32:
            k(f"s_mov_b64 exec, {m:#x}") if nl <= 6 else (k(f"s_mov_b32 exec_lo, {m:#x}"), k("s_mov_b32 exec_hi, 0"))
        else:
            k(f"s_mov_b32 exec_hi, {m >> 32:#x}")

    class ML:
        def __init__(self, text, nl):
            self.text, self.nl = text, nl

        def __call__(self):
            set_exec(self.nl)
            k(self.text)
            k("s_mov_b64 exec, -1")

    def isvm(x):
        if isinstance(x, ML):
            return True
        if callable(x):
            return False
        return (x[0] if isinstance(x, tuple) else x).startswith("buffer_")

    def emit_one_vmem(L):
        while L:
            x = L.pop(0)
            emit(x)
            if isvm(x):
                return

    def x_loads(layer, b, kk, slot0):
        if layer == 0:
            return [f"s_add_u32 s10, s17, {kk*2048 + b*4*XBLK}"] + [
                f"buffer_load_dwordx4 v[{ring(slot0+e)}:{ring(slot0+e)+3}], {VXP}, {srd(SX)}, s10 offen offset:{e*256} sc1"
                for e in range(2)]
        so = kk * 1024 + b * 8 * XRT + (XSPAN if layer else 0)
        L = []
        for tn in range(2):
            L.append(f"s_add_u32 s10, s17, {so + tn*XRT}")
            L.append(f"buffer_load_dwordx4 v[{ring(slot0+tn)}:{ring(slot0+tn)+3}], {VL16}, {srd(SX)}, s10 offen sc1")
        return L

    def h_loads(layer, b, kk, slot0):
        so = kk * 1024 + b * 8 * HRT + (HSPAN if layer else 0)
        L = []
        for tn in range(2):
            L.append(f"s_add_u32 s10, s{57+tn}, {so}")
            L.append(f"buffer_load_dwordx4 v[{ring(slot0+tn)}:{ring(slot0+tn)+3}], {VL16}, {srd(SH)}, s10 offen sc1")
        return L

    def x_pf(layer, b):
        if not PF:
            return []
        return [f"s_add_u32 s10, s26, {b*8*XRT + (XSPAN if layer else 0)}",
                ML(f"buffer_load_dword a240, {VL128}, {srd(SX)}, s10 offen sc1", 20)]

    def h_pf(layer, b):
        if not PF:
            return []
        return [f"s_add_u32 s10, s27, {b*8*HRT + (HSPAN if layer else 0)}",
                ML(f"buffer_load_dword a241, {VL128}, {srd(SH)}, s10 offen sc1", 48)]

    def wgu_dma(p):
        return [f"s_add_u32 m0, s18, {LW + p*12288}", f"s_add_u32 s11, s19, {p*12288}"] + [
            (f"buffer_load_dwordx4 {VL16}, {srd(SW)}, s11 offen offset:{f*1024} sc1 lds", f"w{p}") for f in range(3)]

    def wd_load(i):
        kk, lt = divmod(i, 5)
        base = "s20" if lt < 2 else "s21" if lt < 4 else "s22"
        return [f"s_add_u32 s11, {base}, {kk*5120}",
                f"buffer_load_dwordx4 a[{4*i}:{4*i+3}], {VL16}, {srd(SWD)}, s11 offen offset:{(lt&1)*1024 if lt < 4 else 0} sc1"]

    def poll(loads, tags, tmp, sleep=1, ge=None, nl=64, eq=None):
        def check():
            if nl < 64:
                k(f"v_mov_b32 {tags[0]}, {tags[0]}")
                set_exec(nl)
            check0()
            if nl < 64:
                k("s_cmp_eq_u64 vcc, exec")
                k("s_mov_b64 exec, -1")
            else:
                k("s_cmp_eq_u64 vcc, -1")

        def check0():
            if eq is not None:
                r_ = int(tags[0][1:])
                k(f"v_cmp_eq_u64 vcc, {eq}, v[{r_}:{r_+1}]")
            elif ge is not None:
                k(f"v_cmp_le_u32 vcc, {ge}, {tags[0]}")
            elif len(tags) == 1:
                k(f"v_cmp_ne_u32 vcc, 0, {tags[0]}")
            else:
                k(f"v_min_u32 {tmp}, {tags[0]}, {tags[1]}")
                for t in tags[2:]:
                    k(f"v_min_u32 {tmp}, {tmp}, {t}")
                k(f"v_cmp_ne_u32 vcc, 0, {tmp}")
        ok = k.newlabel("ok")
        lp = k.newlabel("spin")
        check()
        k.branch(f"s_cbranch_scc1 {ok}", flush=False)
        vm, lg = list(k.vm), list(k.lg)
        snap = k.haz_snapshot()
        k("s_mov_b32 s23, 0")
        k.label(lp, flush=False)
        k(f"s_sleep {sleep}")
        for l in loads:
            emit(l)
        k.wait(vm=0)
        k("s_add_u32 s23, s23, 1")
        k(f"s_cmp_ge_u32 s23, {SPIN_MAX}")
        if DIAG:
            k(f"s_cselect_b32 s101, {k.uid}, s101")
        k.branch(f"s_cbranch_scc1 {ok}", flush=False)
        check()
        k.branch(f"s_cbranch_scc0 {lp}", flush=False)
        k.flush_hazards()
        k.label(ok, flush=False)
        k.vm, k.lg = vm, lg
        k.haz_restore(snap)

    def finish_stats(vsum, vnsq, dst):
        k(f"v_mul_f32 v{dst}, {f2u(-1.0/D)}, {vsum}")
        k(f"v_mul_f32 {vnsq}, {f2u(-1.0/D)}, {vnsq}")
        k(f"v_fma_f32 {vnsq}, -v{dst}, v{dst}, {vnsq}")
        k(f"v_max_f32 {vnsq}, 0, {vnsq}")
        k(f"v_add_f32 {vnsq}, {f2u(EPS)}, {vnsq}")
        k(f"v_rsq_f32 v{dst+1}, {vnsq}")

    def wread(kk, f):
        reg, off = (VL16, kk * 6144) if kk < 10 else (VL16B, (kk - 10) * 6144)
        return f"ds_read_b128 v[{WB+4*f}:{WB+4*f+3}], {reg} offset:{LW+off+f*1024}"

    def xswap(slot):
        a_, b_ = ring(slot), ring(slot + 1)
        k(f"v_swap_b32 v{a_+2}, v{b_}")
        k(f"v_swap_b32 v{a_+3}, v{b_+1}")

    def g1_main(slot0, sched, first=False, xp=False):
        for f in range(6):
            k(wread(0, f))
        if xp:
            xswap(slot0)
        for kk in range(20):
            L = sched.get(kk, [])
            if first and kk == 11:
                k.wait_tag("w9")
                k.barrier()
            nv = sum(1 for x in L if isvm(x))
            done = 0
            for f in range(6):
                for tn in range(2):
                    a = ACC + 8 * f + 4 * tn
                    acc = f"v[{a}:{a+3}]"
                    xr = ring(slot0 + 2 * kk + tn)
                    k(f"v_mfma_f32_16x16x32_bf16 {acc}, v[{WB+4*f}:{WB+4*f+3}], v[{xr}:{xr+3}], {acc if kk else 0}")
                    if tn == 0:
                        while done < nv and done * 6 < (f + 1) * nv - 2:
                            emit_one_vmem(L)
                            done += 1
                        if PREW and not (kk == 19 and f == 5):
                            regs = [f"v{WB+4*((f+1)%6)}"]
                            if f == 5 and not xp:
                                regs += [f"v{ring(slot0+2*kk+2)}", f"v{ring(slot0+2*kk+3)}"]
                            k.need(regs)
                    elif PREW:
                        while L and isinstance(L[0], str) and L[0].startswith("s_add_u32 s10") and done < nv and done * 6 < (f + 2) * nv - 2:
                            emit(L.pop(0))
                if xp and f == 3 and kk < 19:
                    xswap(slot0 + 2 * kk + 2)
                if kk < 19:
                    k(wread(kk + 1, f))
                else:
                    if f == 0:
                        k("v_lshlrev_b32 v255, 4, v3")
                        k(f"v_add_u32 v255, {LC}, v255")
                    k(f"ds_read_b128 v[{WB+4*f}:{WB+4*f+3}], v255 offset:{f*64}")
            for x in L:
                emit(x)

    def g1_epilogue(layer, b, ST, fill=None):
        fill = fill if fill is not None else []
        k(f"s_add_u32 s12, s56, {b*8*HRT + (HSPAN if layer else 0)}")
        O2 = TMP + 20
        for tn in range(2):
            st = ST[tn]
            c1 = TMP + 28
            k(f"v_mul_f32 v{c1}, {f2u(-LOG2E)}, v{st+1}")
            k(f"v_mul_f32 v{c1+1}, v{st+1}, v{st+1}")
            k(f"v_rcp_f32 v{c1+1}, v{c1+1}")
            T = TMP
            for f in range(6):
                a = ACC + 8 * f + 4 * tn
                for i in (0, 2):
                    k(f"v_pk_fma_f32 v[{a+i}:{a+i+1}], v[{WB+4*f+i}:{WB+4*f+i+1}], v[{st}:{st+1}], v[{a+i}:{a+i+1}] op_sel:[0,0,0] op_sel_hi:[1,0,1]")
            for f in range(3):
                g = ACC + 8 * f + 4 * tn
                for i in (0, 2):
                    k(f"v_pk_mul_f32 v[{T+4*f+i}:{T+4*f+i+1}], v[{g+i}:{g+i+1}], v[{c1}:{c1+1}] op_sel:[0,0] op_sel_hi:[1,0]")
            for e in range(12):
                k(f"v_exp_f32 v{T+e}, v{T+e}")
                if e % 4 == 0:
                    emit_one_vmem(fill)
            for f in range(3):
                g = ACC + 8 * f + 4 * tn
                u = g + 24
                for i in (0, 2):
                    k(f"v_pk_mul_f32 v[{g+i}:{g+i+1}], v[{g+i}:{g+i+1}], v[{u+i}:{u+i+1}]")
            for e in range(0, 12, 2):
                k(f"v_pk_fma_f32 v[{T+e}:{T+e+1}], v[{T+e}:{T+e+1}], v[{c1}:{c1+1}], v[{c1}:{c1+1}] op_sel:[0,1,1] op_sel_hi:[1,1,1]")
            for e in range(12):
                k(f"v_rcp_f32 v{T+e}, v{T+e}")
                if e % 4 == 0:
                    emit_one_vmem(fill)
            for f in range(3):
                g = ACC + 8 * f + 4 * tn
                for i in (0, 2):
                    k(f"v_pk_mul_f32 v[{T+4*f+i}:{T+4*f+i+1}], v[{T+4*f+i}:{T+4*f+i+1}], v[{g+i}:{g+i+1}]")
            O = TMP + 12 + 4 * tn
            for p in range(4):
                k(f"v_cvt_pk_bf16_f32 v{O+p}, v{T+2*p}, v{T+2*p+1}")
            for p in range(2):
                k(f"v_cvt_pk_bf16_f32 v{O2+2*tn+p}, v{T+8+2*p}, v{T+9+2*p}")
            if tn:
                k(f"s_add_u32 s13, s12, {HRT}")
            k(f"buffer_store_dwordx4 v[{O}:{O+3}], {VL16}, {srd(SH)}, s{12+tn} offen sc1", tag="hst")
        k(f"v_permlane16_swap_b32 v{O2}, v{O2+2}")
        k(f"v_permlane16_swap_b32 v{O2+1}, v{O2+3}")
        k(f"buffer_store_dwordx4 v[{O2}:{O2+3}], {VH2}, {srd(SH)}, s12 offen offset:1024 sc1", tag="hst")
        for x in fill:
            emit(x)

    def h_flag(layer, b):
        k("s_lshl_b32 s12, s4, 3")
        k("s_add_u32 s12, s12, s3")
        k("s_lshl_b32 s12, s12, 5")
        k("s_add_u32 s12, s12, s5")
        k("s_lshl_b32 s12, s12, 7")
        k(f"s_add_u32 s12, s12, {SY_HF + layer*0x40000 + b*0x4000}")
        k("v_mov_b32 v254, s100"); k("v_mov_b32 v255, s101")
        k.wait_tag("hst")
        k(f"buffer_store_dwordx2 v[254:255], {VFLAG}, {srd(SSY)}, s12 offen sc1")
        stamp(f"hf{layer}{b}")

    def h_poll_loads(layer, b):
        return [f"s_mov_b32 s13, {SY_HF + layer*0x40000 + b*0x4000}",
                ML(f"buffer_load_dwordx2 v[{TMP+30}:{TMP+31}], {VFPOLL}, {srd(SSY)}, s13 offen sc1", 8)]

    def h_poll(layer, b):
        poll(h_poll_loads(layer, b), [f"v{TMP+30}"], None, nl=8, eq=SN)

    TAILK = int(os.environ.get("TAILK", "3"))
    RESF = TMP

    def g2_main(slot0, sched, res, dst):
        def areg(lt, tn):
            if tn == 0 and lt in (0, 1, 4):
                return dst + 4 * (lt if lt < 2 else 2)
            return ACC + 8 * lt + 4 * tn

        def mf(kk, lt, tn):
            a = areg(lt, tn)
            acc = f"v[{a}:{a+3}]"
            hr = ring(slot0 + 2 * kk + tn)
            wr = 4 * (5 * kk + lt)
            k(f"v_mfma_f32_16x16x32_bf16 {acc}, a[{wr}:{wr+3}], v[{hr}:{hr+3}], {acc if kk else 0}")

        for kk in range(12 - TAILK):
            L = sched.get(kk, [])
            nv = sum(1 for x in L if isvm(x))
            done = 0
            idx = 0
            if kk == 5:
                k.barrier()
            for tn in range(2):
                for lt in range(5):
                    mf(kk, lt, tn)
                    idx += 1
                    while done < nv and done * 10 < idx * nv - 5:
                        emit_one_vmem(L)
                        done += 1
            for x in L:
                emit(x)
        L = []
        for kk in range(12 - TAILK, 12):
            L += sched.get(kk, [])
        order = [(0, 1, 0), (1, 1, 1), (2, 0, 2), (3, 0, 3), (2, 1, 4), (3, 1, 5), (4, 1, 7), (4, 0, 6), (0, 0, None), (1, 0, None)]
        pend = []
        fillv = []
        for d in range(6):
            fillv += [f"v_lshlrev_b32 v{RESF+2*d}, 16, v{res+d}", f"v_and_b32 v{RESF+2*d+1}, 0xffff0000, v{res+d}"]
        fillv += [f"v_xor_b32 v{TMP+12+x}, {x << 13}, {VRW}" for x in range(1, 4)]
        for i, (lt, tn, slot) in enumerate(order):
            for kk in range(12 - TAILK, 12):
                mf(kk, lt, tn)
                if i >= 5 and fillv:
                    k(fillv.pop(0))
            if L:
                emit_one_vmem(L)
            if slot is not None:
                a = areg(lt, tn)
                pend.append((i, f"ds_write_b128 {VRW}, v[{a}:{a+3}] offset:{slot*1024}"))
            while pend and pend[0][0] <= i - 2:
                k(pend.pop(0)[1])
        for x in L + fillv:
            emit(x)
        for _, x in pend:
            k(x)

    def g2_reduce(dst, mid=None):
        if mid:
            mid()
        k.wait(lg=0)
        k.barrier()
        n = 0
        for x in range(1, 4):
            for sl_ in (2 * (x - 1), 2 * (x - 1) + 1, 6 + (x & 1)):
                k(f"ds_read_b128 v[{ACC+4*n}:{ACC+4*n+3}], v{TMP+12+x} offset:{sl_*1024}")
                n += 1
        for i in range(0, 12, 2):
            k(f"v_pk_add_f32 v[{dst+i}:{dst+i+1}], v[{dst+i}:{dst+i+1}], v[{RESF+i}:{RESF+i+1}]")
        for x in range(3):
            for i in range(0, 12, 2):
                r = ACC + 12 * x + i
                k(f"v_pk_add_f32 v[{dst+i}:{dst+i+1}], v[{dst+i}:{dst+i+1}], v[{r}:{r+1}]")

    def part_stats(src, b, region, pre_wait=None):
        part_calc(src, TMP + 16)
        part_pub(TMP + 16, b, region, pre_wait)

    def part_calc(src, a):
        q_ = a + 1
        t = TMP + 18
        u = TMP + 4
        k(f"v_pk_add_f32 v[{t}:{t+1}], v[{src+8}:{src+9}], v[{src+10}:{src+11}]")
        k(f"v_pk_mul_f32 v[{t+2}:{t+3}], v[{src+8}:{src+9}], v[{src+8}:{src+9}]")
        k(f"v_pk_fma_f32 v[{t+2}:{t+3}], v[{src+10}:{src+11}], v[{src+10}:{src+11}], v[{t+2}:{t+3}]")
        k(f"v_pk_add_f32 v[{u}:{u+1}], v[{src}:{src+1}], v[{src+2}:{src+3}]")
        k(f"v_pk_mul_f32 v[{t}:{t+1}], v[{t}:{t+1}], s[26:27]")
        k(f"v_pk_mul_f32 v[{t+2}:{t+3}], v[{t+2}:{t+3}], s[26:27]")
        k(f"v_pk_add_f32 v[{u+2}:{u+3}], v[{src+4}:{src+5}], v[{src+6}:{src+7}]")
        for i in range(0, 8, 2):
            k(f"v_pk_fma_f32 v[{t+2}:{t+3}], v[{src+i}:{src+i+1}], v[{src+i}:{src+i+1}], v[{t+2}:{t+3}]")
        k(f"v_pk_add_f32 v[{u}:{u+1}], v[{u}:{u+1}], v[{u+2}:{u+3}]")
        k(f"v_pk_add_f32 v[{t}:{t+1}], v[{t}:{t+1}], v[{u}:{u+1}]")
        k(f"v_add_f32 v{q_}, v{t+2}, v{t+3}")
        k(f"v_add_f32 v{a}, v{t}, v{t+1}")
        k(f"v_permlane16_swap_b32 v{a}, v{q_}")
        k(f"v_add_f32 v{a}, v{a}, v{q_}")
        k(f"v_mov_b32 v{q_}, v{a}")
        k(f"v_permlane32_swap_b32 v{a}, v{q_}")
        k(f"v_add_f32 v{a}, v{a}, v{q_}")
        k(f"v_mov_b32 v{q_}, v{a}")
        k(f"v_permlane16_swap_b32 v{a}, v{q_}")
        k(f"v_or_b32 v{q_}, 0x80000000, v{q_}")

    def part_pub(a, b, region, pre_wait=None):
        k(f"s_add_u32 s12, s23, {region + b*8*2048}") if False else None
        k(f"s_add_u32 s12, s60, {region + b*8*2048}")
        if pre_wait:
            k.wait_tag(pre_wait)
        k(f"buffer_store_dwordx2 v[{a}:{a+1}], {VGW}, {srd(SSY)}, s12 offen sc1")
        stamp(f"pub{2 if region == SY_ST2 else 3}{b}")

    def st2_loads(b, dst):
        return ["s_lshl_b32 s13, s16, 11", f"s_add_u32 s13, s13, {SY_ST2 + b*8*2048}"] + [
            f"buffer_load_dwordx2 v[{dst+2*i}:{dst+2*i+1}], {VGR}, {srd(SSY)}, s13 offen offset:{i*128} sc1"
            for i in range(4)]

    def st3_loads(b, dst):
        return ["s_lshl_b32 s13, s15, 11", f"s_add_u32 s13, s13, {SY_ST3 + b*8*2048}"] + [
            f"buffer_load_dwordx2 v[{dst+8*tn+2*i}:{dst+8*tn+2*i+1}], {VGR}, {srd(SSY)}, s13 offen offset:{tn*2048+i*128} sc1"
            for tn in range(2) for i in range(4)]

    def st1_loads(b, dst):
        return ["s_lshl_b32 s13, s15, 9", f"s_add_u32 s13, s13, {SY_ST1 + b*8*512}"] + [
            f"buffer_load_dwordx2 v[{dst+2*tn}:{dst+2*tn+1}], {VQ128}, {srd(SSY)}, s13 offen offset:{tn*512} sc1"
            for tn in range(2)]

    def sum_granules(g, n, tmp):
        for i in range(1, n):
            k(f"v_pk_add_f32 v[{g}:{g+1}], v[{g}:{g+1}], v[{g+2*i}:{g+2*i+1}]")
        for v in (g, g + 1):
            xsum16(k, f"v{v}", tmp)
            xsum32(k, f"v{v}", tmp)

    def finalize(b, x2, G):
        poll(st2_loads(b, G), [f"v{G+1}", f"v{G+3}", f"v{G+5}", f"v{G+7}"], f"v{TMP+20}")
        stamp(f"p2{b}")
        sum_granules(G, 4, f"v{TMP+20}")
        sp = TMP + 22
        finish_stats(f"v{G}", f"v{G+1}", sp)
        k(f"v_mul_f32 v{sp}, v{sp}, v{sp+1}")
        for d in range(6):
            unpack(k, f"v{TMP}", f"v{TMP+1}", f"v{YR[b]+d}")
            k(f"v_pk_fma_f32 v[{TMP+2}:{TMP+3}], v[{x2+2*d}:{x2+2*d+1}], v[{sp}:{sp+1}], v[{sp}:{sp+1}] op_sel:[0,1,0] op_sel_hi:[1,1,0]")
            k(f"v_pk_fma_f32 v[{x2+2*d}:{x2+2*d+1}], v[{TMP+2}:{TMP+3}], v[{TMP}:{TMP+1}], v[{x2+2*d}:{x2+2*d+1}]")
            k(f"v_cvt_pk_bf16_f32 v{X1R[b]+d}, v{x2+2*d}, v{x2+2*d+1}")
        k(f"s_add_u32 s13, s59, {XSPAN + b*8*XRT}")
        k("s_lshl_b32 s12, s14, 10")
        k("s_add_u32 s12, s12, s13")
        k(f"buffer_store_dwordx4 v[{X1R[b]}:{X1R[b]+3}], {VL16}, {srd(SX)}, s12 offen sc1", tag="xst")
        k(f"buffer_store_dwordx2 v[{X1R[b]+4}:{X1R[b]+5}], {VT4S}, {srd(SX)}, s13 offen offset:2048 sc1", tag="xst")
        for d in range(6):
            unpack(k, f"v{x2+2*d}", f"v{x2+2*d+1}", f"v{X1R[b]+d}")

    def stats1(b, STx):
        poll(st1_loads(b, TMP + 24), [f"v{TMP+25}", f"v{TMP+27}"], f"v{TMP+20}")
        for tn in range(2):
            sum_granules(TMP + 24 + 2 * tn, 1, f"v{TMP+20}")
            finish_stats(f"v{TMP+24+2*tn}", f"v{TMP+25+2*tn}", STx[tn])

    def stats3(b, STx):
        poll(st3_loads(b, TMP), [f"v{TMP+1+2*i}" for i in range(8)], f"v{TMP+20}")
        for tn in range(2):
            sum_granules(TMP + 8 * tn, 4, f"v{TMP+20}")
            finish_stats(f"v{TMP+8*tn}", f"v{TMP+8*tn+1}", STx[tn])

    def res_loads(b):
        L = [f"s_add_u32 s13, s62, {b*4*XBLK}", "s_lshl_b32 s12, s14, 11", "s_add_u32 s12, s12, s13",
             "s_add_u32 s13, s13, 4096"]
        for R, sr in ((X1R[b], SX), (YR[b], SY_)):
            L += [f"buffer_load_dwordx2 v[{R}:{R+1}], {VXP}, {srd(sr)}, s12 offen sc1",
                  f"buffer_load_dwordx2 v[{R+2}:{R+3}], {VXP}, {srd(sr)}, s12 offen offset:256 sc1",
                  f"buffer_load_dwordx2 v[{R+4}:{R+5}], {VL16}, {srd(sr)}, s13 offen sc1"]
        return L

    def out_store(b, src):
        for d in range(6):
            k(f"v_cvt_pk_bf16_f32 v{TMP+d}, v{src+2*d}, v{src+2*d+1}")
        k(f"v_mul_u32_u24 v{TMP+8}, 1280, {VROW}")
        k("s_mul_i32 s12, s8, 160")
        k(f"s_add_u32 s12, s12, {b*128*1280}")
        k("s_lshl_b32 s13, s14, 6")
        k("s_add_u32 s13, s13, s12")
        k(f"v_lshl_add_u32 v{TMP+9}, v3, 4, v{TMP+8}")
        k(f"v_lshl_add_u32 v{TMP+10}, v3, 3, v{TMP+8}")
        k("s_lshl_b32 s10, s14, 31")
        k(f"v_or_b32 v{TMP+10}, s10, v{TMP+10}")
        k(f"buffer_store_dwordx4 v[{TMP}:{TMP+3}], v{TMP+9}, {srd(SO)}, s13 offen")
        k(f"buffer_store_dwordx2 v[{TMP+4}:{TMP+5}], v{TMP+10}, {srd(SO)}, s12 offen offset:128")

    def g1b_sched(layer, extra):
        sched = {}
        hl = [h_loads(layer, 0, kk, 80 + 2 * kk) for kk in range(12)]
        for kk in range(20):
            L = []
            if kk + DIST < 20:
                L += x_loads(layer, 1, kk + DIST, 40 + 2 * (kk + DIST))
            L += extra.get(kk, [])
            if kk == HAK:
                L += [lambda: h_flag(layer, 0)]
            if kk == HAK + 4:
                L += h_poll_loads(layer, 0)
            if kk == 13:
                L = [lambda: h_poll(layer, 0)] + h_pf(layer, 0) + L
            if kk >= 14:
                while hl and (12 - len(hl)) + 8 < kk and len([x for x in L if isvm(x)]) < 6:
                    L += hl.pop(0)
            sched[kk] = L
        return sched, hl


    k.prof_begin()
    k(f"s_cmp_ge_u32 s2, {k.grid}")
    k.branch("s_cbranch_scc1 main_end", flush=False)
    k("s_load_dwordx2 s[24:25], s[0:1], 96")
    k("s_load_dwordx2 s[26:27], s[0:1], 0")
    if DIAG:
        k("s_mov_b32 s101, 0")
    k("s_getpc_b64 s[60:61]")
    k.raw("mega_pc:")
    k(f"s_sub_u32 s60, s60, mega_pc-{KNAME}")
    k("s_subb_u32 s61, s61, 0")
    k(f"s_mov_b32 s62, main_code_end-{KNAME}")
    k("s_mov_b32 s63, 0x00020000")
    k("s_lshr_b32 s10, s2, 3")
    k("s_lshl_b32 s10, s10, 11")
    k("v_lshrrev_b32 v2, 4, v0")
    k("v_lshlrev_b32 v1, 7, v0")
    k("v_lshl_or_b32 v1, v2, 24, v1")
    k("buffer_load_dword v255, v1, s[60:63], s10 offen")
    in_srd(k, SDBG, 88, 256)
    k("v_lshrrev_b32 v1, 6, v0")
    k("v_readfirstlane_b32 s3, v1")
    k("v_and_b32 v1, 63, v0")
    k("v_and_b32 v2, 15, v0")
    k("v_bfe_u32 v3, v0, 4, 2")
    k(f"v_lshlrev_b32 {VL16}, 4, v1")
    def ffn_ids():
        if MAP == 1:
            k("s_and_b32 s4, s2, 7")
            k("s_lshr_b32 s5, s2, 3")
            k("s_lshr_b32 s7, s5, 3")
            k("s_and_b32 s8, s5, 7")
        elif MAP == 4:
            k("s_and_b32 s4, s2, 4")
            k("s_lshr_b32 s10, s2, 6")
            k("s_add_u32 s4, s4, s10")
            k("s_bfe_u32 s5, s2, 0x30003")
            k("s_and_b32 s10, s2, 3")
            k("s_lshl_b32 s10, s10, 3")
            k("s_add_u32 s5, s5, s10")
            k("s_and_b32 s7, s5, 3")
            k("s_lshr_b32 s8, s5, 2")
        else:
            k("s_and_b32 s4, s2, 6")
            k("s_lshr_b32 s10, s2, 7")
            k("s_add_u32 s4, s4, s10")
            k("s_bfe_u32 s5, s2, 0x40003")
            k("s_and_b32 s10, s2, 1")
            k("s_lshl_b32 s10, s10, 4")
            k("s_add_u32 s5, s5, s10")
            k("s_and_b32 s7, s5, 3")
            k("s_lshr_b32 s8, s5, 2")
        k("s_and_b32 s9, s3, 1")
        k("s_lshr_b32 s14, s3, 1")
        k("s_lshl_b32 s6, s4, 4")
        k("s_lshl_b32 s10, s3, 1")
        k("s_add_u32 s15, s6, s10")
        k("s_lshl_b32 s10, s7, 1")
        k("s_add_u32 s16, s6, s10")
        k("s_add_u32 s16, s16, s9")
        k(f"s_mul_i32 s17, s15, {XRT}")
        k("s_mul_i32 s18, s3, 3072")
        k(f"s_mul_i32 s19, s5, {WGU_M}")
        k("s_add_u32 s19, s19, s18")
        k("s_lshl_b32 s10, s8, 2")
        k("s_add_u32 s10, s10, s3")
        k("s_mul_i32 s10, s10, 61440")
        k("s_lshl_b32 s11, s14, 11")
        k("s_add_u32 s20, s10, s11")
        k("s_xor_b32 s11, s11, 2048")
        k("s_add_u32 s21, s10, s11")
        k("s_add_u32 s22, s10, 4096")
        k.srd(SWS, 24, WSB)
        k.srd(SW, 24, WGUB, WS_WGU)
        k.srd(SWD, 24, WDB, WS_WD)
        k.srd(SSY, 24, SYNCB, WS_SYNC)


    def wpoll_setup(va):
        k(f"v_lshrrev_b32 {va}, 1, v1")
        k(f"v_lshlrev_b32 {va}, 4, {va}")
        k("v_and_b32 v9, 1, v1")
        k("s_lshr_b32 s10, s5, 2")
        k("s_lshl_b32 s10, s10, 1")
        k(f"v_add3_u32 {va}, {va}, v9, s10")
        k("s_lshl_b32 s10, s3, 3")
        k("s_add_u32 s10, s10, 56")
        k("v_add_u32 v9, s10, v1")
        k("v_cmp_gt_u32 vcc, 8, v1")
        k(f"v_cndmask_b32 {va}, v9, {va}, vcc")
        k(f"v_lshlrev_b32 {va}, 7, {va}")
        k(f"v_add_u32 {va}, {SY_PF}, {va}")
        return [ML(f"buffer_load_dwordx2 v[12:13], {va}, {srd(SSY)}, 0 offen sc1", 16)]

    k(f"s_cmp_lt_u32 s2, {NPREP}")
    k.branch("s_cbranch_scc1 main_prep", flush=False)
    saved0 = (list(k.vm), list(k.lg))
    snap0 = k.haz_snapshot()
    in_srd(k, SA, 8, S * D * 2)
    in_srd(k, SB, 16, S * D * 2)
    in_srd(k, SW, 24, D * 8)
    in_srd(k, SWD, 32, 4096)
    in_srd(k, SSY, 40, D * 2)
    k(f"s_sub_u32 s56, s2, {NPREP}")
    k("s_lshr_b32 s57, s56, 4")
    k("s_and_b32 s58, s56, 15")
    k("s_lshl_b32 s59, s56, 2")
    k("s_add_u32 s60, s59, s3")
    k(f"s_mul_i32 s61, s3, {WREG}")
    k(f"s_add_u32 s61, s61, {CB}")
    k("v_lshrrev_b32 v4, 3, v1")
    k("v_and_b32 v5, 7, v1")
    k("s_lshl_b32 s10, s58, 7")
    k("s_lshl_b32 s11, s3, 5")
    k("s_add_u32 s10, s10, s11")
    k("v_lshlrev_b32 v6, 2, v4")
    k("v_add_u32 v6, s10, v6")
    k("v_mul_u32_u24 v7, 1280, v6")
    k("v_lshl_add_u32 v7, v5, 4, v7")
    k("s_lshl_b32 s12, s57, 7")
    k("v_add_u32 v7, s12, v7")
    stamp("first")
    KR, VR, WR = 16, 44, 60
    for j in (3, 4, 5, 6, 2, 1, 0):
        off = (j - 3) * 1280
        if off < 0:
            k(f"v_add_u32 v8, {off & 0xffffffff:#x}, v7")
            k(f"buffer_load_dwordx4 v[{KR+4*j}:{KR+4*j+3}], v8, {srd(SA)}, 0 offen")
        else:
            k(f"buffer_load_dwordx4 v[{KR+4*j}:{KR+4*j+3}], v7, {srd(SA)}, 0 offen offset:{off}")
    for i in range(4):
        k(f"buffer_load_dwordx4 v[{VR+4*i}:{VR+4*i+3}], v7, {srd(SB)}, 0 offen offset:{i*1280}{NT}")
    k("v_lshlrev_b32 v9, 6, v5")
    k("s_lshl_b32 s12, s57, 9")
    for i in range(4):
        k(f"buffer_load_dwordx4 v[{WR+4*i}:{WR+4*i+3}], v9, {srd(SW)}, s12 offen offset:{16*i}")
    k("s_lshl_b32 s12, s60, 12")
    k(f"s_add_u32 s{SWD}, s{SWD}, s12")
    k(f"s_addc_u32 s{SWD+1}, s{SWD+1}, 0")
    HB = 160

    def h_loads_():
        for p in range(4):
            k(f"buffer_load_dwordx4 v[{HB+8*p+4}:{HB+8*p+7}], {VL16}, {srd(SWD)}, 0 offen offset:{p*1024}")
            k(f"v_add_u32 v9, {(p*1024-8) & 0xffffffff:#x}, {VL16}")
            k(f"buffer_load_dwordx2 v[{HB+8*p+2}:{HB+8*p+3}], v9, {srd(SWD)}, 0 offen")

    k.srd(SWS, 26, S * D * 2)
    k("s_lshl_b32 s62, s58, 3")
    k("s_lshl_b32 s12, s3, 1")
    k("s_add_u32 s62, s62, s12")
    k(f"s_mul_i32 s62, s62, {XRT}")
    k("s_lshl_b32 s12, s57, 7")
    k("s_add_u32 s12, s12, s62")
    k(f"s_add_u32 s13, s12, {XRT}")
    k("v_mul_u32_u24 v9, 1280, v2")
    k("v_lshl_add_u32 v9, v3, 4, v9")
    QT = 192
    for t in range(2):
        for hc in range(2):
            r = QT + 8 * t + 4 * hc
            k(f"buffer_load_dwordx4 v[{r}:{r+3}], v9, {srd(SWS)}, s{12+t} offen offset:{hc*64}")
    k("s_lshl_b32 s12, s57, 11")
    k("s_add_u32 s62, s62, s12")
    k(f"s_add_u32 s62, s62, {WS_QX}")
    k(f"s_add_u32 s63, s62, {XRT}")
    if HPOS == 1:
        h_loads_()
    stamp("issued")
    k("s_lshl_b32 s10, s3, 6")
    k("s_sub_u32 s10, 248, s10")
    k("v_lshlrev_b32 v8, 3, v4")
    k("v_sub_u32 v8, s10, v8")
    k("v_lshlrev_b32 v9, 4, v5")
    k("v_xor_b32 v8, v8, v9")
    k("v_lshl_add_u32 v8, v5, 11, v8")
    WF = 80
    for c in range(8):
        base = WF + 8 * (c >> 1) + (c & 1)
        unpack(k, f"v{base}", f"v{base+2}", f"v{WR+2*c}")
        unpack(k, f"v{base+4}", f"v{base+6}", f"v{WR+2*c+1}")
    k("s_lshl_b32 s10, s3, 12")
    k("v_lshlrev_b32 v6, 8, v3")
    k("v_add_u32 v6, s10, v6")
    k("s_lshl_b32 s11, s3, 1")
    for jj in range(2):
        k(f"s_add_u32 s12, s11, {jj}")
        k(f"v_xor_b32 v{14+jj}, s12, v2")
        k(f"v_lshl_add_u32 v{14+jj}, v{14+jj}, 4, v6")
    k("v_lshlrev_b32 v9, 12, v3")
    k("v_lshl_add_u32 v9, v2, 4, v9")
    k("s_lshl_b32 s10, s57, 6")
    k("s_lshl_b32 s11, s3, 4")
    k("s_add_u32 s10, s10, s11")
    k("s_lshl_b32 s10, s10, 12")
    k("s_lshl_b32 s11, s58, 8")
    k("s_sub_u32 s11, 3840, s11")
    k("s_add_u32 s10, s10, s11")
    k.need([f"v{KR}"])
    stamp("Tld")
    if HPOS == 3:
        h_loads_()
    zl0 = [ML(f"buffer_load_dwordx2 v[12:13], v1, {srd(SDBG)}, 0 offen sc1", 1)]
    emit(zl0[0])
    k.srd(SA, 24, WSB)
    KF, VF, OUT = 112, 128, 136
    for cp in range(4):
        for j in range(7):
            unpack(k, f"v{KF+2*j}", f"v{KF+2*j+1}", f"v{KR+4*j+cp}")
        for i in range(4):
            unpack(k, f"v{VF+2*i}", f"v{VF+2*i+1}", f"v{VR+4*i+cp}")
        def P(r):
            return f"v[{r}:{r+1}]"
        for i in range(4):
            k(f"v_pk_mul_f32 {P(OUT+2*i)}, {P(KF+2*i)}, {P(WF+8*cp+6)}")
        for t in (2, 1, 0):
            for i in range(4):
                k(f"v_pk_fma_f32 {P(OUT+2*i)}, {P(KF+2*(i+3-t))}, {P(WF+8*cp+2*t)}, {P(OUT+2*i)}")
        for i in range(4):
            k(f"v_pk_mul_f32 {P(OUT+2*i)}, {P(OUT+2*i)}, {P(VF+2*i)}")
        for h in range(2):
            p = 144 + 2 * h
            k(f"v_cvt_pk_bf16_f32 v{p}, v{OUT+6+h}, v{OUT+4+h}")
            k(f"v_cvt_pk_bf16_f32 v{p+1}, v{OUT+2+h}, v{OUT+h}")
            k(f"ds_write_b64 v8, v[{p}:{p+1}] offset:{(2*cp+h)*256}")
    for t in range(2):
        for hc in range(2):
            r = QT + 8 * t + 4 * hc
            k(f"buffer_store_dwordx4 v[{r}:{r+3}], {VL16}, {srd(SA)}, s{62+t} offen offset:{hc*1024} sc1", tag="kvst")
    k.wait(lg=0)
    k.barrier()
    stamp("kv")
    for j in range(4):
        k(f"ds_read_b128 v[{16+4*j}:{19+4*j}], v{14+(j>>1)} offset:{j*1024}")
    for j in range(4):
        k(f"buffer_store_dwordx4 v[{16+4*j}:{19+4*j}], v9, {srd(SA)}, s10 offen sc1", tag="kvst")
        k("s_add_u32 s10, s10, 16384")
    if HPOS == 2:
        h_loads_()
    k("s_lshl_b32 s12, s60, 1")
    k("v_mov_b32 v9, s12")
    k(f"buffer_load_ushort v11, v9, {srd(SSY)}, 0 offen")
    ffn_ids()
    k("v_mov_b32 v32, 0")
    k("v_mov_b32 v33, 0")
    k("v_lshlrev_b32 v8, 3, v1")
    k("v_add_u32 v8, s61, v8")
    k(f"ds_write_b64 v8, v[32:33] offset:{UOFF+4096}")
    k("v_bfe_u32 v8, v1, 2, 2")
    k(f"v_mul_u32_u24 v8, {CP}, v8")
    k("v_and_b32 v9, 3, v1")
    k("v_lshl_add_u32 v8, v9, 3, v8")
    k("v_add_u32 v8, s61, v8")
    k("ds_write_b64 v8, v[32:33]")
    k(f"v_add_u32 v8, s61, {VL16}")

    def copies(p):
        T = 48 + 12 * (p & 1)
        b = HB + 8 * p
        seq = [f"v{b+2+i}" for i in range(6)]
        off = 32 + p * 1024
        k(f"ds_write_b128 v8, v[{b+4}:{b+7}] offset:{off}")
        for j in range(4):
            k(f"v_alignbyte_b32 v{T+j}, {seq[2+j]}, {seq[1+j]}, 2")
        k(f"ds_write_b128 v8, v[{T}:{T+3}] offset:{off+CP}")
        for j in range(4):
            k(f"v_mov_b32 v{T+4+j}, {seq[1+j]}")
        k(f"ds_write_b128 v8, v[{T+4}:{T+7}] offset:{off+2*CP}")
        for j in range(4):
            k(f"v_alignbyte_b32 v{T+8+j}, {seq[1+j]}, {seq[j]}, 2")
        k(f"ds_write_b128 v8, v[{T+8}:{T+11}] offset:{off+3*CP}")

    poll(zl0, ["v12"], None, sleep=8, nl=1)
    k("v_readfirstlane_b32 s100, v12")
    k("v_readfirstlane_b32 s101, v13")
    k("s_lshl_b32 s10, s56, 2")
    k("s_add_u32 s10, s10, s3")
    k("s_lshl_b32 s10, s10, 7")
    k(f"s_add_u32 s10, s10, {WS_SYNC + SY_GF}")
    k("v_mov_b32 v14, s100"); k("v_mov_b32 v15, s101")
    k.wait_tag("kvst")
    ML(f"buffer_store_dwordx2 v[14:15], v1, {srd(SWS)}, s10 offen sc1", 1)()
    stamp("gf")
    for p in range(4):
        copies(p)
    k("v_sub_u32 v7, 3, v2")
    k("v_and_b32 v7, 3, v7")
    k("v_add3_u32 v8, v2, v7, 1")
    k("v_lshl_add_u32 v8, v3, 3, v8")
    k("v_lshlrev_b32 v8, 1, v8")
    k(f"v_mul_u32_u24 v7, {CP}, v7")
    k("v_add3_u32 v4, v7, v8, s61")
    k("v_lshlrev_b32 v7, 5, v2")
    k("v_lshlrev_b32 v8, 4, v3")
    k("v_sub_u32 v8, v8, v7")
    k(f"v_add_u32 v8, {UOFF+480}, v8")
    k("v_add_u32 v5, s61, v8")
    k("v_lshlrev_b32 v11, 16, v11")
    k("v_lshlrev_b32 v6, 7, v1")
    k("s_lshl_b32 s12, s57, 13")
    k(f"s_add_u32 s12, s12, {WS_SYNC + SY_GF}")
    gl = [f"buffer_load_dwordx2 v[12:13], v6, {srd(SWS)}, s12 offen sc1"]
    k(gl[0])
    poll(gl, ["v12"], None, sleep=1, eq=SN)
    stamp("gp")
    k(f"s_add_u32 m0, s61, {UOFF}")
    k("s_lshl_b32 s12, s60, 12")
    for p in (3, 2, 1, 0):
        k(f"buffer_load_dwordx4 {VL16}, {srd(SWS)}, s12 offen offset:{p*1024} sc1 lds", tag="u")
    AB = [16, 48]
    CACC = 80
    BR = 112

    def rdA(n):
        I = n if n < 8 else n - 8
        L = []
        for r in range(8):
            i = 8 * I + r
            b = AB[n & 1] + 4 * r
            L.append(f"ds_read_b64 v[{b}:{b+1}], v4 offset:{64*i}")
            L.append(f"ds_read_b64 v[{b+2}:{b+3}], v4 offset:{64*i+8}")
        return L

    def bslot(C):
        return C if C < 4 else 7 - C

    def rdB(C):
        return [f"ds_read_b128 v[{BR+32*bslot(C)+4*r}:{BR+32*bslot(C)+4*r+3}], v5 offset:{64*(56-(8*C-r))}" for r in range(8)]

    k("v_lshlrev_b32 v6, 3, v3")
    k("v_add_u32 v6, v6, v2")
    k("v_sub_u32 v6, 15, v6")
    k("v_lshrrev_b32 v7, 16, v11")
    k("v_and_b32 v8, 1, v6")
    k("v_cmp_eq_u32 vcc, 1, v8")
    k("v_cndmask_b32 v7, v7, v11, vcc")
    k("v_ashrrev_i32 v6, 1, v6")
    for d in range(4):
        k(f"v_cmp_eq_u32 vcc, {d}, v6")
        k("v_cndmask_b32 v8, 0, v7, vcc")
        k(f"v_accvgpr_write_b32 a{240+d}, v8")
    STG = [2112, CP + 2112]
    SBQ = [240, BR + 8]
    QB = [248, BR]
    k("s_lshl_b32 s10, s3, 11")
    k("v_lshlrev_b32 v6, 3, v1")
    k("v_add_u32 v6, s10, v6")
    k(f"v_mul_u32_u24 v7, {XRT}, v3")
    k("v_lshl_add_u32 v7, v2, 4, v7")
    k(f"s_mul_i32 s57, s3, {16*XRT}")
    k("s_lshr_b32 s10, s56, 1")
    k("s_lshl_b32 s10, s10, 8")
    k("s_add_u32 s57, s57, s10")
    k("s_and_b32 s10, s56, 1")
    k("s_lshl_b32 s10, s10, 3")
    k("s_add_u32 s57, s57, s10")
    k(f"s_mul_i32 s58, s3, {8*XBLK}")
    k("s_lshl_b32 s10, s56, 8")
    k("s_add_u32 s58, s58, s10")
    k("s_mul_i32 s59, s3, 160")
    k("s_add_u32 s59, s59, s56")
    k("s_lshl_b32 s59, s59, 7")
    k(f"s_add_u32 s59, s59, {SY_CF}")
    pcl = wpoll_setup("v0")
    k("s_lshl_b32 s10, s3, 11")
    k(f"s_add_u32 s62, s10, {SY_PF}")
    k("s_cmp_ge_u32 s3, 2")
    k(f"s_mov_b32 s10, 8192")
    k(f"s_cmov_b32 s10, {(8192 - 96*128) & 0xffffffff:#x}")
    k("v_mul_lo_u32 v8, v3, s10")
    k("v_lshl_add_u32 v8, v2, 7, v8")
    k("v_add_u32 v8, s62, v8")
    qfl = [ML(f"buffer_load_dwordx2 v[12:13], v8, {srd(SSY)}, 0 offen sc1", 32)]

    def q_ld(hf):
        L = [f"s_mov_b32 s13, {WS_QST + hf*8192}"]
        for it in range(4):
            L += [f"buffer_load_dwordx2 v[{SBQ[hf]+2*it}:{SBQ[hf]+2*it+1}], v6, {srd(SWS)}, s13 offen offset:{it*512} sc1",
                  f"s_add_u32 s12, s57, {WS_QX + (64*hf + 4*it)*XRT}",
                  f"buffer_load_dwordx2 v[{QB[hf]+2*it}:{QB[hf]+2*it+1}], v7, {srd(SWS)}, s12 offen sc1"]
        return L

    def addr2():
        return ["v_lshlrev_b32 v11, 5, v2", "v_lshl_add_u32 v11, v3, 3, v11", "v_add_u32 v11, s61, v11",
                "v_bfe_u32 v8, v1, 2, 2", f"v_mul_u32_u24 v8, {WREG}, v8", "v_and_b32 v9, 3, v1",
                "v_lshl_add_u32 v8, v9, 3, v8", "v_lshl_add_u32 v8, v3, 5, v8", "s_lshl_b32 s10, s3, 9",
                f"s_add_u32 s10, s10, {CB}", "v_add_u32 v8, s10, v8",
                "v_and_b32 v0, 1, v3", "v_lshrrev_b32 v9, 1, v3", "v_lshl_add_u32 v9, v0, 1, v9",
                f"v_mul_u32_u24 v9, {XBLK}, v9", "v_lshl_add_u32 v9, v2, 4, v9"]

    def stage_blk(c):
        a_ = CACC + 4 * c
        return [f"v_cvt_pk_bf16_f32 v{a_}, v{a_}, v{a_+1}", f"v_cvt_pk_bf16_f32 v{a_+1}, v{a_+2}, v{a_+3}",
                f"ds_write_b64 v11, v[{a_}:{a_+1}] offset:{STG[c>>2] + (c&3)*512}"]

    def sync():
        k.wait(lg=0)
        k.barrier()

    def out_half(hf, YB, XO, T):
        L = [f"ds_read_b64_tr_b16 v[{YB+2*it}:{YB+2*it+1}], v8 offset:{STG[hf] + it*128}" for it in range(4)]
        for it in range(4):
            y0, q0, st = YB + 2 * it, QB[hf] + 2 * it, SBQ[hf] + 2 * it
            for d in range(2):
                L += [f"v_lshlrev_b32 v{T+2}, 16, v{q0+d}", f"v_and_b32 v{T+3}, 0xffff0000, v{q0+d}",
                      f"v_lshlrev_b32 v{T}, 16, v{y0+d}", f"v_and_b32 v{T+1}, 0xffff0000, v{y0+d}",
                      f"v_fma_f32 v{T+4}, v{T+2}, v{st+1}, -v{st}", f"v_fma_f32 v{T+5}, v{T+3}, v{st+1}, -v{st}",
                      f"v_fmac_f32 v{T+2}, v{T+4}, v{T}", f"v_fmac_f32 v{T+3}, v{T+5}, v{T+1}",
                      f"v_cvt_pk_bf16_f32 v{XO+2*it+d}, v{T+2}, v{T+3}"]
            if it & 1:
                for o, base in ((YB + 2 * (it - 1), WS_Y), (XO + 2 * (it - 1), WS_X1)):
                    L += [f"v_permlane16_swap_b32 v{o}, v{o+2}", f"v_permlane16_swap_b32 v{o+1}, v{o+3}",
                          f"s_add_u32 s12, s58, {base + (32*hf + (it-1)*2)*XBLK}",
                          (f"buffer_store_dwordx4 v[{o}:{o+3}], v9, {srd(SWS)}, s12 offen sc1", f"cst{hf}")]
        return L

    wl = []
    for p in range(6):
        wl += wgu_dma(p)
    for i in range(NE1):
        wl += wd_load(i)
    k.wait(lg=0)
    a0, b0 = rdA(0), rdB(0)
    for x in a0:
        k(x)
    k.wait_tag("u")
    stamp("ready")
    for x in b0:
        k(x)
    started = set()
    early = []
    side = []
    tot = 0
    for n in range(12):
        I = n if n < 8 else n - 8
        Cs = [C for C in (range(4) if n < 8 else range(4, 8)) if C + I <= 7]
        pend = rdA(n + 1) if n < 11 else []
        bpend = {5: rdB(4), 6: rdB(5), 7: rdB(6), 8: rdB(7)}.get(n) or []
        nm = 8 * len(Cs)
        cnt = 0
        if n == PPN - 1:
            emit(pcl[0])
        if n == PPN:
            poll(pcl, ["v12"], None, sleep=1, nl=16, eq=SN)
            stamp("pp")
        if n == QPN - 2:
            early = list(qfl)
        if n == 6:
            side += addr2()[:3]
        if n == QPN:
            poll(qfl, ["v12"], None, sleep=1, nl=32, eq=SN)
            early = q_ld(0)
            side += addr2()[3:]
        if n == 7:
            for c in range(4):
                side += stage_blk(c)
            side += [sync] + out_half(0, CACC + 2, CACC + 10, 12) if False else [sync]
        if n == 9:
            early = early + q_ld(1)
            side += out_half(0, CACC, CACC + 8, BR + 16) + stage_blk(4)
        if n == 10:
            side += stage_blk(5)
        if n == 11:
            side += stage_blk(6)
        for C in Cs:
            c = C + I
            nb = rdB(C + 1) if (n == 0 and C < 3) else []
            for r in range(8):
                if nb:
                    k(nb.pop(0))
                a = AB[n & 1] + 4 * r
                b = BR + 32 * bslot(C) + 4 * r
                acc = f"v[{CACC+4*c}:{CACC+4*c+3}]"
                src = acc if c in started else "0"
                started.add(c)
                k(f"v_mfma_f32_16x16x32_bf16 {acc}, v[{a}:{a+3}], v[{b}:{b+3}], {src}")
                if I == 0 and r == 0:
                    k(f"v_mfma_f32_16x16x32_bf16 {acc}, a[240:243], v[{b}:{b+3}], {acc}")
                cnt += 1
                tot += 1
                while pend and (16 - len(pend)) * max(nm - 4, 4) < cnt * 16:
                    k(pend.pop(0))
                if bpend and cnt % 2 == 0:
                    k(bpend.pop(0))
                if early:
                    if tot % 2 == 0:
                        emit_one_vmem(early)
                elif n >= PPN and tot % EVERY == 0 and tot <= LASTW:
                    emit_one_vmem(wl)
                for _ in range(2):
                    if side and not (early and isinstance(side[0], str) and side[0].startswith("s_add_u32 s12")):
                        x = side.pop(0)
                        emit(x)
                        if isinstance(x, str) and x.startswith("s_add_u32 s12"):
                            emit(side.pop(0))
        for x in pend + bpend:
            k(x)
    stamp("mfma")
    for x in early + stage_blk(7) + side:
        emit(x)
    sync()
    for x in out_half(1, 16, 24, 32):
        emit(x)
    stamp("cst")
    k.wait_tag("cst0")
    ML(f"buffer_store_dwordx2 v[14:15], v1, {srd(SSY)}, s59 offen sc1", 1)()
    k(f"s_add_u32 s59, s59, {4*160*128}")
    for _ in range(NB):
        emit_one_vmem(wl)
    k.wait_tag("cst1")
    ML(f"buffer_store_dwordx2 v[14:15], v1, {srd(SSY)}, s59 offen sc1", 1)()
    stamp("cf")
    print("weight loads after cf:", sum(1 for x in wl if isvm(x)))
    for x in wl:
        emit(x)
    k.wait(lg=0)
    k.flush_hazards()
    k.branch("s_branch main_join", flush=False)

    k.label("main_prep", flush=False)
    k.vm, k.lg = list(saved0[0]), list(saved0[1])
    k.haz_restore(snap0)
    k("s_or_b32 s10, s2, s3")
    k("s_cmp_lg_u32 s10, 0")
    k.branch("s_cbranch_scc1 main_nonce_done", flush=False)
    snap1 = k.haz_snapshot()
    k("s_memrealtime s[56:57]")
    k("s_or_b32 s56, s56, 1")
    k("v_mov_b32 v12, s56")
    k("v_mov_b32 v13, s57")
    ML(f"buffer_store_dwordx2 v[12:13], v1, {srd(SDBG)}, 0 offen sc1", 1)()
    k.flush_hazards()
    k.label("main_nonce_done", flush=False)
    k.haz_restore(snap1)
    k.vm, k.lg = list(saved0[0]), list(saved0[1])
    k("s_and_b32 s10, s2, 1")
    k("s_lshl_b32 s10, s10, 3")
    k("s_add_u32 s10, s10, 56")
    k("s_cmp_lt_u32 s2, 64")
    k("s_cselect_b32 s10, s10, 72")
    k(f"s_load_dwordx2 s[{SA}:{SA+1}], s[0:1], s10")
    k(f"s_mov_b32 s{SA+2}, {D*F*2}")
    k(f"s_mov_b32 s{SA+3}, 0x00020000")
    k(f"v_mov_b32 v14, {OOB:#x}")
    k("s_mov_b32 s58, 0x05040100")
    k("s_mov_b32 s59, 0x07060302")
    k("v_mov_b32 v12, 0x3f803f80")
    ffn_ids()
    k("v_mov_b32 v244, 0")
    zl = [ML(f"buffer_load_dwordx2 v[246:247], v1, {srd(SDBG)}, 0 offen sc1", 1)]

    def q_job():
        if QTOUCH:
            k.srd(SB, 26, S * D * 2)
            k(f"s_mul_i32 s12, s2, {XRT}")
            k("v_lshlrev_b32 v204, 7, v0")
            k("v_cmp_gt_u32 vcc, 160, v0")
            k("v_cndmask_b32 v204, v14, v204, vcc")
            k(f"buffer_load_dword v250, v204, {srd(SB)}, s12 offen")
            k(f"s_add_u32 s12, s12, {96*XRT}")
            k(f"buffer_load_dword v251, v204, {srd(SB)}, s12 offen")
        emit(zl[0])
        for i in range(4):
            k(f"v_mov_b32 v{240+i}, 0")
        k.srd(SB, 24, SY_HF, WS_SYNC)
        k("s_lshl_b32 s12, s2, 13")
        k("v_lshlrev_b32 v204, 4, v0")
        for i in range(2):
            k(f"buffer_store_dwordx4 v[240:243], v204, {srd(SB)}, s12 offen sc1")
            k("s_add_u32 s12, s12, 4096")

    QR = 80

    def QW(i):
        return 16 + i if i < 64 else 224 + (i - 64)

    def q_loads():
        k.srd(SB, 26, S * D * 2)
        k("s_mul_i32 s57, s3, 96")
        k("s_add_u32 s57, s57, s2")
        k(f"s_mul_i32 s56, s57, {XRT}")
        k("s_cmp_lt_u32 s57, 128")
        k("s_cselect_b32 s63, 0, 0x40000000")
        k("s_add_u32 s56, s56, s63")
        k("s_lshl_b32 s57, s57, 7")
        k("s_add_u32 s57, s57, s63")
        k(f"s_add_u32 s57, s57, {WS_QST}")
        k("v_mul_u32_u24 v11, 1280, v2")
        k("v_lshl_add_u32 v11, v3, 4, v11")
        for i in range(20):
            k(f"buffer_load_dwordx4 v[{QW(4*i)}:{QW(4*i)+3}], v11, {srd(SB)}, s56 offen offset:{64*i}")

    def q_stats():
        k("v_mov_b32 v200, 0")
        k("v_mov_b32 v201, 0")
        for i in range(80):
            k(f"v_dot2c_f32_bf16 v200, a{i}, v12") if False else None
        for i in range(80):
            k(f"v_dot2c_f32_bf16 v200, v{QW(i)}, v12")
            k(f"v_dot2c_f32_bf16 v201, v{QW(i)}, v{QW(i)}")
        for v in ("v200", "v201"):
            xsum16(k, v, "v205")
            xsum32(k, v, "v205")
        k(f"v_mul_f32 v200, {f2u(1.0/D)}, v200")
        k(f"v_mul_f32 v201, {f2u(1.0/D)}, v201")
        k("v_fma_f32 v201, -v200, v200, v201")
        k("v_max_f32 v201, 0, v201")
        k(f"v_add_f32 v201, {f2u(EPS)}, v201")
        k("v_rsq_f32 v203, v201")
        k("v_mul_f32 v202, v200, v203")
        k("v_lshlrev_b32 v205, 3, v1")
        ML(f"buffer_store_dwordx2 v[202:203], v205, {srd(SWS)}, s57 offen sc1", 16)()

    def q_flag():
        poll(zl, ["v246"], None, sleep=1, nl=1)
        k("v_readfirstlane_b32 s100, v246")
        k("v_readfirstlane_b32 s101, v247")

    def item_idx(magic, n):
        for ps in range(2):
            o, ch = f"v{4+2*ps}", f"v{5+2*ps}"
            k(f"v_add_u32 v8, {256*ps}, v0")
            k(f"v_mul_u32_u24 {o}, {magic}, v8")
            k(f"v_lshrrev_b32 {o}, 16, {o}")
            k(f"v_mul_u32_u24 {ch}, {n}, {o}")
            k(f"v_sub_u32 {ch}, v8, {ch}")

    def item_loads(pitch):
        k(f"v_mul_u32_u24 v8, {8*pitch}, v4")
        k("v_lshl_add_u32 v8, v5, 4, v8")
        k(f"v_mul_u32_u24 v9, {8*pitch}, v6")
        k("v_lshl_add_u32 v9, v7, 4, v9")
        k("v_cmp_gt_u32 vcc, 224, v0")
        k("v_cndmask_b32 v9, v14, v9, vcc")
        stamp("issued")
        for ps in range(2):
            k("s_mov_b32 s11, s10")
            for i in range(8):
                k(f"buffer_load_dwordx4 v[{16+32*ps+4*i}:{19+32*ps+4*i}], v{8+ps}, {srd(SA)}, s11 offen{NT}")
                if i < 7:
                    k(f"s_add_u32 s11, s11, {pitch}")
        stamp("Tld")
        q_job()

    def stage(magic, sh, n, blk, opart, pairb, npair, second, setup, copy):
        for ps in range(2):
            o, ch = f"v{4+2*ps}", f"v{5+2*ps}"
            k(f"v_mul_u32_u24 v161, {magic}, {ch}")
            k(f"v_lshrrev_b32 v161, {sh}, v161")
            k(f"v_mul_u32_u24 v162, {n}, v161")
            k(f"v_sub_u32 {ch}, {ch}, v162")
            opart(o)
            k(f"v_mul_u32_u24 v161, {blk}, v161")
            k("v_add_u32 v160, v160, v161")
            k(f"v_lshrrev_b32 v161, 2, {ch}")
            k(f"v_mul_u32_u24 v161, {pairb}, v161")
            k("v_add_u32 v160, v160, v161")
            k(f"v_and_b32 v161, 3, {ch}")
            k("v_lshlrev_b32 v162, 6, v161")
            k("v_lshlrev_b32 v163, 7, v161")
            k(f"v_cmp_gt_u32 vcc, {npair}, {ch}")
            k("v_cndmask_b32 v162, v163, v162, vcc")
            k(f"v_add_u32 {o}, v160, v162")
            k("v_mov_b32 v162, 64")
            k(f"v_mov_b32 v163, {second}")
            k("v_cndmask_b32 v162, v162, v163, vcc")
            k(f"v_add_u32 {ch}, {o}, v162")
        k("v_cmp_gt_u32 vcc, 224, v0")
        k("v_mov_b32 v160, 61440")
        k("v_cndmask_b32 v6, v160, v6, vcc")
        k("v_cndmask_b32 v7, v160, v7, vcc")
        setup()
        for ps in range(2):
            src = 16 + 32 * ps
            for e in range(8):
                o = 160 + 4 * e
                for p in range(4):
                    k(f"v_perm_b32 v{o+p}, v{src+4*(2*p+1)+e//2}, v{src+4*(2*p)+e//2}, s{58+(e&1)}")
                k(f"ds_write_b128 v{4+2*ps+(e>>2)}, v[{o}:{o+3}] offset:{(e&3)*16}")
            if ps:
                q_loads()
            k.wait(lg=0)
            k.barrier()
            if ps:
                stamp("mfma")
            copy(ps)
        q_flag()


    k("s_cmp_ge_u32 s2, 64")
    k.branch("s_cbranch_scc1 main_prep_wd", flush=False)
    sv = (list(k.vm), list(k.lg))
    snap2 = k.haz_snapshot()
    item_idx(2731, 24)
    k("s_bfe_u32 s60, s2, 0x30001")
    k("s_lshr_b32 s61, s2, 4")
    k(f"s_mul_i32 s10, s61, {160*3072}")
    k("s_mul_i32 s11, s60, 384")
    k("s_add_u32 s10, s10, s11")
    item_loads(3072)

    def op_wgu(o):
        k(f"v_lshrrev_b32 v160, 2, {o}")
        k("v_mul_u32_u24 v160, 3072, v160")
        k(f"v_and_b32 v162, 3, {o}")
        k("v_lshl_add_u32 v160, v162, 8, v160")

    def su_wgu():
        k("s_mul_i32 s13, s3, 15360")
        k(f"v_add_u32 v8, s13, {VL16}")
        k("s_lshl_b32 s62, s60, 2")
        k("s_add_u32 s62, s62, s3")
        k(f"s_mul_i32 s10, s62, {WGU_M}")
        k("s_mul_i32 s11, s61, 30720")
        k("s_add_u32 s10, s10, s11")
        k("s_and_b32 s13, s2, 1")
        k("s_mul_i32 s11, s13, 3072")
        k("s_add_u32 s10, s10, s11")
        k(f"s_add_u32 s10, s10, {WS_WGU}")
        for t in range(3):
            k(f"v_mov_b32 v{196+t}, 0")

    def cp_wgu(ps):
        js = range(6) if ps == 0 else range(6, 15)
        for j in js:
            k(f"ds_read_b128 v[{80+4*j}:{83+4*j}], v8 offset:{j*1024}")
        for j in js:
            k(f"buffer_store_dwordx4 v[{80+4*j}:{83+4*j}], {VL16}, {srd(SWS)}, s10 offen offset:{(j%3)*1024} sc1")
            if j % 3 == 2:
                k("s_add_u32 s10, s10, 6144")
            for p in range(4):
                k(f"v_dot2c_f32_bf16 v{196+j%3}, v{80+4*j+p}, v12")
    stage(43, 8, 6, 15360, op_wgu, 2048, 4, 1024, su_wgu, cp_wgu)
    for t in range(3):
        k(f"v_mov_b32 v{5+t}, v{196+t}")
    for t in range(3):
        xsum16(k, f"v{5+t}", "v8")
        xsum32(k, f"v{5+t}", "v8")
    k("v_cmp_eq_u32 vcc, 1, v3")
    k("v_cndmask_b32 v5, v5, v6, vcc")
    k("v_cmp_eq_u32 vcc, 2, v3")
    k("v_cndmask_b32 v5, v5, v7, vcc")
    k("v_lshlrev_b32 v6, 2, v1")
    k("v_cmp_gt_u32 vcc, 48, v1")
    k("v_cndmask_b32 v6, v14, v6, vcc")
    k("s_lshl_b32 s10, s62, 11")
    k("s_lshl_b32 s11, s61, 9")
    k("s_add_u32 s10, s10, s11")
    k("s_mul_i32 s11, s13, 192")
    k("s_add_u32 s10, s10, s11")
    k(f"s_add_u32 s10, s10, {WS_CS}")
    k(f"buffer_store_dword v5, v6, {srd(SWS)}, s10 offen sc1")

    q_stats()
    k.wait(vm=0)
    k.flush_hazards()
    k.branch("s_branch main_prep_pub", flush=False)
    k.label("main_prep_wd", flush=False)
    k.vm, k.lg = sv
    k.haz_restore(snap2)
    item_idx(820, 80)
    k("s_sub_u32 s60, s2, 64")
    k(f"s_mul_i32 s10, s60, {48*1280}")
    item_loads(1280)

    def op_wd(o):
        k(f"v_lshlrev_b32 v160, 8, {o}")

    def su_wd():
        k("s_mul_i32 s13, s3, 15360")
        k(f"v_add_u32 v8, s13, {VL16}")
        k("s_mul_i32 s11, s60, 6")
        k("v_cmp_gt_u32 vcc, 3, v3")
        for ps, v in enumerate(("v196", "v197")):
            k(f"v_add3_u32 {v}, v3, s11, {3*ps}")
            k(f"v_lshrrev_b32 v13, 2, {v}")
            k("v_mul_u32_u24 v13, 5120, v13")
            k(f"v_and_b32 {v}, 3, {v}")
            k(f"v_lshl_add_u32 {v}, {v}, 8, v13")
            k(f"v_lshl_add_u32 {v}, v2, 4, {v}")
            k(f"v_cndmask_b32 {v}, v14, {v}, vcc")
        k(f"s_mul_i32 s10, s3, {2*48*5120}")
        k(f"s_add_u32 s10, s10, {WS_WD}")

    def cp_wd(ps):
        R = 80 + 40 * ps
        for j in range(10):
            k(f"ds_read_b128 v[{R+4*j}:{R+4*j+3}], v8 offset:{(j//5)*7680 + (j%5)*1536 + ps*768}")
        for j in range(10):
            k(f"s_add_u32 s11, s10, {(j//5)*48*5120 + (j%5)*1024}")
            k(f"buffer_store_dwordx4 v[{R+4*j}:{R+4*j+3}], v{196+ps}, {srd(SWS)}, s11 offen sc1")
    stage(205, 11, 10, 7680, op_wd, 3072, 8, 1536, su_wd, cp_wd)

    q_stats()
    k.wait(vm=0)
    k.flush_hazards()
    k.label("main_prep_pub", flush=False)
    k.barrier()
    k("s_lshl_b32 s10, s2, 7")
    k(f"s_add_u32 s10, s10, {SY_PF}")
    k("s_cmp_eq_u32 s3, 0")
    k("s_cselect_b32 s10, s10, 0x40000000")
    k("v_mov_b32 v204, 0")
    ML(f"buffer_store_dwordx2 v[246:247], v1, {srd(SSY)}, s10 offen sc1", 1)()
    stamp("cf")
    stamp("cst")
    pl = wpoll_setup("v8")
    emit(pl[0])
    poll(pl, ["v12"], None, sleep=1, nl=16, eq=SN)
    stamp("pp")
    for p in range(10):
        for x in wgu_dma(p):
            emit(x)
    for i in range(NEP):
        for x in wd_load(i):
            emit(x)
    k.wait(lg=0)
    k.flush_hazards()

    k.label("main_join", flush=False)
    k.vm = [(set(), "unk")] * 63
    k("s_load_dwordx2 s[26:27], s[0:1], 80")
    k(f"v_add_u32 {VL16B}, 61440, {VL16}")
    k.srd(SX, 24, XSPAN + XFB, WS_X1)
    k.srd(SH, 24, HSPAN + HFB, WS_H)
    k.srd(SY_, 24, XFB, WS_Y)
    k(f"s_mul_i32 s56, s15, {HRT}")
    k("s_mul_i32 s10, s5, 1536")
    k("s_add_u32 s56, s56, s10")
    k("s_mul_i32 s10, s3, 12288")
    k(f"s_mul_i32 s57, s16, {HRT}")
    k("s_add_u32 s57, s57, s10")
    k("s_xor_b32 s11, s16, 1")
    k(f"s_mul_i32 s58, s11, {HRT}")
    k("s_add_u32 s58, s58, s10")
    k(f"s_mul_i32 s59, s16, {XRT}")
    k("s_mul_i32 s10, s8, 2560")
    k("s_add_u32 s59, s59, s10")
    k("v_and_b32 v204, 1, v3")
    k("v_lshrrev_b32 v205, 1, v3")
    k(f"v_mul_u32_u24 {VH2}, {HRT}, v204")
    k("v_lshlrev_b32 v206, 4, v2")
    k("v_lshl_add_u32 v206, v205, 8, v206")
    k(f"v_add_u32 {VH2}, {VH2}, v206")
    k(f"v_lshl_add_u32 {VT4}, v204, 3, v206")
    k("s_lshl_b32 s10, s14, 31")
    k(f"v_or_b32 {VT4S}, s10, {VT4}")
    k("s_lshl_b32 s10, s16, 4")
    k(f"v_add_u32 {VROW}, s10, v2")
    k(f"v_lshlrev_b32 {VGR}, 3, v2")
    k("v_cmp_eq_u32 vcc, 0, v3")
    k(f"v_mov_b32 v204, {OOB:#x}")
    k(f"v_cndmask_b32 {VGW}, v204, {VGR}, vcc")
    k(f"v_lshl_add_u32 {VQ128}, v3, 7, {VGR}")
    k(f"v_lshl_add_u32 {VGR}, v3, 9, {VGR}")
    k("v_cmp_eq_u32 vcc, 0, v1")
    k(f"v_cndmask_b32 {VFLAG}, v204, v1, vcc")
    k("s_lshl_b32 s10, s4, 3")
    k("s_add_u32 s10, s10, s7")
    k("s_lshl_b32 s10, s10, 5")
    k("s_lshl_b32 s11, s3, 3")
    k("s_add_u32 s10, s10, s11")
    k(f"v_and_b32 {VFPOLL}, 7, v1")
    k(f"v_add_u32 {VFPOLL}, s10, {VFPOLL}")
    k(f"v_lshlrev_b32 {VFPOLL}, 7, {VFPOLL}")
    k(f"v_lshlrev_b32 {VXP}, 4, v2")
    k(f"v_lshl_add_u32 {VXP}, v3, 9, {VXP}")
    k("s_lshr_b32 s10, s16, 1")
    k(f"s_mul_i32 s62, s10, {XBLK}")
    k("s_mul_i32 s10, s8, 5120")
    k("s_add_u32 s62, s62, s10")
    k("s_lshl_b32 s10, s9, 3")
    k("s_add_u32 s62, s62, s10")
    k("s_lshr_b32 s10, s5, 2")
    k("s_lshl_b32 s11, s4, 3")
    k("s_add_u32 s63, s10, s11")
    k(f"s_mul_i32 s60, s63, {XBLK}")
    k("s_mul_i32 s10, s3, 10240")
    k("s_add_u32 s60, s60, s10")
    k("s_and_b32 s61, s5, 3")
    k("s_lshl_b32 s10, s61, 6")
    k("s_add_u32 s60, s60, s10")
    k("v_and_b32 v188, 3, v1")
    k("v_lshrrev_b32 v189, 2, v1")
    k("v_lshlrev_b32 v189, 8, v189")
    k("v_lshl_add_u32 v189, v188, 4, v189")
    k("v_cmp_gt_u32 vcc, 32, v1")
    k("v_cndmask_b32 v190, v204, v189, vcc")
    k("s_lshl_b32 s10, s5, 11")
    k(f"s_add_u32 s10, s10, {WS_CS}")
    k("v_lshlrev_b32 v197, 3, v1")
    for i in range(4):
        k(f"buffer_load_dwordx2 v[{208+2*i}:{209+2*i}], v197, {srd(SWS)}, s10 offen offset:{i*512} sc1")
    k.srd(SO, 26, XFB)
    k("s_mul_i32 s10, s4, 160")
    k("s_mul_i32 s11, s3, 40")
    k("s_add_u32 s10, s10, s11")
    k("s_lshl_b32 s10, s10, 7")
    k(f"s_add_u32 s10, s10, {SY_CF}")
    k("s_mul_i32 s11, s3, 3072")
    k(f"s_add_u32 s11, s11, {SY_PF - 40*128}")
    k("v_mov_b32 v205, s10")
    k("v_mov_b32 v206, s11")
    k("v_cmp_gt_u32 vcc, 40, v1")
    k("v_cndmask_b32 v205, v206, v205, vcc")
    k("v_lshl_add_u32 v205, v1, 7, v205")
    k(f"v_add_u32 v197, {LC}, v197")
    k("v_pk_add_f32 v[208:209], v[208:209], v[210:211]")
    k("v_pk_add_f32 v[212:213], v[212:213], v[214:215]")
    k("v_pk_add_f32 v[208:209], v[208:209], v[212:213]")
    k(f"s_cmp_ge_u32 s2, {NPREP}")
    k.branch("s_cbranch_scc1 main_nogate", flush=False)
    svg = (list(k.vm), list(k.lg))
    snap3 = k.haz_snapshot()
    c1 = [ML(f"buffer_load_dwordx2 v[206:207], v205, {srd(SSY)}, 0 offen sc1", 1)]
    emit(c1[0])
    poll(c1, ["v206"], None, sleep=6, nl=1, eq=SN)
    k.flush_hazards()
    k.label("main_nogate", flush=False)
    k.vm, k.lg = svg
    k.haz_restore(snap3)
    cl = [f"buffer_load_dwordx2 v[206:207], v205, {srd(SSY)}, 0 offen sc1"]
    emit(cl[0])
    poll(cl, ["v206"], None, sleep=1, eq=SN)
    k.vm = []
    k.barrier()
    stamp("join")
    k("ds_write_b64 v197, v[208:209]")
    for kk in range(4):
        for x in x_loads(0, 0, kk, 2 * kk):
            emit(x)
    SR = 192
    for i in range(3):
        k(f"s_add_u32 s12, s60, {i*4096}")
        k(f"buffer_load_dwordx4 v[{SR+4*i}:{SR+4*i+3}], v{189 if i < 2 else 190}, {srd(SX)}, s12 offen sc1")
    for kk in range(4, DIST):
        for x in x_loads(0, 0, kk, 2 * kk):
            emit(x)

    k("s_lshl_b32 s10, s3, 13")
    k(f"s_add_u32 s10, s10, {LR}")
    k(f"v_add_u32 {VRW}, s10, {VL16}")
    k("s_cmp_eq_u32 s14, 0")
    k("s_cselect_b32 s26, 1.0, 0")
    k("s_mov_b32 s27, s26")
    k("s_lshl_b32 s60, s16, 4")
    k("s_lshl_b32 s13, s8, 1")
    k("s_add_u32 s60, s60, s13")
    k("s_add_u32 s60, s60, s14")
    k("s_lshl_b32 s60, s60, 7")

    def phase_s():
        for r in range(2):
            s_, q_ = TMP + 2 * r, TMP + 2 * r + 1
            first = True
            for i in range(3):
                for d in range(2):
                    unpack(k, "v204", "v205", f"v{SR+4*i+2*r+d}")
                    if first:
                        k(f"v_add_f32 v{s_}, v204, v205")
                        k(f"v_mul_f32 v{q_}, v204, v204")
                        first = False
                    else:
                        k(f"v_add_f32 v{s_}, v{s_}, v204")
                        k(f"v_add_f32 v{s_}, v{s_}, v205")
                        k(f"v_fmac_f32 v{q_}, v204, v204")
                    k(f"v_fmac_f32 v{q_}, v205, v205")
        for v in range(TMP, TMP + 4):
            k(f"v_add_f32_dpp v{v}, v{v}, v{v} row_ror:4 row_mask:0xf bank_mask:0xf")
        for v in range(TMP, TMP + 4):
            k(f"v_add_f32_dpp v{v}, v{v}, v{v} row_ror:8 row_mask:0xf bank_mask:0xf")
        for v in range(TMP, TMP + 4):
            xsum16(k, f"v{v}", "v204")
            xsum32(k, f"v{v}", "v204")
        k(f"v_or_b32 v{TMP+1}, 0x80000000, v{TMP+1}")
        k(f"v_or_b32 v{TMP+3}, 0x80000000, v{TMP+3}")
        k("s_lshl_b32 s12, s63, 3")
        k("s_add_u32 s12, s12, s3")
        k("s_lshl_b32 s12, s12, 7")
        k("s_lshl_b32 s13, s61, 5")
        k("s_add_u32 s12, s12, s13")
        k(f"s_add_u32 s12, s12, {SY_ST1}")
        k("v_lshlrev_b32 v204, 3, v1")
        set_exec(4)
        k(f"buffer_store_dwordx2 v[{TMP}:{TMP+1}], v204, {srd(SSY)}, s12 offen sc1")
        k(f"buffer_store_dwordx2 v[{TMP+2}:{TMP+3}], v204, {srd(SSY)}, s12 offen offset:512 sc1")
        k("s_mov_b64 exec, -1")

    sched = {}
    wi = NE1
    for kk in range(20):
        L = []
        if kk < 4:
            L += wgu_dma(6 + kk)
        if kk + DIST < 20:
            L += x_loads(0, 0, kk + DIST, 2 * (kk + DIST))
        else:
            kb = kk + DIST - 20
            L += x_loads(0, 1, kb, 40 + 2 * kb)
        if kk >= 20 - NWA and wi < 60:
            L += wd_load(wi)
            wi += 1
        if kk == 2:
            L = [phase_s] + L
        if kk == 14:
            L = st1_loads(0, TMP + 24) + L
        sched[kk] = L
    g1_main(0, sched, first=True, xp=True)
    stamp("g1a")
    stats1(0, STA)

    def take(n):
        nonlocal wi
        L = []
        for _ in range(n):
            if wi < 60:
                L += wd_load(wi)
                wi += 1
        return L
    g1_epilogue(0, 0, STA, take(NWE1))
    stamp("e1a")
    extra = {}
    for kk in range(12):
        extra[kk] = take((NWB * (kk + 1)) // 12 - (NWB * kk) // 12)
    extra[12] = st1_loads(1, TMP + 24) + res_loads(0)
    sched, rest = g1b_sched(0, extra)
    g1_main(40, sched, xp=True)
    stamp("g1b")
    for L in rest:
        for x in L:
            emit(x)
    stats1(1, STB)
    g1_epilogue(0, 1, STB, take(NWE2))
    print('Wd loads left for G2(A):', 60 - wi)
    stamp("e1b")

    NH0 = int(os.environ.get("NH0", "5"))

    def g2a(layer):
        sc = {kk: take(5) for kk in range(12)}
        assert wi == 60
        sc[HFK] = sc[HFK] + [lambda: h_flag(layer, 1)]
        sc[HPK] = sc[HPK] + h_poll_loads(layer, 1)
        g2_main(80, sc, X1R[0], X2[0])
        stamp(f"g2a{layer}")

        def mid():
            h_poll(layer, 1)
            stamp(f"ph{layer}")
            for kk in range(NH0):
                for x in h_loads(layer, 1, kk, 2 * kk):
                    emit(x)
        g2_reduce(X2[0], mid)

    def g2b_sched(layer, extra):
        sched = {}
        for kk in range(12):
            L = []
            if kk + NH0 < 12:
                L += h_loads(layer, 1, kk + NH0, 2 * (kk + NH0))
            sched[kk] = L + extra.get(kk, [])
        return sched

    g2a(0)
    part_stats(X2[0], 0, SY_ST2)
    stamp("r2a")

    def fin_a():
        finalize(0, X2[0], G2R)
        part_calc(X2[0], 244)
    g2_main(0, g2b_sched(0, {2: res_loads(1), FK - 3: st2_loads(0, G2R), FK: [fin_a]}), X1R[1], X2[1])
    stamp("g2b")
    g2_reduce(X2[1], lambda: part_pub(244, 0, SY_ST3, pre_wait="xst"))
    part_stats(X2[1], 1, SY_ST2)
    stamp("s3a")
    for x in st3_loads(0, TMP):
        emit(x)
    stats3(0, STA)
    stamp("p3a")
    for kk in range(DIST):
        for x in x_loads(1, 0, kk, 2 * kk):
            emit(x)
        if kk == 3:
            for x in st2_loads(1, G2R):
                emit(x)
    finalize(1, X2[1], G2R)
    part_calc(X2[1], 246)
    stamp("fin")
    sched = {}
    xb = [x_loads(1, 1, j, 40 + 2 * j) for j in range(DIST)]
    for kk in range(20):
        L = []
        if kk + DIST < 20:
            L += x_loads(1, 0, kk + DIST, 2 * (kk + DIST))
        if kk == PBK:
            L = L + [lambda: part_pub(246, 1, SY_ST3, pre_wait="xst")]
        if kk == S3K - 4:
            L = L + st3_loads(1, TMP)
        if kk == S3K:
            L = [lambda: stats3(1, STB)] + L
        if kk >= S3K:
            for _ in range(-(-DIST // (20 - S3K))):
                if xb and (DIST - len(xb)) + 8 < kk:
                    L += xb.pop(0)
        sched[kk] = L
    assert not xb
    g1_main(0, sched)
    stamp("g1a'")
    g1_epilogue(1, 0, STA)
    stamp("e1a'")
    sched, rest = g1b_sched(1, {})
    g1_main(40, sched)
    stamp("g1b'")
    for L in rest:
        for x in L:
            emit(x)
    g1_epilogue(1, 1, STB)
    stamp("e1b'")
    g2a(1)
    out_store(0, X2[0])
    stamp("r2a'")
    g2_main(0, g2b_sched(1, {}), X1R[1], X2[1])
    g2_reduce(X2[1])
    out_store(1, X2[1])
    if DIAG:
        in_srd(k, 96, 88, 256)
        k("s_cmp_eq_u32 s101, 0")
        k("s_cselect_b32 s10, 0x40000000, 0")
        k("s_lshl_b32 s11, s2, 8")
        k("s_or_b32 s11, s11, s101")
        k("s_lshl_b32 s12, s3, 16")
        k("s_or_b32 s11, s11, s12")
        k("v_mov_b32 v0, s11")
        k("s_and_b32 s12, s101, 0xe")
        k("s_lshl_b32 s12, s12, 1")
        k("v_mov_b32 v1, s12")
        ML("buffer_store_dword v0, v1, s[96:99], s10 offen", 1)()
    if os.environ.get("DBGST"):
        k.stamp("end")
        k.wait(vm=0, lg=0)
        in_srd(k, 96, 88, 256)
        k("s_lshl_b32 s10, s2, 2")
        k("s_add_u32 s10, s10, s3")
        k(f"s_cmp_eq_u32 s10, {int(os.environ['DBGST'])*4}")
        k("s_cselect_b32 s10, 0, 0x40000000")
        k("v_mov_b32 v0, 0")
        for i in range(1, len(k.stamps)):
            k(f"s_sub_u32 s11, s{64+2*i}, s64")
            k("v_mov_b32 v1, s11")
            ML(f"buffer_store_dword v1, v0, s[96:99], s10 offen offset:{4*i}", 1)()
        print(k.stamps)
    else:
        k.prof_end(2, 24, 3, names="main")
    k.label("main_end", flush=False)
    k("s_endpgm")
    k.raw("main_code_end:")
    return k


DOC = """; ---------------------------------------------------------------------------------------------
; ---------------------------------------------------------------------------------------------
"""

if __name__ == "__main__":
    if os.environ.get("PROF"):
        Kern.PROF = True
    main = gen_main()
    out = sys.argv[1] if len(sys.argv) > 1 else "v28.s"
    txt = build_file(HEADER, [main], [main]).replace(f"; @launch kernel={KNAME} ", "; @launch ")
    txt = txt.replace(".text\n", ".text\n" + DOC, 1)
    open(out, "w").write(txt)
    json.dump(PROFINFO, open(out + ".prof.json", "w"))
    print("instrs", main.nins, "vgpr", main.maxv + 1, "agpr", main.maxa + 1, "sgpr", main.maxs + 1, "lds", main.lds)
```
